```python
import torch

def _softmax(x, axis=-1):
    return torch.softmax(x, dim=axis)
def _gelu(x):
    return torch.nn.functional.gelu(x, approximate="tanh")
def _silu(x):
    return torch.nn.functional.silu(x)
def _sigmoid(x):
    return torch.sigmoid(x)
def _layernorm(x, axis=-1, eps=1e-5):
    m = x.mean(dim=axis, keepdim=True)
    v = x.var(dim=axis, keepdim=True, unbiased=False)
    return (x - m) / torch.sqrt(v + eps)
def _scatter_add(tgt, idx, src, axis=0):
    return tgt.clone().index_add_(axis, idx, src)
def _segment_sum(src, seg, n):
    out = torch.zeros((n,) + src.shape[1:], dtype=src.dtype)
    return out.index_add_(0, seg, src)
def _pad(x, pw):
    flat = tuple(v for pair in reversed(pw) for v in pair)
    return torch.nn.functional.pad(x, flat)

kernel_name = 'recurrent_scan__gqa_block_cached__glu_gated_glu__decode'

def setup_inputs():

    _w = (lambda a: (lambda t: t.to(torch.bfloat16) if t.is_floating_point() else t)(torch.as_tensor(a)))
    def _A_setup():
        B, Sq, D = 1, 1, 512
        Hq, Hkv, Sk, Dh = 32, 8, 65536, 128
        assert Hq % Hkv == 0, (Hq, Hkv)
        return {
            "x": _w((lambda *s: torch.randn(*s, dtype=torch.bfloat16) * 0.05)(B, Sq, D)),
            "k_cache": _w((lambda *s: torch.randn(*s, dtype=torch.bfloat16) * 1.6)(B, Hkv, Sk, Dh)),
            "v_cache": _w((lambda *s: torch.randn(*s, dtype=torch.bfloat16) * 0.8)(B, Hkv, Sk, Dh)),
            "wq": _w((lambda *s: torch.randn(*s, dtype=torch.bfloat16) * 1.6)(D, Hq * Dh) * (D ** -0.5)),
            "wo": _w((lambda *s: torch.randn(*s, dtype=torch.bfloat16) * 0.8)(Hq * Dh, D) * ((Hq * Dh) ** -0.5)),
        }
    _A_in = _A_setup()

    def _B_setup():
        B, S, D, F = 1, 1, 512, 1792
        return {
            "x": _w((lambda *s: torch.randn(*s, dtype=torch.bfloat16) * 0.05)(B, S, D)),
            "w_gate": _w((lambda *s: torch.randn(*s, dtype=torch.bfloat16) * 0.8)(D, F)),
            "w_up": _w((lambda *s: torch.randn(*s, dtype=torch.bfloat16) * 0.2)(D, F)),
            "w_down": _w((lambda *s: torch.randn(*s, dtype=torch.bfloat16) * 0.2)(F, D)),
        }
    _B_in = _B_setup()

    return {
        "A_x": _A_in["x"],
        "A_k_cache": _A_in["k_cache"],
        "A_v_cache": _A_in["v_cache"],
        "A_wq": _A_in["wq"],
        "A_wo": _A_in["wo"],
        "B_x": _B_in["x"],
        "B_w_gate": _B_in["w_gate"],
        "B_w_up": _B_in["w_up"],
        "B_w_down": _B_in["w_down"],
    }

def reference(A_x, A_k_cache, A_v_cache, A_wq, A_wo, B_x, B_w_gate, B_w_up, B_w_down):
    def _A_ref(x, k_cache, v_cache, wq, wo):
        B, Sq, D = x.shape
        Hq, Dh = 32, 128
        Hkv = k_cache.shape[1]
        rep = Hq // Hkv
        q = (lambda x, *d: x.permute(*d))((x @ wq).reshape(B, Sq, Hq, Dh), 0, 2, 1, 3)
        k = (lambda x, n, axis: torch.repeat_interleave(x, n, dim=axis))(k_cache, rep, axis=1)
        v = (lambda x, n, axis: torch.repeat_interleave(x, n, dim=axis))(v_cache, rep, axis=1)
        scores = torch.einsum("bhqd,bhkd->bhqk", q, k) * (Dh ** -0.5)
        p = _softmax(scores, axis=-1)
        o = torch.einsum("bhqk,bhkd->bhqd", p, v)
        return (lambda x, *d: x.permute(*d))(o, 0, 2, 1, 3).reshape(B, Sq, Hq * Dh) @ wo

    def _B_ref(x, w_gate, w_up, w_down):
        g = torch.einsum("bsd,df->bsf", x, w_gate)
        u = torch.einsum("bsd,df->bsf", x, w_up)
        h = _sigmoid(g) * u
        return torch.einsum("bsf,fd->bsd", h, w_down)

    x = A_x
    xn = _layernorm(x, axis=-1)
    s = _A_ref(xn, A_k_cache, A_v_cache, A_wq, A_wo)
    g = _silu(_B_ref(xn, B_w_gate, B_w_up, B_w_down))
    return x + s * g
```

```python
import sys, json, struct

KNAME = "recurrent_scan__gqa_block_cached__glu_gated_glu__decode"
HEADER = open("cdna_kernels/" + KNAME + ".s.ref").read().split("; Override launch")[0] \
    if __name__ == "__main__" or True else ""

def f2u(x):
    return struct.unpack("<I", struct.pack("<f", x))[0]

LOG2E = 1.4426950408889634
WS_EPOCH = 0x0
WS_QX = 0x1000
WS_H1 = 0x10000
WS_H2 = 0x110000
WS_GL = 0x210000
WS_STAMP = 0x1000000
WS_SIZE = 0x20000000
L_Q = 0
L_TAG = 1024
L_RED = 1088
L_ML = 1536
L_PART = 2048
PSZ = 2304
L_BACK = 12288

vQ = 16; vO = 32; vL = 64; vS = 68; vT = 76; vP = 84; vONE = 88; vM = 92; vMN = 93; vX0 = 94; vX1 = 95
vA = 96
vK = [128, 192]; vV = [160, 224]
sX, sK, sV, sWQ, sWO, sBX, sWG, sWU, sWD, sOUT, sDBG, sWS = 4, 6, 8, 10, 12, 14, 16, 18, 20, 22, 24, 26
rK, rV, rWS, rA, rB, rC, rD = 28, 32, 36, 40, 44, 48, 52
sW, sHEAD, sJ, sX8, sJJ = 56, 57, 58, 59, 60
sKO, sVO, sCNT, sTAG = 61, 62, 63, 64
sSELL, sSELH, sSCALE, sLOG2E, sHI = 65, 66, 67, 68, 69
sT0, sT1, sT2, sT3 = 70, 71, 72, 73
sH = 74
sEX = 82
sSPIN = 84
sLB = 85
sST = 86


class G:
    def __init__(self):
        self.L = []
        self.n = 0
    def __call__(self, s):
        for line in s.strip("\n").split("\n"):
            self.L.append("    " + line.strip() if not line.strip().endswith(":") else line.strip())
    def label(self, base):
        self.n += 1
        return f"L_{base}_{self.n}"


def v4(r):
    return f"v[{r}:{r+3}]"
def v2(r):
    return f"v[{r}:{r+1}]"
def s4(r):
    return f"s[{r}:{r+3}]"
def s2(r):
    return f"s[{r}:{r+1}]"


def gen(kvflags="nt", wflags="nt", NB=8, depth=24, hmap="mod", stamps=False, mimic=True, dma_depth=12):
    A = G()
    lds_bytes = L_BACK + NB * 16384
    NBH = NB // 2
    NDIR = (64 - NB) // 2
    assert NDIR % 2 == 0

    def srd(r, base, size):
        A(f"s_mov_b32 s{r}, s{base}\ns_mov_b32 s{r+1}, s{base+1}\ns_mov_b32 s{r+2}, {size}\ns_mov_b32 s{r+3}, 0x20000")

    def stamp(i):
        if stamps:
            A(f"s_memrealtime {s2(sST + 2 * i)}")

    def wave_sum(r, t):
        for k in (8, 4, 2, 1):
            A("s_nop 1")
            A(f"v_add_f32 v{r}, v{r}, v{r} row_ror:{k}")
        A(f"v_mov_b32 v{t}, v{r}\ns_nop 1\nv_permlane16_swap_b32 v{r}, v{t}\ns_nop 1\nv_add_f32 v{r}, v{r}, v{t}")
        A(f"v_mov_b32 v{t}, v{r}\ns_nop 1\nv_permlane32_swap_b32 v{r}, v{t}\ns_nop 1\nv_add_f32 v{r}, v{r}, v{t}")

    def rnd_bf16(r):
        A(f"v_cvt_pk_bf16_f32 v{r}, v{r}, v{r}\nv_and_b32 v{r}, 0xffff0000, v{r}")

    def matvec8(W, xs, acc, tmp):
        for j in range(4):
            for u in range(4):
                A(f"v_perm_b32 v{tmp+2*u}, v{W+(2*j+1)*4+u}, v{W+(2*j)*4+u}, s{sSELL}")
                A(f"v_perm_b32 v{tmp+2*u+1}, v{W+(2*j+1)*4+u}, v{W+(2*j)*4+u}, s{sSELH}")
            for e in range(8):
                c = "0" if j == 0 else f"v{acc+e}"
                A(f"v_dot2_f32_bf16 v{acc+e}, {xs[j]}, v{tmp+e}, {c}")
        A("s_nop 2")

    def reduce8(acc):
        A("s_nop 1")
        for e in range(4):
            A(f"v_permlane32_swap_b32 v{acc+e}, v{acc+4+e}")
        A("s_nop 1")
        for e in range(4):
            A(f"v_add_f32 v{acc+e}, v{acc+e}, v{acc+4+e}")
        A("s_nop 1")
        for e in range(2):
            A(f"v_permlane16_swap_b32 v{acc+e}, v{acc+2+e}")
        A("s_nop 1")
        for e in range(2):
            A(f"v_add_f32 v{acc+e}, v{acc+e}, v{acc+2+e}")
        for k in (8, 4, 2, 1):
            A("s_nop 0")
            for e in range(2):
                A(f"v_add_f32 v{acc+e}, v{acc+e}, v{acc+e} row_ror:{k}")
        A("s_nop 0")

    def issue_k(dst, lds=None):
        for n in range(8):
            b, s = n // 4, n % 4
            if lds is None:
                A(f"buffer_load_dwordx4 {v4(dst+4*n)}, v{2+b}, {s4(rK)}, s{sKO} offen offset:{64*s} {kvflags}")
            else:
                if n % 4 == 0 and dma_depth:
                    A(f"s_waitcnt vmcnt({dma_depth-4})")
                A(f"s_add_u32 m0, s{sLB}, {lds + n*1024 - 64*s}")
                A("s_nop 0")
                A(f"buffer_load_dwordx4 v{2+b}, {s4(rK)}, s{sKO} offen offset:{64*s} {kvflags} lds")
        A(f"s_add_u32 s{sKO}, s{sKO}, 16384")

    def issue_v(dst, lds=None):
        for n in range(8):
            b, s = n // 4, n % 4
            if lds is None:
                A(f"buffer_load_dwordx4 {v4(dst+4*n)}, v{4+b}, {s4(rV)}, s{sVO} offen offset:{1024*s} {kvflags}")
            else:
                if n % 4 == 0:
                    if dma_depth:
                        A(f"s_waitcnt vmcnt({dma_depth-4})")
                    A(f"s_add_u32 m0, s{sLB}, {lds + b*4096}")
                    A("s_nop 0")
                A(f"buffer_load_dwordx4 v{4+b}, {s4(rV)}, s{sVO} offen offset:{1024*s} {kvflags} lds")
        A(f"s_add_u32 s{sVO}, s{sVO}, 16384")

    def qk_softmax(K):
        for s in range(4):
            for b in range(2):
                c = "0" if s == 0 else v4(vS + 4 * b)
                A(f"v_mfma_f32_16x16x32_bf16 {v4(vS+4*b)}, {v4(K+16*b+4*s)}, {v4(vQ+4*s)}, {c}")
        A("s_nop 7")
        if mimic:
            for j in range(4):
                A(f"v_cvt_pk_bf16_f32 v{vT+j}, v{vS+2*j}, v{vS+2*j+1}")
            for j in range(4):
                A(f"v_lshlrev_b32 v{vS+2*j}, 16, v{vT+j}")
                A(f"v_and_b32 v{vS+2*j+1}, s{sHI}, v{vT+j}")
            for i in range(8):
                A(f"v_mul_f32 v{vS+i}, s{sSCALE}, v{vS+i}")
            for j in range(4):
                A(f"v_cvt_pk_bf16_f32 v{vT+j}, v{vS+2*j}, v{vS+2*j+1}")
            for j in range(4):
                A(f"v_lshlrev_b32 v{vS+2*j}, 16, v{vT+j}")
                A(f"v_and_b32 v{vS+2*j+1}, s{sHI}, v{vT+j}")
        else:
            for i in range(8):
                A(f"v_mul_f32 v{vS+i}, s{sSCALE}, v{vS+i}")
        A(f"v_max3_f32 v{vX0}, v{vS}, v{vS+1}, v{vS+2}")
        A(f"v_max3_f32 v{vX1}, v{vS+3}, v{vS+4}, v{vS+5}")
        A(f"v_max3_f32 v{vX0}, v{vX0}, v{vS+6}, v{vS+7}")
        A(f"v_max_f32 v{vX0}, v{vX0}, v{vX1}")
        skip = A.label("nors")
        A(f"v_cmp_gt_f32 vcc, v{vX0}, v{vM}")
        A(f"s_cbranch_vccz {skip}")
        A(f"v_max_f32 v{vX0}, v{vX0}, v{vM}")
        A(f"v_mov_b32 v{vX1}, v{vX0}\ns_nop 1\nv_permlane16_swap_b32 v{vX0}, v{vX1}\ns_nop 1\nv_max_f32 v{vX0}, v{vX0}, v{vX1}")
        A(f"v_mov_b32 v{vX1}, v{vX0}\ns_nop 1\nv_permlane32_swap_b32 v{vX0}, v{vX1}\ns_nop 1\nv_max_f32 v{vX0}, v{vX0}, v{vX1}")
        A(f"v_sub_f32 v{vX1}, v{vM}, v{vX0}")
        A(f"v_mul_f32 v{vX1}, s{sLOG2E}, v{vX1}")
        A(f"v_exp_f32 v{vX1}, v{vX1}")
        A(f"v_mov_b32 v{vM}, v{vX0}")
        A(f"v_mul_f32 v{vMN}, s{sLOG2E}, v{vX0}")
        for i in range(36):
            A(f"v_mul_f32 v{vO+i}, v{vX1}, v{vO+i}")
        A(f"{skip}:")
        for i in range(8):
            A(f"v_fma_f32 v{vS+i}, v{vS+i}, s{sLOG2E}, -v{vMN}")
        for i in range(8):
            A(f"v_exp_f32 v{vS+i}, v{vS+i}")
        A("s_nop 0")
        for j in range(4):
            A(f"v_cvt_pk_bf16_f32 v{vP+j}, v{vS+2*j}, v{vS+2*j+1}")

    def pv(V):
        for u in range(4):
            for z in range(2):
                e = 2 * u + z
                sel = sSELH if z else sSELL
                for j in range(4):
                    A(f"v_perm_b32 v{vA+4*e+j}, v{V+(2*j+1)*4+u}, v{V+(2*j)*4+u}, s{sel}")
                if e == 0:
                    A(f"v_mfma_f32_16x16x32_bf16 {v4(vL)}, {v4(vONE)}, {v4(vP)}, {v4(vL)}")
                else:
                    A(f"v_mfma_f32_16x16x32_bf16 {v4(vO+4*(e-1))}, {v4(vA+4*(e-1))}, {v4(vP)}, {v4(vO+4*(e-1))}")
        A("s_nop 1")
        A(f"v_mfma_f32_16x16x32_bf16 {v4(vO+28)}, {v4(vA+28)}, {v4(vP)}, {v4(vO+28)}")

    def init_acc():
        for i in range(36):
            A(f"v_mov_b32 v{vO+i}, 0")
        for i in range(4):
            A(f"v_mov_b32 v{vONE+i}, 0x3f803f80")
        A(f"v_mov_b32 v{vM}, {hex(f2u(-1e30))}")
        A(f"v_mul_f32 v{vMN}, s{sLOG2E}, v{vM}")

    def read_q():
        A("v_and_b32 v6, 3, v1\nv_lshlrev_b32 v6, 8, v6\nv_lshrrev_b32 v7, 4, v1\nv_lshl_add_u32 v6, v7, 4, v6")
        for s in range(4):
            A(f"ds_read_b128 {v4(vQ+4*s)}, v6 offset:{L_Q + 64*s}")
        A(f"v_mov_b32 v7, 0\nds_read_b32 v7, v7 offset:{L_TAG}")
        A("s_waitcnt lgkmcnt(0)")
        A(f"v_readfirstlane_b32 s{sTAG}, v7")

    def write_partial():
        A("s_nop 7")
        A(f"v_and_b32 v6, 3, v1\nv_lshrrev_b32 v7, 4, v1\nv_lshl_add_u32 v7, v6, 2, v7\nv_mul_u32_u24 v7, 144, v7")
        A(f"s_mul_i32 s{sT0}, s{sW}, {PSZ}\nv_add_u32 v7, s{sT0}, v7")
        A(f"s_lshl_b32 s{sT0}, s{sW}, 5\nv_lshl_add_u32 v6, v6, 3, s{sT0}")
        A(f"v_mov_b32 v{vX0}, v{vM}\nv_mov_b32 v{vX1}, v{vL}")
        A(f"s_mov_b32 exec_lo, 0x000f000f\ns_mov_b32 exec_hi, 0x000f000f")
        for e in range(8):
            A(f"ds_write_b128 v7, {v4(vO+4*e)} offset:{L_PART + 16*e}")
        A(f"ds_write_b64 v6, {v2(vX0)} offset:{L_ML}")
        A("s_mov_b64 exec, -1")

    def poll(loads, tagregs, name):
        top = A.label(name); done = A.label(name + "_ok")
        A(f"s_mov_b32 s{sSPIN}, 0")
        A(f"{top}:")
        for l in loads:
            A(l)
        A("s_waitcnt vmcnt(0)")
        A(f"v_xor_b32 v{vX0}, s{sTAG}, v{tagregs[0]}")
        for r in tagregs[1:]:
            A(f"v_xor_b32 v{vX1}, s{sTAG}, v{r}\nv_or_b32 v{vX0}, v{vX0}, v{vX1}")
        A(f"v_cmp_ne_u32 vcc, 0, v{vX0}")
        A(f"s_cbranch_vccz {done}")
        A(f"s_add_u32 s{sSPIN}, s{sSPIN}, 1\ns_cmp_lt_u32 s{sSPIN}, 0x40000\ns_cbranch_scc1 {top}")
        A(f"{done}:")

    def red_rep8(regs, op, t):
        A("s_nop 1")
        for r in regs:
            A(f"{op} v{r}, v{r}, v{r} row_ror:8")
        for sw in ("v_permlane16_swap_b32", "v_permlane32_swap_b32"):
            for i, r in enumerate(regs):
                A(f"v_mov_b32 v{t+i}, v{r}")
            A("s_nop 1")
            for i, r in enumerate(regs):
                A(f"{sw} v{r}, v{t+i}")
            A("s_nop 1")
            for i, r in enumerate(regs):
                A(f"{op} v{r}, v{r}, v{t+i}")

    A(f"{KNAME}_kernel:")
    A("s_cmp_ge_u32 s2, 256\ns_cbranch_scc1 L_end")
    stamp(0)
    A(f"s_load_dwordx16 s[4:19], s[0:1], 0\ns_load_dwordx8 s[20:27], s[0:1], 64")
    A(f"v_lshrrev_b32 v2, 6, v0\nv_and_b32 v1, 63, v0")
    A(f"s_and_b32 s{sX8}, s2, 7\ns_lshr_b32 s{sJJ}, s2, 3")
    A(f"v_readfirstlane_b32 s{sW}, v2")
    if hmap == "mod":
        A(f"s_mov_b32 s{sHEAD}, s{sX8}\ns_mov_b32 s{sJ}, s{sJJ}")
    else:
        A(f"s_and_b32 s{sHEAD}, s{sJJ}, 7\ns_lshr_b32 s{sJ}, s2, 6\ns_lshl_b32 s{sJ}, s{sJ}, 3\ns_add_u32 s{sJ}, s{sJ}, s{sX8}")
    A(f"s_mov_b32 s{sSELL}, 0x05040100\ns_mov_b32 s{sSELH}, 0x07060302")
    A(f"s_mov_b32 s{sSCALE}, {hex(f2u(128 ** -0.5))}\ns_mov_b32 s{sLOG2E}, {hex(f2u(LOG2E))}\ns_mov_b32 s{sHI}, 0xffff0000")
    if stamps:
        for i in range(1, 8):
            A(f"s_mov_b64 {s2(sST+2*i)}, 0")
    A(f"s_cmp_ge_u32 s{sW}, 2")
    A("s_cbranch_scc1 L_helper")

    A("v_and_b32 v6, 3, v1\nv_lshlrev_b32 v6, 10, v6\nv_bfe_u32 v7, v1, 2, 2\nv_lshl_add_u32 v6, v7, 8, v6")
    A("v_lshrrev_b32 v7, 4, v1\nv_lshl_add_u32 v2, v7, 4, v6\nv_add_u32 v3, 4096, v2")
    A("v_lshlrev_b32 v4, 4, v1\nv_add_u32 v5, 4096, v4")
    A(f"s_lshl_b32 s{sT0}, s{sHEAD}, 24\ns_lshl_b32 s{sT1}, s{sJ}, 19\ns_add_u32 s{sT0}, s{sT0}, s{sT1}")
    A(f"s_lshl_b32 s{sKO}, s{sW}, 13\ns_mov_b32 s{sVO}, s{sKO}")
    A(f"s_mul_i32 s{sLB}, s{sW}, {NBH*16384}")
    A("s_waitcnt lgkmcnt(0)")
    A(f"s_add_u32 s{rK}, s{sK}, s{sT0}\ns_addc_u32 s{rK+1}, s{sK+1}, 0\ns_mov_b32 s{rK+2}, 0x80000\ns_mov_b32 s{rK+3}, 0x20000")
    A(f"s_add_u32 s{rV}, s{sV}, s{sT0}\ns_addc_u32 s{rV+1}, s{sV+1}, 0\ns_mov_b32 s{rV+2}, 0x80000\ns_mov_b32 s{rV+3}, 0x20000")
    srd(rWS, sWS, hex(WS_SIZE))
    if NB:
        A(f"s_mov_b32 s{sCNT}, {NBH}")
        A("L_dma:")
        issue_k(None, lds=L_BACK)
        issue_v(None, lds=L_BACK + 8192)
        A(f"s_add_u32 s{sLB}, s{sLB}, 16384\ns_sub_u32 s{sCNT}, s{sCNT}, 1\ns_cmp_lg_u32 s{sCNT}, 0\ns_cbranch_scc1 L_dma")
    if dma_depth: A(f"s_waitcnt vmcnt({dma_depth-4})")
    issue_k(vK[0])
    if dma_depth: A(f"s_waitcnt vmcnt(8)")
    issue_v(vV[0])
    if depth == 24:
        if dma_depth: A(f"s_waitcnt vmcnt(8)")
        issue_k(vK[1])
    init_acc()
    A(f"s_waitcnt vmcnt({depth})")
    stamp(1)
    A("s_barrier")
    stamp(2)
    read_q()
    A(f"s_mov_b32 s{sCNT}, {NDIR//2}")
    A("L_loop:")
    for b in range(2):
        if depth == 24:
            A("s_waitcnt vmcnt(16)")
            issue_v(vV[b ^ 1])
            qk_softmax(vK[b])
            A("s_waitcnt vmcnt(16)")
            issue_k(vK[b])
            pv(vV[b])
        else:
            A("s_waitcnt vmcnt(8)")
            issue_k(vK[b ^ 1])
            qk_softmax(vK[b])
            A("s_waitcnt vmcnt(8)")
            issue_v(vV[b ^ 1])
            pv(vV[b])
    A(f"s_sub_u32 s{sCNT}, s{sCNT}, 1\ns_cmp_lg_u32 s{sCNT}, 0\ns_cbranch_scc1 L_loop")
    stamp(3)
    write_partial()
    A("s_branch L_tail")

    A("L_helper:")
    A(f"s_sub_u32 s{sT3}, s{sW}, 2")
    A("v_lshlrev_b32 v4, 4, v1")
    A("v_lshlrev_b32 v5, 16, v1")
    A("v_mov_b32 v7, 0")
    A(f"s_lshl_b32 s{sT0}, s{sX8}, 5\ns_add_u32 s{sT0}, s{sT0}, s{sJJ}")
    A(f"s_lshl_b32 s{sT1}, s{sT0}, 5\ns_lshl_b32 s{sT2}, s{sT3}, 4\ns_add_u32 s{sT1}, s{sT1}, s{sT2}")
    A("s_waitcnt lgkmcnt(0)")
    srd(rWS, sWS, hex(WS_SIZE))
    srd(rA, sX, 1024)
    srd(rB, sWQ, hex(512 * 4096 * 2))
    A(f"buffer_load_dwordx4 v[8:11], v4, {s4(rA)}, 0 offen")
    A(f"buffer_load_dword v12, v7, {s4(rWS)}, 0 offen offset:{WS_EPOCH} sc1")
    Wb = 128
    for i in range(8):
        A(f"buffer_load_dwordx4 {v4(Wb+4*i)}, v5, {s4(rB)}, s{sT1} offen {wflags}")
        if i < 7:
            A(f"s_add_u32 s{sT1}, s{sT1}, 8192")
    A("s_waitcnt vmcnt(9)")
    F = 96; D = 104
    for k in range(4):
        A(f"v_lshlrev_b32 v{F+2*k}, 16, v{8+k}\nv_and_b32 v{F+2*k+1}, s{sHI}, v{8+k}")
    A(f"v_add_f32 v13, v{F}, v{F+1}")
    for k in range(2, 8):
        A(f"v_add_f32 v13, v13, v{F+k}")
    wave_sum(13, 14)
    A(f"v_mul_f32 v13, {hex(f2u(1/512))}, v13")
    for k in range(8):
        A(f"v_sub_f32 v{D+k}, v{F+k}, v13")
    A(f"v_mul_f32 v15, v{D}, v{D}")
    for k in range(1, 8):
        A(f"v_fmac_f32 v15, v{D+k}, v{D+k}")
    wave_sum(15, 14)
    A(f"v_mul_f32 v15, {hex(f2u(1/512))}, v15")
    rnd_bf16(13); rnd_bf16(15)
    A(f"v_add_f32 v15, {hex(f2u(1e-5))}, v15")
    rnd_bf16(15)
    A("v_sqrt_f32 v15, v15\ns_nop 0")
    rnd_bf16(15)
    A("v_rcp_f32 v15, v15")
    for k in range(8):
        A(f"v_sub_f32 v{D+k}, v{F+k}, v13")
    for k in range(4):
        A(f"v_cvt_pk_bf16_f32 v{F+k}, v{D+2*k}, v{D+2*k+1}")
    for k in range(4):
        A(f"v_lshlrev_b32 v{D+2*k}, 16, v{F+k}\nv_and_b32 v{D+2*k+1}, s{sHI}, v{F+k}")
    for k in range(8):
        A(f"v_mul_f32 v{D+k}, v{D+k}, v15")
    for k in range(4):
        A(f"v_cvt_pk_bf16_f32 v{8+k}, v{D+2*k}, v{D+2*k+1}")
    A("s_waitcnt vmcnt(0)")
    A(f"v_readfirstlane_b32 s{sTAG}, v12")
    XN = [f"v{8+k}" for k in range(4)]
    matvec8(Wb, XN, 96, 104)
    A(f"s_add_u32 s{sTAG}, s{sTAG}, 0x9E3779B1")
    reduce8(96)
    A(f"v_cvt_pk_bf16_f32 v96, v96, v97\nv_mov_b32 v97, s{sTAG}")
    A(f"v_lshrrev_b32 v6, 4, v1\nv_lshlrev_b32 v6, 3, v6")
    A(f"s_lshl_b32 s{sT1}, s{sT0}, 6\ns_lshl_b32 s{sT2}, s{sT3}, 5\ns_add_u32 s{sT1}, s{sT1}, s{sT2}\ns_add_u32 s{sT1}, s{sT1}, {WS_QX}")
    A("s_mov_b32 exec_lo, 0x00010001\ns_mov_b32 exec_hi, 0x00010001")
    A(f"buffer_store_dwordx2 v[96:97], v6, {s4(rWS)}, s{sT1} offen sc1")
    A("s_mov_b64 exec, -1")
    stamp(1)
    A(f"s_lshl_b32 s{sT1}, s{sHEAD}, 11\ns_lshl_b32 s{sT2}, s{sT3}, 10\ns_add_u32 s{sT1}, s{sT1}, s{sT2}\ns_add_u32 s{sT1}, s{sT1}, {WS_QX}")
    poll([f"buffer_load_dwordx4 v[100:103], v4, {s4(rWS)}, s{sT1} offen sc1"], [101, 103], "qpoll")
    A("v_mov_b32 v101, v102")
    A(f"s_lshl_b32 s{sT2}, s{sT3}, 9\nv_lshl_add_u32 v6, v1, 3, s{sT2}")
    A(f"ds_write_b64 v6, v[100:101] offset:{L_Q}")
    A(f"ds_write_b32 v7, v97 offset:{L_TAG}")
    init_acc()
    A("s_waitcnt lgkmcnt(0)")
    stamp(2)
    A("s_barrier")
    read_q()
    if NB:
        A(f"s_mul_i32 s{sLB}, s{sT3}, {NBH*16384}\nv_add_u32 v6, s{sLB}, v4\nv_add_u32 v6, {L_BACK}, v6")
        A(f"s_mov_b32 s{sCNT}, {NBH}")
        A("L_back:")
        for n in range(8):
            A(f"ds_read_b128 {v4(vK[0]+4*n)}, v6 offset:{1024*n}")
        for n in range(8):
            A(f"ds_read_b128 {v4(vV[0]+4*n)}, v6 offset:{8192+1024*n}")
        A("s_waitcnt lgkmcnt(0)" if stamps else "s_waitcnt lgkmcnt(8)")
        qk_softmax(vK[0])
        A("s_waitcnt lgkmcnt(0)")
        pv(vV[0])
        A(f"v_add_u32 v6, 16384, v6\ns_sub_u32 s{sCNT}, s{sCNT}, 1\ns_cmp_lg_u32 s{sCNT}, 0\ns_cbranch_scc1 L_back")
    write_partial()
    stamp(3)
    A(f"s_cmp_eq_u32 s{sW}, 3\ns_cbranch_scc1 L_help3")
    A(f"s_cmp_ge_u32 s{sJJ}, 28\ns_cbranch_scc1 L_tail")
    srd(rA, sWG, hex(512 * 1792 * 2)); srd(rB, sWU, hex(512 * 1792 * 2)); srd(rC, sWD, hex(512 * 1792 * 2))
    A(f"s_mul_i32 s{sT0}, s{sX8}, 28\ns_add_u32 s{sT0}, s{sT0}, s{sJJ}")
    A(f"s_lshl_b32 s{sT1}, s{sT0}, 4")
    A(f"v_mul_u32_u24 v5, {8*3584}, v1")
    for i in range(8):
        A(f"buffer_load_dwordx4 {v4(128+4*i)}, v5, {s4(rA)}, s{sT1} offen {wflags}")
        A(f"buffer_load_dwordx4 {v4(160+4*i)}, v5, {s4(rB)}, s{sT1} offen {wflags}")
        A(f"s_add_u32 s{sT1}, s{sT1}, 3584")
    A(f"s_lshl_b32 s{sT1}, s{sT0}, 13")
    for i in range(8):
        A(f"buffer_load_dwordx4 {v4(192+4*i)}, v4, {s4(rC)}, s{sT1} offen {wflags}")
        A(f"s_add_u32 s{sT1}, s{sT1}, 1024")
    A("s_waitcnt vmcnt(8)")
    matvec8(128, XN, 96, 112)
    matvec8(160, XN, 104, 112)
    reduce8(96); reduce8(104)
    for e in range(2):
        rnd_bf16(96 + e); rnd_bf16(104 + e)
        A(f"v_mul_f32 v{96+e}, s{sLOG2E}, v{96+e}\nv_exp_f32 v{96+e}, -v{96+e}\ns_nop 0\nv_add_f32 v{96+e}, 1.0, v{96+e}\nv_rcp_f32 v{96+e}, v{96+e}\ns_nop 0")
        rnd_bf16(96 + e)
        A(f"v_mul_f32 v{96+e}, v{96+e}, v{104+e}")
    A("v_cvt_pk_bf16_f32 v96, v96, v97\ns_nop 1")
    for r in range(4):
        A(f"v_readlane_b32 s{sH+r}, v96, {16*r}")
    A("s_waitcnt vmcnt(0)")
    matvec8(192, [f"s{sH+r}" for r in range(4)], 96, 112)
    A(f"v_lshrrev_b32 v6, 1, v1\nv_lshlrev_b32 v6, 15, v6\nv_and_b32 v7, 1, v1\nv_lshl_add_u32 v6, v7, 6, v6")
    A(f"s_lshl_b32 s{sT1}, s{sT0}, 7\ns_add_u32 s{sT1}, s{sT1}, {WS_GL}")
    for k in range(4):
        A(f"v_mov_b32 v{112+4*k}, v{96+2*k}\nv_mov_b32 v{113+4*k}, v{97+2*k}\nv_mov_b32 v{114+4*k}, s{sTAG}\nv_mov_b32 v{115+4*k}, s{sTAG}")
        A(f"buffer_store_dwordx4 {v4(112+4*k)}, v6, {s4(rWS)}, s{sT1} offen offset:{16*k} sc1")
    A("s_branch L_tail")
    A("L_help3:")
    L_WO = L_BACK + (NB - 1) * 16384 if NB else L_BACK
    if not NB:
        lds_bytes = L_BACK + 16384
    srd(rA, sWO, hex(4096 * 512 * 2))
    A(f"s_lshr_b32 s{sT0}, s{sJ}, 3\ns_lshl_b32 s{sT1}, s{sHEAD}, 2\ns_add_u32 s{sT0}, s{sT0}, s{sT1}\ns_lshl_b32 s{sT0}, s{sT0}, 7")
    A(f"s_bfe_u32 s{sT1}, s{sJ}, 0x20001\ns_lshl_b32 s{sT1}, s{sT1}, 5\ns_add_u32 s{sT0}, s{sT0}, s{sT1}")
    A(f"s_and_b32 s{sT1}, s{sJ}, 1\ns_lshl_b32 s{sT1}, s{sT1}, 2\ns_add_u32 s{sT0}, s{sT0}, s{sT1}\ns_lshl_b32 s{sT0}, s{sT0}, 10")
    A("s_waitcnt lgkmcnt(0)")
    for u in range(8):
        for z in range(2):
            row = 16 * (u & 1) + 8 * z + (u >> 1)
            A(f"s_mov_b32 m0, {L_WO + (2*u+z)*1024}\ns_add_u32 s{sT1}, s{sT0}, {row*1024}")
            A(f"buffer_load_dwordx4 v4, {s4(rA)}, s{sT1} offen {wflags} lds")
    A(f"s_cmp_lt_u32 s{sJJ}, 28\ns_cbranch_scc1 L_tail")
    A(f"s_lshl_b32 s{sT0}, s{sX8}, 2\ns_add_u32 s{sT0}, s{sT0}, s{sJJ}\ns_sub_u32 s{sT0}, s{sT0}, 28")
    srd(rB, sX, 1024)
    A(f"v_and_b32 v6, 7, v1\nv_lshlrev_b32 v6, 2, v6\ns_lshl_b32 s{sT1}, s{sT0}, 5")
    A(f"buffer_load_dword v14, v6, {s4(rB)}, s{sT1} offen")
    A(f"s_lshl_b32 s{sT1}, s{sT0}, 15\ns_add_u32 s{sT1}, s{sT1}, {WS_GL}")
    lds_ = []
    for i in range(28):
        if i and i % 4 == 0:
            lds_.append(f"s_add_u32 s{sT2}, s{sT2}, 4096")
        elif i == 0:
            lds_.append(f"s_mov_b32 s{sT2}, s{sT1}")
        lds_.append(f"buffer_load_dwordx4 {v4(128+4*i)}, v4, {s4(rWS)}, s{sT2} offen offset:{1024*(i%4)} sc1")
    poll(["s_sleep 8"] + lds_, [128 + 4 * i + 2 for i in range(28)], "gpoll")
    for i in range(1, 28):
        A(f"v_add_f32 v128, v128, v{128+4*i}\nv_add_f32 v129, v129, v{129+4*i}")
    red_rep8([128, 129], "v_add_f32", 132)
    for e in range(2):
        rnd_bf16(128 + e)
        A(f"v_mul_f32 v132, s{sLOG2E}, v{128+e}\nv_exp_f32 v132, -v132\ns_nop 0\nv_add_f32 v132, 1.0, v132\nv_rcp_f32 v132, v132\ns_nop 0")
        A(f"v_mul_f32 v{12+e}, v{128+e}, v132")
        rnd_bf16(12 + e)

    A("L_tail:")
    A("s_waitcnt vmcnt(0) lgkmcnt(0)")
    A("s_barrier")
    stamp(4)
    A(f"v_lshrrev_b32 v6, 4, v1\ns_lshl_b32 s{sT0}, s{sW}, 2\nv_add_u32 v6, s{sT0}, v6\nv_mul_u32_u24 v6, 144, v6")
    A(f"v_and_b32 v7, 15, v1\nv_lshl_add_u32 v6, v7, 3, v6")
    A(f"s_lshl_b32 s{sT0}, s{sW}, 3\nv_mov_b32 v7, s{sT0}")
    for p in range(4):
        A(f"ds_read_b64 {v2(96+2*p)}, v7 offset:{L_ML + 32*p}")
    for p in range(4):
        A(f"ds_read_b64 {v2(104+2*p)}, v6 offset:{L_PART + PSZ*p}")
    A(f"v_lshrrev_b32 v6, 3, v1\nv_lshlrev_b32 v6, 12, v6\nv_and_b32 v7, 7, v1\nv_lshl_add_u32 v6, v7, 4, v6")
    A(f"s_lshl_b32 s{sT0}, s{sHEAD}, 17\ns_lshl_b32 s{sT1}, s{sW}, 15\ns_add_u32 s{sT1}, s{sT1}, s{sT0}")
    A(f"s_lshl_b32 s{sT2}, s{sJ}, 7\ns_add_u32 s{sT1}, s{sT1}, s{sT2}\ns_add_u32 s{sT1}, s{sT1}, {WS_H1}")
    A("s_waitcnt lgkmcnt(0)" if stamps else "s_waitcnt lgkmcnt(4)")
    A("v_max3_f32 v112, v96, v98, v100\nv_max_f32 v112, v112, v102")
    for p in range(4):
        A(f"v_sub_f32 v{96+2*p}, v{96+2*p}, v112")
    for p in range(4):
        A(f"v_mul_f32 v{96+2*p}, s{sLOG2E}, v{96+2*p}")
    for p in range(4):
        A(f"v_exp_f32 v{96+2*p}, v{96+2*p}")
    A("s_waitcnt lgkmcnt(0)")
    A("v_mul_f32 v113, v96, v97\nv_mul_f32 v116, v96, v104\nv_mul_f32 v117, v96, v105")
    for p in range(1, 4):
        A(f"v_fmac_f32 v113, v{96+2*p}, v{97+2*p}\nv_fmac_f32 v116, v{96+2*p}, v{104+2*p}\nv_fmac_f32 v117, v{96+2*p}, v{105+2*p}")
    A(f"v_rcp_f32 v114, v113\nv_log_f32 v118, v113\nv_mov_b32 v119, s{sTAG}")
    A(f"v_mul_f32 v116, v116, v114\nv_mul_f32 v117, v117, v114\nv_fmac_f32 v118, s{sLOG2E}, v112")
    A(f"buffer_store_dwordx4 v[116:119], v6, {s4(rWS)}, s{sT1} offen sc1")
    A(f"s_lshl_b32 s{sT2}, s{sW}, 8\nv_lshl_add_u32 v7, v1, 2, s{sT2}\nv_add_u32 v7, {L_WO}, v7")
    for n in range(16):
        A(f"ds_read_b32 v{160+n}, v7 offset:{1024*n}")
    A("s_waitcnt lgkmcnt(0)")
    for u in range(8):
        A(f"v_perm_b32 v{176+2*u}, v{161+2*u}, v{160+2*u}, s{sSELL}\nv_perm_b32 v{177+2*u}, v{161+2*u}, v{160+2*u}, s{sSELH}")
    A(f"v_lshlrev_b32 v4, 4, v1")
    A(f"s_lshl_b32 s{sT1}, s{sJ}, 12\ns_add_u32 s{sT1}, s{sT1}, s{sT0}\ns_add_u32 s{sT1}, s{sT1}, {WS_H1}")
    poll([f"buffer_load_dwordx4 {v4(128+4*i)}, v4, {s4(rWS)}, s{sT1} offen offset:{1024*i} sc1" for i in range(4)],
         [131 + 4 * i for i in range(4)], "h1poll")
    stamp(5)
    A("v_max3_f32 v96, v130, v134, v138\nv_max_f32 v96, v96, v142")
    red_rep8([96], "v_max_f32", 100)
    for i in range(4):
        A(f"v_sub_f32 v{130+4*i}, v{130+4*i}, v96")
    for i in range(4):
        A(f"v_exp_f32 v{130+4*i}, v{130+4*i}")
    A("s_nop 0")
    A("v_mul_f32 v97, v130, v128\nv_mul_f32 v98, v130, v129\nv_add_f32 v96, v130, v134")
    for i in range(1, 4):
        A(f"v_fmac_f32 v97, v{130+4*i}, v{128+4*i}\nv_fmac_f32 v98, v{130+4*i}, v{129+4*i}")
    A("v_add_f32 v99, v138, v142\nv_add_f32 v96, v96, v99")
    red_rep8([96, 97, 98], "v_add_f32", 100)
    A("v_rcp_f32 v96, v96\ns_nop 0\nv_mul_f32 v97, v97, v96\nv_mul_f32 v98, v98, v96\nv_cvt_pk_bf16_f32 v97, v97, v98\ns_nop 1")
    for u in range(8):
        A(f"v_readlane_b32 s{sH+u}, v97, {u}")
    A(f"v_mov_b32 v118, s{sTAG}\nv_mov_b32 v119, s{sTAG}")
    for u in range(8):
        for z in range(2):
            c = "0" if u == 0 else f"v{116+z}"
            A(f"v_dot2_f32_bf16 v{116+z}, s{sH+u}, v{176+2*u+z}, {c}")
    A(f"v_lshrrev_b32 v6, 3, v0\nv_lshlrev_b32 v6, 15, v6\nv_and_b32 v7, 7, v1\nv_lshl_add_u32 v6, v7, 4, v6")
    A(f"s_lshl_b32 s{sT1}, s2, 7\ns_add_u32 s{sT1}, s{sT1}, {WS_H2}")
    A(f"buffer_store_dwordx4 v[116:119], v6, {s4(rWS)}, s{sT1} offen sc1")
    A(f"s_cmp_lt_u32 s{sJJ}, 28\ns_cbranch_scc1 L_fin")
    A(f"s_lshl_b32 s{sT0}, s{sX8}, 2\ns_add_u32 s{sT0}, s{sT0}, s{sJJ}\ns_sub_u32 s{sT0}, s{sT0}, 28")
    A(f"s_lshl_b32 s{sT1}, s{sT0}, 15\ns_lshl_b32 s{sT2}, s{sW}, 13\ns_add_u32 s{sT1}, s{sT1}, s{sT2}\ns_add_u32 s{sT1}, s{sT1}, {WS_H2}")
    A(f"s_add_u32 s{sT2}, s{sT1}, 4096")
    poll([f"buffer_load_dwordx4 {v4(128+4*i)}, v4, {s4(rWS)}, s{sT1 if i < 4 else sT2} offen offset:{1024*(i%4)} sc1" for i in range(8)],
         [130 + 4 * i for i in range(8)], "h2poll")
    stamp(6)
    for i in range(1, 8):
        A(f"v_add_f32 v128, v128, v{128+4*i}\nv_add_f32 v129, v129, v{129+4*i}")
    red_rep8([128, 129], "v_add_f32", 132)
    A(f"v_and_b32 v7, 7, v1\nv_lshlrev_b32 v7, 3, v7\ns_lshl_b32 s{sT2}, s{sW}, 6\nv_add_u32 v6, s{sT2}, v7")
    A(f"ds_write_b64 v6, v[128:129] offset:{L_RED}")
    A("s_waitcnt lgkmcnt(0)\ns_barrier")
    A(f"s_cmp_lg_u32 s{sW}, 3\ns_cbranch_scc1 L_fin")
    for p in range(3):
        A(f"ds_read_b64 {v2(132+2*p)}, v7 offset:{L_RED + 64*p}")
    srd(rA, sOUT, 1024)
    A("s_waitcnt lgkmcnt(0)")
    for p in range(3):
        A(f"v_add_f32 v128, v128, v{132+2*p}\nv_add_f32 v129, v129, v{133+2*p}")
    A(f"v_lshlrev_b32 v132, 16, v14\nv_and_b32 v133, s{sHI}, v14")
    for e in range(2):
        rnd_bf16(128 + e)
        A(f"v_mul_f32 v{128+e}, v{128+e}, v{12+e}")
        rnd_bf16(128 + e)
        A(f"v_add_f32 v{128+e}, v{128+e}, v{132+e}")
    A("v_cvt_pk_bf16_f32 v128, v128, v129")
    A(f"v_lshlrev_b32 v6, 2, v1\ns_lshl_b32 s{sT1}, s{sT0}, 5")
    A("s_mov_b64 exec, 0xff")
    A(f"buffer_store_dword v128, v6, {s4(rA)}, s{sT1} offen")
    A(f"s_cmp_lg_u32 s{sT0}, 0\ns_cbranch_scc1 L_fin")
    A("s_mov_b64 exec, 1")
    A(f"buffer_store_dword v119, v6, {s4(rWS)}, 0 offen offset:{WS_EPOCH} sc1")
    A("L_fin:")
    if stamps:
        A("s_mov_b64 exec, -1")
        A("s_waitcnt vmcnt(0)")
        stamp(7)
        A("s_waitcnt lgkmcnt(0)")
        for i in range(8):
            A(f"v_mov_b32 v{96+i}, s{sST+2*i}")
        A(f"s_lshl_b32 s{sT1}, s2, 2\ns_add_u32 s{sT1}, s{sT1}, s{sW}\ns_lshl_b32 s{sT1}, s{sT1}, 5\ns_add_u32 s{sT1}, s{sT1}, {WS_STAMP}")
        A("v_mov_b32 v7, 0\ns_mov_b64 exec, 1")
        A(f"buffer_store_dwordx4 v[96:99], v7, {s4(rWS)}, s{sT1} offen")
        A(f"buffer_store_dwordx4 v[100:103], v7, {s4(rWS)}, s{sT1} offen offset:16")
    A("L_end:")
    A("s_endpgm")

    out = HEADER
    out += f"; @launch grid=(256,1,1) block=(256,1,1) lds={lds_bytes}\n"
    out += '.amdgcn_target "amdgcn-amd-amdhsa--gfx950"\n.text\n'
    out += f".globl {KNAME}_kernel\n.p2align 8\n.type {KNAME}_kernel,@function\n"
    out += "\n".join(A.L) + "\n"
    out += f""".section .rodata,"a"
.p2align 6
.amdhsa_kernel {KNAME}_kernel
  .amdhsa_next_free_vgpr 256
  .amdhsa_next_free_sgpr 102
  .amdhsa_accum_offset 256
  .amdhsa_group_segment_fixed_size 0
  .amdhsa_kernarg_size 96
  .amdhsa_user_sgpr_count 2
  .amdhsa_user_sgpr_kernarg_segment_ptr 1
  .amdhsa_system_sgpr_workgroup_id_x 1
.end_amdhsa_kernel
"""
    return out


if __name__ == "__main__":
    kw = json.loads(sys.argv[2]) if len(sys.argv) > 2 else {}
    open(sys.argv[1], "w").write(gen(**kw))
```

```python
import sys, json, struct

KNAME = "recurrent_scan__gqa_block_cached__glu_gated_glu__decode"
HEADER = open("cdna_kernels/" + KNAME + ".s.ref").read().split("; Override launch")[0] \
    if __name__ == "__main__" or True else ""

def f2u(x):
    return struct.unpack("<I", struct.pack("<f", x))[0]

LOG2E = 1.4426950408889634
WS_EPOCH = 0x0
WS_QX = 0x10000
WS_G1 = 0x40000
WS_H1 = 0x100000
WS_H2 = 0x200000
WS_GL = 0x300000
WS_STAMP = 0x1000000
WS_SIZE = 0x20000000
L_Q = 0
L_TAG = 1024
L_RED = 1088
L_ML = 1536
L_PART = 2048
PSZ = 2304
L_WO = 12288
L_BACK = 28672

vQ = 16; vO = 32; vL = 64; vS = 68; vT = 76; vP = 84; vONE = 88; vM = 92; vMN = 93; vX0 = 94; vX1 = 95
vA = 96
vK = [128, 192]; vV = [160, 224]
sX, sK, sV, sWQ, sWO, sBX, sWG, sWU, sWD, sOUT, sDBG, sWS = 4, 6, 8, 10, 12, 14, 16, 18, 20, 22, 24, 26
rK, rV, rWS, rA, rB, rC, rD = 28, 32, 36, 40, 44, 48, 52
sW, sHEAD, sJ, sX8, sJJ = 56, 57, 58, 59, 60
sKO, sVO, sCNT, sTAG = 61, 62, 63, 64
sSELL, sSELH, sSCALE, sLOG2E, sHI = 65, 66, 67, 68, 69
sT0, sT1, sT2, sT3 = 70, 71, 72, 73
sH = 74
sEX = 82
sSPIN = 84
sLB = 85
sST = 86


class G:
    def __init__(self):
        self.L = []
        self.n = 0
    def __call__(self, s):
        for line in s.strip("\n").split("\n"):
            self.L.append("    " + line.strip() if not line.strip().endswith(":") else line.strip())
    def label(self, base):
        self.n += 1
        return f"L_{base}_{self.n}"


def v4(r):
    return f"v[{r}:{r+3}]"
def v2(r):
    return f"v[{r}:{r+1}]"
def s4(r):
    return f"s[{r}:{r+3}]"
def s2(r):
    return f"s[{r}:{r+1}]"


def gen(kvflags="nt", wflags="nt", NB=8, depth=24, hmap="mod", stamps=False, mimic=True, dma_depth=12, pad=None, qsleep=16, fine=False, gsleep=127, qdelay=96, h1sleep=0, h2sleep=0, hwid=False, padx=None):
    A = G()
    lds_bytes = L_BACK + NB * 16384
    NBH = NB // 2
    NDIR = (64 - NB) // 2
    assert NDIR % 2 == 0

    def srd(r, base, size):
        A(f"s_mov_b32 s{r}, s{base}\ns_mov_b32 s{r+1}, s{base+1}\ns_mov_b32 s{r+2}, {size}\ns_mov_b32 s{r+3}, 0x20000")

    def fstamp(i):
        if stamps and fine:
            A(f"s_memrealtime {s2(sST + 2 * i)}")
    def stamp(i):
        if stamps and not (fine and i in (3, 4, 5, 6)) and not (hwid and i in (5, 6)):
            A(f"s_memrealtime {s2(sST + 2 * i)}")

    def wave_sum(r, t):
        for k in (8, 4, 2, 1):
            A("s_nop 1")
            A(f"v_add_f32 v{r}, v{r}, v{r} row_ror:{k}")
        A(f"v_mov_b32 v{t}, v{r}\ns_nop 1\nv_permlane16_swap_b32 v{r}, v{t}\ns_nop 1\nv_add_f32 v{r}, v{r}, v{t}")
        A(f"v_mov_b32 v{t}, v{r}\ns_nop 1\nv_permlane32_swap_b32 v{r}, v{t}\ns_nop 1\nv_add_f32 v{r}, v{r}, v{t}")

    def rnd_bf16(r):
        A(f"v_cvt_pk_bf16_f32 v{r}, v{r}, v{r}\nv_and_b32 v{r}, 0xffff0000, v{r}")

    def ln_stats():
        F = 96; D = 104
        for k in range(4):
            A(f"v_lshlrev_b32 v{F+2*k}, 16, v{8+k}\nv_and_b32 v{F+2*k+1}, s{sHI}, v{8+k}")
        A(f"v_add_f32 v13, v{F}, v{F+1}")
        for k in range(2, 8):
            A(f"v_add_f32 v13, v13, v{F+k}")
        wave_sum(13, 14)
        A(f"v_mul_f32 v13, {hex(f2u(1/512))}, v13")
        for k in range(8):
            A(f"v_sub_f32 v{D+k}, v{F+k}, v13")
        A(f"v_mul_f32 v15, v{D}, v{D}")
        for k in range(1, 8):
            A(f"v_fmac_f32 v15, v{D+k}, v{D+k}")
        wave_sum(15, 14)
        A(f"v_mul_f32 v15, {hex(f2u(1/512))}, v15")
        rnd_bf16(13); rnd_bf16(15)
        A(f"v_add_f32 v15, {hex(f2u(1e-5))}, v15")
        rnd_bf16(15)
        A("v_sqrt_f32 v15, v15\ns_nop 0")
        rnd_bf16(15)
        A("v_rcp_f32 v15, v15")

    def ln_apply(X):
        D = 104
        for k in range(4):
            A(f"v_lshlrev_b32 v{D+2*k}, 16, v{X+k}\nv_and_b32 v{D+2*k+1}, s{sHI}, v{X+k}")
        for k in range(8):
            A(f"v_sub_f32 v{D+k}, v{D+k}, v13")
        for k in range(4):
            A(f"v_cvt_pk_bf16_f32 v{X+k}, v{D+2*k}, v{D+2*k+1}")
        for k in range(4):
            A(f"v_lshlrev_b32 v{D+2*k}, 16, v{X+k}\nv_and_b32 v{D+2*k+1}, s{sHI}, v{X+k}")
        for k in range(8):
            A(f"v_mul_f32 v{D+k}, v{D+k}, v15")
        for k in range(4):
            A(f"v_cvt_pk_bf16_f32 v{X+k}, v{D+2*k}, v{D+2*k+1}")

    def matvec8(W, xs, acc, tmp, first=True):
        for j in range(4):
            for u in range(4):
                A(f"v_perm_b32 v{tmp+2*u}, v{W+(2*j+1)*4+u}, v{W+(2*j)*4+u}, s{sSELL}")
                A(f"v_perm_b32 v{tmp+2*u+1}, v{W+(2*j+1)*4+u}, v{W+(2*j)*4+u}, s{sSELH}")
            for e in range(8):
                c = "0" if (j == 0 and first) else f"v{acc+e}"
                A(f"v_dot2_f32_bf16 v{acc+e}, {xs[j]}, v{tmp+e}, {c}")
        A("s_nop 2")

    def reduce8(acc, rors=(8, 4, 2, 1)):
        A("s_nop 1")
        for e in range(4):
            A(f"v_permlane32_swap_b32 v{acc+e}, v{acc+4+e}")
        A("s_nop 1")
        for e in range(4):
            A(f"v_add_f32 v{acc+e}, v{acc+e}, v{acc+4+e}")
        A("s_nop 1")
        for e in range(2):
            A(f"v_permlane16_swap_b32 v{acc+e}, v{acc+2+e}")
        A("s_nop 1")
        for e in range(2):
            A(f"v_add_f32 v{acc+e}, v{acc+e}, v{acc+2+e}")
        for k in rors:
            A("s_nop 0")
            for e in range(2):
                A(f"v_add_f32 v{acc+e}, v{acc+e}, v{acc+e} row_ror:{k}")
        A("s_nop 0")

    def issue_k(dst, lds=None):
        for n in range(8):
            b, s = n // 4, n % 4
            if lds is None:
                A(f"buffer_load_dwordx4 {v4(dst+4*n)}, v{2+b}, {s4(rK)}, s{sKO} offen offset:{64*s} {kvflags}")
            else:
                if n % 4 == 0 and dma_depth:
                    A(f"s_waitcnt vmcnt({dma_depth-4})")
                A(f"s_add_u32 m0, s{sLB}, {lds + n*1024 - 64*s}")
                A("s_nop 0")
                A(f"buffer_load_dwordx4 v{2+b}, {s4(rK)}, s{sKO} offen offset:{64*s} {kvflags} lds")
        A(f"s_add_u32 s{sKO}, s{sKO}, 16384")

    def issue_v(dst, lds=None):
        for n in range(8):
            b, s = n // 4, n % 4
            if lds is None:
                A(f"buffer_load_dwordx4 {v4(dst+4*n)}, v{4+b}, {s4(rV)}, s{sVO} offen offset:{1024*s} {kvflags}")
            else:
                if n % 4 == 0:
                    if dma_depth:
                        A(f"s_waitcnt vmcnt({dma_depth-4})")
                    A(f"s_add_u32 m0, s{sLB}, {lds + b*4096}")
                    A("s_nop 0")
                A(f"buffer_load_dwordx4 v{4+b}, {s4(rV)}, s{sVO} offen offset:{1024*s} {kvflags} lds")
        A(f"s_add_u32 s{sVO}, s{sVO}, 16384")

    def qk_softmax(K):
        for s in range(4):
            for b in range(2):
                c = "0" if s == 0 else v4(vS + 4 * b)
                A(f"v_mfma_f32_16x16x32_bf16 {v4(vS+4*b)}, {v4(K+16*b+4*s)}, {v4(vQ+4*s)}, {c}")
        A("s_nop 7")
        if mimic:
            for j in range(4):
                A(f"v_cvt_pk_bf16_f32 v{vT+j}, v{vS+2*j}, v{vS+2*j+1}")
            for j in range(4):
                A(f"v_lshlrev_b32 v{vS+2*j}, 16, v{vT+j}")
                A(f"v_and_b32 v{vS+2*j+1}, s{sHI}, v{vT+j}")
            for i in range(8):
                A(f"v_mul_f32 v{vS+i}, s{sSCALE}, v{vS+i}")
            for j in range(4):
                A(f"v_cvt_pk_bf16_f32 v{vT+j}, v{vS+2*j}, v{vS+2*j+1}")
            for j in range(4):
                A(f"v_lshlrev_b32 v{vS+2*j}, 16, v{vT+j}")
                A(f"v_and_b32 v{vS+2*j+1}, s{sHI}, v{vT+j}")
        else:
            for i in range(8):
                A(f"v_mul_f32 v{vS+i}, s{sSCALE}, v{vS+i}")
        A(f"v_max3_f32 v{vX0}, v{vS}, v{vS+1}, v{vS+2}")
        A(f"v_max3_f32 v{vX1}, v{vS+3}, v{vS+4}, v{vS+5}")
        A(f"v_max3_f32 v{vX0}, v{vX0}, v{vS+6}, v{vS+7}")
        A(f"v_max_f32 v{vX0}, v{vX0}, v{vX1}")
        skip = A.label("nors")
        A(f"v_cmp_gt_f32 vcc, v{vX0}, v{vM}")
        A(f"s_cbranch_vccz {skip}")
        A(f"v_max_f32 v{vX0}, v{vX0}, v{vM}")
        A(f"v_mov_b32 v{vX1}, v{vX0}\ns_nop 1\nv_permlane16_swap_b32 v{vX0}, v{vX1}\ns_nop 1\nv_max_f32 v{vX0}, v{vX0}, v{vX1}")
        A(f"v_mov_b32 v{vX1}, v{vX0}\ns_nop 1\nv_permlane32_swap_b32 v{vX0}, v{vX1}\ns_nop 1\nv_max_f32 v{vX0}, v{vX0}, v{vX1}")
        A(f"v_sub_f32 v{vX1}, v{vM}, v{vX0}")
        A(f"v_mul_f32 v{vX1}, s{sLOG2E}, v{vX1}")
        A(f"v_exp_f32 v{vX1}, v{vX1}")
        A(f"v_mov_b32 v{vM}, v{vX0}")
        A(f"v_mul_f32 v{vMN}, s{sLOG2E}, v{vX0}")
        for i in range(36):
            A(f"v_mul_f32 v{vO+i}, v{vX1}, v{vO+i}")
        A(f"{skip}:")
        for i in range(8):
            A(f"v_fma_f32 v{vS+i}, v{vS+i}, s{sLOG2E}, -v{vMN}")
        for i in range(8):
            A(f"v_exp_f32 v{vS+i}, v{vS+i}")
        A("s_nop 0")
        for j in range(4):
            A(f"v_cvt_pk_bf16_f32 v{vP+j}, v{vS+2*j}, v{vS+2*j+1}")

    def pv(V):
        for u in range(4):
            for z in range(2):
                e = 2 * u + z
                sel = sSELH if z else sSELL
                for j in range(4):
                    A(f"v_perm_b32 v{vA+4*e+j}, v{V+(2*j+1)*4+u}, v{V+(2*j)*4+u}, s{sel}")
                if e == 0:
                    A(f"v_mfma_f32_16x16x32_bf16 {v4(vL)}, {v4(vONE)}, {v4(vP)}, {v4(vL)}")
                else:
                    A(f"v_mfma_f32_16x16x32_bf16 {v4(vO+4*(e-1))}, {v4(vA+4*(e-1))}, {v4(vP)}, {v4(vO+4*(e-1))}")
        A("s_nop 1")
        A(f"v_mfma_f32_16x16x32_bf16 {v4(vO+28)}, {v4(vA+28)}, {v4(vP)}, {v4(vO+28)}")

    def init_acc():
        for i in range(36):
            A(f"v_mov_b32 v{vO+i}, 0")
        for i in range(4):
            A(f"v_mov_b32 v{vONE+i}, 0x3f803f80")
        A(f"v_mov_b32 v{vM}, {hex(f2u(-1e30))}")
        A(f"v_mul_f32 v{vMN}, s{sLOG2E}, v{vM}")

    def read_q():
        A("v_and_b32 v6, 3, v1\nv_lshlrev_b32 v6, 8, v6\nv_lshrrev_b32 v7, 4, v1\nv_lshl_add_u32 v6, v7, 4, v6")
        for s in range(4):
            A(f"ds_read_b128 {v4(vQ+4*s)}, v6 offset:{L_Q + 64*s}")
        A(f"v_mov_b32 v7, 0\nds_read_b32 v7, v7 offset:{L_TAG}")
        A("s_waitcnt lgkmcnt(0)")
        A(f"v_readfirstlane_b32 s{sTAG}, v7")

    def write_partial():
        A("s_nop 7")
        A(f"v_and_b32 v6, 3, v1\nv_lshrrev_b32 v7, 4, v1\nv_lshl_add_u32 v7, v6, 2, v7\nv_mul_u32_u24 v7, 144, v7")
        A(f"s_mul_i32 s{sT0}, s{sW}, {PSZ}\nv_add_u32 v7, s{sT0}, v7")
        A(f"s_lshl_b32 s{sT0}, s{sW}, 5\nv_lshl_add_u32 v6, v6, 3, s{sT0}")
        A(f"v_mov_b32 v{vX0}, v{vM}\nv_mov_b32 v{vX1}, v{vL}")
        A(f"s_mov_b32 exec_lo, 0x000f000f\ns_mov_b32 exec_hi, 0x000f000f")
        for e in range(8):
            A(f"ds_write_b128 v7, {v4(vO+4*e)} offset:{L_PART + 16*e}")
        A(f"ds_write_b64 v6, {v2(vX0)} offset:{L_ML}")
        A("s_mov_b64 exec, -1")

    def poll(loads, tagregs, name, sleep=0):
        top = A.label(name); done = A.label(name + "_ok")
        A(f"s_mov_b32 s{sSPIN}, 0")
        A(f"{top}:")
        for l in loads:
            A(l)
        A("s_waitcnt vmcnt(0)")
        A(f"v_xor_b32 v{vX0}, s{sTAG}, v{tagregs[0]}")
        for r in tagregs[1:]:
            A(f"v_xor_b32 v{vX1}, s{sTAG}, v{r}\nv_or_b32 v{vX0}, v{vX0}, v{vX1}")
        A(f"v_cmp_ne_u32 vcc, 0, v{vX0}")
        A(f"s_cbranch_vccz {done}")
        if sleep:
            A(f"s_sleep {sleep}")
        A(f"s_add_u32 s{sSPIN}, s{sSPIN}, 1\ns_cmp_lt_u32 s{sSPIN}, 0x40000\ns_cbranch_scc1 {top}")
        A(f"{done}:")

    def red_rep8(regs, op, t):
        A("s_nop 1")
        for r in regs:
            A(f"{op} v{r}, v{r}, v{r} row_ror:8")
        for sw in ("v_permlane16_swap_b32", "v_permlane32_swap_b32"):
            for i, r in enumerate(regs):
                A(f"v_mov_b32 v{t+i}, v{r}")
            A("s_nop 1")
            for i, r in enumerate(regs):
                A(f"{sw} v{r}, v{t+i}")
            A("s_nop 1")
            for i, r in enumerate(regs):
                A(f"{op} v{r}, v{r}, v{t+i}")

    A(f"{KNAME}_kernel:")
    A("s_cmp_ge_u32 s2, 256\ns_cbranch_scc1 L_end")
    stamp(0)
    A(f"s_load_dwordx16 s[4:19], s[0:1], 0\ns_load_dwordx8 s[20:27], s[0:1], 64")
    A(f"v_lshrrev_b32 v2, 6, v0\nv_and_b32 v1, 63, v0")
    A(f"s_and_b32 s{sX8}, s2, 7\ns_lshr_b32 s{sJJ}, s2, 3")
    A(f"v_readfirstlane_b32 s{sW}, v2")
    if hmap == "mod":
        A(f"s_mov_b32 s{sHEAD}, s{sX8}\ns_mov_b32 s{sJ}, s{sJJ}")
    else:
        A(f"s_and_b32 s{sHEAD}, s{sJJ}, 7\ns_lshr_b32 s{sJ}, s2, 6\ns_lshl_b32 s{sJ}, s{sJ}, 3\ns_add_u32 s{sJ}, s{sJ}, s{sX8}")
    A(f"s_mov_b32 s{sSELL}, 0x05040100\ns_mov_b32 s{sSELH}, 0x07060302")
    A(f"s_mov_b32 s{sSCALE}, {hex(f2u(128 ** -0.5))}\ns_mov_b32 s{sLOG2E}, {hex(f2u(LOG2E))}\ns_mov_b32 s{sHI}, 0xffff0000")
    if stamps:
        for i in range(1, 8):
            A(f"s_mov_b64 {s2(sST+2*i)}, 0")
    A(f"s_cmp_ge_u32 s{sW}, 2")
    A("s_cbranch_scc1 L_helper")

    A("v_and_b32 v6, 3, v1\nv_lshlrev_b32 v6, 10, v6\nv_bfe_u32 v7, v1, 2, 2\nv_lshl_add_u32 v6, v7, 8, v6")
    A("v_lshrrev_b32 v7, 4, v1\nv_lshl_add_u32 v2, v7, 4, v6\nv_add_u32 v3, 4096, v2")
    A("v_lshlrev_b32 v4, 4, v1\nv_add_u32 v5, 4096, v4")
    A(f"s_lshl_b32 s{sT0}, s{sHEAD}, 24\ns_lshl_b32 s{sT1}, s{sJ}, 19\ns_add_u32 s{sT0}, s{sT0}, s{sT1}")
    A(f"s_lshl_b32 s{sKO}, s{sW}, 13\ns_mov_b32 s{sVO}, s{sKO}")
    A(f"s_mul_i32 s{sLB}, s{sW}, {NBH*16384}")
    A("s_waitcnt lgkmcnt(0)")
    A(f"s_add_u32 s{rK}, s{sK}, s{sT0}\ns_addc_u32 s{rK+1}, s{sK+1}, 0\ns_mov_b32 s{rK+2}, 0x80000\ns_mov_b32 s{rK+3}, 0x20000")
    A(f"s_add_u32 s{rV}, s{sV}, s{sT0}\ns_addc_u32 s{rV+1}, s{sV+1}, 0\ns_mov_b32 s{rV+2}, 0x80000\ns_mov_b32 s{rV+3}, 0x20000")
    srd(rWS, sWS, hex(WS_SIZE))
    if NB:
        A(f"s_mov_b32 s{sCNT}, {NBH}")
        A("L_dma:")
        issue_k(None, lds=L_BACK)
        issue_v(None, lds=L_BACK + 8192)
        A(f"s_add_u32 s{sLB}, s{sLB}, 16384\ns_sub_u32 s{sCNT}, s{sCNT}, 1\ns_cmp_lg_u32 s{sCNT}, 0\ns_cbranch_scc1 L_dma")
    if dma_depth: A(f"s_waitcnt vmcnt({dma_depth-4})")
    issue_k(vK[0])
    if dma_depth: A(f"s_waitcnt vmcnt(8)")
    issue_v(vV[0])
    if depth == 24:
        if dma_depth: A(f"s_waitcnt vmcnt(8)")
        issue_k(vK[1])
    init_acc()
    A(f"s_waitcnt vmcnt({depth})")
    stamp(1)
    A("s_barrier")
    stamp(2)
    read_q()
    A(f"s_mov_b32 s{sCNT}, {NDIR//2}")
    A("L_loop:")
    for b in range(2):
        if depth == 24:
            A("s_waitcnt vmcnt(16)")
            issue_v(vV[b ^ 1])
            qk_softmax(vK[b])
            A("s_waitcnt vmcnt(16)")
            issue_k(vK[b])
            pv(vV[b])
        else:
            A("s_waitcnt vmcnt(8)")
            issue_k(vK[b ^ 1])
            qk_softmax(vK[b])
            A("s_waitcnt vmcnt(8)")
            issue_v(vV[b ^ 1])
            pv(vV[b])
    if hwid:
        A(f"s_cmp_lg_u32 s{sCNT}, {NDIR//4+1}\ns_cbranch_scc1 L_nomid\ns_memrealtime {s2(sST+2*5)}\nL_nomid:")
    A(f"s_sub_u32 s{sCNT}, s{sCNT}, 1\ns_cmp_lg_u32 s{sCNT}, 0\ns_cbranch_scc1 L_loop")
    stamp(3)
    write_partial()
    A("s_branch L_tail")

    A("L_helper:")
    A(f"s_sub_u32 s{sT3}, s{sW}, 2")
    A("v_lshlrev_b32 v4, 4, v1")
    A("v_mov_b32 v7, 0")
    A("v_lshrrev_b32 v2, 3, v1\nv_and_b32 v3, 7, v1\nv_lshlrev_b32 v3, 4, v3")
    A(f"s_cmp_eq_u32 s{sW}, 3\ns_cbranch_scc1 L_h3a")
    A(f"s_lshr_b32 s{sT0}, s2, 6")
    A(f"s_and_b32 s{sT1}, s{sJJ}, 7\ns_lshl_b32 s{sT2}, s{sX8}, 3\ns_add_u32 s{sT1}, s{sT1}, s{sT2}\ns_lshl_b32 s{sT1}, s{sT1}, 7")
    A(f"s_lshl_b32 s{sT2}, s{sT0}, 20\ns_add_u32 s{sT1}, s{sT1}, s{sT2}")
    A(f"v_lshl_add_u32 v5, v2, 17, v3")
    A(f"v_lshlrev_b32 v6, 5, v2\ns_lshl_b32 s{sT2}, s{sT0}, 8")
    A("s_waitcnt lgkmcnt(0)")
    srd(rWS, sWS, hex(WS_SIZE))
    srd(rA, sX, 1024)
    srd(rB, sWQ, hex(512 * 4096 * 2))
    fstamp(3)
    A(f"buffer_load_dwordx4 v[8:11], v4, {s4(rA)}, 0 offen")
    A(f"buffer_load_dword v12, v7, {s4(rWS)}, 0 offen offset:{WS_EPOCH} sc1")
    A(f"buffer_load_dwordx4 v[16:19], v6, {s4(rA)}, s{sT2} offen")
    A(f"buffer_load_dwordx4 v[20:23], v6, {s4(rA)}, s{sT2} offen offset:16")
    for i in range(16):
        A(f"buffer_load_dwordx4 {v4(128+4*i)}, v5, {s4(rB)}, s{sT1} offen {wflags}")
        if i < 15:
            A(f"s_add_u32 s{sT1}, s{sT1}, 8192")
    A("s_waitcnt vmcnt(16)")
    fstamp(4)
    ln_stats()
    ln_apply(16); ln_apply(20)
    A(f"v_readfirstlane_b32 s{sTAG}, v12")
    fstamp(5)
    A("s_waitcnt vmcnt(8)")
    matvec8(128, [f"v{16+k}" for k in range(4)], 96, 104)
    A(f"s_add_u32 s{sTAG}, s{sTAG}, 0x9E3779B1")
    A("s_waitcnt vmcnt(0)")
    fstamp(6)
    matvec8(160, [f"v{20+k}" for k in range(4)], 96, 104, first=False)
    reduce8(96, (8,))
    A(f"v_mov_b32 v98, s{sTAG}\nv_mov_b32 v99, s{sTAG}")
    A(f"v_lshrrev_b32 v6, 4, v1\nv_lshl_add_u32 v6, v6, 7, v3")
    A(f"s_lshl_b32 s{sT1}, s{sX8}, 14\ns_lshl_b32 s{sT2}, s{sT0}, 12\ns_add_u32 s{sT1}, s{sT1}, s{sT2}")
    A(f"s_and_b32 s{sT2}, s{sJJ}, 7\ns_lshl_b32 s{sT2}, s{sT2}, 9\ns_add_u32 s{sT1}, s{sT1}, s{sT2}\ns_add_u32 s{sT1}, s{sT1}, {WS_QX}")
    A("s_mov_b32 exec_lo, 0x00ff00ff\ns_mov_b32 exec_hi, 0x00ff00ff")
    A(f"buffer_store_dwordx4 v[96:99], v6, {s4(rWS)}, s{sT1} offen sc1")
    A("s_mov_b64 exec, -1")
    stamp(1)
    srd(rA, sWO, hex(4096 * 512 * 2))
    A(f"s_lshr_b32 s{sT0}, s{sJ}, 3\ns_lshl_b32 s{sT1}, s{sHEAD}, 2\ns_add_u32 s{sT0}, s{sT0}, s{sT1}\ns_lshl_b32 s{sT0}, s{sT0}, 7")
    A(f"s_bfe_u32 s{sT1}, s{sJ}, 0x20001\ns_lshl_b32 s{sT1}, s{sT1}, 5\ns_add_u32 s{sT0}, s{sT0}, s{sT1}")
    A(f"s_and_b32 s{sT1}, s{sJ}, 1\ns_lshl_b32 s{sT1}, s{sT1}, 2\ns_add_u32 s{sT0}, s{sT0}, s{sT1}\ns_lshl_b32 s{sT0}, s{sT0}, 10")
    for u in range(8):
        for z in range(2):
            row = 16 * (u & 1) + 8 * z + (u >> 1)
            A(f"s_mov_b32 m0, {L_WO + (2*u+z)*1024}\ns_add_u32 s{sT1}, s{sT0}, {row*1024}")
            A(f"buffer_load_dwordx4 v4, {s4(rA)}, s{sT1} offen {wflags} lds")
    A("s_waitcnt vmcnt(0)")
    A("s_branch L_qgather")
    A("L_h3a:")
    A(f"s_mul_i32 s{sT1}, s{sX8}, {64*3584}\ns_lshl_b32 s{sT2}, s{sJJ}, 7\ns_add_u32 s{sT1}, s{sT1}, s{sT2}")
    A(f"v_mul_u32_u24 v5, {8*3584}, v2\nv_add_u32 v5, v5, v3")
    A(f"v_lshlrev_b32 v6, 4, v2\ns_lshl_b32 s{sT2}, s{sX8}, 7")
    A("s_waitcnt lgkmcnt(0)")
    srd(rWS, sWS, hex(WS_SIZE))
    srd(rA, sX, 1024)
    srd(rB, sWG, hex(512 * 1792 * 2)); srd(rC, sWU, hex(512 * 1792 * 2)); srd(rD, sWD, hex(512 * 1792 * 2))
    A(f"buffer_load_dword v12, v7, {s4(rWS)}, 0 offen offset:{WS_EPOCH} sc1")
    A(f"s_cmp_ge_u32 s{sJJ}, 28\ns_cbranch_scc0 L_h3b")
    A(f"s_waitcnt vmcnt(0)\nv_readfirstlane_b32 s{sTAG}, v12\ns_nop 3\ns_add_u32 s{sTAG}, s{sTAG}, 0x9E3779B1")
    A(f"s_sleep {qdelay}")
    A("s_branch L_qgather")
    A("L_h3b:")
    A(f"buffer_load_dwordx4 v[8:11], v4, {s4(rA)}, 0 offen")
    A(f"buffer_load_dwordx4 v[16:19], v6, {s4(rA)}, s{sT2} offen")
    for i in range(8):
        A(f"buffer_load_dwordx4 {v4(128+4*i)}, v5, {s4(rB)}, s{sT1} offen {wflags}")
        A(f"buffer_load_dwordx4 {v4(160+4*i)}, v5, {s4(rC)}, s{sT1} offen {wflags}")
        if i < 7:
            A(f"s_add_u32 s{sT1}, s{sT1}, 3584")
    A("s_waitcnt vmcnt(16)")
    ln_stats()
    ln_apply(16)
    A(f"v_readfirstlane_b32 s{sTAG}, v12")
    A("s_waitcnt vmcnt(0)")
    XN = [f"v{16+k}" for k in range(4)]
    matvec8(128, XN, 96, 112)
    A(f"s_add_u32 s{sTAG}, s{sTAG}, 0x9E3779B1")
    matvec8(160, XN, 104, 112)
    reduce8(96, (8,)); reduce8(104, (8,))
    A("s_mov_b32 vcc_lo, 0xff00ff00\ns_mov_b32 vcc_hi, 0xff00ff00")
    A(f"v_cndmask_b32 v96, v96, v97, vcc\nv_cndmask_b32 v97, v104, v105, vcc\nv_mov_b32 v98, s{sTAG}\nv_mov_b32 v99, s{sTAG}")
    A(f"v_lshl_add_u32 v6, v2, 10, v3")
    A(f"s_lshl_b32 s{sT1}, s{sJJ}, 13\ns_lshl_b32 s{sT2}, s{sX8}, 7\ns_add_u32 s{sT1}, s{sT1}, s{sT2}\ns_add_u32 s{sT1}, s{sT1}, {WS_G1}")
    A(f"buffer_store_dwordx4 v[96:99], v6, {s4(rWS)}, s{sT1} offen sc1")
    stamp(1)
    A(f"s_lshl_b32 s{sT1}, s{sJJ}, 16\ns_lshl_b32 s{sT2}, s{sX8}, 10\ns_add_u32 s{sT1}, s{sT1}, s{sT2}")
    for i in range(8):
        A(f"buffer_load_dwordx4 {v4(192+4*i)}, v4, {s4(rD)}, s{sT1} offen {wflags}")
        if i < 7:
            A(f"s_add_u32 s{sT1}, s{sT1}, 8192")
    A("s_waitcnt vmcnt(0)")
    A("L_qgather:")
    A(f"s_lshl_b32 s{sH}, s{sHEAD}, 14\ns_lshl_b32 s{sT2}, s{sT3}, 11\ns_add_u32 s{sH}, s{sH}, s{sT2}\ns_add_u32 s{sH}, s{sH}, {WS_QX}")
    for k in range(1, 4):
        A(f"s_add_u32 s{sH+k}, s{sH}, {4096*k}")
    poll([f"buffer_load_dwordx4 {v4(128+8*k+4*a)}, v4, {s4(rWS)}, s{sH+k} offen offset:{1024*a} sc1" for k in range(4) for a in range(2)],
         [131 + 4 * i for i in range(8)], "qpoll", sleep=qsleep)
    for a in range(2):
        for z in range(2):
            r = 128 + 4 * a + z
            A(f"v_add_f32 v{r}, v{r}, v{r+8}\nv_add_f32 v{r+16}, v{r+16}, v{r+24}\nv_add_f32 v{r}, v{r}, v{r+16}")
        A(f"v_cvt_pk_bf16_f32 v{128+4*a}, v{128+4*a}, v{129+4*a}")
    A(f"v_and_b32 v6, 32, v1\nv_lshlrev_b32 v6, 2, v6\nv_add_u32 v6, v6, v3\nv_and_b32 v5, 3, v2\nv_lshl_add_u32 v6, v5, 2, v6")
    A(f"s_lshl_b32 s{sT2}, s{sT3}, 9\nv_add_u32 v6, s{sT2}, v6\nv_mov_b32 v5, s{sTAG}")
    A(f"ds_write_b32 v6, v128 offset:{L_Q}\nds_write_b32 v6, v132 offset:{L_Q+256}")
    A(f"ds_write_b32 v7, v5 offset:{L_TAG}")
    init_acc()
    A("s_waitcnt lgkmcnt(0)")
    stamp(2)
    A("s_barrier")
    read_q()
    if NB:
        A(f"s_mul_i32 s{sLB}, s{sT3}, {NBH*16384}\nv_add_u32 v6, s{sLB}, v4\nv_add_u32 v6, {L_BACK}, v6")
        A(f"s_mov_b32 s{sCNT}, {NBH}")
        A("L_back:")
        for n in range(8):
            A(f"ds_read_b128 {v4(vK[0]+4*n)}, v6 offset:{1024*n}")
        for n in range(8):
            A(f"ds_read_b128 {v4(vV[0]+4*n)}, v6 offset:{8192+1024*n}")
        A("s_waitcnt lgkmcnt(0)" if stamps else "s_waitcnt lgkmcnt(8)")
        qk_softmax(vK[0])
        A("s_waitcnt lgkmcnt(0)")
        pv(vV[0])
        A(f"v_add_u32 v6, 16384, v6\ns_sub_u32 s{sCNT}, s{sCNT}, 1\ns_cmp_lg_u32 s{sCNT}, 0\ns_cbranch_scc1 L_back")
    write_partial()
    stamp(3)
    A(f"s_cmp_eq_u32 s{sW}, 2\ns_cbranch_scc1 L_tail")
    A(f"s_cmp_ge_u32 s{sJJ}, 28\ns_cbranch_scc1 L_h3f")
    A(f"s_lshl_b32 s{sT1}, s{sJJ}, 13\ns_lshl_b32 s{sT2}, s{sX8}, 10\ns_add_u32 s{sT1}, s{sT1}, s{sT2}\ns_add_u32 s{sT1}, s{sT1}, {WS_G1}")
    poll([f"buffer_load_dwordx4 v[96:99], v4, {s4(rWS)}, s{sT1} offen sc1"], [99], "g1poll", sleep=32)
    red_rep8([96, 97], "v_add_f32", 100)
    rnd_bf16(96); rnd_bf16(97)
    A(f"v_mul_f32 v96, s{sLOG2E}, v96\nv_exp_f32 v96, -v96\ns_nop 0\nv_add_f32 v96, 1.0, v96\nv_rcp_f32 v96, v96\ns_nop 0")
    rnd_bf16(96)
    A("v_mul_f32 v96, v96, v97\ns_nop 1\nv_mov_b32 v97, v96 quad_perm:[1,0,3,2]\ns_nop 0\nv_cvt_pk_bf16_f32 v96, v96, v97\ns_nop 1")
    for r in range(4):
        A(f"v_readlane_b32 s{sH+r}, v96, {2*r}")
    matvec8(192, [f"s{sH+r}" for r in range(4)], 96, 112)
    A(f"v_lshl_add_u32 v6, v2, 15, v3")
    A(f"s_lshl_b32 s{sT1}, s{sJJ}, 3\ns_add_u32 s{sT1}, s{sT1}, s{sX8}\ns_lshl_b32 s{sT1}, s{sT1}, 7\ns_add_u32 s{sT1}, s{sT1}, {WS_GL}")
    for k in range(4):
        A(f"v_mov_b32 v{112+4*k}, v{96+2*k}\nv_mov_b32 v{113+4*k}, v{97+2*k}\nv_mov_b32 v{114+4*k}, s{sTAG}\nv_mov_b32 v{115+4*k}, s{sTAG}")
        A(f"buffer_store_dwordx4 {v4(112+4*k)}, v6, {s4(rWS)}, s{sT1} offen sc1")
        A(f"s_add_u32 s{sT1}, s{sT1}, {8*32768}")
    A("s_branch L_tail")
    A("L_h3f:")
    A(f"s_lshl_b32 s{sT0}, s{sX8}, 2\ns_add_u32 s{sT0}, s{sT0}, s{sJJ}\ns_sub_u32 s{sT0}, s{sT0}, 28")
    A(f"s_and_b32 s{sT1}, s{sT0}, 7\ns_lshl_b32 s{sT1}, s{sT1}, 7\ns_lshr_b32 s{sT2}, s{sT0}, 3\ns_lshl_b32 s{sT2}, s{sT2}, 2\ns_add_u32 s{sT1}, s{sT1}, s{sT2}")
    A(f"buffer_load_dword v14, v3, {s4(rA)}, s{sT1} offen")
    A(f"s_lshl_b32 s{sT1}, s{sT0}, 15\ns_add_u32 s{sT1}, s{sT1}, {WS_GL}")
    lds_ = []
    for i in range(28):
        if i and i % 4 == 0:
            lds_.append(f"s_add_u32 s{sT2}, s{sT2}, 4096")
        elif i == 0:
            lds_.append(f"s_mov_b32 s{sT2}, s{sT1}")
        lds_.append(f"buffer_load_dwordx4 {v4(128+4*i)}, v4, {s4(rWS)}, s{sT2} offen offset:{1024*(i%4)} sc1")
    poll([f"s_sleep {gsleep}"] + lds_, [128 + 4 * i + 2 for i in range(28)], "gpoll")
    for i in range(1, 28):
        A(f"v_add_f32 v128, v128, v{128+4*i}\nv_add_f32 v129, v129, v{129+4*i}")
    red_rep8([128, 129], "v_add_f32", 132)
    for e in range(2):
        rnd_bf16(128 + e)
        A(f"v_mul_f32 v132, s{sLOG2E}, v{128+e}\nv_exp_f32 v132, -v132\ns_nop 0\nv_add_f32 v132, 1.0, v132\nv_rcp_f32 v132, v132\ns_nop 0")
        A(f"v_mul_f32 v{12+e}, v{128+e}, v132")
        rnd_bf16(12 + e)

    A("L_tail:")
    A("s_waitcnt vmcnt(0) lgkmcnt(0)")
    A("s_barrier")
    stamp(4)
    A(f"v_lshrrev_b32 v6, 4, v1\ns_lshl_b32 s{sT0}, s{sW}, 2\nv_add_u32 v6, s{sT0}, v6\nv_mul_u32_u24 v6, 144, v6")
    A(f"v_and_b32 v7, 15, v1\nv_lshl_add_u32 v6, v7, 3, v6")
    A(f"s_lshl_b32 s{sT0}, s{sW}, 3\nv_mov_b32 v7, s{sT0}")
    for p in range(4):
        A(f"ds_read_b64 {v2(96+2*p)}, v7 offset:{L_ML + 32*p}")
    for p in range(4):
        A(f"ds_read_b64 {v2(104+2*p)}, v6 offset:{L_PART + PSZ*p}")
    A(f"v_lshrrev_b32 v6, 3, v1\nv_lshlrev_b32 v6, 12, v6\nv_and_b32 v7, 7, v1\nv_lshl_add_u32 v6, v7, 4, v6")
    A(f"s_lshl_b32 s{sT0}, s{sHEAD}, 17\ns_lshl_b32 s{sT1}, s{sW}, 15\ns_add_u32 s{sT1}, s{sT1}, s{sT0}")
    A(f"s_lshl_b32 s{sT2}, s{sJ}, 7\ns_add_u32 s{sT1}, s{sT1}, s{sT2}\ns_add_u32 s{sT1}, s{sT1}, {WS_H1}")
    A("s_waitcnt lgkmcnt(0)" if stamps else "s_waitcnt lgkmcnt(4)")
    A("v_max3_f32 v112, v96, v98, v100\nv_max_f32 v112, v112, v102")
    for p in range(4):
        A(f"v_sub_f32 v{96+2*p}, v{96+2*p}, v112")
    for p in range(4):
        A(f"v_mul_f32 v{96+2*p}, s{sLOG2E}, v{96+2*p}")
    for p in range(4):
        A(f"v_exp_f32 v{96+2*p}, v{96+2*p}")
    A("s_waitcnt lgkmcnt(0)")
    A("v_mul_f32 v113, v96, v97\nv_mul_f32 v116, v96, v104\nv_mul_f32 v117, v96, v105")
    for p in range(1, 4):
        A(f"v_fmac_f32 v113, v{96+2*p}, v{97+2*p}\nv_fmac_f32 v116, v{96+2*p}, v{104+2*p}\nv_fmac_f32 v117, v{96+2*p}, v{105+2*p}")
    A(f"v_rcp_f32 v114, v113\nv_log_f32 v118, v113\nv_mov_b32 v119, s{sTAG}")
    A(f"v_mul_f32 v116, v116, v114\nv_mul_f32 v117, v117, v114\nv_fmac_f32 v118, s{sLOG2E}, v112")
    A(f"buffer_store_dwordx4 v[116:119], v6, {s4(rWS)}, s{sT1} offen sc1")
    A(f"s_lshl_b32 s{sT2}, s{sW}, 2\nv_lshl_add_u32 v7, v1, 4, s{sT2}\nv_add_u32 v7, {L_WO}, v7")
    for n in range(16):
        A(f"ds_read_b32 v{160+n}, v7 offset:{1024*n}")
    A("s_waitcnt lgkmcnt(0)")
    for u in range(8):
        A(f"v_perm_b32 v{176+2*u}, v{161+2*u}, v{160+2*u}, s{sSELL}\nv_perm_b32 v{177+2*u}, v{161+2*u}, v{160+2*u}, s{sSELH}")
    A(f"v_lshlrev_b32 v4, 4, v1")
    A(f"s_lshl_b32 s{sT1}, s{sJ}, 12\ns_add_u32 s{sT1}, s{sT1}, s{sT0}\ns_add_u32 s{sT1}, s{sT1}, {WS_H1}")
    poll([f"buffer_load_dwordx4 {v4(128+4*i)}, v4, {s4(rWS)}, s{sT1} offen offset:{1024*i} sc1" for i in range(4)],
         [131 + 4 * i for i in range(4)], "h1poll", sleep=h1sleep)
    stamp(5)
    A("v_max3_f32 v96, v130, v134, v138\nv_max_f32 v96, v96, v142")
    red_rep8([96], "v_max_f32", 100)
    for i in range(4):
        A(f"v_sub_f32 v{130+4*i}, v{130+4*i}, v96")
    for i in range(4):
        A(f"v_exp_f32 v{130+4*i}, v{130+4*i}")
    A("s_nop 0")
    A("v_mul_f32 v97, v130, v128\nv_mul_f32 v98, v130, v129\nv_add_f32 v96, v130, v134")
    for i in range(1, 4):
        A(f"v_fmac_f32 v97, v{130+4*i}, v{128+4*i}\nv_fmac_f32 v98, v{130+4*i}, v{129+4*i}")
    A("v_add_f32 v99, v138, v142\nv_add_f32 v96, v96, v99")
    red_rep8([96, 97, 98], "v_add_f32", 100)
    A("v_rcp_f32 v96, v96\ns_nop 0\nv_mul_f32 v97, v97, v96\nv_mul_f32 v98, v98, v96\nv_cvt_pk_bf16_f32 v97, v97, v98\ns_nop 1")
    for u in range(8):
        A(f"v_readlane_b32 s{sH+u}, v97, {u}")
    A(f"v_mov_b32 v118, s{sTAG}\nv_mov_b32 v119, s{sTAG}")
    for u in range(8):
        for z in range(2):
            c = "0" if u == 0 else f"v{116+z}"
            A(f"v_dot2_f32_bf16 v{116+z}, s{sH+u}, v{176+2*u+z}, {c}")
    A(f"v_lshrrev_b32 v6, 3, v0\nv_lshlrev_b32 v6, 15, v6\nv_and_b32 v7, 7, v1\nv_lshl_add_u32 v6, v7, 4, v6")
    A(f"s_lshl_b32 s{sT1}, s2, 7\ns_add_u32 s{sT1}, s{sT1}, {WS_H2}")
    A(f"buffer_store_dwordx4 v[116:119], v6, {s4(rWS)}, s{sT1} offen sc1")
    A(f"s_cmp_lt_u32 s{sJJ}, 28\ns_cbranch_scc1 L_fin")
    A(f"s_lshl_b32 s{sT0}, s{sX8}, 2\ns_add_u32 s{sT0}, s{sT0}, s{sJJ}\ns_sub_u32 s{sT0}, s{sT0}, 28")
    A(f"s_lshl_b32 s{sT1}, s{sT0}, 15\ns_lshl_b32 s{sT2}, s{sW}, 13\ns_add_u32 s{sT1}, s{sT1}, s{sT2}\ns_add_u32 s{sT1}, s{sT1}, {WS_H2}")
    A(f"s_add_u32 s{sT2}, s{sT1}, 4096")
    poll([f"buffer_load_dwordx4 {v4(128+4*i)}, v4, {s4(rWS)}, s{sT1 if i < 4 else sT2} offen offset:{1024*(i%4)} sc1" for i in range(8)],
         [130 + 4 * i for i in range(8)], "h2poll", sleep=h2sleep)
    stamp(6)
    for i in range(1, 8):
        A(f"v_add_f32 v128, v128, v{128+4*i}\nv_add_f32 v129, v129, v{129+4*i}")
    red_rep8([128, 129], "v_add_f32", 132)
    A(f"v_and_b32 v7, 7, v1\nv_lshlrev_b32 v7, 3, v7\ns_lshl_b32 s{sT2}, s{sW}, 6\nv_add_u32 v6, s{sT2}, v7")
    A(f"ds_write_b64 v6, v[128:129] offset:{L_RED}")
    A("s_waitcnt lgkmcnt(0)\ns_barrier")
    A(f"s_cmp_lg_u32 s{sW}, 3\ns_cbranch_scc1 L_fin")
    for p in range(3):
        A(f"ds_read_b64 {v2(132+2*p)}, v7 offset:{L_RED + 64*p}")
    srd(rA, sOUT, 1024)
    A("s_waitcnt lgkmcnt(0)")
    for p in range(3):
        A(f"v_add_f32 v128, v128, v{132+2*p}\nv_add_f32 v129, v129, v{133+2*p}")
    A(f"v_lshlrev_b32 v132, 16, v14\nv_and_b32 v133, s{sHI}, v14")
    for e in range(2):
        rnd_bf16(128 + e)
        A(f"v_mul_f32 v{128+e}, v{128+e}, v{12+e}")
        rnd_bf16(128 + e)
        A(f"v_add_f32 v{128+e}, v{128+e}, v{132+e}")
    A("v_cvt_pk_bf16_f32 v128, v128, v129")
    A(f"v_lshlrev_b32 v6, 4, v1")
    A(f"s_and_b32 s{sT1}, s{sT0}, 7\ns_lshl_b32 s{sT1}, s{sT1}, 7\ns_lshr_b32 s{sT2}, s{sT0}, 3\ns_lshl_b32 s{sT2}, s{sT2}, 2\ns_add_u32 s{sT1}, s{sT1}, s{sT2}")
    A("s_mov_b64 exec, 0xff")
    A(f"buffer_store_dword v128, v6, {s4(rA)}, s{sT1} offen sc1")
    A(f"s_cmp_lg_u32 s{sT0}, 0\ns_cbranch_scc1 L_fin")
    A("s_mov_b64 exec, 1")
    A(f"buffer_store_dword v119, v6, {s4(rWS)}, 0 offen offset:{WS_EPOCH} sc1")
    A("L_fin:")
    if stamps:
        A("s_mov_b64 exec, -1")
        A("s_waitcnt vmcnt(0)")
        stamp(7)
        A("s_waitcnt lgkmcnt(0)")
        if pad is not None:
            A(f"s_cmp_eq_u32 s{sST+2*pad}, 0\ns_cbranch_scc1 L_padout")
            if padx is not None:
                A(f"s_cmp_lg_u32 s{sX8}, {padx}\ns_cbranch_scc1 L_padout")
            A(f"s_add_u32 s{sT2}, s{sST+2*pad}, 10000")
            A("L_pad:")
            A(f"s_memrealtime {s2(sH)}\ns_waitcnt lgkmcnt(0)\ns_sub_u32 s{sT3}, s{sH}, s{sT2}\ns_cmp_lt_i32 s{sT3}, 0\ns_cbranch_scc1 L_pad")
            A("L_padout:")
        if hwid:
            A(f"s_getreg_b32 s{sST+2*6}, hwreg(HW_REG_HW_ID)")
        for i in range(8):
            A(f"v_mov_b32 v{96+i}, s{sST+2*i}")
        A(f"s_lshl_b32 s{sT1}, s2, 2\ns_add_u32 s{sT1}, s{sT1}, s{sW}\ns_lshl_b32 s{sT1}, s{sT1}, 5\ns_add_u32 s{sT1}, s{sT1}, {WS_STAMP}")
        A("v_mov_b32 v7, 0\ns_mov_b64 exec, 1")
        A(f"buffer_store_dwordx4 v[96:99], v7, {s4(rWS)}, s{sT1} offen")
        A(f"buffer_store_dwordx4 v[100:103], v7, {s4(rWS)}, s{sT1} offen offset:16")
    A("L_end:")
    A("s_endpgm")

    out = HEADER
    out += f"; @launch grid=(256,1,1) block=(256,1,1) lds={lds_bytes}\n"
    out += '.amdgcn_target "amdgcn-amd-amdhsa--gfx950"\n.text\n'
    out += f".globl {KNAME}_kernel\n.p2align 8\n.type {KNAME}_kernel,@function\n"
    out += "\n".join(A.L) + "\n"
    out += f""".section .rodata,"a"
.p2align 6
.amdhsa_kernel {KNAME}_kernel
  .amdhsa_next_free_vgpr 256
  .amdhsa_next_free_sgpr 102
  .amdhsa_accum_offset 256
  .amdhsa_group_segment_fixed_size 0
  .amdhsa_kernarg_size 96
  .amdhsa_user_sgpr_count 2
  .amdhsa_user_sgpr_kernarg_segment_ptr 1
  .amdhsa_system_sgpr_workgroup_id_x 1
.end_amdhsa_kernel
"""
    return out


if __name__ == "__main__":
    kw = json.loads(sys.argv[2]) if len(sys.argv) > 2 else {}
    open(sys.argv[1], "w").write(gen(**kw))
```

```python
import sys, json, struct

KNAME = "recurrent_scan__gqa_block_cached__glu_gated_glu__decode"
HEADER = open("cdna_kernels/" + KNAME + ".s.ref").read().split("; Override launch")[0] \
    if __name__ == "__main__" or True else ""

def f2u(x):
    return struct.unpack("<I", struct.pack("<f", x))[0]

LOG2E = 1.4426950408889634
WS_EPOCH = 0x0
WS_QX = 0x10000
WS_G1 = 0x40000
WS_H1 = 0x100000
WS_H2 = 0x200000
WS_GL = 0x300000
WS_STAMP = 0x1000000
WS_SIZE = 0x20000000
L_Q = 0
L_FLAG = 1024
F_RDY = L_FLAG
F_DONE = L_FLAG + 8
F_QPUB = L_FLAG + 16
F_QH = L_FLAG + 24
L_RED = 1088
L_ML = 1536
L_PART = 2048
PSZ = 2304
L_WO = 8192
L_RING = 24576

vQ = 16; vO = 32; vL = 64; vS = 68; vT = 76; vP = 84; vONE = 88; vM = 92; vMN = 93; vX0 = 94; vX1 = 95
vA = 96
vK = 128; vV = 160
sX, sK, sV, sWQ, sWO, sBX, sWG, sWU, sWD, sOUT, sDBG, sWS = 4, 6, 8, 10, 12, 14, 16, 18, 20, 22, 24, 26
rK, rV, rWS, rA, rB, rC, rD = 28, 32, 36, 40, 44, 48, 52
sW, sHEAD, sJ, sX8, sJJ = 56, 57, 58, 59, 60
sKO, sVO, sCNT, sTAG = 61, 62, 63, 64
sSELL, sSELH, sSCALE, sLOG2E, sHI = 65, 66, 67, 68, 69
sT0, sT1, sT2, sT3 = 70, 71, 72, 73
sH = 74
sEX = 82
sSPIN = 84
sLB = 85
sC, sTHR, sFL = 61, 62, 3
sST = 86


class G:
    def __init__(self):
        self.L = []
        self.n = 0
    def __call__(self, s):
        for line in s.strip("\n").split("\n"):
            self.L.append("    " + line.strip() if not line.strip().endswith(":") else line.strip())
    def label(self, base):
        self.n += 1
        return f"L_{base}_{self.n}"


def v4(r):
    return f"v[{r}:{r+3}]"
def v2(r):
    return f"v[{r}:{r+1}]"
def s4(r):
    return f"s[{r}:{r+3}]"
def s2(r):
    return f"s[{r}:{r+1}]"


def gen(kvflags="nt", wflags="nt", NL=1, win=20, stamps=False, mimic=True, pad=None, qsleep=16, fine=False,
        gsleep=127, h1sleep=0, h2sleep=0, hwid=False, padx=None, csleep=1, gate="landed", lprio=0, nocomp=False, noread=False, nofree=False, noglu=False, touch=0, gl_skip=0):
    A = G()
    lds_bytes = L_RING + 8 * 16384
    NWV = 3 + NL

    def srd(r, base, size):
        A(f"s_mov_b32 s{r}, s{base}\ns_mov_b32 s{r+1}, s{base+1}\ns_mov_b32 s{r+2}, {size}\ns_mov_b32 s{r+3}, 0x20000")

    def fstamp(i):
        if stamps and fine:
            A(f"s_memrealtime {s2(sST + 2 * i)}")
    def stamp(i):
        if stamps and not (fine and i in (3, 4, 5, 6)) and not (hwid and i in (5, 6)):
            A(f"s_memrealtime {s2(sST + 2 * i)}")

    def wave_sum(r, t):
        for k in (8, 4, 2, 1):
            A("s_nop 1")
            A(f"v_add_f32 v{r}, v{r}, v{r} row_ror:{k}")
        A(f"v_mov_b32 v{t}, v{r}\ns_nop 1\nv_permlane16_swap_b32 v{r}, v{t}\ns_nop 1\nv_add_f32 v{r}, v{r}, v{t}")
        A(f"v_mov_b32 v{t}, v{r}\ns_nop 1\nv_permlane32_swap_b32 v{r}, v{t}\ns_nop 1\nv_add_f32 v{r}, v{r}, v{t}")

    def rnd_bf16(r):
        A(f"v_cvt_pk_bf16_f32 v{r}, v{r}, v{r}\nv_and_b32 v{r}, 0xffff0000, v{r}")

    def ln_stats():
        F = 96; D = 104
        for k in range(4):
            A(f"v_lshlrev_b32 v{F+2*k}, 16, v{8+k}\nv_and_b32 v{F+2*k+1}, s{sHI}, v{8+k}")
        A(f"v_add_f32 v13, v{F}, v{F+1}")
        for k in range(2, 8):
            A(f"v_add_f32 v13, v13, v{F+k}")
        wave_sum(13, 14)
        A(f"v_mul_f32 v13, {hex(f2u(1/512))}, v13")
        for k in range(8):
            A(f"v_sub_f32 v{D+k}, v{F+k}, v13")
        A(f"v_mul_f32 v15, v{D}, v{D}")
        for k in range(1, 8):
            A(f"v_fmac_f32 v15, v{D+k}, v{D+k}")
        wave_sum(15, 14)
        A(f"v_mul_f32 v15, {hex(f2u(1/512))}, v15")
        rnd_bf16(13); rnd_bf16(15)
        A(f"v_add_f32 v15, {hex(f2u(1e-5))}, v15")
        rnd_bf16(15)
        A("v_sqrt_f32 v15, v15\ns_nop 0")
        rnd_bf16(15)
        A("v_rcp_f32 v15, v15")

    def ln_apply(X):
        D = 104
        for k in range(4):
            A(f"v_lshlrev_b32 v{D+2*k}, 16, v{X+k}\nv_and_b32 v{D+2*k+1}, s{sHI}, v{X+k}")
        for k in range(8):
            A(f"v_sub_f32 v{D+k}, v{D+k}, v13")
        for k in range(4):
            A(f"v_cvt_pk_bf16_f32 v{X+k}, v{D+2*k}, v{D+2*k+1}")
        for k in range(4):
            A(f"v_lshlrev_b32 v{D+2*k}, 16, v{X+k}\nv_and_b32 v{D+2*k+1}, s{sHI}, v{X+k}")
        for k in range(8):
            A(f"v_mul_f32 v{D+k}, v{D+k}, v15")
        for k in range(4):
            A(f"v_cvt_pk_bf16_f32 v{X+k}, v{D+2*k}, v{D+2*k+1}")

    def matvec8(W, xs, acc, tmp, first=True):
        for j in range(4):
            for u in range(4):
                A(f"v_perm_b32 v{tmp+2*u}, v{W+(2*j+1)*4+u}, v{W+(2*j)*4+u}, s{sSELL}")
                A(f"v_perm_b32 v{tmp+2*u+1}, v{W+(2*j+1)*4+u}, v{W+(2*j)*4+u}, s{sSELH}")
            for e in range(8):
                c = "0" if (j == 0 and first) else f"v{acc+e}"
                A(f"v_dot2_f32_bf16 v{acc+e}, {xs[j]}, v{tmp+e}, {c}")
        A("s_nop 2")

    def reduce8(acc, rors=(8, 4, 2, 1)):
        A("s_nop 1")
        for e in range(4):
            A(f"v_permlane32_swap_b32 v{acc+e}, v{acc+4+e}")
        A("s_nop 1")
        for e in range(4):
            A(f"v_add_f32 v{acc+e}, v{acc+e}, v{acc+4+e}")
        A("s_nop 1")
        for e in range(2):
            A(f"v_permlane16_swap_b32 v{acc+e}, v{acc+2+e}")
        A("s_nop 1")
        for e in range(2):
            A(f"v_add_f32 v{acc+e}, v{acc+e}, v{acc+2+e}")
        for k in rors:
            A("s_nop 0")
            for e in range(2):
                A(f"v_add_f32 v{acc+e}, v{acc+e}, v{acc+e} row_ror:{k}")
        A("s_nop 0")

    def lds_wait(addr, sreg, thr, name, sleep=1, vaddr=7, vtmp=vX0):
        top = A.label(name); done = A.label(name + "_ok")
        A(f"s_mov_b32 s{sSPIN}, 0")
        A(f"{top}:")
        A(f"ds_read_b32 v{vtmp}, v{vaddr} offset:{addr}\ns_waitcnt lgkmcnt(0)\nv_readfirstlane_b32 s{sreg}, v{vtmp}")
        A(f"s_add_u32 s{sSPIN}, s{sSPIN}, 1")
        A(f"s_cmp_ge_i32 s{sreg}, {thr}\ns_cbranch_scc1 {done}")
        if sleep:
            A(f"s_sleep {sleep}")
        A(f"s_cmp_lt_u32 s{sSPIN}, 0x100000\ns_cbranch_scc1 {top}")
        A(f"{done}:")

    def wo_rows(us):
        srd(rA, sWO, hex(4096 * 512 * 2))
        A(f"s_lshr_b32 s{sT0}, s{sJ}, 3\ns_lshl_b32 s{sT1}, s{sHEAD}, 2\ns_add_u32 s{sT0}, s{sT0}, s{sT1}\ns_lshl_b32 s{sT0}, s{sT0}, 7")
        A(f"s_bfe_u32 s{sT1}, s{sJ}, 0x20001\ns_lshl_b32 s{sT1}, s{sT1}, 5\ns_add_u32 s{sT0}, s{sT0}, s{sT1}")
        A(f"s_and_b32 s{sT1}, s{sJ}, 1\ns_lshl_b32 s{sT1}, s{sT1}, 2\ns_add_u32 s{sT0}, s{sT0}, s{sT1}")
        A(f"s_lshl_b32 s{sT1}, s{sC}, 1\ns_add_u32 s{sT0}, s{sT0}, s{sT1}\ns_lshl_b32 s{sT0}, s{sT0}, 10")
        A(f"s_lshl_b32 s{sT2}, s{sC}, 13")
        for u in us:
            for z in range(2):
                row = 16 * (u & 1) + 8 * z + (u >> 1)
                A(f"s_add_u32 m0, s{sT2}, {L_WO + (2*u+z)*1024}\ns_add_u32 s{sT1}, s{sT0}, {row*1024}")
                A(f"buffer_load_dwordx4 v4, {s4(rA)}, s{sT1} offen {wflags} lds")

    def qk_softmax(K):
        for s in range(4):
            for b in range(2):
                c = "0" if s == 0 else v4(vS + 4 * b)
                A(f"v_mfma_f32_16x16x32_bf16 {v4(vS+4*b)}, {v4(K+16*b+4*s)}, {v4(vQ+4*s)}, {c}")
        A("s_nop 7")
        if mimic:
            for j in range(4):
                A(f"v_cvt_pk_bf16_f32 v{vT+j}, v{vS+2*j}, v{vS+2*j+1}")
            for j in range(4):
                A(f"v_lshlrev_b32 v{vS+2*j}, 16, v{vT+j}")
                A(f"v_and_b32 v{vS+2*j+1}, s{sHI}, v{vT+j}")
            for i in range(8):
                A(f"v_mul_f32 v{vS+i}, s{sSCALE}, v{vS+i}")
            for j in range(4):
                A(f"v_cvt_pk_bf16_f32 v{vT+j}, v{vS+2*j}, v{vS+2*j+1}")
            for j in range(4):
                A(f"v_lshlrev_b32 v{vS+2*j}, 16, v{vT+j}")
                A(f"v_and_b32 v{vS+2*j+1}, s{sHI}, v{vT+j}")
        else:
            for i in range(8):
                A(f"v_mul_f32 v{vS+i}, s{sSCALE}, v{vS+i}")
        A(f"v_max3_f32 v{vX0}, v{vS}, v{vS+1}, v{vS+2}")
        A(f"v_max3_f32 v{vX1}, v{vS+3}, v{vS+4}, v{vS+5}")
        A(f"v_max3_f32 v{vX0}, v{vX0}, v{vS+6}, v{vS+7}")
        A(f"v_max_f32 v{vX0}, v{vX0}, v{vX1}")
        skip = A.label("nors")
        A(f"v_cmp_gt_f32 vcc, v{vX0}, v{vM}")
        A(f"s_cbranch_vccz {skip}")
        A(f"v_max_f32 v{vX0}, v{vX0}, v{vM}")
        A(f"v_mov_b32 v{vX1}, v{vX0}\ns_nop 1\nv_permlane16_swap_b32 v{vX0}, v{vX1}\ns_nop 1\nv_max_f32 v{vX0}, v{vX0}, v{vX1}")
        A(f"v_mov_b32 v{vX1}, v{vX0}\ns_nop 1\nv_permlane32_swap_b32 v{vX0}, v{vX1}\ns_nop 1\nv_max_f32 v{vX0}, v{vX0}, v{vX1}")
        A(f"v_sub_f32 v{vX1}, v{vM}, v{vX0}")
        A(f"v_mul_f32 v{vX1}, s{sLOG2E}, v{vX1}")
        A(f"v_exp_f32 v{vX1}, v{vX1}")
        A(f"v_mov_b32 v{vM}, v{vX0}")
        A(f"v_mul_f32 v{vMN}, s{sLOG2E}, v{vX0}")
        for i in range(36):
            A(f"v_mul_f32 v{vO+i}, v{vX1}, v{vO+i}")
        A(f"{skip}:")
        for i in range(8):
            A(f"v_fma_f32 v{vS+i}, v{vS+i}, s{sLOG2E}, -v{vMN}")
        for i in range(8):
            A(f"v_exp_f32 v{vS+i}, v{vS+i}")
        A("s_nop 0")
        for j in range(4):
            A(f"v_cvt_pk_bf16_f32 v{vP+j}, v{vS+2*j}, v{vS+2*j+1}")

    def pv(V):
        for u in range(4):
            for z in range(2):
                e = 2 * u + z
                sel = sSELH if z else sSELL
                for j in range(4):
                    A(f"v_perm_b32 v{vA+4*e+j}, v{V+(2*j+1)*4+u}, v{V+(2*j)*4+u}, s{sel}")
                if e == 0:
                    A(f"v_mfma_f32_16x16x32_bf16 {v4(vL)}, {v4(vONE)}, {v4(vP)}, {v4(vL)}")
                else:
                    A(f"v_mfma_f32_16x16x32_bf16 {v4(vO+4*(e-1))}, {v4(vA+4*(e-1))}, {v4(vP)}, {v4(vO+4*(e-1))}")
        A("s_nop 1")
        A(f"v_mfma_f32_16x16x32_bf16 {v4(vO+28)}, {v4(vA+28)}, {v4(vP)}, {v4(vO+28)}")

    def init_acc():
        for i in range(36):
            A(f"v_mov_b32 v{vO+i}, 0")
        for i in range(4):
            A(f"v_mov_b32 v{vONE+i}, 0x3f803f80")
        A(f"v_mov_b32 v{vM}, {hex(f2u(-1e30))}")
        A(f"v_mul_f32 v{vMN}, s{sLOG2E}, v{vM}")

    def read_q():
        A("v_and_b32 v6, 3, v1\nv_lshlrev_b32 v6, 8, v6\nv_lshrrev_b32 v7, 4, v1\nv_lshl_add_u32 v6, v7, 4, v6")
        for s in range(4):
            A(f"ds_read_b128 {v4(vQ+4*s)}, v6 offset:{L_Q + 64*s}")
        A("v_mov_b32 v7, 0")
        A("s_waitcnt lgkmcnt(0)")

    def write_partial():
        A("s_nop 7")
        A(f"v_and_b32 v6, 3, v1\nv_lshrrev_b32 v7, 4, v1\nv_lshl_add_u32 v7, v6, 2, v7\nv_mul_u32_u24 v7, 144, v7")
        A(f"s_mul_i32 s{sT0}, s{sC}, {PSZ}\nv_add_u32 v7, s{sT0}, v7")
        A(f"s_lshl_b32 s{sT0}, s{sC}, 5\nv_lshl_add_u32 v6, v6, 3, s{sT0}")
        A(f"v_mov_b32 v{vX0}, v{vM}\nv_mov_b32 v{vX1}, v{vL}")
        A(f"s_mov_b32 exec_lo, 0x000f000f\ns_mov_b32 exec_hi, 0x000f000f")
        for e in range(8):
            A(f"ds_write_b128 v7, {v4(vO+4*e)} offset:{L_PART + 16*e}")
        A(f"ds_write_b64 v6, {v2(vX0)} offset:{L_ML}")
        A("s_mov_b64 exec, -1")

    def poll(loads, tagregs, name, sleep=0):
        top = A.label(name); done = A.label(name + "_ok")
        A(f"s_mov_b32 s{sSPIN}, 0")
        A(f"{top}:")
        for l in loads:
            A(l)
        A("s_waitcnt vmcnt(0)")
        A(f"v_xor_b32 v{vX0}, s{sTAG}, v{tagregs[0]}")
        for r in tagregs[1:]:
            A(f"v_xor_b32 v{vX1}, s{sTAG}, v{r}\nv_or_b32 v{vX0}, v{vX0}, v{vX1}")
        A(f"v_cmp_ne_u32 vcc, 0, v{vX0}")
        A(f"s_cbranch_vccz {done}")
        if sleep:
            A(f"s_sleep {sleep}")
        A(f"s_add_u32 s{sSPIN}, s{sSPIN}, 1\ns_cmp_lt_u32 s{sSPIN}, 0x40000\ns_cbranch_scc1 {top}")
        A(f"{done}:")

    def red_rep8(regs, op, t):
        A("s_nop 1")
        for r in regs:
            A(f"{op} v{r}, v{r}, v{r} row_ror:8")
        for sw in ("v_permlane16_swap_b32", "v_permlane32_swap_b32"):
            for i, r in enumerate(regs):
                A(f"v_mov_b32 v{t+i}, v{r}")
            A("s_nop 1")
            for i, r in enumerate(regs):
                A(f"{sw} v{r}, v{t+i}")
            A("s_nop 1")
            for i, r in enumerate(regs):
                A(f"{op} v{r}, v{r}, v{t+i}")

    A(f"{KNAME}_kernel:")
    A("s_cmp_ge_u32 s2, 256\ns_cbranch_scc1 L_end")
    stamp(0)
    A(f"s_load_dwordx16 s[4:19], s[0:1], 0\ns_load_dwordx8 s[20:27], s[0:1], 64")
    A(f"v_lshrrev_b32 v2, 6, v0\nv_and_b32 v1, 63, v0")
    A(f"s_and_b32 s{sX8}, s2, 7\ns_lshr_b32 s{sJJ}, s2, 3")
    A(f"v_readfirstlane_b32 s{sW}, v2")
    A(f"v_mov_b32 v7, 0\nv_and_b32 v6, 15, v1\nv_lshlrev_b32 v6, 2, v6\nds_write_b32 v6, v7 offset:{L_FLAG}")
    A(f"s_mov_b32 s{sHEAD}, s{sX8}\ns_mov_b32 s{sJ}, s{sJJ}")
    A(f"s_mov_b32 s{sSELL}, 0x05040100\ns_mov_b32 s{sSELH}, 0x07060302")
    A(f"s_mov_b32 s{sSCALE}, {hex(f2u(128 ** -0.5))}\ns_mov_b32 s{sLOG2E}, {hex(f2u(LOG2E))}\ns_mov_b32 s{sHI}, 0xffff0000")
    if stamps:
        for i in range(1, 8):
            A(f"s_mov_b64 {s2(sST+2*i)}, 0")
    A("v_lshlrev_b32 v4, 4, v1")
    A("v_lshrrev_b32 v2, 3, v1\nv_and_b32 v3, 7, v1\nv_lshlrev_b32 v3, 4, v3")
    A("s_waitcnt lgkmcnt(0)")
    A("s_barrier")
    A(f"s_load_dword s{sTAG}, {s2(sWS)}, {WS_EPOCH}")
    srd(rWS, sWS, hex(WS_SIZE))
    A(f"s_and_b32 s{sT0}, s{sW}, 3\ns_cmp_lg_u32 s{sT0}, 0\ns_cbranch_scc1 L_notloader")

    if lprio:
        A(f"s_setprio {lprio}")
    A(f"s_lshr_b32 s{sC}, s{sW}, 2")
    A(f"s_lshl_b32 s{sT0}, s{sHEAD}, 24\ns_lshl_b32 s{sT1}, s{sJ}, 19\ns_add_u32 s{sT0}, s{sT0}, s{sT1}")
    A(f"s_add_u32 s{rK}, s{sK}, s{sT0}\ns_addc_u32 s{rK+1}, s{sK+1}, 0\ns_mov_b32 s{rK+2}, 0x80000\ns_mov_b32 s{rK+3}, 0x20000")
    A(f"s_add_u32 s{rV}, s{sV}, s{sT0}\ns_addc_u32 s{rV+1}, s{sV+1}, 0\ns_mov_b32 s{rV+2}, 0x80000\ns_mov_b32 s{rV+3}, 0x20000")
    A("v_lshrrev_b32 v5, 4, v1\nv_lshlrev_b32 v5, 6, v5\nv_xor_b32 v8, v4, v5")
    for n in range(1, 4):
        A(f"v_xor_b32 v{8+n}, {16*n}, v8")
    A(f"s_lshl_b32 s{sH}, s{sC}, 13")
    A(f"s_mov_b32 s{sCNT}, 0")
    A(f"s_lshl_b32 s{sT0}, s{sC}, 2\nv_mov_b32 v12, s{sT0}")
    D = win
    first_k = (D - 1) % 8
    A(f"v_mov_b32 v13, {(first_k - D + 1) // 8}")
    NT = 64 // NL
    A("L_load:")
    if NL == 1:
        A(f"s_and_b32 s{sT0}, s{sCNT}, 1\ns_lshr_b32 s{sT1}, s{sCNT}, 1")
    else:
        A(f"s_mov_b32 s{sT0}, s{sC}\ns_mov_b32 s{sT1}, s{sCNT}")
    A(f"s_and_b32 s{sT2}, s{sT1}, 3\ns_lshl_b32 s{sLB}, s{sT0}, 2\ns_add_u32 s{sLB}, s{sLB}, s{sT2}\ns_lshl_b32 s{sLB}, s{sLB}, 14")
    A(f"s_add_u32 s{sH+1}, s{sH}, 4096")
    A(f"s_cmp_lt_u32 s{sT1}, {64 if nofree else 4}\ns_cbranch_scc1 L_free")
    A(f"s_sub_u32 s{sTHR}, s{sT1}, 3\ns_lshl_b32 s{sT0}, s{sT0}, 2\nv_mov_b32 v14, s{sT0}")
    lds_wait(F_DONE, sT2, f"s{sTHR}", "free", sleep=0, vaddr=14, vtmp=15)
    A("L_free:")
    for k in range(16):
        n = k % 8
        if n % 4 == 0:
            A(f"s_add_u32 m0, s{sLB}, {L_RING + k*1024}")
        A(f"s_waitcnt vmcnt({D-1})")
        so = sH + n // 4
        if k < 8:
            A(f"buffer_load_dwordx4 v{8+n%4}, {s4(rK)}, s{so} offen offset:{1024*(n%4)} {kvflags} lds")
        else:
            A(f"buffer_load_dwordx4 v4, {s4(rV)}, s{so} offen offset:{1024*(n%4)} {kvflags} lds")
        if n == first_k:
            A(f"ds_write_b32 v12, v13 offset:{F_RDY}\nv_add_u32 v13, 1, v13")
    A(f"s_add_u32 s{sH}, s{sH}, {8192*NL}\ns_add_u32 s{sCNT}, s{sCNT}, 1")
    if hwid:
        A(f"s_cmp_lg_u32 s{sCNT}, {NT//2}\ns_cbranch_scc1 L_nomid\ns_memrealtime {s2(sST+2*5)}\nL_nomid:")
    if stamps:
        A(f"s_cmp_lg_u32 s{sCNT}, {8//NL}\ns_cbranch_scc1 L_no8\ns_memrealtime {s2(sST+2*1)}\nL_no8:")
    A(f"s_cmp_lt_u32 s{sCNT}, {NT}\ns_cbranch_scc1 L_load")
    rem = D - 1 - first_k
    while rem >= 0:
        A(f"s_waitcnt vmcnt({rem})\nds_write_b32 v12, v13 offset:{F_RDY}\nv_add_u32 v13, 1, v13")
        rem -= 8
    stamp(3)
    if lprio:
        A("s_setprio 0")
    A(f"s_waitcnt lgkmcnt(0)\ns_add_u32 s{sTAG}, s{sTAG}, 0x9E3779B1")
    if NL == 2:
        A(f"s_cmp_eq_u32 s{sW}, 4\ns_cbranch_scc1 L_fin")
    A("s_branch L_tail")

    A("L_notloader:")
    A(f"s_cmp_eq_u32 s{sW}, 3\ns_cbranch_scc1 L_h3a")
    A(f"s_sub_u32 s{sC}, s{sW}, 1")
    A(f"s_cmp_eq_u32 s{sW}, 2\ns_cbranch_scc1 L_w2")
    A(f"s_waitcnt lgkmcnt(0)\ns_add_u32 s{sTAG}, s{sTAG}, 0x9E3779B1")
    lds_wait(F_QPUB, sT0, 2, "qpub1", sleep=2)
    A("s_branch L_wo")
    A("L_w2:")
    A(f"s_lshr_b32 s{sT0}, s2, 6")
    A(f"s_and_b32 s{sT1}, s{sJJ}, 7\ns_lshl_b32 s{sT2}, s{sX8}, 3\ns_add_u32 s{sT1}, s{sT1}, s{sT2}\ns_lshl_b32 s{sT1}, s{sT1}, 7")
    A(f"s_lshl_b32 s{sT2}, s{sT0}, 20\ns_add_u32 s{sT1}, s{sT1}, s{sT2}")
    A(f"v_lshl_add_u32 v5, v2, 17, v3")
    A(f"v_lshlrev_b32 v6, 5, v2\ns_lshl_b32 s{sT2}, s{sT0}, 8")
    srd(rA, sX, 1024)
    srd(rB, sWQ, hex(512 * 4096 * 2))
    fstamp(3)
    A(f"buffer_load_dwordx4 v[8:11], v4, {s4(rA)}, 0 offen")
    A(f"buffer_load_dwordx4 v[16:19], v6, {s4(rA)}, s{sT2} offen")
    A(f"buffer_load_dwordx4 v[20:23], v6, {s4(rA)}, s{sT2} offen offset:16")
    for i in range(16):
        A(f"buffer_load_dwordx4 {v4(128+4*i)}, v5, {s4(rB)}, s{sT1} offen {wflags}")
        if i < 15:
            A(f"s_add_u32 s{sT1}, s{sT1}, 8192")
    A("s_waitcnt vmcnt(16)")
    fstamp(4)
    ln_stats()
    ln_apply(16); ln_apply(20)
    fstamp(5)
    A("s_waitcnt vmcnt(8)")
    matvec8(128, [f"v{16+k}" for k in range(4)], 96, 104)
    A(f"s_waitcnt vmcnt(0) lgkmcnt(0)\ns_add_u32 s{sTAG}, s{sTAG}, 0x9E3779B1")
    A(f"v_mov_b32 v12, 1\nds_write_b32 v7, v12 offset:{F_QPUB}")
    fstamp(6)
    matvec8(160, [f"v{20+k}" for k in range(4)], 96, 104, first=False)
    reduce8(96, (8,))
    A(f"v_mov_b32 v98, s{sTAG}\nv_mov_b32 v99, s{sTAG}")
    A(f"v_lshrrev_b32 v6, 4, v1\nv_lshl_add_u32 v6, v6, 7, v3")
    A(f"s_lshl_b32 s{sT1}, s{sX8}, 14\ns_lshl_b32 s{sT2}, s{sT0}, 12\ns_add_u32 s{sT1}, s{sT1}, s{sT2}")
    A(f"s_and_b32 s{sT2}, s{sJJ}, 7\ns_lshl_b32 s{sT2}, s{sT2}, 9\ns_add_u32 s{sT1}, s{sT1}, s{sT2}\ns_add_u32 s{sT1}, s{sT1}, {WS_QX}")
    A("s_mov_b32 exec_lo, 0x00ff00ff\ns_mov_b32 exec_hi, 0x00ff00ff")
    A(f"buffer_store_dwordx4 v[96:99], v6, {s4(rWS)}, s{sT1} offen sc1")
    A("s_mov_b64 exec, -1")
    A(f"v_mov_b32 v12, 2\nds_write_b32 v7, v12 offset:{F_QPUB}")
    stamp(1)
    A("L_wo:")
    wo_rows(range(4))
    A("s_waitcnt vmcnt(0)")
    A(f"s_lshl_b32 s{sH}, s{sHEAD}, 14\ns_lshl_b32 s{sT2}, s{sC}, 11\ns_add_u32 s{sH}, s{sH}, s{sT2}\ns_add_u32 s{sH}, s{sH}, {WS_QX}")
    for k in range(1, 4):
        A(f"s_add_u32 s{sH+k}, s{sH}, {4096*k}")
    poll([f"buffer_load_dwordx4 {v4(128+8*k+4*a)}, v4, {s4(rWS)}, s{sH+k} offen offset:{1024*a} sc1" for k in range(4) for a in range(2)],
         [131 + 4 * i for i in range(8)], "qpoll", sleep=qsleep)
    for a in range(2):
        for z in range(2):
            r = 128 + 4 * a + z
            A(f"v_add_f32 v{r}, v{r}, v{r+8}\nv_add_f32 v{r+16}, v{r+16}, v{r+24}\nv_add_f32 v{r}, v{r}, v{r+16}")
        A(f"v_cvt_pk_bf16_f32 v{128+4*a}, v{128+4*a}, v{129+4*a}")
    A(f"v_and_b32 v6, 32, v1\nv_lshlrev_b32 v6, 2, v6\nv_add_u32 v6, v6, v3\nv_and_b32 v5, 3, v2\nv_lshl_add_u32 v6, v5, 2, v6")
    A(f"s_lshl_b32 s{sT2}, s{sC}, 9\nv_add_u32 v6, s{sT2}, v6")
    A(f"ds_write_b32 v6, v128 offset:{L_Q}\nds_write_b32 v6, v132 offset:{L_Q+256}")
    A(f"s_lshl_b32 s{sT2}, s{sC}, 2\nv_mov_b32 v14, s{sT2}\nv_xor_b32 v15, 4, v14\nv_mov_b32 v12, 1")
    A(f"ds_write_b32 v14, v12 offset:{F_QH}")
    init_acc()
    lds_wait(F_QH, sT0, 1, "qh", sleep=1, vaddr=15)
    stamp(2)
    read_q()
    A("v_and_b32 v5, 3, v1\nv_lshlrev_b32 v5, 10, v5\nv_bfe_u32 v6, v1, 2, 2\nv_lshl_add_u32 v5, v6, 8, v5")
    A("v_lshrrev_b32 v6, 4, v1\nv_xor_b32 v6, v6, v1\nv_and_b32 v6, 15, v6\nv_lshl_add_u32 v8, v6, 4, v5")
    for n in range(1, 4):
        A(f"v_xor_b32 v{8+n}, {64*n}, v8")
    A("v_mov_b32 v13, 1")
    if NL == 1:
        A(f"v_mov_b32 v15, 0\ns_lshl_b32 s{sTHR}, s{sC}, 1\ns_add_u32 s{sTHR}, s{sTHR}, 1")
    else:
        A(f"v_mov_b32 v15, v14\ns_mov_b32 s{sTHR}, 1")
    A(f"s_mov_b32 s{sCNT}, 0")
    A("L_cons:")
    A(f"s_and_b32 s{sT2}, s{sCNT}, 3\ns_lshl_b32 s{sLB}, s{sC}, 2\ns_add_u32 s{sLB}, s{sLB}, s{sT2}\ns_lshl_b32 s{sLB}, s{sLB}, 14")
    for n in range(4):
        A(f"v_add_u32 v{vA+n}, s{sLB}, v{8+n}")
    A(f"v_add_u32 v12, s{sLB}, v4")
    lds_wait(F_RDY, sFL, f"s{sTHR}", "krdy", sleep=csleep, vaddr=15)
    for b in range(2):
        for n in range(4):
            if not noread: A(f"ds_read_b128 {v4(vK+16*b+4*n)}, v{vA+n} offset:{L_RING + 4096*b}")
    A(f"s_add_u32 s{sTHR}, s{sTHR}, 1")
    A(f"s_cmp_ge_i32 s{sFL}, s{sTHR}\ns_cbranch_scc0 L_vlate")
    for n in range(8):
        if not noread: A(f"ds_read_b128 {v4(vV+4*n)}, v12 offset:{L_RING + 8192 + 1024*n}")
    A("s_waitcnt lgkmcnt(8)\ns_branch L_qk")
    A("L_vlate:")
    A("s_waitcnt lgkmcnt(0)")
    A("L_qk:")
    if not nocomp: qk_softmax(vK)
    A(f"s_cmp_ge_i32 s{sFL}, s{sTHR}\ns_cbranch_scc1 L_vhave")
    lds_wait(F_RDY, sFL, f"s{sTHR}", "vrdy", sleep=csleep, vaddr=15)
    for n in range(8):
        if not noread: A(f"ds_read_b128 {v4(vV+4*n)}, v12 offset:{L_RING + 8192 + 1024*n}")
    A("L_vhave:")
    A("s_waitcnt lgkmcnt(0)")
    A(f"ds_write_b32 v14, v13 offset:{F_DONE}\nv_add_u32 v13, 1, v13")
    if not nocomp: pv(vV)
    A(f"s_add_u32 s{sTHR}, s{sTHR}, {3 if NL == 1 else 1}\ns_add_u32 s{sCNT}, s{sCNT}, 1\ns_cmp_lt_u32 s{sCNT}, 32\ns_cbranch_scc1 L_cons")
    stamp(3)
    write_partial()
    A("s_branch L_tail")

    A("L_h3a:")
    if touch:
        srd(rB, sWG, hex(512 * 1792 * 2)); srd(rC, sWU, hex(512 * 1792 * 2)); srd(rD, sWD, hex(512 * 1792 * 2))
        A("s_mov_b64 exec, 1")
        A(f"s_lshl_b32 s{sT1}, s2, 12")
        A(f"buffer_load_dword v20, v7, {s4(rB)}, s{sT1} offen nt")
        A(f"buffer_load_dword v21, v7, {s4(rC)}, s{sT1} offen nt")
        A(f"buffer_load_dword v22, v7, {s4(rD)}, s{sT1} offen nt")
        A(f"s_lshl_b32 s{sT1}, s2, 7\ns_add_u32 s{sT1}, s{sT1}, 0x80000")
        A(f"buffer_load_dword v23, v7, {s4(rWS)}, s{sT1} offen nt")
        A(f"s_lshl_b32 s{sT1}, s2, 2\ns_add_u32 s{sT1}, s{sT1}, {WS_GL + 0x7000}")
        A(f"buffer_load_dword v24, v7, {s4(rWS)}, s{sT1} offen nt")
        srd(rA, sWO, hex(4096 * 512 * 2))
        A(f"s_lshl_b32 s{sT1}, s{sHEAD}, 19\ns_lshl_b32 s{sT2}, s{sJ}, 14\ns_add_u32 s{sT1}, s{sT1}, s{sT2}")
        A(f"buffer_load_dword v25, v7, {s4(rA)}, s{sT1} offen nt")
        srd(rA, sOUT, 1024)
        A(f"buffer_load_dword v26, v7, {s4(rA)}, 0 offen nt")
        A("s_mov_b64 exec, -1")
        A("s_waitcnt vmcnt(0)")
        stamp(2)
    srd(rA, sX, 1024)
    A(f"s_waitcnt lgkmcnt(0)\ns_add_u32 s{sTAG}, s{sTAG}, 0x9E3779B1")
    if noglu: A("s_branch L_tail")
    A(f"s_cmp_ge_u32 s{sJJ}, 28\ns_cbranch_scc1 L_h3f")
    A(f"s_mul_i32 s{sT1}, s{sX8}, {64*3584}\ns_lshl_b32 s{sT2}, s{sJJ}, 7\ns_add_u32 s{sT1}, s{sT1}, s{sT2}")
    A(f"v_mul_u32_u24 v5, {8*3584}, v2\nv_add_u32 v5, v5, v3")
    A(f"v_lshlrev_b32 v6, 4, v2\ns_lshl_b32 s{sT2}, s{sX8}, 7")
    srd(rB, sWG, hex(512 * 1792 * 2)); srd(rC, sWU, hex(512 * 1792 * 2)); srd(rD, sWD, hex(512 * 1792 * 2))
    if gate == "landed":
        lds_wait(F_QPUB, sT0, 1, "qpub3", sleep=2)
    elif gate == "q":
        lds_wait(F_QH, sT0, 1, "qpub3", sleep=4)
    A(f"buffer_load_dwordx4 v[8:11], v4, {s4(rA)}, 0 offen")
    A(f"buffer_load_dwordx4 v[16:19], v6, {s4(rA)}, s{sT2} offen")
    for i in range(8):
        A(f"buffer_load_dwordx4 {v4(128+4*i)}, v5, {s4(rB)}, s{sT1} offen {wflags}")
        A(f"buffer_load_dwordx4 {v4(160+4*i)}, v5, {s4(rC)}, s{sT1} offen {wflags}")
        if i < 7:
            A(f"s_add_u32 s{sT1}, s{sT1}, 3584")
    A("s_waitcnt vmcnt(16)")
    ln_stats()
    ln_apply(16)
    A("s_waitcnt vmcnt(0)")
    XN = [f"v{16+k}" for k in range(4)]
    matvec8(128, XN, 96, 112)
    matvec8(160, XN, 104, 112)
    reduce8(96, (8,)); reduce8(104, (8,))
    A("s_mov_b32 vcc_lo, 0xff00ff00\ns_mov_b32 vcc_hi, 0xff00ff00")
    A(f"v_cndmask_b32 v96, v96, v97, vcc\nv_cndmask_b32 v97, v104, v105, vcc\nv_mov_b32 v98, s{sTAG}\nv_mov_b32 v99, s{sTAG}")
    A(f"v_lshl_add_u32 v6, v2, 10, v3")
    A(f"s_lshl_b32 s{sT1}, s{sJJ}, 13\ns_lshl_b32 s{sT2}, s{sX8}, 7\ns_add_u32 s{sT1}, s{sT1}, s{sT2}\ns_add_u32 s{sT1}, s{sT1}, {WS_G1}")
    A(f"buffer_store_dwordx4 v[96:99], v6, {s4(rWS)}, s{sT1} offen sc1")
    stamp(1)
    A(f"s_lshl_b32 s{sT1}, s{sJJ}, 16\ns_lshl_b32 s{sT2}, s{sX8}, 10\ns_add_u32 s{sT1}, s{sT1}, s{sT2}")
    for i in range(8):
        A(f"buffer_load_dwordx4 {v4(192+4*i)}, v4, {s4(rD)}, s{sT1} offen {wflags}")
        if i < 7:
            A(f"s_add_u32 s{sT1}, s{sT1}, 8192")
    if gl_skip == 1: A("s_branch L_tail")
    lds_wait(F_RDY, sT0, 32 // NL, "g2gate", sleep=16)
    A(f"s_lshl_b32 s{sT1}, s{sJJ}, 13\ns_lshl_b32 s{sT2}, s{sX8}, 10\ns_add_u32 s{sT1}, s{sT1}, s{sT2}\ns_add_u32 s{sT1}, s{sT1}, {WS_G1}")
    poll([f"buffer_load_dwordx4 v[96:99], v4, {s4(rWS)}, s{sT1} offen sc1"], [99], "g1poll", sleep=32)
    red_rep8([96, 97], "v_add_f32", 100)
    rnd_bf16(96); rnd_bf16(97)
    A(f"v_mul_f32 v96, s{sLOG2E}, v96\nv_exp_f32 v96, -v96\ns_nop 0\nv_add_f32 v96, 1.0, v96\nv_rcp_f32 v96, v96\ns_nop 0")
    rnd_bf16(96)
    A("v_mul_f32 v96, v96, v97\ns_nop 1\nv_mov_b32 v97, v96 quad_perm:[1,0,3,2]\ns_nop 0\nv_cvt_pk_bf16_f32 v96, v96, v97\ns_nop 1")
    for r in range(4):
        A(f"v_readlane_b32 s{sH+r}, v96, {2*r}")
    matvec8(192, [f"s{sH+r}" for r in range(4)], 96, 112)
    A(f"v_lshl_add_u32 v6, v2, 15, v3")
    A(f"s_lshl_b32 s{sT1}, s{sJJ}, 3\ns_add_u32 s{sT1}, s{sT1}, s{sX8}\ns_lshl_b32 s{sT1}, s{sT1}, 7\ns_add_u32 s{sT1}, s{sT1}, {WS_GL}")
    for k in range(4):
        A(f"v_mov_b32 v{112+4*k}, v{96+2*k}\nv_mov_b32 v{113+4*k}, v{97+2*k}\nv_mov_b32 v{114+4*k}, s{sTAG}\nv_mov_b32 v{115+4*k}, s{sTAG}")
        A(f"buffer_store_dwordx4 {v4(112+4*k)}, v6, {s4(rWS)}, s{sT1} offen sc1")
        A(f"s_add_u32 s{sT1}, s{sT1}, {8*32768}")
    A("s_branch L_tail")
    A("L_h3f:")
    if gl_skip: A("s_branch L_tail")
    lds_wait(F_RDY, sT0, 64 // NL, "g3gate", sleep=16)
    A(f"s_lshl_b32 s{sT0}, s{sX8}, 2\ns_add_u32 s{sT0}, s{sT0}, s{sJJ}\ns_sub_u32 s{sT0}, s{sT0}, 28")
    A(f"s_and_b32 s{sT1}, s{sT0}, 7\ns_lshl_b32 s{sT1}, s{sT1}, 7\ns_lshr_b32 s{sT2}, s{sT0}, 3\ns_lshl_b32 s{sT2}, s{sT2}, 2\ns_add_u32 s{sT1}, s{sT1}, s{sT2}")
    A(f"buffer_load_dword v14, v3, {s4(rA)}, s{sT1} offen")
    A(f"s_lshl_b32 s{sT1}, s{sT0}, 15\ns_add_u32 s{sT1}, s{sT1}, {WS_GL}")
    lds_ = []
    for i in range(28):
        if i and i % 4 == 0:
            lds_.append(f"s_add_u32 s{sT2}, s{sT2}, 4096")
        elif i == 0:
            lds_.append(f"s_mov_b32 s{sT2}, s{sT1}")
        lds_.append(f"buffer_load_dwordx4 {v4(128+4*i)}, v4, {s4(rWS)}, s{sT2} offen offset:{1024*(i%4)} sc1")
    poll(lds_, [128 + 4 * i + 2 for i in range(28)], "gpoll", sleep=gsleep)
    for i in range(1, 28):
        A(f"v_add_f32 v128, v128, v{128+4*i}\nv_add_f32 v129, v129, v{129+4*i}")
    red_rep8([128, 129], "v_add_f32", 132)
    for e in range(2):
        rnd_bf16(128 + e)
        A(f"v_mul_f32 v132, s{sLOG2E}, v{128+e}\nv_exp_f32 v132, -v132\ns_nop 0\nv_add_f32 v132, 1.0, v132\nv_rcp_f32 v132, v132\ns_nop 0")
        A(f"v_mul_f32 v{12+e}, v{128+e}, v132")
        rnd_bf16(12 + e)

    A("L_tail:")
    A("s_waitcnt vmcnt(0) lgkmcnt(0)")
    A("s_barrier")
    stamp(4)
    A(f"v_lshrrev_b32 v6, 4, v1\ns_lshl_b32 s{sT0}, s{sW}, 2\nv_add_u32 v6, s{sT0}, v6\nv_mul_u32_u24 v6, 144, v6")
    A(f"v_and_b32 v7, 15, v1\nv_lshl_add_u32 v6, v7, 3, v6")
    A(f"s_lshl_b32 s{sT0}, s{sW}, 3\nv_mov_b32 v7, s{sT0}")
    for p in range(2):
        A(f"ds_read_b64 {v2(96+2*p)}, v7 offset:{L_ML + 32*p}")
    for p in range(2):
        A(f"ds_read_b64 {v2(104+2*p)}, v6 offset:{L_PART + PSZ*p}")
    A(f"v_lshrrev_b32 v6, 3, v1\nv_lshlrev_b32 v6, 12, v6\nv_and_b32 v7, 7, v1\nv_lshl_add_u32 v6, v7, 4, v6")
    A(f"s_lshl_b32 s{sT0}, s{sHEAD}, 17\ns_lshl_b32 s{sT1}, s{sW}, 15\ns_add_u32 s{sT1}, s{sT1}, s{sT0}")
    A(f"s_lshl_b32 s{sT2}, s{sJ}, 7\ns_add_u32 s{sT1}, s{sT1}, s{sT2}\ns_add_u32 s{sT1}, s{sT1}, {WS_H1}")
    A("s_waitcnt lgkmcnt(0)" if stamps else "s_waitcnt lgkmcnt(2)")
    A("v_max_f32 v112, v96, v98")
    for p in range(2):
        A(f"v_sub_f32 v{96+2*p}, v{96+2*p}, v112")
    for p in range(2):
        A(f"v_mul_f32 v{96+2*p}, s{sLOG2E}, v{96+2*p}")
    for p in range(2):
        A(f"v_exp_f32 v{96+2*p}, v{96+2*p}")
    A("s_waitcnt lgkmcnt(0)")
    A("v_mul_f32 v113, v96, v97\nv_mul_f32 v116, v96, v104\nv_mul_f32 v117, v96, v105")
    for p in range(1, 2):
        A(f"v_fmac_f32 v113, v{96+2*p}, v{97+2*p}\nv_fmac_f32 v116, v{96+2*p}, v{104+2*p}\nv_fmac_f32 v117, v{96+2*p}, v{105+2*p}")
    A(f"v_rcp_f32 v114, v113\nv_log_f32 v118, v113\nv_mov_b32 v119, s{sTAG}")
    A(f"v_mul_f32 v116, v116, v114\nv_mul_f32 v117, v117, v114\nv_fmac_f32 v118, s{sLOG2E}, v112")
    A(f"buffer_store_dwordx4 v[116:119], v6, {s4(rWS)}, s{sT1} offen sc1")
    A(f"s_lshl_b32 s{sT2}, s{sW}, 2\nv_lshl_add_u32 v7, v1, 4, s{sT2}\nv_add_u32 v7, {L_WO}, v7")
    for n in range(16):
        A(f"ds_read_b32 v{160+n}, v7 offset:{1024*n}")
    A("s_waitcnt lgkmcnt(0)")
    for u in range(8):
        A(f"v_perm_b32 v{176+2*u}, v{161+2*u}, v{160+2*u}, s{sSELL}\nv_perm_b32 v{177+2*u}, v{161+2*u}, v{160+2*u}, s{sSELH}")
    A(f"v_lshlrev_b32 v4, 4, v1")
    A(f"s_lshl_b32 s{sT1}, s{sJ}, 12\ns_add_u32 s{sT1}, s{sT1}, s{sT0}\ns_add_u32 s{sT1}, s{sT1}, {WS_H1}")
    poll([f"buffer_load_dwordx4 {v4(128+4*i)}, v4, {s4(rWS)}, s{sT1} offen offset:{1024*i} sc1" for i in range(4)],
         [131 + 4 * i for i in range(4)], "h1poll", sleep=h1sleep)
    stamp(5)
    A("v_max3_f32 v96, v130, v134, v138\nv_max_f32 v96, v96, v142")
    red_rep8([96], "v_max_f32", 100)
    for i in range(4):
        A(f"v_sub_f32 v{130+4*i}, v{130+4*i}, v96")
    for i in range(4):
        A(f"v_exp_f32 v{130+4*i}, v{130+4*i}")
    A("s_nop 0")
    A("v_mul_f32 v97, v130, v128\nv_mul_f32 v98, v130, v129\nv_add_f32 v96, v130, v134")
    for i in range(1, 4):
        A(f"v_fmac_f32 v97, v{130+4*i}, v{128+4*i}\nv_fmac_f32 v98, v{130+4*i}, v{129+4*i}")
    A("v_add_f32 v99, v138, v142\nv_add_f32 v96, v96, v99")
    red_rep8([96, 97, 98], "v_add_f32", 100)
    A("v_rcp_f32 v96, v96\ns_nop 0\nv_mul_f32 v97, v97, v96\nv_mul_f32 v98, v98, v96\nv_cvt_pk_bf16_f32 v97, v97, v98\ns_nop 1")
    for u in range(8):
        A(f"v_readlane_b32 s{sH+u}, v97, {u}")
    A(f"v_mov_b32 v118, s{sTAG}\nv_mov_b32 v119, s{sTAG}")
    for u in range(8):
        for z in range(2):
            c = "0" if u == 0 else f"v{116+z}"
            A(f"v_dot2_f32_bf16 v{116+z}, s{sH+u}, v{176+2*u+z}, {c}")
    A(f"v_lshrrev_b32 v6, 3, v0\nv_lshlrev_b32 v6, 15, v6\nv_and_b32 v7, 7, v1\nv_lshl_add_u32 v6, v7, 4, v6")
    A(f"s_lshl_b32 s{sT1}, s2, 7\ns_add_u32 s{sT1}, s{sT1}, {WS_H2}")
    A(f"buffer_store_dwordx4 v[116:119], v6, {s4(rWS)}, s{sT1} offen sc1")
    A(f"s_cmp_lt_u32 s{sJJ}, 28\ns_cbranch_scc1 L_fin")
    A(f"s_lshl_b32 s{sT0}, s{sX8}, 2\ns_add_u32 s{sT0}, s{sT0}, s{sJJ}\ns_sub_u32 s{sT0}, s{sT0}, 28")
    A(f"s_lshl_b32 s{sT1}, s{sT0}, 15\ns_lshl_b32 s{sT2}, s{sW}, 13\ns_add_u32 s{sT1}, s{sT1}, s{sT2}\ns_add_u32 s{sT1}, s{sT1}, {WS_H2}")
    A(f"s_add_u32 s{sT2}, s{sT1}, 4096")
    poll([f"buffer_load_dwordx4 {v4(128+4*i)}, v4, {s4(rWS)}, s{sT1 if i < 4 else sT2} offen offset:{1024*(i%4)} sc1" for i in range(8)],
         [130 + 4 * i for i in range(8)], "h2poll", sleep=h2sleep)
    stamp(6)
    for i in range(1, 8):
        A(f"v_add_f32 v128, v128, v{128+4*i}\nv_add_f32 v129, v129, v{129+4*i}")
    red_rep8([128, 129], "v_add_f32", 132)
    A(f"v_and_b32 v7, 7, v1\nv_lshlrev_b32 v7, 3, v7\ns_lshl_b32 s{sT2}, s{sW}, 6\nv_add_u32 v6, s{sT2}, v7")
    A(f"ds_write_b64 v6, v[128:129] offset:{L_RED}")
    A("s_waitcnt lgkmcnt(0)\ns_barrier")
    A(f"s_cmp_lg_u32 s{sW}, 3\ns_cbranch_scc1 L_fin")
    for p in range(3):
        A(f"ds_read_b64 {v2(132+2*p)}, v7 offset:{L_RED + 64*p}")
    srd(rA, sOUT, 1024)
    A("s_waitcnt lgkmcnt(0)")
    for p in range(3):
        A(f"v_add_f32 v128, v128, v{132+2*p}\nv_add_f32 v129, v129, v{133+2*p}")
    A(f"v_lshlrev_b32 v132, 16, v14\nv_and_b32 v133, s{sHI}, v14")
    for e in range(2):
        rnd_bf16(128 + e)
        A(f"v_mul_f32 v{128+e}, v{128+e}, v{12+e}")
        rnd_bf16(128 + e)
        A(f"v_add_f32 v{128+e}, v{128+e}, v{132+e}")
    A("v_cvt_pk_bf16_f32 v128, v128, v129")
    A(f"v_lshlrev_b32 v6, 4, v1")
    A(f"s_and_b32 s{sT1}, s{sT0}, 7\ns_lshl_b32 s{sT1}, s{sT1}, 7\ns_lshr_b32 s{sT2}, s{sT0}, 3\ns_lshl_b32 s{sT2}, s{sT2}, 2\ns_add_u32 s{sT1}, s{sT1}, s{sT2}")
    A("s_mov_b64 exec, 0xff")
    A(f"buffer_store_dword v128, v6, {s4(rA)}, s{sT1} offen sc1")
    A(f"s_cmp_lg_u32 s{sT0}, 0\ns_cbranch_scc1 L_fin")
    A("s_mov_b64 exec, 1")
    A(f"buffer_store_dword v119, v6, {s4(rWS)}, 0 offen offset:{WS_EPOCH} sc1")
    A("L_fin:")
    if stamps:
        A("s_mov_b64 exec, -1")
        A("s_waitcnt vmcnt(0)")
        stamp(7)
        A("s_waitcnt lgkmcnt(0)")
        if pad is not None:
            A(f"s_cmp_eq_u32 s{sST+2*pad}, 0\ns_cbranch_scc1 L_padout")
            if padx is not None:
                A(f"s_cmp_lg_u32 s{sX8}, {padx}\ns_cbranch_scc1 L_padout")
            A(f"s_add_u32 s{sT2}, s{sST+2*pad}, 10000")
            A("L_pad:")
            A(f"s_memrealtime {s2(sH)}\ns_waitcnt lgkmcnt(0)\ns_sub_u32 s{sT3}, s{sH}, s{sT2}\ns_cmp_lt_i32 s{sT3}, 0\ns_cbranch_scc1 L_pad")
            A("L_padout:")
        if hwid:
            A(f"s_getreg_b32 s{sST+2*6}, hwreg(HW_REG_HW_ID)")
        for i in range(8):
            A(f"v_mov_b32 v{96+i}, s{sST+2*i}")
        A(f"s_mul_i32 s{sT1}, s2, {NWV}\ns_add_u32 s{sT1}, s{sT1}, s{sW}\ns_lshl_b32 s{sT1}, s{sT1}, 5\ns_add_u32 s{sT1}, s{sT1}, {WS_STAMP}")
        A("v_mov_b32 v7, 0\ns_mov_b64 exec, 1")
        A(f"buffer_store_dwordx4 v[96:99], v7, {s4(rWS)}, s{sT1} offen")
        A(f"buffer_store_dwordx4 v[100:103], v7, {s4(rWS)}, s{sT1} offen offset:16")
    A("L_end:")
    A("s_endpgm")

    out = HEADER
    out += f"; @launch grid=(256,1,1) block=({NWV*64},1,1) lds={lds_bytes}\n"
    out += '.amdgcn_target "amdgcn-amd-amdhsa--gfx950"\n.text\n'
    out += f".globl {KNAME}_kernel\n.p2align 8\n.type {KNAME}_kernel,@function\n"
    out += "\n".join(A.L) + "\n"
    out += f""".section .rodata,"a"
.p2align 6
.amdhsa_kernel {KNAME}_kernel
  .amdhsa_next_free_vgpr 256
  .amdhsa_next_free_sgpr 102
  .amdhsa_accum_offset 256
  .amdhsa_group_segment_fixed_size 0
  .amdhsa_kernarg_size 96
  .amdhsa_user_sgpr_count 2
  .amdhsa_user_sgpr_kernarg_segment_ptr 1
  .amdhsa_system_sgpr_workgroup_id_x 1
.end_amdhsa_kernel
"""
    return out


if __name__ == "__main__":
    kw = json.loads(sys.argv[2]) if len(sys.argv) > 2 else {}
    open(sys.argv[1], "w").write(gen(**kw))
```

```python
import sys, json, struct

KNAME = "recurrent_scan__gqa_block_cached__glu_gated_glu__decode"
HEADER = open("cdna_kernels/" + KNAME + ".s.ref").read().split("; Override launch")[0]

def f2u(x):
    return struct.unpack("<I", struct.pack("<f", x))[0]

LOG2E = 1.4426950408889634
WS_EPOCH = 0x0
WS_LS = 0x2000
WS_QX = 0x10000
WS_G1 = 0x20000
WS_GL = 0x30000
WS_H1 = 0x40000
WS_H2 = 0xC0000
WS_STAMP = 0x1000000
WS_SIZE = 0x20000000
L_Q = 0
L_FLAG = 1024
F_RDY = L_FLAG
F_GUP = L_FLAG + 4
F_DONE = L_FLAG + 8
F_QH = L_FLAG + 16
F_MX = L_FLAG + 24
F_PD = L_FLAG + 32
F_SC = L_FLAG + 40
L_MX = 1152
L_LS = 1216
L_SC = 1280
L_HB = 1536
L_RED = 2048
L_P = 4096
L_WO = 20480
L_WD = 36864
L_RING = 45056
NSLOT = 7
LDS_BYTES = L_RING + NSLOT * 16384
U0 = 7

sFL = 3
sX, sK, sV, sWQ, sWO, sBX, sWG, sWU, sWD, sOUT, sDBG, sWS = 4, 6, 8, 10, 12, 14, 16, 18, 20, 22, 24, 26
rK, rV, rWS, rA, rB, rC, rD = 28, 32, 36, 40, 44, 48, 52
sW, sX8, sJJ, sCB, sSUB = 56, 57, 58, 59, 60
sC, sTHR, sCNT, sTAG = 61, 62, 63, 64
sSELL, sSELH, sSCALE, sLOG2E, sHI = 65, 66, 67, 68, 69
sT0, sT1, sT2, sT3 = 70, 71, 72, 73
sH = 74
sM = 82
sSPIN = 84
sLB = 85
sST = 86
TX4 = 8; TX2 = 12; vX0 = 14; vX1 = 15
vWO = 16


class G:
    def __init__(self):
        self.L = []
        self.n = 0
    def __call__(self, s):
        for line in s.strip("\n").split("\n"):
            self.L.append("    " + line.strip() if not line.strip().endswith(":") else line.strip())
    def label(self, base):
        self.n += 1
        return f"L_{base}_{self.n}"


def v4(r):
    return f"v[{r}:{r+3}]"
def v2(r):
    return f"v[{r}:{r+1}]"
def s4(r):
    return f"s[{r}:{r+3}]"
def s2(r):
    return f"s[{r}:{r+1}]"


def gen(kvflags="nt", wflags="nt", win=20, stamps=False, pad=None, qsleep=8, qgate=8, g2gate=24, g3gate=48,
        lsgate=100, h1sleep=0, h2sleep=0, csleep=1, lprio=0, smode=0, skip=0, prog=False, win2=0, last=6, force=0, qflags='sc1', gflags='sc1'):
    A = G()

    def srd(r, base, size):
        A(f"s_mov_b32 s{r}, s{base}\ns_mov_b32 s{r+1}, s{base+1}\ns_mov_b32 s{r+2}, {size}\ns_mov_b32 s{r+3}, 0x20000")

    def stamp(i, mode=None):
        if stamps and (mode is None or mode == smode):
            A(f"s_memrealtime {s2(sST + 2 * i)}")

    def lgkm(n):
        A(f"s_waitcnt lgkmcnt({n})")

    def swap_red(r, t, op, kinds=("16", "32")):
        for k in kinds:
            A(f"v_mov_b32 v{t}, v{r}\ns_nop 1\nv_permlane{k}_swap_b32 v{r}, v{t}\ns_nop 1\n{op} v{r}, v{r}, v{t}")

    def wave_red(r, t, op, rors):
        for k in rors:
            A(f"s_nop 1\n{op} v{r}, v{r}, v{r} row_ror:{k}")
        swap_red(r, t, op)

    def rnd_bf16(r):
        A(f"v_cvt_pk_bf16_f32 v{r}, v{r}, v{r}\nv_and_b32 v{r}, 0xffff0000, v{r}")

    def ln_stats(X, mean, rstd, F):
        D = F + 8
        for k in range(4):
            A(f"v_lshlrev_b32 v{F+2*k}, 16, v{X+k}\nv_and_b32 v{F+2*k+1}, s{sHI}, v{X+k}")
        A(f"v_add_f32 v{mean}, v{F}, v{F+1}")
        for k in range(2, 8):
            A(f"v_add_f32 v{mean}, v{mean}, v{F+k}")
        wave_red(mean, vX0, "v_add_f32", (8, 4, 2, 1))
        A(f"v_mul_f32 v{mean}, {hex(f2u(1/512))}, v{mean}")
        for k in range(8):
            A(f"v_sub_f32 v{D+k}, v{F+k}, v{mean}")
        A(f"v_mul_f32 v{rstd}, v{D}, v{D}")
        for k in range(1, 8):
            A(f"v_fmac_f32 v{rstd}, v{D+k}, v{D+k}")
        wave_red(rstd, vX0, "v_add_f32", (8, 4, 2, 1))
        A(f"v_mul_f32 v{rstd}, {hex(f2u(1/512))}, v{rstd}")
        rnd_bf16(mean); rnd_bf16(rstd)
        A(f"v_add_f32 v{rstd}, {hex(f2u(1e-5))}, v{rstd}")
        rnd_bf16(rstd)
        A(f"v_sqrt_f32 v{rstd}, v{rstd}\ns_nop 0")
        rnd_bf16(rstd)
        A(f"v_rcp_f32 v{rstd}, v{rstd}")

    def ln_apply(X, mean, rstd, D):
        for k in range(4):
            A(f"v_lshlrev_b32 v{D+2*k}, 16, v{X+k}\nv_and_b32 v{D+2*k+1}, s{sHI}, v{X+k}")
        for k in range(8):
            A(f"v_sub_f32 v{D+k}, v{D+k}, v{mean}")
        for k in range(4):
            A(f"v_cvt_pk_bf16_f32 v{X+k}, v{D+2*k}, v{D+2*k+1}")
        for k in range(4):
            A(f"v_lshlrev_b32 v{D+2*k}, 16, v{X+k}\nv_and_b32 v{D+2*k+1}, s{sHI}, v{X+k}")
        for k in range(8):
            A(f"v_mul_f32 v{D+k}, v{D+k}, v{rstd}")
        for k in range(4):
            A(f"v_cvt_pk_bf16_f32 v{X+k}, v{D+2*k}, v{D+2*k+1}")

    def matvec8(W, xs, acc, tmp, first=True):
        for j in range(4):
            for u in range(4):
                A(f"v_perm_b32 v{tmp+2*u}, v{W+(2*j+1)*4+u}, v{W+(2*j)*4+u}, s{sSELL}")
                A(f"v_perm_b32 v{tmp+2*u+1}, v{W+(2*j+1)*4+u}, v{W+(2*j)*4+u}, s{sSELH}")
            for e in range(8):
                c = "0" if (j == 0 and first) else f"v{acc+e}"
                A(f"v_dot2_f32_bf16 v{acc+e}, {xs[j]}, v{tmp+e}, {c}")
        A("s_nop 2")

    def reduce8(acc):
        A("s_nop 1")
        for e in range(4):
            A(f"v_permlane32_swap_b32 v{acc+e}, v{acc+4+e}")
        A("s_nop 1")
        for e in range(4):
            A(f"v_add_f32 v{acc+e}, v{acc+e}, v{acc+4+e}")
        A("s_nop 1")
        for e in range(2):
            A(f"v_permlane16_swap_b32 v{acc+e}, v{acc+2+e}")
        A("s_nop 1")
        for e in range(2):
            A(f"v_add_f32 v{acc+e}, v{acc+e}, v{acc+2+e}")
        A("s_nop 0")
        for e in range(2):
            A(f"v_add_f32 v{acc+e}, v{acc+e}, v{acc+e} row_ror:8")
        A("s_nop 0")

    def red4(a):
        A("s_nop 1")
        A(f"v_permlane32_swap_b32 v{a}, v{a+2}\nv_permlane32_swap_b32 v{a+1}, v{a+3}")
        A("s_nop 0")
        A(f"v_add_f32 v{a}, v{a}, v{a+2}\nv_add_f32 v{a+1}, v{a+1}, v{a+3}")
        for k in (8, 4):
            A("s_nop 0")
            A(f"v_add_f32 v{a}, v{a}, v{a} row_ror:{k}\nv_add_f32 v{a+1}, v{a+1}, v{a+1} row_ror:{k}")
        A(f"v_mov_b32 v{a+2}, v{a}\nv_mov_b32 v{a+3}, v{a+1}\ns_nop 0")
        A(f"v_permlane16_swap_b32 v{a}, v{a+2}\nv_permlane16_swap_b32 v{a+1}, v{a+3}")
        A("s_nop 0")
        A(f"v_add_f32 v{a}, v{a}, v{a+2}\nv_add_f32 v{a+1}, v{a+1}, v{a+3}")

    def lds_wait(addr, sreg, thr, name, sleep=1, vaddr=7, cached=False, pair=False):
        top = A.label(name); done = A.label(name + "_ok")
        if cached:
            A(f"s_cmp_ge_i32 s{sreg}, {thr}\ns_cbranch_scc1 {done}")
        A(f"s_mov_b32 s{sSPIN}, 0")
        A(f"{top}:")
        if pair:
            A(f"ds_read_b64 {v2(vX0)}, v{vaddr} offset:{addr}\ns_waitcnt lgkmcnt(0)\nv_min_i32 v{vX0}, v{vX0}, v{vX1}\ns_nop 0")
        else:
            A(f"ds_read_b32 v{vX0}, v{vaddr} offset:{addr}\ns_waitcnt lgkmcnt(0)")
        A(f"v_readfirstlane_b32 s{sreg}, v{vX0}")
        A(f"s_add_u32 s{sSPIN}, s{sSPIN}, 1")
        A(f"s_cmp_ge_i32 s{sreg}, {thr}\ns_cbranch_scc1 {done}")
        if sleep:
            A(f"s_sleep {sleep}")
        A(f"s_cmp_lt_u32 s{sSPIN}, 0x100000\ns_cbranch_scc1 {top}")
        A(f"{done}:")

    def lds_flag(addr, val=1, vaddr=7):
        A(f"v_mov_b32 v{vX0}, {val}\nds_write_b32 v{vaddr}, v{vX0} offset:{addr}")

    def make_tags():
        A(f"s_waitcnt lgkmcnt(0)\ns_add_u32 s{sTAG}, s{sTAG}, 0x9E3779B1")
        A(f"v_and_b32 v5, 1, v1\nv_lshlrev_b32 v5, 4, v5\nv_lshrrev_b32 v5, v5, s{sTAG}")
        for k in range(4):
            A(f"v_bfe_u32 v{TX4+k}, v5, {4*k}, 4")
        A(f"v_and_b32 v5, 3, v1\nv_lshlrev_b32 v5, 3, v5\nv_lshrrev_b32 v5, v5, s{sTAG}")
        for k in range(2):
            A(f"v_bfe_u32 v{TX2+k}, v5, {4*k}, 4")

    def embed(dst, src, tag):
        A(f"v_and_or_b32 v{dst}, v{src}, -16, v{tag}")

    def poll(loads, checks, name, sleep=0, full=False):
        top = A.label(name); done = A.label(name + "_ok")
        A(f"s_mov_b32 s{sSPIN}, 0")
        A(f"{top}:")
        for l in loads:
            A(l)
        A("s_waitcnt vmcnt(0)")
        A(f"v_xor_b32 v{vX0}, {checks[0][1]}, v{checks[0][0]}")
        for r, t in checks[1:]:
            A(f"v_bitop3_b32 v{vX0}, v{vX0}, v{r}, {t} bitop3:0xf6")
        if not full:
            A(f"v_and_b32 v{vX0}, 15, v{vX0}\nv_cmp_ne_u32 vcc, 0, v{vX0}")
        else:
            A(f"v_cmp_lt_u32 vcc, 15, v{vX0}")
        A(f"s_cbranch_vccz {done}")
        if sleep:
            A(f"s_sleep {sleep}")
        A(f"s_add_u32 s{sSPIN}, s{sSPIN}, 1\ns_cmp_lt_u32 s{sSPIN}, 0x40000\ns_cbranch_scc1 {top}")
        A(f"{done}:")

    def chk4(regs):
        return [(r + k, f"v{TX4+k}") for r in regs for k in range(4)]

    def next_slot(step):
        A(f"s_add_u32 s{sLB}, s{sLB}, {step*16384}\ns_sub_u32 s{sT0}, s{sLB}, {NSLOT*16384}")
        A(f"s_cmp_ge_u32 s{sLB}, {NSLOT*16384}\ns_cselect_b32 s{sLB}, s{sT0}, s{sLB}")

    def sigmoid(dst, src):
        A(f"v_mul_f32 v{dst}, s{sLOG2E}, v{src}\nv_exp_f32 v{dst}, -v{dst}\ns_nop 0\nv_add_f32 v{dst}, 1.0, v{dst}\nv_rcp_f32 v{dst}, v{dst}\ns_nop 0")

    A(f"{KNAME}_kernel:")
    A("s_cmp_ge_u32 s2, 256\ns_cbranch_scc1 L_end")
    stamp(0)
    A(f"s_load_dwordx16 s[4:19], s[0:1], 0\ns_load_dwordx8 s[20:27], s[0:1], 64")
    A(f"v_lshrrev_b32 v2, 6, v0\nv_and_b32 v1, 63, v0")
    A(f"s_and_b32 s{sX8}, s2, 7\ns_lshr_b32 s{sJJ}, s2, 3")
    A(f"v_readfirstlane_b32 s{sW}, v2")
    A(f"v_and_b32 v6, 15, v1\nv_cmp_eq_u32 vcc, {(F_DONE + 4 - L_FLAG) // 4}, v6\nv_lshlrev_b32 v6, 2, v6\nv_mov_b32 v7, 0")
    A(f"v_cndmask_b32 v5, 0, 1, vcc\nds_write_b32 v6, v5 offset:{L_FLAG}")
    A(f"s_mul_i32 s{sCB}, s{sX8}, 3\ns_lshr_b32 s{sT0}, s{sJJ}, 3\ns_add_u32 s{sCB}, s{sCB}, s{sT0}\ns_and_b32 s{sSUB}, s{sJJ}, 7")
    A(f"s_lshr_b32 s{sT0}, s{sX8}, 1\ns_add_u32 s{sT0}, s{sT0}, 24\ns_and_b32 s{sT1}, s{sX8}, 1\ns_lshl_b32 s{sT1}, s{sT1}, 2\ns_add_u32 s{sT1}, s{sT1}, s{sSUB}")
    A(f"s_cmp_ge_u32 s{sJJ}, 24\ns_cselect_b32 s{sCB}, s{sT0}, s{sCB}\ns_cselect_b32 s{sSUB}, s{sT1}, s{sSUB}")
    A(f"s_mov_b32 s{sSELL}, 0x05040100\ns_mov_b32 s{sSELH}, 0x07060302")
    A(f"s_mov_b32 s{sSCALE}, {hex(f2u(128 ** -0.5))}\ns_mov_b32 s{sLOG2E}, {hex(f2u(LOG2E))}\ns_mov_b32 s{sHI}, 0xffff0000")
    if stamps:
        for i in range(1, 8):
            A(f"s_mov_b64 {s2(sST+2*i)}, 0")
    A("v_lshlrev_b32 v4, 4, v1")
    A("v_lshrrev_b32 v2, 3, v1\nv_and_b32 v3, 7, v1\nv_lshlrev_b32 v3, 4, v3")
    A("s_waitcnt lgkmcnt(0)")
    A("s_barrier")
    A(f"s_load_dword s{sTAG}, {s2(sWS)}, {WS_EPOCH}")
    srd(rWS, sWS, hex(WS_SIZE))
    A(f"s_cmp_lg_u32 s{sW}, 0\ns_cbranch_scc1 L_notloader")

    D = win
    first_k = (D - 1) % 8
    vCNT = 24
    cnt = [0]
    DD = [D]
    def ld(line, static=False):
        i = cnt[0]
        if not static or i >= D:
            A(f"s_waitcnt vmcnt({DD[0]-1})")
        A(line)
        if i % 8 == first_k and (not static or i >= D - 1 + 8):
            if DD[0] == D:
                A(f"ds_write_b32 v7, v{vCNT} offset:{F_RDY}\nv_add_u32 v{vCNT}, 1, v{vCNT}")
            else:
                A(f"ds_max_i32 v7, v{vCNT} offset:{F_RDY}\nv_add_u32 v{vCNT}, 1, v{vCNT}")
        cnt[0] += 1
    if lprio:
        A(f"s_setprio {lprio}")
    srd(rA, sWQ, hex(512 * 4096 * 2))
    A(f"s_and_b32 s{sT1}, s{sJJ}, 7\ns_lshl_b32 s{sT2}, s{sX8}, 3\ns_add_u32 s{sT1}, s{sT1}, s{sT2}\ns_lshl_b32 s{sT1}, s{sT1}, 7")
    A(f"s_lshr_b32 s{sT2}, s2, 6\ns_lshl_b32 s{sT2}, s{sT2}, 20\ns_add_u32 s{sT1}, s{sT1}, s{sT2}")
    A(f"v_lshl_add_u32 v5, v2, 17, v3\nv_mov_b32 v{vCNT}, 1")
    for i in range(16):
        A(f"s_mov_b32 m0, {L_P + 1024*i}")
        A(f"s_add_u32 s{sT2}, s{sT1}, {8192*i}")
        ld(f"buffer_load_dwordx4 v5, {s4(rA)}, s{sT2} offen {wflags} lds", True)
    A(f"s_cmp_lt_u32 s{sJJ}, 28\ns_cselect_b32 s{sT3}, {hex(512 * 1792 * 2)}, 0")
    srd(rD, sWD, f"s{sT3}")
    A(f"s_cmp_lt_u32 s{sSUB}, 4\ns_cselect_b32 s{rB}, s{sWG}, s{sWU}\ns_cselect_b32 s{rB+1}, s{sWG+1}, s{sWU+1}")
    A(f"s_mov_b32 s{rB+2}, s{sT3}\ns_mov_b32 s{rB+3}, 0x20000")
    A(f"s_and_b32 s{sT1}, s{sSUB}, 3\ns_mul_i32 s{sT1}, s{sT1}, {128*3584}\ns_lshl_b32 s{sT2}, s{sCB}, 7\ns_add_u32 s{sT1}, s{sT1}, s{sT2}")
    A(f"v_mul_u32_u24 v6, {16*3584}, v2\nv_add_u32 v6, v6, v3")
    L_GU = L_RING + (NSLOT - 1) * 16384
    for i in range(16):
        A(f"s_mov_b32 m0, {L_GU + 1024*i}")
        A(f"s_add_u32 s{sT2}, s{sT1}, {3584*i}")
        ld(f"buffer_load_dwordx4 v6, {s4(rB)}, s{sT2} offen {wflags} lds", True)
    A(f"s_lshl_b32 s{sT1}, s{sCB}, 16\ns_lshl_b32 s{sT2}, s{sSUB}, 7\ns_add_u32 s{sT1}, s{sT1}, s{sT2}")
    A(f"v_lshl_add_u32 v5, v2, 13, v3")
    for i in range(8):
        if i % 4 == 0:
            A(f"s_mov_b32 m0, {L_WD + 1024*i}")
            A(f"s_add_u32 s{sT2}, s{sT1}, {1024*i}")
        ld(f"buffer_load_dwordx4 v5, {s4(rD)}, s{sT2} offen offset:{1024*(i%4)} {wflags} lds", True)
    srd(rA, sWO, hex(4096 * 512 * 2))
    A(f"s_lshl_b32 s{sT1}, s{sX8}, 9\ns_lshr_b32 s{sT2}, s{sJJ}, 4\ns_lshl_b32 s{sT2}, s{sT2}, 6\ns_add_u32 s{sT1}, s{sT1}, s{sT2}")
    A(f"s_and_b32 s{sT2}, s{sJJ}, 12\ns_add_u32 s{sT1}, s{sT1}, s{sT2}\ns_lshl_b32 s{sT1}, s{sT1}, 10")
    A(f"s_and_b32 s{sT2}, s{sJJ}, 3\ns_lshl_b32 s{sT2}, s{sT2}, 8\ns_add_u32 s{sT1}, s{sT1}, s{sT2}")
    A(f"v_lshrrev_b32 v6, 4, v1\nv_lshlrev_b32 v6, 10, v6\nv_and_b32 v25, 15, v1\nv_lshl_add_u32 v6, v25, 4, v6")
    for w in range(4):
        for h in range(4):
            A(f"s_mov_b32 m0, {L_WO + 4096*w + 1024*h}")
            A(f"s_add_u32 s{sT2}, s{sT1}, {(128*h + 16*w)*1024}")
            ld(f"buffer_load_dwordx4 v6, {s4(rA)}, s{sT2} offen {wflags} lds", True)
    assert cnt[0] == 8 * U0 and D + 7 <= 8 * U0
    stamp(1)
    A(f"s_lshl_b32 s{sT0}, s{sX8}, 24\ns_lshl_b32 s{sT1}, s{sJJ}, 19\ns_add_u32 s{sT0}, s{sT0}, s{sT1}")
    A(f"s_add_u32 s{rK}, s{sK}, s{sT0}\ns_addc_u32 s{rK+1}, s{sK+1}, 0\ns_mov_b32 s{rK+2}, 0x80000\ns_mov_b32 s{rK+3}, 0x20000")
    A(f"s_add_u32 s{rV}, s{sV}, s{sT0}\ns_addc_u32 s{rV+1}, s{sV+1}, 0\ns_mov_b32 s{rV+2}, 0x80000\ns_mov_b32 s{rV+3}, 0x20000")
    A("v_lshrrev_b32 v5, 4, v1\nv_lshlrev_b32 v5, 6, v5\nv_xor_b32 v16, v4, v5")
    A("v_and_b32 v5, 16, v1\nv_lshlrev_b32 v5, 1, v5\nv_xor_b32 v20, v4, v5")
    for n in range(1, 4):
        A(f"v_xor_b32 v{16+n}, {16*n}, v16\nv_xor_b32 v{20+n}, {64*n}, v20")
    A(f"s_mov_b32 s{sCNT}, 0\ns_mov_b32 s{sLB}, 0\ns_mov_b32 s{sFL}, 0")
    phases = [(rK, 16, 32), (rV, 20, 64)] if not win2 else [(rK, 16, 32), (rV, 20, 64 - last), (rV, 20, 64)]
    for ph, (r_, vo, until) in enumerate(phases):
        if ph < 2:
            A(f"s_mov_b32 s{sH}, 0")
        else:
            assert (win2 - win) % 8 == 0
            A(f"v_subrev_u32 v{vCNT}, {(win2 - win) // 8}, v{vCNT}")
            DD[0] = win2
        A(f"L_load{ph}:")
        A(f"s_sub_u32 s{sTHR}, s{sCNT}, {NSLOT-1}")
        if ph == 0:
            A(f"s_cmp_lg_u32 s{sTHR}, 0\ns_cbranch_scc1 L_nogup")
            lds_wait(F_GUP, sT2, 1, "gup", sleep=0)
            stamp(2)
            A("L_nogup:")
        lds_wait(F_DONE, sFL, f"s{sTHR}", "free", sleep=0, cached=True, pair=True)
        for k in range(16):
            if k % 4 == 0:
                A(f"s_add_u32 m0, s{sLB}, {L_RING + k*1024}")
            ld(f"buffer_load_dwordx4 v{vo+k%4}, {s4(r_)}, s{sH} offen offset:{1024*(k%4)} {kvflags} lds")
            if k % 4 == 3:
                A(f"s_add_u32 s{sH}, s{sH}, 4096")
        next_slot(1)
        if stamps and smode == 3 and ph < 2:
            A(f"s_cmp_lg_u32 s{sCNT}, {32*ph+15}\ns_cbranch_scc1 L_np{ph}")
            stamp(4 + 2 * ph, 3)
            A(f"L_np{ph}:")
        A(f"s_add_u32 s{sCNT}, s{sCNT}, 1\ns_cmp_lt_u32 s{sCNT}, {until}\ns_cbranch_scc1 L_load{ph}")
        if ph == 0:
            stamp(4, 1); stamp(5, 3)
    rem = DD[0] - 1 - first_k
    while rem >= 0:
        A(f"s_waitcnt vmcnt({rem})\nds_write_b32 v7, v{vCNT} offset:{F_RDY}\nv_add_u32 v{vCNT}, 1, v{vCNT}")
        rem -= 8
    stamp(3)
    if lprio:
        A("s_setprio 0")
    make_tags()
    A("s_branch L_tail")

    A("L_notloader:")
    srd(rA, sX, 1024)
    A(f"s_cmp_eq_u32 s{sW}, 3\ns_cbranch_scc1 L_help")
    A(f"s_sub_u32 s{sC}, s{sW}, 1")
    A(f"s_cmp_eq_u32 s{sW}, 2\ns_cbranch_scc1 L_w2")
    make_tags()
    A("s_branch L_qgather")
    def slice_mv(sKS, lds_base, unit0, after_read=None):
        A(f"v_lshlrev_b32 v6, 5, v2\ns_lshl_b32 s{sT2}, s{sKS}, 8")
        A(f"buffer_load_dwordx4 v[16:19], v4, {s4(rA)}, 0 offen")
        A(f"buffer_load_dwordx4 v[20:23], v6, {s4(rA)}, s{sT2} offen")
        A(f"buffer_load_dwordx4 v[24:27], v6, {s4(rA)}, s{sT2} offen offset:16")
        make_tags()
        A("s_waitcnt vmcnt(0)")
        stamp(4, 2)
        ln_stats(16, 28, 29, 32)
        ln_apply(20, 28, 29, 32); ln_apply(24, 28, 29, 32)
        stamp(5, 2)
        A(f"v_add_u32 v6, {lds_base}, v4")
        for half in range(2):
            lds_wait(F_RDY, sFL, unit0 + half + 1, "wsl", sleep=1)
            for i in range(8):
                A(f"ds_read_b128 {v4(64+4*i)}, v6 offset:{8192*half + 1024*i}")
            lgkm(0)
            if half == 1:
                stamp(6, 2)
                if after_read:
                    after_read()
            matvec8(64, [f"v{20+4*half+k}" for k in range(4)], 32, 40, first=(half == 0))
        reduce8(32)
        embed(32, 32, TX2); embed(33, 33, TX2 + 1)
        A(f"v_lshrrev_b32 v6, 4, v1\nv_lshlrev_b32 v6, 6, v6\nv_lshrrev_b32 v5, 1, v3\nv_add_u32 v6, v6, v5")
    A("L_w2:")
    A(f"s_lshr_b32 s{sT3}, s2, 6")
    slice_mv(sT3, L_P, 0)
    A(f"s_lshl_b32 s{sT1}, s{sX8}, 13\ns_lshl_b32 s{sT2}, s{sT3}, 11\ns_add_u32 s{sT1}, s{sT1}, s{sT2}")
    A(f"s_and_b32 s{sT2}, s{sJJ}, 7\ns_lshl_b32 s{sT2}, s{sT2}, 8\ns_add_u32 s{sT1}, s{sT1}, s{sT2}\ns_add_u32 s{sT1}, s{sT1}, {WS_QX}")
    A("s_mov_b32 exec_lo, 0x00ff00ff\ns_mov_b32 exec_hi, 0x00ff00ff")
    A(f"buffer_store_dwordx2 v[32:33], v6, {s4(rWS)}, s{sT1} offen {qflags}")
    A("s_mov_b64 exec, -1")
    stamp(1)
    A("L_qgather:")
    A(f"s_lshl_b32 s{sH}, s{sX8}, 13\ns_lshl_b32 s{sT2}, s{sC}, 10\ns_add_u32 s{sH}, s{sH}, s{sT2}\ns_add_u32 s{sH}, s{sH}, {WS_QX}")
    A(f"s_add_u32 s{sH+1}, s{sH}, 4096")
    lds_wait(F_RDY, sFL, qgate, "qgate", sleep=2)
    poll([f"buffer_load_dwordx4 {v4(32+4*k)}, v4, {s4(rWS)}, s{sH+k//2} offen offset:{2048*(k%2)} sc1" for k in range(4)],
         chk4([32, 36, 40, 44]), "qpoll", sleep=qsleep)
    for e in range(4):
        A(f"v_add_f32 v{32+e}, v{32+e}, v{36+e}\nv_add_f32 v{40+e}, v{40+e}, v{44+e}")
    for e in range(4):
        A(f"v_add_f32 v{32+e}, v{32+e}, v{40+e}")
    A("v_cvt_pk_bf16_f32 v32, v32, v33\nv_cvt_pk_bf16_f32 v33, v34, v35")
    A(f"v_lshrrev_b32 v6, 4, v1\nv_lshlrev_b32 v6, 7, v6\nv_and_b32 v5, 3, v1\nv_lshl_add_u32 v6, v5, 5, v6")
    A(f"v_and_b32 v5, 12, v1\nv_add_u32 v6, v6, v5\ns_lshl_b32 s{sT2}, s{sC}, 9\nv_add_u32 v6, s{sT2}, v6")
    A(f"ds_write_b32 v6, v32 offset:{L_Q}\nds_write_b32 v6, v33 offset:{L_Q+16}")
    vOWN, vOTH = 30, 31
    A(f"s_lshl_b32 s{sT2}, s{sC}, 2\nv_mov_b32 v{vOWN}, s{sT2}\nv_xor_b32 v{vOTH}, 4, v{vOWN}")
    lds_flag(F_QH, vaddr=vOWN)
    vQV, vKT, vS, vT, vMAX, vAD, vKA, vPA, vDN = 32, 96, 160, 164, 172, 176, 184, 188, 189
    A("v_and_b32 v5, 3, v1\nv_lshlrev_b32 v5, 10, v5\nv_bfe_u32 v6, v1, 2, 2\nv_lshl_add_u32 v5, v6, 8, v5")
    A(f"v_lshrrev_b32 v6, 4, v1\nv_xor_b32 v6, v6, v1\nv_and_b32 v6, 15, v6\nv_lshl_add_u32 v{vKA}, v6, 4, v5")
    for n in range(1, 4):
        A(f"v_xor_b32 v{vKA+n}, {64*n}, v{vKA}")
    A(f"v_and_b32 v5, 3, v1\nv_lshlrev_b32 v5, 6, v5\nv_lshrrev_b32 v6, 4, v1\nv_lshl_add_u32 v5, v6, 4, v5")
    A(f"v_mov_b32 v29, v5")
    A(f"v_and_b32 v6, 8, v1\nv_lshl_add_u32 v5, v6, 5, v5\nv_and_b32 v6, 4, v1\nv_lshl_add_u32 v5, v6, 1, v5")
    A(f"s_lshl_b32 s{sT2}, s{sC}, 9\nv_add_u32 v{vPA}, s{sT2}, v5")
    A(f"v_mov_b32 v{vMAX}, {hex(f2u(-3e38))}")
    A(f"s_add_u32 s{sT2}, s{sC}, 2\nv_mov_b32 v{vDN}, s{sT2}")
    A("v_and_b32 v6, 3, v1\nv_lshlrev_b32 v6, 8, v6\nv_lshrrev_b32 v5, 4, v1\nv_lshl_add_u32 v6, v5, 4, v6")
    lds_wait(F_QH, sT0, 1, "qh", sleep=1, vaddr=vOTH)
    stamp(2)
    for s in range(4):
        A(f"ds_read_b128 {v4(vKT+4*s)}, v6 offset:{L_Q + 64*s}")
    lgkm(0)
    for b in range(4):
        A(f"s_mov_b32 vcc_lo, {hex(0x000f000f << (4*b))}\ns_mov_b32 vcc_hi, {hex(0x000f000f << (4*b))}")
        for i in range(16):
            A(f"v_cndmask_b32 v{vQV+16*b+i}, 0, v{vKT+i}, vcc")
    A(f"s_lshl_b32 s{sLB}, s{sC}, 14\ns_lshl_b32 s{sTHR}, s{sC}, 1\ns_add_u32 s{sTHR}, s{sTHR}, {U0+2}")
    A(f"s_mov_b32 s{sCNT}, 0")
    A("L_p1:")
    for n in range(4):
        A(f"v_add_u32 v{vAD+n}, s{sLB}, v{vKA+n}")
    lds_wait(F_RDY, sFL, f"s{sTHR}", "krdy", sleep=csleep, cached=True)
    for b in range(4):
        for n in range(4):
            A(f"ds_read_b128 {v4(vKT+16*b+4*n)}, v{vAD+n} offset:{L_RING + 4096*b}")
    for b in range(4):
        lgkm(12 - 4 * b)
        if b == 3:
            A(f"ds_write_b32 v{vOWN}, v{vDN} offset:{F_DONE}")
        for n in range(4):
            c = "0" if b + n == 0 else v4(vS)
            A(f"v_mfma_f32_16x16x32_bf16 {v4(vS)}, {v4(vKT+16*b+4*n)}, {v4(vQV+16*b+4*n)}, {c}")
    A(f"v_add_u32 v{vDN}, 2, v{vDN}\nv_min_u32 v{vDN}, 32, v{vDN}")
    next_slot(2)
    A(f"s_add_u32 s{sTHR}, s{sTHR}, 4\ns_add_u32 s{sCNT}, s{sCNT}, 1\ns_nop 1")
    A(f"v_cvt_pk_bf16_f32 v{vT}, v{vS}, v{vS+1}\nv_cvt_pk_bf16_f32 v{vT+1}, v{vS+2}, v{vS+3}")
    A(f"v_max3_f32 v{vMAX}, v{vMAX}, v{vS}, v{vS+1}\nv_max3_f32 v{vMAX}, v{vMAX}, v{vS+2}, v{vS+3}")
    for j in range(2):
        A(f"v_lshlrev_b32 v{vT+2+2*j}, 16, v{vT+j}\nv_and_b32 v{vT+3+2*j}, s{sHI}, v{vT+j}")
    for i in range(4):
        A(f"v_mul_f32 v{vT+2+i}, s{sSCALE}, v{vT+2+i}")
    A(f"v_cvt_pk_bf16_f32 v{vT}, v{vT+2}, v{vT+3}\nv_cvt_pk_bf16_f32 v{vT+1}, v{vT+4}, v{vT+5}")
    A(f"ds_write_b64 v{vPA}, {v2(vT)} offset:{L_P}\nv_add_u32 v{vPA}, 1024, v{vPA}")
    A(f"s_cmp_lt_u32 s{sCNT}, 16\ns_cbranch_scc1 L_p1")
    stamp(4, 1)
    wave_red(vMAX, vX0, "v_max_f32", (8, 4))
    A(f"v_and_b32 v5, 3, v1\nv_lshlrev_b32 v5, 2, v5\nv_lshl_add_u32 v6, v{vOWN}, 2, v5\nv_xor_b32 v5, 16, v6")
    A(f"ds_write_b32 v6, v{vMAX} offset:{L_MX}")
    lds_flag(F_MX, vaddr=vOWN)
    A(f"v_subrev_u32 v{vPA}, 16384, v{vPA}")
    lds_wait(F_MX, sT0, 1, "mx", sleep=0, vaddr=vOTH)
    A(f"ds_read_b32 v{vX1}, v5 offset:{L_MX}")
    for i in range(16):
        A(f"ds_read_b64 {v2(32+2*i)}, v{vPA} offset:{L_P + 1024*i}")
    lgkm(0)
    vMN, vLSUM = 173, 174
    A(f"v_max_f32 v{vMAX}, v{vMAX}, v{vX1}")
    rnd_bf16(vMAX)
    A(f"v_mul_f32 v{vMAX}, s{sSCALE}, v{vMAX}")
    rnd_bf16(vMAX)
    A(f"v_mul_f32 v{vMN}, s{sLOG2E}, v{vMAX}\nv_mov_b32 v{vLSUM}, 0")
    for i in range(0, 16, 2):
        E = 96
        for j in range(4):
            A(f"v_lshlrev_b32 v{E+2*j}, 16, v{32+2*i+j}\nv_and_b32 v{E+2*j+1}, s{sHI}, v{32+2*i+j}")
        for j in range(8):
            A(f"v_fma_f32 v{E+j}, v{E+j}, s{sLOG2E}, -v{vMN}")
        for j in range(8):
            A(f"v_exp_f32 v{E+j}, v{E+j}")
        A("s_nop 0")
        for j in range(4):
            A(f"v_cvt_pk_bf16_f32 v{32+2*i+j}, v{E+2*j}, v{E+2*j+1}")
        A(f"ds_write_b64 v{vPA}, {v2(32+2*i)} offset:{L_P + 1024*i}\nds_write_b64 v{vPA}, {v2(34+2*i)} offset:{L_P + 1024*(i+1)}")
        for j in range(4):
            A(f"v_add_f32 v{E+j}, v{E+j}, v{E+4+j}")
        A(f"v_add_f32 v{E}, v{E}, v{E+1}\nv_add_f32 v{E+2}, v{E+2}, v{E+3}\nv_add_f32 v{vLSUM}, v{vLSUM}, v{E}\nv_add_f32 v{vLSUM}, v{vLSUM}, v{E+2}")
    wave_red(vLSUM, vX0, "v_add_f32", (8, 4))
    A(f"v_lshlrev_b32 v6, 1, v6\nv_mov_b32 v{vLSUM+1}, v{vMN}\nds_write_b64 v6, {v2(vLSUM)} offset:{L_LS}")
    lds_flag(F_PD, vaddr=vOWN)
    vO, vVF, vPF, vVA = 32, 48, 80, 184
    A("v_and_b32 v5, 12, v1\nv_lshrrev_b32 v6, 4, v1\nv_add_u32 v6, v6, v5\nv_lshlrev_b32 v6, 8, v6")
    A(f"v_lshrrev_b32 v{vX1}, 3, v1\nv_and_b32 v{vX1}, 2, v{vX1}\nv_or_b32 v5, v5, v{vX1}")
    A(f"v_bfe_u32 v{vX1}, v1, 1, 1\nv_xor_b32 v5, v5, v{vX1}\ns_lshl_b32 s{sT2}, s{sC}, 3\nv_xor_b32 v5, s{sT2}, v5")
    A(f"v_lshl_add_u32 v6, v5, 4, v6\nv_and_b32 v5, 1, v1\nv_lshl_add_u32 v{vVA}, v5, 3, v6")
    for n in range(1, 4):
        A(f"v_xor_b32 v{vVA+n}, {32*n}, v{vVA}")
    for i in range(16):
        A(f"v_mov_b32 v{vO+i}, 0")
    A(f"v_mov_b32 v{vDN}, 33\nv_mov_b32 v{vPA}, v29")
    A(f"s_mov_b32 s{sLB}, {(32 % NSLOT) * 16384}\ns_mov_b32 s{sTHR}, {U0+64+1}\ns_mov_b32 s{sCNT}, 0")
    lds_wait(F_PD, sT0, 1, "pd", sleep=0, vaddr=vOTH)
    stamp(5, 1)
    vSC = 28
    A("L_p2:")
    for n in range(4):
        A(f"v_add_u32 v{vAD+n}, s{sLB}, v{vVA+n}")
    A(f"s_cmp_lg_u32 s{sCNT}, 31\ns_cbranch_scc1 L_nosc")
    lds_wait(F_SC, sT3, 1, "sc", sleep=1)
    A(f"v_and_b32 v5, 3, v1\nv_lshlrev_b32 v5, 2, v5\nds_read_b32 v{vSC}, v5 offset:{L_SC}")
    A("L_nosc:")
    for ks in range(2):
        lds_wait(F_RDY, sFL, f"s{sTHR}", "vrdy", sleep=csleep, cached=True)
        A(f"ds_read_b128 {v4(vPF+4*ks)}, v{vPA} offset:{L_P + 256*ks}")
        for T in range(4):
            for ih in range(2):
                A(f"ds_read_b64_tr_b16 {v2(vVF+16*ks+4*T+2*ih)}, v{vAD+T} offset:{L_RING + 8192*ks + 4096*ih}")
        A(f"s_add_u32 s{sTHR}, s{sTHR}, 1")
        for T in range(4):
            lgkm(6 - 2 * T)
            if ks == 1 and T == 3:
                A(f"ds_write_b32 v{vOWN}, v{vDN} offset:{F_DONE}")
            A(f"v_mfma_f32_16x16x32_bf16 {v4(vO+4*T)}, {v4(vVF+16*ks+4*T)}, {v4(vPF+4*ks)}, {v4(vO+4*T)}")
    A(f"v_add_u32 v{vDN}, 1, v{vDN}\nv_add_u32 v{vPA}, 512, v{vPA}")
    next_slot(1)
    A(f"s_add_u32 s{sCNT}, s{sCNT}, 1\ns_cmp_lt_u32 s{sCNT}, 32\ns_cbranch_scc1 L_p2")
    stamp(3)
    A(f"v_lshrrev_b32 v6, 2, v1\nv_lshlrev_b32 v6, 11, v6\nv_and_b32 v5, 3, v1\nv_lshl_add_u32 v6, v5, 4, v6")
    A(f"s_mov_b32 vcc_lo, 0xf0f0f0f0\ns_mov_b32 vcc_hi, 0xf0f0f0f0\ns_mov_b32 s{sM}, 0xff00ff00\ns_mov_b32 s{sM+1}, 0xff00ff00")
    for r in range(4):
        A(f"v_cndmask_b32 v{vO+r}, v{vO+r}, v{vO+4+r}, vcc")
    for r in range(4):
        A(f"v_cndmask_b32 v{vO+8+r}, v{vO+8+r}, v{vO+12+r}, vcc")
    A(f"s_lshl_b32 s{sT1}, s{sX8}, 16\ns_lshl_b32 s{sT2}, s{sC}, 15\ns_add_u32 s{sT1}, s{sT1}, s{sT2}")
    A(f"s_lshl_b32 s{sT2}, s{sJJ}, 6\ns_add_u32 s{sT1}, s{sT1}, s{sT2}\ns_add_u32 s{sT1}, s{sT1}, {WS_H1}")
    for r in range(4):
        A(f"v_cndmask_b32 v{vO+r}, v{vO+r}, v{vO+8+r}, {s2(sM)}")
    for r in range(4):
        A(f"v_mul_f32 v{vO+r}, v{vO+r}, v{vSC}")
    for r in range(4):
        embed(vO + r, vO + r, TX4 + r)
    A(f"s_cmp_eq_u32 s{sT3}, 2\ns_cbranch_scc0 L_h1far")
    A(f"buffer_store_dwordx4 {v4(vO)}, v6, {s4(rWS)}, s{sT1} offen")
    A("s_branch L_tail")
    A("L_h1far:")
    A(f"buffer_store_dwordx4 {v4(vO)}, v6, {s4(rWS)}, s{sT1} offen sc1")
    A("s_branch L_tail")

    A("L_help:")
    vG, vXP = 56, 58
    A(f"s_cmp_ge_u32 s{sJJ}, 28\ns_cbranch_scc1 L_h3f")
    A(f"s_and_b32 s{sT3}, s{sSUB}, 3")
    slice_mv(sT3, L_GU, 2, after_read=lambda: lds_flag(F_GUP))
    A(f"s_lshl_b32 s{sT0}, s{sCB}, 11\ns_add_u32 s{sT0}, s{sT0}, {WS_G1}\ns_lshl_b32 s{sT1}, s{sSUB}, 8\ns_add_u32 s{sT1}, s{sT1}, s{sT0}")
    if skip & 4: A("s_branch L_hstat")
    A("s_mov_b32 exec_lo, 0x00ff00ff\ns_mov_b32 exec_hi, 0x00ff00ff")
    A(f"buffer_store_dwordx2 v[32:33], v6, {s4(rWS)}, s{sT1} offen {gflags}")
    A("s_mov_b64 exec, -1")
    stamp(1)
    lds_wait(F_RDY, sFL, g2gate, "g2gate", sleep=16)
    for i in range(8):
        A(f"ds_read_b128 {v4(64+4*i)}, v4 offset:{L_WD + 1024*i}")
    poll([f"buffer_load_dwordx4 {v4(32+4*i)}, v4, {s4(rWS)}, s{sT0} offen offset:{1024*i} sc1" for i in range(2)],
         chk4([32, 36]), "g1poll", sleep=32)
    for e in range(8):
        swap_red(32 + e, vX0, "v_add_f32")
        rnd_bf16(32 + e)
    for e in range(4):
        sigmoid(32 + e, 32 + e)
        rnd_bf16(32 + e)
        A(f"v_mul_f32 v{32+e}, v{32+e}, v{36+e}")
    A("v_cvt_pk_bf16_f32 v32, v32, v33\nv_cvt_pk_bf16_f32 v33, v34, v35")
    A("v_and_b32 v5, 3, v1\nv_lshlrev_b32 v5, 5, v5\nv_and_b32 v6, 12, v1\nv_add_u32 v5, v5, v6\nv_lshlrev_b32 v6, 4, v2")
    A(f"ds_write_b32 v5, v32 offset:{L_HB}\nds_write_b32 v5, v33 offset:{L_HB+16}\nds_read_b128 v[20:23], v6 offset:{L_HB}")
    lgkm(0)
    matvec8(64, [f"v{20+k}" for k in range(4)], 32, 40)
    reduce8(32)
    A(f"v_lshrrev_b32 v6, 4, v1\nv_lshlrev_b32 v6, 3, v6\nv_lshl_add_u32 v6, v3, 1, v6\nv_lshlrev_b32 v5, 2, v1")
    A(f"ds_write_b64 v6, v[32:33] offset:{L_HB}\nds_read_b32 v32, v5 offset:{L_HB}")
    A(f"v_and_b32 v5, 7, v1\nv_lshlrev_b32 v5, 2, v5\nv_lshrrev_b32 v33, v5, s{sTAG}\nv_and_b32 v33, 15, v33")
    A(f"v_lshrrev_b32 v6, 4, v1\nv_lshlrev_b32 v6, 11, v6\nv_and_b32 v5, 15, v1\nv_lshl_add_u32 v6, v5, 2, v6")
    A(f"s_lshl_b32 s{sT1}, s{sSUB}, 13\ns_lshl_b32 s{sT2}, s{sCB}, 6\ns_add_u32 s{sT1}, s{sT1}, s{sT2}\ns_add_u32 s{sT1}, s{sT1}, {WS_GL}")
    lgkm(0)
    embed(32, 32, 33)
    if not skip & 1:
        A(f"buffer_store_dword v32, v6, {s4(rWS)}, s{sT1} offen sc1")
    A("s_branch L_hstat")
    A("L_h3f:")
    make_tags()
    lds_flag(F_GUP)
    if skip & 2: A("s_branch L_hstat")
    lds_wait(F_RDY, sFL, g3gate, "g3gate", sleep=16)
    A(f"s_lshl_b32 s{sT0}, s{sX8}, 2\ns_add_u32 s{sT0}, s{sT0}, s{sJJ}\ns_sub_u32 s{sT0}, s{sT0}, 28")
    A(f"v_and_b32 v6, 3, v1\nv_lshlrev_b32 v6, 3, v6\nv_lshrrev_b32 v5, 5, v1\nv_lshl_add_u32 v6, v5, 2, v6\ns_lshl_b32 s{sT1}, s{sT0}, 5")
    A(f"buffer_load_dword v{vXP}, v6, {s4(rA)}, s{sT1} offen")
    A(f"s_lshl_b32 s{sH}, s{sT0}, 11\ns_add_u32 s{sH}, s{sH}, {WS_GL}")
    A(f"v_min_u32 v6, 47, v1\nv_and_b32 v6, 60, v6\nv_and_b32 v5, 3, v1\nv_or_b32 v6, v6, v5\nv_lshlrev_b32 v6, 4, v6")
    poll([f"buffer_load_dwordx4 v[64:67], v4, {s4(rWS)}, s{sH} offen sc1",
          f"buffer_load_dwordx4 v[68:71], v6, {s4(rWS)}, s{sH} offen offset:1024 sc1"], chk4([64, 68]), "gpoll", sleep=64)
    A("s_mov_b32 exec_hi, 0xffff")
    for e in range(4):
        A(f"v_add_f32 v{64+e}, v{64+e}, v{68+e}")
    A("s_mov_b64 exec, -1")
    red4(64)
    for e in range(2):
        rnd_bf16(64 + e)
        sigmoid(68, 64 + e)
        A(f"v_mul_f32 v{vG+e}, v{64+e}, v68")
        rnd_bf16(vG + e)
    A("L_hstat:")
    stamp(2)
    lds_wait(F_PD, sT0, 1, "pdh", sleep=16, pair=True)
    A(f"s_getreg_b32 s{sT3}, hwreg(HW_REG_XCC_ID, 0, 4)\ns_xor_b32 s{sT3}, s{sT3}, s{sTAG}")
    A(f"v_and_b32 v5, 3, v1\nv_lshlrev_b32 v5, 3, v5")
    A(f"ds_read_b64 v[32:33], v5 offset:{L_LS}\nds_read_b32 v34, v5 offset:{L_LS+32}")
    lgkm(0)
    A(f"v_add_f32 v32, v32, v34\nv_log_f32 v32, v32\nv_mov_b32 v35, s{sT3}\nv_add_f32 v34, v32, v33")
    A(f"s_lshl_b32 s{sT0}, s{sX8}, 10\ns_add_u32 s{sT0}, s{sT0}, {WS_LS}\ns_lshl_b32 s{sT1}, s{sJJ}, 5\ns_add_u32 s{sT1}, s{sT1}, s{sT0}")
    A("s_mov_b64 exec, 15")
    A(f"buffer_store_dwordx2 v[34:35], v5, {s4(rWS)}, s{sT1} offen sc1")
    A("s_mov_b64 exec, -1")
    lds_wait(F_RDY, sFL, lsgate, "lsgate", sleep=16)
    A(f"v_lshlrev_b32 v6, 3, v1")
    poll([f"buffer_load_dwordx2 {v2(36+2*i)}, v6, {s4(rWS)}, s{sT0} offen offset:{512*i} sc1" for i in range(2)],
         [(37, f"s{sT3}"), (39, f"s{sT3}")], "lspoll", sleep=16, full=True)
    A(f"v_cmp_ne_u32 vcc, 0, v{vX0}\ns_nop 4\ns_cmp_eq_u64 vcc, 0\ns_cselect_b32 s{sT3}, 2, 1")
    if force:
        A(f"s_mov_b32 s{sT3}, {force}")
    A("v_max_f32 v40, v36, v38")
    wave_red(40, vX0, "v_max_f32", (8, 4))
    A("v_sub_f32 v36, v36, v40\nv_sub_f32 v38, v38, v40\nv_exp_f32 v36, v36\nv_exp_f32 v38, v38\nv_sub_f32 v33, v33, v40\nv_add_f32 v36, v36, v38")
    wave_red(36, vX0, "v_add_f32", (8, 4))
    A("v_exp_f32 v33, v33\nv_rcp_f32 v36, v36\nv_lshrrev_b32 v5, 1, v5\nv_mul_f32 v33, v33, v36")
    A(f"ds_write_b32 v5, v33 offset:{L_SC}")
    lds_flag(F_SC, val=f"s{sT3}")
    stamp(3)
    lds_wait(F_RDY, sFL, U0 + 128, "endgate", sleep=1)

    A("L_tail:")
    stamp(4, 0)
    A(f"s_lshl_b32 s{sT2}, s{sW}, 12\nv_lshl_add_u32 v6, v1, 2, s{sT2}")
    for n in range(16):
        A(f"ds_read_b32 v{64+n}, v6 offset:{L_WO + 256*n}")
    A(f"s_lshl_b32 s{sT1}, s{sX8}, 16\ns_and_b32 s{sT2}, s{sJJ}, 28\ns_add_u32 s{sT2}, s{sT2}, s{sW}\ns_lshl_b32 s{sT2}, s{sT2}, 11")
    A(f"s_add_u32 s{sT1}, s{sT1}, s{sT2}\ns_add_u32 s{sT1}, s{sT1}, {WS_H1}")
    A(f"v_lshlrev_b32 v53, 3, v0\nv_lshlrev_b32 v54, 3, v1")
    A(f"v_lshrrev_b32 v5, 1, v3\nv_lshl_add_u32 v6, v2, 12, v5")
    lgkm(0)
    for u in range(8):
        A(f"v_perm_b32 v{80+2*u}, v{65+2*u}, v{64+2*u}, s{sSELL}\nv_perm_b32 v{81+2*u}, v{65+2*u}, v{64+2*u}, s{sSELH}")
    poll([f"buffer_load_dwordx4 {v4(40+4*i)}, v4, {s4(rWS)}, s{sT1} offen offset:{1024*i} sc1" for i in range(2)],
         chk4([40, 44]), "h1poll", sleep=h1sleep)
    stamp(5, 0)
    for e in range(4):
        A(f"v_add_f32 v{40+e}, v{40+e}, v{44+e}")
    red4(40)
    A(f"v_cvt_pk_bf16_f32 v40, v40, v41\ns_nop 0")
    for u in range(8):
        A(f"v_readlane_b32 s{sH+u}, v40, {32*(u&1) + (u>>1)}")
    for u in range(8):
        for z in range(2):
            c = "0" if u == 0 else f"v{48+z}"
            A(f"v_dot2_f32_bf16 v{48+z}, s{sH+u}, v{80+2*u+z}, {c}")
    A("s_nop 2")
    A(f"ds_write_b64 v53, v[48:49] offset:{L_RED}")
    A("s_waitcnt lgkmcnt(0)\ns_barrier")
    A(f"s_cmp_lg_u32 s{sW}, 0\ns_cbranch_scc1 L_t3")
    for p in range(3):
        A(f"ds_read_b64 {v2(42+2*p)}, v54 offset:{L_RED + 512*(p+1)}")
    A(f"s_and_b32 s{sT1}, s{sJJ}, 3\ns_lshl_b32 s{sT1}, s{sT1}, 15\ns_lshl_b32 s{sT2}, s{sX8}, 9\ns_add_u32 s{sT1}, s{sT1}, s{sT2}")
    A(f"s_lshr_b32 s{sT2}, s{sJJ}, 2\ns_lshl_b32 s{sT2}, s{sT2}, 6\ns_add_u32 s{sT1}, s{sT1}, s{sT2}\ns_add_u32 s{sT1}, s{sT1}, {WS_H2}")
    lgkm(0)
    A("v_add_f32 v48, v48, v42\nv_add_f32 v49, v49, v43\nv_add_f32 v44, v44, v46\nv_add_f32 v45, v45, v47\nv_add_f32 v48, v48, v44\nv_add_f32 v49, v49, v45")
    embed(48, 48, TX2); embed(49, 49, TX2 + 1)
    A(f"buffer_store_dwordx2 v[48:49], v6, {s4(rWS)}, s{sT1} offen sc1")
    A("s_branch L_fin")
    A("L_t3:")
    A(f"s_cmp_lg_u32 s{sW}, 3\ns_cbranch_scc1 L_fin")
    A(f"s_cmp_lt_u32 s{sJJ}, 28\ns_cbranch_scc1 L_fin")
    A(f"s_lshl_b32 s{sT0}, s{sX8}, 2\ns_add_u32 s{sT0}, s{sT0}, s{sJJ}\ns_sub_u32 s{sT0}, s{sT0}, 28")
    A(f"s_lshl_b32 s{sT1}, s{sT0}, 12\ns_add_u32 s{sT1}, s{sT1}, {WS_H2}")
    A(f"v_and_b32 v5, 3, v1\nv_lshlrev_b32 v5, 1, v5\nv_lshrrev_b32 v6, 5, v1\nv_add_u32 v5, v5, v6\nv_lshlrev_b32 v52, 2, v5")
    A(f"v_lshlrev_b32 v50, 16, v{vXP}\nv_and_b32 v51, s{sHI}, v{vXP}")
    srd(rA, sOUT, 1024)
    poll([f"buffer_load_dwordx4 {v4(64+4*i)}, v4, {s4(rWS)}, s{sT1} offen offset:{1024*i} sc1" for i in range(4)],
         chk4([64, 68, 72, 76]), "h2poll", sleep=h2sleep)
    stamp(6, 0)
    for e in range(4):
        A(f"v_add_f32 v{64+e}, v{64+e}, v{68+e}\nv_add_f32 v{72+e}, v{72+e}, v{76+e}")
    for e in range(4):
        A(f"v_add_f32 v{64+e}, v{64+e}, v{72+e}")
    red4(64)
    A(f"s_lshl_b32 s{sT1}, s{sT0}, 5")
    A(f"v_cvt_pk_bf16_f32 v64, v64, v65\nv_and_b32 v65, s{sHI}, v64\nv_lshlrev_b32 v64, 16, v64")
    A(f"v_mul_f32 v64, v64, v{vG}\nv_mul_f32 v65, v65, v{vG+1}")
    A(f"v_cvt_pk_bf16_f32 v64, v64, v65\nv_and_b32 v65, s{sHI}, v64\nv_lshlrev_b32 v64, 16, v64")
    A("v_add_f32 v64, v64, v50\nv_add_f32 v65, v65, v51\nv_cvt_pk_bf16_f32 v64, v64, v65")
    A("s_mov_b32 exec_lo, 15\ns_mov_b32 exec_hi, 15")
    A(f"buffer_store_dword v64, v52, {s4(rA)}, s{sT1} offen sc1")
    A(f"s_cmp_lg_u32 s{sT0}, 0\ns_cbranch_scc1 L_fin")
    A(f"s_mov_b64 exec, 1\nv_mov_b32 v65, s{sTAG}")
    A(f"buffer_store_dword v65, v7, {s4(rWS)}, 0 offen offset:{WS_EPOCH} sc1")
    A("L_fin:")
    if stamps:
        A("s_mov_b64 exec, -1")
        A("s_waitcnt vmcnt(0)")
        stamp(7)
        A("s_waitcnt lgkmcnt(0)")
        if pad is not None:
            A(f"s_cmp_eq_u32 s{sST+2*pad}, 0\ns_cbranch_scc1 L_padout")
            A(f"s_add_u32 s{sT2}, s{sST+2*pad}, 10000")
            A("L_pad:")
            A(f"s_memrealtime {s2(sH)}\ns_waitcnt lgkmcnt(0)\ns_sub_u32 s{sT3}, s{sH}, s{sT2}\ns_cmp_lt_i32 s{sT3}, 0\ns_cbranch_scc1 L_pad")
            A("L_padout:")
        for i in range(8):
            A(f"v_mov_b32 v{96+i}, s{sST+2*i}")
        A(f"s_lshl_b32 s{sT1}, s2, 2\ns_add_u32 s{sT1}, s{sT1}, s{sW}\ns_lshl_b32 s{sT1}, s{sT1}, 5\ns_add_u32 s{sT1}, s{sT1}, {WS_STAMP}")
        A("s_mov_b64 exec, 1")
        A(f"buffer_store_dwordx4 v[96:99], v7, {s4(rWS)}, s{sT1} offen")
        A(f"buffer_store_dwordx4 v[100:103], v7, {s4(rWS)}, s{sT1} offen offset:16")
    A("L_end:")
    A("s_endpgm")

    out = HEADER
    out += f"; @launch grid=(256,1,1) block=(256,1,1) lds={LDS_BYTES}\n"
    out += '.amdgcn_target "amdgcn-amd-amdhsa--gfx950"\n.text\n'
    out += f".globl {KNAME}_kernel\n.p2align 8\n.type {KNAME}_kernel,@function\n"
    out += "\n".join(A.L) + "\n"
    out += f""".section .rodata,"a"
.p2align 6
.amdhsa_kernel {KNAME}_kernel
  .amdhsa_next_free_vgpr 192
  .amdhsa_next_free_sgpr 102
  .amdhsa_accum_offset 192
  .amdhsa_group_segment_fixed_size 0
  .amdhsa_kernarg_size 96
  .amdhsa_user_sgpr_count 2
  .amdhsa_user_sgpr_kernarg_segment_ptr 1
  .amdhsa_system_sgpr_workgroup_id_x 1
.end_amdhsa_kernel
"""
    return out


if __name__ == "__main__":
    kw = json.loads(sys.argv[2]) if len(sys.argv) > 2 else {}
    open(sys.argv[1], "w").write(gen(**kw))
```

```python
import sys, json, struct

KNAME = "recurrent_scan__gqa_block_cached__glu_gated_glu__decode"
HEADER = open("cdna_kernels/" + KNAME + ".s.ref").read().split("; Override launch")[0]

def f2u(x):
    return struct.unpack("<I", struct.pack("<f", x))[0]

LOG2E = 1.4426950408889634
WS_EPOCH = 0x0
WS_LS = 0x2000
WS_QX = 0x10000
WS_QXFAR = 0x100000
WS_G1 = 0x20000
WS_GL = 0x30000
WS_H1 = 0x40000
WS_H2 = 0xC0000
WS_STAMP = 0x1000000
WS_SIZE = 0x20000000
L_Q = 0
L_FLAG = 1024
F_RDY = L_FLAG
F_GUP = L_FLAG + 4
F_DONE = L_FLAG + 8
F_QH = L_FLAG + 16
F_XN = L_FLAG + 20
F_MX = L_FLAG + 24
F_PD = L_FLAG + 32
F_SC = L_FLAG + 40
L_MX = 1152
L_LS = 1216
L_SC = 1280
L_HB = 1536
L_RED = 2048
L_XN = L_RED
L_P = 4096
L_WO = 20480
L_WD = 36864
L_RING = 45056
NSLOT = 7
LDS_BYTES = L_RING + NSLOT * 16384
U0 = 7

sFL = 3
sMODE, sLIM, sOSZ = 14, 15, 24
sX, sK, sV, sWQ, sWO, sBX, sWG, sWU, sWD, sOUT, sDBG, sWS = 4, 6, 8, 10, 12, 14, 16, 18, 20, 22, 24, 26
rK, rV, rWS, rA, rB, rC, rD = 28, 32, 36, 40, 44, 48, 52
sW, sX8, sJJ, sCB, sSUB = 56, 57, 58, 59, 60
sC, sTHR, sCNT, sTAG = 61, 62, 63, 64
sSELL, sSELH, sSCALE, sLOG2E, sHI = 65, 66, 67, 68, 69
sT0, sT1, sT2, sT3 = 70, 71, 72, 73
sH = 74
sM = 82
sSPIN = 84
sLB = 85
sST = 86
TX4 = 8; TX2 = 12; vX0 = 14; vX1 = 15
vWO = 16


class G:
    def __init__(self):
        self.L = []
        self.n = 0
    def __call__(self, s):
        for line in s.strip("\n").split("\n"):
            self.L.append("    " + line.strip() if not line.strip().endswith(":") else line.strip())
    def label(self, base):
        self.n += 1
        return f"L_{base}_{self.n}"


def v4(r):
    return f"v[{r}:{r+3}]"
def v2(r):
    return f"v[{r}:{r+1}]"
def s4(r):
    return f"s[{r}:{r+3}]"
def s2(r):
    return f"s[{r}:{r+1}]"


def gen(kvflags="nt", wflags="nt", win=20, stamps=False, pad=None, qsleep=4, qgate=0, g2gate=24, g3gate=48,
        lsgate=100, h1sleep=0, h2sleep=0, csleep=1, lprio=0, smode=0, skip=0, prog=False, win2=0, last=6, force=0, qtry=96, dry=True, outflags='', h2lay=2, h2flags='sc1', h2ld='sc1'):
    A = G()

    def srd(r, base, size):
        A(f"s_mov_b32 s{r}, s{base}\ns_mov_b32 s{r+1}, s{base+1}\ns_mov_b32 s{r+2}, {size}\ns_mov_b32 s{r+3}, 0x20000")

    def stamp(i, mode=None):
        if stamps and (mode is None or mode == smode):
            A(f"s_memrealtime {s2(sST + 2 * i)}")

    def lgkm(n):
        A(f"s_waitcnt lgkmcnt({n})")

    def swap_red(r, t, op, kinds=("16", "32")):
        for k in kinds:
            A(f"v_mov_b32 v{t}, v{r}\ns_nop 1\nv_permlane{k}_swap_b32 v{r}, v{t}\ns_nop 1\n{op} v{r}, v{r}, v{t}")

    def wave_red(r, t, op, rors):
        for k in rors:
            A(f"s_nop 1\n{op} v{r}, v{r}, v{r} row_ror:{k}")
        swap_red(r, t, op)

    def rnd_bf16(r):
        A(f"v_cvt_pk_bf16_f32 v{r}, v{r}, v{r}\nv_and_b32 v{r}, 0xffff0000, v{r}")

    def ln_stats(X, mean, rstd, F):
        D = F + 8
        for k in range(4):
            A(f"v_lshlrev_b32 v{F+2*k}, 16, v{X+k}\nv_and_b32 v{F+2*k+1}, s{sHI}, v{X+k}")
        A(f"v_add_f32 v{mean}, v{F}, v{F+1}")
        for k in range(2, 8):
            A(f"v_add_f32 v{mean}, v{mean}, v{F+k}")
        wave_red(mean, vX0, "v_add_f32", (8, 4, 2, 1))
        A(f"v_mul_f32 v{mean}, {hex(f2u(1/512))}, v{mean}")
        for k in range(8):
            A(f"v_sub_f32 v{D+k}, v{F+k}, v{mean}")
        A(f"v_mul_f32 v{rstd}, v{D}, v{D}")
        for k in range(1, 8):
            A(f"v_fmac_f32 v{rstd}, v{D+k}, v{D+k}")
        wave_red(rstd, vX0, "v_add_f32", (8, 4, 2, 1))
        A(f"v_mul_f32 v{rstd}, {hex(f2u(1/512))}, v{rstd}")
        rnd_bf16(mean); rnd_bf16(rstd)
        A(f"v_add_f32 v{rstd}, {hex(f2u(1e-5))}, v{rstd}")
        rnd_bf16(rstd)
        A(f"v_sqrt_f32 v{rstd}, v{rstd}\ns_nop 0")
        rnd_bf16(rstd)
        A(f"v_rcp_f32 v{rstd}, v{rstd}")

    def ln_apply(X, mean, rstd, D):
        for k in range(4):
            A(f"v_lshlrev_b32 v{D+2*k}, 16, v{X+k}\nv_and_b32 v{D+2*k+1}, s{sHI}, v{X+k}")
        for k in range(8):
            A(f"v_sub_f32 v{D+k}, v{D+k}, v{mean}")
        for k in range(4):
            A(f"v_cvt_pk_bf16_f32 v{X+k}, v{D+2*k}, v{D+2*k+1}")
        for k in range(4):
            A(f"v_lshlrev_b32 v{D+2*k}, 16, v{X+k}\nv_and_b32 v{D+2*k+1}, s{sHI}, v{X+k}")
        for k in range(8):
            A(f"v_mul_f32 v{D+k}, v{D+k}, v{rstd}")
        for k in range(4):
            A(f"v_cvt_pk_bf16_f32 v{X+k}, v{D+2*k}, v{D+2*k+1}")

    def matvec8(W, xs, acc, tmp, first=True):
        for j in range(4):
            for u in range(4):
                A(f"v_perm_b32 v{tmp+2*u}, v{W+(2*j+1)*4+u}, v{W+(2*j)*4+u}, s{sSELL}")
                A(f"v_perm_b32 v{tmp+2*u+1}, v{W+(2*j+1)*4+u}, v{W+(2*j)*4+u}, s{sSELH}")
            for e in range(8):
                c = "0" if (j == 0 and first) else f"v{acc+e}"
                A(f"v_dot2_f32_bf16 v{acc+e}, {xs[j]}, v{tmp+e}, {c}")
        A("s_nop 2")

    def reduce8(acc):
        A("s_nop 1")
        for e in range(4):
            A(f"v_permlane32_swap_b32 v{acc+e}, v{acc+4+e}")
        A("s_nop 1")
        for e in range(4):
            A(f"v_add_f32 v{acc+e}, v{acc+e}, v{acc+4+e}")
        A("s_nop 1")
        for e in range(2):
            A(f"v_permlane16_swap_b32 v{acc+e}, v{acc+2+e}")
        A("s_nop 1")
        for e in range(2):
            A(f"v_add_f32 v{acc+e}, v{acc+e}, v{acc+2+e}")
        A("s_nop 0")
        for e in range(2):
            A(f"v_add_f32 v{acc+e}, v{acc+e}, v{acc+e} row_ror:8")
        A("s_nop 0")

    def red4(a):
        A("s_nop 1")
        A(f"v_permlane32_swap_b32 v{a}, v{a+2}\nv_permlane32_swap_b32 v{a+1}, v{a+3}")
        A("s_nop 0")
        A(f"v_add_f32 v{a}, v{a}, v{a+2}\nv_add_f32 v{a+1}, v{a+1}, v{a+3}")
        for k in (8, 4):
            A("s_nop 0")
            A(f"v_add_f32 v{a}, v{a}, v{a} row_ror:{k}\nv_add_f32 v{a+1}, v{a+1}, v{a+1} row_ror:{k}")
        A(f"v_mov_b32 v{a+2}, v{a}\nv_mov_b32 v{a+3}, v{a+1}\ns_nop 0")
        A(f"v_permlane16_swap_b32 v{a}, v{a+2}\nv_permlane16_swap_b32 v{a+1}, v{a+3}")
        A("s_nop 0")
        A(f"v_add_f32 v{a}, v{a}, v{a+2}\nv_add_f32 v{a+1}, v{a+1}, v{a+3}")

    def lds_wait(addr, sreg, thr, name, sleep=1, vaddr=7, cached=False, pair=False):
        top = A.label(name); done = A.label(name + "_ok")
        if cached:
            A(f"s_cmp_ge_i32 s{sreg}, {thr}\ns_cbranch_scc1 {done}")
        A(f"s_mov_b32 s{sSPIN}, 0")
        A(f"{top}:")
        if pair:
            A(f"ds_read_b64 {v2(vX0)}, v{vaddr} offset:{addr}\ns_waitcnt lgkmcnt(0)\nv_min_i32 v{vX0}, v{vX0}, v{vX1}\ns_nop 0")
        else:
            A(f"ds_read_b32 v{vX0}, v{vaddr} offset:{addr}\ns_waitcnt lgkmcnt(0)")
        A(f"v_readfirstlane_b32 s{sreg}, v{vX0}")
        A(f"s_add_u32 s{sSPIN}, s{sSPIN}, 1")
        A(f"s_cmp_ge_i32 s{sreg}, {thr}\ns_cbranch_scc1 {done}")
        if sleep:
            A(f"s_sleep {sleep}")
        A(f"s_cmp_lt_u32 s{sSPIN}, 0x100000\ns_cbranch_scc1 {top}")
        A(f"{done}:")

    def lds_flag(addr, val=1, vaddr=7):
        A(f"v_mov_b32 v{vX0}, {val}\nds_write_b32 v{vaddr}, v{vX0} offset:{addr}")

    def make_tags():
        A(f"s_waitcnt lgkmcnt(0)\ns_add_u32 s{sTAG}, s{sTAG}, 0x9E3779B1")
        A(f"v_and_b32 v5, 1, v1\nv_lshlrev_b32 v5, 4, v5\nv_lshrrev_b32 v5, v5, s{sTAG}")
        for k in range(4):
            A(f"v_bfe_u32 v{TX4+k}, v5, {4*k}, 4")
        A(f"v_and_b32 v5, 3, v1\nv_lshlrev_b32 v5, 3, v5\nv_lshrrev_b32 v5, v5, s{sTAG}")
        for k in range(2):
            A(f"v_bfe_u32 v{TX2+k}, v5, {4*k}, 4")

    def embed(dst, src, tag):
        A(f"v_and_or_b32 v{dst}, v{src}, -16, v{tag}")

    def poll(loads, checks, name, sleep=0, full=False):
        top = A.label(name); done = A.label(name + "_ok")
        A(f"s_mov_b32 s{sSPIN}, 0")
        A(f"{top}:")
        for l in loads:
            A(l)
        A("s_waitcnt vmcnt(0)")
        A(f"v_xor_b32 v{vX0}, {checks[0][1]}, v{checks[0][0]}")
        for r, t in checks[1:]:
            A(f"v_bitop3_b32 v{vX0}, v{vX0}, v{r}, {t} bitop3:0xf6")
        if not full:
            A(f"v_and_b32 v{vX0}, 15, v{vX0}\nv_cmp_ne_u32 vcc, 0, v{vX0}")
        else:
            A(f"v_cmp_ne_u32 vcc, 0, v{vX0}")
        A(f"s_cbranch_vccz {done}")
        if sleep:
            A(f"s_sleep {sleep}")
        A(f"s_add_u32 s{sSPIN}, s{sSPIN}, 1\ns_cmp_lt_u32 s{sSPIN}, s{sLIM}\ns_cbranch_scc1 {top}")
        A(f"{done}:")

    def store2(line, cond_scc1_near):
        far = A.label("far"); done = A.label("st")
        A(cond_scc1_near)
        A(f"s_cbranch_scc0 {far}\n{line}\ns_branch {done}\n{far}:\n{line} sc1\n{done}:")

    def chk4(regs):
        return [(r + k, f"v{TX4+k}") for r in regs for k in range(4)]

    def next_slot(step):
        A(f"s_add_u32 s{sLB}, s{sLB}, {step*16384}\ns_sub_u32 s{sT0}, s{sLB}, {NSLOT*16384}")
        A(f"s_cmp_ge_u32 s{sLB}, {NSLOT*16384}\ns_cselect_b32 s{sLB}, s{sT0}, s{sLB}")

    def sigmoid(dst, src):
        A(f"v_mul_f32 v{dst}, s{sLOG2E}, v{src}\nv_exp_f32 v{dst}, -v{dst}\ns_nop 0\nv_add_f32 v{dst}, 1.0, v{dst}\nv_rcp_f32 v{dst}, v{dst}\ns_nop 0")

    A(f"{KNAME}_kernel:")
    A("s_cmp_ge_u32 s2, 256\ns_cbranch_scc1 L_end")
    stamp(0)
    A(f"s_load_dwordx16 s[4:19], s[0:1], 0\ns_load_dwordx8 s[20:27], s[0:1], 64")
    A(f"v_lshrrev_b32 v2, 6, v0\nv_and_b32 v1, 63, v0")
    A(f"s_and_b32 s{sX8}, s2, 7\ns_lshr_b32 s{sJJ}, s2, 3")
    A(f"v_readfirstlane_b32 s{sW}, v2")
    A(f"v_and_b32 v6, 15, v1\nv_cmp_eq_u32 vcc, {(F_DONE + 4 - L_FLAG) // 4}, v6\nv_lshlrev_b32 v6, 2, v6\nv_mov_b32 v7, 0")
    A(f"v_cndmask_b32 v5, 0, 1, vcc\nds_write_b32 v6, v5 offset:{L_FLAG}")
    A(f"s_mul_i32 s{sCB}, s{sX8}, 3\ns_lshr_b32 s{sT0}, s{sJJ}, 3\ns_add_u32 s{sCB}, s{sCB}, s{sT0}\ns_and_b32 s{sSUB}, s{sJJ}, 7")
    A(f"s_lshr_b32 s{sT0}, s{sX8}, 1\ns_add_u32 s{sT0}, s{sT0}, 24\ns_and_b32 s{sT1}, s{sX8}, 1\ns_lshl_b32 s{sT1}, s{sT1}, 2\ns_add_u32 s{sT1}, s{sT1}, s{sSUB}")
    A(f"s_cmp_ge_u32 s{sJJ}, 24\ns_cselect_b32 s{sCB}, s{sT0}, s{sCB}\ns_cselect_b32 s{sSUB}, s{sT1}, s{sSUB}")
    A(f"s_mov_b32 s{sSELL}, 0x05040100\ns_mov_b32 s{sSELH}, 0x07060302")
    A(f"s_mov_b32 s{sSCALE}, {hex(f2u(128 ** -0.5))}\ns_mov_b32 s{sLOG2E}, {hex(f2u(LOG2E))}\ns_mov_b32 s{sHI}, 0xffff0000")
    if stamps:
        for i in range(1, 8):
            A(f"s_mov_b64 {s2(sST+2*i)}, 0")
    A("v_lshlrev_b32 v4, 4, v1")
    A("v_lshrrev_b32 v2, 3, v1\nv_and_b32 v3, 7, v1\nv_lshlrev_b32 v3, 4, v3")
    A("s_waitcnt lgkmcnt(0)")
    stamp(4, 5)
    srd(rA, sX, 1024)
    A(f"s_cmp_lg_u32 s{sW}, 2\ns_cbranch_scc1 L_nox")
    A(f"buffer_load_dwordx4 v[16:19], v4, {s4(rA)}, 0 offen")
    A("L_nox:")
    A("s_barrier")
    stamp(5, 5)
    A(f"s_load_dword s{sTAG}, {s2(sWS)}, {WS_EPOCH}")
    A(f"s_mov_b32 s{sLIM}, 0x40000\ns_mov_b32 s{sOSZ}, 1024\ns_mov_b32 s{sMODE}, 1")
    srd(rWS, sWS, hex(WS_SIZE))
    A(f"s_cmp_lg_u32 s{sW}, 0\ns_cbranch_scc1 L_notloader")

    D = win
    first_k = (D - 1) % 8
    vCNT = 24
    cnt = [0]
    DD = [D]
    def ld(line, static=False):
        i = cnt[0]
        if not static or i >= D:
            A(f"s_waitcnt vmcnt({DD[0]-1})")
        if static and i == 0: stamp(4, 4)
        if static and i == D - 1: stamp(5, 4)
        if static and i == D: stamp(6, 4)
        A(line)
        if i % 8 == first_k and (not static or i >= D - 1 + 8):
            if DD[0] == D:
                A(f"ds_write_b32 v7, v{vCNT} offset:{F_RDY}\nv_add_u32 v{vCNT}, 1, v{vCNT}")
            else:
                A(f"ds_max_i32 v7, v{vCNT} offset:{F_RDY}\nv_add_u32 v{vCNT}, 1, v{vCNT}")
        cnt[0] += 1
    if lprio:
        A(f"s_setprio {lprio}")
    srd(rA, sWQ, hex(512 * 4096 * 2))
    A(f"s_and_b32 s{sT1}, s{sJJ}, 7\ns_lshl_b32 s{sT2}, s{sX8}, 3\ns_add_u32 s{sT1}, s{sT1}, s{sT2}\ns_lshl_b32 s{sT1}, s{sT1}, 7")
    A(f"s_lshr_b32 s{sT2}, s2, 6\ns_lshl_b32 s{sT2}, s{sT2}, 20\ns_add_u32 s{sT1}, s{sT1}, s{sT2}")
    A(f"v_lshl_add_u32 v5, v2, 17, v3\nv_mov_b32 v{vCNT}, 1")
    for i in range(16):
        A(f"s_mov_b32 m0, {L_P + 1024*i}")
        A(f"s_add_u32 s{sT2}, s{sT1}, {8192*i}")
        ld(f"buffer_load_dwordx4 v5, {s4(rA)}, s{sT2} offen {wflags} lds", True)
    A(f"s_cmp_lt_u32 s{sJJ}, 28\ns_cselect_b32 s{sT3}, {hex(512 * 1792 * 2)}, 0")
    srd(rD, sWD, f"s{sT3}")
    A(f"s_cmp_lt_u32 s{sSUB}, 4\ns_cselect_b32 s{rB}, s{sWG}, s{sWU}\ns_cselect_b32 s{rB+1}, s{sWG+1}, s{sWU+1}")
    A(f"s_mov_b32 s{rB+2}, s{sT3}\ns_mov_b32 s{rB+3}, 0x20000")
    A(f"s_and_b32 s{sT1}, s{sSUB}, 3\ns_mul_i32 s{sT1}, s{sT1}, {128*3584}\ns_lshl_b32 s{sT2}, s{sCB}, 7\ns_add_u32 s{sT1}, s{sT1}, s{sT2}")
    A(f"v_mul_u32_u24 v6, {16*3584}, v2\nv_add_u32 v6, v6, v3")
    L_GU = L_RING + (NSLOT - 1) * 16384
    for i in range(16):
        A(f"s_mov_b32 m0, {L_GU + 1024*i}")
        A(f"s_add_u32 s{sT2}, s{sT1}, {3584*i}")
        ld(f"buffer_load_dwordx4 v6, {s4(rB)}, s{sT2} offen {wflags} lds", True)
    A(f"s_lshl_b32 s{sT1}, s{sCB}, 16\ns_lshl_b32 s{sT2}, s{sSUB}, 7\ns_add_u32 s{sT1}, s{sT1}, s{sT2}")
    A(f"v_lshl_add_u32 v5, v2, 13, v3")
    for i in range(8):
        if i % 4 == 0:
            A(f"s_mov_b32 m0, {L_WD + 1024*i}")
            A(f"s_add_u32 s{sT2}, s{sT1}, {1024*i}")
        ld(f"buffer_load_dwordx4 v5, {s4(rD)}, s{sT2} offen offset:{1024*(i%4)} {wflags} lds", True)
    srd(rA, sWO, hex(4096 * 512 * 2))
    A(f"s_lshl_b32 s{sT1}, s{sX8}, 9\ns_lshr_b32 s{sT2}, s{sJJ}, 4\ns_lshl_b32 s{sT2}, s{sT2}, 6\ns_add_u32 s{sT1}, s{sT1}, s{sT2}")
    A(f"s_and_b32 s{sT2}, s{sJJ}, 12\ns_add_u32 s{sT1}, s{sT1}, s{sT2}\ns_lshl_b32 s{sT1}, s{sT1}, 10")
    A(f"s_and_b32 s{sT2}, s{sJJ}, 3\ns_lshl_b32 s{sT2}, s{sT2}, 8\ns_add_u32 s{sT1}, s{sT1}, s{sT2}")
    A(f"v_lshrrev_b32 v6, 4, v1\nv_lshlrev_b32 v6, 10, v6\nv_and_b32 v25, 15, v1\nv_lshl_add_u32 v6, v25, 4, v6")
    for w in range(4):
        for h in range(4):
            A(f"s_mov_b32 m0, {L_WO + 4096*w + 1024*h}")
            A(f"s_add_u32 s{sT2}, s{sT1}, {(128*h + 16*w)*1024}")
            ld(f"buffer_load_dwordx4 v6, {s4(rA)}, s{sT2} offen {wflags} lds", True)
    assert cnt[0] == 8 * U0 and D + 7 <= 8 * U0
    stamp(1)
    A(f"s_lshl_b32 s{sT0}, s{sX8}, 24\ns_lshl_b32 s{sT1}, s{sJJ}, 19\ns_add_u32 s{sT0}, s{sT0}, s{sT1}")
    A(f"s_add_u32 s{rK}, s{sK}, s{sT0}\ns_addc_u32 s{rK+1}, s{sK+1}, 0\ns_mov_b32 s{rK+2}, 0x80000\ns_mov_b32 s{rK+3}, 0x20000")
    A(f"s_add_u32 s{rV}, s{sV}, s{sT0}\ns_addc_u32 s{rV+1}, s{sV+1}, 0\ns_mov_b32 s{rV+2}, 0x80000\ns_mov_b32 s{rV+3}, 0x20000")
    A("v_lshrrev_b32 v5, 4, v1\nv_lshlrev_b32 v5, 6, v5\nv_xor_b32 v16, v4, v5")
    A("v_and_b32 v5, 16, v1\nv_lshlrev_b32 v5, 1, v5\nv_xor_b32 v20, v4, v5")
    for n in range(1, 4):
        A(f"v_xor_b32 v{16+n}, {16*n}, v16\nv_xor_b32 v{20+n}, {64*n}, v20")
    A(f"s_mov_b32 s{sCNT}, 0\ns_mov_b32 s{sLB}, 0\ns_mov_b32 s{sFL}, 0")
    phases = [(rK, 16, 32), (rV, 20, 64)] if not win2 else [(rK, 16, 32), (rV, 20, 64 - last), (rV, 20, 64)]
    for ph, (r_, vo, until) in enumerate(phases):
        if ph < 2:
            A(f"s_mov_b32 s{sH}, 0")
        else:
            assert (win2 - win) % 8 == 0
            A(f"v_subrev_u32 v{vCNT}, {(win2 - win) // 8}, v{vCNT}")
            DD[0] = win2
        A(f"L_load{ph}:")
        A(f"s_sub_u32 s{sTHR}, s{sCNT}, {NSLOT-1}")
        if ph == 0:
            A(f"s_cmp_lg_u32 s{sTHR}, 0\ns_cbranch_scc1 L_nogup")
            lds_wait(F_GUP, sT2, 1, "gup", sleep=0)
            stamp(2)
            A("L_nogup:")
        lds_wait(F_DONE, sFL, f"s{sTHR}", "free", sleep=0, cached=True, pair=True)
        for k in range(16):
            if k % 4 == 0:
                A(f"s_add_u32 m0, s{sLB}, {L_RING + k*1024}")
            ld(f"buffer_load_dwordx4 v{vo+k%4}, {s4(r_)}, s{sH} offen offset:{1024*(k%4)} {kvflags} lds")
            if k % 4 == 3:
                A(f"s_add_u32 s{sH}, s{sH}, 4096")
        next_slot(1)
        if stamps and smode == 3 and ph < 2:
            A(f"s_cmp_lg_u32 s{sCNT}, {32*ph+15}\ns_cbranch_scc1 L_np{ph}")
            stamp(4 + 2 * ph, 3)
            A(f"L_np{ph}:")
        A(f"s_add_u32 s{sCNT}, s{sCNT}, 1\ns_cmp_lt_u32 s{sCNT}, {until}\ns_cbranch_scc1 L_load{ph}")
        if ph == 0:
            stamp(4, 1); stamp(5, 3)
    rem = DD[0] - 1 - first_k
    while rem >= 0:
        A(f"s_waitcnt vmcnt({rem})\nds_write_b32 v7, v{vCNT} offset:{F_RDY}\nv_add_u32 v{vCNT}, 1, v{vCNT}")
        rem -= 8
    stamp(3)
    if lprio:
        A("s_setprio 0")
    make_tags()
    A("s_branch L_tail")

    A("L_notloader:")
    A(f"s_cmp_eq_u32 s{sW}, 3\ns_cbranch_scc1 L_help")
    A(f"s_sub_u32 s{sC}, s{sW}, 1")
    A(f"s_cmp_eq_u32 s{sW}, 2\ns_cbranch_scc1 L_w2")
    make_tags()
    A("s_branch L_qwait")
    def slice_mv(sKS, lds_base, unit0, after_read=None):
        A(f"s_lshl_b32 s{sT2}, s{sKS}, 8\nv_lshl_add_u32 v5, v2, 5, s{sT2}")
        A(f"ds_read_b128 v[20:23], v5 offset:{L_XN}\nds_read_b128 v[24:27], v5 offset:{L_XN+16}")
        A(f"v_add_u32 v6, {lds_base}, v4")
        for half in range(2):
            lds_wait(F_RDY, sFL, unit0 + half + 1, "wsl", sleep=1)
            for i in range(8):
                A(f"ds_read_b128 {v4(64+4*i)}, v6 offset:{8192*half + 1024*i}")
            lgkm(0)
            if half == 1:
                stamp(6, 2)
                if after_read:
                    after_read()
            matvec8(64, [f"v{20+4*half+k}" for k in range(4)], 32, 40, first=(half == 0))
        reduce8(32)
        A(f"v_lshrrev_b32 v6, 4, v1\nv_lshlrev_b32 v6, 6, v6\nv_lshrrev_b32 v5, 1, v3\nv_add_u32 v6, v6, v5")
    A("L_w2:")
    A(f"s_lshr_b32 s{sT3}, s2, 6")
    A("s_waitcnt vmcnt(0)")
    stamp(4, 2)
    ln_stats(16, 28, 29, 32)
    ln_apply(16, 28, 29, 32)
    A(f"ds_write_b128 v4, v[16:19] offset:{L_XN}")
    lds_flag(F_XN)
    stamp(5, 2)
    make_tags()
    slice_mv(sT3, L_P, 0)
    sXC = sH + 4
    A(f"s_getreg_b32 s{sXC}, hwreg(HW_REG_XCC_ID, 0, 4)")
    if force:
        A(f"s_and_b32 s{sXC}, s{sJJ}, 1")
    embed(34, 32, TX2); embed(35, 33, TX2 + 1)
    A(f"v_xor_b32 v32, s{sXC}, v34\nv_xor_b32 v33, s{sXC}, v35")
    A(f"s_lshl_b32 s{sH}, s{sX8}, 13\ns_add_u32 s{sH}, s{sH}, {WS_QX}\ns_lshl_b32 s{sT2}, s{sT3}, 11\ns_add_u32 s{sT1}, s{sH}, s{sT2}")
    A(f"s_and_b32 s{sT2}, s{sJJ}, 7\ns_lshl_b32 s{sT2}, s{sT2}, 8\ns_add_u32 s{sT1}, s{sT1}, s{sT2}")
    A("s_mov_b32 exec_lo, 0x00ff00ff\ns_mov_b32 exec_hi, 0x00ff00ff")
    A(f"buffer_store_dwordx2 v[32:33], v6, {s4(rWS)}, s{sT1} offen")
    A("s_mov_b64 exec, -1")
    stamp(1)
    for k in range(4):
        A(f"v_xor_b32 v{36+k}, s{sXC}, v{TX4+k}")
    A(f"s_add_u32 s{sH+1}, s{sH}, 4096\ns_mov_b32 s{sMODE}, 2")
    if qgate:
        lds_wait(F_RDY, sFL, qgate, "qgate", sleep=2)
    A(f"s_mov_b32 s{sSPIN}, 0")
    A("L_qpoll:")
    for i in range(8):
        A(f"buffer_load_dwordx4 {v4(64+4*i)}, v4, {s4(rWS)}, s{sH+i//4} offen offset:{1024*(i%4)} sc1")
    A("s_waitcnt vmcnt(0)")
    A(f"v_xor_b32 v{vX0}, v64, v36")
    for i in range(1, 32):
        A(f"v_bitop3_b32 v{vX0}, v{vX0}, v{64+i}, v{36+i%4} bitop3:0xf6")
    A(f"v_and_b32 v{vX0}, 15, v{vX0}\nv_cmp_ne_u32 vcc, 0, v{vX0}\ns_cbranch_vccz L_qok")
    A(f"s_sleep {qsleep}\ns_add_u32 s{sSPIN}, s{sSPIN}, 1\ns_cmp_lt_u32 s{sSPIN}, {qtry}\ns_cbranch_scc1 L_qpoll")
    A(f"s_cmp_lg_u32 s{sSPIN}, {qtry}\ns_cbranch_scc1 L_qflip")
    A(f"s_xor_b32 s{sT1}, s{sT1}, {WS_QXFAR}")
    A("s_mov_b32 exec_lo, 0x00ff00ff\ns_mov_b32 exec_hi, 0x00ff00ff")
    A(f"buffer_store_dwordx2 v[34:35], v6, {s4(rWS)}, s{sT1} offen sc1")
    A("s_mov_b64 exec, -1")
    A("L_qflip:")
    A(f"s_xor_b32 s{sH}, s{sH}, {WS_QXFAR}\ns_xor_b32 s{sH+1}, s{sH+1}, {WS_QXFAR}\ns_xor_b32 s{sMODE}, s{sMODE}, 3")
    for k in range(4):
        A(f"v_xor_b32 v{36+k}, s{sXC}, v{36+k}")
    A(f"s_cmp_lt_u32 s{sSPIN}, s{sLIM}\ns_cbranch_scc1 L_qpoll")
    A("L_qok:")
    for e in range(8):
        A(f"v_add_f32 v{64+e}, v{64+e}, v{72+e}\nv_add_f32 v{80+e}, v{80+e}, v{88+e}")
    for e in range(8):
        A(f"v_add_f32 v{64+e}, v{64+e}, v{80+e}")
    for e in range(4):
        A(f"v_cvt_pk_bf16_f32 v{64+e}, v{64+2*e}, v{65+2*e}")
    A(f"v_lshrrev_b32 v6, 4, v1\nv_lshlrev_b32 v6, 7, v6\nv_and_b32 v5, 3, v1\nv_lshl_add_u32 v6, v5, 5, v6")
    A(f"v_and_b32 v5, 12, v1\nv_add_u32 v6, v6, v5")
    for e in range(4):
        A(f"ds_write_b32 v6, v{64+e} offset:{L_Q + 16*(e&1) + 512*(e>>1)}")
    lds_flag(F_QH, val=f"s{sMODE}")
    A("L_qwait:")
    vOWN, vOTH = 30, 31
    A(f"s_lshl_b32 s{sT2}, s{sC}, 2\nv_mov_b32 v{vOWN}, s{sT2}\nv_xor_b32 v{vOTH}, 4, v{vOWN}")
    vQV, vKT, vS, vT, vMAX, vAD, vKA, vPA, vDN = 32, 96, 160, 164, 172, 176, 184, 188, 189
    A("v_and_b32 v5, 3, v1\nv_lshlrev_b32 v5, 10, v5\nv_bfe_u32 v6, v1, 2, 2\nv_lshl_add_u32 v5, v6, 8, v5")
    A(f"v_lshrrev_b32 v6, 4, v1\nv_xor_b32 v6, v6, v1\nv_and_b32 v6, 15, v6\nv_lshl_add_u32 v{vKA}, v6, 4, v5")
    for n in range(1, 4):
        A(f"v_xor_b32 v{vKA+n}, {64*n}, v{vKA}")
    A(f"v_and_b32 v5, 3, v1\nv_lshlrev_b32 v5, 6, v5\nv_lshrrev_b32 v6, 4, v1\nv_lshl_add_u32 v5, v6, 4, v5")
    A(f"v_mov_b32 v29, v5")
    A(f"v_and_b32 v6, 8, v1\nv_lshl_add_u32 v5, v6, 5, v5\nv_and_b32 v6, 4, v1\nv_lshl_add_u32 v5, v6, 1, v5")
    A(f"s_lshl_b32 s{sT2}, s{sC}, 9\nv_add_u32 v{vPA}, s{sT2}, v5")
    A(f"v_mov_b32 v{vMAX}, {hex(f2u(-3e38))}")
    A(f"s_add_u32 s{sT2}, s{sC}, 2\nv_mov_b32 v{vDN}, s{sT2}")
    A("v_and_b32 v6, 3, v1\nv_lshlrev_b32 v6, 8, v6\nv_lshrrev_b32 v5, 4, v1\nv_lshl_add_u32 v6, v5, 4, v6")
    A(f"s_mov_b32 s{sFL}, 0")
    lds_wait(F_QH, sMODE, 1, "qh", sleep=1)
    stamp(2)
    for s in range(4):
        A(f"ds_read_b128 {v4(vKT+4*s)}, v6 offset:{L_Q + 64*s}")
    lgkm(0)
    for b in range(4):
        A(f"s_mov_b32 vcc_lo, {hex(0x000f000f << (4*b))}\ns_mov_b32 vcc_hi, {hex(0x000f000f << (4*b))}")
        for i in range(16):
            A(f"v_cndmask_b32 v{vQV+16*b+i}, 0, v{vKT+i}, vcc")
    A(f"s_lshl_b32 s{sLB}, s{sC}, 14\ns_lshl_b32 s{sTHR}, s{sC}, 1\ns_add_u32 s{sTHR}, s{sTHR}, {U0+2}")
    A(f"s_mov_b32 s{sCNT}, 0")
    A("L_p1:")
    for n in range(4):
        A(f"v_add_u32 v{vAD+n}, s{sLB}, v{vKA+n}")
    lds_wait(F_RDY, sFL, f"s{sTHR}", "krdy", sleep=csleep, cached=True)
    for b in range(4):
        for n in range(4):
            A(f"ds_read_b128 {v4(vKT+16*b+4*n)}, v{vAD+n} offset:{L_RING + 4096*b}")
    for b in range(4):
        lgkm(12 - 4 * b)
        if b == 3:
            A(f"ds_write_b32 v{vOWN}, v{vDN} offset:{F_DONE}")
        for n in range(4):
            c = "0" if b + n == 0 else v4(vS)
            A(f"v_mfma_f32_16x16x32_bf16 {v4(vS)}, {v4(vKT+16*b+4*n)}, {v4(vQV+16*b+4*n)}, {c}")
    A(f"v_add_u32 v{vDN}, 2, v{vDN}\nv_min_u32 v{vDN}, 32, v{vDN}")
    next_slot(2)
    A(f"s_add_u32 s{sTHR}, s{sTHR}, 4\ns_add_u32 s{sCNT}, s{sCNT}, 1\ns_nop 1")
    A(f"v_cvt_pk_bf16_f32 v{vT}, v{vS}, v{vS+1}\nv_cvt_pk_bf16_f32 v{vT+1}, v{vS+2}, v{vS+3}")
    A(f"v_max3_f32 v{vMAX}, v{vMAX}, v{vS}, v{vS+1}\nv_max3_f32 v{vMAX}, v{vMAX}, v{vS+2}, v{vS+3}")
    for j in range(2):
        A(f"v_lshlrev_b32 v{vT+2+2*j}, 16, v{vT+j}\nv_and_b32 v{vT+3+2*j}, s{sHI}, v{vT+j}")
    for i in range(4):
        A(f"v_mul_f32 v{vT+2+i}, s{sSCALE}, v{vT+2+i}")
    A(f"v_cvt_pk_bf16_f32 v{vT}, v{vT+2}, v{vT+3}\nv_cvt_pk_bf16_f32 v{vT+1}, v{vT+4}, v{vT+5}")
    A(f"ds_write_b64 v{vPA}, {v2(vT)} offset:{L_P}\nv_add_u32 v{vPA}, 1024, v{vPA}")
    A(f"s_cmp_lt_u32 s{sCNT}, 16\ns_cbranch_scc1 L_p1")
    stamp(4, 1)
    wave_red(vMAX, vX0, "v_max_f32", (8, 4))
    A(f"v_and_b32 v5, 3, v1\nv_lshlrev_b32 v5, 2, v5\nv_lshl_add_u32 v6, v{vOWN}, 2, v5\nv_xor_b32 v5, 16, v6")
    A(f"ds_write_b32 v6, v{vMAX} offset:{L_MX}")
    lds_flag(F_MX, vaddr=vOWN)
    A(f"v_subrev_u32 v{vPA}, 16384, v{vPA}")
    lds_wait(F_MX, sT0, 1, "mx", sleep=0, vaddr=vOTH)
    A(f"ds_read_b32 v{vX1}, v5 offset:{L_MX}")
    for i in range(16):
        A(f"ds_read_b64 {v2(32+2*i)}, v{vPA} offset:{L_P + 1024*i}")
    lgkm(0)
    vMN, vLSUM = 173, 174
    A(f"v_max_f32 v{vMAX}, v{vMAX}, v{vX1}")
    rnd_bf16(vMAX)
    A(f"v_mul_f32 v{vMAX}, s{sSCALE}, v{vMAX}")
    rnd_bf16(vMAX)
    A(f"v_mul_f32 v{vMN}, s{sLOG2E}, v{vMAX}\nv_mov_b32 v{vLSUM}, 0")
    for i in range(0, 16, 2):
        E = 96
        for j in range(4):
            A(f"v_lshlrev_b32 v{E+2*j}, 16, v{32+2*i+j}\nv_and_b32 v{E+2*j+1}, s{sHI}, v{32+2*i+j}")
        for j in range(8):
            A(f"v_fma_f32 v{E+j}, v{E+j}, s{sLOG2E}, -v{vMN}")
        for j in range(8):
            A(f"v_exp_f32 v{E+j}, v{E+j}")
        A("s_nop 0")
        for j in range(4):
            A(f"v_cvt_pk_bf16_f32 v{32+2*i+j}, v{E+2*j}, v{E+2*j+1}")
        A(f"ds_write_b64 v{vPA}, {v2(32+2*i)} offset:{L_P + 1024*i}\nds_write_b64 v{vPA}, {v2(34+2*i)} offset:{L_P + 1024*(i+1)}")
        for j in range(4):
            A(f"v_add_f32 v{E+j}, v{E+j}, v{E+4+j}")
        A(f"v_add_f32 v{E}, v{E}, v{E+1}\nv_add_f32 v{E+2}, v{E+2}, v{E+3}\nv_add_f32 v{vLSUM}, v{vLSUM}, v{E}\nv_add_f32 v{vLSUM}, v{vLSUM}, v{E+2}")
    wave_red(vLSUM, vX0, "v_add_f32", (8, 4))
    A(f"v_lshlrev_b32 v6, 1, v6\nv_mov_b32 v{vLSUM+1}, v{vMN}\nds_write_b64 v6, {v2(vLSUM)} offset:{L_LS}")
    lds_flag(F_PD, vaddr=vOWN)
    vO, vVF, vPF, vVA = 32, 48, 80, 184
    A("v_and_b32 v5, 12, v1\nv_lshrrev_b32 v6, 4, v1\nv_add_u32 v6, v6, v5\nv_lshlrev_b32 v6, 8, v6")
    A(f"v_lshrrev_b32 v{vX1}, 3, v1\nv_and_b32 v{vX1}, 2, v{vX1}\nv_or_b32 v5, v5, v{vX1}")
    A(f"v_bfe_u32 v{vX1}, v1, 1, 1\nv_xor_b32 v5, v5, v{vX1}\ns_lshl_b32 s{sT2}, s{sC}, 3\nv_xor_b32 v5, s{sT2}, v5")
    A(f"v_lshl_add_u32 v6, v5, 4, v6\nv_and_b32 v5, 1, v1\nv_lshl_add_u32 v{vVA}, v5, 3, v6")
    for n in range(1, 4):
        A(f"v_xor_b32 v{vVA+n}, {32*n}, v{vVA}")
    for i in range(16):
        A(f"v_mov_b32 v{vO+i}, 0")
    A(f"v_mov_b32 v{vDN}, 33\nv_mov_b32 v{vPA}, v29")
    A(f"s_mov_b32 s{sLB}, {(32 % NSLOT) * 16384}\ns_mov_b32 s{sTHR}, {U0+64+1}\ns_mov_b32 s{sCNT}, 0")
    lds_wait(F_PD, sT0, 1, "pd", sleep=0, vaddr=vOTH)
    stamp(5, 1)
    vSC = 28
    A("L_p2:")
    for n in range(4):
        A(f"v_add_u32 v{vAD+n}, s{sLB}, v{vVA+n}")
    A(f"s_cmp_lg_u32 s{sCNT}, 31\ns_cbranch_scc1 L_nosc")
    lds_wait(F_SC, sT0, 1, "sc", sleep=1)
    A(f"v_and_b32 v5, 3, v1\nv_lshlrev_b32 v5, 2, v5\nds_read_b32 v{vSC}, v5 offset:{L_SC}")
    A("L_nosc:")
    for ks in range(2):
        lds_wait(F_RDY, sFL, f"s{sTHR}", "vrdy", sleep=csleep, cached=True)
        A(f"ds_read_b128 {v4(vPF+4*ks)}, v{vPA} offset:{L_P + 256*ks}")
        for T in range(4):
            for ih in range(2):
                A(f"ds_read_b64_tr_b16 {v2(vVF+16*ks+4*T+2*ih)}, v{vAD+T} offset:{L_RING + 8192*ks + 4096*ih}")
        A(f"s_add_u32 s{sTHR}, s{sTHR}, 1")
        for T in range(4):
            lgkm(6 - 2 * T)
            if ks == 1 and T == 3:
                A(f"ds_write_b32 v{vOWN}, v{vDN} offset:{F_DONE}")
            A(f"v_mfma_f32_16x16x32_bf16 {v4(vO+4*T)}, {v4(vVF+16*ks+4*T)}, {v4(vPF+4*ks)}, {v4(vO+4*T)}")
    A(f"v_add_u32 v{vDN}, 1, v{vDN}\nv_add_u32 v{vPA}, 512, v{vPA}")
    next_slot(1)
    A(f"s_add_u32 s{sCNT}, s{sCNT}, 1\ns_cmp_lt_u32 s{sCNT}, 32\ns_cbranch_scc1 L_p2")
    stamp(3)
    A("L_cepi:")
    A(f"v_lshrrev_b32 v6, 2, v1\nv_lshlrev_b32 v6, 11, v6\nv_and_b32 v5, 3, v1\nv_lshl_add_u32 v6, v5, 4, v6")
    A(f"s_mov_b32 vcc_lo, 0xf0f0f0f0\ns_mov_b32 vcc_hi, 0xf0f0f0f0\ns_mov_b32 s{sM}, 0xff00ff00\ns_mov_b32 s{sM+1}, 0xff00ff00")
    for r in range(4):
        A(f"v_cndmask_b32 v{vO+r}, v{vO+r}, v{vO+4+r}, vcc")
    for r in range(4):
        A(f"v_cndmask_b32 v{vO+8+r}, v{vO+8+r}, v{vO+12+r}, vcc")
    A(f"s_lshl_b32 s{sT1}, s{sX8}, 16\ns_lshl_b32 s{sT2}, s{sC}, 15\ns_add_u32 s{sT1}, s{sT1}, s{sT2}")
    A(f"s_lshl_b32 s{sT2}, s{sJJ}, 6\ns_add_u32 s{sT1}, s{sT1}, s{sT2}\ns_add_u32 s{sT1}, s{sT1}, {WS_H1}")
    for r in range(4):
        A(f"v_cndmask_b32 v{vO+r}, v{vO+r}, v{vO+8+r}, {s2(sM)}")
    for r in range(4):
        A(f"v_mul_f32 v{vO+r}, v{vO+r}, v{vSC}")
    for r in range(4):
        embed(vO + r, vO + r, TX4 + r)
    store2(f"buffer_store_dwordx4 {v4(vO)}, v6, {s4(rWS)}, s{sT1} offen", f"s_cmp_eq_u32 s{sMODE}, 2")
    A("s_branch L_tail")

    A("L_help:")
    vG, vXP = 56, 58
    A(f"s_cmp_ge_u32 s{sJJ}, 28\ns_cbranch_scc1 L_h3f")
    A(f"s_and_b32 s{sT3}, s{sSUB}, 3")
    make_tags()
    lds_wait(F_XN, sT0, 1, "xn", sleep=2)
    slice_mv(sT3, L_GU, 2, after_read=lambda: lds_flag(F_GUP))
    embed(32, 32, TX2); embed(33, 33, TX2 + 1)
    lds_wait(F_QH, sMODE, 1, "qh3", sleep=4)
    A(f"s_lshl_b32 s{sT0}, s{sCB}, 11\ns_add_u32 s{sT0}, s{sT0}, {WS_G1}\ns_lshl_b32 s{sT1}, s{sSUB}, 8\ns_add_u32 s{sT1}, s{sT1}, s{sT0}")
    if skip & 4: A("s_branch L_hstat")
    A("s_mov_b32 exec_lo, 0x00ff00ff\ns_mov_b32 exec_hi, 0x00ff00ff")
    store2(f"buffer_store_dwordx2 v[32:33], v6, {s4(rWS)}, s{sT1} offen",
           f"s_cmp_lt_u32 s{sJJ}, 24\ns_cselect_b32 s{sT2}, s{sMODE}, 1\ns_cmp_eq_u32 s{sT2}, 2")
    A("s_mov_b64 exec, -1")
    stamp(1)
    lds_wait(F_RDY, sFL, g2gate, "g2gate", sleep=16)
    for i in range(8):
        A(f"ds_read_b128 {v4(64+4*i)}, v4 offset:{L_WD + 1024*i}")
    poll([f"buffer_load_dwordx4 {v4(32+4*i)}, v4, {s4(rWS)}, s{sT0} offen offset:{1024*i} sc1" for i in range(2)],
         chk4([32, 36]), "g1poll", sleep=32)
    for e in range(8):
        swap_red(32 + e, vX0, "v_add_f32")
        rnd_bf16(32 + e)
    for e in range(4):
        sigmoid(32 + e, 32 + e)
        rnd_bf16(32 + e)
        A(f"v_mul_f32 v{32+e}, v{32+e}, v{36+e}")
    A("v_cvt_pk_bf16_f32 v32, v32, v33\nv_cvt_pk_bf16_f32 v33, v34, v35")
    A("v_and_b32 v5, 3, v1\nv_lshlrev_b32 v5, 5, v5\nv_and_b32 v6, 12, v1\nv_add_u32 v5, v5, v6\nv_lshlrev_b32 v6, 4, v2")
    A(f"ds_write_b32 v5, v32 offset:{L_HB}\nds_write_b32 v5, v33 offset:{L_HB+16}\nds_read_b128 v[20:23], v6 offset:{L_HB}")
    lgkm(0)
    matvec8(64, [f"v{20+k}" for k in range(4)], 32, 40)
    reduce8(32)
    A(f"v_lshrrev_b32 v6, 4, v1\nv_lshlrev_b32 v6, 3, v6\nv_lshl_add_u32 v6, v3, 1, v6\nv_lshlrev_b32 v5, 2, v1")
    A(f"ds_write_b64 v6, v[32:33] offset:{L_HB}\nds_read_b32 v32, v5 offset:{L_HB}")
    A(f"v_and_b32 v5, 7, v1\nv_lshlrev_b32 v5, 2, v5\nv_lshrrev_b32 v33, v5, s{sTAG}\nv_and_b32 v33, 15, v33")
    A(f"v_lshrrev_b32 v6, 4, v1\nv_lshlrev_b32 v6, 11, v6\nv_and_b32 v5, 15, v1\nv_lshl_add_u32 v6, v5, 2, v6")
    A(f"s_lshl_b32 s{sT1}, s{sSUB}, 13\ns_lshl_b32 s{sT2}, s{sCB}, 6\ns_add_u32 s{sT1}, s{sT1}, s{sT2}\ns_add_u32 s{sT1}, s{sT1}, {WS_GL}")
    lgkm(0)
    embed(32, 32, 33)
    if not skip & 1:
        A(f"buffer_store_dword v32, v6, {s4(rWS)}, s{sT1} offen sc1")
    A("s_branch L_hstat")
    A("L_h3f:")
    make_tags()
    lds_flag(F_GUP)
    if skip & 2: A("s_branch L_hstat")
    lds_wait(F_RDY, sFL, g3gate, "g3gate", sleep=16)
    A(f"s_lshl_b32 s{sT0}, s{sX8}, 2\ns_add_u32 s{sT0}, s{sT0}, s{sJJ}\ns_sub_u32 s{sT0}, s{sT0}, 28")
    A(f"v_and_b32 v6, 3, v1\nv_lshlrev_b32 v6, 3, v6\nv_lshrrev_b32 v5, 5, v1\nv_lshl_add_u32 v6, v5, 2, v6\ns_lshl_b32 s{sT1}, s{sT0}, 5")
    A(f"buffer_load_dword v{vXP}, v6, {s4(rA)}, s{sT1} offen")
    A(f"s_lshl_b32 s{sH}, s{sT0}, 11\ns_add_u32 s{sH}, s{sH}, {WS_GL}")
    A(f"v_min_u32 v6, 47, v1\nv_and_b32 v6, 60, v6\nv_and_b32 v5, 3, v1\nv_or_b32 v6, v6, v5\nv_lshlrev_b32 v6, 4, v6")
    poll([f"buffer_load_dwordx4 v[64:67], v4, {s4(rWS)}, s{sH} offen sc1",
          f"buffer_load_dwordx4 v[68:71], v6, {s4(rWS)}, s{sH} offen offset:1024 sc1"], chk4([64, 68]), "gpoll", sleep=64)
    A("s_mov_b32 exec_hi, 0xffff")
    for e in range(4):
        A(f"v_add_f32 v{64+e}, v{64+e}, v{68+e}")
    A("s_mov_b64 exec, -1")
    red4(64)
    for e in range(2):
        rnd_bf16(64 + e)
        sigmoid(68, 64 + e)
        A(f"v_mul_f32 v{vG+e}, v{64+e}, v68")
        rnd_bf16(vG + e)
    A("L_hstat:")
    stamp(2)
    lds_wait(F_PD, sT0, 1, "pdh", sleep=16, pair=True)
    lds_wait(F_QH, sMODE, 1, "qh4", sleep=4)
    A(f"v_and_b32 v5, 3, v1\nv_lshlrev_b32 v5, 3, v5")
    A(f"ds_read_b64 v[32:33], v5 offset:{L_LS}\nds_read_b32 v34, v5 offset:{L_LS+32}")
    lgkm(0)
    A(f"v_add_f32 v32, v32, v34\nv_log_f32 v32, v32\nv_mov_b32 v35, s{sTAG}\nv_add_f32 v34, v32, v33")
    A(f"s_lshl_b32 s{sT0}, s{sX8}, 10\ns_add_u32 s{sT0}, s{sT0}, {WS_LS}\ns_lshl_b32 s{sT1}, s{sJJ}, 5\ns_add_u32 s{sT1}, s{sT1}, s{sT0}")
    A("s_mov_b64 exec, 15")
    store2(f"buffer_store_dwordx2 v[34:35], v5, {s4(rWS)}, s{sT1} offen", f"s_cmp_eq_u32 s{sMODE}, 2")
    A("s_mov_b64 exec, -1")
    lds_wait(F_RDY, sFL, lsgate, "lsgate", sleep=16)
    A(f"v_lshlrev_b32 v6, 3, v1")
    poll([f"buffer_load_dwordx2 {v2(36+2*i)}, v6, {s4(rWS)}, s{sT0} offen offset:{512*i} sc1" for i in range(2)],
         [(37, f"s{sTAG}"), (39, f"s{sTAG}")], "lspoll", sleep=16, full=True)
    A("v_max_f32 v40, v36, v38")
    wave_red(40, vX0, "v_max_f32", (8, 4))
    A("v_sub_f32 v36, v36, v40\nv_sub_f32 v38, v38, v40\nv_exp_f32 v36, v36\nv_exp_f32 v38, v38\nv_sub_f32 v33, v33, v40\nv_add_f32 v36, v36, v38")
    wave_red(36, vX0, "v_add_f32", (8, 4))
    A("v_exp_f32 v33, v33\nv_rcp_f32 v36, v36\nv_lshrrev_b32 v5, 1, v5\nv_mul_f32 v33, v33, v36")
    A(f"ds_write_b32 v5, v33 offset:{L_SC}")
    lds_flag(F_SC)
    stamp(3)
    if dry:
        A(f"s_mov_b32 s{rWS+2}, 0\ns_mov_b32 s{sLIM}, 0\ns_mov_b32 s{sOSZ}, 0\ns_mov_b32 s{sC}, 0")
        A("s_branch L_cepi")
        A("L_dryret:")
        A(f"s_mov_b64 exec, -1\ns_mov_b32 s{rWS+2}, {hex(WS_SIZE)}\ns_mov_b32 s{sLIM}, 0x40000\ns_mov_b32 s{sOSZ}, 1024")
    lds_wait(F_RDY, sFL, U0 + 128, "endgate", sleep=1)

    A("L_tail:")
    stamp(4, 0)
    A(f"s_lshl_b32 s{sT2}, s{sW}, 12\nv_lshl_add_u32 v6, v1, 2, s{sT2}")
    for n in range(16):
        A(f"ds_read_b32 v{64+n}, v6 offset:{L_WO + 256*n}")
    A(f"s_lshl_b32 s{sT1}, s{sX8}, 16\ns_and_b32 s{sT2}, s{sJJ}, 28\ns_add_u32 s{sT2}, s{sT2}, s{sW}\ns_lshl_b32 s{sT2}, s{sT2}, 11")
    A(f"s_add_u32 s{sT1}, s{sT1}, s{sT2}\ns_add_u32 s{sT1}, s{sT1}, {WS_H1}")
    A(f"v_lshlrev_b32 v53, 3, v0\nv_lshlrev_b32 v54, 3, v1")
    if h2lay == 0:
        A(f"v_lshrrev_b32 v5, 1, v3\nv_lshl_add_u32 v6, v2, 12, v5")
    elif h2lay == 1:
        A(f"v_lshrrev_b32 v5, 1, v3\nv_lshl_add_u32 v6, v2, 13, v5")
    else:
        A(f"v_and_b32 v5, 15, v1\nv_lshlrev_b32 v5, 3, v5\nv_lshrrev_b32 v6, 4, v1\nv_lshl_add_u32 v6, v6, 13, v5")
    lgkm(0)
    for u in range(8):
        A(f"v_perm_b32 v{80+2*u}, v{65+2*u}, v{64+2*u}, s{sSELL}\nv_perm_b32 v{81+2*u}, v{65+2*u}, v{64+2*u}, s{sSELH}")
    poll([f"buffer_load_dwordx4 {v4(40+4*i)}, v4, {s4(rWS)}, s{sT1} offen offset:{1024*i} sc1" for i in range(2)],
         chk4([40, 44]), "h1poll", sleep=h1sleep)
    stamp(5, 0)
    for e in range(4):
        A(f"v_add_f32 v{40+e}, v{40+e}, v{44+e}")
    red4(40)
    A(f"v_cvt_pk_bf16_f32 v40, v40, v41\ns_nop 0")
    for u in range(8):
        A(f"v_readlane_b32 s{sH+u}, v40, {32*(u&1) + (u>>1)}")
    for u in range(8):
        for z in range(2):
            c = "0" if u == 0 else f"v{48+z}"
            A(f"v_dot2_f32_bf16 v{48+z}, s{sH+u}, v{80+2*u+z}, {c}")
    A("s_nop 2")
    A(f"ds_write_b64 v53, v[48:49] offset:{L_RED}")
    if dry:
        A(f"s_cmp_eq_u32 s{sOSZ}, 0\ns_cbranch_scc1 L_t2b")
    A("s_waitcnt lgkmcnt(0)\ns_barrier")
    A(f"s_cmp_lg_u32 s{sW}, 0\ns_cbranch_scc1 L_t3")
    A("L_t2b:")
    for p in range(3):
        A(f"ds_read_b64 {v2(42+2*p)}, v54 offset:{L_RED + 512*(p+1)}")
    e1 = 1 if h2lay else 0
    A(f"s_and_b32 s{sT1}, s{sJJ}, 3\ns_lshl_b32 s{sT1}, s{sT1}, {16 if h2lay == 1 else 15}\ns_lshl_b32 s{sT2}, s{sX8}, {9+e1}\ns_add_u32 s{sT1}, s{sT1}, s{sT2}")
    A(f"s_lshr_b32 s{sT2}, s{sJJ}, 2\ns_lshl_b32 s{sT2}, s{sT2}, {6+e1}\ns_add_u32 s{sT1}, s{sT1}, s{sT2}\ns_add_u32 s{sT1}, s{sT1}, {WS_H2}")
    lgkm(0)
    A("v_add_f32 v48, v48, v42\nv_add_f32 v49, v49, v43\nv_add_f32 v44, v44, v46\nv_add_f32 v45, v45, v47\nv_add_f32 v48, v48, v44\nv_add_f32 v49, v49, v45")
    embed(48, 48, TX2); embed(49, 49, TX2 + 1)
    A(f"buffer_store_dwordx2 v[48:49], v6, {s4(rWS)}, s{sT1} offen {h2flags}")
    if dry:
        A(f"s_cmp_eq_u32 s{sOSZ}, 0\ns_cbranch_scc1 L_t3b")
    A("s_branch L_fin")
    A("L_t3:")
    A(f"s_cmp_lg_u32 s{sW}, 3\ns_cbranch_scc1 L_fin")
    A(f"s_cmp_lt_u32 s{sJJ}, 28\ns_cbranch_scc1 L_fin")
    A("L_t3b:")
    A(f"s_lshl_b32 s{sT0}, s{sX8}, 2\ns_add_u32 s{sT0}, s{sT0}, s{sJJ}\ns_sub_u32 s{sT0}, s{sT0}, 28\ns_and_b32 s{sT0}, s{sT0}, 31")
    if h2lay == 0:
        A(f"s_lshl_b32 s{sT1}, s{sT0}, 12\ns_add_u32 s{sT1}, s{sT1}, {WS_H2}\nv_mov_b32 v55, v4")
    else:
        if h2lay == 1:
            A(f"s_lshl_b32 s{sT1}, s{sT0}, 13")
        else:
            A(f"s_lshr_b32 s{sT1}, s{sT0}, 1\ns_lshl_b32 s{sT1}, s{sT1}, 13\ns_and_b32 s{sT2}, s{sT0}, 1\ns_lshl_b32 s{sT2}, s{sT2}, 6\ns_add_u32 s{sT1}, s{sT1}, s{sT2}")
        A(f"s_add_u32 s{sT1}, s{sT1}, {WS_H2}\nv_lshrrev_b32 v55, 2, v1\nv_lshlrev_b32 v55, 7, v55\nv_and_b32 v5, 3, v1\nv_lshl_add_u32 v55, v5, 4, v55")
    A(f"s_add_u32 s{sT2}, s{sT1}, {4096 if h2lay else 2048}")
    A(f"v_and_b32 v5, 3, v1\nv_lshlrev_b32 v5, 1, v5\nv_lshrrev_b32 v6, 5, v1\nv_add_u32 v5, v5, v6\nv_lshlrev_b32 v52, 2, v5")
    A(f"v_lshlrev_b32 v50, 16, v{vXP}\nv_and_b32 v51, s{sHI}, v{vXP}")
    srd(rA, sOUT, f"s{sOSZ}")
    poll([f"buffer_load_dwordx4 {v4(64+4*i)}, v55, {s4(rWS)}, s{sT1+i//2} offen offset:{(2048 if h2lay else 1024)*(i%2)} {h2ld}" for i in range(4)],
         chk4([64, 68, 72, 76]), "h2poll", sleep=h2sleep)
    stamp(6, 0)
    for e in range(4):
        A(f"v_add_f32 v{64+e}, v{64+e}, v{68+e}\nv_add_f32 v{72+e}, v{72+e}, v{76+e}")
    for e in range(4):
        A(f"v_add_f32 v{64+e}, v{64+e}, v{72+e}")
    red4(64)
    A(f"s_lshl_b32 s{sT1}, s{sT0}, 5")
    A(f"v_cvt_pk_bf16_f32 v64, v64, v65\nv_and_b32 v65, s{sHI}, v64\nv_lshlrev_b32 v64, 16, v64")
    A(f"v_mul_f32 v64, v64, v{vG}\nv_mul_f32 v65, v65, v{vG+1}")
    A(f"v_cvt_pk_bf16_f32 v64, v64, v65\nv_and_b32 v65, s{sHI}, v64\nv_lshlrev_b32 v64, 16, v64")
    A("v_add_f32 v64, v64, v50\nv_add_f32 v65, v65, v51\nv_cvt_pk_bf16_f32 v64, v64, v65")
    A("s_mov_b32 exec_lo, 15\ns_mov_b32 exec_hi, 15")
    A(f"buffer_store_dword v64, v52, {s4(rA)}, s{sT1} offen {outflags}")
    if dry:
        A(f"s_cmp_eq_u32 s{sOSZ}, 0\ns_cbranch_scc1 L_dryret")
    A(f"s_cmp_lg_u32 s{sT0}, 0\ns_cbranch_scc1 L_fin")
    A(f"s_mov_b64 exec, 1\nv_mov_b32 v65, s{sTAG}")
    A(f"buffer_store_dword v65, v7, {s4(rWS)}, 0 offen offset:{WS_EPOCH} sc1")
    A("L_fin:")
    if stamps:
        A("s_mov_b64 exec, -1")
        A("s_waitcnt vmcnt(0)")
        stamp(7)
        A("s_waitcnt lgkmcnt(0)")
        if pad is not None:
            A(f"s_cmp_eq_u32 s{sST+2*pad}, 0\ns_cbranch_scc1 L_padout")
            A(f"s_add_u32 s{sT2}, s{sST+2*pad}, 10000")
            A("L_pad:")
            A(f"s_memrealtime {s2(sH)}\ns_waitcnt lgkmcnt(0)\ns_sub_u32 s{sT3}, s{sH}, s{sT2}\ns_cmp_lt_i32 s{sT3}, 0\ns_cbranch_scc1 L_pad")
            A("L_padout:")
        for i in range(8):
            A(f"v_mov_b32 v{96+i}, s{sST+2*i}")
        A(f"s_lshl_b32 s{sT1}, s2, 2\ns_add_u32 s{sT1}, s{sT1}, s{sW}\ns_lshl_b32 s{sT1}, s{sT1}, 5\ns_add_u32 s{sT1}, s{sT1}, {WS_STAMP}")
        A("s_mov_b64 exec, 1")
        A(f"buffer_store_dwordx4 v[96:99], v7, {s4(rWS)}, s{sT1} offen")
        A(f"buffer_store_dwordx4 v[100:103], v7, {s4(rWS)}, s{sT1} offen offset:16")
    A("L_end:")
    A("s_endpgm")

    out = HEADER
    out += f"; @launch grid=(256,1,1) block=(256,1,1) lds={LDS_BYTES}\n"
    out += '.amdgcn_target "amdgcn-amd-amdhsa--gfx950"\n.text\n'
    out += f".globl {KNAME}_kernel\n.p2align 8\n.type {KNAME}_kernel,@function\n"
    out += "\n".join(A.L) + "\n"
    out += f""".section .rodata,"a"
.p2align 6
.amdhsa_kernel {KNAME}_kernel
  .amdhsa_next_free_vgpr 192
  .amdhsa_next_free_sgpr 102
  .amdhsa_accum_offset 192
  .amdhsa_group_segment_fixed_size 0
  .amdhsa_kernarg_size 96
  .amdhsa_user_sgpr_count 2
  .amdhsa_user_sgpr_kernarg_segment_ptr 1
  .amdhsa_system_sgpr_workgroup_id_x 1
.end_amdhsa_kernel
"""
    return out


if __name__ == "__main__":
    kw = json.loads(sys.argv[2]) if len(sys.argv) > 2 else {}
    open(sys.argv[1], "w").write(gen(**kw))
```

```python
import sys, json, struct

KNAME = "recurrent_scan__gqa_block_cached__glu_gated_glu__decode"
HEADER = open("cdna_kernels/" + KNAME + ".s.ref").read().split("; Override launch")[0]

def f2u(x):
    return struct.unpack("<I", struct.pack("<f", x))[0]

LOG2E = 1.4426950408889634
WS_EPOCH = 0x0
WS_LS = 0x2000
WS_QX = 0x10000
WS_QXFAR = 0x100000
WS_G1 = 0x20000
WS_GL = 0x30000
WS_H1 = 0x40000
WS_H2 = 0xC0000
WS_STAMP = 0x1000000
WS_SIZE = 0x20000000
L_Q = 0
L_FLAG = 1024
F_RDY = L_FLAG
F_GUP = L_FLAG + 4
F_DONE = L_FLAG + 8
F_QH = L_FLAG + 16
F_XN = L_FLAG + 20
F_MX = L_FLAG + 24
F_PD = L_FLAG + 32
F_SC = L_FLAG + 40
L_MX = 1152
L_LS = 1216
L_SC = 1280
L_HB = 1536
L_RED = 2048
L_XN = L_RED
L_P = 4096
L_WO = 20480
L_WD = 36864
L_RING = 45056
NSLOT = 7
LDS_BYTES = L_RING + NSLOT * 16384
U0 = 7

sFL = 3
sMODE, sLIM, sOSZ = 14, 15, 24
sX, sK, sV, sWQ, sWO, sBX, sWG, sWU, sWD, sOUT, sDBG, sWS = 4, 6, 8, 10, 12, 14, 16, 18, 20, 22, 24, 26
rK, rV, rWS, rA, rB, rC, rD = 28, 32, 36, 40, 44, 48, 52
sW, sX8, sJJ, sCB, sSUB = 56, 57, 58, 59, 60
sC, sTHR, sCNT, sTAG = 61, 62, 63, 64
sSELL, sSELH, sSCALE, sLOG2E, sHI = 65, 66, 67, 68, 69
sT0, sT1, sT2, sT3 = 70, 71, 72, 73
sH = 74
sM = 82
sSPIN = 84
sLB = 85
sST = 86
TX4 = 8; TX2 = 12; vX0 = 14; vX1 = 15
vWO = 16


class G:
    def __init__(self):
        self.L = []
        self.n = 0
    def __call__(self, s):
        for line in s.strip("\n").split("\n"):
            self.L.append("    " + line.strip() if not line.strip().endswith(":") else line.strip())
    def label(self, base):
        self.n += 1
        return f"L_{base}_{self.n}"


def v4(r):
    return f"v[{r}:{r+3}]"
def v2(r):
    return f"v[{r}:{r+1}]"
def s4(r):
    return f"s[{r}:{r+3}]"
def s2(r):
    return f"s[{r}:{r+1}]"


def gen(kvflags="nt", wflags="nt", win=20, stamps=False, pad=None, qsleep=4, qgate=0, g2gate=24, g3gate=48,
        lsgate=100, h1sleep=0, h2sleep=0, csleep=1, lprio=0, smode=0, skip=0, prog=False, win2=0, last=6, force=0, qtry=96, dry=True, outflags='', h2lay=2, h2flags='sc1', h2ld='sc1', diag=None):
    A = G()

    def srd(r, base, size):
        A(f"s_mov_b32 s{r}, s{base}\ns_mov_b32 s{r+1}, s{base+1}\ns_mov_b32 s{r+2}, {size}\ns_mov_b32 s{r+3}, 0x20000")

    def stamp(i, mode=None):
        if stamps and (mode is None or mode == smode):
            A(f"s_memrealtime {s2(sST + 2 * i)}")

    def lgkm(n):
        A(f"s_waitcnt lgkmcnt({n})")

    def swap_red(r, t, op, kinds=("16", "32")):
        for k in kinds:
            A(f"v_mov_b32 v{t}, v{r}\ns_nop 1\nv_permlane{k}_swap_b32 v{r}, v{t}\ns_nop 1\n{op} v{r}, v{r}, v{t}")

    def wave_red(r, t, op, rors):
        for k in rors:
            A(f"s_nop 1\n{op} v{r}, v{r}, v{r} row_ror:{k}")
        swap_red(r, t, op)

    def rnd_bf16(r):
        A(f"v_cvt_pk_bf16_f32 v{r}, v{r}, v{r}\nv_and_b32 v{r}, 0xffff0000, v{r}")

    def ln_stats(X, mean, rstd, F):
        D = F + 8
        for k in range(4):
            A(f"v_lshlrev_b32 v{F+2*k}, 16, v{X+k}\nv_and_b32 v{F+2*k+1}, s{sHI}, v{X+k}")
        A(f"v_add_f32 v{mean}, v{F}, v{F+1}")
        for k in range(2, 8):
            A(f"v_add_f32 v{mean}, v{mean}, v{F+k}")
        wave_red(mean, vX0, "v_add_f32", (8, 4, 2, 1))
        A(f"v_mul_f32 v{mean}, {hex(f2u(1/512))}, v{mean}")
        for k in range(8):
            A(f"v_sub_f32 v{D+k}, v{F+k}, v{mean}")
        A(f"v_mul_f32 v{rstd}, v{D}, v{D}")
        for k in range(1, 8):
            A(f"v_fmac_f32 v{rstd}, v{D+k}, v{D+k}")
        wave_red(rstd, vX0, "v_add_f32", (8, 4, 2, 1))
        A(f"v_mul_f32 v{rstd}, {hex(f2u(1/512))}, v{rstd}")
        rnd_bf16(mean); rnd_bf16(rstd)
        A(f"v_add_f32 v{rstd}, {hex(f2u(1e-5))}, v{rstd}")
        rnd_bf16(rstd)
        A(f"v_sqrt_f32 v{rstd}, v{rstd}\ns_nop 0")
        rnd_bf16(rstd)
        A(f"v_rcp_f32 v{rstd}, v{rstd}")

    def ln_apply(X, mean, rstd, D):
        for k in range(4):
            A(f"v_lshlrev_b32 v{D+2*k}, 16, v{X+k}\nv_and_b32 v{D+2*k+1}, s{sHI}, v{X+k}")
        for k in range(8):
            A(f"v_sub_f32 v{D+k}, v{D+k}, v{mean}")
        for k in range(4):
            A(f"v_cvt_pk_bf16_f32 v{X+k}, v{D+2*k}, v{D+2*k+1}")
        for k in range(4):
            A(f"v_lshlrev_b32 v{D+2*k}, 16, v{X+k}\nv_and_b32 v{D+2*k+1}, s{sHI}, v{X+k}")
        for k in range(8):
            A(f"v_mul_f32 v{D+k}, v{D+k}, v{rstd}")
        for k in range(4):
            A(f"v_cvt_pk_bf16_f32 v{X+k}, v{D+2*k}, v{D+2*k+1}")

    def matvec8(W, xs, acc, tmp, first=True):
        for j in range(4):
            for u in range(4):
                A(f"v_perm_b32 v{tmp+2*u}, v{W+(2*j+1)*4+u}, v{W+(2*j)*4+u}, s{sSELL}")
                A(f"v_perm_b32 v{tmp+2*u+1}, v{W+(2*j+1)*4+u}, v{W+(2*j)*4+u}, s{sSELH}")
            for e in range(8):
                c = "0" if (j == 0 and first) else f"v{acc+e}"
                A(f"v_dot2_f32_bf16 v{acc+e}, {xs[j]}, v{tmp+e}, {c}")
        A("s_nop 2")

    def reduce8(acc):
        A("s_nop 1")
        for e in range(4):
            A(f"v_permlane32_swap_b32 v{acc+e}, v{acc+4+e}")
        A("s_nop 1")
        for e in range(4):
            A(f"v_add_f32 v{acc+e}, v{acc+e}, v{acc+4+e}")
        A("s_nop 1")
        for e in range(2):
            A(f"v_permlane16_swap_b32 v{acc+e}, v{acc+2+e}")
        A("s_nop 1")
        for e in range(2):
            A(f"v_add_f32 v{acc+e}, v{acc+e}, v{acc+2+e}")
        A("s_nop 0")
        for e in range(2):
            A(f"v_add_f32 v{acc+e}, v{acc+e}, v{acc+e} row_ror:8")
        A("s_nop 0")

    def red4(a):
        A("s_nop 1")
        A(f"v_permlane32_swap_b32 v{a}, v{a+2}\nv_permlane32_swap_b32 v{a+1}, v{a+3}")
        A("s_nop 0")
        A(f"v_add_f32 v{a}, v{a}, v{a+2}\nv_add_f32 v{a+1}, v{a+1}, v{a+3}")
        for k in (8, 4):
            A("s_nop 0")
            A(f"v_add_f32 v{a}, v{a}, v{a} row_ror:{k}\nv_add_f32 v{a+1}, v{a+1}, v{a+1} row_ror:{k}")
        A(f"v_mov_b32 v{a+2}, v{a}\nv_mov_b32 v{a+3}, v{a+1}\ns_nop 0")
        A(f"v_permlane16_swap_b32 v{a}, v{a+2}\nv_permlane16_swap_b32 v{a+1}, v{a+3}")
        A("s_nop 0")
        A(f"v_add_f32 v{a}, v{a}, v{a+2}\nv_add_f32 v{a+1}, v{a+1}, v{a+3}")

    def lds_wait(addr, sreg, thr, name, sleep=1, vaddr=7, cached=False, pair=False):
        top = A.label(name); done = A.label(name + "_ok")
        if cached:
            A(f"s_cmp_ge_i32 s{sreg}, {thr}\ns_cbranch_scc1 {done}")
        A(f"s_mov_b32 s{sSPIN}, 0")
        A(f"{top}:")
        if pair:
            A(f"ds_read_b64 {v2(vX0)}, v{vaddr} offset:{addr}\ns_waitcnt lgkmcnt(0)\nv_min_i32 v{vX0}, v{vX0}, v{vX1}\ns_nop 0")
        else:
            A(f"ds_read_b32 v{vX0}, v{vaddr} offset:{addr}\ns_waitcnt lgkmcnt(0)")
        A(f"v_readfirstlane_b32 s{sreg}, v{vX0}")
        A(f"s_add_u32 s{sSPIN}, s{sSPIN}, 1")
        A(f"s_cmp_ge_i32 s{sreg}, {thr}\ns_cbranch_scc1 {done}")
        if sleep:
            A(f"s_sleep {sleep}")
        A(f"s_cmp_lt_u32 s{sSPIN}, 0x100000\ns_cbranch_scc1 {top}")
        A(f"{done}:")

    def lds_flag(addr, val=1, vaddr=7):
        A(f"v_mov_b32 v{vX0}, {val}\nds_write_b32 v{vaddr}, v{vX0} offset:{addr}")

    def make_tags():
        A(f"s_waitcnt lgkmcnt(0)\ns_add_u32 s{sTAG}, s{sTAG}, 0x9E3779B1")
        A(f"v_and_b32 v5, 1, v1\nv_lshlrev_b32 v5, 4, v5\nv_lshrrev_b32 v5, v5, s{sTAG}")
        for k in range(4):
            A(f"v_bfe_u32 v{TX4+k}, v5, {4*k}, 4")
        A(f"v_and_b32 v5, 3, v1\nv_lshlrev_b32 v5, 3, v5\nv_lshrrev_b32 v5, v5, s{sTAG}")
        for k in range(2):
            A(f"v_bfe_u32 v{TX2+k}, v5, {4*k}, 4")

    def embed(dst, src, tag):
        A(f"v_and_or_b32 v{dst}, v{src}, -16, v{tag}")

    def poll(loads, checks, name, sleep=0, full=False):
        top = A.label(name); done = A.label(name + "_ok")
        A(f"s_mov_b32 s{sSPIN}, 0")
        A(f"{top}:")
        for l in loads:
            A(l)
        A("s_waitcnt vmcnt(0)")
        A(f"v_xor_b32 v{vX0}, {checks[0][1]}, v{checks[0][0]}")
        for r, t in checks[1:]:
            A(f"v_bitop3_b32 v{vX0}, v{vX0}, v{r}, {t} bitop3:0xf6")
        if not full:
            A(f"v_and_b32 v{vX0}, 15, v{vX0}\nv_cmp_ne_u32 vcc, 0, v{vX0}")
        else:
            A(f"v_cmp_ne_u32 vcc, 0, v{vX0}")
        A(f"s_cbranch_vccz {done}")
        if sleep:
            A(f"s_sleep {sleep}")
        A(f"s_add_u32 s{sSPIN}, s{sSPIN}, 1\ns_cmp_lt_u32 s{sSPIN}, s{sLIM}\ns_cbranch_scc1 {top}")
        A(f"{done}:")

    def store2(line, cond_scc1_near):
        far = A.label("far"); done = A.label("st")
        A(cond_scc1_near)
        A(f"s_cbranch_scc0 {far}\n{line}\ns_branch {done}\n{far}:\n{line} sc1\n{done}:")

    def chk4(regs):
        return [(r + k, f"v{TX4+k}") for r in regs for k in range(4)]

    def next_slot(step):
        A(f"s_add_u32 s{sLB}, s{sLB}, {step*16384}\ns_sub_u32 s{sT0}, s{sLB}, {NSLOT*16384}")
        A(f"s_cmp_ge_u32 s{sLB}, {NSLOT*16384}\ns_cselect_b32 s{sLB}, s{sT0}, s{sLB}")

    def sigmoid(dst, src):
        A(f"v_mul_f32 v{dst}, s{sLOG2E}, v{src}\nv_exp_f32 v{dst}, -v{dst}\ns_nop 0\nv_add_f32 v{dst}, 1.0, v{dst}\nv_rcp_f32 v{dst}, v{dst}\ns_nop 0")

    A(f"{KNAME}_kernel:")
    A("s_cmp_ge_u32 s2, 256\ns_cbranch_scc1 L_end")
    stamp(0)
    A(f"s_load_dwordx16 s[4:19], s[0:1], 0\ns_load_dwordx8 s[20:27], s[0:1], 64")
    A(f"v_lshrrev_b32 v2, 6, v0\nv_and_b32 v1, 63, v0")
    A(f"s_and_b32 s{sX8}, s2, 7\ns_lshr_b32 s{sJJ}, s2, 3")
    A(f"v_readfirstlane_b32 s{sW}, v2")
    A(f"v_and_b32 v6, 15, v1\nv_cmp_eq_u32 vcc, {(F_DONE + 4 - L_FLAG) // 4}, v6\nv_lshlrev_b32 v6, 2, v6\nv_mov_b32 v7, 0")
    A(f"v_cndmask_b32 v5, 0, 1, vcc\nds_write_b32 v6, v5 offset:{L_FLAG}")
    A(f"s_mul_i32 s{sCB}, s{sX8}, 3\ns_lshr_b32 s{sT0}, s{sJJ}, 3\ns_add_u32 s{sCB}, s{sCB}, s{sT0}\ns_and_b32 s{sSUB}, s{sJJ}, 7")
    A(f"s_lshr_b32 s{sT0}, s{sX8}, 1\ns_add_u32 s{sT0}, s{sT0}, 24\ns_and_b32 s{sT1}, s{sX8}, 1\ns_lshl_b32 s{sT1}, s{sT1}, 2\ns_add_u32 s{sT1}, s{sT1}, s{sSUB}")
    A(f"s_cmp_ge_u32 s{sJJ}, 24\ns_cselect_b32 s{sCB}, s{sT0}, s{sCB}\ns_cselect_b32 s{sSUB}, s{sT1}, s{sSUB}")
    A(f"s_mov_b32 s{sSELL}, 0x05040100\ns_mov_b32 s{sSELH}, 0x07060302")
    A(f"s_mov_b32 s{sSCALE}, {hex(f2u(128 ** -0.5))}\ns_mov_b32 s{sLOG2E}, {hex(f2u(LOG2E))}\ns_mov_b32 s{sHI}, 0xffff0000")
    if stamps:
        for i in range(1, 8):
            A(f"s_mov_b64 {s2(sST+2*i)}, 0")
    A("v_lshlrev_b32 v4, 4, v1")
    A("v_lshrrev_b32 v2, 3, v1\nv_and_b32 v3, 7, v1\nv_lshlrev_b32 v3, 4, v3")
    A("s_waitcnt lgkmcnt(0)")
    stamp(4, 5)
    srd(rA, sX, 1024)
    A(f"s_cmp_lg_u32 s{sW}, 2\ns_cbranch_scc1 L_nox")
    A(f"buffer_load_dwordx4 v[16:19], v4, {s4(rA)}, 0 offen")
    A("L_nox:")
    A("s_barrier")
    stamp(5, 5)
    A(f"s_load_dword s{sTAG}, {s2(sWS)}, {WS_EPOCH}")
    A(f"s_mov_b32 s{sLIM}, 0x40000\ns_mov_b32 s{sOSZ}, 1024\ns_mov_b32 s{sMODE}, 1")
    srd(rWS, sWS, hex(WS_SIZE))
    A(f"s_cmp_lg_u32 s{sW}, 0\ns_cbranch_scc1 L_notloader")

    D = win
    first_k = (D - 1) % 8
    vCNT = 24
    cnt = [0]
    DD = [D]
    def ld(line, static=False):
        i = cnt[0]
        if not static or i >= D:
            A(f"s_waitcnt vmcnt({DD[0]-1})")
        if static and i == 0: stamp(4, 4)
        if static and i == D - 1: stamp(5, 4)
        if static and i == D: stamp(6, 4)
        A(line)
        if i % 8 == first_k and (not static or i >= D - 1 + 8):
            if DD[0] == D:
                A(f"ds_write_b32 v7, v{vCNT} offset:{F_RDY}\nv_add_u32 v{vCNT}, 1, v{vCNT}")
            else:
                A(f"ds_max_i32 v7, v{vCNT} offset:{F_RDY}\nv_add_u32 v{vCNT}, 1, v{vCNT}")
        cnt[0] += 1
    if lprio:
        A(f"s_setprio {lprio}")
    srd(rA, sWQ, hex(512 * 4096 * 2))
    A(f"s_and_b32 s{sT1}, s{sJJ}, 7\ns_lshl_b32 s{sT2}, s{sX8}, 3\ns_add_u32 s{sT1}, s{sT1}, s{sT2}\ns_lshl_b32 s{sT1}, s{sT1}, 7")
    A(f"s_lshr_b32 s{sT2}, s2, 6\ns_lshl_b32 s{sT2}, s{sT2}, 20\ns_add_u32 s{sT1}, s{sT1}, s{sT2}")
    A(f"v_lshl_add_u32 v5, v2, 17, v3\nv_mov_b32 v{vCNT}, 1")
    for i in range(16):
        A(f"s_mov_b32 m0, {L_P + 1024*i}")
        A(f"s_add_u32 s{sT2}, s{sT1}, {8192*i}")
        ld(f"buffer_load_dwordx4 v5, {s4(rA)}, s{sT2} offen {wflags} lds", True)
    A(f"s_cmp_lt_u32 s{sJJ}, 28\ns_cselect_b32 s{sT3}, {hex(512 * 1792 * 2)}, 0")
    srd(rD, sWD, f"s{sT3}")
    A(f"s_cmp_lt_u32 s{sSUB}, 4\ns_cselect_b32 s{rB}, s{sWG}, s{sWU}\ns_cselect_b32 s{rB+1}, s{sWG+1}, s{sWU+1}")
    A(f"s_mov_b32 s{rB+2}, s{sT3}\ns_mov_b32 s{rB+3}, 0x20000")
    A(f"s_and_b32 s{sT1}, s{sSUB}, 3\ns_mul_i32 s{sT1}, s{sT1}, {128*3584}\ns_lshl_b32 s{sT2}, s{sCB}, 7\ns_add_u32 s{sT1}, s{sT1}, s{sT2}")
    A(f"v_mul_u32_u24 v6, {16*3584}, v2\nv_add_u32 v6, v6, v3")
    L_GU = L_RING + (NSLOT - 1) * 16384
    for i in range(16):
        A(f"s_mov_b32 m0, {L_GU + 1024*i}")
        A(f"s_add_u32 s{sT2}, s{sT1}, {3584*i}")
        ld(f"buffer_load_dwordx4 v6, {s4(rB)}, s{sT2} offen {wflags} lds", True)
    A(f"s_lshl_b32 s{sT1}, s{sCB}, 16\ns_lshl_b32 s{sT2}, s{sSUB}, 7\ns_add_u32 s{sT1}, s{sT1}, s{sT2}")
    A(f"v_lshl_add_u32 v5, v2, 13, v3")
    for i in range(8):
        if i % 4 == 0:
            A(f"s_mov_b32 m0, {L_WD + 1024*i}")
            A(f"s_add_u32 s{sT2}, s{sT1}, {1024*i}")
        ld(f"buffer_load_dwordx4 v5, {s4(rD)}, s{sT2} offen offset:{1024*(i%4)} {wflags} lds", True)
    srd(rA, sWO, hex(4096 * 512 * 2))
    A(f"s_lshl_b32 s{sT1}, s{sX8}, 9\ns_lshr_b32 s{sT2}, s{sJJ}, 4\ns_lshl_b32 s{sT2}, s{sT2}, 6\ns_add_u32 s{sT1}, s{sT1}, s{sT2}")
    A(f"s_and_b32 s{sT2}, s{sJJ}, 12\ns_add_u32 s{sT1}, s{sT1}, s{sT2}\ns_lshl_b32 s{sT1}, s{sT1}, 10")
    A(f"s_and_b32 s{sT2}, s{sJJ}, 3\ns_lshl_b32 s{sT2}, s{sT2}, 8\ns_add_u32 s{sT1}, s{sT1}, s{sT2}")
    A(f"v_lshrrev_b32 v6, 4, v1\nv_lshlrev_b32 v6, 10, v6\nv_and_b32 v25, 15, v1\nv_lshl_add_u32 v6, v25, 4, v6")
    for w in range(4):
        for h in range(4):
            A(f"s_mov_b32 m0, {L_WO + 4096*w + 1024*h}")
            A(f"s_add_u32 s{sT2}, s{sT1}, {(128*h + 16*w)*1024}")
            ld(f"buffer_load_dwordx4 v6, {s4(rA)}, s{sT2} offen {wflags} lds", True)
    assert cnt[0] == 8 * U0 and D + 7 <= 8 * U0
    stamp(1)
    A(f"s_lshl_b32 s{sT0}, s{sX8}, 24\ns_lshl_b32 s{sT1}, s{sJJ}, 19\ns_add_u32 s{sT0}, s{sT0}, s{sT1}")
    A(f"s_add_u32 s{rK}, s{sK}, s{sT0}\ns_addc_u32 s{rK+1}, s{sK+1}, 0\ns_mov_b32 s{rK+2}, 0x80000\ns_mov_b32 s{rK+3}, 0x20000")
    A(f"s_add_u32 s{rV}, s{sV}, s{sT0}\ns_addc_u32 s{rV+1}, s{sV+1}, 0\ns_mov_b32 s{rV+2}, 0x80000\ns_mov_b32 s{rV+3}, 0x20000")
    A("v_lshrrev_b32 v5, 4, v1\nv_lshlrev_b32 v5, 6, v5\nv_xor_b32 v16, v4, v5")
    A("v_and_b32 v5, 16, v1\nv_lshlrev_b32 v5, 1, v5\nv_xor_b32 v20, v4, v5")
    for n in range(1, 4):
        A(f"v_xor_b32 v{16+n}, {16*n}, v16\nv_xor_b32 v{20+n}, {64*n}, v20")
    A(f"s_mov_b32 s{sCNT}, 0\ns_mov_b32 s{sLB}, 0\ns_mov_b32 s{sFL}, 0")
    phases = [(rK, 16, 32), (rV, 20, 64)] if not win2 else [(rK, 16, 32), (rV, 20, 64 - last), (rV, 20, 64)]
    for ph, (r_, vo, until) in enumerate(phases):
        if ph < 2:
            A(f"s_mov_b32 s{sH}, 0")
        else:
            assert (win2 - win) % 8 == 0
            A(f"v_subrev_u32 v{vCNT}, {(win2 - win) // 8}, v{vCNT}")
            DD[0] = win2
        A(f"L_load{ph}:")
        A(f"s_sub_u32 s{sTHR}, s{sCNT}, {NSLOT-1}")
        if ph == 0:
            A(f"s_cmp_lg_u32 s{sTHR}, 0\ns_cbranch_scc1 L_nogup")
            lds_wait(F_GUP, sT2, 1, "gup", sleep=0)
            stamp(2)
            A("L_nogup:")
        lds_wait(F_DONE, sFL, f"s{sTHR}", "free", sleep=0, cached=True, pair=True)
        for k in range(16):
            if k % 4 == 0:
                A(f"s_add_u32 m0, s{sLB}, {L_RING + k*1024}")
            ld(f"buffer_load_dwordx4 v{vo+k%4}, {s4(r_)}, s{sH} offen offset:{1024*(k%4)} {kvflags} lds")
            if k % 4 == 3:
                A(f"s_add_u32 s{sH}, s{sH}, 4096")
        next_slot(1)
        if stamps and smode == 3 and ph < 2:
            A(f"s_cmp_lg_u32 s{sCNT}, {32*ph+15}\ns_cbranch_scc1 L_np{ph}")
            stamp(4 + 2 * ph, 3)
            A(f"L_np{ph}:")
        A(f"s_add_u32 s{sCNT}, s{sCNT}, 1\ns_cmp_lt_u32 s{sCNT}, {until}\ns_cbranch_scc1 L_load{ph}")
        if ph == 0:
            stamp(4, 1); stamp(5, 3)
    rem = DD[0] - 1 - first_k
    while rem >= 0:
        A(f"s_waitcnt vmcnt({rem})\nds_write_b32 v7, v{vCNT} offset:{F_RDY}\nv_add_u32 v{vCNT}, 1, v{vCNT}")
        rem -= 8
    stamp(3)
    if lprio:
        A("s_setprio 0")
    make_tags()
    A("s_branch L_tail")

    A("L_notloader:")
    A(f"s_cmp_eq_u32 s{sW}, 3\ns_cbranch_scc1 L_help")
    A(f"s_sub_u32 s{sC}, s{sW}, 1")
    A(f"s_cmp_eq_u32 s{sW}, 2\ns_cbranch_scc1 L_w2")
    make_tags()
    A("s_branch L_qwait")
    def slice_mv(sKS, lds_base, unit0, after_read=None):
        A(f"s_lshl_b32 s{sT2}, s{sKS}, 8\nv_lshl_add_u32 v5, v2, 5, s{sT2}")
        A(f"ds_read_b128 v[20:23], v5 offset:{L_XN}\nds_read_b128 v[24:27], v5 offset:{L_XN+16}")
        A(f"v_add_u32 v6, {lds_base}, v4")
        for half in range(2):
            lds_wait(F_RDY, sFL, unit0 + half + 1, "wsl", sleep=1)
            for i in range(8):
                A(f"ds_read_b128 {v4(64+4*i)}, v6 offset:{8192*half + 1024*i}")
            lgkm(0)
            if half == 1:
                stamp(6, 2)
                if after_read:
                    after_read()
            matvec8(64, [f"v{20+4*half+k}" for k in range(4)], 32, 40, first=(half == 0))
        reduce8(32)
        A(f"v_lshrrev_b32 v6, 4, v1\nv_lshlrev_b32 v6, 6, v6\nv_lshrrev_b32 v5, 1, v3\nv_add_u32 v6, v6, v5")
    A("L_w2:")
    A(f"s_lshr_b32 s{sT3}, s2, 6")
    A("s_waitcnt vmcnt(0)")
    stamp(4, 2)
    ln_stats(16, 28, 29, 32)
    ln_apply(16, 28, 29, 32)
    A(f"ds_write_b128 v4, v[16:19] offset:{L_XN}")
    lds_flag(F_XN)
    stamp(5, 2)
    make_tags()
    slice_mv(sT3, L_P, 0)
    sXC = sH + 4
    A(f"s_getreg_b32 s{sXC}, hwreg(HW_REG_XCC_ID, 0, 4)")
    if force:
        A(f"s_and_b32 s{sXC}, s{sJJ}, 1")
    embed(34, 32, TX2); embed(35, 33, TX2 + 1)
    A(f"v_xor_b32 v32, s{sXC}, v34\nv_xor_b32 v33, s{sXC}, v35")
    A(f"s_lshl_b32 s{sH}, s{sX8}, 13\ns_add_u32 s{sH}, s{sH}, {WS_QX}\ns_lshl_b32 s{sT2}, s{sT3}, 11\ns_add_u32 s{sT1}, s{sH}, s{sT2}")
    A(f"s_and_b32 s{sT2}, s{sJJ}, 7\ns_lshl_b32 s{sT2}, s{sT2}, 8\ns_add_u32 s{sT1}, s{sT1}, s{sT2}")
    A("s_mov_b32 exec_lo, 0x00ff00ff\ns_mov_b32 exec_hi, 0x00ff00ff")
    A(f"buffer_store_dwordx2 v[32:33], v6, {s4(rWS)}, s{sT1} offen")
    A("s_mov_b64 exec, -1")
    stamp(1)
    for k in range(4):
        A(f"v_xor_b32 v{36+k}, s{sXC}, v{TX4+k}")
    A(f"s_add_u32 s{sH+1}, s{sH}, 4096\ns_mov_b32 s{sMODE}, 2")
    if qgate:
        lds_wait(F_RDY, sFL, qgate, "qgate", sleep=2)
    A(f"s_mov_b32 s{sSPIN}, 0")
    A("L_qpoll:")
    for i in range(8):
        A(f"buffer_load_dwordx4 {v4(64+4*i)}, v4, {s4(rWS)}, s{sH+i//4} offen offset:{1024*(i%4)} sc1")
    A("s_waitcnt vmcnt(0)")
    A(f"v_xor_b32 v{vX0}, v64, v36")
    for i in range(1, 32):
        A(f"v_bitop3_b32 v{vX0}, v{vX0}, v{64+i}, v{36+i%4} bitop3:0xf6")
    A(f"v_and_b32 v{vX0}, 15, v{vX0}\nv_cmp_ne_u32 vcc, 0, v{vX0}\ns_cbranch_vccz L_qok")
    A(f"s_sleep {qsleep}\ns_add_u32 s{sSPIN}, s{sSPIN}, 1\ns_cmp_lt_u32 s{sSPIN}, {qtry}\ns_cbranch_scc1 L_qpoll")
    A(f"s_cmp_lg_u32 s{sSPIN}, {qtry}\ns_cbranch_scc1 L_qflip")
    A(f"s_xor_b32 s{sT1}, s{sT1}, {WS_QXFAR}")
    A("s_mov_b32 exec_lo, 0x00ff00ff\ns_mov_b32 exec_hi, 0x00ff00ff")
    A(f"buffer_store_dwordx2 v[34:35], v6, {s4(rWS)}, s{sT1} offen sc1")
    A("s_mov_b64 exec, -1")
    A("L_qflip:")
    A(f"s_xor_b32 s{sH}, s{sH}, {WS_QXFAR}\ns_xor_b32 s{sH+1}, s{sH+1}, {WS_QXFAR}\ns_xor_b32 s{sMODE}, s{sMODE}, 3")
    for k in range(4):
        A(f"v_xor_b32 v{36+k}, s{sXC}, v{36+k}")
    A(f"s_cmp_lt_u32 s{sSPIN}, s{sLIM}\ns_cbranch_scc1 L_qpoll")
    A("L_qok:")
    for e in range(8):
        A(f"v_add_f32 v{64+e}, v{64+e}, v{72+e}\nv_add_f32 v{80+e}, v{80+e}, v{88+e}")
    for e in range(8):
        A(f"v_add_f32 v{64+e}, v{64+e}, v{80+e}")
    for e in range(4):
        A(f"v_cvt_pk_bf16_f32 v{64+e}, v{64+2*e}, v{65+2*e}")
    A(f"v_lshrrev_b32 v6, 4, v1\nv_lshlrev_b32 v6, 7, v6\nv_and_b32 v5, 3, v1\nv_lshl_add_u32 v6, v5, 5, v6")
    A(f"v_and_b32 v5, 12, v1\nv_add_u32 v6, v6, v5")
    for e in range(4):
        A(f"ds_write_b32 v6, v{64+e} offset:{L_Q + 16*(e&1) + 512*(e>>1)}")
    lds_flag(F_QH, val=f"s{sMODE}")
    A("L_qwait:")
    vOWN, vOTH = 30, 31
    A(f"s_lshl_b32 s{sT2}, s{sC}, 2\nv_mov_b32 v{vOWN}, s{sT2}\nv_xor_b32 v{vOTH}, 4, v{vOWN}")
    vQV, vKT, vS, vT, vMAX, vAD, vKA, vPA, vDN = 32, 96, 160, 164, 172, 176, 184, 188, 189
    A("v_and_b32 v5, 3, v1\nv_lshlrev_b32 v5, 10, v5\nv_bfe_u32 v6, v1, 2, 2\nv_lshl_add_u32 v5, v6, 8, v5")
    A(f"v_lshrrev_b32 v6, 4, v1\nv_xor_b32 v6, v6, v1\nv_and_b32 v6, 15, v6\nv_lshl_add_u32 v{vKA}, v6, 4, v5")
    for n in range(1, 4):
        A(f"v_xor_b32 v{vKA+n}, {64*n}, v{vKA}")
    A(f"v_and_b32 v5, 3, v1\nv_lshlrev_b32 v5, 6, v5\nv_lshrrev_b32 v6, 4, v1\nv_lshl_add_u32 v5, v6, 4, v5")
    A(f"v_mov_b32 v29, v5")
    A(f"v_and_b32 v6, 8, v1\nv_lshl_add_u32 v5, v6, 5, v5\nv_and_b32 v6, 4, v1\nv_lshl_add_u32 v5, v6, 1, v5")
    A(f"s_lshl_b32 s{sT2}, s{sC}, 9\nv_add_u32 v{vPA}, s{sT2}, v5")
    A(f"v_mov_b32 v{vMAX}, {hex(f2u(-3e38))}")
    A(f"s_add_u32 s{sT2}, s{sC}, 2\nv_mov_b32 v{vDN}, s{sT2}")
    A("v_and_b32 v6, 3, v1\nv_lshlrev_b32 v6, 8, v6\nv_lshrrev_b32 v5, 4, v1\nv_lshl_add_u32 v6, v5, 4, v6")
    A(f"s_mov_b32 s{sFL}, 0")
    lds_wait(F_QH, sMODE, 1, "qh", sleep=1)
    stamp(2)
    for s in range(4):
        A(f"ds_read_b128 {v4(vKT+4*s)}, v6 offset:{L_Q + 64*s}")
    lgkm(0)
    for b in range(4):
        A(f"s_mov_b32 vcc_lo, {hex(0x000f000f << (4*b))}\ns_mov_b32 vcc_hi, {hex(0x000f000f << (4*b))}")
        for i in range(16):
            A(f"v_cndmask_b32 v{vQV+16*b+i}, 0, v{vKT+i}, vcc")
    A(f"s_lshl_b32 s{sLB}, s{sC}, 14\ns_lshl_b32 s{sTHR}, s{sC}, 1\ns_add_u32 s{sTHR}, s{sTHR}, {U0+2}")
    A(f"s_mov_b32 s{sCNT}, 0")
    A("L_p1:")
    for n in range(4):
        A(f"v_add_u32 v{vAD+n}, s{sLB}, v{vKA+n}")
    lds_wait(F_RDY, sFL, f"s{sTHR}", "krdy", sleep=csleep, cached=True)
    for b in range(4):
        for n in range(4):
            A(f"ds_read_b128 {v4(vKT+16*b+4*n)}, v{vAD+n} offset:{L_RING + 4096*b}")
    for b in range(4):
        lgkm(12 - 4 * b)
        if b == 3:
            A(f"ds_write_b32 v{vOWN}, v{vDN} offset:{F_DONE}")
        for n in range(4):
            c = "0" if b + n == 0 else v4(vS)
            A(f"v_mfma_f32_16x16x32_bf16 {v4(vS)}, {v4(vKT+16*b+4*n)}, {v4(vQV+16*b+4*n)}, {c}")
    A(f"v_add_u32 v{vDN}, 2, v{vDN}\nv_min_u32 v{vDN}, 32, v{vDN}")
    next_slot(2)
    A(f"s_add_u32 s{sTHR}, s{sTHR}, 4\ns_add_u32 s{sCNT}, s{sCNT}, 1\ns_nop 1")
    A(f"v_cvt_pk_bf16_f32 v{vT}, v{vS}, v{vS+1}\nv_cvt_pk_bf16_f32 v{vT+1}, v{vS+2}, v{vS+3}")
    A(f"v_max3_f32 v{vMAX}, v{vMAX}, v{vS}, v{vS+1}\nv_max3_f32 v{vMAX}, v{vMAX}, v{vS+2}, v{vS+3}")
    for j in range(2):
        A(f"v_lshlrev_b32 v{vT+2+2*j}, 16, v{vT+j}\nv_and_b32 v{vT+3+2*j}, s{sHI}, v{vT+j}")
    for i in range(4):
        A(f"v_mul_f32 v{vT+2+i}, s{sSCALE}, v{vT+2+i}")
    A(f"v_cvt_pk_bf16_f32 v{vT}, v{vT+2}, v{vT+3}\nv_cvt_pk_bf16_f32 v{vT+1}, v{vT+4}, v{vT+5}")
    A(f"ds_write_b64 v{vPA}, {v2(vT)} offset:{L_P}\nv_add_u32 v{vPA}, 1024, v{vPA}")
    A(f"s_cmp_lt_u32 s{sCNT}, 16\ns_cbranch_scc1 L_p1")
    stamp(4, 1)
    wave_red(vMAX, vX0, "v_max_f32", (8, 4))
    A(f"v_and_b32 v5, 3, v1\nv_lshlrev_b32 v5, 2, v5\nv_lshl_add_u32 v6, v{vOWN}, 2, v5\nv_xor_b32 v5, 16, v6")
    A(f"ds_write_b32 v6, v{vMAX} offset:{L_MX}")
    lds_flag(F_MX, vaddr=vOWN)
    A(f"v_subrev_u32 v{vPA}, 16384, v{vPA}")
    lds_wait(F_MX, sT0, 1, "mx", sleep=0, vaddr=vOTH)
    A(f"ds_read_b32 v{vX1}, v5 offset:{L_MX}")
    for i in range(16):
        A(f"ds_read_b64 {v2(32+2*i)}, v{vPA} offset:{L_P + 1024*i}")
    lgkm(0)
    vMN, vLSUM = 173, 174
    A(f"v_max_f32 v{vMAX}, v{vMAX}, v{vX1}")
    rnd_bf16(vMAX)
    A(f"v_mul_f32 v{vMAX}, s{sSCALE}, v{vMAX}")
    rnd_bf16(vMAX)
    A(f"v_mul_f32 v{vMN}, s{sLOG2E}, v{vMAX}\nv_mov_b32 v{vLSUM}, 0")
    for i in range(0, 16, 2):
        E = 96
        for j in range(4):
            A(f"v_lshlrev_b32 v{E+2*j}, 16, v{32+2*i+j}\nv_and_b32 v{E+2*j+1}, s{sHI}, v{32+2*i+j}")
        for j in range(8):
            A(f"v_fma_f32 v{E+j}, v{E+j}, s{sLOG2E}, -v{vMN}")
        for j in range(8):
            A(f"v_exp_f32 v{E+j}, v{E+j}")
        A("s_nop 0")
        for j in range(4):
            A(f"v_cvt_pk_bf16_f32 v{32+2*i+j}, v{E+2*j}, v{E+2*j+1}")
        A(f"ds_write_b64 v{vPA}, {v2(32+2*i)} offset:{L_P + 1024*i}\nds_write_b64 v{vPA}, {v2(34+2*i)} offset:{L_P + 1024*(i+1)}")
        for j in range(4):
            A(f"v_add_f32 v{E+j}, v{E+j}, v{E+4+j}")
        A(f"v_add_f32 v{E}, v{E}, v{E+1}\nv_add_f32 v{E+2}, v{E+2}, v{E+3}\nv_add_f32 v{vLSUM}, v{vLSUM}, v{E}\nv_add_f32 v{vLSUM}, v{vLSUM}, v{E+2}")
    wave_red(vLSUM, vX0, "v_add_f32", (8, 4))
    A(f"v_lshlrev_b32 v6, 1, v6\nv_mov_b32 v{vLSUM+1}, v{vMN}\nds_write_b64 v6, {v2(vLSUM)} offset:{L_LS}")
    lds_flag(F_PD, vaddr=vOWN)
    vO, vVF, vPF, vVA = 32, 48, 80, 184
    A("v_and_b32 v5, 12, v1\nv_lshrrev_b32 v6, 4, v1\nv_add_u32 v6, v6, v5\nv_lshlrev_b32 v6, 8, v6")
    A(f"v_lshrrev_b32 v{vX1}, 3, v1\nv_and_b32 v{vX1}, 2, v{vX1}\nv_or_b32 v5, v5, v{vX1}")
    A(f"v_bfe_u32 v{vX1}, v1, 1, 1\nv_xor_b32 v5, v5, v{vX1}\ns_lshl_b32 s{sT2}, s{sC}, 3\nv_xor_b32 v5, s{sT2}, v5")
    A(f"v_lshl_add_u32 v6, v5, 4, v6\nv_and_b32 v5, 1, v1\nv_lshl_add_u32 v{vVA}, v5, 3, v6")
    for n in range(1, 4):
        A(f"v_xor_b32 v{vVA+n}, {32*n}, v{vVA}")
    for i in range(16):
        A(f"v_mov_b32 v{vO+i}, 0")
    A(f"v_mov_b32 v{vDN}, 33\nv_mov_b32 v{vPA}, v29")
    A(f"s_mov_b32 s{sLB}, {(32 % NSLOT) * 16384}\ns_mov_b32 s{sTHR}, {U0+64+1}\ns_mov_b32 s{sCNT}, 0")
    lds_wait(F_PD, sT0, 1, "pd", sleep=0, vaddr=vOTH)
    stamp(5, 1)
    vSC = 28
    A("L_p2:")
    for n in range(4):
        A(f"v_add_u32 v{vAD+n}, s{sLB}, v{vVA+n}")
    A(f"s_cmp_lg_u32 s{sCNT}, 31\ns_cbranch_scc1 L_nosc")
    lds_wait(F_SC, sT0, 1, "sc", sleep=1)
    A(f"v_and_b32 v5, 3, v1\nv_lshlrev_b32 v5, 2, v5\nds_read_b32 v{vSC}, v5 offset:{L_SC}")
    A("L_nosc:")
    for ks in range(2):
        lds_wait(F_RDY, sFL, f"s{sTHR}", "vrdy", sleep=csleep, cached=True)
        A(f"ds_read_b128 {v4(vPF+4*ks)}, v{vPA} offset:{L_P + 256*ks}")
        for T in range(4):
            for ih in range(2):
                A(f"ds_read_b64_tr_b16 {v2(vVF+16*ks+4*T+2*ih)}, v{vAD+T} offset:{L_RING + 8192*ks + 4096*ih}")
        A(f"s_add_u32 s{sTHR}, s{sTHR}, 1")
        for T in range(4):
            lgkm(6 - 2 * T)
            if ks == 1 and T == 3:
                A(f"ds_write_b32 v{vOWN}, v{vDN} offset:{F_DONE}")
            A(f"v_mfma_f32_16x16x32_bf16 {v4(vO+4*T)}, {v4(vVF+16*ks+4*T)}, {v4(vPF+4*ks)}, {v4(vO+4*T)}")
    A(f"v_add_u32 v{vDN}, 1, v{vDN}\nv_add_u32 v{vPA}, 512, v{vPA}")
    next_slot(1)
    A(f"s_add_u32 s{sCNT}, s{sCNT}, 1\ns_cmp_lt_u32 s{sCNT}, 32\ns_cbranch_scc1 L_p2")
    stamp(3)
    A("L_cepi:")
    A(f"v_lshrrev_b32 v6, 2, v1\nv_lshlrev_b32 v6, 11, v6\nv_and_b32 v5, 3, v1\nv_lshl_add_u32 v6, v5, 4, v6")
    A(f"s_mov_b32 vcc_lo, 0xf0f0f0f0\ns_mov_b32 vcc_hi, 0xf0f0f0f0\ns_mov_b32 s{sM}, 0xff00ff00\ns_mov_b32 s{sM+1}, 0xff00ff00")
    for r in range(4):
        A(f"v_cndmask_b32 v{vO+r}, v{vO+r}, v{vO+4+r}, vcc")
    for r in range(4):
        A(f"v_cndmask_b32 v{vO+8+r}, v{vO+8+r}, v{vO+12+r}, vcc")
    A(f"s_lshl_b32 s{sT1}, s{sX8}, 16\ns_lshl_b32 s{sT2}, s{sC}, 15\ns_add_u32 s{sT1}, s{sT1}, s{sT2}")
    A(f"s_lshl_b32 s{sT2}, s{sJJ}, 6\ns_add_u32 s{sT1}, s{sT1}, s{sT2}\ns_add_u32 s{sT1}, s{sT1}, {WS_H1}")
    for r in range(4):
        A(f"v_cndmask_b32 v{vO+r}, v{vO+r}, v{vO+8+r}, {s2(sM)}")
    for r in range(4):
        A(f"v_mul_f32 v{vO+r}, v{vO+r}, v{vSC}")
    for r in range(4):
        embed(vO + r, vO + r, TX4 + r)
    store2(f"buffer_store_dwordx4 {v4(vO)}, v6, {s4(rWS)}, s{sT1} offen", f"s_cmp_eq_u32 s{sMODE}, 2")
    A("s_branch L_tail")

    A("L_help:")
    vG, vXP = 56, 58
    A(f"s_cmp_ge_u32 s{sJJ}, 28\ns_cbranch_scc1 L_h3f")
    A(f"s_and_b32 s{sT3}, s{sSUB}, 3")
    make_tags()
    lds_wait(F_XN, sT0, 1, "xn", sleep=2)
    slice_mv(sT3, L_GU, 2, after_read=lambda: lds_flag(F_GUP))
    embed(32, 32, TX2); embed(33, 33, TX2 + 1)
    lds_wait(F_QH, sMODE, 1, "qh3", sleep=4)
    A(f"s_lshl_b32 s{sT0}, s{sCB}, 11\ns_add_u32 s{sT0}, s{sT0}, {WS_G1}\ns_lshl_b32 s{sT1}, s{sSUB}, 8\ns_add_u32 s{sT1}, s{sT1}, s{sT0}")
    if skip & 4: A("s_branch L_hstat")
    A("s_mov_b32 exec_lo, 0x00ff00ff\ns_mov_b32 exec_hi, 0x00ff00ff")
    store2(f"buffer_store_dwordx2 v[32:33], v6, {s4(rWS)}, s{sT1} offen",
           f"s_cmp_lt_u32 s{sJJ}, 24\ns_cselect_b32 s{sT2}, s{sMODE}, 1\ns_cmp_eq_u32 s{sT2}, 2")
    A("s_mov_b64 exec, -1")
    stamp(1)
    lds_wait(F_RDY, sFL, g2gate, "g2gate", sleep=16)
    for i in range(8):
        A(f"ds_read_b128 {v4(64+4*i)}, v4 offset:{L_WD + 1024*i}")
    poll([f"buffer_load_dwordx4 {v4(32+4*i)}, v4, {s4(rWS)}, s{sT0} offen offset:{1024*i} sc1" for i in range(2)],
         chk4([32, 36]), "g1poll", sleep=32)
    for e in range(8):
        swap_red(32 + e, vX0, "v_add_f32")
        rnd_bf16(32 + e)
    for e in range(4):
        sigmoid(32 + e, 32 + e)
        rnd_bf16(32 + e)
        A(f"v_mul_f32 v{32+e}, v{32+e}, v{36+e}")
    A("v_cvt_pk_bf16_f32 v32, v32, v33\nv_cvt_pk_bf16_f32 v33, v34, v35")
    A("v_and_b32 v5, 3, v1\nv_lshlrev_b32 v5, 5, v5\nv_and_b32 v6, 12, v1\nv_add_u32 v5, v5, v6\nv_lshlrev_b32 v6, 4, v2")
    A(f"ds_write_b32 v5, v32 offset:{L_HB}\nds_write_b32 v5, v33 offset:{L_HB+16}\nds_read_b128 v[20:23], v6 offset:{L_HB}")
    lgkm(0)
    matvec8(64, [f"v{20+k}" for k in range(4)], 32, 40)
    reduce8(32)
    A(f"v_lshrrev_b32 v6, 4, v1\nv_lshlrev_b32 v6, 3, v6\nv_lshl_add_u32 v6, v3, 1, v6\nv_lshlrev_b32 v5, 2, v1")
    A(f"ds_write_b64 v6, v[32:33] offset:{L_HB}\nds_read_b32 v32, v5 offset:{L_HB}")
    A(f"v_and_b32 v5, 7, v1\nv_lshlrev_b32 v5, 2, v5\nv_lshrrev_b32 v33, v5, s{sTAG}\nv_and_b32 v33, 15, v33")
    A(f"v_lshrrev_b32 v6, 4, v1\nv_lshlrev_b32 v6, 11, v6\nv_and_b32 v5, 15, v1\nv_lshl_add_u32 v6, v5, 2, v6")
    A(f"s_lshl_b32 s{sT1}, s{sSUB}, 13\ns_lshl_b32 s{sT2}, s{sCB}, 6\ns_add_u32 s{sT1}, s{sT1}, s{sT2}\ns_add_u32 s{sT1}, s{sT1}, {WS_GL}")
    lgkm(0)
    embed(32, 32, 33)
    if not skip & 1:
        A(f"buffer_store_dword v32, v6, {s4(rWS)}, s{sT1} offen sc1")
    A("s_branch L_hstat")
    A("L_h3f:")
    make_tags()
    lds_flag(F_GUP)
    if skip & 2: A("s_branch L_hstat")
    lds_wait(F_RDY, sFL, g3gate, "g3gate", sleep=16)
    A(f"s_lshl_b32 s{sT0}, s{sX8}, 2\ns_add_u32 s{sT0}, s{sT0}, s{sJJ}\ns_sub_u32 s{sT0}, s{sT0}, 28")
    A(f"v_and_b32 v6, 3, v1\nv_lshlrev_b32 v6, 3, v6\nv_lshrrev_b32 v5, 5, v1\nv_lshl_add_u32 v6, v5, 2, v6\ns_lshl_b32 s{sT1}, s{sT0}, 5")
    A(f"buffer_load_dword v{vXP}, v6, {s4(rA)}, s{sT1} offen")
    A(f"s_lshl_b32 s{sH}, s{sT0}, 11\ns_add_u32 s{sH}, s{sH}, {WS_GL}")
    A(f"v_min_u32 v6, 47, v1\nv_and_b32 v6, 60, v6\nv_and_b32 v5, 3, v1\nv_or_b32 v6, v6, v5\nv_lshlrev_b32 v6, 4, v6")
    poll([f"buffer_load_dwordx4 v[64:67], v4, {s4(rWS)}, s{sH} offen sc1",
          f"buffer_load_dwordx4 v[68:71], v6, {s4(rWS)}, s{sH} offen offset:1024 sc1"], chk4([64, 68]), "gpoll", sleep=64)
    A("s_mov_b32 exec_hi, 0xffff")
    for e in range(4):
        A(f"v_add_f32 v{64+e}, v{64+e}, v{68+e}")
    A("s_mov_b64 exec, -1")
    red4(64)
    for e in range(2):
        rnd_bf16(64 + e)
        sigmoid(68, 64 + e)
        A(f"v_mul_f32 v{vG+e}, v{64+e}, v68")
        rnd_bf16(vG + e)
    A("L_hstat:")
    stamp(2)
    lds_wait(F_PD, sT0, 1, "pdh", sleep=16, pair=True)
    lds_wait(F_QH, sMODE, 1, "qh4", sleep=4)
    A(f"v_and_b32 v5, 3, v1\nv_lshlrev_b32 v5, 3, v5")
    A(f"ds_read_b64 v[32:33], v5 offset:{L_LS}\nds_read_b32 v34, v5 offset:{L_LS+32}")
    lgkm(0)
    A(f"v_add_f32 v32, v32, v34\nv_log_f32 v32, v32\nv_mov_b32 v35, s{sTAG}\nv_add_f32 v34, v32, v33")
    A(f"s_lshl_b32 s{sT0}, s{sX8}, 10\ns_add_u32 s{sT0}, s{sT0}, {WS_LS}\ns_lshl_b32 s{sT1}, s{sJJ}, 5\ns_add_u32 s{sT1}, s{sT1}, s{sT0}")
    A("s_mov_b64 exec, 15")
    store2(f"buffer_store_dwordx2 v[34:35], v5, {s4(rWS)}, s{sT1} offen", f"s_cmp_eq_u32 s{sMODE}, 2")
    A("s_mov_b64 exec, -1")
    lds_wait(F_RDY, sFL, lsgate, "lsgate", sleep=16)
    A(f"v_lshlrev_b32 v6, 3, v1")
    poll([f"buffer_load_dwordx2 {v2(36+2*i)}, v6, {s4(rWS)}, s{sT0} offen offset:{512*i} sc1" for i in range(2)],
         [(37, f"s{sTAG}"), (39, f"s{sTAG}")], "lspoll", sleep=16, full=True)
    A("v_max_f32 v40, v36, v38")
    wave_red(40, vX0, "v_max_f32", (8, 4))
    A("v_sub_f32 v36, v36, v40\nv_sub_f32 v38, v38, v40\nv_exp_f32 v36, v36\nv_exp_f32 v38, v38\nv_sub_f32 v33, v33, v40\nv_add_f32 v36, v36, v38")
    wave_red(36, vX0, "v_add_f32", (8, 4))
    A("v_exp_f32 v33, v33\nv_rcp_f32 v36, v36\nv_lshrrev_b32 v5, 1, v5\nv_mul_f32 v33, v33, v36")
    A(f"ds_write_b32 v5, v33 offset:{L_SC}")
    lds_flag(F_SC)
    stamp(3)
    if dry:
        A(f"s_mov_b32 s{rWS+2}, 0\ns_mov_b32 s{sLIM}, 0\ns_mov_b32 s{sOSZ}, 0\ns_mov_b32 s{sC}, 0")
        A("s_branch L_cepi")
        A("L_dryret:")
        A(f"s_mov_b64 exec, -1\ns_mov_b32 s{rWS+2}, {hex(WS_SIZE)}\ns_mov_b32 s{sLIM}, 0x40000\ns_mov_b32 s{sOSZ}, 1024")
    lds_wait(F_RDY, sFL, U0 + 128, "endgate", sleep=1)

    A("L_tail:")
    stamp(4, 0)
    A(f"s_lshl_b32 s{sT2}, s{sW}, 12\nv_lshl_add_u32 v6, v1, 2, s{sT2}")
    for n in range(16):
        A(f"ds_read_b32 v{64+n}, v6 offset:{L_WO + 256*n}")
    A(f"s_lshl_b32 s{sT1}, s{sX8}, 16\ns_and_b32 s{sT2}, s{sJJ}, 28\ns_add_u32 s{sT2}, s{sT2}, s{sW}\ns_lshl_b32 s{sT2}, s{sT2}, 11")
    A(f"s_add_u32 s{sT1}, s{sT1}, s{sT2}\ns_add_u32 s{sT1}, s{sT1}, {WS_H1}")
    A(f"v_lshlrev_b32 v53, 3, v0\nv_lshlrev_b32 v54, 3, v1")
    if h2lay == 0:
        A(f"v_lshrrev_b32 v5, 1, v3\nv_lshl_add_u32 v6, v2, 12, v5")
    elif h2lay == 1:
        A(f"v_lshrrev_b32 v5, 1, v3\nv_lshl_add_u32 v6, v2, 13, v5")
    else:
        A(f"v_and_b32 v5, 15, v1\nv_lshlrev_b32 v5, 3, v5\nv_lshrrev_b32 v6, 4, v1\nv_lshl_add_u32 v6, v6, 13, v5")
    lgkm(0)
    for u in range(8):
        A(f"v_perm_b32 v{80+2*u}, v{65+2*u}, v{64+2*u}, s{sSELL}\nv_perm_b32 v{81+2*u}, v{65+2*u}, v{64+2*u}, s{sSELH}")
    poll([f"buffer_load_dwordx4 {v4(40+4*i)}, v4, {s4(rWS)}, s{sT1} offen offset:{1024*i} sc1" for i in range(2)],
         chk4([40, 44]), "h1poll", sleep=h1sleep)
    stamp(5, 0)
    for e in range(4):
        A(f"v_add_f32 v{40+e}, v{40+e}, v{44+e}")
    red4(40)
    A(f"v_cvt_pk_bf16_f32 v40, v40, v41\ns_nop 0")
    for u in range(8):
        A(f"v_readlane_b32 s{sH+u}, v40, {32*(u&1) + (u>>1)}")
    for u in range(8):
        for z in range(2):
            c = "0" if u == 0 else f"v{48+z}"
            A(f"v_dot2_f32_bf16 v{48+z}, s{sH+u}, v{80+2*u+z}, {c}")
    A("s_nop 2")
    A(f"ds_write_b64 v53, v[48:49] offset:{L_RED}")
    if dry:
        A(f"s_cmp_eq_u32 s{sOSZ}, 0\ns_cbranch_scc1 L_t2b")
    A("s_waitcnt lgkmcnt(0)\ns_barrier")
    A(f"s_cmp_lg_u32 s{sW}, 0\ns_cbranch_scc1 L_t3")
    A("L_t2b:")
    for p in range(3):
        A(f"ds_read_b64 {v2(42+2*p)}, v54 offset:{L_RED + 512*(p+1)}")
    e1 = 1 if h2lay else 0
    A(f"s_and_b32 s{sT1}, s{sJJ}, 3\ns_lshl_b32 s{sT1}, s{sT1}, {16 if h2lay == 1 else 15}\ns_lshl_b32 s{sT2}, s{sX8}, {9+e1}\ns_add_u32 s{sT1}, s{sT1}, s{sT2}")
    A(f"s_lshr_b32 s{sT2}, s{sJJ}, 2\ns_lshl_b32 s{sT2}, s{sT2}, {6+e1}\ns_add_u32 s{sT1}, s{sT1}, s{sT2}\ns_add_u32 s{sT1}, s{sT1}, {WS_H2}")
    lgkm(0)
    A("v_add_f32 v48, v48, v42\nv_add_f32 v49, v49, v43\nv_add_f32 v44, v44, v46\nv_add_f32 v45, v45, v47\nv_add_f32 v48, v48, v44\nv_add_f32 v49, v49, v45")
    embed(48, 48, TX2); embed(49, 49, TX2 + 1)
    A(f"buffer_store_dwordx2 v[48:49], v6, {s4(rWS)}, s{sT1} offen {h2flags}")
    if dry:
        A(f"s_cmp_eq_u32 s{sOSZ}, 0\ns_cbranch_scc1 L_t3b")
    A("s_branch L_fin")
    A("L_t3:")
    A(f"s_cmp_lg_u32 s{sW}, 3\ns_cbranch_scc1 L_fin")
    A(f"s_cmp_lt_u32 s{sJJ}, 28\ns_cbranch_scc1 L_fin")
    A("L_t3b:")
    A(f"s_lshl_b32 s{sT0}, s{sX8}, 2\ns_add_u32 s{sT0}, s{sT0}, s{sJJ}\ns_sub_u32 s{sT0}, s{sT0}, 28\ns_and_b32 s{sT0}, s{sT0}, 31")
    if h2lay == 0:
        A(f"s_lshl_b32 s{sT1}, s{sT0}, 12\ns_add_u32 s{sT1}, s{sT1}, {WS_H2}\nv_mov_b32 v55, v4")
    else:
        if h2lay == 1:
            A(f"s_lshl_b32 s{sT1}, s{sT0}, 13")
        else:
            A(f"s_lshr_b32 s{sT1}, s{sT0}, 1\ns_lshl_b32 s{sT1}, s{sT1}, 13\ns_and_b32 s{sT2}, s{sT0}, 1\ns_lshl_b32 s{sT2}, s{sT2}, 6\ns_add_u32 s{sT1}, s{sT1}, s{sT2}")
        A(f"s_add_u32 s{sT1}, s{sT1}, {WS_H2}\nv_lshrrev_b32 v55, 2, v1\nv_lshlrev_b32 v55, 7, v55\nv_and_b32 v5, 3, v1\nv_lshl_add_u32 v55, v5, 4, v55")
    A(f"s_add_u32 s{sT2}, s{sT1}, {4096 if h2lay else 2048}")
    A(f"v_and_b32 v5, 3, v1\nv_lshlrev_b32 v5, 1, v5\nv_lshrrev_b32 v6, 5, v1\nv_add_u32 v5, v5, v6\nv_lshlrev_b32 v52, 2, v5")
    A(f"v_lshlrev_b32 v50, 16, v{vXP}\nv_and_b32 v51, s{sHI}, v{vXP}")
    srd(rA, sOUT, f"s{sOSZ}")
    poll([f"buffer_load_dwordx4 {v4(64+4*i)}, v55, {s4(rWS)}, s{sT1+i//2} offen offset:{(2048 if h2lay else 1024)*(i%2)} {h2ld}" for i in range(4)],
         chk4([64, 68, 72, 76]), "h2poll", sleep=h2sleep)
    stamp(6, 0)
    for e in range(4):
        A(f"v_add_f32 v{64+e}, v{64+e}, v{68+e}\nv_add_f32 v{72+e}, v{72+e}, v{76+e}")
    for e in range(4):
        A(f"v_add_f32 v{64+e}, v{64+e}, v{72+e}")
    red4(64)
    A(f"s_lshl_b32 s{sT1}, s{sT0}, 5")
    A(f"v_cvt_pk_bf16_f32 v64, v64, v65\nv_and_b32 v65, s{sHI}, v64\nv_lshlrev_b32 v64, 16, v64")
    A(f"v_mul_f32 v64, v64, v{vG}\nv_mul_f32 v65, v65, v{vG+1}")
    A(f"v_cvt_pk_bf16_f32 v64, v64, v65\nv_and_b32 v65, s{sHI}, v64\nv_lshlrev_b32 v64, 16, v64")
    A("v_add_f32 v64, v64, v50\nv_add_f32 v65, v65, v51\nv_cvt_pk_bf16_f32 v64, v64, v65")
    A("s_mov_b32 exec_lo, 15\ns_mov_b32 exec_hi, 15")
    A(f"buffer_store_dword v64, v52, {s4(rA)}, s{sT1} offen {outflags}")
    if dry:
        A(f"s_cmp_eq_u32 s{sOSZ}, 0\ns_cbranch_scc1 L_dryret")
    A(f"s_cmp_lg_u32 s{sT0}, 0\ns_cbranch_scc1 L_fin")
    A(f"s_mov_b64 exec, 1\nv_mov_b32 v65, s{sTAG}")
    A(f"buffer_store_dword v65, v7, {s4(rWS)}, 0 offen offset:{WS_EPOCH} sc1")
    A("L_fin:")
    if stamps:
        A("s_mov_b64 exec, -1")
        A("s_waitcnt vmcnt(0)")
        stamp(7)
        A("s_waitcnt lgkmcnt(0)")
        if diag is not None:
            dw, dwg, di, dj, mult = diag
            A(f"s_cmp_lg_u32 s{sW}, {dw}\ns_cbranch_scc1 L_padout")
            if dwg >= 0:
                A(f"s_cmp_lg_u32 s2, {dwg}\ns_cbranch_scc1 L_padout")
            A(f"s_cmp_eq_u32 s{sST+2*di}, 0\ns_cbranch_scc1 L_padout")
            A(f"s_sub_u32 s{sT2}, s{sST+2*di}, s{sST+2*dj}\ns_mul_i32 s{sT2}, s{sT2}, {mult}\ns_min_u32 s{sT2}, s{sT2}, 100000")
            A(f"s_add_u32 s{sT2}, s{sT2}, s{sST}\ns_add_u32 s{sT2}, s{sT2}, 10000")
            A("L_pad:")
            A(f"s_memrealtime {s2(sH)}\ns_waitcnt lgkmcnt(0)\ns_sub_u32 s{sT3}, s{sH}, s{sT2}\ns_cmp_lt_i32 s{sT3}, 0\ns_cbranch_scc1 L_pad")
            A("L_padout:")
        if pad is not None:
            A(f"s_cmp_eq_u32 s{sST+2*pad}, 0\ns_cbranch_scc1 L_padout")
            A(f"s_add_u32 s{sT2}, s{sST+2*pad}, 10000")
            A("L_pad:")
            A(f"s_memrealtime {s2(sH)}\ns_waitcnt lgkmcnt(0)\ns_sub_u32 s{sT3}, s{sH}, s{sT2}\ns_cmp_lt_i32 s{sT3}, 0\ns_cbranch_scc1 L_pad")
            A("L_padout:")
        for i in range(8):
            A(f"v_mov_b32 v{96+i}, s{sST+2*i}")
        A(f"s_lshl_b32 s{sT1}, s2, 2\ns_add_u32 s{sT1}, s{sT1}, s{sW}\ns_lshl_b32 s{sT1}, s{sT1}, 5\ns_add_u32 s{sT1}, s{sT1}, {WS_STAMP}")
        A("s_mov_b64 exec, 1")
        A(f"buffer_store_dwordx4 v[96:99], v7, {s4(rWS)}, s{sT1} offen")
        A(f"buffer_store_dwordx4 v[100:103], v7, {s4(rWS)}, s{sT1} offen offset:16")
    A("L_end:")
    A("s_endpgm")

    out = HEADER
    out += f"; @launch grid=(256,1,1) block=(256,1,1) lds={LDS_BYTES}\n"
    out += '.amdgcn_target "amdgcn-amd-amdhsa--gfx950"\n.text\n'
    out += f".globl {KNAME}_kernel\n.p2align 8\n.type {KNAME}_kernel,@function\n"
    out += "\n".join(A.L) + "\n"
    out += f""".section .rodata,"a"
.p2align 6
.amdhsa_kernel {KNAME}_kernel
  .amdhsa_next_free_vgpr 192
  .amdhsa_next_free_sgpr 102
  .amdhsa_accum_offset 192
  .amdhsa_group_segment_fixed_size 0
  .amdhsa_kernarg_size 96
  .amdhsa_user_sgpr_count 2
  .amdhsa_user_sgpr_kernarg_segment_ptr 1
  .amdhsa_system_sgpr_workgroup_id_x 1
.end_amdhsa_kernel
"""
    return out


if __name__ == "__main__":
    kw = json.loads(sys.argv[2]) if len(sys.argv) > 2 else {}
    open(sys.argv[1], "w").write(gen(**kw))
```

```python
import sys, json, struct

KNAME = "recurrent_scan__gqa_block_cached__glu_gated_glu__decode"
HEADER = open("cdna_kernels/" + KNAME + ".s.ref").read().split("; Override launch")[0]

def f2u(x):
    return struct.unpack("<I", struct.pack("<f", x))[0]

LOG2E = 1.4426950408889634
WS_EPOCH = 0x0
WS_LS = 0x2000
WS_PG = 0x4000
WS_GP = 0x5000
WS_QX = 0x10000
WS_QXFAR = 0x100000
WS_G1 = 0x20000
WS_GL = 0x30000
WS_H1 = 0x40000
WS_H2 = 0xC0000
WS_STAMP = 0x1000000
WS_SIZE = 0x20000000
L_Q = 0
L_FLAG = 1024
F_RDY = L_FLAG
F_GUP = L_FLAG + 4
F_DONE = L_FLAG + 8
F_QH = L_FLAG + 16
F_XN = L_FLAG + 20
F_MX = L_FLAG + 24
F_PD = L_FLAG + 32
F_SC = L_FLAG + 40
F_WIN = L_FLAG + 44
L_MX = 1152
L_LS = 1216
L_SC = 1280
L_HB = 1536
L_RED = 2048
L_XN = L_RED
L_P = 4096
L_WO = 20480
L_WD = 36864
L_RING = 45056
NSLOT = 7
LDS_BYTES = L_RING + NSLOT * 16384
U0 = 7

sFL = 3
sMODE, sLIM, sI1, sO2 = 14, 15, 24, 25
sTW = 82
sPM = 48
sX, sK, sV, sWQ, sWO, sBX, sWG, sWU, sWD, sOUT, sDBG, sWS = 4, 6, 8, 10, 12, 14, 16, 18, 20, 22, 24, 26
rK, rV, rWS, rA, rB, rC, rD = 28, 32, 36, 40, 44, 48, 52
sW, sX8, sJJ, sCB, sSUB = 56, 57, 58, 59, 60
sC, sTHR, sCNT, sTAG = 61, 62, 63, 64
sSELL, sSELH, sSCALE, sLOG2E, sHI = 65, 66, 67, 68, 69
sT0, sT1, sT2, sT3 = 70, 71, 72, 73
sH = 74
sM = 82
sSPIN = 84
sLB = 85
sST = 86
TX4 = 8; TX2 = 12; vX0 = 14; vX1 = 15
vWO, vWT, vRW, vRR, vO2, vO1 = 192, 128, 208, 209, 210, 211


class G:
    def __init__(self):
        self.L = []
        self.n = 0
    def __call__(self, s):
        for line in s.strip("\n").split("\n"):
            self.L.append("    " + line.strip() if not line.strip().endswith(":") else line.strip())
    def label(self, base):
        self.n += 1
        return f"L_{base}_{self.n}"


def v4(r):
    return f"v[{r}:{r+3}]"
def v2(r):
    return f"v[{r}:{r+1}]"
def s4(r):
    return f"s[{r}:{r+3}]"
def s2(r):
    return f"s[{r}:{r+1}]"


def gen(kvflags="nt", wflags="nt", win=20, stamps=False, pad=None, qsleep=4, qgate=0, g2gate=24, g3gate=48,
        lsgate=100, h1sleep=0, h2sleep=0, csleep=0, lprio=0, smode=0, skip=0, prog=False, win2=0, last=6, force=0, qtry=96, outflags='', diag=None, prept=30, dry=True,
        pace=1, wins=(20, 22, 24, 28), c0=0, gs=8, endstop=48, psleep=16, bias=0, scal=False, gper=0, gbias=0, pld='sc1', unq=2, gsh=0, gmin=0, gmax=1024, presleep=0, touch=64, ackwait=True):
    A = G()

    def srd(r, base, size):
        A(f"s_mov_b32 s{r}, s{base}\ns_mov_b32 s{r+1}, s{base+1}\ns_mov_b32 s{r+2}, {size}\ns_mov_b32 s{r+3}, 0x20000")

    def stamp(i, mode=None):
        if stamps and (mode is None or mode == smode):
            A(f"s_memrealtime {s2(sST + 2 * i)}")

    def lgkm(n):
        A(f"s_waitcnt lgkmcnt({n})")

    def swap_red(r, t, op, kinds=("16", "32")):
        for k in kinds:
            A(f"v_mov_b32 v{t}, v{r}\ns_nop 1\nv_permlane{k}_swap_b32 v{r}, v{t}\ns_nop 1\n{op} v{r}, v{r}, v{t}")

    def wave_red(r, t, op, rors):
        for k in rors:
            A(f"s_nop 1\n{op} v{r}, v{r}, v{r} row_ror:{k}")
        swap_red(r, t, op)

    def rnd_bf16(r):
        A(f"v_cvt_pk_bf16_f32 v{r}, v{r}, v{r}\nv_and_b32 v{r}, 0xffff0000, v{r}")

    def ln_stats(X, mean, rstd, F):
        D = F + 8
        for k in range(4):
            A(f"v_lshlrev_b32 v{F+2*k}, 16, v{X+k}\nv_and_b32 v{F+2*k+1}, s{sHI}, v{X+k}")
        A(f"v_add_f32 v{mean}, v{F}, v{F+1}")
        for k in range(2, 8):
            A(f"v_add_f32 v{mean}, v{mean}, v{F+k}")
        wave_red(mean, vX0, "v_add_f32", (8, 4, 2, 1))
        A(f"v_mul_f32 v{mean}, {hex(f2u(1/512))}, v{mean}")
        for k in range(8):
            A(f"v_sub_f32 v{D+k}, v{F+k}, v{mean}")
        A(f"v_mul_f32 v{rstd}, v{D}, v{D}")
        for k in range(1, 8):
            A(f"v_fmac_f32 v{rstd}, v{D+k}, v{D+k}")
        wave_red(rstd, vX0, "v_add_f32", (8, 4, 2, 1))
        A(f"v_mul_f32 v{rstd}, {hex(f2u(1/512))}, v{rstd}")
        rnd_bf16(mean); rnd_bf16(rstd)
        A(f"v_add_f32 v{rstd}, {hex(f2u(1e-5))}, v{rstd}")
        rnd_bf16(rstd)
        A(f"v_sqrt_f32 v{rstd}, v{rstd}\ns_nop 0")
        rnd_bf16(rstd)
        A(f"v_rcp_f32 v{rstd}, v{rstd}")

    def ln_apply(X, mean, rstd, D):
        for k in range(4):
            A(f"v_lshlrev_b32 v{D+2*k}, 16, v{X+k}\nv_and_b32 v{D+2*k+1}, s{sHI}, v{X+k}")
        for k in range(8):
            A(f"v_sub_f32 v{D+k}, v{D+k}, v{mean}")
        for k in range(4):
            A(f"v_cvt_pk_bf16_f32 v{X+k}, v{D+2*k}, v{D+2*k+1}")
        for k in range(4):
            A(f"v_lshlrev_b32 v{D+2*k}, 16, v{X+k}\nv_and_b32 v{D+2*k+1}, s{sHI}, v{X+k}")
        for k in range(8):
            A(f"v_mul_f32 v{D+k}, v{D+k}, v{rstd}")
        for k in range(4):
            A(f"v_cvt_pk_bf16_f32 v{X+k}, v{D+2*k}, v{D+2*k+1}")

    def matvec8(W, xs, acc, tmp, first=True):
        for j in range(4):
            for u in range(4):
                A(f"v_perm_b32 v{tmp+2*u}, v{W+(2*j+1)*4+u}, v{W+(2*j)*4+u}, s{sSELL}")
                A(f"v_perm_b32 v{tmp+2*u+1}, v{W+(2*j+1)*4+u}, v{W+(2*j)*4+u}, s{sSELH}")
            for e in range(8):
                c = "0" if (j == 0 and first) else f"v{acc+e}"
                A(f"v_dot2_f32_bf16 v{acc+e}, {xs[j]}, v{tmp+e}, {c}")
        A("s_nop 2")

    def reduce8(acc):
        A("s_nop 1")
        for e in range(4):
            A(f"v_permlane32_swap_b32 v{acc+e}, v{acc+4+e}")
        A("s_nop 1")
        for e in range(4):
            A(f"v_add_f32 v{acc+e}, v{acc+e}, v{acc+4+e}")
        A("s_nop 1")
        for e in range(2):
            A(f"v_permlane16_swap_b32 v{acc+e}, v{acc+2+e}")
        A("s_nop 1")
        for e in range(2):
            A(f"v_add_f32 v{acc+e}, v{acc+e}, v{acc+2+e}")
        A("s_nop 0")
        for e in range(2):
            A(f"v_add_f32 v{acc+e}, v{acc+e}, v{acc+e} row_ror:8")
        A("s_nop 0")

    def red4(a):
        A("s_nop 1")
        A(f"v_permlane32_swap_b32 v{a}, v{a+2}\nv_permlane32_swap_b32 v{a+1}, v{a+3}")
        A("s_nop 0")
        A(f"v_add_f32 v{a}, v{a}, v{a+2}\nv_add_f32 v{a+1}, v{a+1}, v{a+3}")
        for k in (8, 4):
            A("s_nop 0")
            A(f"v_add_f32 v{a}, v{a}, v{a} row_ror:{k}\nv_add_f32 v{a+1}, v{a+1}, v{a+1} row_ror:{k}")
        A(f"v_mov_b32 v{a+2}, v{a}\nv_mov_b32 v{a+3}, v{a+1}\ns_nop 0")
        A(f"v_permlane16_swap_b32 v{a}, v{a+2}\nv_permlane16_swap_b32 v{a+1}, v{a+3}")
        A("s_nop 0")
        A(f"v_add_f32 v{a}, v{a}, v{a+2}\nv_add_f32 v{a+1}, v{a+1}, v{a+3}")

    def lds_wait(addr, sreg, thr, name, sleep=1, vaddr=7, cached=False, pair=False):
        top = A.label(name); done = A.label(name + "_ok")
        if cached:
            A(f"s_cmp_ge_i32 s{sreg}, {thr}\ns_cbranch_scc1 {done}")
        A(f"s_mov_b32 s{sSPIN}, 0")
        A(f"{top}:")
        if pair:
            A(f"ds_read_b64 {v2(vX0)}, v{vaddr} offset:{addr}\ns_waitcnt lgkmcnt(0)\nv_min_i32 v{vX0}, v{vX0}, v{vX1}\ns_nop 0")
        else:
            A(f"ds_read_b32 v{vX0}, v{vaddr} offset:{addr}\ns_waitcnt lgkmcnt(0)")
        A(f"v_readfirstlane_b32 s{sreg}, v{vX0}")
        A(f"s_add_u32 s{sSPIN}, s{sSPIN}, 1")
        A(f"s_cmp_ge_i32 s{sreg}, {thr}\ns_cbranch_scc1 {done}")
        if sleep:
            A(f"s_sleep {sleep}")
        A(f"s_cmp_lt_u32 s{sSPIN}, 0x100000\ns_cbranch_scc1 {top}")
        A(f"{done}:")

    def lds_flag(addr, val=1, vaddr=7):
        A(f"v_mov_b32 v{vX0}, {val}\nds_write_b32 v{vaddr}, v{vX0} offset:{addr}")

    def make_tags():
        A(f"s_waitcnt lgkmcnt(0)\ns_add_u32 s{sTAG}, s{sTAG}, 0x9E3779B1")
        A(f"v_and_b32 v5, 1, v1\nv_lshlrev_b32 v5, 4, v5\nv_lshrrev_b32 v5, v5, s{sTAG}")
        for k in range(4):
            A(f"v_bfe_u32 v{TX4+k}, v5, {4*k}, 4")
        A(f"v_and_b32 v5, 3, v1\nv_lshlrev_b32 v5, 3, v5\nv_lshrrev_b32 v5, v5, s{sTAG}")
        for k in range(2):
            A(f"v_bfe_u32 v{TX2+k}, v5, {4*k}, 4")

    def embed(dst, src, tag):
        A(f"v_and_or_b32 v{dst}, v{src}, -16, v{tag}")

    def poll(loads, checks, name, sleep=0, full=False):
        top = A.label(name); done = A.label(name + "_ok")
        A(f"s_mov_b32 s{sSPIN}, 0")
        A(f"{top}:")
        for l in loads:
            A(l)
        A("s_waitcnt vmcnt(0)")
        A(f"v_xor_b32 v{vX0}, {checks[0][1]}, v{checks[0][0]}")
        for r, t in checks[1:]:
            A(f"v_bitop3_b32 v{vX0}, v{vX0}, v{r}, {t} bitop3:0xf6")
        if not full:
            A(f"v_and_b32 v{vX0}, 15, v{vX0}\nv_cmp_ne_u32 vcc, 0, v{vX0}")
        else:
            A(f"v_cmp_ne_u32 vcc, 0, v{vX0}")
        A(f"s_cbranch_vccz {done}")
        if sleep:
            A(f"s_sleep {sleep}")
        A(f"s_add_u32 s{sSPIN}, s{sSPIN}, 1\ns_cmp_lt_u32 s{sSPIN}, s{sLIM}\ns_cbranch_scc1 {top}")
        A(f"{done}:")

    def store2(line, cond_scc1_near):
        far = A.label("far"); done = A.label("st")
        A(cond_scc1_near)
        A(f"s_cbranch_scc0 {far}\n{line}\ns_branch {done}\n{far}:\n{line} sc1\n{done}:")

    def chk4(regs):
        return [(r + k, f"v{TX4+k}") for r in regs for k in range(4)]

    def next_slot(step):
        A(f"s_add_u32 s{sLB}, s{sLB}, {step*16384}\ns_sub_u32 s{sT0}, s{sLB}, {NSLOT*16384}")
        A(f"s_cmp_ge_u32 s{sLB}, {NSLOT*16384}\ns_cselect_b32 s{sLB}, s{sT0}, s{sLB}")

    def tail_prep():
        A(f"s_lshl_b32 s{sT2}, s{sTW}, 12\nv_lshl_add_u32 v6, v1, 2, s{sT2}")
        for n in range(16):
            A(f"ds_read_b32 v{vWT+n}, v6 offset:{L_WO + 256*n}")
        A(f"s_lshl_b32 s{sI1}, s{sX8}, 16\ns_and_b32 s{sT2}, s{sJJ}, 28\ns_add_u32 s{sT2}, s{sT2}, s{sTW}\ns_lshl_b32 s{sT2}, s{sT2}, 11")
        A(f"s_add_u32 s{sI1}, s{sI1}, s{sT2}\ns_add_u32 s{sI1}, s{sI1}, {WS_H1}")
        A(f"v_and_b32 v{vRW}, 0xff, v0\nv_lshlrev_b32 v{vRW}, 3, v{vRW}\nv_lshlrev_b32 v{vRR}, 3, v1")
        A(f"v_and_b32 v5, 15, v1\nv_lshlrev_b32 v5, 3, v5\nv_lshrrev_b32 v6, 4, v1\nv_lshl_add_u32 v{vO2}, v6, 13, v5")
        A(f"s_and_b32 s{sO2}, s{sJJ}, 3\ns_lshl_b32 s{sO2}, s{sO2}, 15\ns_lshl_b32 s{sT2}, s{sX8}, 10\ns_add_u32 s{sO2}, s{sO2}, s{sT2}")
        A(f"s_lshr_b32 s{sT2}, s{sJJ}, 2\ns_lshl_b32 s{sT2}, s{sT2}, 7\ns_add_u32 s{sO2}, s{sO2}, s{sT2}\ns_add_u32 s{sO2}, s{sO2}, {WS_H2}")
        lgkm(0)
        for u in range(8):
            A(f"v_perm_b32 v{vWO+2*u}, v{vWT+1+2*u}, v{vWT+2*u}, s{sSELL}\nv_perm_b32 v{vWO+1+2*u}, v{vWT+1+2*u}, v{vWT+2*u}, s{sSELH}")

    def sigmoid(dst, src):
        A(f"v_mul_f32 v{dst}, s{sLOG2E}, v{src}\nv_exp_f32 v{dst}, -v{dst}\ns_nop 0\nv_add_f32 v{dst}, 1.0, v{dst}\nv_rcp_f32 v{dst}, v{dst}\ns_nop 0")

    A(f"{KNAME}_kernel:")
    A("s_cmpk_ge_u32 s2, 0x100\ns_cbranch_scc1 L_end")
    stamp(0)
    A(f"s_load_dwordx16 s[4:19], s[0:1], 0\ns_load_dwordx8 s[20:27], s[0:1], 64")
    A(f"v_and_b32 v1, 63, v0\nv_readfirstlane_b32 s{sW}, v0")
    A(f"s_and_b32 s{sX8}, s2, 7\ns_lshr_b32 s{sJJ}, s2, 3")
    A("v_lshlrev_b32 v4, 4, v1")
    A("v_lshrrev_b32 v2, 3, v1\nv_and_b32 v3, 0x70, v4")
    A(f"s_mov_b32 s{rA+3}, 0x20000\ns_lshr_b32 s{sW}, s{sW}, 6\ns_cbranch_scc1 L_e1")
    A(f"s_and_b32 s{sT1}, s{sJJ}, 7\ns_lshl3_add_u32 s{sT1}, s{sX8}, s{sT1}\ns_lshl_b32 s{sT1}, s{sT1}, 7")
    A(f"s_lshr_b32 s{sT2}, s2, 6\ns_lshl_b32 s{sT2}, s{sT2}, 20\ns_add_u32 s{sT1}, s{sT1}, s{sT2}")
    A(f"v_lshl_add_u32 v5, v2, 17, v3\ns_mov_b32 s{rA+2}, {hex(512 * 4096 * 2)}\ns_movk_i32 m0, {L_P}")
    A(f"s_waitcnt lgkmcnt(0)\ns_mov_b64 {s2(rA)}, {s2(sWQ)}")
    stamp(4, 4)
    A("L_wq:")
    A(f"buffer_load_dwordx4 v5, {s4(rA)}, s{sT1} offen {wflags} lds")
    A(f"s_addk_i32 m0, 0x400\ns_addk_i32 s{sT1}, 0x2000\ns_cmpk_lt_u32 m0, {L_P + 16384}\ns_cbranch_scc1 L_wq")
    A("s_branch L_e2")
    A("L_e1:")
    A(f"s_cmp_lg_u32 s{sW}, 2\ns_cbranch_scc1 L_e2")
    A(f"s_movk_i32 s{rA+2}, 0x400\ns_waitcnt lgkmcnt(0)\ns_mov_b64 {s2(rA)}, {s2(sX)}")
    A(f"buffer_load_dwordx4 v[16:19], v4, {s4(rA)}, 0 offen")
    A("L_e2:")
    A(f"v_and_b32 v6, 15, v1\nv_cmp_eq_u32 vcc, {(F_DONE + 4 - L_FLAG) // 4}, v6\nv_lshlrev_b32 v6, 2, v6\nv_mov_b32 v7, 0")
    A(f"v_cndmask_b32 v5, 0, 1, vcc\nds_write_b32 v6, v5 offset:{L_FLAG}")
    A(f"s_mul_i32 s{sCB}, s{sX8}, 3\ns_lshr_b32 s{sT0}, s{sJJ}, 3\ns_add_u32 s{sCB}, s{sCB}, s{sT0}\ns_and_b32 s{sSUB}, s{sJJ}, 7")
    A(f"s_lshr_b32 s{sT0}, s{sX8}, 1\ns_add_u32 s{sT0}, s{sT0}, 24\ns_and_b32 s{sT1}, s{sX8}, 1\ns_lshl_b32 s{sT1}, s{sT1}, 2\ns_add_u32 s{sT1}, s{sT1}, s{sSUB}")
    A(f"s_cmp_ge_u32 s{sJJ}, 24\ns_cselect_b32 s{sCB}, s{sT0}, s{sCB}\ns_cselect_b32 s{sSUB}, s{sT1}, s{sSUB}")
    A(f"s_mov_b32 s{sSELL}, 0x05040100\ns_mov_b32 s{sSELH}, 0x07060302")
    A(f"s_mov_b32 s{sSCALE}, {hex(f2u(128 ** -0.5))}\ns_mov_b32 s{sLOG2E}, {hex(f2u(LOG2E))}\ns_mov_b32 s{sHI}, 0xffff0000")
    if stamps:
        for i in range(1, 8):
            if not (smode == 4 and i == 4):
                A(f"s_mov_b64 {s2(sST+2*i)}, 0")
    A("s_waitcnt lgkmcnt(0)")
    A("s_barrier")
    stamp(5, 5)
    A(f"s_load_dword s{sTAG}, {s2(sWS)}, {WS_EPOCH}")
    A(f"s_mov_b32 s{sLIM}, 0x40000\ns_mov_b32 s{sMODE}, 1")
    srd(rWS, sWS, hex(WS_SIZE))
    A(f"s_cmp_lg_u32 s{sW}, 0\ns_cbranch_scc1 L_notloader")

    D = win
    first_k = (D - 1) % 8
    vCNT = 24
    cnt = [0]
    DD = [D]
    def ld(line, static=False):
        i = cnt[0]
        if not static or i >= D:
            A(f"s_waitcnt vmcnt({DD[0]-1})")
        if static and i == D - 1: stamp(5, 4)
        if static and i == D: stamp(6, 4)
        A(line)
        if i % 8 == first_k and (not static or i >= D - 1 + 8):
            A(f"ds_write_b32 v7, v{vCNT} offset:{F_RDY}\nv_add_u32 v{vCNT}, 8, v{vCNT}")
        cnt[0] += 1
    if lprio:
        A(f"s_setprio {lprio}")
    A(f"v_mov_b32 v{vCNT}, 8")
    cnt[0] = 16
    assert D >= 16
    A(f"s_cmp_lt_u32 s{sJJ}, 28\ns_cselect_b32 s{sT3}, {hex(512 * 1792 * 2)}, 0")
    srd(rD, sWD, f"s{sT3}")
    A(f"s_cmp_lt_u32 s{sSUB}, 4\ns_cselect_b32 s{rB}, s{sWG}, s{sWU}\ns_cselect_b32 s{rB+1}, s{sWG+1}, s{sWU+1}")
    A(f"s_mov_b32 s{rB+2}, s{sT3}\ns_mov_b32 s{rB+3}, 0x20000")
    A(f"s_and_b32 s{sT1}, s{sSUB}, 3\ns_mul_i32 s{sT1}, s{sT1}, {128*3584}\ns_lshl_b32 s{sT2}, s{sCB}, 7\ns_add_u32 s{sT1}, s{sT1}, s{sT2}")
    A(f"v_mul_u32_u24 v6, {16*3584}, v2\nv_add_u32 v6, v6, v3")
    L_GU = L_RING + (NSLOT - 1) * 16384
    for i in range(16):
        A(f"s_mov_b32 m0, {L_GU + 1024*i}")
        A(f"s_add_u32 s{sT2}, s{sT1}, {3584*i}")
        ld(f"buffer_load_dwordx4 v6, {s4(rB)}, s{sT2} offen {wflags} lds", True)
    A(f"s_lshl_b32 s{sT1}, s{sCB}, 16\ns_lshl_b32 s{sT2}, s{sSUB}, 7\ns_add_u32 s{sT1}, s{sT1}, s{sT2}")
    A(f"v_lshl_add_u32 v5, v2, 13, v3")
    for i in range(8):
        if i % 4 == 0:
            A(f"s_mov_b32 m0, {L_WD + 1024*i}")
            A(f"s_add_u32 s{sT2}, s{sT1}, {1024*i}")
        ld(f"buffer_load_dwordx4 v5, {s4(rD)}, s{sT2} offen offset:{1024*(i%4)} {wflags} lds", True)
    srd(rA, sWO, hex(4096 * 512 * 2))
    A(f"s_lshl_b32 s{sT1}, s{sX8}, 9\ns_lshr_b32 s{sT2}, s{sJJ}, 4\ns_lshl_b32 s{sT2}, s{sT2}, 6\ns_add_u32 s{sT1}, s{sT1}, s{sT2}")
    A(f"s_and_b32 s{sT2}, s{sJJ}, 12\ns_add_u32 s{sT1}, s{sT1}, s{sT2}\ns_lshl_b32 s{sT1}, s{sT1}, 10")
    A(f"s_and_b32 s{sT2}, s{sJJ}, 3\ns_lshl_b32 s{sT2}, s{sT2}, 8\ns_add_u32 s{sT1}, s{sT1}, s{sT2}")
    A(f"v_lshrrev_b32 v6, 4, v1\nv_lshlrev_b32 v6, 10, v6\nv_and_b32 v25, 15, v1\nv_lshl_add_u32 v6, v25, 4, v6")
    for w in range(4):
        for h in range(4):
            A(f"s_mov_b32 m0, {L_WO + 4096*w + 1024*h}")
            A(f"s_add_u32 s{sT2}, s{sT1}, {(128*h + 16*w)*1024}")
            ld(f"buffer_load_dwordx4 v6, {s4(rA)}, s{sT2} offen {wflags} lds", True)
    assert cnt[0] == 8 * U0 and D + 7 <= 8 * U0
    stamp(1)
    A(f"s_lshl_b32 s{sT0}, s{sX8}, 24\ns_lshl_b32 s{sT1}, s{sJJ}, 19\ns_add_u32 s{sT0}, s{sT0}, s{sT1}")
    A(f"s_add_u32 s{rK}, s{sK}, s{sT0}\ns_addc_u32 s{rK+1}, s{sK+1}, 0\ns_mov_b32 s{rK+2}, 0x80000\ns_mov_b32 s{rK+3}, 0x20000")
    A(f"s_add_u32 s{rV}, s{sV}, s{sT0}\ns_addc_u32 s{rV+1}, s{sV+1}, 0\ns_mov_b32 s{rV+2}, 0x80000\ns_mov_b32 s{rV+3}, 0x20000")
    A("v_lshrrev_b32 v5, 4, v1\nv_lshlrev_b32 v5, 6, v5\nv_xor_b32 v16, v4, v5")
    A("v_and_b32 v5, 16, v1\nv_lshlrev_b32 v5, 1, v5\nv_xor_b32 v20, v4, v5")
    for n in range(1, 4):
        A(f"v_xor_b32 v{16+n}, {16*n}, v16\nv_xor_b32 v{20+n}, {64*n}, v20")
    sI, sLV = sH + 1, sH + 2
    NLD = 8 * U0 + 1024
    if not pace:
        wins = (win,); c0 = 0
    A(f"s_mov_b32 s{sCNT}, 0\ns_mov_b32 s{sLB}, 0\ns_mov_b32 s{sFL}, 0\ns_mov_b32 s{sH}, 0\ns_mov_b32 s{sI}, {8*U0}\nv_mov_b32 v25, 0\nv_subrev_u32 v26, 8, v{vCNT}")
    A("L_tile:")
    A(f"s_cmp_lg_u32 s{sCNT}, 32\ns_cbranch_scc1 L_nosw")
    stamp(4, 1); stamp(5, 3)
    A(f"s_mov_b64 {s2(rK)}, {s2(rV)}\ns_mov_b32 s{sH}, 0")
    for n in range(4):
        A(f"v_mov_b32 v{16+n}, v{20+n}")
    A("L_nosw:")
    A(f"s_sub_u32 s{sTHR}, s{sCNT}, {NSLOT-1}")
    A(f"s_cmp_lg_u32 s{sTHR}, 0\ns_cbranch_scc1 L_nogup")
    lds_wait(F_GUP, sT2, 1, "gup", sleep=0)
    stamp(2)
    A("L_nogup:")
    lds_wait(F_DONE, sFL, f"s{sTHR}", "free", sleep=0, cached=True, pair=True)
    A(f"s_add_u32 m0, s{sLB}, {L_RING}")
    if pace:
        A(f"s_waitcnt lgkmcnt(0)\nv_readfirstlane_b32 s{sLV}, v25\nds_read_b32 v25, v7 offset:{F_WIN}")
    order = sorted(range(len(wins)), key=lambda k: (abs(k - c0), -k))
    for idx, k in enumerate(order[1:]):
        A(f"s_cmp_eq_i32 s{sLV}, {k - c0}\ns_cbranch_scc1 L_ver{idx+1}")
    def version(idx, W):
        A(f"L_ver{idx}:")
        A(f"s_sub_u32 s{sT2}, s{sI}, {W-1}\nv_mov_b32 v{vCNT}, s{sT2}")
        A(f"L_vq{idx}:")
        for hq in range(unq):
            for n in range(4):
                A(f"s_waitcnt vmcnt({W-1})")
                A(f"buffer_load_dwordx4 v{16+n}, {s4(rK)}, s{sH} offen offset:{1024*n} {kvflags} lds")
                if n == 0:
                    A(f"v_max_i32 v26, v26, v{vCNT}\nv_add_u32 v{vCNT}, 4, v{vCNT}\nds_write_b32 v7, v26 offset:{F_RDY}")
            A(f"s_addk_i32 m0, 0x1000\ns_addk_i32 s{sH}, 0x1000")
        if unq < 4:
            A(f"s_and_b32 s{sT2}, s{sH}, 0x3fff\ns_cbranch_scc1 L_vq{idx}")
    version(0, wins[order[0]])
    A("L_qend:")
    A(f"s_add_u32 s{sI}, s{sI}, 16")
    next_slot(1)
    if stamps and smode == 3:
        for q in range(2):
            A(f"s_cmp_lg_u32 s{sCNT}, {32*q+15}\ns_cbranch_scc1 L_np{q}")
            stamp(4 + 2 * q, 3)
            A(f"L_np{q}:")
    A(f"s_add_u32 s{sCNT}, s{sCNT}, 1\ns_cmp_lt_u32 s{sCNT}, 64\ns_cbranch_scc1 L_tile")
    for rem in (24, 16, 8, 0):
        A(f"v_max_i32 v26, {NLD - rem}, v26\ns_waitcnt vmcnt({rem})\nds_write_b32 v7, v26 offset:{F_RDY}")
    stamp(3)
    A("s_branch L_fin")

    for idx, k in enumerate(order[1:]):
        version(idx + 1, wins[k])
        A("s_branch L_qend")
    A("L_pace:")
    make_tags()
    lds_wait(F_RDY, sFL, 8 * U0, "wop", sleep=8)
    A(f"s_mov_b32 s{sTW}, 0")
    tail_prep()
    if pace:
        sP, sPP, sS, sD, sPGA, sOWN = sH, sH + 1, sH + 2, sH + 3, sH + 4, sH + 5
        lds_wait(F_QH, sMODE, 1, "qhp", sleep=8)
        A(f"s_cmp_lg_u32 s{sMODE}, 2\ns_cbranch_scc1 L_pdone")
        A(f"v_lshlrev_b32 v5, 2, v1\nv_lshlrev_b32 v6, 3, v3")
        A(f"s_lshl_b32 s{sPGA}, s{sX8}, 8\ns_add_u32 s{sPGA}, s{sPGA}, {WS_PG}\ns_lshl_b32 s{sOWN}, s{sJJ}, 2\ns_add_u32 s{sOWN}, s{sOWN}, s{sPGA}")
        A(f"s_mov_b32 s{sP}, 0\ns_mov_b32 s{sCNT}, 0\ns_mov_b32 s{sT3}, {WS_GP}\ns_mov_b32 s{sH+6}, 0")
        A("L_pl:")
        A(f"s_mov_b32 s{sPP}, s{sP}\nds_read_b32 v16, v7 offset:{F_RDY}\ns_waitcnt lgkmcnt(0)\nv_readfirstlane_b32 s{sP}, v16")
        A(f"s_add_u32 s{sCNT}, s{sCNT}, 1\ns_cmp_gt_u32 s{sCNT}, 0x10000\ns_cbranch_scc1 L_pdone")
        A(f"s_and_b32 s{sT0}, s{sTAG}, 0xfffff800\ns_or_b32 s{sT0}, s{sT0}, s{sP}\nv_mov_b32 v16, s{sT0}")
        A(f"s_mov_b64 exec, 1\nbuffer_store_dword v16, v7, {s4(rWS)}, s{sOWN} offen\ns_mov_b64 exec, -1")
        A(f"s_cmp_ge_u32 s{sP}, {NLD - endstop}\ns_cbranch_scc1 L_pdone")
        lead = f"s_and_b32 s{sT2}, s{sCNT}, {(1 << gper) - 1}\ns_lshl_b32 s{sT2}, s{sT2}, 5\ns_add_u32 s{sT2}, s{sT2}, s{sJJ}\ns_cmp_lg_u32 s{sT2}, 31"
        if scal:
            A(f"s_load_dwordx16 s[4:19], {s2(sWS)}, s{sPGA} glc\ns_load_dwordx16 s[40:55], {s2(sWS)}, s{sPGA} offset:64 glc")
            A(f"s_load_dword s{sD}, {s2(sWS)}, s{sPGA} offset:128 glc")
            if pace > 1:
                A(lead + "\ns_cbranch_scc1 L_pn1")
                for x in range(8):
                    A(f"s_load_dword s{28+x}, {s2(sWS)}, {WS_GP + 128*x} glc")
                A("L_pn1:")
            A(f"s_and_b32 s{sT0}, s{sTAG}, 0xfffff800\ns_waitcnt lgkmcnt(0)")
            regs = list(range(4, 20)) + list(range(40, 56))
            A(f"s_xor_b32 s{sS}, s4, s{sT0}\ns_mov_b32 s{sT1}, s{sS}")
            for r in regs[1:]:
                A(f"s_xor_b32 s{r}, s{r}, s{sT0}\ns_or_b32 s{sT1}, s{sT1}, s{r}\ns_add_u32 s{sS}, s{sS}, s{r}")
            A(f"s_cmp_gt_u32 s{sT1}, 0x7ff\ns_cbranch_scc1 L_pnext")
            A(f"s_xor_b32 s{sT1}, s{sD}, s{sTAG}\ns_and_b32 s{sD}, s{sD}, 0xffff\ns_sub_u32 s{sD}, s{sD}, 0x8000\ns_cmp_lt_u32 s{sT1}, 0x10000\ns_cselect_b32 s{sD}, s{sD}, 0")
        else:
            A(f"buffer_load_dword v17, v5, {s4(rWS)}, s{sPGA} offen {pld}")
            if pace > 1:
                A(lead + "\ns_cbranch_scc1 L_pn1")
                A(f"buffer_load_dword v18, v6, {s4(rWS)}, s{sT3} offen sc1")
                A("L_pn1:")
            A("s_waitcnt vmcnt(0)")
            A(f"v_xor_b32 v19, s{sTAG}, v17\nv_cmp_lt_u32 vcc, 0x7ff, v19\nv_and_b32 v19, 0x7ff, v17\nv_readlane_b32 s{sD}, v17, 32")
            for k in (8, 4, 2, 1):
                A(f"s_nop 1\nv_add_u32 v19, v19, v19 row_ror:{k}")
            A(f"s_cmp_lg_u32 vcc_lo, 0\ns_cbranch_scc1 L_pnext")
            A(f"v_readlane_b32 s{sS}, v19, 0\nv_readlane_b32 s{sT0}, v19, 16")
            A(f"s_xor_b32 s{sT1}, s{sD}, s{sTAG}\ns_and_b32 s{sD}, s{sD}, 0xffff\ns_sub_u32 s{sD}, s{sD}, 0x8000\ns_cmp_lt_u32 s{sT1}, 0x10000\ns_cselect_b32 s{sD}, s{sD}, 0")
            A(f"s_add_u32 s{sS}, s{sS}, s{sT0}")
        A(f"s_cmp_eq_u32 s{sPP}, 0\ns_cbranch_scc1 L_pnext")
        A(f"s_add_u32 s{sT0}, s{sP}, s{sPP}\ns_lshl_b32 s{sT0}, s{sT0}, 4\ns_sub_u32 s{sT0}, s{sS}, s{sT0}\ns_add_u32 s{sT0}, s{sT0}, s{sD}")
        A(f"s_add_u32 s{sT0}, s{sT0}, {(1 << (gs - 1)) + bias}\ns_ashr_i32 s{sT0}, s{sT0}, {gs}\ns_max_i32 s{sT0}, s{sT0}, {-c0}\ns_min_i32 s{sT0}, s{sT0}, {len(wins)-1-c0}")
        A(f"v_mov_b32 v16, s{sT0}\nds_write_b32 v7, v16 offset:{F_WIN}")
        if pace > 1:
            A(f"s_cmp_lg_u32 s{sJJ}, 31\ns_cbranch_scc1 L_pnext")
            A(f"s_and_b32 s{sT0}, s{sTAG}, 0xffff0000\ns_or_b32 s{sT1}, s{sT0}, s{sS}\nv_mov_b32 v16, s{sT1}\ns_lshl_b32 s{sT1}, s{sX8}, 7\ns_add_u32 s{sT1}, s{sT1}, s{sT3}")
            A(f"s_mov_b64 exec, 1\nbuffer_store_dword v16, v7, {s4(rWS)}, s{sT1} offen sc1\ns_mov_b64 exec, -1")
            A(lead + "\ns_cbranch_scc1 L_pnext")
            if scal:
                A(f"s_mov_b32 s{sT1}, 0\ns_mov_b32 s{sT2}, 0")
                for x in range(8):
                    A(f"s_xor_b32 s{28+x}, s{28+x}, s{sT0}\ns_or_b32 s{sT2}, s{sT2}, s{28+x}\ns_add_u32 s{sT1}, s{sT1}, s{28+x}")
                A(f"s_mov_b32 s4, s{sH+6}\ns_mov_b32 s{sH+6}, s{sS}")
                A(f"s_cmp_gt_u32 s{sT2}, 0xffff\ns_cbranch_scc1 L_pnext")
                A(f"s_lshr_b32 s{sT1}, s{sT1}, 3")
                if gper:
                    A(f"s_add_u32 s4, s4, s{sS}\ns_lshr_b32 s4, s4, 1")
                A(f"s_sub_u32 s{sT1}, s{sT1}, s4\ns_add_u32 s{sT1}, s{sT1}, {gbias}")
            else:
                A(f"v_xor_b32 v19, s{sTAG}, v18\nv_cmp_lt_u32 vcc, 0xffff, v19\nv_and_b32 v18, 0xffff, v18\nv_mov_b32 v19, v18")
                for k in (4, 2, 1):
                    A(f"s_nop 1\nv_add_u32 v19, v19, v19 row_ror:{k}")
                A(f"s_cbranch_vccnz L_pnext")
                A(f"v_readlane_b32 s{sT1}, v19, 0\nv_readlane_b32 s{sT2}, v18, s{sX8}\ns_lshr_b32 s{sT1}, s{sT1}, 3")
                A(f"s_sub_u32 s{sT1}, s{sT1}, s{sT2}\ns_add_u32 s{sT1}, s{sT1}, {gbias}")
                A(f"s_ashr_i32 s{sT1}, s{sT1}, {gsh}\ns_max_i32 s{sT1}, s{sT1}, {gmin}\ns_min_i32 s{sT1}, s{sT1}, {gmax}")
            A(f"s_add_u32 s{sT1}, s{sT1}, 0x8000\ns_and_b32 s{sT1}, s{sT1}, 0xffff\ns_or_b32 s{sT1}, s{sT1}, s{sT0}\nv_mov_b32 v16, s{sT1}")
            A(f"s_mov_b64 exec, 1\nbuffer_store_dword v16, v7, {s4(rWS)}, s{sPGA} offen offset:128\ns_mov_b64 exec, -1")
        A("L_pnext:")
        A(f"s_sleep {psleep}\ns_branch L_pl")

    A("L_pdone:")
    A("s_branch L_endgate")

    A("L_notloader:")
    A(f"s_mov_b32 s{sTW}, s{sW}\ns_cmp_eq_u32 s{sW}, 4\ns_cbranch_scc1 L_pace")
    A(f"s_cmp_eq_u32 s{sW}, 3\ns_cbranch_scc1 L_help")
    A(f"s_sub_u32 s{sC}, s{sW}, 1")
    A(f"s_cmp_eq_u32 s{sW}, 2\ns_cbranch_scc1 L_w2")
    make_tags()
    A("s_branch L_qwait")
    def slice_mv(sKS, lds_base, unit0, after_read=None):
        A(f"s_lshl_b32 s{sT2}, s{sKS}, 8\nv_lshl_add_u32 v5, v2, 5, s{sT2}")
        A(f"ds_read_b128 v[20:23], v5 offset:{L_XN}\nds_read_b128 v[24:27], v5 offset:{L_XN+16}")
        A(f"v_add_u32 v6, {lds_base}, v4")
        for half in range(2):
            lds_wait(F_RDY, sFL, 8 * (unit0 + half + 1), "wsl", sleep=1)
            for i in range(8):
                A(f"ds_read_b128 {v4(64+4*i)}, v6 offset:{8192*half + 1024*i}")
            lgkm(0)
            if half == 1:
                stamp(6, 2)
                if after_read:
                    after_read()
            matvec8(64, [f"v{20+4*half+k}" for k in range(4)], 32, 40, first=(half == 0))
        reduce8(32)
        A(f"v_lshrrev_b32 v6, 4, v1\nv_lshlrev_b32 v6, 6, v6\nv_lshrrev_b32 v5, 1, v3\nv_add_u32 v6, v6, v5")
    A("L_w2:")
    A(f"s_lshr_b32 s{sT3}, s2, 6")
    A("s_waitcnt vmcnt(0)")
    stamp(4, 2)
    ln_stats(16, 28, 29, 32)
    ln_apply(16, 28, 29, 32)
    A(f"ds_write_b128 v4, v[16:19] offset:{L_XN}")
    lds_flag(F_XN)
    stamp(5, 2)
    make_tags()
    slice_mv(sT3, L_P, 0)
    sXC = sH + 4
    A(f"s_getreg_b32 s{sXC}, hwreg(HW_REG_XCC_ID, 0, 4)")
    if force:
        A(f"s_and_b32 s{sXC}, s{sJJ}, 1")
    embed(34, 32, TX2); embed(35, 33, TX2 + 1)
    A(f"v_xor_b32 v32, s{sXC}, v34\nv_xor_b32 v33, s{sXC}, v35")
    A(f"s_lshl_b32 s{sH}, s{sX8}, 13\ns_add_u32 s{sH}, s{sH}, {WS_QX}\ns_lshl_b32 s{sT2}, s{sT3}, 11\ns_add_u32 s{sT1}, s{sH}, s{sT2}")
    A(f"s_and_b32 s{sT2}, s{sJJ}, 7\ns_lshl_b32 s{sT2}, s{sT2}, 8\ns_add_u32 s{sT1}, s{sT1}, s{sT2}")
    A("s_mov_b32 exec_lo, 0x00ff00ff\ns_mov_b32 exec_hi, 0x00ff00ff")
    A(f"buffer_store_dwordx2 v[32:33], v6, {s4(rWS)}, s{sT1} offen")
    A("s_mov_b64 exec, -1")
    stamp(1)
    for k in range(4):
        A(f"v_xor_b32 v{36+k}, s{sXC}, v{TX4+k}")
    A(f"s_add_u32 s{sH+1}, s{sH}, 4096\ns_mov_b32 s{sMODE}, 2")
    if qgate:
        lds_wait(F_RDY, sFL, 8 * qgate, "qgate", sleep=2)
    A(f"s_mov_b32 s{sSPIN}, 0")
    A("L_qpoll:")
    for i in range(8):
        A(f"buffer_load_dwordx4 {v4(64+4*i)}, v4, {s4(rWS)}, s{sH+i//4} offen offset:{1024*(i%4)} sc1")
    A("s_waitcnt vmcnt(0)")
    A(f"v_xor_b32 v{vX0}, v64, v36")
    for i in range(1, 32):
        A(f"v_bitop3_b32 v{vX0}, v{vX0}, v{64+i}, v{36+i%4} bitop3:0xf6")
    A(f"v_and_b32 v{vX0}, 15, v{vX0}\nv_cmp_ne_u32 vcc, 0, v{vX0}\ns_cbranch_vccz L_qok")
    A(f"s_sleep {qsleep}\ns_add_u32 s{sSPIN}, s{sSPIN}, 1\ns_cmp_lt_u32 s{sSPIN}, {qtry}\ns_cbranch_scc1 L_qpoll")
    A(f"s_cmp_lg_u32 s{sSPIN}, {qtry}\ns_cbranch_scc1 L_qflip")
    A(f"s_xor_b32 s{sT1}, s{sT1}, {WS_QXFAR}")
    A("s_mov_b32 exec_lo, 0x00ff00ff\ns_mov_b32 exec_hi, 0x00ff00ff")
    A(f"buffer_store_dwordx2 v[34:35], v6, {s4(rWS)}, s{sT1} offen sc1")
    A("s_mov_b64 exec, -1")
    A("L_qflip:")
    A(f"s_xor_b32 s{sH}, s{sH}, {WS_QXFAR}\ns_xor_b32 s{sH+1}, s{sH+1}, {WS_QXFAR}\ns_xor_b32 s{sMODE}, s{sMODE}, 3")
    for k in range(4):
        A(f"v_xor_b32 v{36+k}, s{sXC}, v{36+k}")
    A(f"s_cmp_lt_u32 s{sSPIN}, s{sLIM}\ns_cbranch_scc1 L_qpoll")
    A("L_qok:")
    for e in range(8):
        A(f"v_add_f32 v{64+e}, v{64+e}, v{72+e}\nv_add_f32 v{80+e}, v{80+e}, v{88+e}")
    for e in range(8):
        A(f"v_add_f32 v{64+e}, v{64+e}, v{80+e}")
    for e in range(4):
        A(f"v_cvt_pk_bf16_f32 v{64+e}, v{64+2*e}, v{65+2*e}")
    A(f"v_lshrrev_b32 v6, 4, v1\nv_lshlrev_b32 v6, 7, v6\nv_and_b32 v5, 3, v1\nv_lshl_add_u32 v6, v5, 5, v6")
    A(f"v_and_b32 v5, 12, v1\nv_add_u32 v6, v6, v5")
    for e in range(4):
        A(f"ds_write_b32 v6, v{64+e} offset:{L_Q + 16*(e&1) + 512*(e>>1)}")
    lds_flag(F_QH, val=f"s{sMODE}")
    A("L_qwait:")
    vOWN, vOTH = 30, 31
    A(f"s_lshl_b32 s{sT2}, s{sC}, 2\nv_mov_b32 v{vOWN}, s{sT2}\nv_xor_b32 v{vOTH}, 4, v{vOWN}")
    vQV, vKT, vS, vT, vMAX, vAD, vKA, vPA, vDN = 32, 96, 160, 164, 172, 176, 184, 188, 189
    A("v_and_b32 v5, 3, v1\nv_lshlrev_b32 v5, 10, v5\nv_bfe_u32 v6, v1, 2, 2\nv_lshl_add_u32 v5, v6, 8, v5")
    A(f"v_lshrrev_b32 v6, 4, v1\nv_xor_b32 v6, v6, v1\nv_and_b32 v6, 15, v6\nv_lshl_add_u32 v{vKA}, v6, 4, v5")
    for n in range(1, 4):
        A(f"v_xor_b32 v{vKA+n}, {64*n}, v{vKA}")
    A(f"v_and_b32 v5, 3, v1\nv_lshlrev_b32 v5, 6, v5\nv_lshrrev_b32 v6, 4, v1\nv_lshl_add_u32 v5, v6, 4, v5")
    A(f"v_mov_b32 v29, v5")
    A(f"v_and_b32 v6, 8, v1\nv_lshl_add_u32 v5, v6, 5, v5\nv_and_b32 v6, 4, v1\nv_lshl_add_u32 v5, v6, 1, v5")
    A(f"s_lshl_b32 s{sT2}, s{sC}, 9\nv_add_u32 v{vPA}, s{sT2}, v5")
    A(f"v_mov_b32 v{vMAX}, {hex(f2u(-3e38))}")
    A(f"s_add_u32 s{sT2}, s{sC}, 2\nv_mov_b32 v{vDN}, s{sT2}")
    A("v_and_b32 v6, 3, v1\nv_lshlrev_b32 v6, 8, v6\nv_lshrrev_b32 v5, 4, v1\nv_lshl_add_u32 v6, v5, 4, v6")
    A(f"s_mov_b32 s{sFL}, 0")
    lds_wait(F_QH, sMODE, 1, "qh", sleep=1)
    stamp(2)
    for s in range(4):
        A(f"ds_read_b128 {v4(vKT+4*s)}, v6 offset:{L_Q + 64*s}")
    lgkm(0)
    for b in range(4):
        A(f"s_mov_b32 vcc_lo, {hex(0x000f000f << (4*b))}\ns_mov_b32 vcc_hi, {hex(0x000f000f << (4*b))}")
        for i in range(16):
            A(f"v_cndmask_b32 v{vQV+16*b+i}, 0, v{vKT+i}, vcc")
    A(f"s_lshl_b32 s{sLB}, s{sC}, 14\ns_lshl_b32 s{sTHR}, s{sC}, 4\ns_add_u32 s{sTHR}, s{sTHR}, {8*(U0+2)}")
    A(f"s_mov_b32 s{sCNT}, 0")
    A("L_p1:")
    for n in range(4):
        A(f"v_add_u32 v{vAD+n}, s{sLB}, v{vKA+n}")
    lds_wait(F_RDY, sFL, f"s{sTHR}", "krdy", sleep=csleep, cached=True)
    for b in range(4):
        for n in range(4):
            A(f"ds_read_b128 {v4(vKT+16*b+4*n)}, v{vAD+n} offset:{L_RING + 4096*b}")
    for b in range(4):
        lgkm(12 - 4 * b)
        if b == 3:
            A(f"ds_write_b32 v{vOWN}, v{vDN} offset:{F_DONE}")
        for n in range(4):
            c = "0" if b + n == 0 else v4(vS)
            A(f"v_mfma_f32_16x16x32_bf16 {v4(vS)}, {v4(vKT+16*b+4*n)}, {v4(vQV+16*b+4*n)}, {c}")
    A(f"v_add_u32 v{vDN}, 2, v{vDN}\nv_min_u32 v{vDN}, 32, v{vDN}")
    next_slot(2)
    A(f"s_add_u32 s{sTHR}, s{sTHR}, 32\ns_add_u32 s{sCNT}, s{sCNT}, 1\ns_nop 1")
    A(f"v_cvt_pk_bf16_f32 v{vT}, v{vS}, v{vS+1}\nv_cvt_pk_bf16_f32 v{vT+1}, v{vS+2}, v{vS+3}")
    A(f"v_max3_f32 v{vMAX}, v{vMAX}, v{vS}, v{vS+1}\nv_max3_f32 v{vMAX}, v{vMAX}, v{vS+2}, v{vS+3}")
    for j in range(2):
        A(f"v_lshlrev_b32 v{vT+2+2*j}, 16, v{vT+j}\nv_and_b32 v{vT+3+2*j}, s{sHI}, v{vT+j}")
    for i in range(4):
        A(f"v_mul_f32 v{vT+2+i}, s{sSCALE}, v{vT+2+i}")
    A(f"v_cvt_pk_bf16_f32 v{vT}, v{vT+2}, v{vT+3}\nv_cvt_pk_bf16_f32 v{vT+1}, v{vT+4}, v{vT+5}")
    A(f"ds_write_b64 v{vPA}, {v2(vT)} offset:{L_P}\nv_add_u32 v{vPA}, 1024, v{vPA}")
    A(f"s_cmp_lt_u32 s{sCNT}, 16\ns_cbranch_scc1 L_p1")
    stamp(4, 1)
    wave_red(vMAX, vX0, "v_max_f32", (8, 4))
    A(f"v_and_b32 v5, 3, v1\nv_lshlrev_b32 v5, 2, v5\nv_lshl_add_u32 v6, v{vOWN}, 2, v5\nv_xor_b32 v5, 16, v6")
    A(f"ds_write_b32 v6, v{vMAX} offset:{L_MX}")
    lds_flag(F_MX, vaddr=vOWN)
    A(f"v_subrev_u32 v{vPA}, 16384, v{vPA}")
    lds_wait(F_MX, sT0, 1, "mx", sleep=0, vaddr=vOTH)
    A(f"ds_read_b32 v{vX1}, v5 offset:{L_MX}")
    for i in range(16):
        A(f"ds_read_b64 {v2(32+2*i)}, v{vPA} offset:{L_P + 1024*i}")
    lgkm(0)
    vMN, vLSUM = 173, 174
    A(f"v_max_f32 v{vMAX}, v{vMAX}, v{vX1}")
    rnd_bf16(vMAX)
    A(f"v_mul_f32 v{vMAX}, s{sSCALE}, v{vMAX}")
    rnd_bf16(vMAX)
    A(f"v_mul_f32 v{vMN}, s{sLOG2E}, v{vMAX}\nv_mov_b32 v{vLSUM}, 0")
    for i in range(0, 16, 2):
        E = 96
        for j in range(4):
            A(f"v_lshlrev_b32 v{E+2*j}, 16, v{32+2*i+j}\nv_and_b32 v{E+2*j+1}, s{sHI}, v{32+2*i+j}")
        for j in range(8):
            A(f"v_fma_f32 v{E+j}, v{E+j}, s{sLOG2E}, -v{vMN}")
        for j in range(8):
            A(f"v_exp_f32 v{E+j}, v{E+j}")
        A("s_nop 0")
        for j in range(4):
            A(f"v_cvt_pk_bf16_f32 v{32+2*i+j}, v{E+2*j}, v{E+2*j+1}")
        A(f"ds_write_b64 v{vPA}, {v2(32+2*i)} offset:{L_P + 1024*i}\nds_write_b64 v{vPA}, {v2(34+2*i)} offset:{L_P + 1024*(i+1)}")
        for j in range(4):
            A(f"v_add_f32 v{E+j}, v{E+j}, v{E+4+j}")
        A(f"v_add_f32 v{E}, v{E}, v{E+1}\nv_add_f32 v{E+2}, v{E+2}, v{E+3}\nv_add_f32 v{vLSUM}, v{vLSUM}, v{E}\nv_add_f32 v{vLSUM}, v{vLSUM}, v{E+2}")
    wave_red(vLSUM, vX0, "v_add_f32", (8, 4))
    A(f"v_lshlrev_b32 v6, 1, v6\nv_mov_b32 v{vLSUM+1}, v{vMN}\nds_write_b64 v6, {v2(vLSUM)} offset:{L_LS}")
    lds_flag(F_PD, vaddr=vOWN)
    vO, vVF, vPF, vVA = 32, 48, 80, 184
    A("v_and_b32 v5, 12, v1\nv_lshrrev_b32 v6, 4, v1\nv_add_u32 v6, v6, v5\nv_lshlrev_b32 v6, 8, v6")
    A(f"v_lshrrev_b32 v{vX1}, 3, v1\nv_and_b32 v{vX1}, 2, v{vX1}\nv_or_b32 v5, v5, v{vX1}")
    A(f"v_bfe_u32 v{vX1}, v1, 1, 1\nv_xor_b32 v5, v5, v{vX1}\ns_lshl_b32 s{sT2}, s{sC}, 3\nv_xor_b32 v5, s{sT2}, v5")
    A(f"v_lshl_add_u32 v6, v5, 4, v6\nv_and_b32 v5, 1, v1\nv_lshl_add_u32 v{vVA}, v5, 3, v6")
    for n in range(1, 4):
        A(f"v_xor_b32 v{vVA+n}, {32*n}, v{vVA}")
    for i in range(4):
        A(f"v_mov_b32 v{vO+i}, 0")
    for i in range(32):
        A(f"v_mov_b32 v{vPF+i}, 0")
    for T in range(4):
        A(f"s_mov_b32 s{sPM+2*T}, {hex(0x000f000f << (4*T))}\ns_mov_b32 s{sPM+2*T+1}, s{sPM+2*T}")
    A(f"v_mov_b32 v{vDN}, 33\nv_mov_b32 v{vPA}, v29")
    A(f"s_mov_b32 s{sLB}, {(32 % NSLOT) * 16384}\ns_mov_b32 s{sTHR}, {8*(U0+64+1)}\ns_mov_b32 s{sCNT}, 0")
    tail_prep()
    A(f"v_lshrrev_b32 v6, 2, v1\nv_lshlrev_b32 v6, 11, v6\nv_and_b32 v5, 3, v1\nv_lshl_add_u32 v{vO1}, v5, 4, v6")
    A(f"s_lshl_b32 s{sT1}, s{sX8}, 16\ns_lshl_b32 s{sT2}, s{sC}, 15\ns_add_u32 s{sT1}, s{sT1}, s{sT2}")
    A(f"s_lshl_b32 s{sT2}, s{sJJ}, 6\ns_add_u32 s{sT1}, s{sT1}, s{sT2}\ns_add_u32 s{sT1}, s{sT1}, {WS_H1}")
    lds_wait(F_PD, sT0, 1, "pd", sleep=0, vaddr=vOTH)
    stamp(5, 1)
    vSC = 28
    A("L_p2:")
    for n in range(4):
        A(f"v_add_u32 v{vAD+n}, s{sLB}, v{vVA+n}")
    A(f"s_cmp_lg_u32 s{sCNT}, {prept}\ns_cbranch_scc1 L_nosc")
    lds_wait(F_SC, sT0, 1, "sc", sleep=1)
    A(f"v_and_b32 v5, 3, v1\nv_lshlrev_b32 v5, 2, v5\nds_read_b32 v{vSC}, v5 offset:{L_SC}")
    A("L_nosc:")
    for T in range(4):
        A(f"s_mov_b64 exec, {s2(sPM+2*T)}")
        for ks in range(2):
            A(f"ds_read_b128 {v4(vPF+16*ks+4*T)}, v{vPA} offset:{L_P + 256*ks}")
    A("s_mov_b64 exec, -1")
    for ks in range(2):
        lds_wait(F_RDY, sFL, f"s{sTHR}", "vrdy", sleep=csleep, cached=True)
        for T in range(4):
            for ih in range(2):
                A(f"ds_read_b64_tr_b16 {v2(vVF+16*ks+4*T+2*ih)}, v{vAD+T} offset:{L_RING + 8192*ks + 4096*ih}")
        A(f"s_add_u32 s{sTHR}, s{sTHR}, 8")
        if ks == 1:
            next_slot(1)
            A(f"s_add_u32 s{sCNT}, s{sCNT}, 1\nv_add_u32 v{vPA}, 512, v{vPA}")
        for T in range(4):
            lgkm(6 - 2 * T)
            A(f"v_mfma_f32_16x16x32_bf16 {v4(vO)}, {v4(vVF+16*ks+4*T)}, {v4(vPF+16*ks+4*T)}, {v4(vO)}")
    A(f"ds_write_b32 v{vOWN}, v{vDN} offset:{F_DONE}\nv_add_u32 v{vDN}, 1, v{vDN}")
    A(f"s_cmp_lt_u32 s{sCNT}, 32\ns_cbranch_scc1 L_p2")
    stamp(3)
    A(f"s_cmp_eq_u32 s{sMODE}, 2\ns_nop 2")
    for r in range(4):
        A(f"v_mul_f32 v{vO+r}, v{vO+r}, v{vSC}")
    for r in range(4):
        embed(vO + r, vO + r, TX4 + r)
    A(f"s_cbranch_scc0 L_h1far\nbuffer_store_dwordx4 {v4(vO)}, v{vO1}, {s4(rWS)}, s{sT1} offen\ns_branch L_tail")
    A(f"L_h1far:\nbuffer_store_dwordx4 {v4(vO)}, v{vO1}, {s4(rWS)}, s{sT1} offen sc1\ns_branch L_tail")

    A("L_help:")
    srd(rA, sX, 1024)
    vG, vXP = 56, 58
    A(f"s_cmp_ge_u32 s{sJJ}, 28\ns_cbranch_scc1 L_h3f")
    A(f"s_and_b32 s{sT3}, s{sSUB}, 3")
    make_tags()
    lds_wait(F_XN, sT0, 1, "xn", sleep=2)
    slice_mv(sT3, L_GU, 2, after_read=lambda: lds_flag(F_GUP))
    embed(32, 32, TX2); embed(33, 33, TX2 + 1)
    lds_wait(F_QH, sMODE, 1, "qh3", sleep=4)
    A(f"s_lshl_b32 s{sT0}, s{sCB}, 11\ns_add_u32 s{sT0}, s{sT0}, {WS_G1}\ns_lshl_b32 s{sT1}, s{sSUB}, 8\ns_add_u32 s{sT1}, s{sT1}, s{sT0}")
    if skip & 4: A("s_branch L_hstat")
    A("s_mov_b32 exec_lo, 0x00ff00ff\ns_mov_b32 exec_hi, 0x00ff00ff")
    store2(f"buffer_store_dwordx2 v[32:33], v6, {s4(rWS)}, s{sT1} offen",
           f"s_cmp_lt_u32 s{sJJ}, 24\ns_cselect_b32 s{sT2}, s{sMODE}, 1\ns_cmp_eq_u32 s{sT2}, 2")
    A("s_mov_b64 exec, -1")
    stamp(1)
    lds_wait(F_RDY, sFL, 8 * g2gate, "g2gate", sleep=16)
    for i in range(8):
        A(f"ds_read_b128 {v4(64+4*i)}, v4 offset:{L_WD + 1024*i}")
    poll([f"buffer_load_dwordx4 {v4(32+4*i)}, v4, {s4(rWS)}, s{sT0} offen offset:{1024*i} sc1" for i in range(2)],
         chk4([32, 36]), "g1poll", sleep=32)
    for e in range(8):
        swap_red(32 + e, vX0, "v_add_f32")
        rnd_bf16(32 + e)
    for e in range(4):
        sigmoid(32 + e, 32 + e)
        rnd_bf16(32 + e)
        A(f"v_mul_f32 v{32+e}, v{32+e}, v{36+e}")
    A("v_cvt_pk_bf16_f32 v32, v32, v33\nv_cvt_pk_bf16_f32 v33, v34, v35")
    A("v_and_b32 v5, 3, v1\nv_lshlrev_b32 v5, 5, v5\nv_and_b32 v6, 12, v1\nv_add_u32 v5, v5, v6\nv_lshlrev_b32 v6, 4, v2")
    A(f"ds_write_b32 v5, v32 offset:{L_HB}\nds_write_b32 v5, v33 offset:{L_HB+16}\nds_read_b128 v[20:23], v6 offset:{L_HB}")
    lgkm(0)
    matvec8(64, [f"v{20+k}" for k in range(4)], 32, 40)
    reduce8(32)
    A(f"v_lshrrev_b32 v6, 4, v1\nv_lshlrev_b32 v6, 3, v6\nv_lshl_add_u32 v6, v3, 1, v6\nv_lshlrev_b32 v5, 2, v1")
    A(f"ds_write_b64 v6, v[32:33] offset:{L_HB}\nds_read_b32 v32, v5 offset:{L_HB}")
    A(f"v_and_b32 v5, 7, v1\nv_lshlrev_b32 v5, 2, v5\nv_lshrrev_b32 v33, v5, s{sTAG}\nv_and_b32 v33, 15, v33")
    A(f"v_lshrrev_b32 v6, 4, v1\nv_lshlrev_b32 v6, 11, v6\nv_and_b32 v5, 15, v1\nv_lshl_add_u32 v6, v5, 2, v6")
    A(f"s_lshl_b32 s{sT1}, s{sSUB}, 13\ns_lshl_b32 s{sT2}, s{sCB}, 6\ns_add_u32 s{sT1}, s{sT1}, s{sT2}\ns_add_u32 s{sT1}, s{sT1}, {WS_GL}")
    lgkm(0)
    embed(32, 32, 33)
    if not skip & 1:
        A(f"buffer_store_dword v32, v6, {s4(rWS)}, s{sT1} offen sc1")
    A("s_branch L_hstat")
    A("L_h3f:")
    make_tags()
    lds_flag(F_GUP)
    if skip & 2: A("s_branch L_hstat")
    lds_wait(F_RDY, sFL, 8 * g3gate, "g3gate", sleep=16)
    A(f"s_lshl_b32 s{sT0}, s{sX8}, 2\ns_add_u32 s{sT0}, s{sT0}, s{sJJ}\ns_sub_u32 s{sT0}, s{sT0}, 28")
    A(f"v_and_b32 v6, 3, v1\nv_lshlrev_b32 v6, 3, v6\nv_lshrrev_b32 v5, 5, v1\nv_lshl_add_u32 v6, v5, 2, v6\ns_lshl_b32 s{sT1}, s{sT0}, 5")
    A(f"buffer_load_dword v{vXP}, v6, {s4(rA)}, s{sT1} offen")
    A(f"s_lshl_b32 s{sH}, s{sT0}, 11\ns_add_u32 s{sH}, s{sH}, {WS_GL}")
    A(f"v_min_u32 v6, 47, v1\nv_and_b32 v6, 60, v6\nv_and_b32 v5, 3, v1\nv_or_b32 v6, v6, v5\nv_lshlrev_b32 v6, 4, v6")
    poll([f"buffer_load_dwordx4 v[64:67], v4, {s4(rWS)}, s{sH} offen sc1",
          f"buffer_load_dwordx4 v[68:71], v6, {s4(rWS)}, s{sH} offen offset:1024 sc1"], chk4([64, 68]), "gpoll", sleep=64)
    A("s_mov_b32 exec_hi, 0xffff")
    for e in range(4):
        A(f"v_add_f32 v{64+e}, v{64+e}, v{68+e}")
    A("s_mov_b64 exec, -1")
    red4(64)
    for e in range(2):
        rnd_bf16(64 + e)
        sigmoid(68, 64 + e)
        A(f"v_mul_f32 v{vG+e}, v{64+e}, v68")
        rnd_bf16(vG + e)
    A("L_hstat:")
    stamp(2)
    lds_wait(F_PD, sT0, 1, "pdh", sleep=16, pair=True)
    lds_wait(F_QH, sMODE, 1, "qh4", sleep=4)
    A(f"v_and_b32 v5, 3, v1\nv_lshlrev_b32 v5, 3, v5")
    A(f"ds_read_b64 v[32:33], v5 offset:{L_LS}\nds_read_b32 v34, v5 offset:{L_LS+32}")
    lgkm(0)
    A(f"v_add_f32 v32, v32, v34\nv_log_f32 v32, v32\nv_mov_b32 v35, s{sTAG}\nv_add_f32 v34, v32, v33")
    A(f"s_lshl_b32 s{sT0}, s{sX8}, 10\ns_add_u32 s{sT0}, s{sT0}, {WS_LS}\ns_lshl_b32 s{sT1}, s{sJJ}, 5\ns_add_u32 s{sT1}, s{sT1}, s{sT0}")
    A("s_mov_b64 exec, 15")
    store2(f"buffer_store_dwordx2 v[34:35], v5, {s4(rWS)}, s{sT1} offen", f"s_cmp_eq_u32 s{sMODE}, 2")
    A("s_mov_b64 exec, -1")
    lds_wait(F_RDY, sFL, 8 * lsgate, "lsgate", sleep=16)
    A(f"v_lshlrev_b32 v6, 3, v1")
    poll([f"buffer_load_dwordx2 {v2(36+2*i)}, v6, {s4(rWS)}, s{sT0} offen offset:{512*i} sc1" for i in range(2)],
         [(37, f"s{sTAG}"), (39, f"s{sTAG}")], "lspoll", sleep=16, full=True)
    A("v_max_f32 v40, v36, v38")
    wave_red(40, vX0, "v_max_f32", (8, 4))
    A("v_sub_f32 v36, v36, v40\nv_sub_f32 v38, v38, v40\nv_exp_f32 v36, v36\nv_exp_f32 v38, v38\nv_sub_f32 v33, v33, v40\nv_add_f32 v36, v36, v38")
    wave_red(36, vX0, "v_add_f32", (8, 4))
    A("v_exp_f32 v33, v33\nv_rcp_f32 v36, v36\nv_lshrrev_b32 v5, 1, v5\nv_mul_f32 v33, v33, v36")
    A(f"ds_write_b32 v5, v33 offset:{L_SC}")
    lds_flag(F_SC)
    stamp(3)
    tail_prep()
    if dry:
        A(f"s_mov_b32 s{rWS+2}, 0\ns_mov_b32 s{sLIM}, 0\ns_branch L_tail")
        A("L_dryret:")
        A(f"s_mov_b64 exec, -1\ns_mov_b32 s{rWS+2}, {hex(WS_SIZE)}\ns_mov_b32 s{sLIM}, 0x40000")
    if touch:
        lds_wait(F_RDY, sFL, NLD - touch, "touch", sleep=4)
        A(f"s_lshl_b32 s{sT1}, s{sX8}, 16\ns_lshl_b32 s{sT2}, s{sJJ}, 11\ns_add_u32 s{sT1}, s{sT1}, s{sT2}\ns_add_u32 s{sT1}, s{sT1}, {WS_H1}")
        A(f"v_lshlrev_b32 v5, 5, v1\nbuffer_load_dword v40, v5, {s4(rWS)}, s{sT1} offen sc1")
    A("L_endgate:")
    lds_wait(F_RDY, sFL, NLD, "endgate", sleep=1)

    A("L_tail:")
    stamp(4, 0)
    poll([f"buffer_load_dwordx4 {v4(40+4*i)}, v4, {s4(rWS)}, s{sI1} offen offset:{1024*i} sc1" for i in range(2)],
         chk4([40, 44]), "h1poll", sleep=h1sleep)
    stamp(5, 0)
    for e in range(4):
        A(f"v_add_f32 v{40+e}, v{40+e}, v{44+e}")
    red4(40)
    A(f"v_cvt_pk_bf16_f32 v40, v40, v41\ns_nop 0")
    for u in range(8):
        A(f"v_readlane_b32 s{sH+u}, v40, {32*(u&1) + (u>>1)}")
    for u in range(8):
        for z in range(2):
            c = "0" if u == 0 else f"v{48+z}"
            A(f"v_dot2_f32_bf16 v{48+z}, s{sH+u}, v{vWO+2*u+z}, {c}")
    if dry:
        A(f"s_cmp_eq_u32 s{sLIM}, 0\ns_cbranch_scc1 L_t2b\ns_cmp_lg_u32 s{sTW}, 3")
    else:
        A(f"s_cmp_lg_u32 s{sTW}, 3\ns_nop 1")
    A(f"ds_write_b64 v{vRW}, v[48:49] offset:{L_RED}")
    A("s_waitcnt lgkmcnt(0)\ns_barrier\ns_cbranch_scc1 L_fin")
    A("L_t2b:")
    for p in range(3):
        A(f"ds_read_b64 {v2(42+2*p)}, v{vRR} offset:{L_RED + 512*p}")
    lgkm(0)
    A("v_add_f32 v48, v48, v42\nv_add_f32 v49, v49, v43\nv_add_f32 v44, v44, v46\nv_add_f32 v45, v45, v47\nv_add_f32 v48, v48, v44\nv_add_f32 v49, v49, v45")
    embed(48, 48, TX2); embed(49, 49, TX2 + 1)
    A(f"buffer_store_dwordx2 v[48:49], v{vO2}, {s4(rWS)}, s{sO2} offen sc1")
    if dry:
        A(f"s_cmp_eq_u32 s{sLIM}, 0\ns_cbranch_scc1 L_t3b")
    A(f"s_cmp_lt_u32 s{sJJ}, 28\ns_cbranch_scc1 L_fin")
    A("L_t3b:")
    A(f"s_lshl_b32 s{sT0}, s{sX8}, 2\ns_add_u32 s{sT0}, s{sT0}, s{sJJ}\ns_sub_u32 s{sT0}, s{sT0}, 28\ns_and_b32 s{sT0}, s{sT0}, 31")
    A(f"s_lshr_b32 s{sT1}, s{sT0}, 1\ns_lshl_b32 s{sT1}, s{sT1}, 13\ns_and_b32 s{sT2}, s{sT0}, 1\ns_lshl_b32 s{sT2}, s{sT2}, 6\ns_add_u32 s{sT1}, s{sT1}, s{sT2}")
    A(f"s_add_u32 s{sT1}, s{sT1}, {WS_H2}\ns_add_u32 s{sT2}, s{sT1}, 4096\ns_lshl_b32 s{sT3}, s{sT0}, 5")
    A(f"v_lshrrev_b32 v55, 2, v1\nv_lshlrev_b32 v55, 7, v55\nv_and_b32 v5, 3, v1\nv_lshl_add_u32 v55, v5, 4, v55")
    A(f"v_lshlrev_b32 v5, 1, v5\nv_lshrrev_b32 v6, 5, v1\nv_add_u32 v5, v5, v6\nv_lshlrev_b32 v52, 2, v5")
    A(f"v_lshlrev_b32 v50, 16, v{vXP}\nv_and_b32 v51, s{sHI}, v{vXP}")
    A(f"s_min_u32 s{sH}, s{sLIM}, 1024")
    srd(rA, sOUT, f"s{sH}")
    if ackwait:
        A("s_waitcnt vmcnt(0)")
    if presleep:
        A(f"s_sleep {presleep}")
    poll([f"buffer_load_dwordx4 {v4(64+4*i)}, v55, {s4(rWS)}, s{sT1+i//2} offen offset:{2048*(i%2)} sc1" for i in range(4)],
         chk4([64, 68, 72, 76]), "h2poll", sleep=h2sleep)
    stamp(6, 0)
    for e in range(4):
        A(f"v_add_f32 v{64+e}, v{64+e}, v{68+e}\nv_add_f32 v{72+e}, v{72+e}, v{76+e}")
    for e in range(4):
        A(f"v_add_f32 v{64+e}, v{64+e}, v{72+e}")
    red4(64)
    A(f"v_cvt_pk_bf16_f32 v64, v64, v65\nv_and_b32 v65, s{sHI}, v64\nv_lshlrev_b32 v64, 16, v64")
    A(f"v_mul_f32 v64, v64, v{vG}\nv_mul_f32 v65, v65, v{vG+1}")
    A(f"v_cvt_pk_bf16_f32 v64, v64, v65\nv_and_b32 v65, s{sHI}, v64\nv_lshlrev_b32 v64, 16, v64")
    A("v_add_f32 v64, v64, v50\nv_add_f32 v65, v65, v51\nv_cvt_pk_bf16_f32 v64, v64, v65")
    A("s_mov_b32 exec_lo, 15\ns_mov_b32 exec_hi, 15")
    A(f"buffer_store_dword v64, v52, {s4(rA)}, s{sT3} offen {outflags}")
    if dry:
        A(f"s_cmp_eq_u32 s{sLIM}, 0\ns_cbranch_scc1 L_dryret")
    A(f"s_cmp_lg_u32 s{sT0}, 0\ns_cbranch_scc1 L_fin")
    A(f"s_mov_b64 exec, 1\nv_mov_b32 v65, s{sTAG}")
    A(f"buffer_store_dword v65, v7, {s4(rWS)}, 0 offen offset:{WS_EPOCH} sc1")
    A("L_fin:")
    if stamps:
        A("s_mov_b64 exec, -1")
        A("s_waitcnt vmcnt(0)")
        stamp(7)
        A("s_waitcnt lgkmcnt(0)")
        if diag is not None:
            dw, dwg, di, dj, mult = diag
            A(f"s_cmp_lg_u32 s{sW}, {dw}\ns_cbranch_scc1 L_padout")
            if dwg >= 0:
                A(f"s_cmp_lg_u32 s2, {dwg}\ns_cbranch_scc1 L_padout")
            A(f"s_cmp_eq_u32 s{sST+2*di}, 0\ns_cbranch_scc1 L_padout")
            A(f"s_sub_u32 s{sT2}, s{sST+2*di}, s{sST+2*dj}\ns_mul_i32 s{sT2}, s{sT2}, {mult}\ns_min_u32 s{sT2}, s{sT2}, 100000")
            A(f"s_add_u32 s{sT2}, s{sT2}, s{sST}\ns_add_u32 s{sT2}, s{sT2}, 10000")
            A("L_pad:")
            A(f"s_memrealtime {s2(sH)}\ns_waitcnt lgkmcnt(0)\ns_sub_u32 s{sT3}, s{sH}, s{sT2}\ns_cmp_lt_i32 s{sT3}, 0\ns_cbranch_scc1 L_pad")
            A("L_padout:")
        if pad is not None:
            A(f"s_cmp_eq_u32 s{sST+2*pad}, 0\ns_cbranch_scc1 L_padout")
            A(f"s_add_u32 s{sT2}, s{sST+2*pad}, 10000")
            A("L_pad:")
            A(f"s_memrealtime {s2(sH)}\ns_waitcnt lgkmcnt(0)\ns_sub_u32 s{sT3}, s{sH}, s{sT2}\ns_cmp_lt_i32 s{sT3}, 0\ns_cbranch_scc1 L_pad")
            A("L_padout:")
        for i in range(8):
            A(f"v_mov_b32 v{96+i}, s{sST+2*i}")
        A(f"s_mul_i32 s{sT1}, s2, 5\ns_add_u32 s{sT1}, s{sT1}, s{sW}\ns_lshl_b32 s{sT1}, s{sT1}, 5\ns_add_u32 s{sT1}, s{sT1}, {WS_STAMP}")
        A("s_mov_b64 exec, 1")
        A(f"buffer_store_dwordx4 v[96:99], v7, {s4(rWS)}, s{sT1} offen")
        A(f"buffer_store_dwordx4 v[100:103], v7, {s4(rWS)}, s{sT1} offen offset:16")
    A("L_end:")
    A("s_endpgm")

    out = HEADER
    out += f"; @launch grid=(256,1,1) block=(320,1,1) lds={LDS_BYTES}\n"
    out += '.amdgcn_target "amdgcn-amd-amdhsa--gfx950"\n.text\n'
    out += f".globl {KNAME}_kernel\n.p2align 8\n.type {KNAME}_kernel,@function\n"
    out += "\n".join(A.L) + "\n"
    out += f""".section .rodata,"a"
.p2align 6
.amdhsa_kernel {KNAME}_kernel
  .amdhsa_next_free_vgpr 216
  .amdhsa_next_free_sgpr 102
  .amdhsa_accum_offset 216
  .amdhsa_group_segment_fixed_size 0
  .amdhsa_kernarg_size 96
  .amdhsa_user_sgpr_count 2
  .amdhsa_user_sgpr_kernarg_segment_ptr 1
  .amdhsa_system_sgpr_workgroup_id_x 1
.end_amdhsa_kernel
"""
    return out


if __name__ == "__main__":
    kw = json.loads(sys.argv[2]) if len(sys.argv) > 2 else {}
    open(sys.argv[1], "w").write(gen(**kw))
```

```python
import sys, json, struct

KNAME = "recurrent_scan__gqa_block_cached__glu_gated_glu__decode"
HEADER = open("cdna_kernels/" + KNAME + ".s.ref").read().split("; Override launch")[0]

def f2u(x):
    return struct.unpack("<I", struct.pack("<f", x))[0]

LOG2E = 1.4426950408889634
WS_EPOCH = 0x0
WS_LS = 0x2000
WS_PG = 0x4000
WS_GP = 0x5000
WS_QX = 0x10000
WS_QXFAR = 0x100000
WS_G1 = 0x20000
WS_GL = 0x30000
WS_H1 = 0x40000
WS_H2 = 0xC0000
WS_STAMP = 0x1000000
WS_SIZE = 0x20000000
L_Q = 0
L_FLAG = 1024
F_RDY = L_FLAG
F_GUP = L_FLAG + 4
F_DONE = L_FLAG + 8
F_QH = L_FLAG + 16
F_XN = L_FLAG + 20
F_MX = L_FLAG + 24
F_PD = L_FLAG + 32
F_SC = L_FLAG + 40
F_WIN = L_FLAG + 44
L_MX = 1152
L_LS = 1216
L_SC = 1280
L_HB = 1536
L_RED = 2048
L_XN = L_RED
L_P = 4096
L_WO = 20480
L_WD = 36864
L_RING = 45056
NSLOT = 7
LDS_BYTES = L_RING + NSLOT * 16384
U0 = 7

sFL = 3
sMODE, sLIM, sI1, sO2 = 14, 15, 24, 25
sTW = 82
sPM = 48
sX, sK, sV, sWQ, sWO, sBX, sWG, sWU, sWD, sOUT, sDBG, sWS = 4, 6, 8, 10, 12, 14, 16, 18, 20, 22, 24, 26
rK, rV, rWS, rA, rB, rC, rD = 28, 32, 36, 40, 44, 48, 52
sW, sX8, sJJ, sCB, sSUB = 56, 57, 58, 59, 60
sC, sTHR, sCNT, sTAG = 61, 62, 63, 64
sSELL, sSELH, sSCALE, sLOG2E, sHI = 65, 66, 67, 68, 69
sT0, sT1, sT2, sT3 = 70, 71, 72, 73
sH = 74
sM = 82
sSPIN = 84
sLB = 85
sST = 86
TX4 = 8; TX2 = 12; vX0 = 14; vX1 = 15
vWO, vWT, vRW, vRR, vO2, vO1 = 192, 128, 208, 209, 210, 211


class G:
    def __init__(self):
        self.L = []
        self.n = 0
    def __call__(self, s):
        for line in s.strip("\n").split("\n"):
            self.L.append("    " + line.strip() if not line.strip().endswith(":") else line.strip())
    def label(self, base):
        self.n += 1
        return f"L_{base}_{self.n}"


def v4(r):
    return f"v[{r}:{r+3}]"
def v2(r):
    return f"v[{r}:{r+1}]"
def s4(r):
    return f"s[{r}:{r+3}]"
def s2(r):
    return f"s[{r}:{r+1}]"


def gen(kvflags="nt", wflags="nt", win=20, stamps=False, pad=None, qsleep=4, qgate=0, g2gate=24, g3gate=48,
        lsgate=100, h1sleep=0, h2sleep=0, csleep=0, lprio=0, smode=0, skip=0, prog=False, win2=0, last=6, force=0, qtry=96, outflags='', diag=None, prept=30, dry=True,
        pace=1, wins=(20, 22, 24, 28), c0=0, gs=8, endstop=48, psleep=16, bias=0, scal=False, gper=0, gbias=0, pld='sc1', unq=2, gs2=8, gmin=0, gmax=2, istep=1, epflags='', skew=None, presleep=0, touch=64, ackwait=True, lateat=0, latebias=0, cpf=True, qtouch=True):
    A = G()

    def srd(r, base, size):
        A(f"s_mov_b32 s{r}, s{base}\ns_mov_b32 s{r+1}, s{base+1}\ns_mov_b32 s{r+2}, {size}\ns_mov_b32 s{r+3}, 0x20000")

    def stamp(i, mode=None):
        if stamps and (mode is None or mode == smode):
            A(f"s_memrealtime {s2(sST + 2 * i)}")

    def lgkm(n):
        A(f"s_waitcnt lgkmcnt({n})")

    def swap_red(r, t, op, kinds=("16", "32")):
        for k in kinds:
            A(f"v_mov_b32 v{t}, v{r}\ns_nop 1\nv_permlane{k}_swap_b32 v{r}, v{t}\ns_nop 1\n{op} v{r}, v{r}, v{t}")

    def wave_red(r, t, op, rors):
        for k in rors:
            A(f"s_nop 1\n{op} v{r}, v{r}, v{r} row_ror:{k}")
        swap_red(r, t, op)

    def rnd_bf16(r):
        A(f"v_cvt_pk_bf16_f32 v{r}, v{r}, v{r}\nv_and_b32 v{r}, 0xffff0000, v{r}")

    def ln_stats(X, mean, rstd, F):
        D = F + 8
        for k in range(4):
            A(f"v_lshlrev_b32 v{F+2*k}, 16, v{X+k}\nv_and_b32 v{F+2*k+1}, s{sHI}, v{X+k}")
        A(f"v_add_f32 v{mean}, v{F}, v{F+1}")
        for k in range(2, 8):
            A(f"v_add_f32 v{mean}, v{mean}, v{F+k}")
        wave_red(mean, vX0, "v_add_f32", (8, 4, 2, 1))
        A(f"v_mul_f32 v{mean}, {hex(f2u(1/512))}, v{mean}")
        for k in range(8):
            A(f"v_sub_f32 v{D+k}, v{F+k}, v{mean}")
        A(f"v_mul_f32 v{rstd}, v{D}, v{D}")
        for k in range(1, 8):
            A(f"v_fmac_f32 v{rstd}, v{D+k}, v{D+k}")
        wave_red(rstd, vX0, "v_add_f32", (8, 4, 2, 1))
        A(f"v_mul_f32 v{rstd}, {hex(f2u(1/512))}, v{rstd}")
        rnd_bf16(mean); rnd_bf16(rstd)
        A(f"v_add_f32 v{rstd}, {hex(f2u(1e-5))}, v{rstd}")
        rnd_bf16(rstd)
        A(f"v_sqrt_f32 v{rstd}, v{rstd}\ns_nop 0")
        rnd_bf16(rstd)
        A(f"v_rcp_f32 v{rstd}, v{rstd}")

    def ln_apply(X, mean, rstd, D):
        for k in range(4):
            A(f"v_lshlrev_b32 v{D+2*k}, 16, v{X+k}\nv_and_b32 v{D+2*k+1}, s{sHI}, v{X+k}")
        for k in range(8):
            A(f"v_sub_f32 v{D+k}, v{D+k}, v{mean}")
        for k in range(4):
            A(f"v_cvt_pk_bf16_f32 v{X+k}, v{D+2*k}, v{D+2*k+1}")
        for k in range(4):
            A(f"v_lshlrev_b32 v{D+2*k}, 16, v{X+k}\nv_and_b32 v{D+2*k+1}, s{sHI}, v{X+k}")
        for k in range(8):
            A(f"v_mul_f32 v{D+k}, v{D+k}, v{rstd}")
        for k in range(4):
            A(f"v_cvt_pk_bf16_f32 v{X+k}, v{D+2*k}, v{D+2*k+1}")

    def matvec8(W, xs, acc, tmp, first=True):
        for j in range(4):
            for u in range(4):
                A(f"v_perm_b32 v{tmp+2*u}, v{W+(2*j+1)*4+u}, v{W+(2*j)*4+u}, s{sSELL}")
                A(f"v_perm_b32 v{tmp+2*u+1}, v{W+(2*j+1)*4+u}, v{W+(2*j)*4+u}, s{sSELH}")
            for e in range(8):
                c = "0" if (j == 0 and first) else f"v{acc+e}"
                A(f"v_dot2_f32_bf16 v{acc+e}, {xs[j]}, v{tmp+e}, {c}")
        A("s_nop 2")

    def reduce8(acc):
        A("s_nop 1")
        for e in range(4):
            A(f"v_permlane32_swap_b32 v{acc+e}, v{acc+4+e}")
        A("s_nop 1")
        for e in range(4):
            A(f"v_add_f32 v{acc+e}, v{acc+e}, v{acc+4+e}")
        A("s_nop 1")
        for e in range(2):
            A(f"v_permlane16_swap_b32 v{acc+e}, v{acc+2+e}")
        A("s_nop 1")
        for e in range(2):
            A(f"v_add_f32 v{acc+e}, v{acc+e}, v{acc+2+e}")
        A("s_nop 0")
        for e in range(2):
            A(f"v_add_f32 v{acc+e}, v{acc+e}, v{acc+e} row_ror:8")
        A("s_nop 0")

    def red4(a):
        A("s_nop 1")
        A(f"v_permlane32_swap_b32 v{a}, v{a+2}\nv_permlane32_swap_b32 v{a+1}, v{a+3}")
        A("s_nop 0")
        A(f"v_add_f32 v{a}, v{a}, v{a+2}\nv_add_f32 v{a+1}, v{a+1}, v{a+3}")
        for k in (8, 4):
            A("s_nop 0")
            A(f"v_add_f32 v{a}, v{a}, v{a} row_ror:{k}\nv_add_f32 v{a+1}, v{a+1}, v{a+1} row_ror:{k}")
        A(f"v_mov_b32 v{a+2}, v{a}\nv_mov_b32 v{a+3}, v{a+1}\ns_nop 0")
        A(f"v_permlane16_swap_b32 v{a}, v{a+2}\nv_permlane16_swap_b32 v{a+1}, v{a+3}")
        A("s_nop 0")
        A(f"v_add_f32 v{a}, v{a}, v{a+2}\nv_add_f32 v{a+1}, v{a+1}, v{a+3}")

    def lds_wait(addr, sreg, thr, name, sleep=1, vaddr=7, cached=False, pair=False):
        top = A.label(name); done = A.label(name + "_ok")
        if cached:
            A(f"s_cmp_ge_i32 s{sreg}, {thr}\ns_cbranch_scc1 {done}")
        A(f"s_mov_b32 s{sSPIN}, 0")
        A(f"{top}:")
        if pair:
            A(f"ds_read_b64 {v2(vX0)}, v{vaddr} offset:{addr}\ns_waitcnt lgkmcnt(0)\nv_min_i32 v{vX0}, v{vX0}, v{vX1}\ns_nop 0")
        else:
            A(f"ds_read_b32 v{vX0}, v{vaddr} offset:{addr}\ns_waitcnt lgkmcnt(0)")
        A(f"v_readfirstlane_b32 s{sreg}, v{vX0}")
        A(f"s_add_u32 s{sSPIN}, s{sSPIN}, 1")
        A(f"s_cmp_ge_i32 s{sreg}, {thr}\ns_cbranch_scc1 {done}")
        if sleep:
            A(f"s_sleep {sleep}")
        A(f"s_cmp_lt_u32 s{sSPIN}, 0x100000\ns_cbranch_scc1 {top}")
        A(f"{done}:")

    def lds_flag(addr, val=1, vaddr=7):
        A(f"v_mov_b32 v{vX0}, {val}\nds_write_b32 v{vaddr}, v{vX0} offset:{addr}")

    def make_tags():
        A(f"s_waitcnt lgkmcnt(0)\ns_add_u32 s{sTAG}, s{sTAG}, 0x9E3779B1")
        A(f"v_and_b32 v5, 1, v1\nv_lshlrev_b32 v5, 4, v5\nv_lshrrev_b32 v5, v5, s{sTAG}")
        for k in range(4):
            A(f"v_bfe_u32 v{TX4+k}, v5, {4*k}, 4")
        A(f"v_and_b32 v5, 3, v1\nv_lshlrev_b32 v5, 3, v5\nv_lshrrev_b32 v5, v5, s{sTAG}")
        for k in range(2):
            A(f"v_bfe_u32 v{TX2+k}, v5, {4*k}, 4")

    def embed(dst, src, tag):
        A(f"v_and_or_b32 v{dst}, v{src}, -16, v{tag}")

    def poll(loads, checks, name, sleep=0, full=False):
        top = A.label(name); done = A.label(name + "_ok")
        A(f"s_mov_b32 s{sSPIN}, 0")
        A(f"{top}:")
        for l in loads:
            A(l)
        A("s_waitcnt vmcnt(0)")
        A(f"v_xor_b32 v{vX0}, {checks[0][1]}, v{checks[0][0]}")
        for r, t in checks[1:]:
            A(f"v_bitop3_b32 v{vX0}, v{vX0}, v{r}, {t} bitop3:0xf6")
        if not full:
            A(f"v_and_b32 v{vX0}, 15, v{vX0}\nv_cmp_ne_u32 vcc, 0, v{vX0}")
        else:
            A(f"v_cmp_ne_u32 vcc, 0, v{vX0}")
        A(f"s_cbranch_vccz {done}")
        if sleep:
            A(f"s_sleep {sleep}")
        A(f"s_add_u32 s{sSPIN}, s{sSPIN}, 1\ns_cmp_lt_u32 s{sSPIN}, s{sLIM}\ns_cbranch_scc1 {top}")
        A(f"{done}:")

    def store2(line, cond_scc1_near):
        far = A.label("far"); done = A.label("st")
        A(cond_scc1_near)
        A(f"s_cbranch_scc0 {far}\n{line}\ns_branch {done}\n{far}:\n{line} sc1\n{done}:")

    def chk4(regs):
        return [(r + k, f"v{TX4+k}") for r in regs for k in range(4)]

    def next_slot(step):
        A(f"s_add_u32 s{sLB}, s{sLB}, {step*16384}\ns_sub_u32 s{sT0}, s{sLB}, {NSLOT*16384}")
        A(f"s_cmp_ge_u32 s{sLB}, {NSLOT*16384}\ns_cselect_b32 s{sLB}, s{sT0}, s{sLB}")

    def tail_prep():
        A(f"s_lshl_b32 s{sT2}, s{sTW}, 12\nv_lshl_add_u32 v6, v1, 2, s{sT2}")
        for n in range(16):
            A(f"ds_read_b32 v{vWT+n}, v6 offset:{L_WO + 256*n}")
        A(f"s_lshl_b32 s{sI1}, s{sX8}, 16\ns_and_b32 s{sT2}, s{sJJ}, 28\ns_add_u32 s{sT2}, s{sT2}, s{sTW}\ns_lshl_b32 s{sT2}, s{sT2}, 11")
        A(f"s_add_u32 s{sI1}, s{sI1}, s{sT2}\ns_add_u32 s{sI1}, s{sI1}, {WS_H1}")
        A(f"v_and_b32 v{vRW}, 0xff, v0\nv_lshlrev_b32 v{vRW}, 3, v{vRW}\nv_lshlrev_b32 v{vRR}, 3, v1")
        A(f"v_and_b32 v5, 15, v1\nv_lshlrev_b32 v5, 3, v5\nv_lshrrev_b32 v6, 4, v1\nv_lshl_add_u32 v{vO2}, v6, 13, v5")
        A(f"s_and_b32 s{sO2}, s{sJJ}, 3\ns_lshl_b32 s{sO2}, s{sO2}, 15\ns_lshl_b32 s{sT2}, s{sX8}, 10\ns_add_u32 s{sO2}, s{sO2}, s{sT2}")
        A(f"s_lshr_b32 s{sT2}, s{sJJ}, 2\ns_lshl_b32 s{sT2}, s{sT2}, 7\ns_add_u32 s{sO2}, s{sO2}, s{sT2}\ns_add_u32 s{sO2}, s{sO2}, {WS_H2}")
        lgkm(0)
        for u in range(8):
            A(f"v_perm_b32 v{vWO+2*u}, v{vWT+1+2*u}, v{vWT+2*u}, s{sSELL}\nv_perm_b32 v{vWO+1+2*u}, v{vWT+1+2*u}, v{vWT+2*u}, s{sSELH}")

    def sigmoid(dst, src):
        A(f"v_mul_f32 v{dst}, s{sLOG2E}, v{src}\nv_exp_f32 v{dst}, -v{dst}\ns_nop 0\nv_add_f32 v{dst}, 1.0, v{dst}\nv_rcp_f32 v{dst}, v{dst}\ns_nop 0")

    A(f"{KNAME}_kernel:")
    A("s_cmpk_ge_u32 s2, 0x100\ns_cbranch_scc1 L_end")
    stamp(0)
    A(f"s_load_dwordx16 s[4:19], s[0:1], 0\ns_load_dwordx8 s[20:27], s[0:1], 64")
    A(f"v_and_b32 v1, 63, v0\nv_readfirstlane_b32 s{sW}, v0")
    A(f"s_and_b32 s{sX8}, s2, 7\ns_lshr_b32 s{sJJ}, s2, 3")
    A("v_lshlrev_b32 v4, 4, v1")
    A("v_lshrrev_b32 v2, 3, v1\nv_and_b32 v3, 0x70, v4")
    A(f"s_mov_b32 s{rA+3}, 0x20000\ns_lshr_b32 s{sW}, s{sW}, 6\ns_cbranch_scc1 L_e1")
    A(f"s_and_b32 s{sT1}, s{sJJ}, 7\ns_lshl3_add_u32 s{sT1}, s{sX8}, s{sT1}\ns_lshl_b32 s{sT1}, s{sT1}, 7")
    A(f"s_lshr_b32 s{sT2}, s2, 6\ns_lshl_b32 s{sT2}, s{sT2}, 20\ns_add_u32 s{sT1}, s{sT1}, s{sT2}")
    A(f"v_lshl_add_u32 v5, v2, 17, v3\ns_mov_b32 s{rA+2}, {hex(512 * 4096 * 2)}\ns_movk_i32 m0, {L_P}")
    A(f"s_waitcnt lgkmcnt(0)\ns_mov_b64 {s2(rA)}, {s2(sWQ)}")
    stamp(4, 4)
    A("L_wq:")
    A(f"buffer_load_dwordx4 v5, {s4(rA)}, s{sT1} offen {wflags} lds")
    A(f"s_addk_i32 m0, 0x400\ns_addk_i32 s{sT1}, 0x2000\ns_cmpk_lt_u32 m0, {L_P + 16384}\ns_cbranch_scc1 L_wq")
    A("s_branch L_e2")
    A("L_e1:")
    if cpf:
        A(f"s_cmp_lg_u32 s{sW}, 1\ns_cbranch_scc1 L_e1b")
        A(f"s_getpc_b64 {s2(sT0)}")
        A("L_pc:")
        A(f"s_mul_i32 s{sT2}, s{sJJ}, 768\nv_mad_u32_u24 v5, v1, 12, s{sT2}\nv_min_u32 v5, L_end-L_pc, v5")
        A(f"global_load_dword v16, v5, {s2(sT0)}")
        A("L_e1b:")
    A(f"s_cmp_lg_u32 s{sW}, 2\ns_cbranch_scc1 L_e2")
    A(f"s_movk_i32 s{rA+2}, 0x400\ns_waitcnt lgkmcnt(0)\ns_mov_b64 {s2(rA)}, {s2(sX)}")
    A(f"buffer_load_dwordx4 v[16:19], v4, {s4(rA)}, 0 offen")
    A("L_e2:")
    A(f"v_and_b32 v6, 15, v1\nv_cmp_eq_u32 vcc, {(F_DONE + 4 - L_FLAG) // 4}, v6\nv_lshlrev_b32 v6, 2, v6\nv_mov_b32 v7, 0")
    A(f"v_cndmask_b32 v5, 0, 1, vcc\nds_write_b32 v6, v5 offset:{L_FLAG}")
    A(f"s_mul_i32 s{sCB}, s{sX8}, 3\ns_lshr_b32 s{sT0}, s{sJJ}, 3\ns_add_u32 s{sCB}, s{sCB}, s{sT0}\ns_and_b32 s{sSUB}, s{sJJ}, 7")
    A(f"s_lshr_b32 s{sT0}, s{sX8}, 1\ns_add_u32 s{sT0}, s{sT0}, 24\ns_and_b32 s{sT1}, s{sX8}, 1\ns_lshl_b32 s{sT1}, s{sT1}, 2\ns_add_u32 s{sT1}, s{sT1}, s{sSUB}")
    A(f"s_cmp_ge_u32 s{sJJ}, 24\ns_cselect_b32 s{sCB}, s{sT0}, s{sCB}\ns_cselect_b32 s{sSUB}, s{sT1}, s{sSUB}")
    A(f"s_mov_b32 s{sSELL}, 0x05040100\ns_mov_b32 s{sSELH}, 0x07060302")
    A(f"s_mov_b32 s{sSCALE}, {hex(f2u(128 ** -0.5))}\ns_mov_b32 s{sLOG2E}, {hex(f2u(LOG2E))}\ns_mov_b32 s{sHI}, 0xffff0000")
    if stamps:
        for i in range(1, 8):
            if not (smode == 4 and i == 4):
                A(f"s_mov_b64 {s2(sST+2*i)}, 0")
    A("s_waitcnt lgkmcnt(0)")
    A("s_barrier")
    stamp(5, 5)
    A(f"s_load_dword s{sTAG}, {s2(sWS)}, {WS_EPOCH}")
    A(f"s_mov_b32 s{sLIM}, 0x40000\ns_mov_b32 s{sMODE}, 1")
    srd(rWS, sWS, hex(WS_SIZE))
    if skew is not None:
        srd(rB, sDBG, 256)
    A(f"s_cmp_lg_u32 s{sW}, 0\ns_cbranch_scc1 L_notloader")

    D = win
    first_k = (D - 1) % 8
    vCNT = 24
    cnt = [0]
    DD = [D]
    def ld(line, static=False):
        i = cnt[0]
        if not static or i >= D:
            A(f"s_waitcnt vmcnt({DD[0]-1})")
        if static and i == D - 1: stamp(5, 4)
        if static and i == D: stamp(6, 4)
        A(line)
        if i % 8 == first_k and (not static or i >= D - 1 + 8):
            A(f"ds_write_b32 v7, v{vCNT} offset:{F_RDY}\nv_add_u32 v{vCNT}, 8, v{vCNT}")
        cnt[0] += 1
    if lprio:
        A(f"s_setprio {lprio}")
    A(f"v_mov_b32 v{vCNT}, 8")
    cnt[0] = 16
    assert D >= 16
    A(f"s_cmp_lt_u32 s{sJJ}, 28\ns_cselect_b32 s{sT3}, {hex(512 * 1792 * 2)}, 0")
    srd(rD, sWD, f"s{sT3}")
    A(f"s_cmp_lt_u32 s{sSUB}, 4\ns_cselect_b32 s{rB}, s{sWG}, s{sWU}\ns_cselect_b32 s{rB+1}, s{sWG+1}, s{sWU+1}")
    A(f"s_mov_b32 s{rB+2}, s{sT3}\ns_mov_b32 s{rB+3}, 0x20000")
    A(f"s_and_b32 s{sT1}, s{sSUB}, 3\ns_mul_i32 s{sT1}, s{sT1}, {128*3584}\ns_lshl_b32 s{sT2}, s{sCB}, 7\ns_add_u32 s{sT1}, s{sT1}, s{sT2}")
    A(f"v_mul_u32_u24 v6, {16*3584}, v2\nv_add_u32 v6, v6, v3")
    L_GU = L_RING + (NSLOT - 1) * 16384
    for i in range(16):
        A(f"s_mov_b32 m0, {L_GU + 1024*i}")
        A(f"s_add_u32 s{sT2}, s{sT1}, {3584*i}")
        ld(f"buffer_load_dwordx4 v6, {s4(rB)}, s{sT2} offen {wflags} lds", True)
    A(f"s_lshl_b32 s{sT1}, s{sCB}, 16\ns_lshl_b32 s{sT2}, s{sSUB}, 7\ns_add_u32 s{sT1}, s{sT1}, s{sT2}")
    A(f"v_lshl_add_u32 v5, v2, 13, v3")
    for i in range(8):
        if i % 4 == 0:
            A(f"s_mov_b32 m0, {L_WD + 1024*i}")
            A(f"s_add_u32 s{sT2}, s{sT1}, {1024*i}")
        ld(f"buffer_load_dwordx4 v5, {s4(rD)}, s{sT2} offen offset:{1024*(i%4)} {wflags} lds", True)
    srd(rA, sWO, hex(4096 * 512 * 2))
    A(f"s_lshl_b32 s{sT1}, s{sX8}, 9\ns_lshr_b32 s{sT2}, s{sJJ}, 4\ns_lshl_b32 s{sT2}, s{sT2}, 6\ns_add_u32 s{sT1}, s{sT1}, s{sT2}")
    A(f"s_and_b32 s{sT2}, s{sJJ}, 12\ns_add_u32 s{sT1}, s{sT1}, s{sT2}\ns_lshl_b32 s{sT1}, s{sT1}, 10")
    A(f"s_and_b32 s{sT2}, s{sJJ}, 3\ns_lshl_b32 s{sT2}, s{sT2}, 8\ns_add_u32 s{sT1}, s{sT1}, s{sT2}")
    A(f"v_lshrrev_b32 v6, 4, v1\nv_lshlrev_b32 v6, 10, v6\nv_and_b32 v25, 15, v1\nv_lshl_add_u32 v6, v25, 4, v6")
    for w in range(4):
        for h in range(4):
            A(f"s_mov_b32 m0, {L_WO + 4096*w + 1024*h}")
            A(f"s_add_u32 s{sT2}, s{sT1}, {(128*h + 16*w)*1024}")
            ld(f"buffer_load_dwordx4 v6, {s4(rA)}, s{sT2} offen {wflags} lds", True)
    assert cnt[0] == 8 * U0 and D + 7 <= 8 * U0
    stamp(1)
    A(f"s_lshl_b32 s{sT0}, s{sX8}, 24\ns_lshl_b32 s{sT1}, s{sJJ}, 19\ns_add_u32 s{sT0}, s{sT0}, s{sT1}")
    A(f"s_add_u32 s{rK}, s{sK}, s{sT0}\ns_addc_u32 s{rK+1}, s{sK+1}, 0\ns_mov_b32 s{rK+2}, 0x80000\ns_mov_b32 s{rK+3}, 0x20000")
    A(f"s_add_u32 s{rV}, s{sV}, s{sT0}\ns_addc_u32 s{rV+1}, s{sV+1}, 0\ns_mov_b32 s{rV+2}, 0x80000\ns_mov_b32 s{rV+3}, 0x20000")
    A("v_lshrrev_b32 v5, 4, v1\nv_lshlrev_b32 v5, 6, v5\nv_xor_b32 v16, v4, v5")
    A("v_and_b32 v5, 16, v1\nv_lshlrev_b32 v5, 1, v5\nv_xor_b32 v20, v4, v5")
    for n in range(1, 4):
        A(f"v_xor_b32 v{16+n}, {16*n}, v16\nv_xor_b32 v{20+n}, {64*n}, v20")
    sI, sLV = sH + 1, sH + 2
    NLD = 8 * U0 + 1024
    if not pace:
        wins = (win,); c0 = 0
    A(f"s_mov_b32 s{sCNT}, 0\ns_mov_b32 s{sLB}, 0\ns_mov_b32 s{sFL}, 0\ns_mov_b32 s{sH}, 0\ns_mov_b32 s{sI}, {8*U0}\nv_mov_b32 v25, 0\nv_subrev_u32 v26, 8, v{vCNT}")
    A("L_tile:")
    A(f"s_cmp_lg_u32 s{sCNT}, 32\ns_cbranch_scc1 L_nosw")
    stamp(4, 1); stamp(5, 3)
    A(f"s_mov_b64 {s2(rK)}, {s2(rV)}\ns_mov_b32 s{sH}, 0")
    for n in range(4):
        A(f"v_mov_b32 v{16+n}, v{20+n}")
    A("L_nosw:")
    A(f"s_sub_u32 s{sTHR}, s{sCNT}, {NSLOT-1}")
    A(f"s_cmp_lg_u32 s{sTHR}, 0\ns_cbranch_scc1 L_nogup")
    lds_wait(F_GUP, sT2, 1, "gup", sleep=0)
    stamp(2)
    A("L_nogup:")
    lds_wait(F_DONE, sFL, f"s{sTHR}", "free", sleep=0, cached=True, pair=True)
    A(f"s_add_u32 m0, s{sLB}, {L_RING}")
    if pace:
        A(f"s_waitcnt lgkmcnt(0)\nv_readfirstlane_b32 s{sLV}, v25\nds_read_b32 v25, v7 offset:{F_WIN}")
    order = sorted(range(len(wins)), key=lambda k: (abs(k - c0), -k))
    for idx, k in enumerate(order[1:]):
        A(f"s_cmp_eq_i32 s{sLV}, {k - c0}\ns_cbranch_scc1 L_ver{idx+1}")
    def version(idx, W):
        A(f"L_ver{idx}:")
        A(f"s_sub_u32 s{sT2}, s{sI}, {W-1}\nv_mov_b32 v{vCNT}, s{sT2}")
        A(f"L_vq{idx}:")
        for hq in range(unq):
            for n in range(4):
                A(f"s_waitcnt vmcnt({W-1})")
                A(f"buffer_load_dwordx4 v{16+n}, {s4(rK)}, s{sH} offen offset:{1024*n} {kvflags} lds")
                if n == 0:
                    A(f"v_max_i32 v26, v26, v{vCNT}\nv_add_u32 v{vCNT}, 4, v{vCNT}\nds_write_b32 v7, v26 offset:{F_RDY}")
            A(f"s_addk_i32 m0, 0x1000\ns_addk_i32 s{sH}, 0x1000")
        if unq < 4:
            A(f"s_and_b32 s{sT2}, s{sH}, 0x3fff\ns_cbranch_scc1 L_vq{idx}")
    version(0, wins[order[0]])
    A("L_qend:")
    A(f"s_add_u32 s{sI}, s{sI}, 16")
    next_slot(1)
    if stamps and smode == 3:
        for q in range(2):
            A(f"s_cmp_lg_u32 s{sCNT}, {32*q+15}\ns_cbranch_scc1 L_np{q}")
            stamp(4 + 2 * q, 3)
            A(f"L_np{q}:")
    A(f"s_add_u32 s{sCNT}, s{sCNT}, 1\ns_cmp_lt_u32 s{sCNT}, 64\ns_cbranch_scc1 L_tile")
    for rem in (24, 16, 8, 0):
        A(f"v_max_i32 v26, {NLD - rem}, v26\ns_waitcnt vmcnt({rem})\nds_write_b32 v7, v26 offset:{F_RDY}")
    stamp(3)
    A("s_branch L_fin")

    for idx, k in enumerate(order[1:]):
        version(idx + 1, wins[k])
        A("s_branch L_qend")
    A("L_pace:")
    srd(rB, sDBG, 256)
    if skew is not None:
        A(f"s_cmp_lg_u32 s{sJJ}, 0\ns_cbranch_scc1 L_nosk")
        A(f"s_not_b32 s{sT0}, s{sST}\nv_mov_b32 v16, s{sT0}\ns_mov_b64 exec, 1\nbuffer_atomic_umax v16, v7, {s4(rB)}, 0 offen offset:64\ns_mov_b64 exec, -1")
        A("L_nosk:")
    make_tags()
    lds_wait(F_RDY, sFL, 8 * U0, "wop", sleep=8)
    A(f"s_mov_b32 s{sTW}, 0")
    tail_prep()
    if pace:
        sP, sPP, sS, sD, sPGA, sOWN, sSP = sH, sH + 1, sH + 2, sH + 3, sH + 4, sH + 5, sH + 6
        lds_wait(F_QH, sMODE, 1, "qhp", sleep=8)
        A(f"s_cmp_lg_u32 s{sMODE}, 2\ns_cbranch_scc1 L_pdone")
        A(f"v_lshlrev_b32 v5, 2, v1")
        A(f"s_lshl_b32 s{sPGA}, s{sX8}, 8\ns_add_u32 s{sPGA}, s{sPGA}, {WS_PG}\ns_lshl_b32 s{sOWN}, s{sJJ}, 2\ns_add_u32 s{sOWN}, s{sOWN}, s{sPGA}")
        A(f"s_mov_b32 s{sP}, 0\ns_mov_b32 s{sCNT}, 0\ns_mov_b32 s{sSP}, 0")
        A("L_pl:")
        A(f"s_mov_b32 s{sPP}, s{sP}\nds_read_b32 v16, v7 offset:{F_RDY}\ns_waitcnt lgkmcnt(0)\nv_readfirstlane_b32 s{sP}, v16")
        A(f"s_add_u32 s{sCNT}, s{sCNT}, 1\ns_cmp_gt_u32 s{sCNT}, 0x10000\ns_cbranch_scc1 L_pdone")
        A(f"s_and_b32 s{sT3}, s{sTAG}, 0xfffff800\ns_or_b32 s{sT0}, s{sT3}, s{sP}\nv_mov_b32 v16, s{sT0}")
        A(f"s_mov_b64 exec, 1\nbuffer_store_dword v16, v7, {s4(rWS)}, s{sOWN} offen\ns_mov_b64 exec, -1")
        A(f"s_cmp_ge_u32 s{sP}, {NLD - endstop}\ns_cbranch_scc1 L_pdone")
        if pace == 1:
            A("s_mov_b32 exec_hi, 0")
        A(f"buffer_load_dword v17, v5, {s4(rWS)}, s{sPGA} offen sc1")
        A("s_waitcnt vmcnt(0)")
        A(f"v_xor_b32 v19, s{sT3}, v17\nv_cmp_lt_u32 vcc, 0x7ff, v19\ns_nop 0")
        if pace > 1:
            A(f"v_readlane_b32 s{sD}, v19, 32")
        for k in (8, 4, 2, 1):
            A(f"s_nop 1\nv_add_u32 v19, v19, v19 row_ror:{k}")
        A(f"s_cmp_lg_u32 vcc_lo, 0\ns_cbranch_scc1 L_pnext")
        A(f"v_readlane_b32 s{sS}, v19, 0\nv_readlane_b32 s{sT0}, v19, 16")
        A(f"s_cmp_eq_u32 s{sPP}, 0\ns_cbranch_scc1 L_pnext")
        A(f"s_add_u32 s{sS}, s{sS}, s{sT0}")
        A(f"s_add_u32 s{sT0}, s{sP}, s{sPP}\ns_lshl_b32 s{sT0}, s{sT0}, 4\ns_sub_u32 s{sT0}, s{sS}, s{sT0}")
        A(f"s_add_u32 s{sT0}, s{sT0}, {(1 << (gs - 1)) + bias}\ns_ashr_i32 s{sT0}, s{sT0}, {gs}\ns_max_i32 s{sT0}, s{sT0}, 0")
        if istep != 1:
            A(f"s_mul_i32 s{sT0}, s{sT0}, {istep}")
        if pace > 1:
            A(f"s_cmp_lt_u32 s{sD}, 0x800\ns_cselect_b32 s{sD}, s{sD}, {c0}\ns_add_u32 s{sT0}, s{sT0}, s{sD}\ns_sub_u32 s{sT0}, s{sT0}, {c0}")
        A(f"s_min_i32 s{sT0}, s{sT0}, {len(wins)-1-c0}")
        A(f"v_mov_b32 v16, s{sT0}\nds_write_b32 v7, v16 offset:{F_WIN}")
        if pace > 1:
            A(f"s_and_b32 s{sT2}, s{sCNT}, {(1 << gper) - 1}\ns_lshl_b32 s{sT2}, s{sT2}, 5\ns_add_u32 s{sT2}, s{sT2}, s{sJJ}\ns_cmp_lg_u32 s{sT2}, 31\ns_cbranch_scc1 L_pnext")
            A(f"s_cmp_eq_u32 s{sSP}, 0\ns_cselect_b32 s{sT1}, 0x1000000, 0\ns_sub_u32 s{sT0}, s{sS}, s{sSP}\ns_add_u32 s{sT0}, s{sT0}, s{sT1}\nv_mov_b32 v16, s{sT0}")
            A(f"s_mov_b64 exec, 1\nbuffer_atomic_add v16, v7, {s4(rB)}, 0 offen sc0\ns_waitcnt vmcnt(0)\nv_readfirstlane_b32 s{sT0}, v16")
            A(f"s_add_u32 s{sT1}, s{sS}, s{sSP}\ns_mul_i32 s{sT1}, s{sT1}, 7\ns_lshr_b32 s{sT1}, s{sT1}, 1\ns_add_u32 s{sT1}, s{sT1}, s{sSP}\ns_mov_b32 s{sSP}, s{sS}")
            A(f"s_sub_u32 s{sT0}, s{sT0}, 0x8000000\ns_cbranch_scc1 L_pnext")
            A(f"s_sub_u32 s{sT0}, s{sT0}, s{sT1}\ns_add_u32 s{sT0}, s{sT0}, {(1 << (gs2 + 2)) + 8 * gbias}\ns_ashr_i32 s{sT0}, s{sT0}, {gs2 + 3}")
            A(f"s_max_i32 s{sT0}, s{sT0}, {gmin}\ns_min_i32 s{sT0}, s{sT0}, {gmax}\ns_add_u32 s{sT0}, s{sT0}, {c0}\ns_or_b32 s{sT0}, s{sT0}, s{sT3}\nv_mov_b32 v16, s{sT0}")
            A(f"buffer_store_dword v16, v7, {s4(rWS)}, s{sPGA} offen offset:128")
        A("L_pnext:")
        A(f"s_mov_b64 exec, -1\ns_sleep {psleep}\ns_branch L_pl")

    A("L_pdone:")
    A("s_branch L_endgate")

    A("L_notloader:")
    A(f"s_mov_b32 s{sTW}, s{sW}\ns_cmp_eq_u32 s{sW}, 4\ns_cbranch_scc1 L_pace")
    A(f"s_cmp_eq_u32 s{sW}, 3\ns_cbranch_scc1 L_help")
    A(f"s_sub_u32 s{sC}, s{sW}, 1")
    A(f"s_cmp_eq_u32 s{sW}, 2\ns_cbranch_scc1 L_w2")
    if qtouch:
        A(f"s_lshl_b32 s{sT1}, s{sX8}, 13\ns_lshl_b32 s{sT2}, s{sJJ}, 8\ns_add_u32 s{sT1}, s{sT1}, s{sT2}\ns_add_u32 s{sT1}, s{sT1}, {WS_QX}")
        A(f"v_lshlrev_b32 v5, 2, v1\nbuffer_load_dword v17, v5, {s4(rWS)}, s{sT1} offen sc1")
    make_tags()
    A("s_branch L_qwait")
    def slice_mv(sKS, lds_base, unit0, after_read=None):
        A(f"s_lshl_b32 s{sT2}, s{sKS}, 8\nv_lshl_add_u32 v5, v2, 5, s{sT2}")
        A(f"ds_read_b128 v[20:23], v5 offset:{L_XN}\nds_read_b128 v[24:27], v5 offset:{L_XN+16}")
        A(f"v_add_u32 v6, {lds_base}, v4")
        for half in range(2):
            lds_wait(F_RDY, sFL, 8 * (unit0 + half + 1), "wsl", sleep=1)
            for i in range(8):
                A(f"ds_read_b128 {v4(64+4*i)}, v6 offset:{8192*half + 1024*i}")
            lgkm(0)
            if half == 1:
                stamp(6, 2)
                if after_read:
                    after_read()
            matvec8(64, [f"v{20+4*half+k}" for k in range(4)], 32, 40, first=(half == 0))
        reduce8(32)
        A(f"v_lshrrev_b32 v6, 4, v1\nv_lshlrev_b32 v6, 6, v6\nv_lshrrev_b32 v5, 1, v3\nv_add_u32 v6, v6, v5")
    A("L_w2:")
    A(f"s_lshr_b32 s{sT3}, s2, 6")
    A("s_waitcnt vmcnt(0)")
    stamp(4, 2)
    ln_stats(16, 28, 29, 32)
    ln_apply(16, 28, 29, 32)
    A(f"ds_write_b128 v4, v[16:19] offset:{L_XN}")
    lds_flag(F_XN)
    stamp(5, 2)
    make_tags()
    slice_mv(sT3, L_P, 0)
    sXC = sH + 4
    A(f"s_getreg_b32 s{sXC}, hwreg(HW_REG_XCC_ID, 0, 4)")
    if force:
        A(f"s_and_b32 s{sXC}, s{sJJ}, 1")
    embed(34, 32, TX2); embed(35, 33, TX2 + 1)
    A(f"v_xor_b32 v32, s{sXC}, v34\nv_xor_b32 v33, s{sXC}, v35")
    A(f"s_lshl_b32 s{sH}, s{sX8}, 13\ns_add_u32 s{sH}, s{sH}, {WS_QX}\ns_lshl_b32 s{sT2}, s{sT3}, 11\ns_add_u32 s{sT1}, s{sH}, s{sT2}")
    A(f"s_and_b32 s{sT2}, s{sJJ}, 7\ns_lshl_b32 s{sT2}, s{sT2}, 8\ns_add_u32 s{sT1}, s{sT1}, s{sT2}")
    A("s_mov_b32 exec_lo, 0x00ff00ff\ns_mov_b32 exec_hi, 0x00ff00ff")
    A(f"buffer_store_dwordx2 v[32:33], v6, {s4(rWS)}, s{sT1} offen")
    A("s_mov_b64 exec, -1")
    stamp(1)
    for k in range(4):
        A(f"v_xor_b32 v{36+k}, s{sXC}, v{TX4+k}")
    A(f"s_add_u32 s{sH+1}, s{sH}, 4096\ns_mov_b32 s{sMODE}, 2")
    if qgate:
        lds_wait(F_RDY, sFL, 8 * qgate, "qgate", sleep=2)
    A(f"s_mov_b32 s{sSPIN}, 0")
    A("L_qpoll:")
    for i in range(8):
        A(f"buffer_load_dwordx4 {v4(64+4*i)}, v4, {s4(rWS)}, s{sH+i//4} offen offset:{1024*(i%4)} sc1")
    A("s_waitcnt vmcnt(0)")
    A(f"v_xor_b32 v{vX0}, v64, v36")
    for i in range(1, 32):
        A(f"v_bitop3_b32 v{vX0}, v{vX0}, v{64+i}, v{36+i%4} bitop3:0xf6")
    A(f"v_and_b32 v{vX0}, 15, v{vX0}\nv_cmp_ne_u32 vcc, 0, v{vX0}\ns_cbranch_vccz L_qok")
    A(f"s_sleep {qsleep}\ns_add_u32 s{sSPIN}, s{sSPIN}, 1\ns_cmp_lt_u32 s{sSPIN}, {qtry}\ns_cbranch_scc1 L_qpoll")
    A(f"s_cmp_lg_u32 s{sSPIN}, {qtry}\ns_cbranch_scc1 L_qflip")
    A(f"s_xor_b32 s{sT1}, s{sT1}, {WS_QXFAR}")
    A("s_mov_b32 exec_lo, 0x00ff00ff\ns_mov_b32 exec_hi, 0x00ff00ff")
    A(f"buffer_store_dwordx2 v[34:35], v6, {s4(rWS)}, s{sT1} offen sc1")
    A("s_mov_b64 exec, -1")
    A("L_qflip:")
    A(f"s_xor_b32 s{sH}, s{sH}, {WS_QXFAR}\ns_xor_b32 s{sH+1}, s{sH+1}, {WS_QXFAR}\ns_xor_b32 s{sMODE}, s{sMODE}, 3")
    for k in range(4):
        A(f"v_xor_b32 v{36+k}, s{sXC}, v{36+k}")
    A(f"s_cmp_lt_u32 s{sSPIN}, s{sLIM}\ns_cbranch_scc1 L_qpoll")
    A("L_qok:")
    for e in range(8):
        A(f"v_add_f32 v{64+e}, v{64+e}, v{72+e}\nv_add_f32 v{80+e}, v{80+e}, v{88+e}")
    for e in range(8):
        A(f"v_add_f32 v{64+e}, v{64+e}, v{80+e}")
    for e in range(4):
        A(f"v_cvt_pk_bf16_f32 v{64+e}, v{64+2*e}, v{65+2*e}")
    A(f"v_lshrrev_b32 v6, 4, v1\nv_lshlrev_b32 v6, 7, v6\nv_and_b32 v5, 3, v1\nv_lshl_add_u32 v6, v5, 5, v6")
    A(f"v_and_b32 v5, 12, v1\nv_add_u32 v6, v6, v5")
    for e in range(4):
        A(f"ds_write_b32 v6, v{64+e} offset:{L_Q + 16*(e&1) + 512*(e>>1)}")
    lds_flag(F_QH, val=f"s{sMODE}")
    A("L_qwait:")
    vOWN, vOTH = 30, 31
    A(f"s_lshl_b32 s{sT2}, s{sC}, 2\nv_mov_b32 v{vOWN}, s{sT2}\nv_xor_b32 v{vOTH}, 4, v{vOWN}")
    vQV, vKT, vS, vT, vMAX, vAD, vKA, vPA, vDN = 32, 96, 160, 164, 172, 176, 184, 188, 189
    A("v_and_b32 v5, 3, v1\nv_lshlrev_b32 v5, 10, v5\nv_bfe_u32 v6, v1, 2, 2\nv_lshl_add_u32 v5, v6, 8, v5")
    A(f"v_lshrrev_b32 v6, 4, v1\nv_xor_b32 v6, v6, v1\nv_and_b32 v6, 15, v6\nv_lshl_add_u32 v{vKA}, v6, 4, v5")
    for n in range(1, 4):
        A(f"v_xor_b32 v{vKA+n}, {64*n}, v{vKA}")
    A(f"v_and_b32 v5, 3, v1\nv_lshlrev_b32 v5, 6, v5\nv_lshrrev_b32 v6, 4, v1\nv_lshl_add_u32 v5, v6, 4, v5")
    A(f"v_mov_b32 v29, v5")
    A(f"v_and_b32 v6, 8, v1\nv_lshl_add_u32 v5, v6, 5, v5\nv_and_b32 v6, 4, v1\nv_lshl_add_u32 v5, v6, 1, v5")
    A(f"s_lshl_b32 s{sT2}, s{sC}, 9\nv_add_u32 v{vPA}, s{sT2}, v5")
    A(f"v_mov_b32 v{vMAX}, {hex(f2u(-3e38))}")
    A(f"s_add_u32 s{sT2}, s{sC}, 2\nv_mov_b32 v{vDN}, s{sT2}")
    A("v_and_b32 v6, 3, v1\nv_lshlrev_b32 v6, 8, v6\nv_lshrrev_b32 v5, 4, v1\nv_lshl_add_u32 v6, v5, 4, v6")
    A(f"s_mov_b32 s{sFL}, 0")
    lds_wait(F_QH, sMODE, 1, "qh", sleep=1)
    stamp(2)
    for s in range(4):
        A(f"ds_read_b128 {v4(vKT+4*s)}, v6 offset:{L_Q + 64*s}")
    lgkm(0)
    for b in range(4):
        A(f"s_mov_b32 vcc_lo, {hex(0x000f000f << (4*b))}\ns_mov_b32 vcc_hi, {hex(0x000f000f << (4*b))}")
        for i in range(16):
            A(f"v_cndmask_b32 v{vQV+16*b+i}, 0, v{vKT+i}, vcc")
    A(f"s_lshl_b32 s{sLB}, s{sC}, 14\ns_lshl_b32 s{sTHR}, s{sC}, 4\ns_add_u32 s{sTHR}, s{sTHR}, {8*(U0+2)}")
    A(f"s_mov_b32 s{sCNT}, 0")
    A("L_p1:")
    for n in range(4):
        A(f"v_add_u32 v{vAD+n}, s{sLB}, v{vKA+n}")
    lds_wait(F_RDY, sFL, f"s{sTHR}", "krdy", sleep=csleep, cached=True)
    for b in range(4):
        for n in range(4):
            A(f"ds_read_b128 {v4(vKT+16*b+4*n)}, v{vAD+n} offset:{L_RING + 4096*b}")
    for b in range(4):
        lgkm(12 - 4 * b)
        if b == 3:
            A(f"ds_write_b32 v{vOWN}, v{vDN} offset:{F_DONE}")
        for n in range(4):
            c = "0" if b + n == 0 else v4(vS)
            A(f"v_mfma_f32_16x16x32_bf16 {v4(vS)}, {v4(vKT+16*b+4*n)}, {v4(vQV+16*b+4*n)}, {c}")
    A(f"v_add_u32 v{vDN}, 2, v{vDN}\nv_min_u32 v{vDN}, 32, v{vDN}")
    next_slot(2)
    A(f"s_add_u32 s{sTHR}, s{sTHR}, 32\ns_add_u32 s{sCNT}, s{sCNT}, 1\ns_nop 1")
    A(f"v_cvt_pk_bf16_f32 v{vT}, v{vS}, v{vS+1}\nv_cvt_pk_bf16_f32 v{vT+1}, v{vS+2}, v{vS+3}")
    A(f"v_max3_f32 v{vMAX}, v{vMAX}, v{vS}, v{vS+1}\nv_max3_f32 v{vMAX}, v{vMAX}, v{vS+2}, v{vS+3}")
    for j in range(2):
        A(f"v_lshlrev_b32 v{vT+2+2*j}, 16, v{vT+j}\nv_and_b32 v{vT+3+2*j}, s{sHI}, v{vT+j}")
    for i in range(4):
        A(f"v_mul_f32 v{vT+2+i}, s{sSCALE}, v{vT+2+i}")
    A(f"v_cvt_pk_bf16_f32 v{vT}, v{vT+2}, v{vT+3}\nv_cvt_pk_bf16_f32 v{vT+1}, v{vT+4}, v{vT+5}")
    A(f"ds_write_b64 v{vPA}, {v2(vT)} offset:{L_P}\nv_add_u32 v{vPA}, 1024, v{vPA}")
    A(f"s_cmp_lt_u32 s{sCNT}, 16\ns_cbranch_scc1 L_p1")
    stamp(4, 1)
    wave_red(vMAX, vX0, "v_max_f32", (8, 4))
    A(f"v_and_b32 v5, 3, v1\nv_lshlrev_b32 v5, 2, v5\nv_lshl_add_u32 v6, v{vOWN}, 2, v5\nv_xor_b32 v5, 16, v6")
    A(f"ds_write_b32 v6, v{vMAX} offset:{L_MX}")
    lds_flag(F_MX, vaddr=vOWN)
    A(f"v_subrev_u32 v{vPA}, 16384, v{vPA}")
    lds_wait(F_MX, sT0, 1, "mx", sleep=0, vaddr=vOTH)
    A(f"ds_read_b32 v{vX1}, v5 offset:{L_MX}")
    for i in range(16):
        A(f"ds_read_b64 {v2(32+2*i)}, v{vPA} offset:{L_P + 1024*i}")
    lgkm(0)
    vMN, vLSUM = 173, 174
    A(f"v_max_f32 v{vMAX}, v{vMAX}, v{vX1}")
    rnd_bf16(vMAX)
    A(f"v_mul_f32 v{vMAX}, s{sSCALE}, v{vMAX}")
    rnd_bf16(vMAX)
    A(f"v_mul_f32 v{vMN}, s{sLOG2E}, v{vMAX}\nv_mov_b32 v{vLSUM}, 0")
    for i in range(0, 16, 2):
        E = 96
        for j in range(4):
            A(f"v_lshlrev_b32 v{E+2*j}, 16, v{32+2*i+j}\nv_and_b32 v{E+2*j+1}, s{sHI}, v{32+2*i+j}")
        for j in range(8):
            A(f"v_fma_f32 v{E+j}, v{E+j}, s{sLOG2E}, -v{vMN}")
        for j in range(8):
            A(f"v_exp_f32 v{E+j}, v{E+j}")
        A("s_nop 0")
        for j in range(4):
            A(f"v_cvt_pk_bf16_f32 v{32+2*i+j}, v{E+2*j}, v{E+2*j+1}")
        A(f"ds_write_b64 v{vPA}, {v2(32+2*i)} offset:{L_P + 1024*i}\nds_write_b64 v{vPA}, {v2(34+2*i)} offset:{L_P + 1024*(i+1)}")
        for j in range(4):
            A(f"v_add_f32 v{E+j}, v{E+j}, v{E+4+j}")
        A(f"v_add_f32 v{E}, v{E}, v{E+1}\nv_add_f32 v{E+2}, v{E+2}, v{E+3}\nv_add_f32 v{vLSUM}, v{vLSUM}, v{E}\nv_add_f32 v{vLSUM}, v{vLSUM}, v{E+2}")
    wave_red(vLSUM, vX0, "v_add_f32", (8, 4))
    A(f"v_lshlrev_b32 v6, 1, v6\nv_mov_b32 v{vLSUM+1}, v{vMN}\nds_write_b64 v6, {v2(vLSUM)} offset:{L_LS}")
    lds_flag(F_PD, vaddr=vOWN)
    vO, vVF, vPF, vVA = 32, 48, 80, 184
    A("v_and_b32 v5, 12, v1\nv_lshrrev_b32 v6, 4, v1\nv_add_u32 v6, v6, v5\nv_lshlrev_b32 v6, 8, v6")
    A(f"v_lshrrev_b32 v{vX1}, 3, v1\nv_and_b32 v{vX1}, 2, v{vX1}\nv_or_b32 v5, v5, v{vX1}")
    A(f"v_bfe_u32 v{vX1}, v1, 1, 1\nv_xor_b32 v5, v5, v{vX1}\ns_lshl_b32 s{sT2}, s{sC}, 3\nv_xor_b32 v5, s{sT2}, v5")
    A(f"v_lshl_add_u32 v6, v5, 4, v6\nv_and_b32 v5, 1, v1\nv_lshl_add_u32 v{vVA}, v5, 3, v6")
    for n in range(1, 4):
        A(f"v_xor_b32 v{vVA+n}, {32*n}, v{vVA}")
    for i in range(4):
        A(f"v_mov_b32 v{vO+i}, 0")
    for i in range(32):
        A(f"v_mov_b32 v{vPF+i}, 0")
    for T in range(4):
        A(f"s_mov_b32 s{sPM+2*T}, {hex(0x000f000f << (4*T))}\ns_mov_b32 s{sPM+2*T+1}, s{sPM+2*T}")
    A(f"v_mov_b32 v{vDN}, 33\nv_mov_b32 v{vPA}, v29")
    A(f"s_mov_b32 s{sLB}, {(32 % NSLOT) * 16384}\ns_mov_b32 s{sTHR}, {8*(U0+64+1)}\ns_mov_b32 s{sCNT}, 0")
    tail_prep()
    A(f"v_lshrrev_b32 v6, 2, v1\nv_lshlrev_b32 v6, 11, v6\nv_and_b32 v5, 3, v1\nv_lshl_add_u32 v{vO1}, v5, 4, v6")
    A(f"s_lshl_b32 s{sT1}, s{sX8}, 16\ns_lshl_b32 s{sT2}, s{sC}, 15\ns_add_u32 s{sT1}, s{sT1}, s{sT2}")
    A(f"s_lshl_b32 s{sT2}, s{sJJ}, 6\ns_add_u32 s{sT1}, s{sT1}, s{sT2}\ns_add_u32 s{sT1}, s{sT1}, {WS_H1}")
    lds_wait(F_PD, sT0, 1, "pd", sleep=0, vaddr=vOTH)
    stamp(5, 1)
    vSC = 28
    A("L_p2:")
    for n in range(4):
        A(f"v_add_u32 v{vAD+n}, s{sLB}, v{vVA+n}")
    A(f"s_cmp_lg_u32 s{sCNT}, {prept}\ns_cbranch_scc1 L_nosc")
    lds_wait(F_SC, sT0, 1, "sc", sleep=1)
    A(f"v_and_b32 v5, 3, v1\nv_lshlrev_b32 v5, 2, v5\nds_read_b32 v{vSC}, v5 offset:{L_SC}")
    A("L_nosc:")
    for T in range(4):
        A(f"s_mov_b64 exec, {s2(sPM+2*T)}")
        for ks in range(2):
            A(f"ds_read_b128 {v4(vPF+16*ks+4*T)}, v{vPA} offset:{L_P + 256*ks}")
    A("s_mov_b64 exec, -1")
    for ks in range(2):
        lds_wait(F_RDY, sFL, f"s{sTHR}", "vrdy", sleep=csleep, cached=True)
        for T in range(4):
            for ih in range(2):
                A(f"ds_read_b64_tr_b16 {v2(vVF+16*ks+4*T+2*ih)}, v{vAD+T} offset:{L_RING + 8192*ks + 4096*ih}")
        A(f"s_add_u32 s{sTHR}, s{sTHR}, 8")
        if ks == 1:
            next_slot(1)
            A(f"s_add_u32 s{sCNT}, s{sCNT}, 1\nv_add_u32 v{vPA}, 512, v{vPA}")
        for T in range(4):
            lgkm(6 - 2 * T)
            A(f"v_mfma_f32_16x16x32_bf16 {v4(vO)}, {v4(vVF+16*ks+4*T)}, {v4(vPF+16*ks+4*T)}, {v4(vO)}")
    A(f"ds_write_b32 v{vOWN}, v{vDN} offset:{F_DONE}\nv_add_u32 v{vDN}, 1, v{vDN}")
    A(f"s_cmp_lt_u32 s{sCNT}, 32\ns_cbranch_scc1 L_p2")
    stamp(3)
    A(f"s_cmp_eq_u32 s{sMODE}, 2\ns_nop 2")
    for r in range(4):
        A(f"v_mul_f32 v{vO+r}, v{vO+r}, v{vSC}")
    for r in range(4):
        embed(vO + r, vO + r, TX4 + r)
    A(f"s_cbranch_scc0 L_h1far\nbuffer_store_dwordx4 {v4(vO)}, v{vO1}, {s4(rWS)}, s{sT1} offen\ns_branch L_tail")
    A(f"L_h1far:\nbuffer_store_dwordx4 {v4(vO)}, v{vO1}, {s4(rWS)}, s{sT1} offen sc1\ns_branch L_tail")

    A("L_help:")
    srd(rA, sX, 1024)
    vG, vXP = 56, 58
    A(f"s_cmp_ge_u32 s{sJJ}, 28\ns_cbranch_scc1 L_h3f")
    A(f"s_and_b32 s{sT3}, s{sSUB}, 3")
    make_tags()
    lds_wait(F_XN, sT0, 1, "xn", sleep=2)
    slice_mv(sT3, L_GU, 2, after_read=lambda: lds_flag(F_GUP))
    embed(32, 32, TX2); embed(33, 33, TX2 + 1)
    lds_wait(F_QH, sMODE, 1, "qh3", sleep=4)
    A(f"s_lshl_b32 s{sT0}, s{sCB}, 11\ns_add_u32 s{sT0}, s{sT0}, {WS_G1}\ns_lshl_b32 s{sT1}, s{sSUB}, 8\ns_add_u32 s{sT1}, s{sT1}, s{sT0}")
    if skip & 4: A("s_branch L_hstat")
    A("s_mov_b32 exec_lo, 0x00ff00ff\ns_mov_b32 exec_hi, 0x00ff00ff")
    store2(f"buffer_store_dwordx2 v[32:33], v6, {s4(rWS)}, s{sT1} offen",
           f"s_cmp_lt_u32 s{sJJ}, 24\ns_cselect_b32 s{sT2}, s{sMODE}, 1\ns_cmp_eq_u32 s{sT2}, 2")
    A("s_mov_b64 exec, -1")
    stamp(1)
    lds_wait(F_RDY, sFL, 8 * g2gate, "g2gate", sleep=16)
    for i in range(8):
        A(f"ds_read_b128 {v4(64+4*i)}, v4 offset:{L_WD + 1024*i}")
    poll([f"buffer_load_dwordx4 {v4(32+4*i)}, v4, {s4(rWS)}, s{sT0} offen offset:{1024*i} sc1" for i in range(2)],
         chk4([32, 36]), "g1poll", sleep=32)
    for e in range(8):
        swap_red(32 + e, vX0, "v_add_f32")
        rnd_bf16(32 + e)
    for e in range(4):
        sigmoid(32 + e, 32 + e)
        rnd_bf16(32 + e)
        A(f"v_mul_f32 v{32+e}, v{32+e}, v{36+e}")
    A("v_cvt_pk_bf16_f32 v32, v32, v33\nv_cvt_pk_bf16_f32 v33, v34, v35")
    A("v_and_b32 v5, 3, v1\nv_lshlrev_b32 v5, 5, v5\nv_and_b32 v6, 12, v1\nv_add_u32 v5, v5, v6\nv_lshlrev_b32 v6, 4, v2")
    A(f"ds_write_b32 v5, v32 offset:{L_HB}\nds_write_b32 v5, v33 offset:{L_HB+16}\nds_read_b128 v[20:23], v6 offset:{L_HB}")
    lgkm(0)
    matvec8(64, [f"v{20+k}" for k in range(4)], 32, 40)
    reduce8(32)
    A(f"v_lshrrev_b32 v6, 4, v1\nv_lshlrev_b32 v6, 3, v6\nv_lshl_add_u32 v6, v3, 1, v6\nv_lshlrev_b32 v5, 2, v1")
    A(f"ds_write_b64 v6, v[32:33] offset:{L_HB}\nds_read_b32 v32, v5 offset:{L_HB}")
    A(f"v_and_b32 v5, 7, v1\nv_lshlrev_b32 v5, 2, v5\nv_lshrrev_b32 v33, v5, s{sTAG}\nv_and_b32 v33, 15, v33")
    A(f"v_lshrrev_b32 v6, 4, v1\nv_lshlrev_b32 v6, 11, v6\nv_and_b32 v5, 15, v1\nv_lshl_add_u32 v6, v5, 2, v6")
    A(f"s_lshl_b32 s{sT1}, s{sSUB}, 13\ns_lshl_b32 s{sT2}, s{sCB}, 6\ns_add_u32 s{sT1}, s{sT1}, s{sT2}\ns_add_u32 s{sT1}, s{sT1}, {WS_GL}")
    lgkm(0)
    embed(32, 32, 33)
    if not skip & 1:
        A(f"buffer_store_dword v32, v6, {s4(rWS)}, s{sT1} offen sc1")
    A("s_branch L_hstat")
    A("L_h3f:")
    make_tags()
    lds_flag(F_GUP)
    if skip & 2: A("s_branch L_hstat")
    lds_wait(F_RDY, sFL, 8 * g3gate, "g3gate", sleep=16)
    A(f"s_lshl_b32 s{sT0}, s{sX8}, 2\ns_add_u32 s{sT0}, s{sT0}, s{sJJ}\ns_sub_u32 s{sT0}, s{sT0}, 28")
    A(f"v_and_b32 v6, 3, v1\nv_lshlrev_b32 v6, 3, v6\nv_lshrrev_b32 v5, 5, v1\nv_lshl_add_u32 v6, v5, 2, v6\ns_lshl_b32 s{sT1}, s{sT0}, 5")
    A(f"buffer_load_dword v{vXP}, v6, {s4(rA)}, s{sT1} offen")
    A(f"s_lshl_b32 s{sH}, s{sT0}, 11\ns_add_u32 s{sH}, s{sH}, {WS_GL}")
    A(f"v_min_u32 v6, 47, v1\nv_and_b32 v6, 60, v6\nv_and_b32 v5, 3, v1\nv_or_b32 v6, v6, v5\nv_lshlrev_b32 v6, 4, v6")
    poll([f"buffer_load_dwordx4 v[64:67], v4, {s4(rWS)}, s{sH} offen sc1",
          f"buffer_load_dwordx4 v[68:71], v6, {s4(rWS)}, s{sH} offen offset:1024 sc1"], chk4([64, 68]), "gpoll", sleep=64)
    A("s_mov_b32 exec_hi, 0xffff")
    for e in range(4):
        A(f"v_add_f32 v{64+e}, v{64+e}, v{68+e}")
    A("s_mov_b64 exec, -1")
    red4(64)
    for e in range(2):
        rnd_bf16(64 + e)
        sigmoid(68, 64 + e)
        A(f"v_mul_f32 v{vG+e}, v{64+e}, v68")
        rnd_bf16(vG + e)
    A("L_hstat:")
    stamp(2)
    lds_wait(F_PD, sT0, 1, "pdh", sleep=16, pair=True)
    lds_wait(F_QH, sMODE, 1, "qh4", sleep=4)
    A(f"v_and_b32 v5, 3, v1\nv_lshlrev_b32 v5, 3, v5")
    A(f"ds_read_b64 v[32:33], v5 offset:{L_LS}\nds_read_b32 v34, v5 offset:{L_LS+32}")
    lgkm(0)
    A(f"v_add_f32 v32, v32, v34\nv_log_f32 v32, v32\nv_mov_b32 v35, s{sTAG}\nv_add_f32 v34, v32, v33")
    A(f"s_lshl_b32 s{sT0}, s{sX8}, 10\ns_add_u32 s{sT0}, s{sT0}, {WS_LS}\ns_lshl_b32 s{sT1}, s{sJJ}, 5\ns_add_u32 s{sT1}, s{sT1}, s{sT0}")
    A("s_mov_b64 exec, 15")
    store2(f"buffer_store_dwordx2 v[34:35], v5, {s4(rWS)}, s{sT1} offen", f"s_cmp_eq_u32 s{sMODE}, 2")
    A("s_mov_b64 exec, -1")
    lds_wait(F_RDY, sFL, 8 * lsgate, "lsgate", sleep=16)
    A(f"v_lshlrev_b32 v6, 3, v1")
    poll([f"buffer_load_dwordx2 {v2(36+2*i)}, v6, {s4(rWS)}, s{sT0} offen offset:{512*i} sc1" for i in range(2)],
         [(37, f"s{sTAG}"), (39, f"s{sTAG}")], "lspoll", sleep=16, full=True)
    A("v_max_f32 v40, v36, v38")
    wave_red(40, vX0, "v_max_f32", (8, 4))
    A("v_sub_f32 v36, v36, v40\nv_sub_f32 v38, v38, v40\nv_exp_f32 v36, v36\nv_exp_f32 v38, v38\nv_sub_f32 v33, v33, v40\nv_add_f32 v36, v36, v38")
    wave_red(36, vX0, "v_add_f32", (8, 4))
    A("v_exp_f32 v33, v33\nv_rcp_f32 v36, v36\nv_lshrrev_b32 v5, 1, v5\nv_mul_f32 v33, v33, v36")
    A(f"ds_write_b32 v5, v33 offset:{L_SC}")
    lds_flag(F_SC)
    stamp(3)
    tail_prep()
    if dry:
        A(f"s_mov_b32 s{rWS+2}, 0\ns_mov_b32 s{sLIM}, 0\ns_branch L_tail")
        A("L_dryret:")
        A(f"s_mov_b64 exec, -1\ns_mov_b32 s{rWS+2}, {hex(WS_SIZE)}\ns_mov_b32 s{sLIM}, 0x40000")
    if touch:
        lds_wait(F_RDY, sFL, NLD - touch, "touch", sleep=4)
        A(f"s_lshl_b32 s{sT1}, s{sX8}, 16\ns_lshl_b32 s{sT2}, s{sJJ}, 11\ns_add_u32 s{sT1}, s{sT1}, s{sT2}\ns_add_u32 s{sT1}, s{sT1}, {WS_H1}")
        A(f"v_lshlrev_b32 v5, 5, v1\nbuffer_load_dword v40, v5, {s4(rWS)}, s{sT1} offen sc1")
    A("L_endgate:")
    lds_wait(F_RDY, sFL, NLD, "endgate", sleep=1)

    A("L_tail:")
    stamp(4, 0)
    poll([f"buffer_load_dwordx4 {v4(40+4*i)}, v4, {s4(rWS)}, s{sI1} offen offset:{1024*i} sc1" for i in range(2)],
         chk4([40, 44]), "h1poll", sleep=h1sleep)
    stamp(5, 0)
    for e in range(4):
        A(f"v_add_f32 v{40+e}, v{40+e}, v{44+e}")
    red4(40)
    A(f"v_cvt_pk_bf16_f32 v40, v40, v41\ns_nop 0")
    for u in range(8):
        A(f"v_readlane_b32 s{sH+u}, v40, {32*(u&1) + (u>>1)}")
    for u in range(8):
        for z in range(2):
            c = "0" if u == 0 else f"v{48+z}"
            A(f"v_dot2_f32_bf16 v{48+z}, s{sH+u}, v{vWO+2*u+z}, {c}")
    if dry:
        A(f"s_cmp_eq_u32 s{sLIM}, 0\ns_cbranch_scc1 L_t2b\ns_cmp_lg_u32 s{sTW}, 3")
    else:
        A(f"s_cmp_lg_u32 s{sTW}, 3\ns_nop 1")
    A(f"ds_write_b64 v{vRW}, v[48:49] offset:{L_RED}")
    A("s_waitcnt lgkmcnt(0)\ns_barrier\ns_cbranch_scc1 L_fin")
    A("L_t2b:")
    for p in range(3):
        A(f"ds_read_b64 {v2(42+2*p)}, v{vRR} offset:{L_RED + 512*p}")
    lgkm(0)
    A("v_add_f32 v48, v48, v42\nv_add_f32 v49, v49, v43\nv_add_f32 v44, v44, v46\nv_add_f32 v45, v45, v47\nv_add_f32 v48, v48, v44\nv_add_f32 v49, v49, v45")
    embed(48, 48, TX2); embed(49, 49, TX2 + 1)
    A(f"buffer_store_dwordx2 v[48:49], v{vO2}, {s4(rWS)}, s{sO2} offen sc1")
    if dry:
        A(f"s_cmp_eq_u32 s{sLIM}, 0\ns_cbranch_scc1 L_t3b")
    A(f"s_cmp_lt_u32 s{sJJ}, 28\ns_cbranch_scc1 L_fin")
    A("L_t3b:")
    A(f"s_lshl_b32 s{sT0}, s{sX8}, 2\ns_add_u32 s{sT0}, s{sT0}, s{sJJ}\ns_sub_u32 s{sT0}, s{sT0}, 28\ns_and_b32 s{sT0}, s{sT0}, 31")
    A(f"s_lshr_b32 s{sT1}, s{sT0}, 1\ns_lshl_b32 s{sT1}, s{sT1}, 13\ns_and_b32 s{sT2}, s{sT0}, 1\ns_lshl_b32 s{sT2}, s{sT2}, 6\ns_add_u32 s{sT1}, s{sT1}, s{sT2}")
    A(f"s_add_u32 s{sT1}, s{sT1}, {WS_H2}\ns_add_u32 s{sT2}, s{sT1}, 4096\ns_lshl_b32 s{sT3}, s{sT0}, 5")
    A(f"v_lshrrev_b32 v55, 2, v1\nv_lshlrev_b32 v55, 7, v55\nv_and_b32 v5, 3, v1\nv_lshl_add_u32 v55, v5, 4, v55")
    A(f"v_lshlrev_b32 v5, 1, v5\nv_lshrrev_b32 v6, 5, v1\nv_add_u32 v5, v5, v6\nv_lshlrev_b32 v52, 2, v5")
    A(f"v_lshlrev_b32 v50, 16, v{vXP}\nv_and_b32 v51, s{sHI}, v{vXP}")
    A(f"s_min_u32 s{sH}, s{sLIM}, 1024")
    srd(rA, sOUT, f"s{sH}")
    if ackwait:
        A("s_waitcnt vmcnt(0)")
    if presleep:
        A(f"s_sleep {presleep}")
    poll([f"buffer_load_dwordx4 {v4(64+4*i)}, v55, {s4(rWS)}, s{sT1+i//2} offen offset:{2048*(i%2)} sc1" for i in range(4)],
         chk4([64, 68, 72, 76]), "h2poll", sleep=h2sleep)
    stamp(6, 0)
    for e in range(4):
        A(f"v_add_f32 v{64+e}, v{64+e}, v{68+e}\nv_add_f32 v{72+e}, v{72+e}, v{76+e}")
    for e in range(4):
        A(f"v_add_f32 v{64+e}, v{64+e}, v{72+e}")
    red4(64)
    A(f"v_cvt_pk_bf16_f32 v64, v64, v65\nv_and_b32 v65, s{sHI}, v64\nv_lshlrev_b32 v64, 16, v64")
    A(f"v_mul_f32 v64, v64, v{vG}\nv_mul_f32 v65, v65, v{vG+1}")
    A(f"v_cvt_pk_bf16_f32 v64, v64, v65\nv_and_b32 v65, s{sHI}, v64\nv_lshlrev_b32 v64, 16, v64")
    A("v_add_f32 v64, v64, v50\nv_add_f32 v65, v65, v51\nv_cvt_pk_bf16_f32 v64, v64, v65")
    A("s_mov_b32 exec_lo, 15\ns_mov_b32 exec_hi, 15")
    A(f"buffer_store_dword v64, v52, {s4(rA)}, s{sT3} offen {outflags}")
    if dry:
        A(f"s_cmp_eq_u32 s{sLIM}, 0\ns_cbranch_scc1 L_dryret")
    A(f"s_cmp_lg_u32 s{sT0}, 0\ns_cbranch_scc1 L_fin")
    A(f"s_mov_b64 exec, 1\nv_mov_b32 v65, s{sTAG}")
    A(f"buffer_store_dword v65, v7, {s4(rWS)}, 0 offen offset:{WS_EPOCH} {epflags}")
    A("L_fin:")
    if stamps:
        A("s_mov_b64 exec, -1")
        A("s_waitcnt vmcnt(0)")
        stamp(7)
        A("s_waitcnt lgkmcnt(0)")
        if skew is not None:
            A(f"s_cmp_lg_u32 s{sW}, 4\ns_cbranch_scc1 L_skout\ns_cmp_lg_u32 s2, {skew}\ns_cbranch_scc1 L_skout")
            srd(rB, 44, 256)
            A(f"buffer_load_dword v16, v7, {s4(rB)}, 0 offen offset:64 sc1\ns_waitcnt vmcnt(0)\nv_readfirstlane_b32 s{sT2}, v16\ns_nop 3")
            A(f"s_not_b32 s{sT0}, s{sT2}\ns_sub_u32 s{sT2}, s{sST}, s{sT0}\ns_mul_i32 s{sT2}, s{sT2}, 20\ns_min_u32 s{sT2}, s{sT2}, 100000")
            A(f"s_add_u32 s{sT2}, s{sT2}, s{sT0}\ns_add_u32 s{sT2}, s{sT2}, 10000")
            A("L_skpad:")
            A(f"s_memrealtime {s2(sH)}\ns_waitcnt lgkmcnt(0)\ns_sub_u32 s{sT3}, s{sH}, s{sT2}\ns_cmp_lt_i32 s{sT3}, 0\ns_cbranch_scc1 L_skpad")
            A("L_skout:")
        if diag is not None:
            dw, dwg, di, dj, mult = diag
            A(f"s_cmp_lg_u32 s{sW}, {dw}\ns_cbranch_scc1 L_padout")
            if dwg >= 0:
                A(f"s_cmp_lg_u32 s2, {dwg}\ns_cbranch_scc1 L_padout")
            A(f"s_cmp_eq_u32 s{sST+2*di}, 0\ns_cbranch_scc1 L_padout")
            A(f"s_sub_u32 s{sT2}, s{sST+2*di}, s{sST+2*dj}\ns_mul_i32 s{sT2}, s{sT2}, {mult}\ns_min_u32 s{sT2}, s{sT2}, 100000")
            A(f"s_add_u32 s{sT2}, s{sT2}, s{sST}\ns_add_u32 s{sT2}, s{sT2}, 10000")
            A("L_pad:")
            A(f"s_memrealtime {s2(sH)}\ns_waitcnt lgkmcnt(0)\ns_sub_u32 s{sT3}, s{sH}, s{sT2}\ns_cmp_lt_i32 s{sT3}, 0\ns_cbranch_scc1 L_pad")
            A("L_padout:")
        if pad is not None:
            A(f"s_cmp_eq_u32 s{sST+2*pad}, 0\ns_cbranch_scc1 L_padout")
            A(f"s_add_u32 s{sT2}, s{sST+2*pad}, 10000")
            A("L_pad:")
            A(f"s_memrealtime {s2(sH)}\ns_waitcnt lgkmcnt(0)\ns_sub_u32 s{sT3}, s{sH}, s{sT2}\ns_cmp_lt_i32 s{sT3}, 0\ns_cbranch_scc1 L_pad")
            A("L_padout:")
        for i in range(8):
            A(f"v_mov_b32 v{96+i}, s{sST+2*i}")
        A(f"s_mul_i32 s{sT1}, s2, 5\ns_add_u32 s{sT1}, s{sT1}, s{sW}\ns_lshl_b32 s{sT1}, s{sT1}, 5\ns_add_u32 s{sT1}, s{sT1}, {WS_STAMP}")
        A("s_mov_b64 exec, 1")
        A(f"buffer_store_dwordx4 v[96:99], v7, {s4(rWS)}, s{sT1} offen")
        A(f"buffer_store_dwordx4 v[100:103], v7, {s4(rWS)}, s{sT1} offen offset:16")
    A("L_end:")
    A("s_endpgm")

    out = HEADER
    out += f"; @launch grid=(256,1,1) block=(320,1,1) lds={LDS_BYTES}\n"
    out += '.amdgcn_target "amdgcn-amd-amdhsa--gfx950"\n.text\n'
    out += f".globl {KNAME}_kernel\n.p2align 8\n.type {KNAME}_kernel,@function\n"
    out += "\n".join(A.L) + "\n"
    out += f""".section .rodata,"a"
.p2align 6
.amdhsa_kernel {KNAME}_kernel
  .amdhsa_next_free_vgpr 216
  .amdhsa_next_free_sgpr 102
  .amdhsa_accum_offset 216
  .amdhsa_group_segment_fixed_size 0
  .amdhsa_kernarg_size 96
  .amdhsa_user_sgpr_count 2
  .amdhsa_user_sgpr_kernarg_segment_ptr 1
  .amdhsa_system_sgpr_workgroup_id_x 1
.end_amdhsa_kernel
"""
    return out


if __name__ == "__main__":
    kw = json.loads(sys.argv[2]) if len(sys.argv) > 2 else {}
    open(sys.argv[1], "w").write(gen(**kw))
```

```python
import sys, json, struct

KNAME = "recurrent_scan__gqa_block_cached__glu_gated_glu__decode"
HEADER = open("cdna_kernels/" + KNAME + ".s.ref").read().split("; Override launch")[0]

def f2u(x):
    return struct.unpack("<I", struct.pack("<f", x))[0]

LOG2E = 1.4426950408889634
WS_EPOCH = 0x0
WS_LS = 0x2000
WS_PG = 0x8000
WS_GP = 0x5000
WS_QX = 0x10000
WS_QXFAR = 0x100000
WS_G1 = 0x20000
WS_GL = 0x30000
WS_H1 = 0x40000
WS_H2 = 0xC0000
WS_STAMP = 0x1000000
WS_SIZE = 0x20000000
L_Q = 0
L_FLAG = 1024
F_RDY = L_FLAG
F_GUP = L_FLAG + 4
F_DONE = L_FLAG + 8
F_QH = L_FLAG + 16
F_XN = L_FLAG + 20
F_MX = L_FLAG + 24
F_PD = L_FLAG + 32
F_SC = L_FLAG + 40
F_WIN = L_FLAG + 44
L_MX = 1152
L_LS = 1216
L_SC = 1280
L_HB = 1536
L_RED = 2048
L_XN = L_RED
L_P = 4096
L_WO = 20480
L_WD = 36864
L_RING = 45056
NSLOT = 7
LDS_BYTES = L_RING + NSLOT * 16384
U0 = 7

sFL = 3
sMODE, sLIM, sI1, sO2 = 14, 15, 24, 25
sF = 83
sTW = 82
sPM = 48
sX, sK, sV, sWQ, sWO, sBX, sWG, sWU, sWD, sOUT, sDBG, sWS = 4, 6, 8, 10, 12, 14, 16, 18, 20, 22, 24, 26
rK, rV, rWS, rA, rB, rC, rD = 28, 32, 36, 40, 44, 48, 52
sW, sX8, sJJ, sCB, sSUB = 56, 57, 58, 59, 60
sC, sTHR, sCNT, sTAG = 61, 62, 63, 64
sSELL, sSELH, sSCALE, sLOG2E, sHI = 65, 66, 67, 68, 69
sT0, sT1, sT2, sT3 = 70, 71, 72, 73
sH = 74
sM = 82
sSPIN = 84
sLB = 85
sST = 86
TX4 = 8; TX2 = 12; vX0 = 14; vX1 = 15
vWO, vWT, vRW, vRR, vO2, vO1 = 192, 128, 208, 209, 210, 211


class G:
    def __init__(self):
        self.L = []
        self.n = 0
    def __call__(self, s):
        for line in s.strip("\n").split("\n"):
            self.L.append("    " + line.strip() if not line.strip().endswith(":") else line.strip())
    def label(self, base):
        self.n += 1
        return f"L_{base}_{self.n}"


def v4(r):
    return f"v[{r}:{r+3}]"
def v2(r):
    return f"v[{r}:{r+1}]"
def s4(r):
    return f"s[{r}:{r+3}]"
def s2(r):
    return f"s[{r}:{r+1}]"


def gen(kvflags="nt", wflags="nt", win=20, stamps=False, pad=None, qsleep=4, qgate=0, g2gate=24, g3gate=48,
        lsgate=100, h1sleep=0, h2sleep=0, csleep=0, lprio=0, smode=0, skip=0, prog=False, win2=0, last=6, force=0, qtry=96, outflags='', diag=None, prept=30, dry=False,
        pace=1, wins=(20, 22, 24, 28), c0=0, gs=8, endstop=48, psleep=8, bias=0, scal=False, gper=0, gbias=0, pld='sc1', unq=2, gs2=8, gmin=0, gmax=2, istep=1, epflags='', skew=None, nb=None, pgs=12, wb=0, presleep=0, touch=64, ackwait=True, lateat=0, latebias=0, cpf=True, qtouch=True):
    A = G()

    def srd(r, base, size):
        A(f"s_mov_b32 s{r}, s{base}\ns_mov_b32 s{r+1}, s{base+1}\ns_mov_b32 s{r+2}, {size}\ns_mov_b32 s{r+3}, 0x20000")

    def stamp(i, mode=None):
        if stamps and (mode is None or mode == smode):
            A(f"s_memrealtime {s2(sST + 2 * i)}")

    def lgkm(n):
        A(f"s_waitcnt lgkmcnt({n})")

    def swap_red(r, t, op, kinds=("16", "32")):
        for k in kinds:
            A(f"v_mov_b32 v{t}, v{r}\ns_nop 1\nv_permlane{k}_swap_b32 v{r}, v{t}\ns_nop 1\n{op} v{r}, v{r}, v{t}")

    def wave_red(r, t, op, rors):
        for k in rors:
            A(f"s_nop 1\n{op} v{r}, v{r}, v{r} row_ror:{k}")
        swap_red(r, t, op)

    def rnd_bf16(r):
        A(f"v_cvt_pk_bf16_f32 v{r}, v{r}, v{r}\nv_and_b32 v{r}, 0xffff0000, v{r}")

    def ln_stats(X, mean, rstd, F):
        D = F + 8
        for k in range(4):
            A(f"v_lshlrev_b32 v{F+2*k}, 16, v{X+k}\nv_and_b32 v{F+2*k+1}, s{sHI}, v{X+k}")
        A(f"v_add_f32 v{mean}, v{F}, v{F+1}")
        for k in range(2, 8):
            A(f"v_add_f32 v{mean}, v{mean}, v{F+k}")
        wave_red(mean, vX0, "v_add_f32", (8, 4, 2, 1))
        A(f"v_mul_f32 v{mean}, {hex(f2u(1/512))}, v{mean}")
        for k in range(8):
            A(f"v_sub_f32 v{D+k}, v{F+k}, v{mean}")
        A(f"v_mul_f32 v{rstd}, v{D}, v{D}")
        for k in range(1, 8):
            A(f"v_fmac_f32 v{rstd}, v{D+k}, v{D+k}")
        wave_red(rstd, vX0, "v_add_f32", (8, 4, 2, 1))
        A(f"v_mul_f32 v{rstd}, {hex(f2u(1/512))}, v{rstd}")
        rnd_bf16(mean); rnd_bf16(rstd)
        A(f"v_add_f32 v{rstd}, {hex(f2u(1e-5))}, v{rstd}")
        rnd_bf16(rstd)
        A(f"v_sqrt_f32 v{rstd}, v{rstd}\ns_nop 0")
        rnd_bf16(rstd)
        A(f"v_rcp_f32 v{rstd}, v{rstd}")

    def ln_apply(X, mean, rstd, D):
        for k in range(4):
            A(f"v_lshlrev_b32 v{D+2*k}, 16, v{X+k}\nv_and_b32 v{D+2*k+1}, s{sHI}, v{X+k}")
        for k in range(8):
            A(f"v_sub_f32 v{D+k}, v{D+k}, v{mean}")
        for k in range(4):
            A(f"v_cvt_pk_bf16_f32 v{X+k}, v{D+2*k}, v{D+2*k+1}")
        for k in range(4):
            A(f"v_lshlrev_b32 v{D+2*k}, 16, v{X+k}\nv_and_b32 v{D+2*k+1}, s{sHI}, v{X+k}")
        for k in range(8):
            A(f"v_mul_f32 v{D+k}, v{D+k}, v{rstd}")
        for k in range(4):
            A(f"v_cvt_pk_bf16_f32 v{X+k}, v{D+2*k}, v{D+2*k+1}")

    def matvec8(W, xs, acc, tmp, first=True):
        for j in range(4):
            for u in range(4):
                A(f"v_perm_b32 v{tmp+2*u}, v{W+(2*j+1)*4+u}, v{W+(2*j)*4+u}, s{sSELL}")
                A(f"v_perm_b32 v{tmp+2*u+1}, v{W+(2*j+1)*4+u}, v{W+(2*j)*4+u}, s{sSELH}")
            for e in range(8):
                c = "0" if (j == 0 and first) else f"v{acc+e}"
                A(f"v_dot2_f32_bf16 v{acc+e}, {xs[j]}, v{tmp+e}, {c}")
        A("s_nop 2")

    def reduce8(acc):
        A("s_nop 1")
        for e in range(4):
            A(f"v_permlane32_swap_b32 v{acc+e}, v{acc+4+e}")
        A("s_nop 1")
        for e in range(4):
            A(f"v_add_f32 v{acc+e}, v{acc+e}, v{acc+4+e}")
        A("s_nop 1")
        for e in range(2):
            A(f"v_permlane16_swap_b32 v{acc+e}, v{acc+2+e}")
        A("s_nop 1")
        for e in range(2):
            A(f"v_add_f32 v{acc+e}, v{acc+e}, v{acc+2+e}")
        A("s_nop 0")
        for e in range(2):
            A(f"v_add_f32 v{acc+e}, v{acc+e}, v{acc+e} row_ror:8")
        A("s_nop 0")

    def red4(a):
        A("s_nop 1")
        A(f"v_permlane32_swap_b32 v{a}, v{a+2}\nv_permlane32_swap_b32 v{a+1}, v{a+3}")
        A("s_nop 0")
        A(f"v_add_f32 v{a}, v{a}, v{a+2}\nv_add_f32 v{a+1}, v{a+1}, v{a+3}")
        for k in (8, 4):
            A("s_nop 0")
            A(f"v_add_f32 v{a}, v{a}, v{a} row_ror:{k}\nv_add_f32 v{a+1}, v{a+1}, v{a+1} row_ror:{k}")
        A(f"v_mov_b32 v{a+2}, v{a}\nv_mov_b32 v{a+3}, v{a+1}\ns_nop 0")
        A(f"v_permlane16_swap_b32 v{a}, v{a+2}\nv_permlane16_swap_b32 v{a+1}, v{a+3}")
        A("s_nop 0")
        A(f"v_add_f32 v{a}, v{a}, v{a+2}\nv_add_f32 v{a+1}, v{a+1}, v{a+3}")

    def lds_wait(addr, sreg, thr, name, sleep=1, vaddr=7, cached=False, pair=False):
        top = A.label(name); done = A.label(name + "_ok")
        if cached:
            A(f"s_cmp_ge_i32 s{sreg}, {thr}\ns_cbranch_scc1 {done}")
        A(f"s_mov_b32 s{sSPIN}, 0")
        A(f"{top}:")
        if pair:
            A(f"ds_read_b64 {v2(vX0)}, v{vaddr} offset:{addr}\ns_waitcnt lgkmcnt(0)\nv_min_i32 v{vX0}, v{vX0}, v{vX1}\ns_nop 0")
        else:
            A(f"ds_read_b32 v{vX0}, v{vaddr} offset:{addr}\ns_waitcnt lgkmcnt(0)")
        A(f"v_readfirstlane_b32 s{sreg}, v{vX0}")
        A(f"s_add_u32 s{sSPIN}, s{sSPIN}, 1")
        A(f"s_cmp_ge_i32 s{sreg}, {thr}\ns_cbranch_scc1 {done}")
        if sleep:
            A(f"s_sleep {sleep}")
        A(f"s_cmp_lt_u32 s{sSPIN}, 0x100000\ns_cbranch_scc1 {top}")
        A(f"{done}:")

    def lds_flag(addr, val=1, vaddr=7):
        A(f"v_mov_b32 v{vX0}, {val}\nds_write_b32 v{vaddr}, v{vX0} offset:{addr}")

    def make_tags():
        A(f"s_waitcnt lgkmcnt(0)\ns_add_u32 s{sTAG}, s{sTAG}, 0x9E3779B1")
        A(f"v_and_b32 v5, 1, v1\nv_lshlrev_b32 v5, 4, v5\nv_lshrrev_b32 v5, v5, s{sTAG}")
        for k in range(4):
            A(f"v_bfe_u32 v{TX4+k}, v5, {4*k}, 4")
        A(f"v_and_b32 v5, 3, v1\nv_lshlrev_b32 v5, 3, v5\nv_lshrrev_b32 v5, v5, s{sTAG}")
        for k in range(2):
            A(f"v_bfe_u32 v{TX2+k}, v5, {4*k}, 4")

    def embed(dst, src, tag):
        A(f"v_and_or_b32 v{dst}, v{src}, -16, v{tag}")

    def poll(loads, checks, name, sleep=0, full=False):
        top = A.label(name); done = A.label(name + "_ok")
        A(f"s_mov_b32 s{sSPIN}, 0")
        A(f"{top}:")
        for l in loads:
            A(l)
        A("s_waitcnt vmcnt(0)")
        A(f"v_xor_b32 v{vX0}, {checks[0][1]}, v{checks[0][0]}")
        for r, t in checks[1:]:
            A(f"v_bitop3_b32 v{vX0}, v{vX0}, v{r}, {t} bitop3:0xf6")
        if not full:
            A(f"v_and_b32 v{vX0}, 15, v{vX0}\nv_cmp_ne_u32 vcc, 0, v{vX0}")
        else:
            A(f"v_cmp_ne_u32 vcc, 0, v{vX0}")
        A(f"s_cbranch_vccz {done}")
        if sleep:
            A(f"s_sleep {sleep}")
        A(f"s_add_u32 s{sSPIN}, s{sSPIN}, 1\ns_cmp_lt_u32 s{sSPIN}, s{sLIM}\ns_cbranch_scc1 {top}")
        A(f"{done}:")

    def store2(line, cond_scc1_near):
        far = A.label("far"); done = A.label("st")
        A(cond_scc1_near)
        A(f"s_cbranch_scc0 {far}\n{line}\ns_branch {done}\n{far}:\n{line} sc1\n{done}:")

    def chk4(regs):
        return [(r + k, f"v{TX4+k}") for r in regs for k in range(4)]

    def next_slot(step):
        A(f"s_add_u32 s{sLB}, s{sLB}, {step*16384}\ns_sub_u32 s{sT0}, s{sLB}, {NSLOT*16384}")
        A(f"s_cmp_ge_u32 s{sLB}, {NSLOT*16384}\ns_cselect_b32 s{sLB}, s{sT0}, s{sLB}")

    def tail_prep():
        A(f"s_lshl_b32 s{sT2}, s{sTW}, 12\nv_lshl_add_u32 v6, v1, 2, s{sT2}")
        for n in range(16):
            A(f"ds_read_b32 v{vWT+n}, v6 offset:{L_WO + 256*n}")
        A(f"s_lshl_b32 s{sI1}, s{sX8}, 16\ns_and_b32 s{sT2}, s{sJJ}, 28\ns_add_u32 s{sT2}, s{sT2}, s{sTW}\ns_lshl_b32 s{sT2}, s{sT2}, 11")
        A(f"s_add_u32 s{sI1}, s{sI1}, s{sT2}\ns_add_u32 s{sI1}, s{sI1}, {WS_H1}")
        A(f"v_and_b32 v{vRW}, 0xff, v0\nv_lshlrev_b32 v{vRW}, 3, v{vRW}\nv_lshlrev_b32 v{vRR}, 3, v1")
        A(f"v_and_b32 v5, 15, v1\nv_lshlrev_b32 v5, 3, v5\nv_lshrrev_b32 v6, 4, v1\nv_lshl_add_u32 v{vO2}, v6, 13, v5")
        A(f"s_and_b32 s{sO2}, s{sJJ}, 3\ns_lshl_b32 s{sO2}, s{sO2}, 15\ns_lshl_b32 s{sT2}, s{sX8}, 10\ns_add_u32 s{sO2}, s{sO2}, s{sT2}")
        A(f"s_lshr_b32 s{sT2}, s{sJJ}, 2\ns_lshl_b32 s{sT2}, s{sT2}, 7\ns_add_u32 s{sO2}, s{sO2}, s{sT2}\ns_add_u32 s{sO2}, s{sO2}, {WS_H2}")
        lgkm(0)
        for u in range(8):
            A(f"v_perm_b32 v{vWO+2*u}, v{vWT+1+2*u}, v{vWT+2*u}, s{sSELL}\nv_perm_b32 v{vWO+1+2*u}, v{vWT+1+2*u}, v{vWT+2*u}, s{sSELH}")

    def sigmoid(dst, src):
        A(f"v_mul_f32 v{dst}, s{sLOG2E}, v{src}\nv_exp_f32 v{dst}, -v{dst}\ns_nop 0\nv_add_f32 v{dst}, 1.0, v{dst}\nv_rcp_f32 v{dst}, v{dst}\ns_nop 0")

    A(f"{KNAME}_kernel:")
    A("s_cmpk_ge_u32 s2, 0x100\ns_cbranch_scc1 L_end")
    stamp(0)
    A(f"s_load_dwordx16 s[4:19], s[0:1], 0\ns_load_dwordx8 s[20:27], s[0:1], 64")
    A(f"v_and_b32 v1, 63, v0\nv_readfirstlane_b32 s{sW}, v0")
    A(f"s_and_b32 s{sX8}, s2, 7\ns_lshr_b32 s{sJJ}, s2, 3")
    A("v_lshlrev_b32 v4, 4, v1")
    A("v_lshrrev_b32 v2, 3, v1\nv_and_b32 v3, 0x70, v4")
    A(f"s_mov_b32 s{rA+3}, 0x20000\ns_lshr_b32 s{sW}, s{sW}, 6\ns_cbranch_scc1 L_e1")
    A(f"s_and_b32 s{sT1}, s{sJJ}, 7\ns_lshl3_add_u32 s{sT1}, s{sX8}, s{sT1}\ns_lshl_b32 s{sT1}, s{sT1}, 7")
    A(f"s_lshr_b32 s{sT2}, s2, 6\ns_lshl_b32 s{sT2}, s{sT2}, 20\ns_add_u32 s{sT1}, s{sT1}, s{sT2}")
    A(f"v_lshl_add_u32 v5, v2, 17, v3\ns_mov_b32 s{rA+2}, {hex(512 * 4096 * 2)}\ns_movk_i32 m0, {L_P}")
    A(f"s_waitcnt lgkmcnt(0)\ns_mov_b64 {s2(rA)}, {s2(sWQ)}")
    stamp(4, 4)
    A("L_wq:")
    A(f"buffer_load_dwordx4 v5, {s4(rA)}, s{sT1} offen {wflags} lds")
    A(f"s_addk_i32 m0, 0x400\ns_addk_i32 s{sT1}, 0x2000\ns_cmpk_lt_u32 m0, {L_P + 16384}\ns_cbranch_scc1 L_wq")
    A("s_branch L_e2")
    A("L_e1:")
    if cpf:
        A(f"s_cmp_lg_u32 s{sW}, 1\ns_cbranch_scc1 L_e1b")
        A(f"s_getpc_b64 {s2(sT0)}")
        A("L_pc:")
        A(f"s_mul_i32 s{sT2}, s{sJJ}, 768\nv_mad_u32_u24 v5, v1, 12, s{sT2}\nv_min_u32 v5, L_end-L_pc, v5")
        A(f"global_load_dword v16, v5, {s2(sT0)}")
        A("L_e1b:")
    A(f"s_cmp_lg_u32 s{sW}, 2\ns_cbranch_scc1 L_e2")
    A(f"s_movk_i32 s{rA+2}, 0x400\ns_waitcnt lgkmcnt(0)\ns_mov_b64 {s2(rA)}, {s2(sX)}")
    A(f"buffer_load_dwordx4 v[16:19], v4, {s4(rA)}, 0 offen")
    A("L_e2:")
    A(f"v_and_b32 v6, 15, v1\nv_cmp_eq_u32 vcc, {(F_DONE + 4 - L_FLAG) // 4}, v6\nv_lshlrev_b32 v6, 2, v6\nv_mov_b32 v7, 0")
    A(f"v_cndmask_b32 v5, 0, 1, vcc\nds_write_b32 v6, v5 offset:{L_FLAG}")
    if nb is None:
        A(f"s_mul_i32 s{sCB}, s{sX8}, 3\ns_lshr_b32 s{sT0}, s{sJJ}, 3\ns_add_u32 s{sCB}, s{sCB}, s{sT0}\ns_and_b32 s{sSUB}, s{sJJ}, 7")
        A(f"s_lshr_b32 s{sT0}, s{sX8}, 1\ns_add_u32 s{sT0}, s{sT0}, 24\ns_and_b32 s{sT1}, s{sX8}, 1\ns_lshl_b32 s{sT1}, s{sT1}, 2\ns_add_u32 s{sT1}, s{sT1}, s{sSUB}")
        A(f"s_cmp_ge_u32 s{sJJ}, 24\ns_cselect_b32 s{sCB}, s{sT0}, s{sCB}\ns_cselect_b32 s{sSUB}, s{sT1}, s{sSUB}")
        A(f"s_lshl_b32 s{sF}, s{sX8}, 2\ns_add_u32 s{sF}, s{sF}, s{sJJ}\ns_sub_u32 s{sF}, s{sF}, 28\ns_cmp_lt_u32 s{sJJ}, 28\ns_cselect_b32 s{sF}, -1, s{sF}")
    else:
        assert sum(nb) == 28
        free = [sum(4 - n for n in nb[:x]) for x in range(8)]
        tab = sum((nb[x] & 7 | (free[x] & 7) << 4) << (8 * x) for x in range(8))
        A(f"s_mov_b32 s{sT0}, {hex(tab & 0xffffffff)}\ns_mov_b32 s{sT1}, {hex(tab >> 32)}\ns_lshl_b32 s{sT2}, s{sX8}, 3\ns_lshr_b64 {s2(sT0)}, {s2(sT0)}, s{sT2}")
        A(f"s_bfe_u32 s{sT1}, s{sT0}, 0x30004\ns_and_b32 s{sT0}, s{sT0}, 7\ns_lshr_b32 s{sT2}, s{sJJ}, 3\ns_and_b32 s{sSUB}, s{sJJ}, 7")
        A(f"s_lshl2_add_u32 s{sCB}, s{sX8}, s{sT2}\ns_sub_u32 s{sCB}, s{sCB}, s{sT1}")
        A(f"s_sub_u32 s{sT1}, s{sT1}, s{sT0}\ns_lshl3_add_u32 s{sF}, s{sT1}, s{sJJ}\ns_cmp_lt_u32 s{sT2}, s{sT0}\ns_cselect_b32 s{sF}, -1, s{sF}")
    A(f"s_mov_b32 s{sSELL}, 0x05040100\ns_mov_b32 s{sSELH}, 0x07060302")
    A(f"s_mov_b32 s{sSCALE}, {hex(f2u(128 ** -0.5))}\ns_mov_b32 s{sLOG2E}, {hex(f2u(LOG2E))}\ns_mov_b32 s{sHI}, 0xffff0000")
    if stamps:
        for i in range(1, 8):
            if not (smode == 4 and i == 4):
                A(f"s_mov_b64 {s2(sST+2*i)}, 0")
    A("s_waitcnt lgkmcnt(0)")
    A("s_barrier")
    stamp(5, 5)
    A(f"s_load_dword s{sTAG}, {s2(sWS)}, {WS_EPOCH}")
    A(f"s_mov_b32 s{sLIM}, 0x40000\ns_mov_b32 s{sMODE}, 1")
    srd(rWS, sWS, hex(WS_SIZE))
    if skew is not None:
        srd(rB, sDBG, 256)
    A(f"s_cmp_lg_u32 s{sW}, 0\ns_cbranch_scc1 L_notloader")

    D = win
    first_k = (D - 1) % 8
    vCNT = 24
    cnt = [0]
    DD = [D]
    def ld(line, static=False):
        i = cnt[0]
        if not static or i >= D:
            A(f"s_waitcnt vmcnt({DD[0]-1})")
        if static and i == D - 1: stamp(5, 4)
        if static and i == D: stamp(6, 4)
        A(line)
        if i % 8 == first_k and (not static or i >= D - 1 + 8):
            A(f"ds_write_b32 v7, v{vCNT} offset:{F_RDY}\nv_add_u32 v{vCNT}, 8, v{vCNT}")
        cnt[0] += 1
    if lprio:
        A(f"s_setprio {lprio}")
    A(f"v_mov_b32 v{vCNT}, 8")
    cnt[0] = 16
    assert D >= 16
    A(f"s_cmp_lt_i32 s{sF}, 0\ns_cselect_b32 s{sT3}, {hex(512 * 1792 * 2)}, 0")
    srd(rD, sWD, f"s{sT3}")
    A(f"s_cmp_lt_u32 s{sSUB}, 4\ns_cselect_b32 s{rB}, s{sWG}, s{sWU}\ns_cselect_b32 s{rB+1}, s{sWG+1}, s{sWU+1}")
    A(f"s_mov_b32 s{rB+2}, s{sT3}\ns_mov_b32 s{rB+3}, 0x20000")
    A(f"s_and_b32 s{sT1}, s{sSUB}, 3\ns_mul_i32 s{sT1}, s{sT1}, {128*3584}\ns_lshl_b32 s{sT2}, s{sCB}, 7\ns_add_u32 s{sT1}, s{sT1}, s{sT2}")
    A(f"v_mul_u32_u24 v6, {16*3584}, v2\nv_add_u32 v6, v6, v3")
    L_GU = L_RING + (NSLOT - 1) * 16384
    for i in range(16):
        A(f"s_mov_b32 m0, {L_GU + 1024*i}")
        A(f"s_add_u32 s{sT2}, s{sT1}, {3584*i}")
        ld(f"buffer_load_dwordx4 v6, {s4(rB)}, s{sT2} offen {wflags} lds", True)
    A(f"s_lshl_b32 s{sT1}, s{sCB}, 16\ns_lshl_b32 s{sT2}, s{sSUB}, 7\ns_add_u32 s{sT1}, s{sT1}, s{sT2}")
    A(f"v_lshl_add_u32 v5, v2, 13, v3")
    for i in range(8):
        if i % 4 == 0:
            A(f"s_mov_b32 m0, {L_WD + 1024*i}")
            A(f"s_add_u32 s{sT2}, s{sT1}, {1024*i}")
        ld(f"buffer_load_dwordx4 v5, {s4(rD)}, s{sT2} offen offset:{1024*(i%4)} {wflags} lds", True)
    srd(rA, sWO, hex(4096 * 512 * 2))
    A(f"s_lshl_b32 s{sT1}, s{sX8}, 9\ns_lshr_b32 s{sT2}, s{sJJ}, 4\ns_lshl_b32 s{sT2}, s{sT2}, 6\ns_add_u32 s{sT1}, s{sT1}, s{sT2}")
    A(f"s_and_b32 s{sT2}, s{sJJ}, 12\ns_add_u32 s{sT1}, s{sT1}, s{sT2}\ns_lshl_b32 s{sT1}, s{sT1}, 10")
    A(f"s_and_b32 s{sT2}, s{sJJ}, 3\ns_lshl_b32 s{sT2}, s{sT2}, 8\ns_add_u32 s{sT1}, s{sT1}, s{sT2}")
    A(f"v_lshrrev_b32 v6, 4, v1\nv_lshlrev_b32 v6, 10, v6\nv_and_b32 v25, 15, v1\nv_lshl_add_u32 v6, v25, 4, v6")
    for w in range(4):
        for h in range(4):
            A(f"s_mov_b32 m0, {L_WO + 4096*w + 1024*h}")
            A(f"s_add_u32 s{sT2}, s{sT1}, {(128*h + 16*w)*1024}")
            ld(f"buffer_load_dwordx4 v6, {s4(rA)}, s{sT2} offen {wflags} lds", True)
    assert cnt[0] == 8 * U0 and D + 7 <= 8 * U0
    stamp(1)
    A(f"s_lshl_b32 s{sT0}, s{sX8}, 24\ns_lshl_b32 s{sT1}, s{sJJ}, 19\ns_add_u32 s{sT0}, s{sT0}, s{sT1}")
    A(f"s_add_u32 s{rK}, s{sK}, s{sT0}\ns_addc_u32 s{rK+1}, s{sK+1}, 0\ns_mov_b32 s{rK+2}, 0x80000\ns_mov_b32 s{rK+3}, 0x20000")
    A(f"s_add_u32 s{rV}, s{sV}, s{sT0}\ns_addc_u32 s{rV+1}, s{sV+1}, 0\ns_mov_b32 s{rV+2}, 0x80000\ns_mov_b32 s{rV+3}, 0x20000")
    A("v_lshrrev_b32 v5, 4, v1\nv_lshlrev_b32 v5, 6, v5\nv_xor_b32 v16, v4, v5")
    A("v_and_b32 v5, 16, v1\nv_lshlrev_b32 v5, 1, v5\nv_xor_b32 v20, v4, v5")
    for n in range(1, 4):
        A(f"v_xor_b32 v{16+n}, {16*n}, v16\nv_xor_b32 v{20+n}, {64*n}, v20")
    sI, sLV = sH + 1, sH + 2
    NLD = 8 * U0 + 1024
    if not pace:
        wins = (win,); c0 = 0
    A(f"s_mov_b32 s{sCNT}, 0\ns_mov_b32 s{sLB}, 0\ns_mov_b32 s{sFL}, 0\ns_mov_b32 s{sH}, 0\ns_mov_b32 s{sI}, {8*U0}\nv_mov_b32 v25, 0\nv_subrev_u32 v26, 8, v{vCNT}")
    A("L_tile:")
    A(f"s_cmp_lg_u32 s{sCNT}, 32\ns_cbranch_scc1 L_nosw")
    stamp(4, 1); stamp(5, 3)
    A(f"s_mov_b64 {s2(rK)}, {s2(rV)}\ns_mov_b32 s{sH}, 0")
    for n in range(4):
        A(f"v_mov_b32 v{16+n}, v{20+n}")
    A("L_nosw:")
    A(f"s_sub_u32 s{sTHR}, s{sCNT}, {NSLOT-1}")
    A(f"s_cmp_lg_u32 s{sTHR}, 0\ns_cbranch_scc1 L_nogup")
    lds_wait(F_GUP, sT2, 1, "gup", sleep=0)
    stamp(2)
    A("L_nogup:")
    lds_wait(F_DONE, sFL, f"s{sTHR}", "free", sleep=0, cached=True, pair=True)
    A(f"s_add_u32 m0, s{sLB}, {L_RING}")
    if pace:
        A(f"s_waitcnt lgkmcnt(0)\nv_readfirstlane_b32 s{sLV}, v25\nds_read_b32 v25, v7 offset:{F_WIN}")
    order = sorted(range(len(wins)), key=lambda k: (abs(k - c0), -k))
    for idx, k in enumerate(order[1:]):
        A(f"s_cmp_eq_i32 s{sLV}, {k - c0}\ns_cbranch_scc1 L_ver{idx+1}")
    def version(idx, W):
        A(f"L_ver{idx}:")
        A(f"s_sub_u32 s{sT2}, s{sI}, {W-1}\nv_mov_b32 v{vCNT}, s{sT2}")
        A(f"L_vq{idx}:")
        for hq in range(unq):
            for n in range(4):
                A(f"s_waitcnt vmcnt({W-1})")
                A(f"buffer_load_dwordx4 v{16+n}, {s4(rK)}, s{sH} offen offset:{1024*n} {kvflags} lds")
                if n == 0:
                    A(f"v_max_i32 v26, v26, v{vCNT}\nv_add_u32 v{vCNT}, 4, v{vCNT}\nds_write_b32 v7, v26 offset:{F_RDY}")
            A(f"s_addk_i32 m0, 0x1000\ns_addk_i32 s{sH}, 0x1000")
        if unq < 4:
            A(f"s_and_b32 s{sT2}, s{sH}, 0x3fff\ns_cbranch_scc1 L_vq{idx}")
    version(0, wins[order[0]])
    A("L_qend:")
    A(f"s_add_u32 s{sI}, s{sI}, 16")
    next_slot(1)
    if stamps and smode == 3:
        for q in range(2):
            A(f"s_cmp_lg_u32 s{sCNT}, {32*q+15}\ns_cbranch_scc1 L_np{q}")
            stamp(4 + 2 * q, 3)
            A(f"L_np{q}:")
    A(f"s_add_u32 s{sCNT}, s{sCNT}, 1\ns_cmp_lt_u32 s{sCNT}, 64\ns_cbranch_scc1 L_tile")
    for rem in (24, 16, 8, 0):
        A(f"v_max_i32 v26, {NLD - rem}, v26\ns_waitcnt vmcnt({rem})\nds_write_b32 v7, v26 offset:{F_RDY}")
    stamp(3)
    A("s_branch L_fin")

    for idx, k in enumerate(order[1:]):
        version(idx + 1, wins[k])
        A("s_branch L_qend")
    A("L_pace:")
    srd(rB, sDBG, 256)
    if skew is not None:
        A(f"s_cmp_lg_u32 s{sJJ}, 0\ns_cbranch_scc1 L_nosk")
        A(f"s_not_b32 s{sT0}, s{sST}\nv_mov_b32 v16, s{sT0}\ns_mov_b64 exec, 1\nbuffer_atomic_umax v16, v7, {s4(rB)}, 0 offen offset:64\ns_mov_b64 exec, -1")
        A("L_nosk:")
    make_tags()
    lds_wait(F_RDY, sFL, 8 * U0, "wop", sleep=8)
    A(f"s_mov_b32 s{sTW}, 0")
    tail_prep()
    if pace:
        sP, sPP, sS, sD, sPGA, sOWN, sSP = sH, sH + 1, sH + 2, sH + 3, sH + 4, sH + 5, sH + 6
        lds_wait(F_QH, sMODE, 1, "qhp", sleep=8)
        A(f"s_cmp_lg_u32 s{sMODE}, 2\ns_cbranch_scc1 L_pdone")
        A(f"v_lshlrev_b32 v5, 2, v1")
        A(f"s_lshl_b32 s{sPGA}, s{sX8}, {pgs}\ns_add_u32 s{sPGA}, s{sPGA}, {WS_PG}\ns_lshl_b32 s{sOWN}, s{sJJ}, 2\ns_add_u32 s{sOWN}, s{sOWN}, s{sPGA}")
        A(f"s_mov_b32 s{sP}, 0\ns_mov_b32 s{sCNT}, 0\ns_mov_b32 s{sSP}, 0")
        A("L_pl:")
        A(f"s_mov_b32 s{sPP}, s{sP}\nds_read_b32 v16, v7 offset:{F_RDY}\ns_waitcnt lgkmcnt(0)\nv_readfirstlane_b32 s{sP}, v16")
        A(f"s_add_u32 s{sCNT}, s{sCNT}, 1\ns_cmp_gt_u32 s{sCNT}, 0x10000\ns_cbranch_scc1 L_pdone")
        A(f"s_and_b32 s{sT3}, s{sTAG}, 0xfffff800\ns_or_b32 s{sT0}, s{sT3}, s{sP}\nv_mov_b32 v16, s{sT0}")
        A(f"s_mov_b64 exec, 1\nbuffer_store_dword v16, v7, {s4(rWS)}, s{sOWN} offen\ns_mov_b64 exec, -1")
        A(f"s_cmp_ge_u32 s{sP}, {NLD - endstop}\ns_cbranch_scc1 L_pdone")
        if pace == 1:
            A("s_mov_b32 exec_hi, 0")
        A(f"buffer_load_dword v17, v5, {s4(rWS)}, s{sPGA} offen sc1")
        A("s_waitcnt vmcnt(0)")
        A(f"v_xor_b32 v19, s{sT3}, v17\nv_cmp_lt_u32 vcc, 0x7ff, v19\ns_nop 0")
        if pace > 1:
            A(f"v_readlane_b32 s{sD}, v19, 32")
        for k in (8, 4, 2, 1):
            A(f"s_nop 1\nv_add_u32 v19, v19, v19 row_ror:{k}")
        A(f"s_cmp_lg_u32 vcc_lo, 0\ns_cbranch_scc1 L_pnext")
        A(f"v_readlane_b32 s{sS}, v19, 0\nv_readlane_b32 s{sT0}, v19, 16")
        A(f"s_cmp_eq_u32 s{sPP}, 0\ns_cbranch_scc1 L_pnext")
        A(f"s_add_u32 s{sS}, s{sS}, s{sT0}")
        A(f"s_add_u32 s{sT0}, s{sP}, s{sPP}\ns_lshl_b32 s{sT0}, s{sT0}, 4\ns_sub_u32 s{sT0}, s{sS}, s{sT0}")
        A(f"s_add_u32 s{sT0}, s{sT0}, {(1 << (gs - 1)) + bias}\ns_ashr_i32 s{sT0}, s{sT0}, {gs}\ns_max_i32 s{sT0}, s{sT0}, 0")
        if istep != 1:
            A(f"s_mul_i32 s{sT0}, s{sT0}, {istep}")
        if pace > 1:
            A(f"s_cmp_lt_u32 s{sD}, 0x800\ns_cselect_b32 s{sD}, s{sD}, {c0}\ns_add_u32 s{sT0}, s{sT0}, s{sD}\ns_sub_u32 s{sT0}, s{sT0}, {c0}")
        A(f"s_min_i32 s{sT0}, s{sT0}, {len(wins)-1-c0}")
        A(f"v_mov_b32 v16, s{sT0}\nds_write_b32 v7, v16 offset:{F_WIN}")
        if pace > 1:
            A(f"s_and_b32 s{sT2}, s{sCNT}, {(1 << gper) - 1}\ns_lshl_b32 s{sT2}, s{sT2}, 5\ns_add_u32 s{sT2}, s{sT2}, s{sJJ}\ns_cmp_lg_u32 s{sT2}, 31\ns_cbranch_scc1 L_pnext")
            A(f"s_cmp_eq_u32 s{sSP}, 0\ns_cselect_b32 s{sT1}, 0x1000000, 0\ns_sub_u32 s{sT0}, s{sS}, s{sSP}\ns_add_u32 s{sT0}, s{sT0}, s{sT1}\nv_mov_b32 v16, s{sT0}")
            A(f"s_mov_b64 exec, 1\nbuffer_atomic_add v16, v7, {s4(rB)}, 0 offen sc0\ns_waitcnt vmcnt(0)\nv_readfirstlane_b32 s{sT0}, v16")
            A(f"s_add_u32 s{sT1}, s{sS}, s{sSP}\ns_mul_i32 s{sT1}, s{sT1}, 7\ns_lshr_b32 s{sT1}, s{sT1}, 1\ns_add_u32 s{sT1}, s{sT1}, s{sSP}\ns_mov_b32 s{sSP}, s{sS}")
            A(f"s_sub_u32 s{sT0}, s{sT0}, 0x8000000\ns_cbranch_scc1 L_pnext")
            A(f"s_sub_u32 s{sT0}, s{sT0}, s{sT1}\ns_add_u32 s{sT0}, s{sT0}, {(1 << (gs2 + 2)) + 8 * gbias}\ns_ashr_i32 s{sT0}, s{sT0}, {gs2 + 3}")
            A(f"s_max_i32 s{sT0}, s{sT0}, {gmin}\ns_min_i32 s{sT0}, s{sT0}, {gmax}\ns_add_u32 s{sT0}, s{sT0}, {c0}\ns_or_b32 s{sT0}, s{sT0}, s{sT3}\nv_mov_b32 v16, s{sT0}")
            A(f"buffer_store_dword v16, v7, {s4(rWS)}, s{sPGA} offen offset:128")
        A("L_pnext:")
        A(f"s_mov_b64 exec, -1\ns_sleep {psleep}\ns_branch L_pl")

    A("L_pdone:")
    A("s_branch L_endgate")

    A("L_notloader:")
    A(f"s_mov_b32 s{sTW}, s{sW}\ns_cmp_eq_u32 s{sW}, 4\ns_cbranch_scc1 L_pace")
    A(f"s_cmp_eq_u32 s{sW}, 3\ns_cbranch_scc1 L_help")
    A(f"s_sub_u32 s{sC}, s{sW}, 1")
    A(f"s_cmp_eq_u32 s{sW}, 2\ns_cbranch_scc1 L_w2")
    if qtouch:
        A(f"s_lshl_b32 s{sT1}, s{sX8}, 13\ns_lshl_b32 s{sT2}, s{sJJ}, 8\ns_add_u32 s{sT1}, s{sT1}, s{sT2}\ns_add_u32 s{sT1}, s{sT1}, {WS_QX}")
        A(f"v_lshlrev_b32 v5, 2, v1\nbuffer_load_dword v17, v5, {s4(rWS)}, s{sT1} offen sc1")
    make_tags()
    A("s_branch L_qwait")
    def slice_mv(sKS, lds_base, unit0, after_read=None):
        A(f"s_lshl_b32 s{sT2}, s{sKS}, 8\nv_lshl_add_u32 v5, v2, 5, s{sT2}")
        A(f"ds_read_b128 v[20:23], v5 offset:{L_XN}\nds_read_b128 v[24:27], v5 offset:{L_XN+16}")
        A(f"v_add_u32 v6, {lds_base}, v4")
        for half in range(2):
            lds_wait(F_RDY, sFL, 8 * (unit0 + half + 1), "wsl", sleep=1)
            for i in range(8):
                A(f"ds_read_b128 {v4(64+4*i)}, v6 offset:{8192*half + 1024*i}")
            lgkm(0)
            if half == 1:
                stamp(6, 2)
                if after_read:
                    after_read()
            matvec8(64, [f"v{20+4*half+k}" for k in range(4)], 32, 40, first=(half == 0))
        reduce8(32)
        A(f"v_lshrrev_b32 v6, 4, v1\nv_lshlrev_b32 v6, 6, v6\nv_lshrrev_b32 v5, 1, v3\nv_add_u32 v6, v6, v5")
    A("L_w2:")
    A(f"s_lshr_b32 s{sT3}, s2, 6")
    A("s_waitcnt vmcnt(0)")
    stamp(4, 2)
    ln_stats(16, 28, 29, 32)
    ln_apply(16, 28, 29, 32)
    A(f"ds_write_b128 v4, v[16:19] offset:{L_XN}")
    lds_flag(F_XN)
    stamp(5, 2)
    make_tags()
    slice_mv(sT3, L_P, 0)
    sXC = sH + 4
    A(f"s_getreg_b32 s{sXC}, hwreg(HW_REG_XCC_ID, 0, 4)")
    if force:
        A(f"s_and_b32 s{sXC}, s{sJJ}, 1")
    embed(34, 32, TX2); embed(35, 33, TX2 + 1)
    A(f"v_xor_b32 v32, s{sXC}, v34\nv_xor_b32 v33, s{sXC}, v35")
    A(f"s_lshl_b32 s{sH}, s{sX8}, 13\ns_add_u32 s{sH}, s{sH}, {WS_QX}\ns_lshl_b32 s{sT2}, s{sT3}, 11\ns_add_u32 s{sT1}, s{sH}, s{sT2}")
    A(f"s_and_b32 s{sT2}, s{sJJ}, 7\ns_lshl_b32 s{sT2}, s{sT2}, 8\ns_add_u32 s{sT1}, s{sT1}, s{sT2}")
    A("s_mov_b32 exec_lo, 0x00ff00ff\ns_mov_b32 exec_hi, 0x00ff00ff")
    A(f"buffer_store_dwordx2 v[32:33], v6, {s4(rWS)}, s{sT1} offen")
    A("s_mov_b64 exec, -1")
    stamp(1)
    for k in range(4):
        A(f"v_xor_b32 v{36+k}, s{sXC}, v{TX4+k}")
    A(f"s_add_u32 s{sH+1}, s{sH}, 4096\ns_mov_b32 s{sMODE}, 2")
    if qgate:
        lds_wait(F_RDY, sFL, 8 * qgate, "qgate", sleep=2)
    A(f"s_mov_b32 s{sSPIN}, 0")
    A("L_qpoll:")
    for i in range(8):
        A(f"buffer_load_dwordx4 {v4(64+4*i)}, v4, {s4(rWS)}, s{sH+i//4} offen offset:{1024*(i%4)} sc1")
    A("s_waitcnt vmcnt(0)")
    A(f"v_xor_b32 v{vX0}, v64, v36")
    for i in range(1, 32):
        A(f"v_bitop3_b32 v{vX0}, v{vX0}, v{64+i}, v{36+i%4} bitop3:0xf6")
    A(f"v_and_b32 v{vX0}, 15, v{vX0}\nv_cmp_ne_u32 vcc, 0, v{vX0}\ns_cbranch_vccz L_qok")
    A(f"s_sleep {qsleep}\ns_add_u32 s{sSPIN}, s{sSPIN}, 1\ns_cmp_lt_u32 s{sSPIN}, {qtry}\ns_cbranch_scc1 L_qpoll")
    A(f"s_cmp_lg_u32 s{sSPIN}, {qtry}\ns_cbranch_scc1 L_qflip")
    A(f"s_xor_b32 s{sT1}, s{sT1}, {WS_QXFAR}")
    A("s_mov_b32 exec_lo, 0x00ff00ff\ns_mov_b32 exec_hi, 0x00ff00ff")
    A(f"buffer_store_dwordx2 v[34:35], v6, {s4(rWS)}, s{sT1} offen sc1")
    A("s_mov_b64 exec, -1")
    A("L_qflip:")
    A(f"s_xor_b32 s{sH}, s{sH}, {WS_QXFAR}\ns_xor_b32 s{sH+1}, s{sH+1}, {WS_QXFAR}\ns_xor_b32 s{sMODE}, s{sMODE}, 3")
    for k in range(4):
        A(f"v_xor_b32 v{36+k}, s{sXC}, v{36+k}")
    A(f"s_cmp_lt_u32 s{sSPIN}, s{sLIM}\ns_cbranch_scc1 L_qpoll")
    A("L_qok:")
    for e in range(8):
        A(f"v_add_f32 v{64+e}, v{64+e}, v{72+e}\nv_add_f32 v{80+e}, v{80+e}, v{88+e}")
    for e in range(8):
        A(f"v_add_f32 v{64+e}, v{64+e}, v{80+e}")
    for e in range(4):
        A(f"v_cvt_pk_bf16_f32 v{64+e}, v{64+2*e}, v{65+2*e}")
    A(f"v_lshrrev_b32 v6, 4, v1\nv_lshlrev_b32 v6, 7, v6\nv_and_b32 v5, 3, v1\nv_lshl_add_u32 v6, v5, 5, v6")
    A(f"v_and_b32 v5, 12, v1\nv_add_u32 v6, v6, v5")
    for e in range(4):
        A(f"ds_write_b32 v6, v{64+e} offset:{L_Q + 16*(e&1) + 512*(e>>1)}")
    lds_flag(F_QH, val=f"s{sMODE}")
    A("L_qwait:")
    vOWN, vOTH = 30, 31
    A(f"s_lshl_b32 s{sT2}, s{sC}, 2\nv_mov_b32 v{vOWN}, s{sT2}\nv_xor_b32 v{vOTH}, 4, v{vOWN}")
    vQV, vKT, vS, vT, vMAX, vAD, vKA, vPA, vDN = 32, 96, 160, 164, 172, 176, 184, 188, 189
    A("v_and_b32 v5, 3, v1\nv_lshlrev_b32 v5, 10, v5\nv_bfe_u32 v6, v1, 2, 2\nv_lshl_add_u32 v5, v6, 8, v5")
    A(f"v_lshrrev_b32 v6, 4, v1\nv_xor_b32 v6, v6, v1\nv_and_b32 v6, 15, v6\nv_lshl_add_u32 v{vKA}, v6, 4, v5")
    for n in range(1, 4):
        A(f"v_xor_b32 v{vKA+n}, {64*n}, v{vKA}")
    A(f"v_and_b32 v5, 3, v1\nv_lshlrev_b32 v5, 6, v5\nv_lshrrev_b32 v6, 4, v1\nv_lshl_add_u32 v5, v6, 4, v5")
    A(f"v_mov_b32 v29, v5")
    A(f"v_and_b32 v6, 8, v1\nv_lshl_add_u32 v5, v6, 5, v5\nv_and_b32 v6, 4, v1\nv_lshl_add_u32 v5, v6, 1, v5")
    A(f"s_lshl_b32 s{sT2}, s{sC}, 9\nv_add_u32 v{vPA}, s{sT2}, v5")
    A(f"v_mov_b32 v{vMAX}, {hex(f2u(-3e38))}")
    A(f"s_add_u32 s{sT2}, s{sC}, 2\nv_mov_b32 v{vDN}, s{sT2}")
    A("v_and_b32 v6, 3, v1\nv_lshlrev_b32 v6, 8, v6\nv_lshrrev_b32 v5, 4, v1\nv_lshl_add_u32 v6, v5, 4, v6")
    A(f"s_mov_b32 s{sFL}, 0")
    lds_wait(F_QH, sMODE, 1, "qh", sleep=1)
    stamp(2)
    for s in range(4):
        A(f"ds_read_b128 {v4(vKT+4*s)}, v6 offset:{L_Q + 64*s}")
    lgkm(0)
    for b in range(4):
        A(f"s_mov_b32 vcc_lo, {hex(0x000f000f << (4*b))}\ns_mov_b32 vcc_hi, {hex(0x000f000f << (4*b))}")
        for i in range(16):
            A(f"v_cndmask_b32 v{vQV+16*b+i}, 0, v{vKT+i}, vcc")
    A(f"s_lshl_b32 s{sLB}, s{sC}, 14\ns_lshl_b32 s{sTHR}, s{sC}, 4\ns_add_u32 s{sTHR}, s{sTHR}, {8*(U0+2)}")
    A(f"s_mov_b32 s{sCNT}, 0")
    A("L_p1:")
    for n in range(4):
        A(f"v_add_u32 v{vAD+n}, s{sLB}, v{vKA+n}")
    lds_wait(F_RDY, sFL, f"s{sTHR}", "krdy", sleep=csleep, cached=True)
    for b in range(4):
        for n in range(4):
            A(f"ds_read_b128 {v4(vKT+16*b+4*n)}, v{vAD+n} offset:{L_RING + 4096*b}")
    for b in range(4):
        lgkm(12 - 4 * b)
        if b == 3:
            A(f"ds_write_b32 v{vOWN}, v{vDN} offset:{F_DONE}")
        for n in range(4):
            c = "0" if b + n == 0 else v4(vS)
            A(f"v_mfma_f32_16x16x32_bf16 {v4(vS)}, {v4(vKT+16*b+4*n)}, {v4(vQV+16*b+4*n)}, {c}")
    A(f"v_add_u32 v{vDN}, 2, v{vDN}\nv_min_u32 v{vDN}, 32, v{vDN}")
    next_slot(2)
    A(f"s_add_u32 s{sTHR}, s{sTHR}, 32\ns_add_u32 s{sCNT}, s{sCNT}, 1\ns_nop 1")
    A(f"v_cvt_pk_bf16_f32 v{vT}, v{vS}, v{vS+1}\nv_cvt_pk_bf16_f32 v{vT+1}, v{vS+2}, v{vS+3}")
    A(f"v_max3_f32 v{vMAX}, v{vMAX}, v{vS}, v{vS+1}\nv_max3_f32 v{vMAX}, v{vMAX}, v{vS+2}, v{vS+3}")
    for j in range(2):
        A(f"v_lshlrev_b32 v{vT+2+2*j}, 16, v{vT+j}\nv_and_b32 v{vT+3+2*j}, s{sHI}, v{vT+j}")
    for i in range(4):
        A(f"v_mul_f32 v{vT+2+i}, s{sSCALE}, v{vT+2+i}")
    A(f"v_cvt_pk_bf16_f32 v{vT}, v{vT+2}, v{vT+3}\nv_cvt_pk_bf16_f32 v{vT+1}, v{vT+4}, v{vT+5}")
    A(f"ds_write_b64 v{vPA}, {v2(vT)} offset:{L_P}\nv_add_u32 v{vPA}, 1024, v{vPA}")
    A(f"s_cmp_lt_u32 s{sCNT}, 16\ns_cbranch_scc1 L_p1")
    stamp(4, 1)
    wave_red(vMAX, vX0, "v_max_f32", (8, 4))
    A(f"v_and_b32 v5, 3, v1\nv_lshlrev_b32 v5, 2, v5\nv_lshl_add_u32 v6, v{vOWN}, 2, v5\nv_xor_b32 v5, 16, v6")
    A(f"ds_write_b32 v6, v{vMAX} offset:{L_MX}")
    lds_flag(F_MX, vaddr=vOWN)
    A(f"v_subrev_u32 v{vPA}, 16384, v{vPA}")
    lds_wait(F_MX, sT0, 1, "mx", sleep=0, vaddr=vOTH)
    A(f"ds_read_b32 v{vX1}, v5 offset:{L_MX}")
    for i in range(16):
        A(f"ds_read_b64 {v2(32+2*i)}, v{vPA} offset:{L_P + 1024*i}")
    lgkm(0)
    vMN, vLSUM = 173, 174
    A(f"v_max_f32 v{vMAX}, v{vMAX}, v{vX1}")
    rnd_bf16(vMAX)
    A(f"v_mul_f32 v{vMAX}, s{sSCALE}, v{vMAX}")
    rnd_bf16(vMAX)
    A(f"v_mul_f32 v{vMN}, s{sLOG2E}, v{vMAX}\nv_mov_b32 v{vLSUM}, 0")
    for i in range(0, 16, 2):
        E = 96
        for j in range(4):
            A(f"v_lshlrev_b32 v{E+2*j}, 16, v{32+2*i+j}\nv_and_b32 v{E+2*j+1}, s{sHI}, v{32+2*i+j}")
        for j in range(8):
            A(f"v_fma_f32 v{E+j}, v{E+j}, s{sLOG2E}, -v{vMN}")
        for j in range(8):
            A(f"v_exp_f32 v{E+j}, v{E+j}")
        A("s_nop 0")
        for j in range(4):
            A(f"v_cvt_pk_bf16_f32 v{32+2*i+j}, v{E+2*j}, v{E+2*j+1}")
        A(f"ds_write_b64 v{vPA}, {v2(32+2*i)} offset:{L_P + 1024*i}\nds_write_b64 v{vPA}, {v2(34+2*i)} offset:{L_P + 1024*(i+1)}")
        for j in range(4):
            A(f"v_add_f32 v{E+j}, v{E+j}, v{E+4+j}")
        A(f"v_add_f32 v{E}, v{E}, v{E+1}\nv_add_f32 v{E+2}, v{E+2}, v{E+3}\nv_add_f32 v{vLSUM}, v{vLSUM}, v{E}\nv_add_f32 v{vLSUM}, v{vLSUM}, v{E+2}")
    wave_red(vLSUM, vX0, "v_add_f32", (8, 4))
    A(f"v_lshlrev_b32 v6, 1, v6\nv_mov_b32 v{vLSUM+1}, v{vMN}\nds_write_b64 v6, {v2(vLSUM)} offset:{L_LS}")
    lds_flag(F_PD, vaddr=vOWN)
    vO, vVF, vPF, vVA = 32, 48, 80, 184
    A("v_and_b32 v5, 12, v1\nv_lshrrev_b32 v6, 4, v1\nv_add_u32 v6, v6, v5\nv_lshlrev_b32 v6, 8, v6")
    A(f"v_lshrrev_b32 v{vX1}, 3, v1\nv_and_b32 v{vX1}, 2, v{vX1}\nv_or_b32 v5, v5, v{vX1}")
    A(f"v_bfe_u32 v{vX1}, v1, 1, 1\nv_xor_b32 v5, v5, v{vX1}\ns_lshl_b32 s{sT2}, s{sC}, 3\nv_xor_b32 v5, s{sT2}, v5")
    A(f"v_lshl_add_u32 v6, v5, 4, v6\nv_and_b32 v5, 1, v1\nv_lshl_add_u32 v{vVA}, v5, 3, v6")
    for n in range(1, 4):
        A(f"v_xor_b32 v{vVA+n}, {32*n}, v{vVA}")
    for i in range(4):
        A(f"v_mov_b32 v{vO+i}, 0")
    for i in range(32):
        A(f"v_mov_b32 v{vPF+i}, 0")
    for T in range(4):
        A(f"s_mov_b32 s{sPM+2*T}, {hex(0x000f000f << (4*T))}\ns_mov_b32 s{sPM+2*T+1}, s{sPM+2*T}")
    A(f"v_mov_b32 v{vDN}, 33\nv_mov_b32 v{vPA}, v29")
    A(f"s_mov_b32 s{sLB}, {(32 % NSLOT) * 16384}\ns_mov_b32 s{sTHR}, {8*(U0+64+1)}\ns_mov_b32 s{sCNT}, 0")
    tail_prep()
    A(f"v_lshrrev_b32 v6, 2, v1\nv_lshlrev_b32 v6, 11, v6\nv_and_b32 v5, 3, v1\nv_lshl_add_u32 v{vO1}, v5, 4, v6")
    A(f"s_lshl_b32 s{sT1}, s{sX8}, 16\ns_lshl_b32 s{sT2}, s{sC}, 15\ns_add_u32 s{sT1}, s{sT1}, s{sT2}")
    A(f"s_lshl_b32 s{sT2}, s{sJJ}, 6\ns_add_u32 s{sT1}, s{sT1}, s{sT2}\ns_add_u32 s{sT1}, s{sT1}, {WS_H1}")
    lds_wait(F_PD, sT0, 1, "pd", sleep=0, vaddr=vOTH)
    stamp(5, 1)
    vSC = 28
    A("L_p2:")
    for n in range(4):
        A(f"v_add_u32 v{vAD+n}, s{sLB}, v{vVA+n}")
    A(f"s_cmp_lg_u32 s{sCNT}, {prept}\ns_cbranch_scc1 L_nosc")
    lds_wait(F_SC, sT0, 1, "sc", sleep=1)
    A(f"v_and_b32 v5, 3, v1\nv_lshlrev_b32 v5, 2, v5\nds_read_b32 v{vSC}, v5 offset:{L_SC}")
    A("L_nosc:")
    for T in range(4):
        A(f"s_mov_b64 exec, {s2(sPM+2*T)}")
        for ks in range(2):
            A(f"ds_read_b128 {v4(vPF+16*ks+4*T)}, v{vPA} offset:{L_P + 256*ks}")
    A("s_mov_b64 exec, -1")
    for ks in range(2):
        lds_wait(F_RDY, sFL, f"s{sTHR}", "vrdy", sleep=csleep, cached=True)
        for T in range(4):
            for ih in range(2):
                A(f"ds_read_b64_tr_b16 {v2(vVF+16*ks+4*T+2*ih)}, v{vAD+T} offset:{L_RING + 8192*ks + 4096*ih}")
        A(f"s_add_u32 s{sTHR}, s{sTHR}, 8")
        if ks == 1:
            next_slot(1)
            A(f"s_add_u32 s{sCNT}, s{sCNT}, 1\nv_add_u32 v{vPA}, 512, v{vPA}")
        for T in range(4):
            lgkm(6 - 2 * T)
            A(f"v_mfma_f32_16x16x32_bf16 {v4(vO)}, {v4(vVF+16*ks+4*T)}, {v4(vPF+16*ks+4*T)}, {v4(vO)}")
    A(f"ds_write_b32 v{vOWN}, v{vDN} offset:{F_DONE}\nv_add_u32 v{vDN}, 1, v{vDN}")
    A(f"s_cmp_lt_u32 s{sCNT}, 32\ns_cbranch_scc1 L_p2")
    stamp(3)
    A(f"s_cmp_eq_u32 s{sMODE}, 2\ns_nop 2")
    for r in range(4):
        A(f"v_mul_f32 v{vO+r}, v{vO+r}, v{vSC}")
    for r in range(4):
        embed(vO + r, vO + r, TX4 + r)
    A(f"s_cbranch_scc0 L_h1far\nbuffer_store_dwordx4 {v4(vO)}, v{vO1}, {s4(rWS)}, s{sT1} offen\ns_branch L_tail")
    A(f"L_h1far:\nbuffer_store_dwordx4 {v4(vO)}, v{vO1}, {s4(rWS)}, s{sT1} offen sc1\ns_branch L_tail")

    A("L_help:")
    srd(rA, sX, 1024)
    vG, vXP = 56, 58
    A(f"s_cmp_ge_i32 s{sF}, 0\ns_cbranch_scc1 L_h3f")
    A(f"s_and_b32 s{sT3}, s{sSUB}, 3")
    make_tags()
    lds_wait(F_XN, sT0, 1, "xn", sleep=2)
    slice_mv(sT3, L_GU, 2, after_read=lambda: lds_flag(F_GUP))
    embed(32, 32, TX2); embed(33, 33, TX2 + 1)
    lds_wait(F_QH, sMODE, 1, "qh3", sleep=4)
    A(f"s_lshl_b32 s{sT0}, s{sCB}, 11\ns_add_u32 s{sT0}, s{sT0}, {WS_G1}\ns_lshl_b32 s{sT1}, s{sSUB}, 8\ns_add_u32 s{sT1}, s{sT1}, s{sT0}")
    if skip & 4: A("s_branch L_hstat")
    A("s_mov_b32 exec_lo, 0x00ff00ff\ns_mov_b32 exec_hi, 0x00ff00ff")
    store2(f"buffer_store_dwordx2 v[32:33], v6, {s4(rWS)}, s{sT1} offen",
           f"s_cmp_lt_u32 s{sJJ}, {24 if nb is None else 32}\ns_cselect_b32 s{sT2}, s{sMODE}, 1\ns_cmp_eq_u32 s{sT2}, 2")
    A("s_mov_b64 exec, -1")
    stamp(1)
    lds_wait(F_RDY, sFL, 8 * g2gate, "g2gate", sleep=16)
    for i in range(8):
        A(f"ds_read_b128 {v4(64+4*i)}, v4 offset:{L_WD + 1024*i}")
    poll([f"buffer_load_dwordx4 {v4(32+4*i)}, v4, {s4(rWS)}, s{sT0} offen offset:{1024*i} sc1" for i in range(2)],
         chk4([32, 36]), "g1poll", sleep=32)
    for e in range(8):
        swap_red(32 + e, vX0, "v_add_f32")
        rnd_bf16(32 + e)
    for e in range(4):
        sigmoid(32 + e, 32 + e)
        rnd_bf16(32 + e)
        A(f"v_mul_f32 v{32+e}, v{32+e}, v{36+e}")
    A("v_cvt_pk_bf16_f32 v32, v32, v33\nv_cvt_pk_bf16_f32 v33, v34, v35")
    A("v_and_b32 v5, 3, v1\nv_lshlrev_b32 v5, 5, v5\nv_and_b32 v6, 12, v1\nv_add_u32 v5, v5, v6\nv_lshlrev_b32 v6, 4, v2")
    A(f"ds_write_b32 v5, v32 offset:{L_HB}\nds_write_b32 v5, v33 offset:{L_HB+16}\nds_read_b128 v[20:23], v6 offset:{L_HB}")
    lgkm(0)
    matvec8(64, [f"v{20+k}" for k in range(4)], 32, 40)
    reduce8(32)
    A(f"v_lshrrev_b32 v6, 4, v1\nv_lshlrev_b32 v6, 3, v6\nv_lshl_add_u32 v6, v3, 1, v6\nv_lshlrev_b32 v5, 2, v1")
    A(f"ds_write_b64 v6, v[32:33] offset:{L_HB}\nds_read_b32 v32, v5 offset:{L_HB}")
    A(f"v_and_b32 v5, 7, v1\nv_lshlrev_b32 v5, 2, v5\nv_lshrrev_b32 v33, v5, s{sTAG}\nv_and_b32 v33, 15, v33")
    A(f"v_lshrrev_b32 v6, 4, v1\nv_lshlrev_b32 v6, 11, v6\nv_and_b32 v5, 15, v1\nv_lshl_add_u32 v6, v5, 2, v6")
    A(f"s_lshl_b32 s{sT1}, s{sSUB}, 13\ns_lshl_b32 s{sT2}, s{sCB}, 6\ns_add_u32 s{sT1}, s{sT1}, s{sT2}\ns_add_u32 s{sT1}, s{sT1}, {WS_GL}")
    lgkm(0)
    embed(32, 32, 33)
    if not skip & 1:
        A(f"buffer_store_dword v32, v6, {s4(rWS)}, s{sT1} offen sc1")
    A("s_branch L_hstat")
    A("L_h3f:")
    make_tags()
    lds_flag(F_GUP)
    if skip & 2: A("s_branch L_hstat")
    lds_wait(F_RDY, sFL, 8 * g3gate, "g3gate", sleep=16)
    A(f"s_mov_b32 s{sT0}, s{sF}")
    A(f"v_and_b32 v6, 3, v1\nv_lshlrev_b32 v6, 3, v6\nv_lshrrev_b32 v5, 5, v1\nv_lshl_add_u32 v6, v5, 2, v6\ns_lshl_b32 s{sT1}, s{sT0}, 5")
    A(f"buffer_load_dword v{vXP}, v6, {s4(rA)}, s{sT1} offen")
    A(f"s_lshl_b32 s{sH}, s{sT0}, 11\ns_add_u32 s{sH}, s{sH}, {WS_GL}")
    A(f"v_min_u32 v6, 47, v1\nv_and_b32 v6, 60, v6\nv_and_b32 v5, 3, v1\nv_or_b32 v6, v6, v5\nv_lshlrev_b32 v6, 4, v6")
    poll([f"buffer_load_dwordx4 v[64:67], v4, {s4(rWS)}, s{sH} offen sc1",
          f"buffer_load_dwordx4 v[68:71], v6, {s4(rWS)}, s{sH} offen offset:1024 sc1"], chk4([64, 68]), "gpoll", sleep=64)
    A("s_mov_b32 exec_hi, 0xffff")
    for e in range(4):
        A(f"v_add_f32 v{64+e}, v{64+e}, v{68+e}")
    A("s_mov_b64 exec, -1")
    red4(64)
    for e in range(2):
        rnd_bf16(64 + e)
        sigmoid(68, 64 + e)
        A(f"v_mul_f32 v{vG+e}, v{64+e}, v68")
        rnd_bf16(vG + e)
    A("L_hstat:")
    stamp(2)
    lds_wait(F_PD, sT0, 1, "pdh", sleep=16, pair=True)
    lds_wait(F_QH, sMODE, 1, "qh4", sleep=4)
    A(f"v_and_b32 v5, 3, v1\nv_lshlrev_b32 v5, 3, v5")
    A(f"ds_read_b64 v[32:33], v5 offset:{L_LS}\nds_read_b32 v34, v5 offset:{L_LS+32}")
    lgkm(0)
    A(f"v_add_f32 v32, v32, v34\nv_log_f32 v32, v32\nv_mov_b32 v35, s{sTAG}\nv_add_f32 v34, v32, v33")
    A(f"s_lshl_b32 s{sT0}, s{sX8}, 10\ns_add_u32 s{sT0}, s{sT0}, {WS_LS}\ns_lshl_b32 s{sT1}, s{sJJ}, 5\ns_add_u32 s{sT1}, s{sT1}, s{sT0}")
    A("s_mov_b64 exec, 15")
    store2(f"buffer_store_dwordx2 v[34:35], v5, {s4(rWS)}, s{sT1} offen", f"s_cmp_eq_u32 s{sMODE}, 2")
    A("s_mov_b64 exec, -1")
    lds_wait(F_RDY, sFL, 8 * lsgate, "lsgate", sleep=16)
    A(f"v_lshlrev_b32 v6, 3, v1")
    poll([f"buffer_load_dwordx2 {v2(36+2*i)}, v6, {s4(rWS)}, s{sT0} offen offset:{512*i} sc1" for i in range(2)],
         [(37, f"s{sTAG}"), (39, f"s{sTAG}")], "lspoll", sleep=16, full=True)
    A("v_max_f32 v40, v36, v38")
    wave_red(40, vX0, "v_max_f32", (8, 4))
    A("v_sub_f32 v36, v36, v40\nv_sub_f32 v38, v38, v40\nv_exp_f32 v36, v36\nv_exp_f32 v38, v38\nv_sub_f32 v33, v33, v40\nv_add_f32 v36, v36, v38")
    wave_red(36, vX0, "v_add_f32", (8, 4))
    A("v_exp_f32 v33, v33\nv_rcp_f32 v36, v36\nv_lshrrev_b32 v5, 1, v5\nv_mul_f32 v33, v33, v36")
    A(f"ds_write_b32 v5, v33 offset:{L_SC}")
    lds_flag(F_SC)
    stamp(3)
    tail_prep()
    if dry:
        A(f"s_mov_b32 s{rWS+2}, 0\ns_mov_b32 s{sLIM}, 0\ns_branch L_tail")
        A("L_dryret:")
        A(f"s_mov_b64 exec, -1\ns_mov_b32 s{rWS+2}, {hex(WS_SIZE)}\ns_mov_b32 s{sLIM}, 0x40000")
    if touch:
        lds_wait(F_RDY, sFL, NLD - touch, "touch", sleep=4)
        A(f"s_lshl_b32 s{sT1}, s{sX8}, 16\ns_lshl_b32 s{sT2}, s{sJJ}, 11\ns_add_u32 s{sT1}, s{sT1}, s{sT2}\ns_add_u32 s{sT1}, s{sT1}, {WS_H1}")
        A(f"v_lshlrev_b32 v5, 5, v1\nbuffer_load_dword v40, v5, {s4(rWS)}, s{sT1} offen sc1")
    A("L_endgate:")
    lds_wait(F_RDY, sFL, NLD, "endgate", sleep=1)

    A("L_tail:")
    stamp(4, 0)
    poll([f"buffer_load_dwordx4 {v4(40+4*i)}, v4, {s4(rWS)}, s{sI1} offen offset:{1024*i} sc1" for i in range(2)],
         chk4([40, 44]), "h1poll", sleep=h1sleep)
    stamp(5, 0)
    for e in range(4):
        A(f"v_add_f32 v{40+e}, v{40+e}, v{44+e}")
    red4(40)
    A(f"v_cvt_pk_bf16_f32 v40, v40, v41\ns_nop 0")
    for u in range(8):
        A(f"v_readlane_b32 s{sH+u}, v40, {32*(u&1) + (u>>1)}")
    for u in range(8):
        for z in range(2):
            c = "0" if u == 0 else f"v{48+z}"
            A(f"v_dot2_f32_bf16 v{48+z}, s{sH+u}, v{vWO+2*u+z}, {c}")
    if dry:
        A(f"s_cmp_eq_u32 s{sLIM}, 0\ns_cbranch_scc1 L_t2b\ns_cmp_lg_u32 s{sTW}, 3")
    else:
        A(f"s_cmp_lg_u32 s{sTW}, 3\ns_nop 1")
    A(f"ds_write_b64 v{vRW}, v[48:49] offset:{L_RED}")
    A("s_waitcnt lgkmcnt(0)\ns_barrier\ns_cbranch_scc1 L_fin")
    A("L_t2b:")
    for p in range(3):
        A(f"ds_read_b64 {v2(42+2*p)}, v{vRR} offset:{L_RED + 512*p}")
    lgkm(0)
    A("v_add_f32 v48, v48, v42\nv_add_f32 v49, v49, v43\nv_add_f32 v44, v44, v46\nv_add_f32 v45, v45, v47\nv_add_f32 v48, v48, v44\nv_add_f32 v49, v49, v45")
    embed(48, 48, TX2); embed(49, 49, TX2 + 1)
    A(f"buffer_store_dwordx2 v[48:49], v{vO2}, {s4(rWS)}, s{sO2} offen sc1")
    if dry:
        A(f"s_cmp_eq_u32 s{sLIM}, 0\ns_cbranch_scc1 L_t3b")
    if wb:
        A(f"s_cmp_lg_u32 s{sJJ}, 0\ns_cbranch_scc1 L_nowb\ns_waitcnt vmcnt(0)\nbuffer_wbl2 sc1\nL_nowb:")
    A(f"s_cmp_lt_i32 s{sF}, 0\ns_cbranch_scc1 L_fin")
    A("L_t3b:")
    A(f"s_and_b32 s{sT0}, s{sF}, 31")
    A(f"s_lshr_b32 s{sT1}, s{sT0}, 1\ns_lshl_b32 s{sT1}, s{sT1}, 13\ns_and_b32 s{sT2}, s{sT0}, 1\ns_lshl_b32 s{sT2}, s{sT2}, 6\ns_add_u32 s{sT1}, s{sT1}, s{sT2}")
    A(f"s_add_u32 s{sT1}, s{sT1}, {WS_H2}\ns_add_u32 s{sT2}, s{sT1}, 4096\ns_lshl_b32 s{sT3}, s{sT0}, 5")
    A(f"v_lshrrev_b32 v55, 2, v1\nv_lshlrev_b32 v55, 7, v55\nv_and_b32 v5, 3, v1\nv_lshl_add_u32 v55, v5, 4, v55")
    A(f"v_lshlrev_b32 v5, 1, v5\nv_lshrrev_b32 v6, 5, v1\nv_add_u32 v5, v5, v6\nv_lshlrev_b32 v52, 2, v5")
    A(f"v_lshlrev_b32 v50, 16, v{vXP}\nv_and_b32 v51, s{sHI}, v{vXP}")
    A(f"s_min_u32 s{sH}, s{sLIM}, 1024")
    srd(rA, sOUT, f"s{sH}")
    if ackwait:
        A("s_waitcnt vmcnt(0)")
    if presleep:
        A(f"s_sleep {presleep}")
    poll([f"buffer_load_dwordx4 {v4(64+4*i)}, v55, {s4(rWS)}, s{sT1+i//2} offen offset:{2048*(i%2)} sc1" for i in range(4)],
         chk4([64, 68, 72, 76]), "h2poll", sleep=h2sleep)
    stamp(6, 0)
    for e in range(4):
        A(f"v_add_f32 v{64+e}, v{64+e}, v{68+e}\nv_add_f32 v{72+e}, v{72+e}, v{76+e}")
    for e in range(4):
        A(f"v_add_f32 v{64+e}, v{64+e}, v{72+e}")
    red4(64)
    A(f"v_cvt_pk_bf16_f32 v64, v64, v65\nv_and_b32 v65, s{sHI}, v64\nv_lshlrev_b32 v64, 16, v64")
    A(f"v_mul_f32 v64, v64, v{vG}\nv_mul_f32 v65, v65, v{vG+1}")
    A(f"v_cvt_pk_bf16_f32 v64, v64, v65\nv_and_b32 v65, s{sHI}, v64\nv_lshlrev_b32 v64, 16, v64")
    A("v_add_f32 v64, v64, v50\nv_add_f32 v65, v65, v51\nv_cvt_pk_bf16_f32 v64, v64, v65")
    A("s_mov_b32 exec_lo, 15\ns_mov_b32 exec_hi, 15")
    A(f"buffer_store_dword v64, v52, {s4(rA)}, s{sT3} offen {outflags}")
    if dry:
        A(f"s_cmp_eq_u32 s{sLIM}, 0\ns_cbranch_scc1 L_dryret")
    A(f"s_cmp_lg_u32 s{sT0}, 0\ns_cbranch_scc1 L_fin")
    A(f"s_mov_b64 exec, 1\nv_mov_b32 v65, s{sTAG}")
    A(f"buffer_store_dword v65, v7, {s4(rWS)}, 0 offen offset:{WS_EPOCH} {epflags}")
    A("L_fin:")
    if stamps:
        A("s_mov_b64 exec, -1")
        A("s_waitcnt vmcnt(0)")
        stamp(7)
        A("s_waitcnt lgkmcnt(0)")
        if skew is not None:
            A(f"s_cmp_lg_u32 s{sW}, 4\ns_cbranch_scc1 L_skout\ns_cmp_lg_u32 s2, {skew}\ns_cbranch_scc1 L_skout")
            srd(rB, 44, 256)
            A(f"buffer_load_dword v16, v7, {s4(rB)}, 0 offen offset:64 sc1\ns_waitcnt vmcnt(0)\nv_readfirstlane_b32 s{sT2}, v16\ns_nop 3")
            A(f"s_not_b32 s{sT0}, s{sT2}\ns_sub_u32 s{sT2}, s{sST}, s{sT0}\ns_mul_i32 s{sT2}, s{sT2}, 20\ns_min_u32 s{sT2}, s{sT2}, 100000")
            A(f"s_add_u32 s{sT2}, s{sT2}, s{sT0}\ns_add_u32 s{sT2}, s{sT2}, 10000")
            A("L_skpad:")
            A(f"s_memrealtime {s2(sH)}\ns_waitcnt lgkmcnt(0)\ns_sub_u32 s{sT3}, s{sH}, s{sT2}\ns_cmp_lt_i32 s{sT3}, 0\ns_cbranch_scc1 L_skpad")
            A("L_skout:")
        if diag is not None:
            dw, dwg, di, dj, mult = diag
            A(f"s_cmp_lg_u32 s{sW}, {dw}\ns_cbranch_scc1 L_padout")
            if dwg >= 0:
                A(f"s_cmp_lg_u32 s2, {dwg}\ns_cbranch_scc1 L_padout")
            A(f"s_cmp_eq_u32 s{sST+2*di}, 0\ns_cbranch_scc1 L_padout")
            A(f"s_sub_u32 s{sT2}, s{sST+2*di}, s{sST+2*dj}\ns_mul_i32 s{sT2}, s{sT2}, {mult}\ns_min_u32 s{sT2}, s{sT2}, 100000")
            A(f"s_add_u32 s{sT2}, s{sT2}, s{sST}\ns_add_u32 s{sT2}, s{sT2}, 10000")
            A("L_pad:")
            A(f"s_memrealtime {s2(sH)}\ns_waitcnt lgkmcnt(0)\ns_sub_u32 s{sT3}, s{sH}, s{sT2}\ns_cmp_lt_i32 s{sT3}, 0\ns_cbranch_scc1 L_pad")
            A("L_padout:")
        if pad is not None:
            A(f"s_cmp_eq_u32 s{sST+2*pad}, 0\ns_cbranch_scc1 L_padout")
            A(f"s_add_u32 s{sT2}, s{sST+2*pad}, 10000")
            A("L_pad:")
            A(f"s_memrealtime {s2(sH)}\ns_waitcnt lgkmcnt(0)\ns_sub_u32 s{sT3}, s{sH}, s{sT2}\ns_cmp_lt_i32 s{sT3}, 0\ns_cbranch_scc1 L_pad")
            A("L_padout:")
        for i in range(8):
            A(f"v_mov_b32 v{96+i}, s{sST+2*i}")
        A(f"s_mul_i32 s{sT1}, s2, 5\ns_add_u32 s{sT1}, s{sT1}, s{sW}\ns_lshl_b32 s{sT1}, s{sT1}, 5\ns_add_u32 s{sT1}, s{sT1}, {WS_STAMP}")
        A("s_mov_b64 exec, 1")
        A(f"buffer_store_dwordx4 v[96:99], v7, {s4(rWS)}, s{sT1} offen")
        A(f"buffer_store_dwordx4 v[100:103], v7, {s4(rWS)}, s{sT1} offen offset:16")
    A("L_end:")
    A("s_endpgm")

    out = HEADER
    out += f"; @launch grid=(256,1,1) block=(320,1,1) lds={LDS_BYTES}\n"
    out += '.amdgcn_target "amdgcn-amd-amdhsa--gfx950"\n.text\n'
    out += f".globl {KNAME}_kernel\n.p2align 8\n.type {KNAME}_kernel,@function\n"
    out += "\n".join(A.L) + "\n"
    out += f""".section .rodata,"a"
.p2align 6
.amdhsa_kernel {KNAME}_kernel
  .amdhsa_next_free_vgpr 216
  .amdhsa_next_free_sgpr 102
  .amdhsa_accum_offset 216
  .amdhsa_group_segment_fixed_size 0
  .amdhsa_kernarg_size 96
  .amdhsa_user_sgpr_count 2
  .amdhsa_user_sgpr_kernarg_segment_ptr 1
  .amdhsa_system_sgpr_workgroup_id_x 1
.end_amdhsa_kernel
"""
    return out


if __name__ == "__main__":
    kw = json.loads(sys.argv[2]) if len(sys.argv) > 2 else {}
    open(sys.argv[1], "w").write(gen(**kw))
```

```python
import sys, json, struct

KNAME = "recurrent_scan__gqa_block_cached__glu_gated_glu__decode"
HEADER = open("cdna_kernels/" + KNAME + ".s.ref").read().split("; Override launch")[0]

def f2u(x):
    return struct.unpack("<I", struct.pack("<f", x))[0]

LOG2E = 1.4426950408889634
WS_EPOCH = 0x0
WS_LS = 0x2000
WS_PG = 0x8000
WS_GP = 0x5000
WS_QX = 0x10000
WS_QXFAR = 0x100000
WS_G1 = 0x20000
WS_GL = 0x30000
WS_H1 = 0x40000
WS_H2 = 0xC0000
WS_STAMP = 0x1000000
WS_SIZE = 0x20000000
L_Q = 0
L_FLAG = 1024
F_RDY = L_FLAG
F_GUP = L_FLAG + 4
F_DONE = L_FLAG + 8
F_QH = L_FLAG + 16
F_XN = L_FLAG + 20
F_MX = L_FLAG + 24
F_PD = L_FLAG + 32
F_SC = L_FLAG + 40
F_WIN = L_FLAG + 44
L_MX = 1152
L_LS = 1216
L_SC = 1280
L_HB = 1536
L_RED = 2048
L_XN = L_RED
L_P = 4096
L_WO = 20480
L_WD = 36864
L_RING = 45056
NSLOT = 7
LDS_BYTES = L_RING + NSLOT * 16384
U0 = 7

sFL = 3
sMODE, sLIM, sI1, sO2 = 14, 15, 24, 25
sF = 83
sTW = 82
sPM = 48
sX, sK, sV, sWQ, sWO, sBX, sWG, sWU, sWD, sOUT, sDBG, sWS = 4, 6, 8, 10, 12, 14, 16, 18, 20, 22, 24, 26
rK, rV, rWS, rA, rB, rC, rD = 28, 32, 36, 40, 44, 48, 52
sW, sX8, sJJ, sCB, sSUB = 56, 57, 58, 59, 60
sC, sTHR, sCNT, sTAG = 61, 62, 63, 64
sSELL, sSELH, sSCALE, sLOG2E, sHI = 65, 66, 67, 68, 69
sT0, sT1, sT2, sT3 = 70, 71, 72, 73
sH = 74
sM = 82
sSPIN = 84
sLB = 85
sST = 86
TX4 = 8; TX2 = 12; vX0 = 14; vX1 = 15
vWO, vWT, vRW, vRR, vO2, vO1 = 192, 128, 208, 209, 210, 211


class G:
    def __init__(self):
        self.L = []
        self.n = 0
    def __call__(self, s):
        for line in s.strip("\n").split("\n"):
            self.L.append("    " + line.strip() if not line.strip().endswith(":") else line.strip())
    def label(self, base):
        self.n += 1
        return f"L_{base}_{self.n}"


def v4(r):
    return f"v[{r}:{r+3}]"
def v2(r):
    return f"v[{r}:{r+1}]"
def s4(r):
    return f"s[{r}:{r+3}]"
def s2(r):
    return f"s[{r}:{r+1}]"


def gen(kvflags="nt", wflags="nt", win=20, stamps=False, pad=None, qsleep=4, qgate=0, g2gate=24, g3gate=48,
        lsgate=100, h1sleep=0, h2sleep=0, csleep=0, lprio=0, smode=0, skip=0, prog=False, win2=0, last=6, force=0, qtry=96, outflags='', diag=None, prept=30, dry=False,
        pace=1, wins=(20, 22, 24, 28), c0=0, gs=8, endstop=48, psleep=8, bias=0, scal=False, gper=0, gbias=0, pld='sc1', unq=2, gs2=8, gmin=0, gmax=2, istep=1, epflags='', skew=None, span=None, nb=(2, 4, 4, 4, 3, 4, 3, 4), pgs=12, wb=0, presleep=0, touch=64, ackwait=True, lateat=0, latebias=0, cpf=True, qtouch=True):
    A = G()
    if span is not None:
        skew = -1; stamps = True; smode = 9

    def srd(r, base, size):
        A(f"s_mov_b32 s{r}, s{base}\ns_mov_b32 s{r+1}, s{base+1}\ns_mov_b32 s{r+2}, {size}\ns_mov_b32 s{r+3}, 0x20000")

    def stamp(i, mode=None):
        if stamps and (mode is None or mode == smode):
            A(f"s_memrealtime {s2(sST + 2 * i)}")

    def lgkm(n):
        A(f"s_waitcnt lgkmcnt({n})")

    def swap_red(r, t, op, kinds=("16", "32")):
        for k in kinds:
            A(f"v_mov_b32 v{t}, v{r}\ns_nop 1\nv_permlane{k}_swap_b32 v{r}, v{t}\ns_nop 1\n{op} v{r}, v{r}, v{t}")

    def wave_red(r, t, op, rors):
        for k in rors:
            A(f"s_nop 1\n{op} v{r}, v{r}, v{r} row_ror:{k}")
        swap_red(r, t, op)

    def rnd_bf16(r):
        A(f"v_cvt_pk_bf16_f32 v{r}, v{r}, v{r}\nv_and_b32 v{r}, 0xffff0000, v{r}")

    def ln_stats(X, mean, rstd, F):
        D = F + 8
        for k in range(4):
            A(f"v_lshlrev_b32 v{F+2*k}, 16, v{X+k}\nv_and_b32 v{F+2*k+1}, s{sHI}, v{X+k}")
        A(f"v_add_f32 v{mean}, v{F}, v{F+1}")
        for k in range(2, 8):
            A(f"v_add_f32 v{mean}, v{mean}, v{F+k}")
        wave_red(mean, vX0, "v_add_f32", (8, 4, 2, 1))
        A(f"v_mul_f32 v{mean}, {hex(f2u(1/512))}, v{mean}")
        for k in range(8):
            A(f"v_sub_f32 v{D+k}, v{F+k}, v{mean}")
        A(f"v_mul_f32 v{rstd}, v{D}, v{D}")
        for k in range(1, 8):
            A(f"v_fmac_f32 v{rstd}, v{D+k}, v{D+k}")
        wave_red(rstd, vX0, "v_add_f32", (8, 4, 2, 1))
        A(f"v_mul_f32 v{rstd}, {hex(f2u(1/512))}, v{rstd}")
        rnd_bf16(mean); rnd_bf16(rstd)
        A(f"v_add_f32 v{rstd}, {hex(f2u(1e-5))}, v{rstd}")
        rnd_bf16(rstd)
        A(f"v_sqrt_f32 v{rstd}, v{rstd}\ns_nop 0")
        rnd_bf16(rstd)
        A(f"v_rcp_f32 v{rstd}, v{rstd}")

    def ln_apply(X, mean, rstd, D):
        for k in range(4):
            A(f"v_lshlrev_b32 v{D+2*k}, 16, v{X+k}\nv_and_b32 v{D+2*k+1}, s{sHI}, v{X+k}")
        for k in range(8):
            A(f"v_sub_f32 v{D+k}, v{D+k}, v{mean}")
        for k in range(4):
            A(f"v_cvt_pk_bf16_f32 v{X+k}, v{D+2*k}, v{D+2*k+1}")
        for k in range(4):
            A(f"v_lshlrev_b32 v{D+2*k}, 16, v{X+k}\nv_and_b32 v{D+2*k+1}, s{sHI}, v{X+k}")
        for k in range(8):
            A(f"v_mul_f32 v{D+k}, v{D+k}, v{rstd}")
        for k in range(4):
            A(f"v_cvt_pk_bf16_f32 v{X+k}, v{D+2*k}, v{D+2*k+1}")

    def matvec8(W, xs, acc, tmp, first=True):
        for j in range(4):
            for u in range(4):
                A(f"v_perm_b32 v{tmp+2*u}, v{W+(2*j+1)*4+u}, v{W+(2*j)*4+u}, s{sSELL}")
                A(f"v_perm_b32 v{tmp+2*u+1}, v{W+(2*j+1)*4+u}, v{W+(2*j)*4+u}, s{sSELH}")
            for e in range(8):
                c = "0" if (j == 0 and first) else f"v{acc+e}"
                A(f"v_dot2_f32_bf16 v{acc+e}, {xs[j]}, v{tmp+e}, {c}")
        A("s_nop 2")

    def reduce8(acc):
        A("s_nop 1")
        for e in range(4):
            A(f"v_permlane32_swap_b32 v{acc+e}, v{acc+4+e}")
        A("s_nop 1")
        for e in range(4):
            A(f"v_add_f32 v{acc+e}, v{acc+e}, v{acc+4+e}")
        A("s_nop 1")
        for e in range(2):
            A(f"v_permlane16_swap_b32 v{acc+e}, v{acc+2+e}")
        A("s_nop 1")
        for e in range(2):
            A(f"v_add_f32 v{acc+e}, v{acc+e}, v{acc+2+e}")
        A("s_nop 0")
        for e in range(2):
            A(f"v_add_f32 v{acc+e}, v{acc+e}, v{acc+e} row_ror:8")
        A("s_nop 0")

    def red4(a):
        A("s_nop 1")
        A(f"v_permlane32_swap_b32 v{a}, v{a+2}\nv_permlane32_swap_b32 v{a+1}, v{a+3}")
        A("s_nop 0")
        A(f"v_add_f32 v{a}, v{a}, v{a+2}\nv_add_f32 v{a+1}, v{a+1}, v{a+3}")
        for k in (8, 4):
            A("s_nop 0")
            A(f"v_add_f32 v{a}, v{a}, v{a} row_ror:{k}\nv_add_f32 v{a+1}, v{a+1}, v{a+1} row_ror:{k}")
        A(f"v_mov_b32 v{a+2}, v{a}\nv_mov_b32 v{a+3}, v{a+1}\ns_nop 0")
        A(f"v_permlane16_swap_b32 v{a}, v{a+2}\nv_permlane16_swap_b32 v{a+1}, v{a+3}")
        A("s_nop 0")
        A(f"v_add_f32 v{a}, v{a}, v{a+2}\nv_add_f32 v{a+1}, v{a+1}, v{a+3}")

    def lds_wait(addr, sreg, thr, name, sleep=1, vaddr=7, cached=False, pair=False):
        top = A.label(name); done = A.label(name + "_ok")
        if cached:
            A(f"s_cmp_ge_i32 s{sreg}, {thr}\ns_cbranch_scc1 {done}")
        A(f"s_mov_b32 s{sSPIN}, 0")
        A(f"{top}:")
        if pair:
            A(f"ds_read_b64 {v2(vX0)}, v{vaddr} offset:{addr}\ns_waitcnt lgkmcnt(0)\nv_min_i32 v{vX0}, v{vX0}, v{vX1}\ns_nop 0")
        else:
            A(f"ds_read_b32 v{vX0}, v{vaddr} offset:{addr}\ns_waitcnt lgkmcnt(0)")
        A(f"v_readfirstlane_b32 s{sreg}, v{vX0}")
        A(f"s_add_u32 s{sSPIN}, s{sSPIN}, 1")
        A(f"s_cmp_ge_i32 s{sreg}, {thr}\ns_cbranch_scc1 {done}")
        if sleep:
            A(f"s_sleep {sleep}")
        A(f"s_cmp_lt_u32 s{sSPIN}, 0x100000\ns_cbranch_scc1 {top}")
        A(f"{done}:")

    def lds_flag(addr, val=1, vaddr=7):
        A(f"v_mov_b32 v{vX0}, {val}\nds_write_b32 v{vaddr}, v{vX0} offset:{addr}")

    def make_tags():
        A(f"s_waitcnt lgkmcnt(0)\ns_add_u32 s{sTAG}, s{sTAG}, 0x9E3779B1")
        A(f"v_and_b32 v5, 1, v1\nv_lshlrev_b32 v5, 4, v5\nv_lshrrev_b32 v5, v5, s{sTAG}")
        for k in range(4):
            A(f"v_bfe_u32 v{TX4+k}, v5, {4*k}, 4")
        A(f"v_and_b32 v5, 3, v1\nv_lshlrev_b32 v5, 3, v5\nv_lshrrev_b32 v5, v5, s{sTAG}")
        for k in range(2):
            A(f"v_bfe_u32 v{TX2+k}, v5, {4*k}, 4")

    def embed(dst, src, tag):
        A(f"v_and_or_b32 v{dst}, v{src}, -16, v{tag}")

    def poll(loads, checks, name, sleep=0, full=False):
        top = A.label(name); done = A.label(name + "_ok")
        A(f"s_mov_b32 s{sSPIN}, 0")
        A(f"{top}:")
        for l in loads:
            A(l)
        A("s_waitcnt vmcnt(0)")
        A(f"v_xor_b32 v{vX0}, {checks[0][1]}, v{checks[0][0]}")
        for r, t in checks[1:]:
            A(f"v_bitop3_b32 v{vX0}, v{vX0}, v{r}, {t} bitop3:0xf6")
        if not full:
            A(f"v_and_b32 v{vX0}, 15, v{vX0}\nv_cmp_ne_u32 vcc, 0, v{vX0}")
        else:
            A(f"v_cmp_ne_u32 vcc, 0, v{vX0}")
        A(f"s_cbranch_vccz {done}")
        if sleep:
            A(f"s_sleep {sleep}")
        A(f"s_add_u32 s{sSPIN}, s{sSPIN}, 1\ns_cmp_lt_u32 s{sSPIN}, s{sLIM}\ns_cbranch_scc1 {top}")
        A(f"{done}:")

    def store2(line, cond_scc1_near):
        far = A.label("far"); done = A.label("st")
        A(cond_scc1_near)
        A(f"s_cbranch_scc0 {far}\n{line}\ns_branch {done}\n{far}:\n{line} sc1\n{done}:")

    def chk4(regs):
        return [(r + k, f"v{TX4+k}") for r in regs for k in range(4)]

    def next_slot(step):
        A(f"s_add_u32 s{sLB}, s{sLB}, {step*16384}\ns_sub_u32 s{sT0}, s{sLB}, {NSLOT*16384}")
        A(f"s_cmp_ge_u32 s{sLB}, {NSLOT*16384}\ns_cselect_b32 s{sLB}, s{sT0}, s{sLB}")

    def tail_prep():
        A(f"s_lshl_b32 s{sT2}, s{sTW}, 12\nv_lshl_add_u32 v6, v1, 2, s{sT2}")
        for n in range(16):
            A(f"ds_read_b32 v{vWT+n}, v6 offset:{L_WO + 256*n}")
        A(f"s_lshl_b32 s{sI1}, s{sX8}, 16\ns_and_b32 s{sT2}, s{sJJ}, 28\ns_add_u32 s{sT2}, s{sT2}, s{sTW}\ns_lshl_b32 s{sT2}, s{sT2}, 11")
        A(f"s_add_u32 s{sI1}, s{sI1}, s{sT2}\ns_add_u32 s{sI1}, s{sI1}, {WS_H1}")
        A(f"v_and_b32 v{vRW}, 0xff, v0\nv_lshlrev_b32 v{vRW}, 3, v{vRW}\nv_lshlrev_b32 v{vRR}, 3, v1")
        A(f"v_and_b32 v5, 15, v1\nv_lshlrev_b32 v5, 3, v5\nv_lshrrev_b32 v6, 4, v1\nv_lshl_add_u32 v{vO2}, v6, 13, v5")
        A(f"s_and_b32 s{sO2}, s{sJJ}, 3\ns_lshl_b32 s{sO2}, s{sO2}, 15\ns_lshl_b32 s{sT2}, s{sX8}, 10\ns_add_u32 s{sO2}, s{sO2}, s{sT2}")
        A(f"s_lshr_b32 s{sT2}, s{sJJ}, 2\ns_lshl_b32 s{sT2}, s{sT2}, 7\ns_add_u32 s{sO2}, s{sO2}, s{sT2}\ns_add_u32 s{sO2}, s{sO2}, {WS_H2}")
        lgkm(0)
        for u in range(8):
            A(f"v_perm_b32 v{vWO+2*u}, v{vWT+1+2*u}, v{vWT+2*u}, s{sSELL}\nv_perm_b32 v{vWO+1+2*u}, v{vWT+1+2*u}, v{vWT+2*u}, s{sSELH}")

    def sigmoid(dst, src):
        A(f"v_mul_f32 v{dst}, s{sLOG2E}, v{src}\nv_exp_f32 v{dst}, -v{dst}\ns_nop 0\nv_add_f32 v{dst}, 1.0, v{dst}\nv_rcp_f32 v{dst}, v{dst}\ns_nop 0")

    A(f"{KNAME}_kernel:")
    A("s_cmpk_ge_u32 s2, 0x100\ns_cbranch_scc1 L_end")
    stamp(0)
    A(f"s_load_dwordx16 s[4:19], s[0:1], 0\ns_load_dwordx8 s[20:27], s[0:1], 64")
    A(f"v_and_b32 v1, 63, v0\nv_readfirstlane_b32 s{sW}, v0")
    A(f"s_and_b32 s{sX8}, s2, 7\ns_lshr_b32 s{sJJ}, s2, 3")
    A("v_lshlrev_b32 v4, 4, v1")
    A("v_lshrrev_b32 v2, 3, v1\nv_and_b32 v3, 0x70, v4")
    A(f"s_mov_b32 s{rA+3}, 0x20000\ns_lshr_b32 s{sW}, s{sW}, 6\ns_cbranch_scc1 L_e1")
    A(f"s_and_b32 s{sT1}, s{sJJ}, 7\ns_lshl3_add_u32 s{sT1}, s{sX8}, s{sT1}\ns_lshl_b32 s{sT1}, s{sT1}, 7")
    A(f"s_lshr_b32 s{sT2}, s2, 6\ns_lshl_b32 s{sT2}, s{sT2}, 20\ns_add_u32 s{sT1}, s{sT1}, s{sT2}")
    A(f"v_lshl_add_u32 v5, v2, 17, v3\ns_mov_b32 s{rA+2}, {hex(512 * 4096 * 2)}\ns_movk_i32 m0, {L_P}")
    A(f"s_waitcnt lgkmcnt(0)\ns_mov_b64 {s2(rA)}, {s2(sWQ)}")
    stamp(4, 4)
    A("L_wq:")
    A(f"buffer_load_dwordx4 v5, {s4(rA)}, s{sT1} offen {wflags} lds")
    A(f"s_addk_i32 m0, 0x400\ns_addk_i32 s{sT1}, 0x2000\ns_cmpk_lt_u32 m0, {L_P + 16384}\ns_cbranch_scc1 L_wq")
    A("s_branch L_e2")
    A("L_e1:")
    if cpf:
        A(f"s_cmp_lg_u32 s{sW}, 1\ns_cbranch_scc1 L_e1b")
        A(f"s_getpc_b64 {s2(sT0)}")
        A("L_pc:")
        A(f"s_mul_i32 s{sT2}, s{sJJ}, 768\nv_mad_u32_u24 v5, v1, 12, s{sT2}\nv_min_u32 v5, L_end-L_pc, v5")
        A(f"global_load_dword v16, v5, {s2(sT0)}")
        A("L_e1b:")
    A(f"s_cmp_lg_u32 s{sW}, 2\ns_cbranch_scc1 L_e2")
    A(f"s_movk_i32 s{rA+2}, 0x400\ns_waitcnt lgkmcnt(0)\ns_mov_b64 {s2(rA)}, {s2(sX)}")
    A(f"buffer_load_dwordx4 v[16:19], v4, {s4(rA)}, 0 offen")
    A("L_e2:")
    A(f"v_and_b32 v6, 15, v1\nv_cmp_eq_u32 vcc, {(F_DONE + 4 - L_FLAG) // 4}, v6\nv_lshlrev_b32 v6, 2, v6\nv_mov_b32 v7, 0")
    A(f"v_cndmask_b32 v5, 0, 1, vcc\nds_write_b32 v6, v5 offset:{L_FLAG}")
    if nb is None:
        A(f"s_mul_i32 s{sCB}, s{sX8}, 3\ns_lshr_b32 s{sT0}, s{sJJ}, 3\ns_add_u32 s{sCB}, s{sCB}, s{sT0}\ns_and_b32 s{sSUB}, s{sJJ}, 7")
        A(f"s_lshr_b32 s{sT0}, s{sX8}, 1\ns_add_u32 s{sT0}, s{sT0}, 24\ns_and_b32 s{sT1}, s{sX8}, 1\ns_lshl_b32 s{sT1}, s{sT1}, 2\ns_add_u32 s{sT1}, s{sT1}, s{sSUB}")
        A(f"s_cmp_ge_u32 s{sJJ}, 24\ns_cselect_b32 s{sCB}, s{sT0}, s{sCB}\ns_cselect_b32 s{sSUB}, s{sT1}, s{sSUB}")
        A(f"s_lshl_b32 s{sF}, s{sX8}, 2\ns_add_u32 s{sF}, s{sF}, s{sJJ}\ns_sub_u32 s{sF}, s{sF}, 28\ns_cmp_lt_u32 s{sJJ}, 28\ns_cselect_b32 s{sF}, -1, s{sF}")
    else:
        assert sum(nb) == 28
        free = [sum(4 - n for n in nb[:x]) for x in range(8)]
        tab = sum((nb[x] & 7 | (free[x] & 7) << 4) << (8 * x) for x in range(8))
        A(f"s_mov_b32 s{sT0}, {hex(tab & 0xffffffff)}\ns_mov_b32 s{sT1}, {hex(tab >> 32)}\ns_lshl_b32 s{sT2}, s{sX8}, 3\ns_lshr_b64 {s2(sT0)}, {s2(sT0)}, s{sT2}")
        A(f"s_bfe_u32 s{sT1}, s{sT0}, 0x30004\ns_and_b32 s{sT0}, s{sT0}, 7\ns_lshr_b32 s{sT2}, s{sJJ}, 3\ns_and_b32 s{sSUB}, s{sJJ}, 7")
        A(f"s_lshl2_add_u32 s{sCB}, s{sX8}, s{sT2}\ns_sub_u32 s{sCB}, s{sCB}, s{sT1}")
        A(f"s_sub_u32 s{sT1}, s{sT1}, s{sT0}\ns_lshl3_add_u32 s{sF}, s{sT1}, s{sJJ}\ns_cmp_lt_u32 s{sT2}, s{sT0}\ns_cselect_b32 s{sF}, -1, s{sF}")
    A(f"s_mov_b32 s{sSELL}, 0x05040100\ns_mov_b32 s{sSELH}, 0x07060302")
    A(f"s_mov_b32 s{sSCALE}, {hex(f2u(128 ** -0.5))}\ns_mov_b32 s{sLOG2E}, {hex(f2u(LOG2E))}\ns_mov_b32 s{sHI}, 0xffff0000")
    if stamps:
        for i in range(1, 8):
            if not (smode == 4 and i == 4):
                A(f"s_mov_b64 {s2(sST+2*i)}, 0")
    A("s_waitcnt lgkmcnt(0)")
    A("s_barrier")
    stamp(5, 5)
    A(f"s_load_dword s{sTAG}, {s2(sWS)}, {WS_EPOCH}")
    A(f"s_mov_b32 s{sLIM}, 0x40000\ns_mov_b32 s{sMODE}, 1")
    srd(rWS, sWS, hex(WS_SIZE))
    if skew is not None:
        srd(rB, sDBG, 256)
    A(f"s_cmp_lg_u32 s{sW}, 0\ns_cbranch_scc1 L_notloader")

    D = win
    first_k = (D - 1) % 8
    vCNT = 24
    cnt = [0]
    DD = [D]
    def ld(line, static=False):
        i = cnt[0]
        if not static or i >= D:
            A(f"s_waitcnt vmcnt({DD[0]-1})")
        if static and i == D - 1: stamp(5, 4)
        if static and i == D: stamp(6, 4)
        A(line)
        if i % 8 == first_k and (not static or i >= D - 1 + 8):
            A(f"ds_write_b32 v7, v{vCNT} offset:{F_RDY}\nv_add_u32 v{vCNT}, 8, v{vCNT}")
        cnt[0] += 1
    if lprio:
        A(f"s_setprio {lprio}")
    A(f"v_mov_b32 v{vCNT}, 8")
    cnt[0] = 16
    assert D >= 16
    A(f"s_cmp_lt_i32 s{sF}, 0\ns_cselect_b32 s{sT3}, {hex(512 * 1792 * 2)}, 0")
    srd(rD, sWD, f"s{sT3}")
    A(f"s_cmp_lt_u32 s{sSUB}, 4\ns_cselect_b32 s{rB}, s{sWG}, s{sWU}\ns_cselect_b32 s{rB+1}, s{sWG+1}, s{sWU+1}")
    A(f"s_mov_b32 s{rB+2}, s{sT3}\ns_mov_b32 s{rB+3}, 0x20000")
    A(f"s_and_b32 s{sT1}, s{sSUB}, 3\ns_mul_i32 s{sT1}, s{sT1}, {128*3584}\ns_lshl_b32 s{sT2}, s{sCB}, 7\ns_add_u32 s{sT1}, s{sT1}, s{sT2}")
    A(f"v_mul_u32_u24 v6, {16*3584}, v2\nv_add_u32 v6, v6, v3")
    L_GU = L_RING + (NSLOT - 1) * 16384
    for i in range(16):
        A(f"s_mov_b32 m0, {L_GU + 1024*i}")
        A(f"s_add_u32 s{sT2}, s{sT1}, {3584*i}")
        ld(f"buffer_load_dwordx4 v6, {s4(rB)}, s{sT2} offen {wflags} lds", True)
    A(f"s_lshl_b32 s{sT1}, s{sCB}, 16\ns_lshl_b32 s{sT2}, s{sSUB}, 7\ns_add_u32 s{sT1}, s{sT1}, s{sT2}")
    A(f"v_lshl_add_u32 v5, v2, 13, v3")
    for i in range(8):
        if i % 4 == 0:
            A(f"s_mov_b32 m0, {L_WD + 1024*i}")
            A(f"s_add_u32 s{sT2}, s{sT1}, {1024*i}")
        ld(f"buffer_load_dwordx4 v5, {s4(rD)}, s{sT2} offen offset:{1024*(i%4)} {wflags} lds", True)
    srd(rA, sWO, hex(4096 * 512 * 2))
    A(f"s_lshl_b32 s{sT1}, s{sX8}, 9\ns_lshr_b32 s{sT2}, s{sJJ}, 4\ns_lshl_b32 s{sT2}, s{sT2}, 6\ns_add_u32 s{sT1}, s{sT1}, s{sT2}")
    A(f"s_and_b32 s{sT2}, s{sJJ}, 12\ns_add_u32 s{sT1}, s{sT1}, s{sT2}\ns_lshl_b32 s{sT1}, s{sT1}, 10")
    A(f"s_and_b32 s{sT2}, s{sJJ}, 3\ns_lshl_b32 s{sT2}, s{sT2}, 8\ns_add_u32 s{sT1}, s{sT1}, s{sT2}")
    A(f"v_lshrrev_b32 v6, 4, v1\nv_lshlrev_b32 v6, 10, v6\nv_and_b32 v25, 15, v1\nv_lshl_add_u32 v6, v25, 4, v6")
    for w in range(4):
        for h in range(4):
            A(f"s_mov_b32 m0, {L_WO + 4096*w + 1024*h}")
            A(f"s_add_u32 s{sT2}, s{sT1}, {(128*h + 16*w)*1024}")
            ld(f"buffer_load_dwordx4 v6, {s4(rA)}, s{sT2} offen {wflags} lds", True)
    assert cnt[0] == 8 * U0 and D + 7 <= 8 * U0
    stamp(1)
    A(f"s_lshl_b32 s{sT0}, s{sX8}, 24\ns_lshl_b32 s{sT1}, s{sJJ}, 19\ns_add_u32 s{sT0}, s{sT0}, s{sT1}")
    A(f"s_add_u32 s{rK}, s{sK}, s{sT0}\ns_addc_u32 s{rK+1}, s{sK+1}, 0\ns_mov_b32 s{rK+2}, 0x80000\ns_mov_b32 s{rK+3}, 0x20000")
    A(f"s_add_u32 s{rV}, s{sV}, s{sT0}\ns_addc_u32 s{rV+1}, s{sV+1}, 0\ns_mov_b32 s{rV+2}, 0x80000\ns_mov_b32 s{rV+3}, 0x20000")
    A("v_lshrrev_b32 v5, 4, v1\nv_lshlrev_b32 v5, 6, v5\nv_xor_b32 v16, v4, v5")
    A("v_and_b32 v5, 16, v1\nv_lshlrev_b32 v5, 1, v5\nv_xor_b32 v20, v4, v5")
    for n in range(1, 4):
        A(f"v_xor_b32 v{16+n}, {16*n}, v16\nv_xor_b32 v{20+n}, {64*n}, v20")
    sI, sLV = sH + 1, sH + 2
    NLD = 8 * U0 + 1024
    if not pace:
        wins = (win,); c0 = 0
    A(f"s_mov_b32 s{sCNT}, 0\ns_mov_b32 s{sLB}, 0\ns_mov_b32 s{sFL}, 0\ns_mov_b32 s{sH}, 0\ns_mov_b32 s{sI}, {8*U0}\nv_mov_b32 v25, 0\nv_subrev_u32 v26, 8, v{vCNT}")
    A("L_tile:")
    A(f"s_cmp_lg_u32 s{sCNT}, 32\ns_cbranch_scc1 L_nosw")
    stamp(4, 1); stamp(5, 3)
    A(f"s_mov_b64 {s2(rK)}, {s2(rV)}\ns_mov_b32 s{sH}, 0")
    for n in range(4):
        A(f"v_mov_b32 v{16+n}, v{20+n}")
    A("L_nosw:")
    A(f"s_sub_u32 s{sTHR}, s{sCNT}, {NSLOT-1}")
    A(f"s_cmp_lg_u32 s{sTHR}, 0\ns_cbranch_scc1 L_nogup")
    lds_wait(F_GUP, sT2, 1, "gup", sleep=0)
    stamp(2)
    A("L_nogup:")
    lds_wait(F_DONE, sFL, f"s{sTHR}", "free", sleep=0, cached=True, pair=True)
    A(f"s_add_u32 m0, s{sLB}, {L_RING}")
    if pace:
        A(f"s_waitcnt lgkmcnt(0)\nv_readfirstlane_b32 s{sLV}, v25\nds_read_b32 v25, v7 offset:{F_WIN}")
    order = sorted(range(len(wins)), key=lambda k: (abs(k - c0), -k))
    for idx, k in enumerate(order[1:]):
        A(f"s_cmp_eq_i32 s{sLV}, {k - c0}\ns_cbranch_scc1 L_ver{idx+1}")
    def version(idx, W):
        A(f"L_ver{idx}:")
        A(f"s_sub_u32 s{sT2}, s{sI}, {W-1}\nv_mov_b32 v{vCNT}, s{sT2}")
        A(f"L_vq{idx}:")
        for hq in range(unq):
            for n in range(4):
                A(f"s_waitcnt vmcnt({W-1})")
                A(f"buffer_load_dwordx4 v{16+n}, {s4(rK)}, s{sH} offen offset:{1024*n} {kvflags} lds")
                if n == 0:
                    A(f"v_max_i32 v26, v26, v{vCNT}\nv_add_u32 v{vCNT}, 4, v{vCNT}\nds_write_b32 v7, v26 offset:{F_RDY}")
            A(f"s_addk_i32 m0, 0x1000\ns_addk_i32 s{sH}, 0x1000")
        if unq < 4:
            A(f"s_and_b32 s{sT2}, s{sH}, 0x3fff\ns_cbranch_scc1 L_vq{idx}")
    version(0, wins[order[0]])
    A("L_qend:")
    A(f"s_add_u32 s{sI}, s{sI}, 16")
    next_slot(1)
    if stamps and smode == 3:
        for q in range(2):
            A(f"s_cmp_lg_u32 s{sCNT}, {32*q+15}\ns_cbranch_scc1 L_np{q}")
            stamp(4 + 2 * q, 3)
            A(f"L_np{q}:")
    A(f"s_add_u32 s{sCNT}, s{sCNT}, 1\ns_cmp_lt_u32 s{sCNT}, 64\ns_cbranch_scc1 L_tile")
    for rem in (24, 16, 8, 0):
        A(f"v_max_i32 v26, {NLD - rem}, v26\ns_waitcnt vmcnt({rem})\nds_write_b32 v7, v26 offset:{F_RDY}")
    stamp(3)
    A("s_branch L_fin")

    for idx, k in enumerate(order[1:]):
        version(idx + 1, wins[k])
        A("s_branch L_qend")
    A("L_pace:")
    srd(rB, sDBG, 256)
    if skew is not None:
        A(f"s_cmp_lg_u32 s{sJJ}, 0\ns_cbranch_scc1 L_nosk")
        A(f"s_not_b32 s{sT0}, s{sST}\nv_mov_b32 v16, s{sT0}\ns_mov_b64 exec, 1\nbuffer_atomic_umax v16, v7, {s4(rB)}, 0 offen offset:64\ns_mov_b64 exec, -1")
        A("L_nosk:")
    make_tags()
    lds_wait(F_RDY, sFL, 8 * U0, "wop", sleep=8)
    A(f"s_mov_b32 s{sTW}, 0")
    tail_prep()
    if pace:
        sP, sPP, sS, sD, sPGA, sOWN, sSP = sH, sH + 1, sH + 2, sH + 3, sH + 4, sH + 5, sH + 6
        lds_wait(F_QH, sMODE, 1, "qhp", sleep=8)
        A(f"s_cmp_lg_u32 s{sMODE}, 2\ns_cbranch_scc1 L_pdone")
        A(f"v_lshlrev_b32 v5, 2, v1")
        A(f"s_lshl_b32 s{sPGA}, s{sX8}, {pgs}\ns_add_u32 s{sPGA}, s{sPGA}, {WS_PG}\ns_lshl_b32 s{sOWN}, s{sJJ}, 2\ns_add_u32 s{sOWN}, s{sOWN}, s{sPGA}")
        A(f"s_mov_b32 s{sP}, 0\ns_mov_b32 s{sCNT}, 0\ns_mov_b32 s{sSP}, 0")
        A("L_pl:")
        A(f"s_mov_b32 s{sPP}, s{sP}\nds_read_b32 v16, v7 offset:{F_RDY}\ns_waitcnt lgkmcnt(0)\nv_readfirstlane_b32 s{sP}, v16")
        A(f"s_add_u32 s{sCNT}, s{sCNT}, 1\ns_cmp_gt_u32 s{sCNT}, 0x10000\ns_cbranch_scc1 L_pdone")
        A(f"s_and_b32 s{sT3}, s{sTAG}, 0xfffff800\ns_or_b32 s{sT0}, s{sT3}, s{sP}\nv_mov_b32 v16, s{sT0}")
        A(f"s_mov_b64 exec, 1\nbuffer_store_dword v16, v7, {s4(rWS)}, s{sOWN} offen\ns_mov_b64 exec, -1")
        A(f"s_cmp_ge_u32 s{sP}, {NLD - endstop}\ns_cbranch_scc1 L_pdone")
        if pace == 1:
            A("s_mov_b32 exec_hi, 0")
        A(f"buffer_load_dword v17, v5, {s4(rWS)}, s{sPGA} offen sc1")
        A("s_waitcnt vmcnt(0)")
        A(f"v_xor_b32 v19, s{sT3}, v17\nv_cmp_lt_u32 vcc, 0x7ff, v19\ns_nop 0")
        if pace > 1:
            A(f"v_readlane_b32 s{sD}, v19, 32")
        for k in (8, 4, 2, 1):
            A(f"s_nop 1\nv_add_u32 v19, v19, v19 row_ror:{k}")
        A(f"s_cmp_lg_u32 vcc_lo, 0\ns_cbranch_scc1 L_pnext")
        A(f"v_readlane_b32 s{sS}, v19, 0\nv_readlane_b32 s{sT0}, v19, 16")
        A(f"s_cmp_eq_u32 s{sPP}, 0\ns_cbranch_scc1 L_pnext")
        A(f"s_add_u32 s{sS}, s{sS}, s{sT0}")
        A(f"s_add_u32 s{sT0}, s{sP}, s{sPP}\ns_lshl_b32 s{sT0}, s{sT0}, 4\ns_sub_u32 s{sT0}, s{sS}, s{sT0}")
        A(f"s_add_u32 s{sT0}, s{sT0}, {(1 << (gs - 1)) + bias}\ns_ashr_i32 s{sT0}, s{sT0}, {gs}\ns_max_i32 s{sT0}, s{sT0}, 0")
        if istep != 1:
            A(f"s_mul_i32 s{sT0}, s{sT0}, {istep}")
        if pace > 1:
            A(f"s_cmp_lt_u32 s{sD}, 0x800\ns_cselect_b32 s{sD}, s{sD}, {c0}\ns_add_u32 s{sT0}, s{sT0}, s{sD}\ns_sub_u32 s{sT0}, s{sT0}, {c0}")
        A(f"s_min_i32 s{sT0}, s{sT0}, {len(wins)-1-c0}")
        A(f"v_mov_b32 v16, s{sT0}\nds_write_b32 v7, v16 offset:{F_WIN}")
        if pace > 1:
            A(f"s_and_b32 s{sT2}, s{sCNT}, {(1 << gper) - 1}\ns_lshl_b32 s{sT2}, s{sT2}, 5\ns_add_u32 s{sT2}, s{sT2}, s{sJJ}\ns_cmp_lg_u32 s{sT2}, 31\ns_cbranch_scc1 L_pnext")
            A(f"s_cmp_eq_u32 s{sSP}, 0\ns_cselect_b32 s{sT1}, 0x1000000, 0\ns_sub_u32 s{sT0}, s{sS}, s{sSP}\ns_add_u32 s{sT0}, s{sT0}, s{sT1}\nv_mov_b32 v16, s{sT0}")
            A(f"s_mov_b64 exec, 1\nbuffer_atomic_add v16, v7, {s4(rB)}, 0 offen sc0\ns_waitcnt vmcnt(0)\nv_readfirstlane_b32 s{sT0}, v16")
            A(f"s_add_u32 s{sT1}, s{sS}, s{sSP}\ns_mul_i32 s{sT1}, s{sT1}, 7\ns_lshr_b32 s{sT1}, s{sT1}, 1\ns_add_u32 s{sT1}, s{sT1}, s{sSP}\ns_mov_b32 s{sSP}, s{sS}")
            A(f"s_sub_u32 s{sT0}, s{sT0}, 0x8000000\ns_cbranch_scc1 L_pnext")
            A(f"s_sub_u32 s{sT0}, s{sT0}, s{sT1}\ns_add_u32 s{sT0}, s{sT0}, {(1 << (gs2 + 2)) + 8 * gbias}\ns_ashr_i32 s{sT0}, s{sT0}, {gs2 + 3}")
            A(f"s_max_i32 s{sT0}, s{sT0}, {gmin}\ns_min_i32 s{sT0}, s{sT0}, {gmax}\ns_add_u32 s{sT0}, s{sT0}, {c0}\ns_or_b32 s{sT0}, s{sT0}, s{sT3}\nv_mov_b32 v16, s{sT0}")
            A(f"buffer_store_dword v16, v7, {s4(rWS)}, s{sPGA} offen offset:128")
        A("L_pnext:")
        A(f"s_mov_b64 exec, -1\ns_sleep {psleep}\ns_branch L_pl")

    A("L_pdone:")
    A("s_branch L_endgate")

    A("L_notloader:")
    A(f"s_mov_b32 s{sTW}, s{sW}\ns_cmp_eq_u32 s{sW}, 4\ns_cbranch_scc1 L_pace")
    A(f"s_cmp_eq_u32 s{sW}, 3\ns_cbranch_scc1 L_help")
    A(f"s_sub_u32 s{sC}, s{sW}, 1")
    A(f"s_cmp_eq_u32 s{sW}, 2\ns_cbranch_scc1 L_w2")
    if qtouch:
        A(f"s_lshl_b32 s{sT1}, s{sX8}, 13\ns_lshl_b32 s{sT2}, s{sJJ}, 8\ns_add_u32 s{sT1}, s{sT1}, s{sT2}\ns_add_u32 s{sT1}, s{sT1}, {WS_QX}")
        A(f"v_lshlrev_b32 v5, 2, v1\nbuffer_load_dword v17, v5, {s4(rWS)}, s{sT1} offen sc1")
    make_tags()
    A("s_branch L_qwait")
    def slice_mv(sKS, lds_base, unit0, after_read=None):
        A(f"s_lshl_b32 s{sT2}, s{sKS}, 8\nv_lshl_add_u32 v5, v2, 5, s{sT2}")
        A(f"ds_read_b128 v[20:23], v5 offset:{L_XN}\nds_read_b128 v[24:27], v5 offset:{L_XN+16}")
        A(f"v_add_u32 v6, {lds_base}, v4")
        for half in range(2):
            lds_wait(F_RDY, sFL, 8 * (unit0 + half + 1), "wsl", sleep=1)
            for i in range(8):
                A(f"ds_read_b128 {v4(64+4*i)}, v6 offset:{8192*half + 1024*i}")
            lgkm(0)
            if half == 1:
                stamp(6, 2)
                if after_read:
                    after_read()
            matvec8(64, [f"v{20+4*half+k}" for k in range(4)], 32, 40, first=(half == 0))
        reduce8(32)
        A(f"v_lshrrev_b32 v6, 4, v1\nv_lshlrev_b32 v6, 6, v6\nv_lshrrev_b32 v5, 1, v3\nv_add_u32 v6, v6, v5")
    A("L_w2:")
    A(f"s_lshr_b32 s{sT3}, s2, 6")
    A("s_waitcnt vmcnt(0)")
    stamp(4, 2)
    ln_stats(16, 28, 29, 32)
    ln_apply(16, 28, 29, 32)
    A(f"ds_write_b128 v4, v[16:19] offset:{L_XN}")
    lds_flag(F_XN)
    stamp(5, 2)
    make_tags()
    slice_mv(sT3, L_P, 0)
    sXC = sH + 4
    A(f"s_getreg_b32 s{sXC}, hwreg(HW_REG_XCC_ID, 0, 4)")
    if force:
        A(f"s_and_b32 s{sXC}, s{sJJ}, 1")
    embed(34, 32, TX2); embed(35, 33, TX2 + 1)
    A(f"v_xor_b32 v32, s{sXC}, v34\nv_xor_b32 v33, s{sXC}, v35")
    A(f"s_lshl_b32 s{sH}, s{sX8}, 13\ns_add_u32 s{sH}, s{sH}, {WS_QX}\ns_lshl_b32 s{sT2}, s{sT3}, 11\ns_add_u32 s{sT1}, s{sH}, s{sT2}")
    A(f"s_and_b32 s{sT2}, s{sJJ}, 7\ns_lshl_b32 s{sT2}, s{sT2}, 8\ns_add_u32 s{sT1}, s{sT1}, s{sT2}")
    A("s_mov_b32 exec_lo, 0x00ff00ff\ns_mov_b32 exec_hi, 0x00ff00ff")
    A(f"buffer_store_dwordx2 v[32:33], v6, {s4(rWS)}, s{sT1} offen")
    A("s_mov_b64 exec, -1")
    stamp(1)
    for k in range(4):
        A(f"v_xor_b32 v{36+k}, s{sXC}, v{TX4+k}")
    A(f"s_add_u32 s{sH+1}, s{sH}, 4096\ns_mov_b32 s{sMODE}, 2")
    if qgate:
        lds_wait(F_RDY, sFL, 8 * qgate, "qgate", sleep=2)
    A(f"s_mov_b32 s{sSPIN}, 0")
    A("L_qpoll:")
    for i in range(8):
        A(f"buffer_load_dwordx4 {v4(64+4*i)}, v4, {s4(rWS)}, s{sH+i//4} offen offset:{1024*(i%4)} sc1")
    A("s_waitcnt vmcnt(0)")
    A(f"v_xor_b32 v{vX0}, v64, v36")
    for i in range(1, 32):
        A(f"v_bitop3_b32 v{vX0}, v{vX0}, v{64+i}, v{36+i%4} bitop3:0xf6")
    A(f"v_and_b32 v{vX0}, 15, v{vX0}\nv_cmp_ne_u32 vcc, 0, v{vX0}\ns_cbranch_vccz L_qok")
    A(f"s_sleep {qsleep}\ns_add_u32 s{sSPIN}, s{sSPIN}, 1\ns_cmp_lt_u32 s{sSPIN}, {qtry}\ns_cbranch_scc1 L_qpoll")
    A(f"s_cmp_lg_u32 s{sSPIN}, {qtry}\ns_cbranch_scc1 L_qflip")
    A(f"s_xor_b32 s{sT1}, s{sT1}, {WS_QXFAR}")
    A("s_mov_b32 exec_lo, 0x00ff00ff\ns_mov_b32 exec_hi, 0x00ff00ff")
    A(f"buffer_store_dwordx2 v[34:35], v6, {s4(rWS)}, s{sT1} offen sc1")
    A("s_mov_b64 exec, -1")
    A("L_qflip:")
    A(f"s_xor_b32 s{sH}, s{sH}, {WS_QXFAR}\ns_xor_b32 s{sH+1}, s{sH+1}, {WS_QXFAR}\ns_xor_b32 s{sMODE}, s{sMODE}, 3")
    for k in range(4):
        A(f"v_xor_b32 v{36+k}, s{sXC}, v{36+k}")
    A(f"s_cmp_lt_u32 s{sSPIN}, s{sLIM}\ns_cbranch_scc1 L_qpoll")
    A("L_qok:")
    for e in range(8):
        A(f"v_add_f32 v{64+e}, v{64+e}, v{72+e}\nv_add_f32 v{80+e}, v{80+e}, v{88+e}")
    for e in range(8):
        A(f"v_add_f32 v{64+e}, v{64+e}, v{80+e}")
    for e in range(4):
        A(f"v_cvt_pk_bf16_f32 v{64+e}, v{64+2*e}, v{65+2*e}")
    A(f"v_lshrrev_b32 v6, 4, v1\nv_lshlrev_b32 v6, 7, v6\nv_and_b32 v5, 3, v1\nv_lshl_add_u32 v6, v5, 5, v6")
    A(f"v_and_b32 v5, 12, v1\nv_add_u32 v6, v6, v5")
    for e in range(4):
        A(f"ds_write_b32 v6, v{64+e} offset:{L_Q + 16*(e&1) + 512*(e>>1)}")
    lds_flag(F_QH, val=f"s{sMODE}")
    A("L_qwait:")
    vOWN, vOTH = 30, 31
    A(f"s_lshl_b32 s{sT2}, s{sC}, 2\nv_mov_b32 v{vOWN}, s{sT2}\nv_xor_b32 v{vOTH}, 4, v{vOWN}")
    vQV, vKT, vS, vT, vMAX, vAD, vKA, vPA, vDN = 32, 96, 160, 164, 172, 176, 184, 188, 189
    A("v_and_b32 v5, 3, v1\nv_lshlrev_b32 v5, 10, v5\nv_bfe_u32 v6, v1, 2, 2\nv_lshl_add_u32 v5, v6, 8, v5")
    A(f"v_lshrrev_b32 v6, 4, v1\nv_xor_b32 v6, v6, v1\nv_and_b32 v6, 15, v6\nv_lshl_add_u32 v{vKA}, v6, 4, v5")
    for n in range(1, 4):
        A(f"v_xor_b32 v{vKA+n}, {64*n}, v{vKA}")
    A(f"v_and_b32 v5, 3, v1\nv_lshlrev_b32 v5, 6, v5\nv_lshrrev_b32 v6, 4, v1\nv_lshl_add_u32 v5, v6, 4, v5")
    A(f"v_mov_b32 v29, v5")
    A(f"v_and_b32 v6, 8, v1\nv_lshl_add_u32 v5, v6, 5, v5\nv_and_b32 v6, 4, v1\nv_lshl_add_u32 v5, v6, 1, v5")
    A(f"s_lshl_b32 s{sT2}, s{sC}, 9\nv_add_u32 v{vPA}, s{sT2}, v5")
    A(f"v_mov_b32 v{vMAX}, {hex(f2u(-3e38))}")
    A(f"s_add_u32 s{sT2}, s{sC}, 2\nv_mov_b32 v{vDN}, s{sT2}")
    A("v_and_b32 v6, 3, v1\nv_lshlrev_b32 v6, 8, v6\nv_lshrrev_b32 v5, 4, v1\nv_lshl_add_u32 v6, v5, 4, v6")
    A(f"s_mov_b32 s{sFL}, 0")
    lds_wait(F_QH, sMODE, 1, "qh", sleep=1)
    stamp(2)
    for s in range(4):
        A(f"ds_read_b128 {v4(vKT+4*s)}, v6 offset:{L_Q + 64*s}")
    lgkm(0)
    for b in range(4):
        A(f"s_mov_b32 vcc_lo, {hex(0x000f000f << (4*b))}\ns_mov_b32 vcc_hi, {hex(0x000f000f << (4*b))}")
        for i in range(16):
            A(f"v_cndmask_b32 v{vQV+16*b+i}, 0, v{vKT+i}, vcc")
    A(f"s_lshl_b32 s{sLB}, s{sC}, 14\ns_lshl_b32 s{sTHR}, s{sC}, 4\ns_add_u32 s{sTHR}, s{sTHR}, {8*(U0+2)}")
    A(f"s_mov_b32 s{sCNT}, 0")
    A("L_p1:")
    for n in range(4):
        A(f"v_add_u32 v{vAD+n}, s{sLB}, v{vKA+n}")
    lds_wait(F_RDY, sFL, f"s{sTHR}", "krdy", sleep=csleep, cached=True)
    for b in range(4):
        for n in range(4):
            A(f"ds_read_b128 {v4(vKT+16*b+4*n)}, v{vAD+n} offset:{L_RING + 4096*b}")
    for b in range(4):
        lgkm(12 - 4 * b)
        if b == 3:
            A(f"ds_write_b32 v{vOWN}, v{vDN} offset:{F_DONE}")
        for n in range(4):
            c = "0" if b + n == 0 else v4(vS)
            A(f"v_mfma_f32_16x16x32_bf16 {v4(vS)}, {v4(vKT+16*b+4*n)}, {v4(vQV+16*b+4*n)}, {c}")
    A(f"v_add_u32 v{vDN}, 2, v{vDN}\nv_min_u32 v{vDN}, 32, v{vDN}")
    next_slot(2)
    A(f"s_add_u32 s{sTHR}, s{sTHR}, 32\ns_add_u32 s{sCNT}, s{sCNT}, 1\ns_nop 1")
    A(f"v_cvt_pk_bf16_f32 v{vT}, v{vS}, v{vS+1}\nv_cvt_pk_bf16_f32 v{vT+1}, v{vS+2}, v{vS+3}")
    A(f"v_max3_f32 v{vMAX}, v{vMAX}, v{vS}, v{vS+1}\nv_max3_f32 v{vMAX}, v{vMAX}, v{vS+2}, v{vS+3}")
    for j in range(2):
        A(f"v_lshlrev_b32 v{vT+2+2*j}, 16, v{vT+j}\nv_and_b32 v{vT+3+2*j}, s{sHI}, v{vT+j}")
    for i in range(4):
        A(f"v_mul_f32 v{vT+2+i}, s{sSCALE}, v{vT+2+i}")
    A(f"v_cvt_pk_bf16_f32 v{vT}, v{vT+2}, v{vT+3}\nv_cvt_pk_bf16_f32 v{vT+1}, v{vT+4}, v{vT+5}")
    A(f"ds_write_b64 v{vPA}, {v2(vT)} offset:{L_P}\nv_add_u32 v{vPA}, 1024, v{vPA}")
    A(f"s_cmp_lt_u32 s{sCNT}, 16\ns_cbranch_scc1 L_p1")
    stamp(4, 1)
    wave_red(vMAX, vX0, "v_max_f32", (8, 4))
    A(f"v_and_b32 v5, 3, v1\nv_lshlrev_b32 v5, 2, v5\nv_lshl_add_u32 v6, v{vOWN}, 2, v5\nv_xor_b32 v5, 16, v6")
    A(f"ds_write_b32 v6, v{vMAX} offset:{L_MX}")
    lds_flag(F_MX, vaddr=vOWN)
    A(f"v_subrev_u32 v{vPA}, 16384, v{vPA}")
    lds_wait(F_MX, sT0, 1, "mx", sleep=0, vaddr=vOTH)
    A(f"ds_read_b32 v{vX1}, v5 offset:{L_MX}")
    for i in range(16):
        A(f"ds_read_b64 {v2(32+2*i)}, v{vPA} offset:{L_P + 1024*i}")
    lgkm(0)
    vMN, vLSUM = 173, 174
    A(f"v_max_f32 v{vMAX}, v{vMAX}, v{vX1}")
    rnd_bf16(vMAX)
    A(f"v_mul_f32 v{vMAX}, s{sSCALE}, v{vMAX}")
    rnd_bf16(vMAX)
    A(f"v_mul_f32 v{vMN}, s{sLOG2E}, v{vMAX}\nv_mov_b32 v{vLSUM}, 0")
    for i in range(0, 16, 2):
        E = 96
        for j in range(4):
            A(f"v_lshlrev_b32 v{E+2*j}, 16, v{32+2*i+j}\nv_and_b32 v{E+2*j+1}, s{sHI}, v{32+2*i+j}")
        for j in range(8):
            A(f"v_fma_f32 v{E+j}, v{E+j}, s{sLOG2E}, -v{vMN}")
        for j in range(8):
            A(f"v_exp_f32 v{E+j}, v{E+j}")
        A("s_nop 0")
        for j in range(4):
            A(f"v_cvt_pk_bf16_f32 v{32+2*i+j}, v{E+2*j}, v{E+2*j+1}")
        A(f"ds_write_b64 v{vPA}, {v2(32+2*i)} offset:{L_P + 1024*i}\nds_write_b64 v{vPA}, {v2(34+2*i)} offset:{L_P + 1024*(i+1)}")
        for j in range(4):
            A(f"v_add_f32 v{E+j}, v{E+j}, v{E+4+j}")
        A(f"v_add_f32 v{E}, v{E}, v{E+1}\nv_add_f32 v{E+2}, v{E+2}, v{E+3}\nv_add_f32 v{vLSUM}, v{vLSUM}, v{E}\nv_add_f32 v{vLSUM}, v{vLSUM}, v{E+2}")
    wave_red(vLSUM, vX0, "v_add_f32", (8, 4))
    A(f"v_lshlrev_b32 v6, 1, v6\nv_mov_b32 v{vLSUM+1}, v{vMN}\nds_write_b64 v6, {v2(vLSUM)} offset:{L_LS}")
    lds_flag(F_PD, vaddr=vOWN)
    vO, vVF, vPF, vVA = 32, 48, 80, 184
    A("v_and_b32 v5, 12, v1\nv_lshrrev_b32 v6, 4, v1\nv_add_u32 v6, v6, v5\nv_lshlrev_b32 v6, 8, v6")
    A(f"v_lshrrev_b32 v{vX1}, 3, v1\nv_and_b32 v{vX1}, 2, v{vX1}\nv_or_b32 v5, v5, v{vX1}")
    A(f"v_bfe_u32 v{vX1}, v1, 1, 1\nv_xor_b32 v5, v5, v{vX1}\ns_lshl_b32 s{sT2}, s{sC}, 3\nv_xor_b32 v5, s{sT2}, v5")
    A(f"v_lshl_add_u32 v6, v5, 4, v6\nv_and_b32 v5, 1, v1\nv_lshl_add_u32 v{vVA}, v5, 3, v6")
    for n in range(1, 4):
        A(f"v_xor_b32 v{vVA+n}, {32*n}, v{vVA}")
    for i in range(4):
        A(f"v_mov_b32 v{vO+i}, 0")
    for i in range(32):
        A(f"v_mov_b32 v{vPF+i}, 0")
    for T in range(4):
        A(f"s_mov_b32 s{sPM+2*T}, {hex(0x000f000f << (4*T))}\ns_mov_b32 s{sPM+2*T+1}, s{sPM+2*T}")
    A(f"v_mov_b32 v{vDN}, 33\nv_mov_b32 v{vPA}, v29")
    A(f"s_mov_b32 s{sLB}, {(32 % NSLOT) * 16384}\ns_mov_b32 s{sTHR}, {8*(U0+64+1)}\ns_mov_b32 s{sCNT}, 0")
    tail_prep()
    A(f"v_lshrrev_b32 v6, 2, v1\nv_lshlrev_b32 v6, 11, v6\nv_and_b32 v5, 3, v1\nv_lshl_add_u32 v{vO1}, v5, 4, v6")
    A(f"s_lshl_b32 s{sT1}, s{sX8}, 16\ns_lshl_b32 s{sT2}, s{sC}, 15\ns_add_u32 s{sT1}, s{sT1}, s{sT2}")
    A(f"s_lshl_b32 s{sT2}, s{sJJ}, 6\ns_add_u32 s{sT1}, s{sT1}, s{sT2}\ns_add_u32 s{sT1}, s{sT1}, {WS_H1}")
    lds_wait(F_PD, sT0, 1, "pd", sleep=0, vaddr=vOTH)
    stamp(5, 1)
    vSC = 28
    A("L_p2:")
    for n in range(4):
        A(f"v_add_u32 v{vAD+n}, s{sLB}, v{vVA+n}")
    A(f"s_cmp_lg_u32 s{sCNT}, {prept}\ns_cbranch_scc1 L_nosc")
    lds_wait(F_SC, sT0, 1, "sc", sleep=1)
    A(f"v_and_b32 v5, 3, v1\nv_lshlrev_b32 v5, 2, v5\nds_read_b32 v{vSC}, v5 offset:{L_SC}")
    A("L_nosc:")
    for T in range(4):
        A(f"s_mov_b64 exec, {s2(sPM+2*T)}")
        for ks in range(2):
            A(f"ds_read_b128 {v4(vPF+16*ks+4*T)}, v{vPA} offset:{L_P + 256*ks}")
    A("s_mov_b64 exec, -1")
    for ks in range(2):
        lds_wait(F_RDY, sFL, f"s{sTHR}", "vrdy", sleep=csleep, cached=True)
        for T in range(4):
            for ih in range(2):
                A(f"ds_read_b64_tr_b16 {v2(vVF+16*ks+4*T+2*ih)}, v{vAD+T} offset:{L_RING + 8192*ks + 4096*ih}")
        A(f"s_add_u32 s{sTHR}, s{sTHR}, 8")
        if ks == 1:
            next_slot(1)
            A(f"s_add_u32 s{sCNT}, s{sCNT}, 1\nv_add_u32 v{vPA}, 512, v{vPA}")
        for T in range(4):
            lgkm(6 - 2 * T)
            A(f"v_mfma_f32_16x16x32_bf16 {v4(vO)}, {v4(vVF+16*ks+4*T)}, {v4(vPF+16*ks+4*T)}, {v4(vO)}")
    A(f"ds_write_b32 v{vOWN}, v{vDN} offset:{F_DONE}\nv_add_u32 v{vDN}, 1, v{vDN}")
    A(f"s_cmp_lt_u32 s{sCNT}, 32\ns_cbranch_scc1 L_p2")
    stamp(3)
    A(f"s_cmp_eq_u32 s{sMODE}, 2\ns_nop 2")
    for r in range(4):
        A(f"v_mul_f32 v{vO+r}, v{vO+r}, v{vSC}")
    for r in range(4):
        embed(vO + r, vO + r, TX4 + r)
    A(f"s_cbranch_scc0 L_h1far\nbuffer_store_dwordx4 {v4(vO)}, v{vO1}, {s4(rWS)}, s{sT1} offen\ns_branch L_tail")
    A(f"L_h1far:\nbuffer_store_dwordx4 {v4(vO)}, v{vO1}, {s4(rWS)}, s{sT1} offen sc1\ns_branch L_tail")

    A("L_help:")
    srd(rA, sX, 1024)
    vG, vXP = 56, 58
    A(f"s_cmp_ge_i32 s{sF}, 0\ns_cbranch_scc1 L_h3f")
    A(f"s_and_b32 s{sT3}, s{sSUB}, 3")
    make_tags()
    lds_wait(F_XN, sT0, 1, "xn", sleep=2)
    slice_mv(sT3, L_GU, 2, after_read=lambda: lds_flag(F_GUP))
    embed(32, 32, TX2); embed(33, 33, TX2 + 1)
    lds_wait(F_QH, sMODE, 1, "qh3", sleep=4)
    A(f"s_lshl_b32 s{sT0}, s{sCB}, 11\ns_add_u32 s{sT0}, s{sT0}, {WS_G1}\ns_lshl_b32 s{sT1}, s{sSUB}, 8\ns_add_u32 s{sT1}, s{sT1}, s{sT0}")
    if skip & 4: A("s_branch L_hstat")
    A("s_mov_b32 exec_lo, 0x00ff00ff\ns_mov_b32 exec_hi, 0x00ff00ff")
    store2(f"buffer_store_dwordx2 v[32:33], v6, {s4(rWS)}, s{sT1} offen",
           f"s_cmp_lt_u32 s{sJJ}, {24 if nb is None else 32}\ns_cselect_b32 s{sT2}, s{sMODE}, 1\ns_cmp_eq_u32 s{sT2}, 2")
    A("s_mov_b64 exec, -1")
    stamp(1)
    lds_wait(F_RDY, sFL, 8 * g2gate, "g2gate", sleep=16)
    for i in range(8):
        A(f"ds_read_b128 {v4(64+4*i)}, v4 offset:{L_WD + 1024*i}")
    poll([f"buffer_load_dwordx4 {v4(32+4*i)}, v4, {s4(rWS)}, s{sT0} offen offset:{1024*i} sc1" for i in range(2)],
         chk4([32, 36]), "g1poll", sleep=32)
    for e in range(8):
        swap_red(32 + e, vX0, "v_add_f32")
        rnd_bf16(32 + e)
    for e in range(4):
        sigmoid(32 + e, 32 + e)
        rnd_bf16(32 + e)
        A(f"v_mul_f32 v{32+e}, v{32+e}, v{36+e}")
    A("v_cvt_pk_bf16_f32 v32, v32, v33\nv_cvt_pk_bf16_f32 v33, v34, v35")
    A("v_and_b32 v5, 3, v1\nv_lshlrev_b32 v5, 5, v5\nv_and_b32 v6, 12, v1\nv_add_u32 v5, v5, v6\nv_lshlrev_b32 v6, 4, v2")
    A(f"ds_write_b32 v5, v32 offset:{L_HB}\nds_write_b32 v5, v33 offset:{L_HB+16}\nds_read_b128 v[20:23], v6 offset:{L_HB}")
    lgkm(0)
    matvec8(64, [f"v{20+k}" for k in range(4)], 32, 40)
    reduce8(32)
    A(f"v_lshrrev_b32 v6, 4, v1\nv_lshlrev_b32 v6, 3, v6\nv_lshl_add_u32 v6, v3, 1, v6\nv_lshlrev_b32 v5, 2, v1")
    A(f"ds_write_b64 v6, v[32:33] offset:{L_HB}\nds_read_b32 v32, v5 offset:{L_HB}")
    A(f"v_and_b32 v5, 7, v1\nv_lshlrev_b32 v5, 2, v5\nv_lshrrev_b32 v33, v5, s{sTAG}\nv_and_b32 v33, 15, v33")
    A(f"v_lshrrev_b32 v6, 4, v1\nv_lshlrev_b32 v6, 11, v6\nv_and_b32 v5, 15, v1\nv_lshl_add_u32 v6, v5, 2, v6")
    A(f"s_lshl_b32 s{sT1}, s{sSUB}, 13\ns_lshl_b32 s{sT2}, s{sCB}, 6\ns_add_u32 s{sT1}, s{sT1}, s{sT2}\ns_add_u32 s{sT1}, s{sT1}, {WS_GL}")
    lgkm(0)
    embed(32, 32, 33)
    if not skip & 1:
        A(f"buffer_store_dword v32, v6, {s4(rWS)}, s{sT1} offen sc1")
    A("s_branch L_hstat")
    A("L_h3f:")
    make_tags()
    lds_flag(F_GUP)
    if skip & 2: A("s_branch L_hstat")
    lds_wait(F_RDY, sFL, 8 * g3gate, "g3gate", sleep=16)
    A(f"s_mov_b32 s{sT0}, s{sF}")
    A(f"v_and_b32 v6, 3, v1\nv_lshlrev_b32 v6, 3, v6\nv_lshrrev_b32 v5, 5, v1\nv_lshl_add_u32 v6, v5, 2, v6\ns_lshl_b32 s{sT1}, s{sT0}, 5")
    A(f"buffer_load_dword v{vXP}, v6, {s4(rA)}, s{sT1} offen")
    A(f"s_lshl_b32 s{sH}, s{sT0}, 11\ns_add_u32 s{sH}, s{sH}, {WS_GL}")
    A(f"v_min_u32 v6, 47, v1\nv_and_b32 v6, 60, v6\nv_and_b32 v5, 3, v1\nv_or_b32 v6, v6, v5\nv_lshlrev_b32 v6, 4, v6")
    poll([f"buffer_load_dwordx4 v[64:67], v4, {s4(rWS)}, s{sH} offen sc1",
          f"buffer_load_dwordx4 v[68:71], v6, {s4(rWS)}, s{sH} offen offset:1024 sc1"], chk4([64, 68]), "gpoll", sleep=64)
    A("s_mov_b32 exec_hi, 0xffff")
    for e in range(4):
        A(f"v_add_f32 v{64+e}, v{64+e}, v{68+e}")
    A("s_mov_b64 exec, -1")
    red4(64)
    for e in range(2):
        rnd_bf16(64 + e)
        sigmoid(68, 64 + e)
        A(f"v_mul_f32 v{vG+e}, v{64+e}, v68")
        rnd_bf16(vG + e)
    A("L_hstat:")
    stamp(2)
    lds_wait(F_PD, sT0, 1, "pdh", sleep=16, pair=True)
    lds_wait(F_QH, sMODE, 1, "qh4", sleep=4)
    A(f"v_and_b32 v5, 3, v1\nv_lshlrev_b32 v5, 3, v5")
    A(f"ds_read_b64 v[32:33], v5 offset:{L_LS}\nds_read_b32 v34, v5 offset:{L_LS+32}")
    lgkm(0)
    A(f"v_add_f32 v32, v32, v34\nv_log_f32 v32, v32\nv_mov_b32 v35, s{sTAG}\nv_add_f32 v34, v32, v33")
    A(f"s_lshl_b32 s{sT0}, s{sX8}, 10\ns_add_u32 s{sT0}, s{sT0}, {WS_LS}\ns_lshl_b32 s{sT1}, s{sJJ}, 5\ns_add_u32 s{sT1}, s{sT1}, s{sT0}")
    A("s_mov_b64 exec, 15")
    store2(f"buffer_store_dwordx2 v[34:35], v5, {s4(rWS)}, s{sT1} offen", f"s_cmp_eq_u32 s{sMODE}, 2")
    A("s_mov_b64 exec, -1")
    lds_wait(F_RDY, sFL, 8 * lsgate, "lsgate", sleep=16)
    A(f"v_lshlrev_b32 v6, 3, v1")
    poll([f"buffer_load_dwordx2 {v2(36+2*i)}, v6, {s4(rWS)}, s{sT0} offen offset:{512*i} sc1" for i in range(2)],
         [(37, f"s{sTAG}"), (39, f"s{sTAG}")], "lspoll", sleep=16, full=True)
    A("v_max_f32 v40, v36, v38")
    wave_red(40, vX0, "v_max_f32", (8, 4))
    A("v_sub_f32 v36, v36, v40\nv_sub_f32 v38, v38, v40\nv_exp_f32 v36, v36\nv_exp_f32 v38, v38\nv_sub_f32 v33, v33, v40\nv_add_f32 v36, v36, v38")
    wave_red(36, vX0, "v_add_f32", (8, 4))
    A("v_exp_f32 v33, v33\nv_rcp_f32 v36, v36\nv_lshrrev_b32 v5, 1, v5\nv_mul_f32 v33, v33, v36")
    A(f"ds_write_b32 v5, v33 offset:{L_SC}")
    lds_flag(F_SC)
    stamp(3)
    tail_prep()
    if dry:
        A(f"s_mov_b32 s{rWS+2}, 0\ns_mov_b32 s{sLIM}, 0\ns_branch L_tail")
        A("L_dryret:")
        A(f"s_mov_b64 exec, -1\ns_mov_b32 s{rWS+2}, {hex(WS_SIZE)}\ns_mov_b32 s{sLIM}, 0x40000")
    if touch:
        lds_wait(F_RDY, sFL, NLD - touch, "touch", sleep=4)
        A(f"s_lshl_b32 s{sT1}, s{sX8}, 16\ns_lshl_b32 s{sT2}, s{sJJ}, 11\ns_add_u32 s{sT1}, s{sT1}, s{sT2}\ns_add_u32 s{sT1}, s{sT1}, {WS_H1}")
        A(f"v_lshlrev_b32 v5, 5, v1\nbuffer_load_dword v40, v5, {s4(rWS)}, s{sT1} offen sc1")
    A("L_endgate:")
    lds_wait(F_RDY, sFL, NLD, "endgate", sleep=1)

    A("L_tail:")
    stamp(4, 0)
    poll([f"buffer_load_dwordx4 {v4(40+4*i)}, v4, {s4(rWS)}, s{sI1} offen offset:{1024*i} sc1" for i in range(2)],
         chk4([40, 44]), "h1poll", sleep=h1sleep)
    stamp(5, 0)
    for e in range(4):
        A(f"v_add_f32 v{40+e}, v{40+e}, v{44+e}")
    red4(40)
    A(f"v_cvt_pk_bf16_f32 v40, v40, v41\ns_nop 0")
    for u in range(8):
        A(f"v_readlane_b32 s{sH+u}, v40, {32*(u&1) + (u>>1)}")
    for u in range(8):
        for z in range(2):
            c = "0" if u == 0 else f"v{48+z}"
            A(f"v_dot2_f32_bf16 v{48+z}, s{sH+u}, v{vWO+2*u+z}, {c}")
    if dry:
        A(f"s_cmp_eq_u32 s{sLIM}, 0\ns_cbranch_scc1 L_t2b\ns_cmp_lg_u32 s{sTW}, 3")
    else:
        A(f"s_cmp_lg_u32 s{sTW}, 3\ns_nop 1")
    A(f"ds_write_b64 v{vRW}, v[48:49] offset:{L_RED}")
    A("s_waitcnt lgkmcnt(0)\ns_barrier\ns_cbranch_scc1 L_fin")
    A("L_t2b:")
    for p in range(3):
        A(f"ds_read_b64 {v2(42+2*p)}, v{vRR} offset:{L_RED + 512*p}")
    lgkm(0)
    A("v_add_f32 v48, v48, v42\nv_add_f32 v49, v49, v43\nv_add_f32 v44, v44, v46\nv_add_f32 v45, v45, v47\nv_add_f32 v48, v48, v44\nv_add_f32 v49, v49, v45")
    embed(48, 48, TX2); embed(49, 49, TX2 + 1)
    A(f"buffer_store_dwordx2 v[48:49], v{vO2}, {s4(rWS)}, s{sO2} offen sc1")
    if dry:
        A(f"s_cmp_eq_u32 s{sLIM}, 0\ns_cbranch_scc1 L_t3b")
    if wb:
        A(f"s_cmp_lg_u32 s{sJJ}, 0\ns_cbranch_scc1 L_nowb\ns_waitcnt vmcnt(0)\nbuffer_wbl2 sc1\nL_nowb:")
    A(f"s_cmp_lt_i32 s{sF}, 0\ns_cbranch_scc1 L_fin")
    A("L_t3b:")
    A(f"s_and_b32 s{sT0}, s{sF}, 31")
    A(f"s_lshr_b32 s{sT1}, s{sT0}, 1\ns_lshl_b32 s{sT1}, s{sT1}, 13\ns_and_b32 s{sT2}, s{sT0}, 1\ns_lshl_b32 s{sT2}, s{sT2}, 6\ns_add_u32 s{sT1}, s{sT1}, s{sT2}")
    A(f"s_add_u32 s{sT1}, s{sT1}, {WS_H2}\ns_add_u32 s{sT2}, s{sT1}, 4096\ns_lshl_b32 s{sT3}, s{sT0}, 5")
    A(f"v_lshrrev_b32 v55, 2, v1\nv_lshlrev_b32 v55, 7, v55\nv_and_b32 v5, 3, v1\nv_lshl_add_u32 v55, v5, 4, v55")
    A(f"v_lshlrev_b32 v5, 1, v5\nv_lshrrev_b32 v6, 5, v1\nv_add_u32 v5, v5, v6\nv_lshlrev_b32 v52, 2, v5")
    A(f"v_lshlrev_b32 v50, 16, v{vXP}\nv_and_b32 v51, s{sHI}, v{vXP}")
    A(f"s_min_u32 s{sH}, s{sLIM}, 1024")
    srd(rA, sOUT, f"s{sH}")
    if ackwait:
        A("s_waitcnt vmcnt(0)")
    if presleep:
        A(f"s_sleep {presleep}")
    poll([f"buffer_load_dwordx4 {v4(64+4*i)}, v55, {s4(rWS)}, s{sT1+i//2} offen offset:{2048*(i%2)} sc1" for i in range(4)],
         chk4([64, 68, 72, 76]), "h2poll", sleep=h2sleep)
    stamp(6, 0)
    for e in range(4):
        A(f"v_add_f32 v{64+e}, v{64+e}, v{68+e}\nv_add_f32 v{72+e}, v{72+e}, v{76+e}")
    for e in range(4):
        A(f"v_add_f32 v{64+e}, v{64+e}, v{72+e}")
    red4(64)
    A(f"v_cvt_pk_bf16_f32 v64, v64, v65\nv_and_b32 v65, s{sHI}, v64\nv_lshlrev_b32 v64, 16, v64")
    A(f"v_mul_f32 v64, v64, v{vG}\nv_mul_f32 v65, v65, v{vG+1}")
    A(f"v_cvt_pk_bf16_f32 v64, v64, v65\nv_and_b32 v65, s{sHI}, v64\nv_lshlrev_b32 v64, 16, v64")
    A("v_add_f32 v64, v64, v50\nv_add_f32 v65, v65, v51\nv_cvt_pk_bf16_f32 v64, v64, v65")
    A("s_mov_b32 exec_lo, 15\ns_mov_b32 exec_hi, 15")
    A(f"buffer_store_dword v64, v52, {s4(rA)}, s{sT3} offen {outflags}")
    if dry:
        A(f"s_cmp_eq_u32 s{sLIM}, 0\ns_cbranch_scc1 L_dryret")
    A(f"s_cmp_lg_u32 s{sT0}, 0\ns_cbranch_scc1 L_fin")
    A(f"s_mov_b64 exec, 1\nv_mov_b32 v65, s{sTAG}")
    A(f"buffer_store_dword v65, v7, {s4(rWS)}, 0 offen offset:{WS_EPOCH} {epflags}")
    A("L_fin:")
    if stamps:
        A("s_mov_b64 exec, -1")
        A("s_waitcnt vmcnt(0)")
        stamp(7)
        A("s_waitcnt lgkmcnt(0)")
        if skew is not None:
            if span is None:
                A(f"s_cmp_lg_u32 s{sW}, 4\ns_cbranch_scc1 L_skout\ns_cmp_lg_u32 s2, {skew}\ns_cbranch_scc1 L_skout")
            else:
                A(f"s_cmp_lg_u32 s{sW}, {span[0]}\ns_cbranch_scc1 L_skout")
                if span[0] == 0:
                    A(f"s_load_dwordx2 s[44:45], s[0:1], 80\ns_waitcnt lgkmcnt(0)\ns_sleep 127")
            srd(rB, 44, 256)
            A(f"buffer_load_dword v16, v7, {s4(rB)}, 0 offen offset:64 sc1\ns_waitcnt vmcnt(0)\nv_readfirstlane_b32 s{sT2}, v16\ns_nop 3")
            if span is None:
                A(f"s_not_b32 s{sT0}, s{sT2}\ns_sub_u32 s{sT2}, s{sST}, s{sT0}\ns_mul_i32 s{sT2}, s{sT2}, 20\ns_min_u32 s{sT2}, s{sT2}, 100000")
            else:
                A(f"s_not_b32 s{sT0}, s{sT2}\ns_sub_u32 s{sT2}, s{sST+2*span[1]}, s{sT0}\ns_sub_u32 s{sT2}, s{sT2}, 3000\ns_mul_i32 s{sT2}, s{sT2}, 10\ns_min_u32 s{sT2}, s{sT2}, 100000")
            A(f"s_add_u32 s{sT2}, s{sT2}, s{sT0}\ns_add_u32 s{sT2}, s{sT2}, 10000")
            A("L_skpad:")
            A(f"s_memrealtime {s2(sH)}\ns_waitcnt lgkmcnt(0)\ns_sub_u32 s{sT3}, s{sH}, s{sT2}\ns_cmp_lt_i32 s{sT3}, 0\ns_cbranch_scc1 L_skpad")
            A("L_skout:")
        if diag is not None:
            dw, dwg, di, dj, mult = diag
            A(f"s_cmp_lg_u32 s{sW}, {dw}\ns_cbranch_scc1 L_padout")
            if dwg >= 0:
                A(f"s_cmp_lg_u32 s2, {dwg}\ns_cbranch_scc1 L_padout")
            A(f"s_cmp_eq_u32 s{sST+2*di}, 0\ns_cbranch_scc1 L_padout")
            A(f"s_sub_u32 s{sT2}, s{sST+2*di}, s{sST+2*dj}\ns_mul_i32 s{sT2}, s{sT2}, {mult}\ns_min_u32 s{sT2}, s{sT2}, 100000")
            A(f"s_add_u32 s{sT2}, s{sT2}, s{sST}\ns_add_u32 s{sT2}, s{sT2}, 10000")
            A("L_pad:")
            A(f"s_memrealtime {s2(sH)}\ns_waitcnt lgkmcnt(0)\ns_sub_u32 s{sT3}, s{sH}, s{sT2}\ns_cmp_lt_i32 s{sT3}, 0\ns_cbranch_scc1 L_pad")
            A("L_padout:")
        if pad is not None:
            A(f"s_cmp_eq_u32 s{sST+2*pad}, 0\ns_cbranch_scc1 L_padout")
            A(f"s_add_u32 s{sT2}, s{sST+2*pad}, 10000")
            A("L_pad:")
            A(f"s_memrealtime {s2(sH)}\ns_waitcnt lgkmcnt(0)\ns_sub_u32 s{sT3}, s{sH}, s{sT2}\ns_cmp_lt_i32 s{sT3}, 0\ns_cbranch_scc1 L_pad")
            A("L_padout:")
        for i in range(8):
            A(f"v_mov_b32 v{96+i}, s{sST+2*i}")
        A(f"s_mul_i32 s{sT1}, s2, 5\ns_add_u32 s{sT1}, s{sT1}, s{sW}\ns_lshl_b32 s{sT1}, s{sT1}, 5\ns_add_u32 s{sT1}, s{sT1}, {WS_STAMP}")
        A("s_mov_b64 exec, 1")
        A(f"buffer_store_dwordx4 v[96:99], v7, {s4(rWS)}, s{sT1} offen")
        A(f"buffer_store_dwordx4 v[100:103], v7, {s4(rWS)}, s{sT1} offen offset:16")
    A("L_end:")
    A("s_endpgm")

    out = HEADER
    out += f"; @launch grid=(256,1,1) block=(320,1,1) lds={LDS_BYTES}\n"
    out += '.amdgcn_target "amdgcn-amd-amdhsa--gfx950"\n.text\n'
    out += f".globl {KNAME}_kernel\n.p2align 8\n.type {KNAME}_kernel,@function\n"
    out += "\n".join(A.L) + "\n"
    out += f""".section .rodata,"a"
.p2align 6
.amdhsa_kernel {KNAME}_kernel
  .amdhsa_next_free_vgpr 216
  .amdhsa_next_free_sgpr 102
  .amdhsa_accum_offset 216
  .amdhsa_group_segment_fixed_size 0
  .amdhsa_kernarg_size 96
  .amdhsa_user_sgpr_count 2
  .amdhsa_user_sgpr_kernarg_segment_ptr 1
  .amdhsa_system_sgpr_workgroup_id_x 1
.end_amdhsa_kernel
"""
    return out


if __name__ == "__main__":
    kw = json.loads(sys.argv[2]) if len(sys.argv) > 2 else {}
    open(sys.argv[1], "w").write(gen(**kw))
```

```python
import sys, json, struct

KNAME = "recurrent_scan__gqa_block_cached__glu_gated_glu__decode"
HEADER = open("cdna_kernels/" + KNAME + ".s.ref").read().split("; Override launch")[0]

def f2u(x):
    return struct.unpack("<I", struct.pack("<f", x))[0]

LOG2E = 1.4426950408889634
WS_EPOCH = 0x0
WS_LS = 0x2000
WS_PG = 0x8000
WS_GP = 0x5000
WS_QX = 0x10000
WS_QXFAR = 0x100000
WS_G1 = 0x20000
WS_GL = 0x30000
WS_H1 = 0x40000
WS_H2 = 0xC0000
WS_STAMP = 0x1000000
WS_SIZE = 0x20000000
L_Q = 0
L_FLAG = 1024
F_RDY = L_FLAG
F_GUP = L_FLAG + 4
F_DONE = L_FLAG + 8
F_QH = L_FLAG + 16
F_XN = L_FLAG + 20
F_MX = L_FLAG + 24
F_PD = L_FLAG + 32
F_SC = L_FLAG + 40
F_WIN = L_FLAG + 44
L_MX = 1152
L_LS = 1216
L_SC = 1280
L_HB = 1536
L_RED = 2048
L_XN = L_RED
L_P = 4096
L_WD = 20480
L_RING = 28672
NSLOT = 8
L_WO = L_RING
LDS_BYTES = L_RING + NSLOT * 16384
U0 = 5

sFL = 3
sMODE, sLIM, sI1, sO2 = 14, 15, 24, 25
sWT = 20
sF = 83
sTW = 82
sPM = 48
sX, sK, sV, sWQ, sWO, sBX, sWG, sWU, sWD, sOUT, sDBG, sWS = 4, 6, 8, 10, 12, 14, 16, 18, 20, 22, 24, 26
rK, rV, rWS, rA, rB, rC, rD = 28, 32, 36, 40, 44, 48, 52
sW, sX8, sJJ, sCB, sSUB = 56, 57, 58, 59, 60
sC, sTHR, sCNT, sTAG = 61, 62, 63, 64
sSELL, sSELH, sSCALE, sLOG2E, sHI = 65, 66, 67, 68, 69
sT0, sT1, sT2, sT3 = 70, 71, 72, 73
sH = 74
sM = 82
sSPIN = 84
sLB = 85
sST = 86
TX4 = 8; TX2 = 12; vX0 = 14; vX1 = 15
vWO, vWT, vRW, vRR, vO2, vO1, vWA = 192, 128, 208, 209, 210, 211, 212


class G:
    def __init__(self):
        self.L = []
        self.n = 0
    def __call__(self, s):
        for line in s.strip("\n").split("\n"):
            self.L.append("    " + line.strip() if not line.strip().endswith(":") else line.strip())
    def label(self, base):
        self.n += 1
        return f"L_{base}_{self.n}"


def v4(r):
    return f"v[{r}:{r+3}]"
def v2(r):
    return f"v[{r}:{r+1}]"
def s4(r):
    return f"s[{r}:{r+3}]"
def s2(r):
    return f"s[{r}:{r+1}]"


def gen(kvflags="nt", wflags="nt", win=20, stamps=False, pad=None, qsleep=4, qgate=0, g2gate=24, g3gate=48,
        lsgate=100, h1sleep=0, h2sleep=0, csleep=0, lprio=0, smode=0, skip=0, prog=False, win2=0, last=6, force=0, qtry=96, outflags='', diag=None, prept=30, dry=False,
        pace=1, wins=(20, 22, 24, 28), c0=0, gs=8, endstop=48, psleep=8, bias=0, scal=False, gper=0, gbias=0, pld='sc1', unq=2, gs2=8, gmin=0, gmax=2, istep=1, epflags='', skew=None, span=None, pp1=0, pp2=0, wwo=24, wtouch=True, worder=(1, 2, 0, 3), nb=(2, 4, 4, 4, 3, 4, 3, 4), pgs=12, wb=0, presleep=0, touch=64, ackwait=True, lateat=0, latebias=0, cpf=True, qtouch=True):
    A = G()
    if span is not None:
        skew = -1; stamps = True; smode = 9

    def srd(r, base, size):
        A(f"s_mov_b32 s{r}, s{base}\ns_mov_b32 s{r+1}, s{base+1}\ns_mov_b32 s{r+2}, {size}\ns_mov_b32 s{r+3}, 0x20000")

    def stamp(i, mode=None):
        if stamps and (mode is None or mode == smode):
            A(f"s_memrealtime {s2(sST + 2 * i)}")

    def lgkm(n):
        A(f"s_waitcnt lgkmcnt({n})")

    def swap_red(r, t, op, kinds=("16", "32")):
        for k in kinds:
            A(f"v_mov_b32 v{t}, v{r}\ns_nop 1\nv_permlane{k}_swap_b32 v{r}, v{t}\ns_nop 1\n{op} v{r}, v{r}, v{t}")

    def wave_red(r, t, op, rors):
        for k in rors:
            A(f"s_nop 1\n{op} v{r}, v{r}, v{r} row_ror:{k}")
        swap_red(r, t, op)

    def rnd_bf16(r):
        A(f"v_cvt_pk_bf16_f32 v{r}, v{r}, v{r}\nv_and_b32 v{r}, 0xffff0000, v{r}")

    def ln_stats(X, mean, rstd, F):
        D = F + 8
        for k in range(4):
            A(f"v_lshlrev_b32 v{F+2*k}, 16, v{X+k}\nv_and_b32 v{F+2*k+1}, s{sHI}, v{X+k}")
        A(f"v_add_f32 v{mean}, v{F}, v{F+1}")
        for k in range(2, 8):
            A(f"v_add_f32 v{mean}, v{mean}, v{F+k}")
        wave_red(mean, vX0, "v_add_f32", (8, 4, 2, 1))
        A(f"v_mul_f32 v{mean}, {hex(f2u(1/512))}, v{mean}")
        for k in range(8):
            A(f"v_sub_f32 v{D+k}, v{F+k}, v{mean}")
        A(f"v_mul_f32 v{rstd}, v{D}, v{D}")
        for k in range(1, 8):
            A(f"v_fmac_f32 v{rstd}, v{D+k}, v{D+k}")
        wave_red(rstd, vX0, "v_add_f32", (8, 4, 2, 1))
        A(f"v_mul_f32 v{rstd}, {hex(f2u(1/512))}, v{rstd}")
        rnd_bf16(mean); rnd_bf16(rstd)
        A(f"v_add_f32 v{rstd}, {hex(f2u(1e-5))}, v{rstd}")
        rnd_bf16(rstd)
        A(f"v_sqrt_f32 v{rstd}, v{rstd}\ns_nop 0")
        rnd_bf16(rstd)
        A(f"v_rcp_f32 v{rstd}, v{rstd}")

    def ln_apply(X, mean, rstd, D):
        for k in range(4):
            A(f"v_lshlrev_b32 v{D+2*k}, 16, v{X+k}\nv_and_b32 v{D+2*k+1}, s{sHI}, v{X+k}")
        for k in range(8):
            A(f"v_sub_f32 v{D+k}, v{D+k}, v{mean}")
        for k in range(4):
            A(f"v_cvt_pk_bf16_f32 v{X+k}, v{D+2*k}, v{D+2*k+1}")
        for k in range(4):
            A(f"v_lshlrev_b32 v{D+2*k}, 16, v{X+k}\nv_and_b32 v{D+2*k+1}, s{sHI}, v{X+k}")
        for k in range(8):
            A(f"v_mul_f32 v{D+k}, v{D+k}, v{rstd}")
        for k in range(4):
            A(f"v_cvt_pk_bf16_f32 v{X+k}, v{D+2*k}, v{D+2*k+1}")

    def matvec8(W, xs, acc, tmp, first=True):
        for j in range(4):
            for u in range(4):
                A(f"v_perm_b32 v{tmp+2*u}, v{W+(2*j+1)*4+u}, v{W+(2*j)*4+u}, s{sSELL}")
                A(f"v_perm_b32 v{tmp+2*u+1}, v{W+(2*j+1)*4+u}, v{W+(2*j)*4+u}, s{sSELH}")
            for e in range(8):
                c = "0" if (j == 0 and first) else f"v{acc+e}"
                A(f"v_dot2_f32_bf16 v{acc+e}, {xs[j]}, v{tmp+e}, {c}")
        A("s_nop 2")

    def reduce8(acc):
        A("s_nop 1")
        for e in range(4):
            A(f"v_permlane32_swap_b32 v{acc+e}, v{acc+4+e}")
        A("s_nop 1")
        for e in range(4):
            A(f"v_add_f32 v{acc+e}, v{acc+e}, v{acc+4+e}")
        A("s_nop 1")
        for e in range(2):
            A(f"v_permlane16_swap_b32 v{acc+e}, v{acc+2+e}")
        A("s_nop 1")
        for e in range(2):
            A(f"v_add_f32 v{acc+e}, v{acc+e}, v{acc+2+e}")
        A("s_nop 0")
        for e in range(2):
            A(f"v_add_f32 v{acc+e}, v{acc+e}, v{acc+e} row_ror:8")
        A("s_nop 0")

    def red4(a):
        A("s_nop 1")
        A(f"v_permlane32_swap_b32 v{a}, v{a+2}\nv_permlane32_swap_b32 v{a+1}, v{a+3}")
        A("s_nop 0")
        A(f"v_add_f32 v{a}, v{a}, v{a+2}\nv_add_f32 v{a+1}, v{a+1}, v{a+3}")
        for k in (8, 4):
            A("s_nop 0")
            A(f"v_add_f32 v{a}, v{a}, v{a} row_ror:{k}\nv_add_f32 v{a+1}, v{a+1}, v{a+1} row_ror:{k}")
        A(f"v_mov_b32 v{a+2}, v{a}\nv_mov_b32 v{a+3}, v{a+1}\ns_nop 0")
        A(f"v_permlane16_swap_b32 v{a}, v{a+2}\nv_permlane16_swap_b32 v{a+1}, v{a+3}")
        A("s_nop 0")
        A(f"v_add_f32 v{a}, v{a}, v{a+2}\nv_add_f32 v{a+1}, v{a+1}, v{a+3}")

    def lds_wait(addr, sreg, thr, name, sleep=1, vaddr=7, cached=False, pair=False):
        top = A.label(name); done = A.label(name + "_ok")
        if cached:
            A(f"s_cmp_ge_i32 s{sreg}, {thr}\ns_cbranch_scc1 {done}")
        A(f"s_mov_b32 s{sSPIN}, 0")
        A(f"{top}:")
        if pair:
            A(f"ds_read_b64 {v2(vX0)}, v{vaddr} offset:{addr}\ns_waitcnt lgkmcnt(0)\nv_min_i32 v{vX0}, v{vX0}, v{vX1}\ns_nop 0")
        else:
            A(f"ds_read_b32 v{vX0}, v{vaddr} offset:{addr}\ns_waitcnt lgkmcnt(0)")
        A(f"v_readfirstlane_b32 s{sreg}, v{vX0}")
        A(f"s_add_u32 s{sSPIN}, s{sSPIN}, 1")
        A(f"s_cmp_ge_i32 s{sreg}, {thr}\ns_cbranch_scc1 {done}")
        if sleep:
            A(f"s_sleep {sleep}")
        A(f"s_cmp_lt_u32 s{sSPIN}, 0x100000\ns_cbranch_scc1 {top}")
        A(f"{done}:")

    def lds_flag(addr, val=1, vaddr=7):
        A(f"v_mov_b32 v{vX0}, {val}\nds_write_b32 v{vaddr}, v{vX0} offset:{addr}")

    def make_tags():
        A(f"s_waitcnt lgkmcnt(0)\ns_add_u32 s{sTAG}, s{sTAG}, 0x9E3779B1")
        A(f"v_and_b32 v5, 1, v1\nv_lshlrev_b32 v5, 4, v5\nv_lshrrev_b32 v5, v5, s{sTAG}")
        for k in range(4):
            A(f"v_bfe_u32 v{TX4+k}, v5, {4*k}, 4")
        A(f"v_and_b32 v5, 3, v1\nv_lshlrev_b32 v5, 3, v5\nv_lshrrev_b32 v5, v5, s{sTAG}")
        for k in range(2):
            A(f"v_bfe_u32 v{TX2+k}, v5, {4*k}, 4")

    def embed(dst, src, tag):
        A(f"v_and_or_b32 v{dst}, v{src}, -16, v{tag}")

    def poll(loads, checks, name, sleep=0, full=False, mid=None):
        top = A.label(name); done = A.label(name + "_ok")
        A(f"s_mov_b32 s{sSPIN}, 0")
        if mid:
            chk = A.label(name + "_chk")
            for l in loads:
                A(l)
            mid()
            A(f"s_branch {chk}")
        A(f"{top}:")
        for l in loads:
            A(l)
        if mid:
            A(f"{chk}:")
        A("s_waitcnt vmcnt(0)")
        A(f"v_xor_b32 v{vX0}, {checks[0][1]}, v{checks[0][0]}")
        for r, t in checks[1:]:
            A(f"v_bitop3_b32 v{vX0}, v{vX0}, v{r}, {t} bitop3:0xf6")
        if not full:
            A(f"v_and_b32 v{vX0}, 15, v{vX0}\nv_cmp_ne_u32 vcc, 0, v{vX0}")
        else:
            A(f"v_cmp_ne_u32 vcc, 0, v{vX0}")
        A(f"s_cbranch_vccz {done}")
        if sleep:
            A(f"s_sleep {sleep}")
        A(f"s_add_u32 s{sSPIN}, s{sSPIN}, 1\ns_cmp_lt_u32 s{sSPIN}, s{sLIM}\ns_cbranch_scc1 {top}")
        A(f"{done}:")

    def poll2(ld, n, ra, rb, fin, name, mid):
        top = A.label(name); oka = A.label(name + "_a"); okb = A.label(name + "_b"); done = A.label(name + "_ok")
        def check(r, ok):
            A(f"s_waitcnt vmcnt({n})")
            ch = chk4([r + 4 * i for i in range(n)])
            A(f"v_xor_b32 v{vX0}, {ch[0][1]}, v{ch[0][0]}")
            for rr, t in ch[1:]:
                A(f"v_bitop3_b32 v{vX0}, v{vX0}, v{rr}, {t} bitop3:0xf6")
            A(f"v_and_b32 v{vX0}, 15, v{vX0}\nv_cmp_ne_u32 vcc, 0, v{vX0}\ns_cbranch_vccz {ok}")
        A(f"s_mov_b32 s{sSPIN}, 0")
        ld(ra)
        mid()
        A(f"{top}:")
        ld(rb)
        check(ra, oka)
        ld(ra)
        check(rb, okb)
        A(f"s_add_u32 s{sSPIN}, s{sSPIN}, 1\ns_cmp_lt_u32 s{sSPIN}, s{sLIM}\ns_cbranch_scc1 {top}")
        A(f"{okb}:")
        fin(rb)
        A(f"s_branch {done}")
        A(f"{oka}:")
        fin(ra)
        A(f"{done}:")

    def store2(line, cond_scc1_near):
        far = A.label("far"); done = A.label("st")
        A(cond_scc1_near)
        A(f"s_cbranch_scc0 {far}\n{line}\ns_branch {done}\n{far}:\n{line} sc1\n{done}:")

    def chk4(regs):
        return [(r + k, f"v{TX4+k}") for r in regs for k in range(4)]

    def next_slot(step):
        A(f"s_add_u32 s{sLB}, s{sLB}, {step*16384}\ns_and_b32 s{sLB}, s{sLB}, {NSLOT*16384-1}")

    def tail_prep():
        A(f"s_lshl_b32 s{sT2}, s{sTW}, 12\nv_lshl_add_u32 v{vWA}, v1, 2, s{sT2}")
        tabw = sum((4 * (worder.index(w) + 1)) << (8 * w) for w in range(4))
        A(f"s_lshl_b32 s{sT2}, s{sTW}, 3\ns_lshr_b32 s{sWT}, {hex(tabw)}, s{sT2}\ns_and_b32 s{sWT}, s{sWT}, 0xff\ns_add_u32 s{sWT}, s{sWT}, {8*U0+1024}")
        A(f"s_lshl_b32 s{sI1}, s{sX8}, 16\ns_and_b32 s{sT2}, s{sJJ}, 28\ns_add_u32 s{sT2}, s{sT2}, s{sTW}\ns_lshl_b32 s{sT2}, s{sT2}, 11")
        A(f"s_add_u32 s{sI1}, s{sI1}, s{sT2}\ns_add_u32 s{sI1}, s{sI1}, {WS_H1}")
        A(f"v_and_b32 v{vRW}, 0xff, v0\nv_lshlrev_b32 v{vRW}, 3, v{vRW}\nv_lshlrev_b32 v{vRR}, 3, v1")
        A(f"v_and_b32 v5, 15, v1\nv_lshlrev_b32 v5, 3, v5\nv_lshrrev_b32 v6, 4, v1\nv_lshl_add_u32 v{vO2}, v6, 13, v5")
        A(f"s_and_b32 s{sO2}, s{sJJ}, 3\ns_lshl_b32 s{sO2}, s{sO2}, 15\ns_lshl_b32 s{sT2}, s{sX8}, 10\ns_add_u32 s{sO2}, s{sO2}, s{sT2}")
        A(f"s_lshr_b32 s{sT2}, s{sJJ}, 2\ns_lshl_b32 s{sT2}, s{sT2}, 7\ns_add_u32 s{sO2}, s{sO2}, s{sT2}\ns_add_u32 s{sO2}, s{sO2}, {WS_H2}")

    def sigmoid(dst, src):
        A(f"v_mul_f32 v{dst}, s{sLOG2E}, v{src}\nv_exp_f32 v{dst}, -v{dst}\ns_nop 0\nv_add_f32 v{dst}, 1.0, v{dst}\nv_rcp_f32 v{dst}, v{dst}\ns_nop 0")

    A(f"{KNAME}_kernel:")
    A("s_cmpk_ge_u32 s2, 0x100\ns_cbranch_scc1 L_end")
    stamp(0)
    A(f"s_load_dwordx16 s[4:19], s[0:1], 0\ns_load_dwordx8 s[20:27], s[0:1], 64")
    A(f"v_and_b32 v1, 63, v0\nv_readfirstlane_b32 s{sW}, v0")
    A(f"s_and_b32 s{sX8}, s2, 7\ns_lshr_b32 s{sJJ}, s2, 3")
    A("v_lshlrev_b32 v4, 4, v1")
    A("v_lshrrev_b32 v2, 3, v1\nv_and_b32 v3, 0x70, v4")
    A(f"s_mov_b32 s{rA+3}, 0x20000\ns_lshr_b32 s{sW}, s{sW}, 6\ns_cbranch_scc1 L_e1")
    A(f"s_and_b32 s{sT1}, s{sJJ}, 7\ns_lshl3_add_u32 s{sT1}, s{sX8}, s{sT1}\ns_lshl_b32 s{sT1}, s{sT1}, 7")
    A(f"s_lshr_b32 s{sT2}, s2, 6\ns_lshl_b32 s{sT2}, s{sT2}, 20\ns_add_u32 s{sT1}, s{sT1}, s{sT2}")
    A(f"v_lshl_add_u32 v5, v2, 17, v3\ns_mov_b32 s{rA+2}, {hex(512 * 4096 * 2)}\ns_movk_i32 m0, {L_P}")
    A(f"s_waitcnt lgkmcnt(0)\ns_mov_b64 {s2(rA)}, {s2(sWQ)}")
    stamp(4, 4)
    A("L_wq:")
    A(f"buffer_load_dwordx4 v5, {s4(rA)}, s{sT1} offen {wflags} lds")
    A(f"s_addk_i32 m0, 0x400\ns_addk_i32 s{sT1}, 0x2000\ns_cmpk_lt_u32 m0, {L_P + 16384}\ns_cbranch_scc1 L_wq")
    A("s_branch L_e2")
    A("L_e1:")
    if cpf:
        A(f"s_cmp_lg_u32 s{sW}, 1\ns_cbranch_scc1 L_e1b")
        A(f"s_getpc_b64 {s2(sT0)}")
        A("L_pc:")
        A(f"s_mul_i32 s{sT2}, s{sJJ}, 768\nv_mad_u32_u24 v5, v1, 12, s{sT2}\nv_min_u32 v5, L_end-L_pc, v5")
        A(f"global_load_dword v16, v5, {s2(sT0)}")
        A("L_e1b:")
    A(f"s_cmp_lg_u32 s{sW}, 2\ns_cbranch_scc1 L_e2")
    A(f"s_movk_i32 s{rA+2}, 0x400\ns_waitcnt lgkmcnt(0)\ns_mov_b64 {s2(rA)}, {s2(sX)}")
    A(f"buffer_load_dwordx4 v[16:19], v4, {s4(rA)}, 0 offen")
    A("L_e2:")
    A(f"v_and_b32 v6, 15, v1\nv_cmp_eq_u32 vcc, {(F_DONE + 4 - L_FLAG) // 4}, v6\nv_lshlrev_b32 v6, 2, v6\nv_mov_b32 v7, 0")
    A(f"v_cndmask_b32 v5, 0, 1, vcc\nds_write_b32 v6, v5 offset:{L_FLAG}")
    if nb is None:
        A(f"s_mul_i32 s{sCB}, s{sX8}, 3\ns_lshr_b32 s{sT0}, s{sJJ}, 3\ns_add_u32 s{sCB}, s{sCB}, s{sT0}\ns_and_b32 s{sSUB}, s{sJJ}, 7")
        A(f"s_lshr_b32 s{sT0}, s{sX8}, 1\ns_add_u32 s{sT0}, s{sT0}, 24\ns_and_b32 s{sT1}, s{sX8}, 1\ns_lshl_b32 s{sT1}, s{sT1}, 2\ns_add_u32 s{sT1}, s{sT1}, s{sSUB}")
        A(f"s_cmp_ge_u32 s{sJJ}, 24\ns_cselect_b32 s{sCB}, s{sT0}, s{sCB}\ns_cselect_b32 s{sSUB}, s{sT1}, s{sSUB}")
        A(f"s_lshl_b32 s{sF}, s{sX8}, 2\ns_add_u32 s{sF}, s{sF}, s{sJJ}\ns_sub_u32 s{sF}, s{sF}, 28\ns_cmp_lt_u32 s{sJJ}, 28\ns_cselect_b32 s{sF}, -1, s{sF}")
    else:
        assert sum(nb) == 28
        free = [sum(4 - n for n in nb[:x]) for x in range(8)]
        tab = sum((nb[x] & 7 | (free[x] & 7) << 4) << (8 * x) for x in range(8))
        A(f"s_mov_b32 s{sT0}, {hex(tab & 0xffffffff)}\ns_mov_b32 s{sT1}, {hex(tab >> 32)}\ns_lshl_b32 s{sT2}, s{sX8}, 3\ns_lshr_b64 {s2(sT0)}, {s2(sT0)}, s{sT2}")
        A(f"s_bfe_u32 s{sT1}, s{sT0}, 0x30004\ns_and_b32 s{sT0}, s{sT0}, 7\ns_lshr_b32 s{sT2}, s{sJJ}, 3\ns_and_b32 s{sSUB}, s{sJJ}, 7")
        A(f"s_lshl2_add_u32 s{sCB}, s{sX8}, s{sT2}\ns_sub_u32 s{sCB}, s{sCB}, s{sT1}")
        A(f"s_sub_u32 s{sT1}, s{sT1}, s{sT0}\ns_lshl3_add_u32 s{sF}, s{sT1}, s{sJJ}\ns_cmp_lt_u32 s{sT2}, s{sT0}\ns_cselect_b32 s{sF}, -1, s{sF}")
    A(f"s_mov_b32 s{sSELL}, 0x05040100\ns_mov_b32 s{sSELH}, 0x07060302")
    A(f"s_mov_b32 s{sSCALE}, {hex(f2u(128 ** -0.5))}\ns_mov_b32 s{sLOG2E}, {hex(f2u(LOG2E))}\ns_mov_b32 s{sHI}, 0xffff0000")
    if stamps:
        for i in range(1, 8):
            if not (smode == 4 and i == 4):
                A(f"s_mov_b64 {s2(sST+2*i)}, 0")
    A("s_waitcnt lgkmcnt(0)")
    A("s_barrier")
    stamp(5, 5)
    A(f"s_load_dword s{sTAG}, {s2(sWS)}, {WS_EPOCH}")
    A(f"s_mov_b32 s{sLIM}, 0x40000\ns_mov_b32 s{sMODE}, 1")
    srd(rWS, sWS, hex(WS_SIZE))
    if skew is not None:
        srd(rB, sDBG, 256)
    A(f"s_cmp_lg_u32 s{sW}, 0\ns_cbranch_scc1 L_notloader")

    D = win
    first_k = (D - 1) % 8
    vCNT = 24
    cnt = [0]
    DD = [D]
    def ld(line, static=False):
        i = cnt[0]
        if not static or i >= D:
            A(f"s_waitcnt vmcnt({DD[0]-1})")
        if static and i == D - 1: stamp(5, 4)
        if static and i == D: stamp(6, 4)
        A(line)
        if i % 8 == first_k and (not static or i >= D - 1 + 8):
            A(f"ds_write_b32 v7, v{vCNT} offset:{F_RDY}\nv_add_u32 v{vCNT}, 8, v{vCNT}")
        cnt[0] += 1
    if lprio:
        A(f"s_setprio {lprio}")
    A(f"v_mov_b32 v{vCNT}, 8")
    cnt[0] = 16
    assert D >= 16
    A(f"s_cmp_lt_i32 s{sF}, 0\ns_cselect_b32 s{sT3}, {hex(512 * 1792 * 2)}, 0")
    srd(rD, sWD, f"s{sT3}")
    A(f"s_cmp_lt_u32 s{sSUB}, 4\ns_cselect_b32 s{rB}, s{sWG}, s{sWU}\ns_cselect_b32 s{rB+1}, s{sWG+1}, s{sWU+1}")
    A(f"s_mov_b32 s{rB+2}, s{sT3}\ns_mov_b32 s{rB+3}, 0x20000")
    A(f"s_and_b32 s{sT1}, s{sSUB}, 3\ns_mul_i32 s{sT1}, s{sT1}, {128*3584}\ns_lshl_b32 s{sT2}, s{sCB}, 7\ns_add_u32 s{sT1}, s{sT1}, s{sT2}")
    A(f"v_mul_u32_u24 v6, {16*3584}, v2\nv_add_u32 v6, v6, v3")
    L_GU = L_RING + (NSLOT - 1) * 16384
    for i in range(16):
        A(f"s_mov_b32 m0, {L_GU + 1024*i}")
        A(f"s_add_u32 s{sT2}, s{sT1}, {3584*i}")
        ld(f"buffer_load_dwordx4 v6, {s4(rB)}, s{sT2} offen {wflags} lds", True)
    A(f"s_lshl_b32 s{sT1}, s{sCB}, 16\ns_lshl_b32 s{sT2}, s{sSUB}, 7\ns_add_u32 s{sT1}, s{sT1}, s{sT2}")
    A(f"v_lshl_add_u32 v5, v2, 13, v3")
    for i in range(8):
        if i % 4 == 0:
            A(f"s_mov_b32 m0, {L_WD + 1024*i}")
            A(f"s_add_u32 s{sT2}, s{sT1}, {1024*i}")
        ld(f"buffer_load_dwordx4 v5, {s4(rD)}, s{sT2} offen offset:{1024*(i%4)} {wflags} lds", True)
    srd(rA, sWO, hex(4096 * 512 * 2))
    A(f"s_lshl_b32 s{sT1}, s{sX8}, 9\ns_lshr_b32 s{sT2}, s{sJJ}, 4\ns_lshl_b32 s{sT2}, s{sT2}, 6\ns_add_u32 s{sT1}, s{sT1}, s{sT2}")
    A(f"s_and_b32 s{sT2}, s{sJJ}, 12\ns_add_u32 s{sT1}, s{sT1}, s{sT2}\ns_lshl_b32 s{sT1}, s{sT1}, 10")
    A(f"s_and_b32 s{sT2}, s{sJJ}, 3\ns_lshl_b32 s{sT2}, s{sT2}, 8\ns_add_u32 s{sT1}, s{sT1}, s{sT2}")
    A(f"v_lshrrev_b32 v6, 4, v1\nv_lshlrev_b32 v6, 10, v6\nv_and_b32 v25, 15, v1\nv_lshl_add_u32 v6, v25, 4, v6")
    A(f"s_mov_b32 s{sH+3}, s{sT1}")
    assert cnt[0] == 8 * U0 and D + 7 <= 8 * U0
    stamp(1)
    A(f"s_lshl_b32 s{sT0}, s{sX8}, 24\ns_lshl_b32 s{sT1}, s{sJJ}, 19\ns_add_u32 s{sT0}, s{sT0}, s{sT1}")
    A(f"s_add_u32 s{rK}, s{sK}, s{sT0}\ns_addc_u32 s{rK+1}, s{sK+1}, 0\ns_mov_b32 s{rK+2}, 0x80000\ns_mov_b32 s{rK+3}, 0x20000")
    A(f"s_add_u32 s{rV}, s{sV}, s{sT0}\ns_addc_u32 s{rV+1}, s{sV+1}, 0\ns_mov_b32 s{rV+2}, 0x80000\ns_mov_b32 s{rV+3}, 0x20000")
    A("v_lshrrev_b32 v5, 4, v1\nv_lshlrev_b32 v5, 6, v5\nv_xor_b32 v16, v4, v5")
    A("v_and_b32 v5, 16, v1\nv_lshlrev_b32 v5, 1, v5\nv_xor_b32 v20, v4, v5")
    for n in range(1, 4):
        A(f"v_xor_b32 v{16+n}, {16*n}, v16\nv_xor_b32 v{20+n}, {64*n}, v20")
    sI, sLV = sH + 1, sH + 2
    NV = 8 * U0 + 1024
    NLD = NV + 16
    if not pace:
        wins = (win,); c0 = 0
    A(f"s_mov_b32 s{sCNT}, 0\ns_mov_b32 s{sLB}, 0\ns_mov_b32 s{sFL}, 0\ns_mov_b32 s{sH}, 0\ns_mov_b32 s{sI}, {8*U0}\nv_mov_b32 v25, 0\nv_subrev_u32 v26, 8, v{vCNT}")
    A("L_tile:")
    A(f"s_cmp_lg_u32 s{sCNT}, 32\ns_cbranch_scc1 L_nosw")
    stamp(4, 1); stamp(5, 3)
    A(f"s_mov_b64 {s2(rK)}, {s2(rV)}\ns_mov_b32 s{sH}, 0")
    for n in range(4):
        A(f"v_mov_b32 v{16+n}, v{20+n}")
    A("L_nosw:")
    A(f"s_sub_u32 s{sTHR}, s{sCNT}, {NSLOT-1}")
    A(f"s_cmp_lg_u32 s{sTHR}, 0\ns_cbranch_scc1 L_nogup")
    lds_wait(F_GUP, sT2, 1, "gup", sleep=0)
    stamp(2)
    A("L_nogup:")
    lds_wait(F_DONE, sFL, f"s{sTHR}", "free", sleep=0, cached=True, pair=True)
    A(f"s_add_u32 m0, s{sLB}, {L_RING}")
    if pace:
        A(f"s_waitcnt lgkmcnt(0)\nv_readfirstlane_b32 s{sLV}, v25\nds_read_b32 v25, v7 offset:{F_WIN}")
    order = sorted(range(len(wins)), key=lambda k: (abs(k - c0), -k))
    for idx, k in enumerate(order[1:]):
        A(f"s_cmp_eq_i32 s{sLV}, {k - c0}\ns_cbranch_scc1 L_ver{idx+1}")
    def version(idx, W):
        A(f"L_ver{idx}:")
        A(f"s_sub_u32 s{sT2}, s{sI}, {W-1}\nv_mov_b32 v{vCNT}, s{sT2}")
        A(f"L_vq{idx}:")
        for hq in range(unq):
            for n in range(4):
                A(f"s_waitcnt vmcnt({W-1})")
                A(f"buffer_load_dwordx4 v{16+n}, {s4(rK)}, s{sH} offen offset:{1024*n} {kvflags} lds")
                if n == 0:
                    A(f"v_max_i32 v26, v26, v{vCNT}\nv_add_u32 v{vCNT}, 4, v{vCNT}\nds_write_b32 v7, v26 offset:{F_RDY}")
            A(f"s_addk_i32 m0, 0x1000\ns_addk_i32 s{sH}, 0x1000")
        if unq < 4:
            A(f"s_and_b32 s{sT2}, s{sH}, 0x3fff\ns_cbranch_scc1 L_vq{idx}")
    version(0, wins[order[0]])
    A("L_qend:")
    A(f"s_add_u32 s{sI}, s{sI}, 16")
    next_slot(1)
    if stamps and smode == 3:
        for q in range(2):
            A(f"s_cmp_lg_u32 s{sCNT}, {32*q+15}\ns_cbranch_scc1 L_np{q}")
            stamp(4 + 2 * q, 3)
            A(f"L_np{q}:")
    A(f"s_add_u32 s{sCNT}, s{sCNT}, 1\ns_cmp_lt_u32 s{sCNT}, 64\ns_cbranch_scc1 L_tile")
    def pub(val):
        A(f"v_max_i32 v26, {val}, v26\nds_write_b32 v7, v26 offset:{F_RDY}")
    lds_wait(F_DONE, sFL, 64 - NSLOT + 1, "freew", sleep=0, cached=True, pair=True)
    if wwo <= 24:
        A("s_waitcnt vmcnt(24)"); pub(NV - 24)
    for i in range(16):
        w, h = worder[i // 4], i % 4
        A(f"s_mov_b32 m0, {L_WO + 4096*w + 1024*h}\ns_add_u32 s{sT2}, s{sH+3}, {(128*h + 16*w)*1024}")
        A(f"s_waitcnt vmcnt({wwo-1})")
        A(f"buffer_load_dwordx4 v6, {s4(rA)}, s{sT2} offen {wflags} lds")
        if (i - wwo + 1) % 8 == 0:
            pub(NV + i - wwo + 1)
    for rem in range((wwo - 1) // 4 * 4, -1, -4):
        if rem <= 16 or rem % 8 == 0:
            A(f"v_max_i32 v26, {NLD - rem}, v26\ns_waitcnt vmcnt({rem})\nds_write_b32 v7, v26 offset:{F_RDY}")
            if rem == 16:
                stamp(3)
    A("s_branch L_fin")

    for idx, k in enumerate(order[1:]):
        version(idx + 1, wins[k])
        A("s_branch L_qend")
    A("L_pace:")
    srd(rB, sDBG, 256)
    if skew is not None:
        A(f"s_cmp_lg_u32 s{sJJ}, 0\ns_cbranch_scc1 L_nosk")
        A(f"s_not_b32 s{sT0}, s{sST}\nv_mov_b32 v16, s{sT0}\ns_mov_b64 exec, 1\nbuffer_atomic_umax v16, v7, {s4(rB)}, 0 offen offset:64\ns_mov_b64 exec, -1")
        A("L_nosk:")
    make_tags()
    A(f"s_mov_b32 s{sTW}, 0")
    tail_prep()
    if pace:
        sP, sPP, sS, sD, sPGA, sOWN, sSP = sH, sH + 1, sH + 2, sH + 3, sH + 4, sH + 5, sH + 6
        lds_wait(F_QH, sMODE, 1, "qhp", sleep=8)
        A(f"s_cmp_lg_u32 s{sMODE}, 2\ns_cbranch_scc1 L_pdone")
        A(f"v_lshlrev_b32 v5, 2, v1")
        A(f"s_lshl_b32 s{sPGA}, s{sX8}, {pgs}\ns_add_u32 s{sPGA}, s{sPGA}, {WS_PG}\ns_lshl_b32 s{sOWN}, s{sJJ}, 2\ns_add_u32 s{sOWN}, s{sOWN}, s{sPGA}")
        A(f"s_mov_b32 s{sP}, 0\ns_mov_b32 s{sCNT}, 0\ns_mov_b32 s{sSP}, 0")
        A("L_pl:")
        A(f"s_mov_b32 s{sPP}, s{sP}\nds_read_b32 v16, v7 offset:{F_RDY}\ns_waitcnt lgkmcnt(0)\nv_readfirstlane_b32 s{sP}, v16")
        A(f"s_add_u32 s{sCNT}, s{sCNT}, 1\ns_cmp_gt_u32 s{sCNT}, 0x10000\ns_cbranch_scc1 L_pdone")
        A(f"s_and_b32 s{sT3}, s{sTAG}, 0xfffff800\ns_or_b32 s{sT0}, s{sT3}, s{sP}\nv_mov_b32 v16, s{sT0}")
        A(f"s_mov_b64 exec, 1\nbuffer_store_dword v16, v7, {s4(rWS)}, s{sOWN} offen\ns_mov_b64 exec, -1")
        A(f"s_cmp_ge_u32 s{sP}, {NV - endstop}\ns_cbranch_scc1 L_pdone")
        if pace == 1:
            A("s_mov_b32 exec_hi, 0")
        A(f"buffer_load_dword v17, v5, {s4(rWS)}, s{sPGA} offen sc1")
        A("s_waitcnt vmcnt(0)")
        A(f"v_xor_b32 v19, s{sT3}, v17\nv_cmp_lt_u32 vcc, 0x7ff, v19\ns_nop 0")
        if pace > 1:
            A(f"v_readlane_b32 s{sD}, v19, 32")
        for k in (8, 4, 2, 1):
            A(f"s_nop 1\nv_add_u32 v19, v19, v19 row_ror:{k}")
        A(f"s_cmp_lg_u32 vcc_lo, 0\ns_cbranch_scc1 L_pnext")
        A(f"v_readlane_b32 s{sS}, v19, 0\nv_readlane_b32 s{sT0}, v19, 16")
        A(f"s_cmp_eq_u32 s{sPP}, 0\ns_cbranch_scc1 L_pnext")
        A(f"s_add_u32 s{sS}, s{sS}, s{sT0}")
        A(f"s_add_u32 s{sT0}, s{sP}, s{sPP}\ns_lshl_b32 s{sT0}, s{sT0}, 4\ns_sub_u32 s{sT0}, s{sS}, s{sT0}")
        A(f"s_add_u32 s{sT0}, s{sT0}, {(1 << (gs - 1)) + bias}\ns_ashr_i32 s{sT0}, s{sT0}, {gs}\ns_max_i32 s{sT0}, s{sT0}, 0")
        if istep != 1:
            A(f"s_mul_i32 s{sT0}, s{sT0}, {istep}")
        if pace > 1:
            A(f"s_cmp_lt_u32 s{sD}, 0x800\ns_cselect_b32 s{sD}, s{sD}, {c0}\ns_add_u32 s{sT0}, s{sT0}, s{sD}\ns_sub_u32 s{sT0}, s{sT0}, {c0}")
        A(f"s_min_i32 s{sT0}, s{sT0}, {len(wins)-1-c0}")
        A(f"v_mov_b32 v16, s{sT0}\nds_write_b32 v7, v16 offset:{F_WIN}")
        if pace > 1:
            A(f"s_and_b32 s{sT2}, s{sCNT}, {(1 << gper) - 1}\ns_lshl_b32 s{sT2}, s{sT2}, 5\ns_add_u32 s{sT2}, s{sT2}, s{sJJ}\ns_cmp_lg_u32 s{sT2}, 31\ns_cbranch_scc1 L_pnext")
            A(f"s_cmp_eq_u32 s{sSP}, 0\ns_cselect_b32 s{sT1}, 0x1000000, 0\ns_sub_u32 s{sT0}, s{sS}, s{sSP}\ns_add_u32 s{sT0}, s{sT0}, s{sT1}\nv_mov_b32 v16, s{sT0}")
            A(f"s_mov_b64 exec, 1\nbuffer_atomic_add v16, v7, {s4(rB)}, 0 offen sc0\ns_waitcnt vmcnt(0)\nv_readfirstlane_b32 s{sT0}, v16")
            A(f"s_add_u32 s{sT1}, s{sS}, s{sSP}\ns_mul_i32 s{sT1}, s{sT1}, 7\ns_lshr_b32 s{sT1}, s{sT1}, 1\ns_add_u32 s{sT1}, s{sT1}, s{sSP}\ns_mov_b32 s{sSP}, s{sS}")
            A(f"s_sub_u32 s{sT0}, s{sT0}, 0x8000000\ns_cbranch_scc1 L_pnext")
            A(f"s_sub_u32 s{sT0}, s{sT0}, s{sT1}\ns_add_u32 s{sT0}, s{sT0}, {(1 << (gs2 + 2)) + 8 * gbias}\ns_ashr_i32 s{sT0}, s{sT0}, {gs2 + 3}")
            A(f"s_max_i32 s{sT0}, s{sT0}, {gmin}\ns_min_i32 s{sT0}, s{sT0}, {gmax}\ns_add_u32 s{sT0}, s{sT0}, {c0}\ns_or_b32 s{sT0}, s{sT0}, s{sT3}\nv_mov_b32 v16, s{sT0}")
            A(f"buffer_store_dword v16, v7, {s4(rWS)}, s{sPGA} offen offset:128")
        A("L_pnext:")
        A(f"s_mov_b64 exec, -1\ns_sleep {psleep}\ns_branch L_pl")

    A("L_pdone:")
    A("s_branch L_endgate")

    A("L_notloader:")
    A(f"s_mov_b32 s{sTW}, s{sW}\ns_cmp_eq_u32 s{sW}, 4\ns_cbranch_scc1 L_pace")
    A(f"s_cmp_eq_u32 s{sW}, 3\ns_cbranch_scc1 L_help")
    A(f"s_sub_u32 s{sC}, s{sW}, 1")
    A(f"s_cmp_eq_u32 s{sW}, 2\ns_cbranch_scc1 L_w2")
    if qtouch:
        A(f"s_lshl_b32 s{sT1}, s{sX8}, 13\ns_lshl_b32 s{sT2}, s{sJJ}, 8\ns_add_u32 s{sT1}, s{sT1}, s{sT2}\ns_add_u32 s{sT1}, s{sT1}, {WS_QX}")
        A(f"v_lshlrev_b32 v5, 2, v1\nbuffer_load_dword v17, v5, {s4(rWS)}, s{sT1} offen sc1")
    make_tags()
    A("s_branch L_qwait")
    def slice_mv(sKS, lds_base, unit0, after_read=None):
        A(f"s_lshl_b32 s{sT2}, s{sKS}, 8\nv_lshl_add_u32 v5, v2, 5, s{sT2}")
        A(f"ds_read_b128 v[20:23], v5 offset:{L_XN}\nds_read_b128 v[24:27], v5 offset:{L_XN+16}")
        A(f"v_add_u32 v6, {lds_base}, v4")
        for half in range(2):
            lds_wait(F_RDY, sFL, 8 * (unit0 + half + 1), "wsl", sleep=1)
            for i in range(8):
                A(f"ds_read_b128 {v4(64+4*i)}, v6 offset:{8192*half + 1024*i}")
            lgkm(0)
            if half == 1:
                stamp(6, 2)
                if after_read:
                    after_read()
            matvec8(64, [f"v{20+4*half+k}" for k in range(4)], 32, 40, first=(half == 0))
        reduce8(32)
        A(f"v_lshrrev_b32 v6, 4, v1\nv_lshlrev_b32 v6, 6, v6\nv_lshrrev_b32 v5, 1, v3\nv_add_u32 v6, v6, v5")
    A("L_w2:")
    A(f"s_lshr_b32 s{sT3}, s2, 6")
    A("s_waitcnt vmcnt(0)")
    stamp(4, 2)
    ln_stats(16, 28, 29, 32)
    ln_apply(16, 28, 29, 32)
    A(f"ds_write_b128 v4, v[16:19] offset:{L_XN}")
    lds_flag(F_XN)
    stamp(5, 2)
    make_tags()
    slice_mv(sT3, L_P, 0)
    sXC = sH + 4
    A(f"s_getreg_b32 s{sXC}, hwreg(HW_REG_XCC_ID, 0, 4)")
    if force:
        A(f"s_and_b32 s{sXC}, s{sJJ}, 1")
    embed(34, 32, TX2); embed(35, 33, TX2 + 1)
    A(f"v_xor_b32 v32, s{sXC}, v34\nv_xor_b32 v33, s{sXC}, v35")
    A(f"s_lshl_b32 s{sH}, s{sX8}, 13\ns_add_u32 s{sH}, s{sH}, {WS_QX}\ns_lshl_b32 s{sT2}, s{sT3}, 11\ns_add_u32 s{sT1}, s{sH}, s{sT2}")
    A(f"s_and_b32 s{sT2}, s{sJJ}, 7\ns_lshl_b32 s{sT2}, s{sT2}, 8\ns_add_u32 s{sT1}, s{sT1}, s{sT2}")
    A("s_mov_b32 exec_lo, 0x00ff00ff\ns_mov_b32 exec_hi, 0x00ff00ff")
    A(f"buffer_store_dwordx2 v[32:33], v6, {s4(rWS)}, s{sT1} offen")
    A("s_mov_b64 exec, -1")
    stamp(1)
    for k in range(4):
        A(f"v_xor_b32 v{36+k}, s{sXC}, v{TX4+k}")
    A(f"s_add_u32 s{sH+1}, s{sH}, 4096\ns_mov_b32 s{sMODE}, 2")
    if qgate:
        lds_wait(F_RDY, sFL, 8 * qgate, "qgate", sleep=2)
    A(f"s_mov_b32 s{sSPIN}, 0")
    A("L_qpoll:")
    for i in range(8):
        A(f"buffer_load_dwordx4 {v4(64+4*i)}, v4, {s4(rWS)}, s{sH+i//4} offen offset:{1024*(i%4)} sc1")
    A("s_waitcnt vmcnt(0)")
    A(f"v_xor_b32 v{vX0}, v64, v36")
    for i in range(1, 32):
        A(f"v_bitop3_b32 v{vX0}, v{vX0}, v{64+i}, v{36+i%4} bitop3:0xf6")
    A(f"v_and_b32 v{vX0}, 15, v{vX0}\nv_cmp_ne_u32 vcc, 0, v{vX0}\ns_cbranch_vccz L_qok")
    A(f"s_sleep {qsleep}\ns_add_u32 s{sSPIN}, s{sSPIN}, 1\ns_cmp_lt_u32 s{sSPIN}, {qtry}\ns_cbranch_scc1 L_qpoll")
    A(f"s_cmp_lg_u32 s{sSPIN}, {qtry}\ns_cbranch_scc1 L_qflip")
    A(f"s_xor_b32 s{sT1}, s{sT1}, {WS_QXFAR}")
    A("s_mov_b32 exec_lo, 0x00ff00ff\ns_mov_b32 exec_hi, 0x00ff00ff")
    A(f"buffer_store_dwordx2 v[34:35], v6, {s4(rWS)}, s{sT1} offen sc1")
    A("s_mov_b64 exec, -1")
    A("L_qflip:")
    A(f"s_xor_b32 s{sH}, s{sH}, {WS_QXFAR}\ns_xor_b32 s{sH+1}, s{sH+1}, {WS_QXFAR}\ns_xor_b32 s{sMODE}, s{sMODE}, 3")
    for k in range(4):
        A(f"v_xor_b32 v{36+k}, s{sXC}, v{36+k}")
    A(f"s_cmp_lt_u32 s{sSPIN}, s{sLIM}\ns_cbranch_scc1 L_qpoll")
    A("L_qok:")
    for e in range(8):
        A(f"v_add_f32 v{64+e}, v{64+e}, v{72+e}\nv_add_f32 v{80+e}, v{80+e}, v{88+e}")
    for e in range(8):
        A(f"v_add_f32 v{64+e}, v{64+e}, v{80+e}")
    for e in range(4):
        A(f"v_cvt_pk_bf16_f32 v{64+e}, v{64+2*e}, v{65+2*e}")
    A(f"v_lshrrev_b32 v6, 4, v1\nv_lshlrev_b32 v6, 7, v6\nv_and_b32 v5, 3, v1\nv_lshl_add_u32 v6, v5, 5, v6")
    A(f"v_and_b32 v5, 12, v1\nv_add_u32 v6, v6, v5")
    for e in range(4):
        A(f"ds_write_b32 v6, v{64+e} offset:{L_Q + 16*(e&1) + 512*(e>>1)}")
    lds_flag(F_QH, val=f"s{sMODE}")
    A("L_qwait:")
    vOWN, vOTH = 30, 31
    A(f"s_lshl_b32 s{sT2}, s{sC}, 2\nv_mov_b32 v{vOWN}, s{sT2}\nv_xor_b32 v{vOTH}, 4, v{vOWN}")
    vQV, vKT, vS, vT, vMAX, vAD, vKA, vPA, vDN = 32, 96, 160, 164, 172, 176, 184, 188, 189
    A("v_and_b32 v5, 3, v1\nv_lshlrev_b32 v5, 10, v5\nv_bfe_u32 v6, v1, 2, 2\nv_lshl_add_u32 v5, v6, 8, v5")
    A(f"v_lshrrev_b32 v6, 4, v1\nv_xor_b32 v6, v6, v1\nv_and_b32 v6, 15, v6\nv_lshl_add_u32 v{vKA}, v6, 4, v5")
    for n in range(1, 4):
        A(f"v_xor_b32 v{vKA+n}, {64*n}, v{vKA}")
    A(f"v_and_b32 v5, 3, v1\nv_lshlrev_b32 v5, 6, v5\nv_lshrrev_b32 v6, 4, v1\nv_lshl_add_u32 v5, v6, 4, v5")
    A(f"v_mov_b32 v29, v5")
    A(f"v_and_b32 v6, 8, v1\nv_lshl_add_u32 v5, v6, 5, v5\nv_and_b32 v6, 4, v1\nv_lshl_add_u32 v5, v6, 1, v5")
    A(f"s_lshl_b32 s{sT2}, s{sC}, 9\nv_add_u32 v{vPA}, s{sT2}, v5")
    A(f"v_mov_b32 v{vMAX}, {hex(f2u(-3e38))}")
    A(f"s_add_u32 s{sT2}, s{sC}, 2\nv_mov_b32 v{vDN}, s{sT2}")
    A("v_and_b32 v6, 3, v1\nv_lshlrev_b32 v6, 8, v6\nv_lshrrev_b32 v5, 4, v1\nv_lshl_add_u32 v6, v5, 4, v6")
    A(f"s_mov_b32 s{sFL}, 0")
    lds_wait(F_QH, sMODE, 1, "qh", sleep=1)
    stamp(2)
    for s in range(4):
        A(f"ds_read_b128 {v4(vKT+4*s)}, v6 offset:{L_Q + 64*s}")
    lgkm(0)
    for b in range(4):
        A(f"s_mov_b32 vcc_lo, {hex(0x000f000f << (4*b))}\ns_mov_b32 vcc_hi, {hex(0x000f000f << (4*b))}")
        for i in range(16):
            A(f"v_cndmask_b32 v{vQV+16*b+i}, 0, v{vKT+i}, vcc")
    A(f"s_lshl_b32 s{sLB}, s{sC}, 14\ns_lshl_b32 s{sTHR}, s{sC}, 4\ns_add_u32 s{sTHR}, s{sTHR}, {8*(U0+2)}")
    A(f"s_mov_b32 s{sCNT}, 0")
    A("L_p1:")
    for n in range(4):
        A(f"v_add_u32 v{vAD+n}, s{sLB}, v{vKA+n}")
    lds_wait(F_RDY, sFL, f"s{sTHR}", "krdy", sleep=csleep, cached=True)
    for b in range(4):
        for n in range(4):
            A(f"ds_read_b128 {v4(vKT+16*b+4*n)}, v{vAD+n} offset:{L_RING + 4096*b}")
    for b in range(4):
        lgkm(12 - 4 * b)
        if b == 3:
            A(f"ds_write_b32 v{vOWN}, v{vDN} offset:{F_DONE}")
        for n in range(4):
            c = "0" if b + n == 0 else v4(vS)
            A(f"v_mfma_f32_16x16x32_bf16 {v4(vS)}, {v4(vKT+16*b+4*n)}, {v4(vQV+16*b+4*n)}, {c}")
    A(f"v_add_u32 v{vDN}, 2, v{vDN}\nv_min_u32 v{vDN}, 32, v{vDN}")
    next_slot(2)
    A(f"s_add_u32 s{sTHR}, s{sTHR}, 32\ns_add_u32 s{sCNT}, s{sCNT}, 1\ns_nop 3")
    A(f"v_cvt_pk_bf16_f32 v{vT}, v{vS}, v{vS+1}\nv_cvt_pk_bf16_f32 v{vT+1}, v{vS+2}, v{vS+3}")
    A(f"v_max3_f32 v{vMAX}, v{vMAX}, v{vS}, v{vS+1}\nv_max3_f32 v{vMAX}, v{vMAX}, v{vS+2}, v{vS+3}")
    for j in range(2):
        A(f"v_lshlrev_b32 v{vT+2+2*j}, 16, v{vT+j}\nv_and_b32 v{vT+3+2*j}, s{sHI}, v{vT+j}")
    for i in range(4):
        A(f"v_mul_f32 v{vT+2+i}, s{sSCALE}, v{vT+2+i}")
    A(f"v_cvt_pk_bf16_f32 v{vT}, v{vT+2}, v{vT+3}\nv_cvt_pk_bf16_f32 v{vT+1}, v{vT+4}, v{vT+5}")
    A(f"ds_write_b64 v{vPA}, {v2(vT)} offset:{L_P}\nv_add_u32 v{vPA}, 1024, v{vPA}")
    A(f"s_cmp_lt_u32 s{sCNT}, 16\ns_cbranch_scc1 L_p1")
    stamp(4, 1)
    wave_red(vMAX, vX0, "v_max_f32", (8, 4))
    A(f"v_and_b32 v5, 3, v1\nv_lshlrev_b32 v5, 2, v5\nv_lshl_add_u32 v6, v{vOWN}, 2, v5\nv_xor_b32 v5, 16, v6")
    A(f"ds_write_b32 v6, v{vMAX} offset:{L_MX}")
    lds_flag(F_MX, vaddr=vOWN)
    A(f"v_subrev_u32 v{vPA}, 16384, v{vPA}")
    lds_wait(F_MX, sT0, 1, "mx", sleep=0, vaddr=vOTH)
    A(f"ds_read_b32 v{vX1}, v5 offset:{L_MX}")
    for i in range(16):
        A(f"ds_read_b64 {v2(32+2*i)}, v{vPA} offset:{L_P + 1024*i}")
    lgkm(0)
    vMN, vLSUM = 173, 174
    A(f"v_max_f32 v{vMAX}, v{vMAX}, v{vX1}")
    rnd_bf16(vMAX)
    A(f"v_mul_f32 v{vMAX}, s{sSCALE}, v{vMAX}")
    rnd_bf16(vMAX)
    A(f"v_mul_f32 v{vMN}, s{sLOG2E}, v{vMAX}\nv_mov_b32 v{vLSUM}, 0")
    for i in range(0, 16, 2):
        E = 96
        for j in range(4):
            A(f"v_lshlrev_b32 v{E+2*j}, 16, v{32+2*i+j}\nv_and_b32 v{E+2*j+1}, s{sHI}, v{32+2*i+j}")
        for j in range(8):
            A(f"v_fma_f32 v{E+j}, v{E+j}, s{sLOG2E}, -v{vMN}")
        for j in range(8):
            A(f"v_exp_f32 v{E+j}, v{E+j}")
        A("s_nop 0")
        for j in range(4):
            A(f"v_cvt_pk_bf16_f32 v{32+2*i+j}, v{E+2*j}, v{E+2*j+1}")
        A(f"ds_write_b64 v{vPA}, {v2(32+2*i)} offset:{L_P + 1024*i}\nds_write_b64 v{vPA}, {v2(34+2*i)} offset:{L_P + 1024*(i+1)}")
        for j in range(4):
            A(f"v_add_f32 v{E+j}, v{E+j}, v{E+4+j}")
        A(f"v_add_f32 v{E}, v{E}, v{E+1}\nv_add_f32 v{E+2}, v{E+2}, v{E+3}\nv_add_f32 v{vLSUM}, v{vLSUM}, v{E}\nv_add_f32 v{vLSUM}, v{vLSUM}, v{E+2}")
    wave_red(vLSUM, vX0, "v_add_f32", (8, 4))
    A(f"v_lshlrev_b32 v6, 1, v6\nv_mov_b32 v{vLSUM+1}, v{vMN}\nds_write_b64 v6, {v2(vLSUM)} offset:{L_LS}")
    lds_flag(F_PD, vaddr=vOWN)
    vO, vVF, vPF, vVA = 32, 48, 80, 184
    A("v_and_b32 v5, 12, v1\nv_lshrrev_b32 v6, 4, v1\nv_add_u32 v6, v6, v5\nv_lshlrev_b32 v6, 8, v6")
    A(f"v_lshrrev_b32 v{vX1}, 3, v1\nv_and_b32 v{vX1}, 2, v{vX1}\nv_or_b32 v5, v5, v{vX1}")
    A(f"v_bfe_u32 v{vX1}, v1, 1, 1\nv_xor_b32 v5, v5, v{vX1}\ns_lshl_b32 s{sT2}, s{sC}, 3\nv_xor_b32 v5, s{sT2}, v5")
    A(f"v_lshl_add_u32 v6, v5, 4, v6\nv_and_b32 v5, 1, v1\nv_lshl_add_u32 v{vVA}, v5, 3, v6")
    for n in range(1, 4):
        A(f"v_xor_b32 v{vVA+n}, {32*n}, v{vVA}")
    for i in range(4):
        A(f"v_mov_b32 v{vO+i}, 0")
    for i in range(32):
        A(f"v_mov_b32 v{vPF+i}, 0")
    for T in range(4):
        A(f"s_mov_b32 s{sPM+2*T}, {hex(0x000f000f << (4*T))}\ns_mov_b32 s{sPM+2*T+1}, s{sPM+2*T}")
    A(f"v_mov_b32 v{vDN}, 33\nv_mov_b32 v{vPA}, v29")
    A(f"s_mov_b32 s{sLB}, {(32 % NSLOT) * 16384}\ns_mov_b32 s{sTHR}, {8*(U0+64+1)}\ns_mov_b32 s{sCNT}, 0")
    tail_prep()
    A(f"v_lshrrev_b32 v6, 2, v1\nv_lshlrev_b32 v6, 11, v6\nv_and_b32 v5, 3, v1\nv_lshl_add_u32 v{vO1}, v5, 4, v6")
    A(f"s_lshl_b32 s{sT1}, s{sX8}, 16\ns_lshl_b32 s{sT2}, s{sC}, 15\ns_add_u32 s{sT1}, s{sT1}, s{sT2}")
    A(f"s_lshl_b32 s{sT2}, s{sJJ}, 6\ns_add_u32 s{sT1}, s{sT1}, s{sT2}\ns_add_u32 s{sT1}, s{sT1}, {WS_H1}")
    lds_wait(F_PD, sT0, 1, "pd", sleep=0, vaddr=vOTH)
    stamp(5, 1)
    vSC = 28
    A("L_p2:")
    for n in range(4):
        A(f"v_add_u32 v{vAD+n}, s{sLB}, v{vVA+n}")
    A(f"s_cmp_lg_u32 s{sCNT}, {prept}\ns_cbranch_scc1 L_nosc")
    lds_wait(F_SC, sT0, 1, "sc", sleep=1)
    A(f"v_and_b32 v5, 3, v1\nv_lshlrev_b32 v5, 2, v5\nds_read_b32 v{vSC}, v5 offset:{L_SC}")
    A("L_nosc:")
    for T in range(4):
        A(f"s_mov_b64 exec, {s2(sPM+2*T)}")
        for ks in range(2):
            A(f"ds_read_b128 {v4(vPF+16*ks+4*T)}, v{vPA} offset:{L_P + 256*ks}")
    A("s_mov_b64 exec, -1")
    for ks in range(2):
        lds_wait(F_RDY, sFL, f"s{sTHR}", "vrdy", sleep=csleep, cached=True)
        for T in range(4):
            for ih in range(2):
                A(f"ds_read_b64_tr_b16 {v2(vVF+16*ks+4*T+2*ih)}, v{vAD+T} offset:{L_RING + 8192*ks + 4096*ih}")
        A(f"s_add_u32 s{sTHR}, s{sTHR}, 8")
        if ks == 1:
            next_slot(1)
            A(f"s_add_u32 s{sCNT}, s{sCNT}, 1\nv_add_u32 v{vPA}, 512, v{vPA}")
        for T in range(4):
            lgkm(6 - 2 * T)
            A(f"v_mfma_f32_16x16x32_bf16 {v4(vO)}, {v4(vVF+16*ks+4*T)}, {v4(vPF+16*ks+4*T)}, {v4(vO)}")
    A(f"ds_write_b32 v{vOWN}, v{vDN} offset:{F_DONE}\nv_add_u32 v{vDN}, 1, v{vDN}")
    A(f"s_cmp_lt_u32 s{sCNT}, 32\ns_cbranch_scc1 L_p2")
    stamp(3)
    A(f"s_cmp_eq_u32 s{sMODE}, 2\ns_nop 2")
    for r in range(4):
        A(f"v_mul_f32 v{vO+r}, v{vO+r}, v{vSC}")
    for r in range(4):
        embed(vO + r, vO + r, TX4 + r)
    A(f"s_cbranch_scc0 L_h1far\nbuffer_store_dwordx4 {v4(vO)}, v{vO1}, {s4(rWS)}, s{sT1} offen\ns_branch L_tail")
    A(f"L_h1far:\nbuffer_store_dwordx4 {v4(vO)}, v{vO1}, {s4(rWS)}, s{sT1} offen sc1\ns_branch L_tail")

    A("L_help:")
    srd(rA, sX, 1024)
    vG, vXP = 56, 58
    A(f"s_cmp_ge_i32 s{sF}, 0\ns_cbranch_scc1 L_h3f")
    A(f"s_and_b32 s{sT3}, s{sSUB}, 3")
    make_tags()
    lds_wait(F_XN, sT0, 1, "xn", sleep=2)
    slice_mv(sT3, L_GU, 2, after_read=lambda: lds_flag(F_GUP))
    embed(32, 32, TX2); embed(33, 33, TX2 + 1)
    lds_wait(F_QH, sMODE, 1, "qh3", sleep=4)
    A(f"s_lshl_b32 s{sT0}, s{sCB}, 11\ns_add_u32 s{sT0}, s{sT0}, {WS_G1}\ns_lshl_b32 s{sT1}, s{sSUB}, 8\ns_add_u32 s{sT1}, s{sT1}, s{sT0}")
    if skip & 4: A("s_branch L_hstat")
    A("s_mov_b32 exec_lo, 0x00ff00ff\ns_mov_b32 exec_hi, 0x00ff00ff")
    store2(f"buffer_store_dwordx2 v[32:33], v6, {s4(rWS)}, s{sT1} offen",
           f"s_cmp_lt_u32 s{sJJ}, {24 if nb is None else 32}\ns_cselect_b32 s{sT2}, s{sMODE}, 1\ns_cmp_eq_u32 s{sT2}, 2")
    A("s_mov_b64 exec, -1")
    stamp(1)
    lds_wait(F_RDY, sFL, 8 * g2gate, "g2gate", sleep=16)
    for i in range(8):
        A(f"ds_read_b128 {v4(64+4*i)}, v4 offset:{L_WD + 1024*i}")
    poll([f"buffer_load_dwordx4 {v4(32+4*i)}, v4, {s4(rWS)}, s{sT0} offen offset:{1024*i} sc1" for i in range(2)],
         chk4([32, 36]), "g1poll", sleep=32)
    for e in range(8):
        swap_red(32 + e, vX0, "v_add_f32")
        rnd_bf16(32 + e)
    for e in range(4):
        sigmoid(32 + e, 32 + e)
        rnd_bf16(32 + e)
        A(f"v_mul_f32 v{32+e}, v{32+e}, v{36+e}")
    A("v_cvt_pk_bf16_f32 v32, v32, v33\nv_cvt_pk_bf16_f32 v33, v34, v35")
    A("v_and_b32 v5, 3, v1\nv_lshlrev_b32 v5, 5, v5\nv_and_b32 v6, 12, v1\nv_add_u32 v5, v5, v6\nv_lshlrev_b32 v6, 4, v2")
    A(f"ds_write_b32 v5, v32 offset:{L_HB}\nds_write_b32 v5, v33 offset:{L_HB+16}\nds_read_b128 v[20:23], v6 offset:{L_HB}")
    lgkm(0)
    matvec8(64, [f"v{20+k}" for k in range(4)], 32, 40)
    reduce8(32)
    A(f"v_lshrrev_b32 v6, 4, v1\nv_lshlrev_b32 v6, 3, v6\nv_lshl_add_u32 v6, v3, 1, v6\nv_lshlrev_b32 v5, 2, v1")
    A(f"ds_write_b64 v6, v[32:33] offset:{L_HB}\nds_read_b32 v32, v5 offset:{L_HB}")
    A(f"v_and_b32 v5, 7, v1\nv_lshlrev_b32 v5, 2, v5\nv_lshrrev_b32 v33, v5, s{sTAG}\nv_and_b32 v33, 15, v33")
    A(f"v_lshrrev_b32 v6, 4, v1\nv_lshlrev_b32 v6, 11, v6\nv_and_b32 v5, 15, v1\nv_lshl_add_u32 v6, v5, 2, v6")
    A(f"s_lshl_b32 s{sT1}, s{sSUB}, 13\ns_lshl_b32 s{sT2}, s{sCB}, 6\ns_add_u32 s{sT1}, s{sT1}, s{sT2}\ns_add_u32 s{sT1}, s{sT1}, {WS_GL}")
    lgkm(0)
    embed(32, 32, 33)
    if not skip & 1:
        A(f"buffer_store_dword v32, v6, {s4(rWS)}, s{sT1} offen sc1")
    A("s_branch L_hstat")
    A("L_h3f:")
    make_tags()
    lds_flag(F_GUP)
    if skip & 2: A("s_branch L_hstat")
    lds_wait(F_RDY, sFL, 8 * g3gate, "g3gate", sleep=16)
    A(f"s_mov_b32 s{sT0}, s{sF}")
    A(f"v_and_b32 v6, 3, v1\nv_lshlrev_b32 v6, 3, v6\nv_lshrrev_b32 v5, 5, v1\nv_lshl_add_u32 v6, v5, 2, v6\ns_lshl_b32 s{sT1}, s{sT0}, 5")
    A(f"buffer_load_dword v{vXP}, v6, {s4(rA)}, s{sT1} offen")
    A(f"s_lshl_b32 s{sH}, s{sT0}, 11\ns_add_u32 s{sH}, s{sH}, {WS_GL}")
    A(f"v_min_u32 v6, 47, v1\nv_and_b32 v6, 60, v6\nv_and_b32 v5, 3, v1\nv_or_b32 v6, v6, v5\nv_lshlrev_b32 v6, 4, v6")
    poll([f"buffer_load_dwordx4 v[64:67], v4, {s4(rWS)}, s{sH} offen sc1",
          f"buffer_load_dwordx4 v[68:71], v6, {s4(rWS)}, s{sH} offen offset:1024 sc1"], chk4([64, 68]), "gpoll", sleep=64)
    A("s_mov_b32 exec_hi, 0xffff")
    for e in range(4):
        A(f"v_add_f32 v{64+e}, v{64+e}, v{68+e}")
    A("s_mov_b64 exec, -1")
    red4(64)
    for e in range(2):
        rnd_bf16(64 + e)
        sigmoid(68, 64 + e)
        A(f"v_mul_f32 v{vG+e}, v{64+e}, v68")
        rnd_bf16(vG + e)
    A("L_hstat:")
    stamp(2)
    lds_wait(F_PD, sT0, 1, "pdh", sleep=16, pair=True)
    lds_wait(F_QH, sMODE, 1, "qh4", sleep=4)
    A(f"v_and_b32 v5, 3, v1\nv_lshlrev_b32 v5, 3, v5")
    A(f"ds_read_b64 v[32:33], v5 offset:{L_LS}\nds_read_b32 v34, v5 offset:{L_LS+32}")
    lgkm(0)
    A(f"v_add_f32 v32, v32, v34\nv_log_f32 v32, v32\nv_mov_b32 v35, s{sTAG}\nv_add_f32 v34, v32, v33")
    A(f"s_lshl_b32 s{sT0}, s{sX8}, 10\ns_add_u32 s{sT0}, s{sT0}, {WS_LS}\ns_lshl_b32 s{sT1}, s{sJJ}, 5\ns_add_u32 s{sT1}, s{sT1}, s{sT0}")
    A("s_mov_b64 exec, 15")
    store2(f"buffer_store_dwordx2 v[34:35], v5, {s4(rWS)}, s{sT1} offen", f"s_cmp_eq_u32 s{sMODE}, 2")
    A("s_mov_b64 exec, -1")
    lds_wait(F_RDY, sFL, 8 * lsgate, "lsgate", sleep=16)
    A(f"v_lshlrev_b32 v6, 3, v1")
    poll([f"buffer_load_dwordx2 {v2(36+2*i)}, v6, {s4(rWS)}, s{sT0} offen offset:{512*i} sc1" for i in range(2)],
         [(37, f"s{sTAG}"), (39, f"s{sTAG}")], "lspoll", sleep=16, full=True)
    A("v_max_f32 v40, v36, v38")
    wave_red(40, vX0, "v_max_f32", (8, 4))
    A("v_sub_f32 v36, v36, v40\nv_sub_f32 v38, v38, v40\nv_exp_f32 v36, v36\nv_exp_f32 v38, v38\nv_sub_f32 v33, v33, v40\nv_add_f32 v36, v36, v38")
    wave_red(36, vX0, "v_add_f32", (8, 4))
    A("v_exp_f32 v33, v33\nv_rcp_f32 v36, v36\nv_lshrrev_b32 v5, 1, v5\nv_mul_f32 v33, v33, v36")
    A(f"ds_write_b32 v5, v33 offset:{L_SC}")
    lds_flag(F_SC)
    stamp(3)
    tail_prep()
    if dry:
        A(f"s_mov_b32 s{rWS+2}, 0\ns_mov_b32 s{sLIM}, 0\ns_branch L_tail")
        A("L_dryret:")
        A(f"s_mov_b64 exec, -1\ns_mov_b32 s{rWS+2}, {hex(WS_SIZE)}\ns_mov_b32 s{sLIM}, 0x40000")
    if touch:
        lds_wait(F_RDY, sFL, NV - touch, "touch", sleep=4)
        A(f"s_lshl_b32 s{sT1}, s{sX8}, 16\ns_lshl_b32 s{sT2}, s{sJJ}, 11\ns_add_u32 s{sT1}, s{sT1}, s{sT2}\ns_add_u32 s{sT1}, s{sT1}, {WS_H1}")
        A(f"v_lshlrev_b32 v5, 5, v1\nbuffer_load_dword v40, v5, {s4(rWS)}, s{sT1} offen sc1")
        if wtouch:
            srd(rA, sWO, hex(4096 * 512 * 2))
            A(f"s_lshl_b32 s{sT1}, s{sX8}, 19\nbuffer_load_dword v41, v7, {s4(rA)}, s{sT1} offen")
    A("L_endgate:")

    A("L_tail:")
    stamp(4, 0)
    lds_wait(F_RDY, sFL, f"s{sWT}", "wordy", sleep=0)
    for n in range(16):
        A(f"ds_read_b32 v{vWT+n}, v{vWA} offset:{L_WO + 256*n}")
    def wo_pairs():
        lgkm(0)
        for u in range(8):
            A(f"v_perm_b32 v{vWO+2*u}, v{vWT+1+2*u}, v{vWT+2*u}, s{sSELL}\nv_perm_b32 v{vWO+1+2*u}, v{vWT+1+2*u}, v{vWT+2*u}, s{sSELH}")
    if pp1:
        def ld1(r):
            for i in range(2):
                A(f"buffer_load_dwordx4 {v4(r+4*i)}, v4, {s4(rWS)}, s{sI1} offen offset:{1024*i} sc1")
        def fin1(r):
            for e in range(4):
                A(f"v_add_f32 v{40+e}, v{r+e}, v{r+4+e}")
        poll2(ld1, 2, 144, 152, fin1, "h1p", wo_pairs)
        stamp(5, 0)
    else:
        poll([f"buffer_load_dwordx4 {v4(40+4*i)}, v4, {s4(rWS)}, s{sI1} offen offset:{1024*i} sc1" for i in range(2)],
             chk4([40, 44]), "h1poll", sleep=h1sleep, mid=wo_pairs)
        stamp(5, 0)
        for e in range(4):
            A(f"v_add_f32 v{40+e}, v{40+e}, v{44+e}")
    red4(40)
    A(f"v_cvt_pk_bf16_f32 v40, v40, v41\ns_nop 0")
    for u in range(8):
        A(f"v_readlane_b32 s{sH+u}, v40, {32*(u&1) + (u>>1)}")
    for u in range(8):
        for z in range(2):
            c = "0" if u == 0 else f"v{48+z}"
            A(f"v_dot2_f32_bf16 v{48+z}, s{sH+u}, v{vWO+2*u+z}, {c}")
    if dry:
        A(f"s_cmp_eq_u32 s{sLIM}, 0\ns_cbranch_scc1 L_t2b\ns_cmp_lg_u32 s{sTW}, 3")
    else:
        A(f"s_cmp_lg_u32 s{sTW}, 3\ns_nop 1")
    A(f"ds_write_b64 v{vRW}, v[48:49] offset:{L_RED}")
    A("s_waitcnt lgkmcnt(0)\ns_barrier\ns_cbranch_scc1 L_fin")
    A("L_t2b:")
    for p in range(3):
        A(f"ds_read_b64 {v2(42+2*p)}, v{vRR} offset:{L_RED + 512*p}")
    lgkm(0)
    A("v_add_f32 v48, v48, v42\nv_add_f32 v49, v49, v43\nv_add_f32 v44, v44, v46\nv_add_f32 v45, v45, v47\nv_add_f32 v48, v48, v44\nv_add_f32 v49, v49, v45")
    embed(48, 48, TX2); embed(49, 49, TX2 + 1)
    A(f"buffer_store_dwordx2 v[48:49], v{vO2}, {s4(rWS)}, s{sO2} offen sc1")
    if dry:
        A(f"s_cmp_eq_u32 s{sLIM}, 0\ns_cbranch_scc1 L_t3b")
    if wb:
        A(f"s_cmp_lg_u32 s{sJJ}, 0\ns_cbranch_scc1 L_nowb\ns_waitcnt vmcnt(0)\nbuffer_wbl2 sc1\nL_nowb:")
    A(f"s_cmp_lt_i32 s{sF}, 0\ns_cbranch_scc1 L_fin")
    A("L_t3b:")
    A(f"s_and_b32 s{sT0}, s{sF}, 31")
    A(f"s_lshr_b32 s{sT1}, s{sT0}, 1\ns_lshl_b32 s{sT1}, s{sT1}, 13\ns_and_b32 s{sT2}, s{sT0}, 1\ns_lshl_b32 s{sT2}, s{sT2}, 6\ns_add_u32 s{sT1}, s{sT1}, s{sT2}")
    A(f"s_add_u32 s{sT1}, s{sT1}, {WS_H2}\ns_add_u32 s{sT2}, s{sT1}, 4096\ns_lshl_b32 s{sT3}, s{sT0}, 5")
    A(f"v_lshrrev_b32 v55, 2, v1\nv_lshlrev_b32 v55, 7, v55\nv_and_b32 v5, 3, v1\nv_lshl_add_u32 v55, v5, 4, v55")
    A(f"v_lshlrev_b32 v5, 1, v5\nv_lshrrev_b32 v6, 5, v1\nv_add_u32 v5, v5, v6\nv_lshlrev_b32 v52, 2, v5")
    A(f"v_lshlrev_b32 v50, 16, v{vXP}\nv_and_b32 v51, s{sHI}, v{vXP}")
    A(f"s_min_u32 s{sH}, s{sLIM}, 1024")
    srd(rA, sOUT, f"s{sH}")
    if ackwait:
        A("s_waitcnt vmcnt(0)")
    if presleep:
        A(f"s_sleep {presleep}")
    if pp2:
        def ld2(r):
            for i in range(4):
                A(f"buffer_load_dwordx4 {v4(r+4*i)}, v55, {s4(rWS)}, s{sT1+i//2} offen offset:{2048*(i%2)} sc1")
        def fin2(r):
            for e in range(4):
                A(f"v_add_f32 v{64+e}, v{r+e}, v{r+4+e}\nv_add_f32 v{72+e}, v{r+8+e}, v{r+12+e}")
        poll2(ld2, 4, 96, 112, fin2, "h2p", lambda: A(f"s_sleep {pp2}"))
        stamp(6, 0)
    else:
        poll([f"buffer_load_dwordx4 {v4(64+4*i)}, v55, {s4(rWS)}, s{sT1+i//2} offen offset:{2048*(i%2)} sc1" for i in range(4)],
             chk4([64, 68, 72, 76]), "h2poll", sleep=h2sleep)
        stamp(6, 0)
        for e in range(4):
            A(f"v_add_f32 v{64+e}, v{64+e}, v{68+e}\nv_add_f32 v{72+e}, v{72+e}, v{76+e}")
    for e in range(4):
        A(f"v_add_f32 v{64+e}, v{64+e}, v{72+e}")
    red4(64)
    A(f"v_cvt_pk_bf16_f32 v64, v64, v65\nv_and_b32 v65, s{sHI}, v64\nv_lshlrev_b32 v64, 16, v64")
    A(f"v_mul_f32 v64, v64, v{vG}\nv_mul_f32 v65, v65, v{vG+1}")
    A(f"v_cvt_pk_bf16_f32 v64, v64, v65\nv_and_b32 v65, s{sHI}, v64\nv_lshlrev_b32 v64, 16, v64")
    A("v_add_f32 v64, v64, v50\nv_add_f32 v65, v65, v51\nv_cvt_pk_bf16_f32 v64, v64, v65")
    A("s_mov_b32 exec_lo, 15\ns_mov_b32 exec_hi, 15")
    A(f"buffer_store_dword v64, v52, {s4(rA)}, s{sT3} offen {outflags}")
    if dry:
        A(f"s_cmp_eq_u32 s{sLIM}, 0\ns_cbranch_scc1 L_dryret")
    A(f"s_cmp_lg_u32 s{sT0}, 0\ns_cbranch_scc1 L_fin")
    A(f"s_mov_b64 exec, 1\nv_mov_b32 v65, s{sTAG}")
    A(f"buffer_store_dword v65, v7, {s4(rWS)}, 0 offen offset:{WS_EPOCH} {epflags}")
    A("L_fin:")
    if stamps:
        A("s_mov_b64 exec, -1")
        A("s_waitcnt vmcnt(0)")
        stamp(7)
        A("s_waitcnt lgkmcnt(0)")
        if skew is not None:
            if span is None:
                A(f"s_cmp_lg_u32 s{sW}, 4\ns_cbranch_scc1 L_skout\ns_cmp_lg_u32 s2, {skew}\ns_cbranch_scc1 L_skout")
            else:
                A(f"s_cmp_lg_u32 s{sW}, {span[0]}\ns_cbranch_scc1 L_skout")
                if span[0] == 0:
                    A(f"s_load_dwordx2 s[44:45], s[0:1], 80\ns_waitcnt lgkmcnt(0)\ns_sleep 127")
            srd(rB, 44, 256)
            A(f"buffer_load_dword v16, v7, {s4(rB)}, 0 offen offset:64 sc1\ns_waitcnt vmcnt(0)\nv_readfirstlane_b32 s{sT2}, v16\ns_nop 3")
            if span is None:
                A(f"s_not_b32 s{sT0}, s{sT2}\ns_sub_u32 s{sT2}, s{sST}, s{sT0}\ns_mul_i32 s{sT2}, s{sT2}, 20\ns_min_u32 s{sT2}, s{sT2}, 100000")
            else:
                A(f"s_not_b32 s{sT0}, s{sT2}\ns_sub_u32 s{sT2}, s{sST+2*span[1]}, s{sT0}\ns_sub_u32 s{sT2}, s{sT2}, 3000\ns_mul_i32 s{sT2}, s{sT2}, 10\ns_min_u32 s{sT2}, s{sT2}, 100000")
            A(f"s_add_u32 s{sT2}, s{sT2}, s{sT0}\ns_add_u32 s{sT2}, s{sT2}, 10000")
            A("L_skpad:")
            A(f"s_memrealtime {s2(sH)}\ns_waitcnt lgkmcnt(0)\ns_sub_u32 s{sT3}, s{sH}, s{sT2}\ns_cmp_lt_i32 s{sT3}, 0\ns_cbranch_scc1 L_skpad")
            A("L_skout:")
        if diag is not None:
            dw, dwg, di, dj, mult = diag
            A(f"s_cmp_lg_u32 s{sW}, {dw}\ns_cbranch_scc1 L_padout")
            if dwg >= 0:
                A(f"s_cmp_lg_u32 s2, {dwg}\ns_cbranch_scc1 L_padout")
            A(f"s_cmp_eq_u32 s{sST+2*di}, 0\ns_cbranch_scc1 L_padout")
            A(f"s_sub_u32 s{sT2}, s{sST+2*di}, s{sST+2*dj}\ns_mul_i32 s{sT2}, s{sT2}, {mult}\ns_min_u32 s{sT2}, s{sT2}, 100000")
            A(f"s_add_u32 s{sT2}, s{sT2}, s{sST}\ns_add_u32 s{sT2}, s{sT2}, 10000")
            A("L_pad:")
            A(f"s_memrealtime {s2(sH)}\ns_waitcnt lgkmcnt(0)\ns_sub_u32 s{sT3}, s{sH}, s{sT2}\ns_cmp_lt_i32 s{sT3}, 0\ns_cbranch_scc1 L_pad")
            A("L_padout:")
        if pad is not None:
            A(f"s_cmp_eq_u32 s{sST+2*pad}, 0\ns_cbranch_scc1 L_padout")
            A(f"s_add_u32 s{sT2}, s{sST+2*pad}, 10000")
            A("L_pad:")
            A(f"s_memrealtime {s2(sH)}\ns_waitcnt lgkmcnt(0)\ns_sub_u32 s{sT3}, s{sH}, s{sT2}\ns_cmp_lt_i32 s{sT3}, 0\ns_cbranch_scc1 L_pad")
            A("L_padout:")
        for i in range(8):
            A(f"v_mov_b32 v{96+i}, s{sST+2*i}")
        A(f"s_mul_i32 s{sT1}, s2, 5\ns_add_u32 s{sT1}, s{sT1}, s{sW}\ns_lshl_b32 s{sT1}, s{sT1}, 5\ns_add_u32 s{sT1}, s{sT1}, {WS_STAMP}")
        A("s_mov_b64 exec, 1")
        A(f"buffer_store_dwordx4 v[96:99], v7, {s4(rWS)}, s{sT1} offen")
        A(f"buffer_store_dwordx4 v[100:103], v7, {s4(rWS)}, s{sT1} offen offset:16")
    A("L_end:")
    A("s_endpgm")

    out = HEADER
    out += f"; @launch grid=(256,1,1) block=(320,1,1) lds={LDS_BYTES}\n"
    out += '.amdgcn_target "amdgcn-amd-amdhsa--gfx950"\n.text\n'
    out += f".globl {KNAME}_kernel\n.p2align 8\n.type {KNAME}_kernel,@function\n"
    out += "\n".join(A.L) + "\n"
    out += f""".section .rodata,"a"
.p2align 6
.amdhsa_kernel {KNAME}_kernel
  .amdhsa_next_free_vgpr 216
  .amdhsa_next_free_sgpr 102
  .amdhsa_accum_offset 216
  .amdhsa_group_segment_fixed_size 0
  .amdhsa_kernarg_size 96
  .amdhsa_user_sgpr_count 2
  .amdhsa_user_sgpr_kernarg_segment_ptr 1
  .amdhsa_system_sgpr_workgroup_id_x 1
.end_amdhsa_kernel
"""
    return out


if __name__ == "__main__":
    kw = json.loads(sys.argv[2]) if len(sys.argv) > 2 else {}
    open(sys.argv[1], "w").write(gen(**kw))
```

```python
import sys, json, struct

KNAME = "recurrent_scan__gqa_block_cached__glu_gated_glu__decode"
HEADER = open("cdna_kernels/" + KNAME + ".s.ref").read().split("; Override launch")[0]

def f2u(x):
    return struct.unpack("<I", struct.pack("<f", x))[0]

LOG2E = 1.4426950408889634
WS_EPOCH = 0x0
WS_LS = 0x2000
WS_PG = 0x8000
WS_GP = 0x5000
WS_QX = 0x10000
WS_QXFAR = 0x100000
WS_G1 = 0x20000
WS_GL = 0x30000
WS_H1 = 0x40000
WS_H2 = 0xC0000
WS_STAMP = 0x1000000
WS_SIZE = 0x20000000
L_Q = 0
L_FLAG = 1024
F_RDY = L_FLAG
F_GUP = L_FLAG + 4
F_DONE = L_FLAG + 8
F_QH = L_FLAG + 16
F_XN = L_FLAG + 20
F_MX = L_FLAG + 24
F_PD = L_FLAG + 32
F_SC = L_FLAG + 40
F_WIN = L_FLAG + 44
L_MX = 1152
L_LS = 1216
L_SC = 1280
L_HB = 1536
L_RED = 2048
L_XN = L_RED
L_P = 4096
L_WD = 20480
L_RING = 28672
NSLOT = 8
L_WO = L_RING
LDS_BYTES = L_RING + NSLOT * 16384
U0 = 5

sFL = 3
sMODE, sLIM, sI1, sO2 = 14, 15, 24, 25
sWT = 20
sF = 83
sTW = 82
sPM = 48
sX, sK, sV, sWQ, sWO, sBX, sWG, sWU, sWD, sOUT, sDBG, sWS = 4, 6, 8, 10, 12, 14, 16, 18, 20, 22, 24, 26
rK, rV, rWS, rA, rB, rC, rD = 28, 32, 36, 40, 44, 48, 52
sW, sX8, sJJ, sCB, sSUB = 56, 57, 58, 59, 60
sC, sTHR, sCNT, sTAG = 61, 62, 63, 64
sSELL, sSELH, sSCALE, sLOG2E, sHI = 65, 66, 67, 68, 69
sT0, sT1, sT2, sT3 = 70, 71, 72, 73
sH = 74
sM = 82
sSPIN = 84
sLB = 85
sST = 86
TX4 = 8; TX2 = 12; vX0 = 14; vX1 = 15
vWO, vWT, vRW, vRR, vO2, vO1, vWA = 192, 128, 208, 209, 210, 211, 212


class G:
    def __init__(self):
        self.L = []
        self.n = 0
    def __call__(self, s):
        for line in s.strip("\n").split("\n"):
            self.L.append("    " + line.strip() if not line.strip().endswith(":") else line.strip())
    def label(self, base):
        self.n += 1
        return f"L_{base}_{self.n}"


def v4(r):
    return f"v[{r}:{r+3}]"
def v2(r):
    return f"v[{r}:{r+1}]"
def s4(r):
    return f"s[{r}:{r+3}]"
def s2(r):
    return f"s[{r}:{r+1}]"


def gen(kvflags="nt", wflags="nt", win=20, stamps=False, pad=None, qsleep=4, qgate=0, g2gate=24, g3gate=48,
        lsgate=100, h1sleep=0, h2sleep=0, csleep=0, lprio=0, smode=0, skip=0, prog=False, win2=0, last=6, force=0, qtry=96, outflags='', diag=None, prept=30, dry=False,
        pace=1, wins=(20, 22, 24, 28), c0=0, gs=8, endstop=48, psleep=8, bias=0, scal=False, gper=0, gbias=0, pld='sc1', unq=2, gs2=8, gmin=0, gmax=2, istep=1, epflags='', skew=None, span=None, wo_=None, we_=None, boost=(0, 2, 4, 8), pp1=0, pp2=0, wwo=24, wtouch=True, worder=(1, 2, 0, 3), nb=(2, 4, 4, 4, 3, 4, 3, 4), pgs=12, wb=0, presleep=0, touch=64, ackwait=True, lateat=0, latebias=0, cpf=True, qtouch=True):
    A = G()
    if wo_ is not None:
        wins = [w + b for b in boost for w in (wo_, we_)]
        istep = 2
    if span is not None:
        skew = -1; stamps = True; smode = 9

    def srd(r, base, size):
        A(f"s_mov_b32 s{r}, s{base}\ns_mov_b32 s{r+1}, s{base+1}\ns_mov_b32 s{r+2}, {size}\ns_mov_b32 s{r+3}, 0x20000")

    def stamp(i, mode=None):
        if stamps and (mode is None or mode == smode):
            A(f"s_memrealtime {s2(sST + 2 * i)}")

    def lgkm(n):
        A(f"s_waitcnt lgkmcnt({n})")

    def swap_red(r, t, op, kinds=("16", "32")):
        for k in kinds:
            A(f"v_mov_b32 v{t}, v{r}\ns_nop 1\nv_permlane{k}_swap_b32 v{r}, v{t}\ns_nop 1\n{op} v{r}, v{r}, v{t}")

    def wave_red(r, t, op, rors):
        for k in rors:
            A(f"s_nop 1\n{op} v{r}, v{r}, v{r} row_ror:{k}")
        swap_red(r, t, op)

    def rnd_bf16(r):
        A(f"v_cvt_pk_bf16_f32 v{r}, v{r}, v{r}\nv_and_b32 v{r}, 0xffff0000, v{r}")

    def ln_stats(X, mean, rstd, F):
        D = F + 8
        for k in range(4):
            A(f"v_lshlrev_b32 v{F+2*k}, 16, v{X+k}\nv_and_b32 v{F+2*k+1}, s{sHI}, v{X+k}")
        A(f"v_add_f32 v{mean}, v{F}, v{F+1}")
        for k in range(2, 8):
            A(f"v_add_f32 v{mean}, v{mean}, v{F+k}")
        wave_red(mean, vX0, "v_add_f32", (8, 4, 2, 1))
        A(f"v_mul_f32 v{mean}, {hex(f2u(1/512))}, v{mean}")
        for k in range(8):
            A(f"v_sub_f32 v{D+k}, v{F+k}, v{mean}")
        A(f"v_mul_f32 v{rstd}, v{D}, v{D}")
        for k in range(1, 8):
            A(f"v_fmac_f32 v{rstd}, v{D+k}, v{D+k}")
        wave_red(rstd, vX0, "v_add_f32", (8, 4, 2, 1))
        A(f"v_mul_f32 v{rstd}, {hex(f2u(1/512))}, v{rstd}")
        rnd_bf16(mean); rnd_bf16(rstd)
        A(f"v_add_f32 v{rstd}, {hex(f2u(1e-5))}, v{rstd}")
        rnd_bf16(rstd)
        A(f"v_sqrt_f32 v{rstd}, v{rstd}\ns_nop 0")
        rnd_bf16(rstd)
        A(f"v_rcp_f32 v{rstd}, v{rstd}")

    def ln_apply(X, mean, rstd, D):
        for k in range(4):
            A(f"v_lshlrev_b32 v{D+2*k}, 16, v{X+k}\nv_and_b32 v{D+2*k+1}, s{sHI}, v{X+k}")
        for k in range(8):
            A(f"v_sub_f32 v{D+k}, v{D+k}, v{mean}")
        for k in range(4):
            A(f"v_cvt_pk_bf16_f32 v{X+k}, v{D+2*k}, v{D+2*k+1}")
        for k in range(4):
            A(f"v_lshlrev_b32 v{D+2*k}, 16, v{X+k}\nv_and_b32 v{D+2*k+1}, s{sHI}, v{X+k}")
        for k in range(8):
            A(f"v_mul_f32 v{D+k}, v{D+k}, v{rstd}")
        for k in range(4):
            A(f"v_cvt_pk_bf16_f32 v{X+k}, v{D+2*k}, v{D+2*k+1}")

    def matvec8(W, xs, acc, tmp, first=True):
        for j in range(4):
            for u in range(4):
                A(f"v_perm_b32 v{tmp+2*u}, v{W+(2*j+1)*4+u}, v{W+(2*j)*4+u}, s{sSELL}")
                A(f"v_perm_b32 v{tmp+2*u+1}, v{W+(2*j+1)*4+u}, v{W+(2*j)*4+u}, s{sSELH}")
            for e in range(8):
                c = "0" if (j == 0 and first) else f"v{acc+e}"
                A(f"v_dot2_f32_bf16 v{acc+e}, {xs[j]}, v{tmp+e}, {c}")
        A("s_nop 2")

    def reduce8(acc):
        A("s_nop 1")
        for e in range(4):
            A(f"v_permlane32_swap_b32 v{acc+e}, v{acc+4+e}")
        A("s_nop 1")
        for e in range(4):
            A(f"v_add_f32 v{acc+e}, v{acc+e}, v{acc+4+e}")
        A("s_nop 1")
        for e in range(2):
            A(f"v_permlane16_swap_b32 v{acc+e}, v{acc+2+e}")
        A("s_nop 1")
        for e in range(2):
            A(f"v_add_f32 v{acc+e}, v{acc+e}, v{acc+2+e}")
        A("s_nop 0")
        for e in range(2):
            A(f"v_add_f32 v{acc+e}, v{acc+e}, v{acc+e} row_ror:8")
        A("s_nop 0")

    def red4(a):
        A("s_nop 1")
        A(f"v_permlane32_swap_b32 v{a}, v{a+2}\nv_permlane32_swap_b32 v{a+1}, v{a+3}")
        A("s_nop 0")
        A(f"v_add_f32 v{a}, v{a}, v{a+2}\nv_add_f32 v{a+1}, v{a+1}, v{a+3}")
        for k in (8, 4):
            A("s_nop 0")
            A(f"v_add_f32 v{a}, v{a}, v{a} row_ror:{k}\nv_add_f32 v{a+1}, v{a+1}, v{a+1} row_ror:{k}")
        A(f"v_mov_b32 v{a+2}, v{a}\nv_mov_b32 v{a+3}, v{a+1}\ns_nop 0")
        A(f"v_permlane16_swap_b32 v{a}, v{a+2}\nv_permlane16_swap_b32 v{a+1}, v{a+3}")
        A("s_nop 0")
        A(f"v_add_f32 v{a}, v{a}, v{a+2}\nv_add_f32 v{a+1}, v{a+1}, v{a+3}")

    def lds_wait(addr, sreg, thr, name, sleep=1, vaddr=7, cached=False, pair=False):
        top = A.label(name); done = A.label(name + "_ok")
        if cached:
            A(f"s_cmp_ge_i32 s{sreg}, {thr}\ns_cbranch_scc1 {done}")
        A(f"s_mov_b32 s{sSPIN}, 0")
        A(f"{top}:")
        if pair:
            A(f"ds_read_b64 {v2(vX0)}, v{vaddr} offset:{addr}\ns_waitcnt lgkmcnt(0)\nv_min_i32 v{vX0}, v{vX0}, v{vX1}\ns_nop 0")
        else:
            A(f"ds_read_b32 v{vX0}, v{vaddr} offset:{addr}\ns_waitcnt lgkmcnt(0)")
        A(f"v_readfirstlane_b32 s{sreg}, v{vX0}")
        A(f"s_add_u32 s{sSPIN}, s{sSPIN}, 1")
        A(f"s_cmp_ge_i32 s{sreg}, {thr}\ns_cbranch_scc1 {done}")
        if sleep:
            A(f"s_sleep {sleep}")
        A(f"s_cmp_lt_u32 s{sSPIN}, 0x100000\ns_cbranch_scc1 {top}")
        A(f"{done}:")

    def lds_flag(addr, val=1, vaddr=7):
        A(f"v_mov_b32 v{vX0}, {val}\nds_write_b32 v{vaddr}, v{vX0} offset:{addr}")

    def make_tags():
        A(f"s_waitcnt lgkmcnt(0)\ns_add_u32 s{sTAG}, s{sTAG}, 0x9E3779B1")
        A(f"v_and_b32 v5, 1, v1\nv_lshlrev_b32 v5, 4, v5\nv_lshrrev_b32 v5, v5, s{sTAG}")
        for k in range(4):
            A(f"v_bfe_u32 v{TX4+k}, v5, {4*k}, 4")
        A(f"v_and_b32 v5, 3, v1\nv_lshlrev_b32 v5, 3, v5\nv_lshrrev_b32 v5, v5, s{sTAG}")
        for k in range(2):
            A(f"v_bfe_u32 v{TX2+k}, v5, {4*k}, 4")

    def embed(dst, src, tag):
        A(f"v_and_or_b32 v{dst}, v{src}, -16, v{tag}")

    def poll(loads, checks, name, sleep=0, full=False, mid=None):
        top = A.label(name); done = A.label(name + "_ok")
        A(f"s_mov_b32 s{sSPIN}, 0")
        if mid:
            chk = A.label(name + "_chk")
            for l in loads:
                A(l)
            mid()
            A(f"s_branch {chk}")
        A(f"{top}:")
        for l in loads:
            A(l)
        if mid:
            A(f"{chk}:")
        A("s_waitcnt vmcnt(0)")
        A(f"v_xor_b32 v{vX0}, {checks[0][1]}, v{checks[0][0]}")
        for r, t in checks[1:]:
            A(f"v_bitop3_b32 v{vX0}, v{vX0}, v{r}, {t} bitop3:0xf6")
        if not full:
            A(f"v_and_b32 v{vX0}, 15, v{vX0}\nv_cmp_ne_u32 vcc, 0, v{vX0}")
        else:
            A(f"v_cmp_ne_u32 vcc, 0, v{vX0}")
        A(f"s_cbranch_vccz {done}")
        if sleep:
            A(f"s_sleep {sleep}")
        A(f"s_add_u32 s{sSPIN}, s{sSPIN}, 1\ns_cmp_lt_u32 s{sSPIN}, s{sLIM}\ns_cbranch_scc1 {top}")
        A(f"{done}:")

    def poll2(ld, n, ra, rb, fin, name, mid):
        top = A.label(name); oka = A.label(name + "_a"); okb = A.label(name + "_b"); done = A.label(name + "_ok")
        def check(r, ok):
            A(f"s_waitcnt vmcnt({n})")
            ch = chk4([r + 4 * i for i in range(n)])
            A(f"v_xor_b32 v{vX0}, {ch[0][1]}, v{ch[0][0]}")
            for rr, t in ch[1:]:
                A(f"v_bitop3_b32 v{vX0}, v{vX0}, v{rr}, {t} bitop3:0xf6")
            A(f"v_and_b32 v{vX0}, 15, v{vX0}\nv_cmp_ne_u32 vcc, 0, v{vX0}\ns_cbranch_vccz {ok}")
        A(f"s_mov_b32 s{sSPIN}, 0")
        ld(ra)
        mid()
        A(f"{top}:")
        ld(rb)
        check(ra, oka)
        ld(ra)
        check(rb, okb)
        A(f"s_add_u32 s{sSPIN}, s{sSPIN}, 1\ns_cmp_lt_u32 s{sSPIN}, s{sLIM}\ns_cbranch_scc1 {top}")
        A(f"{okb}:")
        fin(rb)
        A(f"s_branch {done}")
        A(f"{oka}:")
        fin(ra)
        A(f"{done}:")

    def store2(line, cond_scc1_near):
        far = A.label("far"); done = A.label("st")
        A(cond_scc1_near)
        A(f"s_cbranch_scc0 {far}\n{line}\ns_branch {done}\n{far}:\n{line} sc1\n{done}:")

    def chk4(regs):
        return [(r + k, f"v{TX4+k}") for r in regs for k in range(4)]

    def next_slot(step):
        A(f"s_add_u32 s{sLB}, s{sLB}, {step*16384}\ns_and_b32 s{sLB}, s{sLB}, {NSLOT*16384-1}")

    def tail_prep():
        A(f"s_lshl_b32 s{sT2}, s{sTW}, 12\nv_lshl_add_u32 v{vWA}, v1, 2, s{sT2}")
        tabw = sum((4 * (worder.index(w) + 1)) << (8 * w) for w in range(4))
        A(f"s_lshl_b32 s{sT2}, s{sTW}, 3\ns_lshr_b32 s{sWT}, {hex(tabw)}, s{sT2}\ns_and_b32 s{sWT}, s{sWT}, 0xff\ns_add_u32 s{sWT}, s{sWT}, {8*U0+1024}")
        A(f"s_lshl_b32 s{sI1}, s{sX8}, 16\ns_and_b32 s{sT2}, s{sJJ}, 28\ns_add_u32 s{sT2}, s{sT2}, s{sTW}\ns_lshl_b32 s{sT2}, s{sT2}, 11")
        A(f"s_add_u32 s{sI1}, s{sI1}, s{sT2}\ns_add_u32 s{sI1}, s{sI1}, {WS_H1}")
        A(f"v_and_b32 v{vRW}, 0xff, v0\nv_lshlrev_b32 v{vRW}, 3, v{vRW}\nv_lshlrev_b32 v{vRR}, 3, v1")
        A(f"v_and_b32 v5, 15, v1\nv_lshlrev_b32 v5, 3, v5\nv_lshrrev_b32 v6, 4, v1\nv_lshl_add_u32 v{vO2}, v6, 13, v5")
        A(f"s_and_b32 s{sO2}, s{sJJ}, 3\ns_lshl_b32 s{sO2}, s{sO2}, 15\ns_lshl_b32 s{sT2}, s{sX8}, 10\ns_add_u32 s{sO2}, s{sO2}, s{sT2}")
        A(f"s_lshr_b32 s{sT2}, s{sJJ}, 2\ns_lshl_b32 s{sT2}, s{sT2}, 7\ns_add_u32 s{sO2}, s{sO2}, s{sT2}\ns_add_u32 s{sO2}, s{sO2}, {WS_H2}")

    def sigmoid(dst, src):
        A(f"v_mul_f32 v{dst}, s{sLOG2E}, v{src}\nv_exp_f32 v{dst}, -v{dst}\ns_nop 0\nv_add_f32 v{dst}, 1.0, v{dst}\nv_rcp_f32 v{dst}, v{dst}\ns_nop 0")

    A(f"{KNAME}_kernel:")
    A("s_cmpk_ge_u32 s2, 0x100\ns_cbranch_scc1 L_end")
    stamp(0)
    A(f"s_load_dwordx16 s[4:19], s[0:1], 0\ns_load_dwordx8 s[20:27], s[0:1], 64")
    A(f"v_and_b32 v1, 63, v0\nv_readfirstlane_b32 s{sW}, v0")
    A(f"s_and_b32 s{sX8}, s2, 7\ns_lshr_b32 s{sJJ}, s2, 3")
    A("v_lshlrev_b32 v4, 4, v1")
    A("v_lshrrev_b32 v2, 3, v1\nv_and_b32 v3, 0x70, v4")
    A(f"s_mov_b32 s{rA+3}, 0x20000\ns_lshr_b32 s{sW}, s{sW}, 6\ns_cbranch_scc1 L_e1")
    A(f"s_and_b32 s{sT1}, s{sJJ}, 7\ns_lshl3_add_u32 s{sT1}, s{sX8}, s{sT1}\ns_lshl_b32 s{sT1}, s{sT1}, 7")
    A(f"s_lshr_b32 s{sT2}, s2, 6\ns_lshl_b32 s{sT2}, s{sT2}, 20\ns_add_u32 s{sT1}, s{sT1}, s{sT2}")
    A(f"v_lshl_add_u32 v5, v2, 17, v3\ns_mov_b32 s{rA+2}, {hex(512 * 4096 * 2)}\ns_movk_i32 m0, {L_P}")
    A(f"s_waitcnt lgkmcnt(0)\ns_mov_b64 {s2(rA)}, {s2(sWQ)}")
    stamp(4, 4)
    A("L_wq:")
    A(f"buffer_load_dwordx4 v5, {s4(rA)}, s{sT1} offen {wflags} lds")
    A(f"s_addk_i32 m0, 0x400\ns_addk_i32 s{sT1}, 0x2000\ns_cmpk_lt_u32 m0, {L_P + 16384}\ns_cbranch_scc1 L_wq")
    A("s_branch L_e2")
    A("L_e1:")
    if cpf:
        A(f"s_cmp_lg_u32 s{sW}, 1\ns_cbranch_scc1 L_e1b")
        A(f"s_getpc_b64 {s2(sT0)}")
        A("L_pc:")
        A(f"s_mul_i32 s{sT2}, s{sJJ}, 768\nv_mad_u32_u24 v5, v1, 12, s{sT2}\nv_min_u32 v5, L_end-L_pc, v5")
        A(f"global_load_dword v16, v5, {s2(sT0)}")
        A("L_e1b:")
    A(f"s_cmp_lg_u32 s{sW}, 2\ns_cbranch_scc1 L_e2")
    A(f"s_movk_i32 s{rA+2}, 0x400\ns_waitcnt lgkmcnt(0)\ns_mov_b64 {s2(rA)}, {s2(sX)}")
    A(f"buffer_load_dwordx4 v[16:19], v4, {s4(rA)}, 0 offen")
    A("L_e2:")
    A(f"v_and_b32 v6, 15, v1\nv_cmp_eq_u32 vcc, {(F_DONE + 4 - L_FLAG) // 4}, v6\nv_lshlrev_b32 v6, 2, v6\nv_mov_b32 v7, 0")
    A(f"v_cndmask_b32 v5, 0, 1, vcc\nds_write_b32 v6, v5 offset:{L_FLAG}")
    if nb is None:
        A(f"s_mul_i32 s{sCB}, s{sX8}, 3\ns_lshr_b32 s{sT0}, s{sJJ}, 3\ns_add_u32 s{sCB}, s{sCB}, s{sT0}\ns_and_b32 s{sSUB}, s{sJJ}, 7")
        A(f"s_lshr_b32 s{sT0}, s{sX8}, 1\ns_add_u32 s{sT0}, s{sT0}, 24\ns_and_b32 s{sT1}, s{sX8}, 1\ns_lshl_b32 s{sT1}, s{sT1}, 2\ns_add_u32 s{sT1}, s{sT1}, s{sSUB}")
        A(f"s_cmp_ge_u32 s{sJJ}, 24\ns_cselect_b32 s{sCB}, s{sT0}, s{sCB}\ns_cselect_b32 s{sSUB}, s{sT1}, s{sSUB}")
        A(f"s_lshl_b32 s{sF}, s{sX8}, 2\ns_add_u32 s{sF}, s{sF}, s{sJJ}\ns_sub_u32 s{sF}, s{sF}, 28\ns_cmp_lt_u32 s{sJJ}, 28\ns_cselect_b32 s{sF}, -1, s{sF}")
    else:
        assert sum(nb) == 28
        free = [sum(4 - n for n in nb[:x]) for x in range(8)]
        tab = sum((nb[x] & 7 | (free[x] & 7) << 4) << (8 * x) for x in range(8))
        A(f"s_mov_b32 s{sT0}, {hex(tab & 0xffffffff)}\ns_mov_b32 s{sT1}, {hex(tab >> 32)}\ns_lshl_b32 s{sT2}, s{sX8}, 3\ns_lshr_b64 {s2(sT0)}, {s2(sT0)}, s{sT2}")
        A(f"s_bfe_u32 s{sT1}, s{sT0}, 0x30004\ns_and_b32 s{sT0}, s{sT0}, 7\ns_lshr_b32 s{sT2}, s{sJJ}, 3\ns_and_b32 s{sSUB}, s{sJJ}, 7")
        A(f"s_lshl2_add_u32 s{sCB}, s{sX8}, s{sT2}\ns_sub_u32 s{sCB}, s{sCB}, s{sT1}")
        A(f"s_sub_u32 s{sT1}, s{sT1}, s{sT0}\ns_lshl3_add_u32 s{sF}, s{sT1}, s{sJJ}\ns_cmp_lt_u32 s{sT2}, s{sT0}\ns_cselect_b32 s{sF}, -1, s{sF}")
    A(f"s_mov_b32 s{sSELL}, 0x05040100\ns_mov_b32 s{sSELH}, 0x07060302")
    A(f"s_mov_b32 s{sSCALE}, {hex(f2u(128 ** -0.5))}\ns_mov_b32 s{sLOG2E}, {hex(f2u(LOG2E))}\ns_mov_b32 s{sHI}, 0xffff0000")
    if stamps:
        for i in range(1, 8):
            if not (smode == 4 and i == 4):
                A(f"s_mov_b64 {s2(sST+2*i)}, 0")
    A("s_waitcnt lgkmcnt(0)")
    A("s_barrier")
    stamp(5, 5)
    A(f"s_load_dword s{sTAG}, {s2(sWS)}, {WS_EPOCH}")
    A(f"s_mov_b32 s{sLIM}, 0x40000\ns_mov_b32 s{sMODE}, 1")
    srd(rWS, sWS, hex(WS_SIZE))
    if skew is not None:
        srd(rB, sDBG, 256)
    A(f"s_cmp_lg_u32 s{sW}, 0\ns_cbranch_scc1 L_notloader")

    D = win
    first_k = (D - 1) % 8
    vCNT = 24
    cnt = [0]
    DD = [D]
    def ld(line, static=False):
        i = cnt[0]
        if not static or i >= D:
            A(f"s_waitcnt vmcnt({DD[0]-1})")
        if static and i == D - 1: stamp(5, 4)
        if static and i == D: stamp(6, 4)
        A(line)
        if i % 8 == first_k and (not static or i >= D - 1 + 8):
            A(f"ds_write_b32 v7, v{vCNT} offset:{F_RDY}\nv_add_u32 v{vCNT}, 8, v{vCNT}")
        cnt[0] += 1
    if lprio:
        A(f"s_setprio {lprio}")
    A(f"v_mov_b32 v{vCNT}, 8")
    cnt[0] = 16
    assert D >= 16
    A(f"s_cmp_lt_i32 s{sF}, 0\ns_cselect_b32 s{sT3}, {hex(512 * 1792 * 2)}, 0")
    srd(rD, sWD, f"s{sT3}")
    A(f"s_cmp_lt_u32 s{sSUB}, 4\ns_cselect_b32 s{rB}, s{sWG}, s{sWU}\ns_cselect_b32 s{rB+1}, s{sWG+1}, s{sWU+1}")
    A(f"s_mov_b32 s{rB+2}, s{sT3}\ns_mov_b32 s{rB+3}, 0x20000")
    A(f"s_and_b32 s{sT1}, s{sSUB}, 3\ns_mul_i32 s{sT1}, s{sT1}, {128*3584}\ns_lshl_b32 s{sT2}, s{sCB}, 7\ns_add_u32 s{sT1}, s{sT1}, s{sT2}")
    A(f"v_mul_u32_u24 v6, {16*3584}, v2\nv_add_u32 v6, v6, v3")
    L_GU = L_RING + (NSLOT - 1) * 16384
    for i in range(16):
        A(f"s_mov_b32 m0, {L_GU + 1024*i}")
        A(f"s_add_u32 s{sT2}, s{sT1}, {3584*i}")
        ld(f"buffer_load_dwordx4 v6, {s4(rB)}, s{sT2} offen {wflags} lds", True)
    A(f"s_lshl_b32 s{sT1}, s{sCB}, 16\ns_lshl_b32 s{sT2}, s{sSUB}, 7\ns_add_u32 s{sT1}, s{sT1}, s{sT2}")
    A(f"v_lshl_add_u32 v5, v2, 13, v3")
    for i in range(8):
        if i % 4 == 0:
            A(f"s_mov_b32 m0, {L_WD + 1024*i}")
            A(f"s_add_u32 s{sT2}, s{sT1}, {1024*i}")
        ld(f"buffer_load_dwordx4 v5, {s4(rD)}, s{sT2} offen offset:{1024*(i%4)} {wflags} lds", True)
    srd(rA, sWO, hex(4096 * 512 * 2))
    A(f"s_lshl_b32 s{sT1}, s{sX8}, 9\ns_lshr_b32 s{sT2}, s{sJJ}, 4\ns_lshl_b32 s{sT2}, s{sT2}, 6\ns_add_u32 s{sT1}, s{sT1}, s{sT2}")
    A(f"s_and_b32 s{sT2}, s{sJJ}, 12\ns_add_u32 s{sT1}, s{sT1}, s{sT2}\ns_lshl_b32 s{sT1}, s{sT1}, 10")
    A(f"s_and_b32 s{sT2}, s{sJJ}, 3\ns_lshl_b32 s{sT2}, s{sT2}, 8\ns_add_u32 s{sT1}, s{sT1}, s{sT2}")
    A(f"v_lshrrev_b32 v6, 4, v1\nv_lshlrev_b32 v6, 10, v6\nv_and_b32 v25, 15, v1\nv_lshl_add_u32 v6, v25, 4, v6")
    A(f"s_mov_b32 s{sH+3}, s{sT1}")
    assert cnt[0] == 8 * U0 and D + 7 <= 8 * U0
    stamp(1)
    A(f"s_lshl_b32 s{sT0}, s{sX8}, 24\ns_lshl_b32 s{sT1}, s{sJJ}, 19\ns_add_u32 s{sT0}, s{sT0}, s{sT1}")
    A(f"s_add_u32 s{rK}, s{sK}, s{sT0}\ns_addc_u32 s{rK+1}, s{sK+1}, 0\ns_mov_b32 s{rK+2}, 0x80000\ns_mov_b32 s{rK+3}, 0x20000")
    A(f"s_add_u32 s{rV}, s{sV}, s{sT0}\ns_addc_u32 s{rV+1}, s{sV+1}, 0\ns_mov_b32 s{rV+2}, 0x80000\ns_mov_b32 s{rV+3}, 0x20000")
    A("v_lshrrev_b32 v5, 4, v1\nv_lshlrev_b32 v5, 6, v5\nv_xor_b32 v16, v4, v5")
    A("v_and_b32 v5, 16, v1\nv_lshlrev_b32 v5, 1, v5\nv_xor_b32 v20, v4, v5")
    for n in range(1, 4):
        A(f"v_xor_b32 v{16+n}, {16*n}, v16\nv_xor_b32 v{20+n}, {64*n}, v20")
    sI, sLV = sH + 1, sH + 2
    NV = 8 * U0 + 1024
    NLD = NV + 16
    if not pace:
        wins = (win,); c0 = 0
    A(f"s_mov_b32 s{sCNT}, 0\ns_mov_b32 s{sLB}, 0\ns_mov_b32 s{sFL}, 0\ns_mov_b32 s{sH}, 0\ns_mov_b32 s{sI}, {8*U0}\nv_mov_b32 v25, 0\nv_subrev_u32 v26, 8, v{vCNT}")
    A("L_tile:")
    A(f"s_cmp_lg_u32 s{sCNT}, 32\ns_cbranch_scc1 L_nosw")
    stamp(4, 1); stamp(5, 3)
    A(f"s_mov_b64 {s2(rK)}, {s2(rV)}\ns_mov_b32 s{sH}, 0")
    for n in range(4):
        A(f"v_mov_b32 v{16+n}, v{20+n}")
    A("L_nosw:")
    A(f"s_sub_u32 s{sTHR}, s{sCNT}, {NSLOT-1}")
    A(f"s_cmp_lg_u32 s{sTHR}, 0\ns_cbranch_scc1 L_nogup")
    lds_wait(F_GUP, sT2, 1, "gup", sleep=0)
    stamp(2)
    A("L_nogup:")
    lds_wait(F_DONE, sFL, f"s{sTHR}", "free", sleep=0, cached=True, pair=True)
    A(f"s_add_u32 m0, s{sLB}, {L_RING}")
    if pace:
        A(f"s_waitcnt lgkmcnt(0)\nv_readfirstlane_b32 s{sLV}, v25\nds_read_b32 v25, v7 offset:{F_WIN}")
    order = sorted(range(len(wins)), key=lambda k: (abs(k - c0), -k))
    for idx, k in enumerate(order[1:]):
        A(f"s_cmp_eq_i32 s{sLV}, {k - c0}\ns_cbranch_scc1 L_ver{idx+1}")
    def version(idx, W):
        A(f"L_ver{idx}:")
        fr = int(round((W - int(W)) * 4)); W = int(W)
        extra = {0: (0, 0, 0, 0), 1: (0, 1, 0, 0), 2: (0, 1, 0, 1), 3: (0, 1, 1, 1)}[fr]
        A(f"s_sub_u32 s{sT2}, s{sI}, {W-1}\nv_mov_b32 v{vCNT}, s{sT2}")
        A(f"L_vq{idx}:")
        for hq in range(unq):
            for n in range(4):
                A(f"s_waitcnt vmcnt({W-1+extra[n]})")
                A(f"buffer_load_dwordx4 v{16+n}, {s4(rK)}, s{sH} offen offset:{1024*n} {kvflags} lds")
                if n == 0:
                    A(f"v_max_i32 v26, v26, v{vCNT}\nv_add_u32 v{vCNT}, 4, v{vCNT}\nds_write_b32 v7, v26 offset:{F_RDY}")
            A(f"s_addk_i32 m0, 0x1000\ns_addk_i32 s{sH}, 0x1000")
        if unq < 4:
            A(f"s_and_b32 s{sT2}, s{sH}, 0x3fff\ns_cbranch_scc1 L_vq{idx}")
    version(0, wins[order[0]])
    A("L_qend:")
    A(f"s_add_u32 s{sI}, s{sI}, 16")
    next_slot(1)
    if stamps and smode == 3:
        for q in range(2):
            A(f"s_cmp_lg_u32 s{sCNT}, {32*q+15}\ns_cbranch_scc1 L_np{q}")
            stamp(4 + 2 * q, 3)
            A(f"L_np{q}:")
    A(f"s_add_u32 s{sCNT}, s{sCNT}, 1\ns_cmp_lt_u32 s{sCNT}, 64\ns_cbranch_scc1 L_tile")
    def pub(val):
        A(f"v_max_i32 v26, {val}, v26\nds_write_b32 v7, v26 offset:{F_RDY}")
    lds_wait(F_DONE, sFL, 64 - NSLOT + 1, "freew", sleep=0, cached=True, pair=True)
    if wwo <= 24:
        A("s_waitcnt vmcnt(24)"); pub(NV - 24)
    for i in range(16):
        w, h = worder[i // 4], i % 4
        A(f"s_mov_b32 m0, {L_WO + 4096*w + 1024*h}\ns_add_u32 s{sT2}, s{sH+3}, {(128*h + 16*w)*1024}")
        A(f"s_waitcnt vmcnt({wwo-1})")
        A(f"buffer_load_dwordx4 v6, {s4(rA)}, s{sT2} offen {wflags} lds")
        if (i - wwo + 1) % 8 == 0:
            pub(NV + i - wwo + 1)
    for rem in range((wwo - 1) // 4 * 4, -1, -4):
        if rem <= 16 or rem % 8 == 0:
            A(f"v_max_i32 v26, {NLD - rem}, v26\ns_waitcnt vmcnt({rem})\nds_write_b32 v7, v26 offset:{F_RDY}")
            if rem == 16:
                stamp(3)
    A("s_branch L_fin")

    for idx, k in enumerate(order[1:]):
        version(idx + 1, wins[k])
        A("s_branch L_qend")
    A("L_pace:")
    srd(rB, sDBG, 256)
    if skew is not None:
        A(f"s_cmp_lg_u32 s{sJJ}, 0\ns_cbranch_scc1 L_nosk")
        A(f"s_not_b32 s{sT0}, s{sST}\nv_mov_b32 v16, s{sT0}\ns_mov_b64 exec, 1\nbuffer_atomic_umax v16, v7, {s4(rB)}, 0 offen offset:64\ns_mov_b64 exec, -1")
        A("L_nosk:")
    make_tags()
    A(f"s_mov_b32 s{sTW}, 0")
    tail_prep()
    if pace:
        sP, sPP, sS, sD, sPGA, sOWN, sSP = sH, sH + 1, sH + 2, sH + 3, sH + 4, sH + 5, sH + 6
        sPAR = sH + 7
        if wo_ is not None:
            A(f"s_getreg_b32 s{sPAR}, hwreg(HW_REG_XCC_ID, 0, 1)\ns_xor_b32 s{sPAR}, s{sPAR}, 1")
            lds_flag(F_WIN, val=f"s{sPAR}")
        lds_wait(F_QH, sMODE, 1, "qhp", sleep=8)
        A(f"s_cmp_lg_u32 s{sMODE}, 2\ns_cbranch_scc1 L_pdone")
        A(f"v_lshlrev_b32 v5, 2, v1")
        A(f"s_lshl_b32 s{sPGA}, s{sX8}, {pgs}\ns_add_u32 s{sPGA}, s{sPGA}, {WS_PG}\ns_lshl_b32 s{sOWN}, s{sJJ}, 2\ns_add_u32 s{sOWN}, s{sOWN}, s{sPGA}")
        A(f"s_mov_b32 s{sP}, 0\ns_mov_b32 s{sCNT}, 0\ns_mov_b32 s{sSP}, 0")
        A("L_pl:")
        A(f"s_mov_b32 s{sPP}, s{sP}\nds_read_b32 v16, v7 offset:{F_RDY}\ns_waitcnt lgkmcnt(0)\nv_readfirstlane_b32 s{sP}, v16")
        A(f"s_add_u32 s{sCNT}, s{sCNT}, 1\ns_cmp_gt_u32 s{sCNT}, 0x10000\ns_cbranch_scc1 L_pdone")
        A(f"s_and_b32 s{sT3}, s{sTAG}, 0xfffff800\ns_or_b32 s{sT0}, s{sT3}, s{sP}\nv_mov_b32 v16, s{sT0}")
        A(f"s_mov_b64 exec, 1\nbuffer_store_dword v16, v7, {s4(rWS)}, s{sOWN} offen\ns_mov_b64 exec, -1")
        A(f"s_cmp_ge_u32 s{sP}, {NV - endstop}\ns_cbranch_scc1 L_pdone")
        if pace == 1:
            A("s_mov_b32 exec_hi, 0")
        A(f"buffer_load_dword v17, v5, {s4(rWS)}, s{sPGA} offen sc1")
        A("s_waitcnt vmcnt(0)")
        A(f"v_xor_b32 v19, s{sT3}, v17\nv_cmp_lt_u32 vcc, 0x7ff, v19\ns_nop 0")
        if pace > 1:
            A(f"v_readlane_b32 s{sD}, v19, 32")
        for k in (8, 4, 2, 1):
            A(f"s_nop 1\nv_add_u32 v19, v19, v19 row_ror:{k}")
        A(f"s_cmp_lg_u32 vcc_lo, 0\ns_cbranch_scc1 L_pnext")
        A(f"v_readlane_b32 s{sS}, v19, 0\nv_readlane_b32 s{sT0}, v19, 16")
        A(f"s_cmp_eq_u32 s{sPP}, 0\ns_cbranch_scc1 L_pnext")
        A(f"s_add_u32 s{sS}, s{sS}, s{sT0}")
        A(f"s_add_u32 s{sT0}, s{sP}, s{sPP}\ns_lshl_b32 s{sT0}, s{sT0}, 4\ns_sub_u32 s{sT0}, s{sS}, s{sT0}")
        A(f"s_add_u32 s{sT0}, s{sT0}, {(1 << (gs - 1)) + bias}\ns_ashr_i32 s{sT0}, s{sT0}, {gs}\ns_max_i32 s{sT0}, s{sT0}, 0")
        if istep != 1:
            A(f"s_mul_i32 s{sT0}, s{sT0}, {istep}")
        if pace > 1:
            A(f"s_cmp_lt_u32 s{sD}, 0x800\ns_cselect_b32 s{sD}, s{sD}, {c0}\ns_add_u32 s{sT0}, s{sT0}, s{sD}\ns_sub_u32 s{sT0}, s{sT0}, {c0}")
        if wo_ is not None:
            A(f"s_min_i32 s{sT0}, s{sT0}, {len(wins)-2}\ns_add_u32 s{sT0}, s{sT0}, s{sPAR}")
        else:
            A(f"s_min_i32 s{sT0}, s{sT0}, {len(wins)-1-c0}")
        A(f"v_mov_b32 v16, s{sT0}\nds_write_b32 v7, v16 offset:{F_WIN}")
        if pace > 1:
            A(f"s_and_b32 s{sT2}, s{sCNT}, {(1 << gper) - 1}\ns_lshl_b32 s{sT2}, s{sT2}, 5\ns_add_u32 s{sT2}, s{sT2}, s{sJJ}\ns_cmp_lg_u32 s{sT2}, 31\ns_cbranch_scc1 L_pnext")
            A(f"s_cmp_eq_u32 s{sSP}, 0\ns_cselect_b32 s{sT1}, 0x1000000, 0\ns_sub_u32 s{sT0}, s{sS}, s{sSP}\ns_add_u32 s{sT0}, s{sT0}, s{sT1}\nv_mov_b32 v16, s{sT0}")
            A(f"s_mov_b64 exec, 1\nbuffer_atomic_add v16, v7, {s4(rB)}, 0 offen sc0\ns_waitcnt vmcnt(0)\nv_readfirstlane_b32 s{sT0}, v16")
            A(f"s_add_u32 s{sT1}, s{sS}, s{sSP}\ns_mul_i32 s{sT1}, s{sT1}, 7\ns_lshr_b32 s{sT1}, s{sT1}, 1\ns_add_u32 s{sT1}, s{sT1}, s{sSP}\ns_mov_b32 s{sSP}, s{sS}")
            A(f"s_sub_u32 s{sT0}, s{sT0}, 0x8000000\ns_cbranch_scc1 L_pnext")
            A(f"s_sub_u32 s{sT0}, s{sT0}, s{sT1}\ns_add_u32 s{sT0}, s{sT0}, {(1 << (gs2 + 2)) + 8 * gbias}\ns_ashr_i32 s{sT0}, s{sT0}, {gs2 + 3}")
            A(f"s_max_i32 s{sT0}, s{sT0}, {gmin}\ns_min_i32 s{sT0}, s{sT0}, {gmax}\ns_add_u32 s{sT0}, s{sT0}, {c0}\ns_or_b32 s{sT0}, s{sT0}, s{sT3}\nv_mov_b32 v16, s{sT0}")
            A(f"buffer_store_dword v16, v7, {s4(rWS)}, s{sPGA} offen offset:128")
        A("L_pnext:")
        A(f"s_mov_b64 exec, -1\ns_sleep {psleep}\ns_branch L_pl")

    A("L_pdone:")
    A("s_branch L_endgate")

    A("L_notloader:")
    A(f"s_mov_b32 s{sTW}, s{sW}\ns_cmp_eq_u32 s{sW}, 4\ns_cbranch_scc1 L_pace")
    A(f"s_cmp_eq_u32 s{sW}, 3\ns_cbranch_scc1 L_help")
    A(f"s_sub_u32 s{sC}, s{sW}, 1")
    A(f"s_cmp_eq_u32 s{sW}, 2\ns_cbranch_scc1 L_w2")
    if qtouch:
        A(f"s_lshl_b32 s{sT1}, s{sX8}, 13\ns_lshl_b32 s{sT2}, s{sJJ}, 8\ns_add_u32 s{sT1}, s{sT1}, s{sT2}\ns_add_u32 s{sT1}, s{sT1}, {WS_QX}")
        A(f"v_lshlrev_b32 v5, 2, v1\nbuffer_load_dword v17, v5, {s4(rWS)}, s{sT1} offen sc1")
    make_tags()
    A("s_branch L_qwait")
    def slice_mv(sKS, lds_base, unit0, after_read=None):
        A(f"s_lshl_b32 s{sT2}, s{sKS}, 8\nv_lshl_add_u32 v5, v2, 5, s{sT2}")
        A(f"ds_read_b128 v[20:23], v5 offset:{L_XN}\nds_read_b128 v[24:27], v5 offset:{L_XN+16}")
        A(f"v_add_u32 v6, {lds_base}, v4")
        for half in range(2):
            lds_wait(F_RDY, sFL, 8 * (unit0 + half + 1), "wsl", sleep=1)
            for i in range(8):
                A(f"ds_read_b128 {v4(64+4*i)}, v6 offset:{8192*half + 1024*i}")
            lgkm(0)
            if half == 1:
                stamp(6, 2)
                if after_read:
                    after_read()
            matvec8(64, [f"v{20+4*half+k}" for k in range(4)], 32, 40, first=(half == 0))
        reduce8(32)
        A(f"v_lshrrev_b32 v6, 4, v1\nv_lshlrev_b32 v6, 6, v6\nv_lshrrev_b32 v5, 1, v3\nv_add_u32 v6, v6, v5")
    A("L_w2:")
    A(f"s_lshr_b32 s{sT3}, s2, 6")
    A("s_waitcnt vmcnt(0)")
    stamp(4, 2)
    ln_stats(16, 28, 29, 32)
    ln_apply(16, 28, 29, 32)
    A(f"ds_write_b128 v4, v[16:19] offset:{L_XN}")
    lds_flag(F_XN)
    stamp(5, 2)
    make_tags()
    slice_mv(sT3, L_P, 0)
    sXC = sH + 4
    A(f"s_getreg_b32 s{sXC}, hwreg(HW_REG_XCC_ID, 0, 4)")
    if force:
        A(f"s_and_b32 s{sXC}, s{sJJ}, 1")
    embed(34, 32, TX2); embed(35, 33, TX2 + 1)
    A(f"v_xor_b32 v32, s{sXC}, v34\nv_xor_b32 v33, s{sXC}, v35")
    A(f"s_lshl_b32 s{sH}, s{sX8}, 13\ns_add_u32 s{sH}, s{sH}, {WS_QX}\ns_lshl_b32 s{sT2}, s{sT3}, 11\ns_add_u32 s{sT1}, s{sH}, s{sT2}")
    A(f"s_and_b32 s{sT2}, s{sJJ}, 7\ns_lshl_b32 s{sT2}, s{sT2}, 8\ns_add_u32 s{sT1}, s{sT1}, s{sT2}")
    A("s_mov_b32 exec_lo, 0x00ff00ff\ns_mov_b32 exec_hi, 0x00ff00ff")
    A(f"buffer_store_dwordx2 v[32:33], v6, {s4(rWS)}, s{sT1} offen")
    A("s_mov_b64 exec, -1")
    stamp(1)
    for k in range(4):
        A(f"v_xor_b32 v{36+k}, s{sXC}, v{TX4+k}")
    A(f"s_add_u32 s{sH+1}, s{sH}, 4096\ns_mov_b32 s{sMODE}, 2")
    if qgate:
        lds_wait(F_RDY, sFL, 8 * qgate, "qgate", sleep=2)
    A(f"s_mov_b32 s{sSPIN}, 0")
    A("L_qpoll:")
    for i in range(8):
        A(f"buffer_load_dwordx4 {v4(64+4*i)}, v4, {s4(rWS)}, s{sH+i//4} offen offset:{1024*(i%4)} sc1")
    A("s_waitcnt vmcnt(0)")
    A(f"v_xor_b32 v{vX0}, v64, v36")
    for i in range(1, 32):
        A(f"v_bitop3_b32 v{vX0}, v{vX0}, v{64+i}, v{36+i%4} bitop3:0xf6")
    A(f"v_and_b32 v{vX0}, 15, v{vX0}\nv_cmp_ne_u32 vcc, 0, v{vX0}\ns_cbranch_vccz L_qok")
    A(f"s_sleep {qsleep}\ns_add_u32 s{sSPIN}, s{sSPIN}, 1\ns_cmp_lt_u32 s{sSPIN}, {qtry}\ns_cbranch_scc1 L_qpoll")
    A(f"s_cmp_lg_u32 s{sSPIN}, {qtry}\ns_cbranch_scc1 L_qflip")
    A(f"s_xor_b32 s{sT1}, s{sT1}, {WS_QXFAR}")
    A("s_mov_b32 exec_lo, 0x00ff00ff\ns_mov_b32 exec_hi, 0x00ff00ff")
    A(f"buffer_store_dwordx2 v[34:35], v6, {s4(rWS)}, s{sT1} offen sc1")
    A("s_mov_b64 exec, -1")
    A("L_qflip:")
    A(f"s_xor_b32 s{sH}, s{sH}, {WS_QXFAR}\ns_xor_b32 s{sH+1}, s{sH+1}, {WS_QXFAR}\ns_xor_b32 s{sMODE}, s{sMODE}, 3")
    for k in range(4):
        A(f"v_xor_b32 v{36+k}, s{sXC}, v{36+k}")
    A(f"s_cmp_lt_u32 s{sSPIN}, s{sLIM}\ns_cbranch_scc1 L_qpoll")
    A("L_qok:")
    for e in range(8):
        A(f"v_add_f32 v{64+e}, v{64+e}, v{72+e}\nv_add_f32 v{80+e}, v{80+e}, v{88+e}")
    for e in range(8):
        A(f"v_add_f32 v{64+e}, v{64+e}, v{80+e}")
    for e in range(4):
        A(f"v_cvt_pk_bf16_f32 v{64+e}, v{64+2*e}, v{65+2*e}")
    A(f"v_lshrrev_b32 v6, 4, v1\nv_lshlrev_b32 v6, 7, v6\nv_and_b32 v5, 3, v1\nv_lshl_add_u32 v6, v5, 5, v6")
    A(f"v_and_b32 v5, 12, v1\nv_add_u32 v6, v6, v5")
    for e in range(4):
        A(f"ds_write_b32 v6, v{64+e} offset:{L_Q + 16*(e&1) + 512*(e>>1)}")
    lds_flag(F_QH, val=f"s{sMODE}")
    A("L_qwait:")
    vOWN, vOTH = 30, 31
    A(f"s_lshl_b32 s{sT2}, s{sC}, 2\nv_mov_b32 v{vOWN}, s{sT2}\nv_xor_b32 v{vOTH}, 4, v{vOWN}")
    vQV, vKT, vS, vT, vMAX, vAD, vKA, vPA, vDN = 32, 96, 160, 164, 172, 176, 184, 188, 189
    A("v_and_b32 v5, 3, v1\nv_lshlrev_b32 v5, 10, v5\nv_bfe_u32 v6, v1, 2, 2\nv_lshl_add_u32 v5, v6, 8, v5")
    A(f"v_lshrrev_b32 v6, 4, v1\nv_xor_b32 v6, v6, v1\nv_and_b32 v6, 15, v6\nv_lshl_add_u32 v{vKA}, v6, 4, v5")
    for n in range(1, 4):
        A(f"v_xor_b32 v{vKA+n}, {64*n}, v{vKA}")
    A(f"v_and_b32 v5, 3, v1\nv_lshlrev_b32 v5, 6, v5\nv_lshrrev_b32 v6, 4, v1\nv_lshl_add_u32 v5, v6, 4, v5")
    A(f"v_mov_b32 v29, v5")
    A(f"v_and_b32 v6, 8, v1\nv_lshl_add_u32 v5, v6, 5, v5\nv_and_b32 v6, 4, v1\nv_lshl_add_u32 v5, v6, 1, v5")
    A(f"s_lshl_b32 s{sT2}, s{sC}, 9\nv_add_u32 v{vPA}, s{sT2}, v5")
    A(f"v_mov_b32 v{vMAX}, {hex(f2u(-3e38))}")
    A(f"s_add_u32 s{sT2}, s{sC}, 2\nv_mov_b32 v{vDN}, s{sT2}")
    A("v_and_b32 v6, 3, v1\nv_lshlrev_b32 v6, 8, v6\nv_lshrrev_b32 v5, 4, v1\nv_lshl_add_u32 v6, v5, 4, v6")
    A(f"s_mov_b32 s{sFL}, 0")
    lds_wait(F_QH, sMODE, 1, "qh", sleep=1)
    stamp(2)
    for s in range(4):
        A(f"ds_read_b128 {v4(vKT+4*s)}, v6 offset:{L_Q + 64*s}")
    lgkm(0)
    for b in range(4):
        A(f"s_mov_b32 vcc_lo, {hex(0x000f000f << (4*b))}\ns_mov_b32 vcc_hi, {hex(0x000f000f << (4*b))}")
        for i in range(16):
            A(f"v_cndmask_b32 v{vQV+16*b+i}, 0, v{vKT+i}, vcc")
    A(f"s_lshl_b32 s{sLB}, s{sC}, 14\ns_lshl_b32 s{sTHR}, s{sC}, 4\ns_add_u32 s{sTHR}, s{sTHR}, {8*(U0+2)}")
    A(f"s_mov_b32 s{sCNT}, 0")
    A("L_p1:")
    for n in range(4):
        A(f"v_add_u32 v{vAD+n}, s{sLB}, v{vKA+n}")
    lds_wait(F_RDY, sFL, f"s{sTHR}", "krdy", sleep=csleep, cached=True)
    for b in range(4):
        for n in range(4):
            A(f"ds_read_b128 {v4(vKT+16*b+4*n)}, v{vAD+n} offset:{L_RING + 4096*b}")
    for b in range(4):
        lgkm(12 - 4 * b)
        if b == 3:
            A(f"ds_write_b32 v{vOWN}, v{vDN} offset:{F_DONE}")
        for n in range(4):
            c = "0" if b + n == 0 else v4(vS)
            A(f"v_mfma_f32_16x16x32_bf16 {v4(vS)}, {v4(vKT+16*b+4*n)}, {v4(vQV+16*b+4*n)}, {c}")
    A(f"v_add_u32 v{vDN}, 2, v{vDN}\nv_min_u32 v{vDN}, 32, v{vDN}")
    next_slot(2)
    A(f"s_add_u32 s{sTHR}, s{sTHR}, 32\ns_add_u32 s{sCNT}, s{sCNT}, 1\ns_nop 3")
    A(f"v_cvt_pk_bf16_f32 v{vT}, v{vS}, v{vS+1}\nv_cvt_pk_bf16_f32 v{vT+1}, v{vS+2}, v{vS+3}")
    A(f"v_max3_f32 v{vMAX}, v{vMAX}, v{vS}, v{vS+1}\nv_max3_f32 v{vMAX}, v{vMAX}, v{vS+2}, v{vS+3}")
    for j in range(2):
        A(f"v_lshlrev_b32 v{vT+2+2*j}, 16, v{vT+j}\nv_and_b32 v{vT+3+2*j}, s{sHI}, v{vT+j}")
    for i in range(4):
        A(f"v_mul_f32 v{vT+2+i}, s{sSCALE}, v{vT+2+i}")
    A(f"v_cvt_pk_bf16_f32 v{vT}, v{vT+2}, v{vT+3}\nv_cvt_pk_bf16_f32 v{vT+1}, v{vT+4}, v{vT+5}")
    A(f"ds_write_b64 v{vPA}, {v2(vT)} offset:{L_P}\nv_add_u32 v{vPA}, 1024, v{vPA}")
    A(f"s_cmp_lt_u32 s{sCNT}, 16\ns_cbranch_scc1 L_p1")
    stamp(4, 1)
    wave_red(vMAX, vX0, "v_max_f32", (8, 4))
    A(f"v_and_b32 v5, 3, v1\nv_lshlrev_b32 v5, 2, v5\nv_lshl_add_u32 v6, v{vOWN}, 2, v5\nv_xor_b32 v5, 16, v6")
    A(f"ds_write_b32 v6, v{vMAX} offset:{L_MX}")
    lds_flag(F_MX, vaddr=vOWN)
    A(f"v_subrev_u32 v{vPA}, 16384, v{vPA}")
    lds_wait(F_MX, sT0, 1, "mx", sleep=0, vaddr=vOTH)
    A(f"ds_read_b32 v{vX1}, v5 offset:{L_MX}")
    for i in range(16):
        A(f"ds_read_b64 {v2(32+2*i)}, v{vPA} offset:{L_P + 1024*i}")
    lgkm(0)
    vMN, vLSUM = 173, 174
    A(f"v_max_f32 v{vMAX}, v{vMAX}, v{vX1}")
    rnd_bf16(vMAX)
    A(f"v_mul_f32 v{vMAX}, s{sSCALE}, v{vMAX}")
    rnd_bf16(vMAX)
    A(f"v_mul_f32 v{vMN}, s{sLOG2E}, v{vMAX}\nv_mov_b32 v{vLSUM}, 0")
    for i in range(0, 16, 2):
        E = 96
        for j in range(4):
            A(f"v_lshlrev_b32 v{E+2*j}, 16, v{32+2*i+j}\nv_and_b32 v{E+2*j+1}, s{sHI}, v{32+2*i+j}")
        for j in range(8):
            A(f"v_fma_f32 v{E+j}, v{E+j}, s{sLOG2E}, -v{vMN}")
        for j in range(8):
            A(f"v_exp_f32 v{E+j}, v{E+j}")
        A("s_nop 0")
        for j in range(4):
            A(f"v_cvt_pk_bf16_f32 v{32+2*i+j}, v{E+2*j}, v{E+2*j+1}")
        A(f"ds_write_b64 v{vPA}, {v2(32+2*i)} offset:{L_P + 1024*i}\nds_write_b64 v{vPA}, {v2(34+2*i)} offset:{L_P + 1024*(i+1)}")
        for j in range(4):
            A(f"v_add_f32 v{E+j}, v{E+j}, v{E+4+j}")
        A(f"v_add_f32 v{E}, v{E}, v{E+1}\nv_add_f32 v{E+2}, v{E+2}, v{E+3}\nv_add_f32 v{vLSUM}, v{vLSUM}, v{E}\nv_add_f32 v{vLSUM}, v{vLSUM}, v{E+2}")
    wave_red(vLSUM, vX0, "v_add_f32", (8, 4))
    A(f"v_lshlrev_b32 v6, 1, v6\nv_mov_b32 v{vLSUM+1}, v{vMN}\nds_write_b64 v6, {v2(vLSUM)} offset:{L_LS}")
    lds_flag(F_PD, vaddr=vOWN)
    vO, vVF, vPF, vVA = 32, 48, 80, 184
    A("v_and_b32 v5, 12, v1\nv_lshrrev_b32 v6, 4, v1\nv_add_u32 v6, v6, v5\nv_lshlrev_b32 v6, 8, v6")
    A(f"v_lshrrev_b32 v{vX1}, 3, v1\nv_and_b32 v{vX1}, 2, v{vX1}\nv_or_b32 v5, v5, v{vX1}")
    A(f"v_bfe_u32 v{vX1}, v1, 1, 1\nv_xor_b32 v5, v5, v{vX1}\ns_lshl_b32 s{sT2}, s{sC}, 3\nv_xor_b32 v5, s{sT2}, v5")
    A(f"v_lshl_add_u32 v6, v5, 4, v6\nv_and_b32 v5, 1, v1\nv_lshl_add_u32 v{vVA}, v5, 3, v6")
    for n in range(1, 4):
        A(f"v_xor_b32 v{vVA+n}, {32*n}, v{vVA}")
    for i in range(4):
        A(f"v_mov_b32 v{vO+i}, 0")
    for i in range(32):
        A(f"v_mov_b32 v{vPF+i}, 0")
    for T in range(4):
        A(f"s_mov_b32 s{sPM+2*T}, {hex(0x000f000f << (4*T))}\ns_mov_b32 s{sPM+2*T+1}, s{sPM+2*T}")
    A(f"v_mov_b32 v{vDN}, 33\nv_mov_b32 v{vPA}, v29")
    A(f"s_mov_b32 s{sLB}, {(32 % NSLOT) * 16384}\ns_mov_b32 s{sTHR}, {8*(U0+64+1)}\ns_mov_b32 s{sCNT}, 0")
    tail_prep()
    A(f"v_lshrrev_b32 v6, 2, v1\nv_lshlrev_b32 v6, 11, v6\nv_and_b32 v5, 3, v1\nv_lshl_add_u32 v{vO1}, v5, 4, v6")
    A(f"s_lshl_b32 s{sT1}, s{sX8}, 16\ns_lshl_b32 s{sT2}, s{sC}, 15\ns_add_u32 s{sT1}, s{sT1}, s{sT2}")
    A(f"s_lshl_b32 s{sT2}, s{sJJ}, 6\ns_add_u32 s{sT1}, s{sT1}, s{sT2}\ns_add_u32 s{sT1}, s{sT1}, {WS_H1}")
    lds_wait(F_PD, sT0, 1, "pd", sleep=0, vaddr=vOTH)
    stamp(5, 1)
    vSC = 28
    A("L_p2:")
    for n in range(4):
        A(f"v_add_u32 v{vAD+n}, s{sLB}, v{vVA+n}")
    A(f"s_cmp_lg_u32 s{sCNT}, {prept}\ns_cbranch_scc1 L_nosc")
    lds_wait(F_SC, sT0, 1, "sc", sleep=1)
    A(f"v_and_b32 v5, 3, v1\nv_lshlrev_b32 v5, 2, v5\nds_read_b32 v{vSC}, v5 offset:{L_SC}")
    A("L_nosc:")
    for T in range(4):
        A(f"s_mov_b64 exec, {s2(sPM+2*T)}")
        for ks in range(2):
            A(f"ds_read_b128 {v4(vPF+16*ks+4*T)}, v{vPA} offset:{L_P + 256*ks}")
    A("s_mov_b64 exec, -1")
    for ks in range(2):
        lds_wait(F_RDY, sFL, f"s{sTHR}", "vrdy", sleep=csleep, cached=True)
        for T in range(4):
            for ih in range(2):
                A(f"ds_read_b64_tr_b16 {v2(vVF+16*ks+4*T+2*ih)}, v{vAD+T} offset:{L_RING + 8192*ks + 4096*ih}")
        A(f"s_add_u32 s{sTHR}, s{sTHR}, 8")
        if ks == 1:
            next_slot(1)
            A(f"s_add_u32 s{sCNT}, s{sCNT}, 1\nv_add_u32 v{vPA}, 512, v{vPA}")
        for T in range(4):
            lgkm(6 - 2 * T)
            A(f"v_mfma_f32_16x16x32_bf16 {v4(vO)}, {v4(vVF+16*ks+4*T)}, {v4(vPF+16*ks+4*T)}, {v4(vO)}")
    A(f"ds_write_b32 v{vOWN}, v{vDN} offset:{F_DONE}\nv_add_u32 v{vDN}, 1, v{vDN}")
    A(f"s_cmp_lt_u32 s{sCNT}, 32\ns_cbranch_scc1 L_p2")
    stamp(3)
    A(f"s_cmp_eq_u32 s{sMODE}, 2\ns_nop 2")
    for r in range(4):
        A(f"v_mul_f32 v{vO+r}, v{vO+r}, v{vSC}")
    for r in range(4):
        embed(vO + r, vO + r, TX4 + r)
    A(f"s_cbranch_scc0 L_h1far\nbuffer_store_dwordx4 {v4(vO)}, v{vO1}, {s4(rWS)}, s{sT1} offen\ns_branch L_tail")
    A(f"L_h1far:\nbuffer_store_dwordx4 {v4(vO)}, v{vO1}, {s4(rWS)}, s{sT1} offen sc1\ns_branch L_tail")

    A("L_help:")
    srd(rA, sX, 1024)
    vG, vXP = 56, 58
    A(f"s_cmp_ge_i32 s{sF}, 0\ns_cbranch_scc1 L_h3f")
    A(f"s_and_b32 s{sT3}, s{sSUB}, 3")
    make_tags()
    lds_wait(F_XN, sT0, 1, "xn", sleep=2)
    slice_mv(sT3, L_GU, 2, after_read=lambda: lds_flag(F_GUP))
    embed(32, 32, TX2); embed(33, 33, TX2 + 1)
    lds_wait(F_QH, sMODE, 1, "qh3", sleep=4)
    A(f"s_lshl_b32 s{sT0}, s{sCB}, 11\ns_add_u32 s{sT0}, s{sT0}, {WS_G1}\ns_lshl_b32 s{sT1}, s{sSUB}, 8\ns_add_u32 s{sT1}, s{sT1}, s{sT0}")
    if skip & 4: A("s_branch L_hstat")
    A("s_mov_b32 exec_lo, 0x00ff00ff\ns_mov_b32 exec_hi, 0x00ff00ff")
    store2(f"buffer_store_dwordx2 v[32:33], v6, {s4(rWS)}, s{sT1} offen",
           f"s_cmp_lt_u32 s{sJJ}, {24 if nb is None else 32}\ns_cselect_b32 s{sT2}, s{sMODE}, 1\ns_cmp_eq_u32 s{sT2}, 2")
    A("s_mov_b64 exec, -1")
    stamp(1)
    lds_wait(F_RDY, sFL, 8 * g2gate, "g2gate", sleep=16)
    for i in range(8):
        A(f"ds_read_b128 {v4(64+4*i)}, v4 offset:{L_WD + 1024*i}")
    poll([f"buffer_load_dwordx4 {v4(32+4*i)}, v4, {s4(rWS)}, s{sT0} offen offset:{1024*i} sc1" for i in range(2)],
         chk4([32, 36]), "g1poll", sleep=32)
    for e in range(8):
        swap_red(32 + e, vX0, "v_add_f32")
        rnd_bf16(32 + e)
    for e in range(4):
        sigmoid(32 + e, 32 + e)
        rnd_bf16(32 + e)
        A(f"v_mul_f32 v{32+e}, v{32+e}, v{36+e}")
    A("v_cvt_pk_bf16_f32 v32, v32, v33\nv_cvt_pk_bf16_f32 v33, v34, v35")
    A("v_and_b32 v5, 3, v1\nv_lshlrev_b32 v5, 5, v5\nv_and_b32 v6, 12, v1\nv_add_u32 v5, v5, v6\nv_lshlrev_b32 v6, 4, v2")
    A(f"ds_write_b32 v5, v32 offset:{L_HB}\nds_write_b32 v5, v33 offset:{L_HB+16}\nds_read_b128 v[20:23], v6 offset:{L_HB}")
    lgkm(0)
    matvec8(64, [f"v{20+k}" for k in range(4)], 32, 40)
    reduce8(32)
    A(f"v_lshrrev_b32 v6, 4, v1\nv_lshlrev_b32 v6, 3, v6\nv_lshl_add_u32 v6, v3, 1, v6\nv_lshlrev_b32 v5, 2, v1")
    A(f"ds_write_b64 v6, v[32:33] offset:{L_HB}\nds_read_b32 v32, v5 offset:{L_HB}")
    A(f"v_and_b32 v5, 7, v1\nv_lshlrev_b32 v5, 2, v5\nv_lshrrev_b32 v33, v5, s{sTAG}\nv_and_b32 v33, 15, v33")
    A(f"v_lshrrev_b32 v6, 4, v1\nv_lshlrev_b32 v6, 11, v6\nv_and_b32 v5, 15, v1\nv_lshl_add_u32 v6, v5, 2, v6")
    A(f"s_lshl_b32 s{sT1}, s{sSUB}, 13\ns_lshl_b32 s{sT2}, s{sCB}, 6\ns_add_u32 s{sT1}, s{sT1}, s{sT2}\ns_add_u32 s{sT1}, s{sT1}, {WS_GL}")
    lgkm(0)
    embed(32, 32, 33)
    if not skip & 1:
        A(f"buffer_store_dword v32, v6, {s4(rWS)}, s{sT1} offen sc1")
    A("s_branch L_hstat")
    A("L_h3f:")
    make_tags()
    lds_flag(F_GUP)
    if skip & 2: A("s_branch L_hstat")
    lds_wait(F_RDY, sFL, 8 * g3gate, "g3gate", sleep=16)
    A(f"s_mov_b32 s{sT0}, s{sF}")
    A(f"v_and_b32 v6, 3, v1\nv_lshlrev_b32 v6, 3, v6\nv_lshrrev_b32 v5, 5, v1\nv_lshl_add_u32 v6, v5, 2, v6\ns_lshl_b32 s{sT1}, s{sT0}, 5")
    A(f"buffer_load_dword v{vXP}, v6, {s4(rA)}, s{sT1} offen")
    A(f"s_lshl_b32 s{sH}, s{sT0}, 11\ns_add_u32 s{sH}, s{sH}, {WS_GL}")
    A(f"v_min_u32 v6, 47, v1\nv_and_b32 v6, 60, v6\nv_and_b32 v5, 3, v1\nv_or_b32 v6, v6, v5\nv_lshlrev_b32 v6, 4, v6")
    poll([f"buffer_load_dwordx4 v[64:67], v4, {s4(rWS)}, s{sH} offen sc1",
          f"buffer_load_dwordx4 v[68:71], v6, {s4(rWS)}, s{sH} offen offset:1024 sc1"], chk4([64, 68]), "gpoll", sleep=64)
    A("s_mov_b32 exec_hi, 0xffff")
    for e in range(4):
        A(f"v_add_f32 v{64+e}, v{64+e}, v{68+e}")
    A("s_mov_b64 exec, -1")
    red4(64)
    for e in range(2):
        rnd_bf16(64 + e)
        sigmoid(68, 64 + e)
        A(f"v_mul_f32 v{vG+e}, v{64+e}, v68")
        rnd_bf16(vG + e)
    A("L_hstat:")
    stamp(2)
    lds_wait(F_PD, sT0, 1, "pdh", sleep=16, pair=True)
    lds_wait(F_QH, sMODE, 1, "qh4", sleep=4)
    A(f"v_and_b32 v5, 3, v1\nv_lshlrev_b32 v5, 3, v5")
    A(f"ds_read_b64 v[32:33], v5 offset:{L_LS}\nds_read_b32 v34, v5 offset:{L_LS+32}")
    lgkm(0)
    A(f"v_add_f32 v32, v32, v34\nv_log_f32 v32, v32\nv_mov_b32 v35, s{sTAG}\nv_add_f32 v34, v32, v33")
    A(f"s_lshl_b32 s{sT0}, s{sX8}, 10\ns_add_u32 s{sT0}, s{sT0}, {WS_LS}\ns_lshl_b32 s{sT1}, s{sJJ}, 5\ns_add_u32 s{sT1}, s{sT1}, s{sT0}")
    A("s_mov_b64 exec, 15")
    store2(f"buffer_store_dwordx2 v[34:35], v5, {s4(rWS)}, s{sT1} offen", f"s_cmp_eq_u32 s{sMODE}, 2")
    A("s_mov_b64 exec, -1")
    lds_wait(F_RDY, sFL, 8 * lsgate, "lsgate", sleep=16)
    A(f"v_lshlrev_b32 v6, 3, v1")
    poll([f"buffer_load_dwordx2 {v2(36+2*i)}, v6, {s4(rWS)}, s{sT0} offen offset:{512*i} sc1" for i in range(2)],
         [(37, f"s{sTAG}"), (39, f"s{sTAG}")], "lspoll", sleep=16, full=True)
    A("v_max_f32 v40, v36, v38")
    wave_red(40, vX0, "v_max_f32", (8, 4))
    A("v_sub_f32 v36, v36, v40\nv_sub_f32 v38, v38, v40\nv_exp_f32 v36, v36\nv_exp_f32 v38, v38\nv_sub_f32 v33, v33, v40\nv_add_f32 v36, v36, v38")
    wave_red(36, vX0, "v_add_f32", (8, 4))
    A("v_exp_f32 v33, v33\nv_rcp_f32 v36, v36\nv_lshrrev_b32 v5, 1, v5\nv_mul_f32 v33, v33, v36")
    A(f"ds_write_b32 v5, v33 offset:{L_SC}")
    lds_flag(F_SC)
    stamp(3)
    tail_prep()
    if dry:
        A(f"s_mov_b32 s{rWS+2}, 0\ns_mov_b32 s{sLIM}, 0\ns_branch L_tail")
        A("L_dryret:")
        A(f"s_mov_b64 exec, -1\ns_mov_b32 s{rWS+2}, {hex(WS_SIZE)}\ns_mov_b32 s{sLIM}, 0x40000")
    if touch:
        lds_wait(F_RDY, sFL, NV - touch, "touch", sleep=4)
        A(f"s_lshl_b32 s{sT1}, s{sX8}, 16\ns_lshl_b32 s{sT2}, s{sJJ}, 11\ns_add_u32 s{sT1}, s{sT1}, s{sT2}\ns_add_u32 s{sT1}, s{sT1}, {WS_H1}")
        A(f"v_lshlrev_b32 v5, 5, v1\nbuffer_load_dword v40, v5, {s4(rWS)}, s{sT1} offen sc1")
        if wtouch:
            srd(rA, sWO, hex(4096 * 512 * 2))
            A(f"s_lshl_b32 s{sT1}, s{sX8}, 19\nbuffer_load_dword v41, v7, {s4(rA)}, s{sT1} offen")
    A("L_endgate:")

    A("L_tail:")
    stamp(4, 0)
    lds_wait(F_RDY, sFL, f"s{sWT}", "wordy", sleep=0)
    for n in range(16):
        A(f"ds_read_b32 v{vWT+n}, v{vWA} offset:{L_WO + 256*n}")
    def wo_pairs():
        lgkm(0)
        for u in range(8):
            A(f"v_perm_b32 v{vWO+2*u}, v{vWT+1+2*u}, v{vWT+2*u}, s{sSELL}\nv_perm_b32 v{vWO+1+2*u}, v{vWT+1+2*u}, v{vWT+2*u}, s{sSELH}")
    if pp1:
        def ld1(r):
            for i in range(2):
                A(f"buffer_load_dwordx4 {v4(r+4*i)}, v4, {s4(rWS)}, s{sI1} offen offset:{1024*i} sc1")
        def fin1(r):
            for e in range(4):
                A(f"v_add_f32 v{40+e}, v{r+e}, v{r+4+e}")
        poll2(ld1, 2, 144, 152, fin1, "h1p", wo_pairs)
        stamp(5, 0)
    else:
        poll([f"buffer_load_dwordx4 {v4(40+4*i)}, v4, {s4(rWS)}, s{sI1} offen offset:{1024*i} sc1" for i in range(2)],
             chk4([40, 44]), "h1poll", sleep=h1sleep, mid=wo_pairs)
        stamp(5, 0)
        for e in range(4):
            A(f"v_add_f32 v{40+e}, v{40+e}, v{44+e}")
    red4(40)
    A(f"v_cvt_pk_bf16_f32 v40, v40, v41\ns_nop 0")
    for u in range(8):
        A(f"v_readlane_b32 s{sH+u}, v40, {32*(u&1) + (u>>1)}")
    for u in range(8):
        for z in range(2):
            c = "0" if u == 0 else f"v{48+z}"
            A(f"v_dot2_f32_bf16 v{48+z}, s{sH+u}, v{vWO+2*u+z}, {c}")
    if dry:
        A(f"s_cmp_eq_u32 s{sLIM}, 0\ns_cbranch_scc1 L_t2b\ns_cmp_lg_u32 s{sTW}, 3")
    else:
        A(f"s_cmp_lg_u32 s{sTW}, 3\ns_nop 1")
    A(f"ds_write_b64 v{vRW}, v[48:49] offset:{L_RED}")
    A("s_waitcnt lgkmcnt(0)\ns_barrier\ns_cbranch_scc1 L_fin")
    A("L_t2b:")
    for p in range(3):
        A(f"ds_read_b64 {v2(42+2*p)}, v{vRR} offset:{L_RED + 512*p}")
    lgkm(0)
    A("v_add_f32 v48, v48, v42\nv_add_f32 v49, v49, v43\nv_add_f32 v44, v44, v46\nv_add_f32 v45, v45, v47\nv_add_f32 v48, v48, v44\nv_add_f32 v49, v49, v45")
    embed(48, 48, TX2); embed(49, 49, TX2 + 1)
    A(f"buffer_store_dwordx2 v[48:49], v{vO2}, {s4(rWS)}, s{sO2} offen sc1")
    if dry:
        A(f"s_cmp_eq_u32 s{sLIM}, 0\ns_cbranch_scc1 L_t3b")
    if wb:
        A(f"s_cmp_lg_u32 s{sJJ}, 0\ns_cbranch_scc1 L_nowb\ns_waitcnt vmcnt(0)\nbuffer_wbl2 sc1\nL_nowb:")
    A(f"s_cmp_lt_i32 s{sF}, 0\ns_cbranch_scc1 L_fin")
    A("L_t3b:")
    A(f"s_and_b32 s{sT0}, s{sF}, 31")
    A(f"s_lshr_b32 s{sT1}, s{sT0}, 1\ns_lshl_b32 s{sT1}, s{sT1}, 13\ns_and_b32 s{sT2}, s{sT0}, 1\ns_lshl_b32 s{sT2}, s{sT2}, 6\ns_add_u32 s{sT1}, s{sT1}, s{sT2}")
    A(f"s_add_u32 s{sT1}, s{sT1}, {WS_H2}\ns_add_u32 s{sT2}, s{sT1}, 4096\ns_lshl_b32 s{sT3}, s{sT0}, 5")
    A(f"v_lshrrev_b32 v55, 2, v1\nv_lshlrev_b32 v55, 7, v55\nv_and_b32 v5, 3, v1\nv_lshl_add_u32 v55, v5, 4, v55")
    A(f"v_lshlrev_b32 v5, 1, v5\nv_lshrrev_b32 v6, 5, v1\nv_add_u32 v5, v5, v6\nv_lshlrev_b32 v52, 2, v5")
    A(f"v_lshlrev_b32 v50, 16, v{vXP}\nv_and_b32 v51, s{sHI}, v{vXP}")
    A(f"s_min_u32 s{sH}, s{sLIM}, 1024")
    srd(rA, sOUT, f"s{sH}")
    if ackwait:
        A("s_waitcnt vmcnt(0)")
    if presleep:
        A(f"s_sleep {presleep}")
    if pp2:
        def ld2(r):
            for i in range(4):
                A(f"buffer_load_dwordx4 {v4(r+4*i)}, v55, {s4(rWS)}, s{sT1+i//2} offen offset:{2048*(i%2)} sc1")
        def fin2(r):
            for e in range(4):
                A(f"v_add_f32 v{64+e}, v{r+e}, v{r+4+e}\nv_add_f32 v{72+e}, v{r+8+e}, v{r+12+e}")
        poll2(ld2, 4, 96, 112, fin2, "h2p", lambda: A(f"s_sleep {pp2}"))
        stamp(6, 0)
    else:
        poll([f"buffer_load_dwordx4 {v4(64+4*i)}, v55, {s4(rWS)}, s{sT1+i//2} offen offset:{2048*(i%2)} sc1" for i in range(4)],
             chk4([64, 68, 72, 76]), "h2poll", sleep=h2sleep)
        stamp(6, 0)
        for e in range(4):
            A(f"v_add_f32 v{64+e}, v{64+e}, v{68+e}\nv_add_f32 v{72+e}, v{72+e}, v{76+e}")
    for e in range(4):
        A(f"v_add_f32 v{64+e}, v{64+e}, v{72+e}")
    red4(64)
    A(f"v_cvt_pk_bf16_f32 v64, v64, v65\nv_and_b32 v65, s{sHI}, v64\nv_lshlrev_b32 v64, 16, v64")
    A(f"v_mul_f32 v64, v64, v{vG}\nv_mul_f32 v65, v65, v{vG+1}")
    A(f"v_cvt_pk_bf16_f32 v64, v64, v65\nv_and_b32 v65, s{sHI}, v64\nv_lshlrev_b32 v64, 16, v64")
    A("v_add_f32 v64, v64, v50\nv_add_f32 v65, v65, v51\nv_cvt_pk_bf16_f32 v64, v64, v65")
    A("s_mov_b32 exec_lo, 15\ns_mov_b32 exec_hi, 15")
    A(f"buffer_store_dword v64, v52, {s4(rA)}, s{sT3} offen {outflags}")
    if dry:
        A(f"s_cmp_eq_u32 s{sLIM}, 0\ns_cbranch_scc1 L_dryret")
    A(f"s_cmp_lg_u32 s{sT0}, 0\ns_cbranch_scc1 L_fin")
    A(f"s_mov_b64 exec, 1\nv_mov_b32 v65, s{sTAG}")
    A(f"buffer_store_dword v65, v7, {s4(rWS)}, 0 offen offset:{WS_EPOCH} {epflags}")
    A("L_fin:")
    if stamps:
        A("s_mov_b64 exec, -1")
        A("s_waitcnt vmcnt(0)")
        stamp(7)
        A("s_waitcnt lgkmcnt(0)")
        if skew is not None:
            if span is None:
                A(f"s_cmp_lg_u32 s{sW}, 4\ns_cbranch_scc1 L_skout\ns_cmp_lg_u32 s2, {skew}\ns_cbranch_scc1 L_skout")
            else:
                A(f"s_cmp_lg_u32 s{sW}, {span[0]}\ns_cbranch_scc1 L_skout")
                if span[0] == 0:
                    A(f"s_load_dwordx2 s[44:45], s[0:1], 80\ns_waitcnt lgkmcnt(0)\ns_sleep 127")
            srd(rB, 44, 256)
            A(f"buffer_load_dword v16, v7, {s4(rB)}, 0 offen offset:64 sc1\ns_waitcnt vmcnt(0)\nv_readfirstlane_b32 s{sT2}, v16\ns_nop 3")
            if span is None:
                A(f"s_not_b32 s{sT0}, s{sT2}\ns_sub_u32 s{sT2}, s{sST}, s{sT0}\ns_mul_i32 s{sT2}, s{sT2}, 20\ns_min_u32 s{sT2}, s{sT2}, 100000")
            else:
                A(f"s_not_b32 s{sT0}, s{sT2}\ns_sub_u32 s{sT2}, s{sST+2*span[1]}, s{sT0}\ns_sub_u32 s{sT2}, s{sT2}, 3000\ns_mul_i32 s{sT2}, s{sT2}, 10\ns_min_u32 s{sT2}, s{sT2}, 100000")
            A(f"s_add_u32 s{sT2}, s{sT2}, s{sT0}\ns_add_u32 s{sT2}, s{sT2}, 10000")
            A("L_skpad:")
            A(f"s_memrealtime {s2(sH)}\ns_waitcnt lgkmcnt(0)\ns_sub_u32 s{sT3}, s{sH}, s{sT2}\ns_cmp_lt_i32 s{sT3}, 0\ns_cbranch_scc1 L_skpad")
            A("L_skout:")
        if diag is not None:
            dw, dwg, di, dj, mult = diag
            A(f"s_cmp_lg_u32 s{sW}, {dw}\ns_cbranch_scc1 L_padout")
            if dwg >= 0:
                A(f"s_cmp_lg_u32 s2, {dwg}\ns_cbranch_scc1 L_padout")
            A(f"s_cmp_eq_u32 s{sST+2*di}, 0\ns_cbranch_scc1 L_padout")
            A(f"s_sub_u32 s{sT2}, s{sST+2*di}, s{sST+2*dj}\ns_mul_i32 s{sT2}, s{sT2}, {mult}\ns_min_u32 s{sT2}, s{sT2}, 100000")
            A(f"s_add_u32 s{sT2}, s{sT2}, s{sST}\ns_add_u32 s{sT2}, s{sT2}, 10000")
            A("L_pad:")
            A(f"s_memrealtime {s2(sH)}\ns_waitcnt lgkmcnt(0)\ns_sub_u32 s{sT3}, s{sH}, s{sT2}\ns_cmp_lt_i32 s{sT3}, 0\ns_cbranch_scc1 L_pad")
            A("L_padout:")
        if pad is not None:
            A(f"s_cmp_eq_u32 s{sST+2*pad}, 0\ns_cbranch_scc1 L_padout")
            A(f"s_add_u32 s{sT2}, s{sST+2*pad}, 10000")
            A("L_pad:")
            A(f"s_memrealtime {s2(sH)}\ns_waitcnt lgkmcnt(0)\ns_sub_u32 s{sT3}, s{sH}, s{sT2}\ns_cmp_lt_i32 s{sT3}, 0\ns_cbranch_scc1 L_pad")
            A("L_padout:")
        for i in range(8):
            A(f"v_mov_b32 v{96+i}, s{sST+2*i}")
        A(f"s_mul_i32 s{sT1}, s2, 5\ns_add_u32 s{sT1}, s{sT1}, s{sW}\ns_lshl_b32 s{sT1}, s{sT1}, 5\ns_add_u32 s{sT1}, s{sT1}, {WS_STAMP}")
        A("s_mov_b64 exec, 1")
        A(f"buffer_store_dwordx4 v[96:99], v7, {s4(rWS)}, s{sT1} offen")
        A(f"buffer_store_dwordx4 v[100:103], v7, {s4(rWS)}, s{sT1} offen offset:16")
    A("L_end:")
    A("s_endpgm")

    out = HEADER
    out += f"; @launch grid=(256,1,1) block=(320,1,1) lds={LDS_BYTES}\n"
    out += '.amdgcn_target "amdgcn-amd-amdhsa--gfx950"\n.text\n'
    out += f".globl {KNAME}_kernel\n.p2align 8\n.type {KNAME}_kernel,@function\n"
    out += "\n".join(A.L) + "\n"
    out += f""".section .rodata,"a"
.p2align 6
.amdhsa_kernel {KNAME}_kernel
  .amdhsa_next_free_vgpr 216
  .amdhsa_next_free_sgpr 102
  .amdhsa_accum_offset 216
  .amdhsa_group_segment_fixed_size 0
  .amdhsa_kernarg_size 96
  .amdhsa_user_sgpr_count 2
  .amdhsa_user_sgpr_kernarg_segment_ptr 1
  .amdhsa_system_sgpr_workgroup_id_x 1
.end_amdhsa_kernel
"""
    return out


if __name__ == "__main__":
    kw = json.loads(sys.argv[2]) if len(sys.argv) > 2 else {}
    open(sys.argv[1], "w").write(gen(**kw))
```

```python
import sys, json, struct

KNAME = "recurrent_scan__gqa_block_cached__glu_gated_glu__decode"
HEADER = open("cdna_kernels/" + KNAME + ".s.ref").read().split("; Override launch")[0]

def f2u(x):
    return struct.unpack("<I", struct.pack("<f", x))[0]

LOG2E = 1.4426950408889634
WS_EPOCH = 0x0
WS_LS = 0x2000
WS_PG = 0x8000
WS_GP = 0x5000
WS_QX = 0x10000
WS_QXFAR = 0x100000
WS_G1 = 0x20000
WS_GL = 0x30000
WS_H1 = 0x40000
WS_H2 = 0xC0000
WS_STAMP = 0x1000000
WS_SIZE = 0x20000000
L_Q = 0
L_FLAG = 1024
F_RDY = L_FLAG
F_GUP = L_FLAG + 4
F_DONE = L_FLAG + 8
F_QH = L_FLAG + 16
F_XN = L_FLAG + 20
F_MX = L_FLAG + 24
F_PD = L_FLAG + 32
F_SC = L_FLAG + 40
F_WIN = L_FLAG + 44
L_MX = 1152
L_LS = 1216
L_SC = 1280
L_HB = 1536
L_RED = 2048
L_XN = L_RED
L_P = 4096
L_WD = 20480
L_RING = 28672
NSLOT = 8
L_WO = L_RING
LDS_BYTES = L_RING + NSLOT * 16384
U0 = 5

sFL = 3
sMODE, sLIM, sI1, sO2 = 14, 15, 24, 25
sWT = 20
sF = 83
sTW = 82
sPM = 48
sX, sK, sV, sWQ, sWO, sBX, sWG, sWU, sWD, sOUT, sDBG, sWS = 4, 6, 8, 10, 12, 14, 16, 18, 20, 22, 24, 26
rK, rV, rWS, rA, rB, rC, rD = 28, 32, 36, 40, 44, 48, 52
sW, sX8, sJJ, sCB, sSUB = 56, 57, 58, 59, 60
sC, sTHR, sCNT, sTAG = 61, 62, 63, 64
sSELL, sSELH, sSCALE, sLOG2E, sHI = 65, 66, 67, 68, 69
sT0, sT1, sT2, sT3 = 70, 71, 72, 73
sH = 74
sM = 82
sSPIN = 84
sLB = 85
sST = 86
TX4 = 8; TX2 = 12; vX0 = 14; vX1 = 15
vWO, vWT, vRW, vRR, vO2, vO1, vWA = 192, 128, 208, 209, 210, 211, 212


class G:
    def __init__(self):
        self.L = []
        self.n = 0
    def __call__(self, s):
        for line in s.strip("\n").split("\n"):
            self.L.append("    " + line.strip() if not line.strip().endswith(":") else line.strip())
    def label(self, base):
        self.n += 1
        return f"L_{base}_{self.n}"


def v4(r):
    return f"v[{r}:{r+3}]"
def v2(r):
    return f"v[{r}:{r+1}]"
def s4(r):
    return f"s[{r}:{r+3}]"
def s2(r):
    return f"s[{r}:{r+1}]"


def gen(kvflags="nt", wflags="nt", win=20, stamps=False, pad=None, qsleep=4, qgate=0, g2gate=24, g3gate=48,
        lsgate=100, h1sleep=0, h2sleep=0, csleep=0, lprio=0, smode=0, skip=0, prog=False, win2=0, last=6, force=0, qtry=96, outflags='', diag=None, prept=30, dry=False,
        pace=1, wins=(20, 21, 22, 24, 27), c0=0, gs=8, endstop=48, psleep=8, bias=64, scal=False, gper=0, gbias=0, pld='sc1', unq=2, gs2=8, gmin=0, gmax=2, istep=1, epflags='', skew=None, span=None, il=3, ebias=224, wo_=None, we_=None, boost=(0, 2, 4, 8), wwo=24, wtouch=True, worder=(1, 2, 0, 3), nb=(2, 4, 4, 4, 3, 4, 3, 4), pgs=12, wb=0, presleep=0, touch=64, ackwait=True, lateat=0, latebias=0, cpf=True, qtouch=True):
    A = G()
    if wo_ is not None:
        wins = [w + b for b in boost for w in (wo_, we_)]
        istep = 2
    if span is not None:
        skew = -1; stamps = True; smode = 9

    def srd(r, base, size):
        A(f"s_mov_b32 s{r}, s{base}\ns_mov_b32 s{r+1}, s{base+1}\ns_mov_b32 s{r+2}, {size}\ns_mov_b32 s{r+3}, 0x20000")

    def stamp(i, mode=None):
        if stamps and (mode is None or mode == smode):
            A(f"s_memrealtime {s2(sST + 2 * i)}")

    def lgkm(n):
        A(f"s_waitcnt lgkmcnt({n})")

    def swap_red(r, t, op, kinds=("16", "32")):
        for k in kinds:
            A(f"v_mov_b32 v{t}, v{r}\ns_nop 1\nv_permlane{k}_swap_b32 v{r}, v{t}\ns_nop 1\n{op} v{r}, v{r}, v{t}")

    def wave_red(r, t, op, rors):
        for k in rors:
            A(f"s_nop 1\n{op} v{r}, v{r}, v{r} row_ror:{k}")
        swap_red(r, t, op)

    def rnd_bf16(r):
        A(f"v_cvt_pk_bf16_f32 v{r}, v{r}, v{r}\nv_and_b32 v{r}, 0xffff0000, v{r}")

    def ln_stats(X, mean, rstd, F):
        D = F + 8
        for k in range(4):
            A(f"v_lshlrev_b32 v{F+2*k}, 16, v{X+k}\nv_and_b32 v{F+2*k+1}, s{sHI}, v{X+k}")
        A(f"v_add_f32 v{mean}, v{F}, v{F+1}")
        for k in range(2, 8):
            A(f"v_add_f32 v{mean}, v{mean}, v{F+k}")
        wave_red(mean, vX0, "v_add_f32", (8, 4, 2, 1))
        A(f"v_mul_f32 v{mean}, {hex(f2u(1/512))}, v{mean}")
        for k in range(8):
            A(f"v_sub_f32 v{D+k}, v{F+k}, v{mean}")
        A(f"v_mul_f32 v{rstd}, v{D}, v{D}")
        for k in range(1, 8):
            A(f"v_fmac_f32 v{rstd}, v{D+k}, v{D+k}")
        wave_red(rstd, vX0, "v_add_f32", (8, 4, 2, 1))
        A(f"v_mul_f32 v{rstd}, {hex(f2u(1/512))}, v{rstd}")
        rnd_bf16(mean); rnd_bf16(rstd)
        A(f"v_add_f32 v{rstd}, {hex(f2u(1e-5))}, v{rstd}")
        rnd_bf16(rstd)
        A(f"v_sqrt_f32 v{rstd}, v{rstd}\ns_nop 0")
        rnd_bf16(rstd)
        A(f"v_rcp_f32 v{rstd}, v{rstd}")

    def ln_apply(X, mean, rstd, D):
        for k in range(4):
            A(f"v_lshlrev_b32 v{D+2*k}, 16, v{X+k}\nv_and_b32 v{D+2*k+1}, s{sHI}, v{X+k}")
        for k in range(8):
            A(f"v_sub_f32 v{D+k}, v{D+k}, v{mean}")
        for k in range(4):
            A(f"v_cvt_pk_bf16_f32 v{X+k}, v{D+2*k}, v{D+2*k+1}")
        for k in range(4):
            A(f"v_lshlrev_b32 v{D+2*k}, 16, v{X+k}\nv_and_b32 v{D+2*k+1}, s{sHI}, v{X+k}")
        for k in range(8):
            A(f"v_mul_f32 v{D+k}, v{D+k}, v{rstd}")
        for k in range(4):
            A(f"v_cvt_pk_bf16_f32 v{X+k}, v{D+2*k}, v{D+2*k+1}")

    def matvec8(W, xs, acc, tmp, first=True):
        for j in range(4):
            for u in range(4):
                A(f"v_perm_b32 v{tmp+2*u}, v{W+(2*j+1)*4+u}, v{W+(2*j)*4+u}, s{sSELL}")
                A(f"v_perm_b32 v{tmp+2*u+1}, v{W+(2*j+1)*4+u}, v{W+(2*j)*4+u}, s{sSELH}")
            for e in range(8):
                c = "0" if (j == 0 and first) else f"v{acc+e}"
                A(f"v_dot2_f32_bf16 v{acc+e}, {xs[j]}, v{tmp+e}, {c}")
        A("s_nop 2")

    def reduce8(acc):
        A("s_nop 1")
        for e in range(4):
            A(f"v_permlane32_swap_b32 v{acc+e}, v{acc+4+e}")
        A("s_nop 1")
        for e in range(4):
            A(f"v_add_f32 v{acc+e}, v{acc+e}, v{acc+4+e}")
        A("s_nop 1")
        for e in range(2):
            A(f"v_permlane16_swap_b32 v{acc+e}, v{acc+2+e}")
        A("s_nop 1")
        for e in range(2):
            A(f"v_add_f32 v{acc+e}, v{acc+e}, v{acc+2+e}")
        A("s_nop 0")
        for e in range(2):
            A(f"v_add_f32 v{acc+e}, v{acc+e}, v{acc+e} row_ror:8")
        A("s_nop 0")

    def red4(a):
        A("s_nop 1")
        A(f"v_permlane32_swap_b32 v{a}, v{a+2}\nv_permlane32_swap_b32 v{a+1}, v{a+3}")
        A("s_nop 0")
        A(f"v_add_f32 v{a}, v{a}, v{a+2}\nv_add_f32 v{a+1}, v{a+1}, v{a+3}")
        for k in (8, 4):
            A("s_nop 0")
            A(f"v_add_f32 v{a}, v{a}, v{a} row_ror:{k}\nv_add_f32 v{a+1}, v{a+1}, v{a+1} row_ror:{k}")
        A(f"v_mov_b32 v{a+2}, v{a}\nv_mov_b32 v{a+3}, v{a+1}\ns_nop 0")
        A(f"v_permlane16_swap_b32 v{a}, v{a+2}\nv_permlane16_swap_b32 v{a+1}, v{a+3}")
        A("s_nop 0")
        A(f"v_add_f32 v{a}, v{a}, v{a+2}\nv_add_f32 v{a+1}, v{a+1}, v{a+3}")

    def lds_wait(addr, sreg, thr, name, sleep=1, vaddr=7, cached=False, pair=False):
        top = A.label(name); done = A.label(name + "_ok")
        if cached:
            A(f"s_cmp_ge_i32 s{sreg}, {thr}\ns_cbranch_scc1 {done}")
        A(f"s_mov_b32 s{sSPIN}, 0")
        A(f"{top}:")
        if pair:
            A(f"ds_read_b64 {v2(vX0)}, v{vaddr} offset:{addr}\ns_waitcnt lgkmcnt(0)\nv_min_i32 v{vX0}, v{vX0}, v{vX1}\ns_nop 0")
        else:
            A(f"ds_read_b32 v{vX0}, v{vaddr} offset:{addr}\ns_waitcnt lgkmcnt(0)")
        A(f"v_readfirstlane_b32 s{sreg}, v{vX0}")
        A(f"s_add_u32 s{sSPIN}, s{sSPIN}, 1")
        A(f"s_cmp_ge_i32 s{sreg}, {thr}\ns_cbranch_scc1 {done}")
        if sleep:
            A(f"s_sleep {sleep}")
        A(f"s_cmp_lt_u32 s{sSPIN}, 0x100000\ns_cbranch_scc1 {top}")
        A(f"{done}:")

    def lds_flag(addr, val=1, vaddr=7):
        A(f"v_mov_b32 v{vX0}, {val}\nds_write_b32 v{vaddr}, v{vX0} offset:{addr}")

    def make_tags():
        A(f"s_waitcnt lgkmcnt(0)\ns_add_u32 s{sTAG}, s{sTAG}, 0x9E3779B1")
        A(f"v_and_b32 v5, 1, v1\nv_lshlrev_b32 v5, 4, v5\nv_lshrrev_b32 v5, v5, s{sTAG}")
        for k in range(4):
            A(f"v_bfe_u32 v{TX4+k}, v5, {4*k}, 4")
        A(f"v_and_b32 v5, 3, v1\nv_lshlrev_b32 v5, 3, v5\nv_lshrrev_b32 v5, v5, s{sTAG}")
        for k in range(2):
            A(f"v_bfe_u32 v{TX2+k}, v5, {4*k}, 4")

    def embed(dst, src, tag):
        A(f"v_and_or_b32 v{dst}, v{src}, -16, v{tag}")

    def untag(checks):
        for r, t in checks:
            A(f"v_xor_b32 v{r}, {t}, v{r}")
        rs = [r for r, _ in checks]
        A(f"v_or_b32 v{vX0}, v{rs[0]}, v{rs[1]}")
        for i in range(2, len(rs), 2):
            A(f"v_or3_b32 v{vX0}, v{vX0}, v{rs[i]}, v{rs[i+1]}")
        A(f"v_and_b32 v{vX0}, 15, v{vX0}\nv_cmp_ne_u32 vcc, 0, v{vX0}")

    def padd(d, a, b, n):
        for e in range(0, n, 2):
            A(f"v_pk_add_f32 {v2(d+e)}, {v2(a+e)}, {v2(b+e)}")

    def poll(loads, checks, name, sleep=0, full=False, mid=None):
        top = A.label(name); done = A.label(name + "_ok")
        A(f"s_mov_b32 s{sSPIN}, 0")
        if mid:
            chk = A.label(name + "_chk")
            for l in loads:
                A(l)
            mid()
            A(f"s_branch {chk}")
        A(f"{top}:")
        for l in loads:
            A(l)
        if mid:
            A(f"{chk}:")
        A("s_waitcnt vmcnt(0)")
        if full:
            A(f"v_xor_b32 v{vX0}, {checks[0][1]}, v{checks[0][0]}")
            for r, t in checks[1:]:
                A(f"v_bitop3_b32 v{vX0}, v{vX0}, v{r}, {t} bitop3:0xf6")
            A(f"v_cmp_ne_u32 vcc, 0, v{vX0}")
        else:
            untag(checks)
        A(f"s_cbranch_vccz {done}")
        if sleep:
            A(f"s_sleep {sleep}")
        A(f"s_add_u32 s{sSPIN}, s{sSPIN}, 1\ns_cmp_lt_u32 s{sSPIN}, s{sLIM}\ns_cbranch_scc1 {top}")
        A(f"{done}:")

    def store2(line, cond_scc1_near):
        far = A.label("far"); done = A.label("st")
        A(cond_scc1_near)
        A(f"s_cbranch_scc0 {far}\n{line}\ns_branch {done}\n{far}:\n{line} sc1\n{done}:")

    def chk4(regs):
        return [(r + k, f"v{TX4+k}") for r in regs for k in range(4)]

    def next_slot(step):
        A(f"s_add_u32 s{sLB}, s{sLB}, {step*16384}\ns_and_b32 s{sLB}, s{sLB}, {NSLOT*16384-1}")

    def tail_prep():
        A(f"s_lshl_b32 s{sT2}, s{sTW}, 12\nv_lshl_add_u32 v{vWA}, v1, 2, s{sT2}")
        tabw = sum((4 * (worder.index(w) + 1)) << (8 * w) for w in range(4))
        A(f"s_lshl_b32 s{sT2}, s{sTW}, 3\ns_lshr_b32 s{sWT}, {hex(tabw)}, s{sT2}\ns_and_b32 s{sWT}, s{sWT}, 0xff\ns_add_u32 s{sWT}, s{sWT}, {8*U0+1024}")
        A(f"s_lshl_b32 s{sI1}, s{sX8}, 16\ns_and_b32 s{sT2}, s{sJJ}, 28\ns_add_u32 s{sT2}, s{sT2}, s{sTW}\ns_lshl_b32 s{sT2}, s{sT2}, 11")
        A(f"s_add_u32 s{sI1}, s{sI1}, s{sT2}\ns_add_u32 s{sI1}, s{sI1}, {WS_H1}")
        A(f"v_and_b32 v{vRW}, 0xff, v0\nv_lshlrev_b32 v{vRW}, 3, v{vRW}\nv_lshlrev_b32 v{vRR}, 3, v1")
        A(f"v_and_b32 v5, 15, v1\nv_lshlrev_b32 v5, 3, v5\nv_lshrrev_b32 v6, 4, v1\nv_lshl_add_u32 v{vO2}, v6, 13, v5")
        A(f"s_and_b32 s{sO2}, s{sJJ}, 3\ns_lshl_b32 s{sO2}, s{sO2}, 15\ns_lshl_b32 s{sT2}, s{sX8}, 10\ns_add_u32 s{sO2}, s{sO2}, s{sT2}")
        A(f"s_lshr_b32 s{sT2}, s{sJJ}, 2\ns_lshl_b32 s{sT2}, s{sT2}, 7\ns_add_u32 s{sO2}, s{sO2}, s{sT2}\ns_add_u32 s{sO2}, s{sO2}, {WS_H2}")

    def sigmoid(dst, src):
        A(f"v_mul_f32 v{dst}, s{sLOG2E}, v{src}\nv_exp_f32 v{dst}, -v{dst}\ns_nop 0\nv_add_f32 v{dst}, 1.0, v{dst}\nv_rcp_f32 v{dst}, v{dst}\ns_nop 0")

    A(f"{KNAME}_kernel:")
    A("s_cmpk_ge_u32 s2, 0x100\ns_cbranch_scc1 L_end")
    stamp(0)
    A(f"s_load_dwordx16 s[4:19], s[0:1], 0\ns_load_dwordx8 s[20:27], s[0:1], 64")
    A(f"v_and_b32 v1, 63, v0\nv_readfirstlane_b32 s{sW}, v0")
    A(f"s_and_b32 s{sX8}, s2, 7\ns_lshr_b32 s{sJJ}, s2, 3")
    A("v_lshlrev_b32 v4, 4, v1")
    A("v_lshrrev_b32 v2, 3, v1\nv_and_b32 v3, 0x70, v4")
    A(f"s_mov_b32 s{rA+3}, 0x20000\ns_lshr_b32 s{sW}, s{sW}, 6\ns_cbranch_scc1 L_e1")
    A(f"s_and_b32 s{sT1}, s{sJJ}, 7\ns_lshl3_add_u32 s{sT1}, s{sX8}, s{sT1}\ns_lshl_b32 s{sT1}, s{sT1}, 7")
    A(f"s_lshr_b32 s{sT2}, s2, 6\ns_lshl_b32 s{sT2}, s{sT2}, 20\ns_add_u32 s{sT1}, s{sT1}, s{sT2}")
    A(f"v_lshl_add_u32 v5, v2, 17, v3\ns_mov_b32 s{rA+2}, {hex(512 * 4096 * 2)}\ns_movk_i32 m0, {L_P}")
    A(f"s_waitcnt lgkmcnt(0)\ns_mov_b64 {s2(rA)}, {s2(sWQ)}")
    stamp(4, 4)
    A("L_wq:")
    A(f"buffer_load_dwordx4 v5, {s4(rA)}, s{sT1} offen {wflags} lds")
    A(f"s_addk_i32 m0, 0x400\ns_addk_i32 s{sT1}, 0x2000\ns_cmpk_lt_u32 m0, {L_P + 16384}\ns_cbranch_scc1 L_wq")
    A("s_branch L_e2")
    A("L_e1:")
    if cpf:
        A(f"s_cmp_lg_u32 s{sW}, 1\ns_cbranch_scc1 L_e1b")
        A(f"s_getpc_b64 {s2(sT0)}")
        A("L_pc:")
        A(f"s_mul_i32 s{sT2}, s{sJJ}, 768\nv_mad_u32_u24 v5, v1, 12, s{sT2}\nv_min_u32 v5, L_end-L_pc, v5")
        A(f"global_load_dword v16, v5, {s2(sT0)}")
        A("L_e1b:")
    A(f"s_cmp_lg_u32 s{sW}, 2\ns_cbranch_scc1 L_e2")
    A(f"s_movk_i32 s{rA+2}, 0x400\ns_waitcnt lgkmcnt(0)\ns_mov_b64 {s2(rA)}, {s2(sX)}")
    A(f"buffer_load_dwordx4 v[16:19], v4, {s4(rA)}, 0 offen")
    A("L_e2:")
    A(f"v_and_b32 v6, 15, v1\nv_cmp_eq_u32 vcc, {(F_DONE + 4 - L_FLAG) // 4}, v6\nv_lshlrev_b32 v6, 2, v6\nv_mov_b32 v7, 0")
    A(f"v_cndmask_b32 v5, 0, 1, vcc\nds_write_b32 v6, v5 offset:{L_FLAG}")
    if nb is None:
        A(f"s_mul_i32 s{sCB}, s{sX8}, 3\ns_lshr_b32 s{sT0}, s{sJJ}, 3\ns_add_u32 s{sCB}, s{sCB}, s{sT0}\ns_and_b32 s{sSUB}, s{sJJ}, 7")
        A(f"s_lshr_b32 s{sT0}, s{sX8}, 1\ns_add_u32 s{sT0}, s{sT0}, 24\ns_and_b32 s{sT1}, s{sX8}, 1\ns_lshl_b32 s{sT1}, s{sT1}, 2\ns_add_u32 s{sT1}, s{sT1}, s{sSUB}")
        A(f"s_cmp_ge_u32 s{sJJ}, 24\ns_cselect_b32 s{sCB}, s{sT0}, s{sCB}\ns_cselect_b32 s{sSUB}, s{sT1}, s{sSUB}")
        A(f"s_lshl_b32 s{sF}, s{sX8}, 2\ns_add_u32 s{sF}, s{sF}, s{sJJ}\ns_sub_u32 s{sF}, s{sF}, 28\ns_cmp_lt_u32 s{sJJ}, 28\ns_cselect_b32 s{sF}, -1, s{sF}")
    else:
        assert sum(nb) == 28
        free = [sum(4 - n for n in nb[:x]) for x in range(8)]
        tab = sum((nb[x] & 7 | (free[x] & 7) << 4) << (8 * x) for x in range(8))
        A(f"s_mov_b32 s{sT0}, {hex(tab & 0xffffffff)}\ns_mov_b32 s{sT1}, {hex(tab >> 32)}\ns_lshl_b32 s{sT2}, s{sX8}, 3\ns_lshr_b64 {s2(sT0)}, {s2(sT0)}, s{sT2}")
        A(f"s_bfe_u32 s{sT1}, s{sT0}, 0x30004\ns_and_b32 s{sT0}, s{sT0}, 7\ns_lshr_b32 s{sT2}, s{sJJ}, 3\ns_and_b32 s{sSUB}, s{sJJ}, 7")
        A(f"s_lshl2_add_u32 s{sCB}, s{sX8}, s{sT2}\ns_sub_u32 s{sCB}, s{sCB}, s{sT1}")
        A(f"s_sub_u32 s{sT1}, s{sT1}, s{sT0}\ns_lshl3_add_u32 s{sF}, s{sT1}, s{sJJ}\ns_cmp_lt_u32 s{sT2}, s{sT0}\ns_cselect_b32 s{sF}, -1, s{sF}")
    A(f"s_mov_b32 s{sSELL}, 0x05040100\ns_mov_b32 s{sSELH}, 0x07060302")
    A(f"s_mov_b32 s{sSCALE}, {hex(f2u(128 ** -0.5))}\ns_mov_b32 s{sLOG2E}, {hex(f2u(LOG2E))}\ns_mov_b32 s{sHI}, 0xffff0000")
    if stamps:
        for i in range(1, 8):
            if not (smode == 4 and i == 4):
                A(f"s_mov_b64 {s2(sST+2*i)}, 0")
    A("s_waitcnt lgkmcnt(0)")
    A("s_barrier")
    stamp(5, 5)
    A(f"s_load_dword s{sTAG}, {s2(sWS)}, {WS_EPOCH}")
    A(f"s_mov_b32 s{sLIM}, 0x40000\ns_mov_b32 s{sMODE}, 1")
    srd(rWS, sWS, hex(WS_SIZE))
    if skew is not None:
        srd(rB, sDBG, 256)
    A(f"s_cmp_lg_u32 s{sW}, 0\ns_cbranch_scc1 L_notloader")

    D = win
    first_k = (D - 1) % 8
    vCNT = 24
    cnt = [0]
    DD = [D]
    def ld(line, static=False):
        i = cnt[0]
        if not static or i >= D:
            A(f"s_waitcnt vmcnt({DD[0]-1})")
        if static and i == D - 1: stamp(5, 4)
        if static and i == D: stamp(6, 4)
        A(line)
        if i % 8 == first_k and (not static or i >= D - 1 + 8):
            A(f"ds_write_b32 v7, v{vCNT} offset:{F_RDY}\nv_add_u32 v{vCNT}, 8, v{vCNT}")
        cnt[0] += 1
    if lprio:
        A(f"s_setprio {lprio}")
    A(f"v_mov_b32 v{vCNT}, 8")
    cnt[0] = 16
    assert D >= 16
    A(f"s_cmp_lt_i32 s{sF}, 0\ns_cselect_b32 s{sT3}, {hex(512 * 1792 * 2)}, 0")
    srd(rD, sWD, f"s{sT3}")
    A(f"s_cmp_lt_u32 s{sSUB}, 4\ns_cselect_b32 s{rB}, s{sWG}, s{sWU}\ns_cselect_b32 s{rB+1}, s{sWG+1}, s{sWU+1}")
    A(f"s_mov_b32 s{rB+2}, s{sT3}\ns_mov_b32 s{rB+3}, 0x20000")
    A(f"s_and_b32 s{sT1}, s{sSUB}, 3\ns_mul_i32 s{sT1}, s{sT1}, {128*3584}\ns_lshl_b32 s{sT2}, s{sCB}, 7\ns_add_u32 s{sT1}, s{sT1}, s{sT2}")
    A(f"v_mul_u32_u24 v6, {16*3584}, v2\nv_add_u32 v6, v6, v3")
    L_GU = L_RING + (NSLOT - 1) * 16384
    for i in range(16):
        A(f"s_mov_b32 m0, {L_GU + 1024*i}")
        A(f"s_add_u32 s{sT2}, s{sT1}, {3584*i}")
        ld(f"buffer_load_dwordx4 v6, {s4(rB)}, s{sT2} offen {wflags} lds", True)
    A(f"s_lshl_b32 s{sT1}, s{sCB}, 16\ns_lshl_b32 s{sT2}, s{sSUB}, 7\ns_add_u32 s{sT1}, s{sT1}, s{sT2}")
    A(f"v_lshl_add_u32 v5, v2, 13, v3")
    for i in range(8):
        if i % 4 == 0:
            A(f"s_mov_b32 m0, {L_WD + 1024*i}")
            A(f"s_add_u32 s{sT2}, s{sT1}, {1024*i}")
        ld(f"buffer_load_dwordx4 v5, {s4(rD)}, s{sT2} offen offset:{1024*(i%4)} {wflags} lds", True)
    srd(rA, sWO, hex(4096 * 512 * 2))
    A(f"s_lshl_b32 s{sT1}, s{sX8}, 9\ns_lshr_b32 s{sT2}, s{sJJ}, 4\ns_lshl_b32 s{sT2}, s{sT2}, 6\ns_add_u32 s{sT1}, s{sT1}, s{sT2}")
    A(f"s_and_b32 s{sT2}, s{sJJ}, 12\ns_add_u32 s{sT1}, s{sT1}, s{sT2}\ns_lshl_b32 s{sT1}, s{sT1}, 10")
    A(f"s_and_b32 s{sT2}, s{sJJ}, 3\ns_lshl_b32 s{sT2}, s{sT2}, 8\ns_add_u32 s{sT1}, s{sT1}, s{sT2}")
    A(f"v_lshrrev_b32 v6, 4, v1\nv_lshlrev_b32 v6, 10, v6\nv_and_b32 v25, 15, v1\nv_lshl_add_u32 v6, v25, 4, v6")
    A(f"s_mov_b32 s{sH+3}, s{sT1}")
    assert cnt[0] == 8 * U0 and D + 7 <= 8 * U0
    stamp(1)
    A(f"s_lshl_b32 s{sT0}, s{sX8}, 24\ns_lshl_b32 s{sT1}, s{sJJ}, 19\ns_add_u32 s{sT0}, s{sT0}, s{sT1}")
    A(f"s_add_u32 s{rK}, s{sK}, s{sT0}\ns_addc_u32 s{rK+1}, s{sK+1}, 0\ns_mov_b32 s{rK+2}, 0x80000\ns_mov_b32 s{rK+3}, 0x20000")
    A(f"s_add_u32 s{rV}, s{sV}, s{sT0}\ns_addc_u32 s{rV+1}, s{sV+1}, 0\ns_mov_b32 s{rV+2}, 0x80000\ns_mov_b32 s{rV+3}, 0x20000")
    if il >= 3:
        A("v_and_b32 v27, 0xf0, v4\nv_bfe_u32 v5, v1, 4, 1\nv_lshl_add_u32 v27, v5, 9, v27\nv_lshrrev_b32 v5, 5, v1\nv_lshl_add_u32 v27, v5, 13, v27")
    else:
        A("v_mov_b32 v27, v4")
    A("v_lshrrev_b32 v5, 4, v1\nv_lshlrev_b32 v5, 6, v5\nv_xor_b32 v16, v27, v5")
    A("v_and_b32 v5, 16, v1\nv_lshlrev_b32 v5, 1, v5\nv_xor_b32 v20, v27, v5")
    for n in range(1, 4):
        A(f"v_xor_b32 v{16+n}, {16*n}, v16\nv_xor_b32 v{20+n}, {64*n}, v20")
    if il in (1, 2):
        for n in (2, 3):
            A(f"v_add_u32 v{16+n}, 6144, v{16+n}\nv_add_u32 v{20+n}, 6144, v{20+n}")
    sI, sLV = sH + 1, sH + 2
    NV = 8 * U0 + 1024
    NLD = NV + 16
    if not pace:
        wins = (win,); c0 = 0
    A(f"s_mov_b32 s{sCNT}, 0\ns_mov_b32 s{sLB}, 0\ns_mov_b32 s{sFL}, 0\ns_mov_b32 s{sH}, 0\ns_mov_b32 s{sI}, {8*U0}\nv_mov_b32 v25, 0\nv_subrev_u32 v26, 8, v{vCNT}")
    A("L_tile:")
    A(f"s_cmp_lg_u32 s{sCNT}, 32\ns_cbranch_scc1 L_nosw")
    stamp(4, 1); stamp(5, 3)
    A(f"s_mov_b64 {s2(rK)}, {s2(rV)}\ns_mov_b32 s{sH}, 0")
    for n in range(4):
        A(f"v_mov_b32 v{16+n}, v{20+n}")
    A("L_nosw:")
    A(f"s_sub_u32 s{sTHR}, s{sCNT}, {NSLOT-1}")
    A(f"s_cmp_lg_u32 s{sTHR}, 0\ns_cbranch_scc1 L_nogup")
    lds_wait(F_GUP, sT2, 1, "gup", sleep=0)
    stamp(2)
    A("L_nogup:")
    lds_wait(F_DONE, sFL, f"s{sTHR}", "free", sleep=0, cached=True, pair=True)
    A(f"s_add_u32 m0, s{sLB}, {L_RING}")
    if pace:
        A(f"s_waitcnt lgkmcnt(0)\nv_readfirstlane_b32 s{sLV}, v25\nds_read_b32 v25, v7 offset:{F_WIN}")
    order = sorted(range(len(wins)), key=lambda k: (abs(k - c0), -k))
    for idx, k in enumerate(order[1:]):
        A(f"s_cmp_eq_i32 s{sLV}, {k - c0}\ns_cbranch_scc1 L_ver{idx+1}")
    def version(idx, W):
        A(f"L_ver{idx}:")
        fr = int(round((W - int(W)) * 4)); W = int(W)
        extra = {0: (0, 0, 0, 0), 1: (0, 1, 0, 0), 2: (0, 1, 0, 1), 3: (0, 1, 1, 1)}[fr]
        A(f"s_sub_u32 s{sT2}, s{sI}, {W-1}\nv_mov_b32 v{vCNT}, s{sT2}")
        A(f"L_vq{idx}:")
        for hq in range(unq):
            for i, n in enumerate((0, 2, 1, 3) if il in (1, 4, 6) else (0, 1, 2, 3)):
                A(f"s_waitcnt vmcnt({W-1+extra[i]})")
                A(f"buffer_load_dwordx4 v{16+n}, {s4(rK)}, s{sH} offen offset:{1024*n} {kvflags} lds")
                if i == 0:
                    A(f"v_max_i32 v26, v26, v{vCNT}\nv_add_u32 v{vCNT}, 4, v{vCNT}\nds_write_b32 v7, v26 offset:{F_RDY}")
            step = {0: (0x1000,) * 2, 1: (0x800,) * 2, 2: (0x800,) * 2, 3: (0x100, 0xf00), 4: (0x100, 0xf00), 5: (0x1000, -0xf00), 6: (0x1000, -0xf00)}[il][hq % 2]
            A(f"s_addk_i32 m0, 0x1000\ns_addk_i32 s{sH}, {step}")
        if unq < 4:
            A(f"s_and_b32 s{sT2}, s{sH}, {0x1ff if il >= 5 else 0x1fff if il else 0x3fff}\ns_cbranch_scc1 L_vq{idx}")
    version(0, wins[order[0]])
    A("L_qend:")
    A(f"s_add_u32 s{sI}, s{sI}, 16")
    if il:
        A(f"s_addk_i32 s{sH}, {0x3e00 if il >= 5 else 0x2000}")
    next_slot(1)
    if stamps and smode == 3:
        for q in range(2):
            A(f"s_cmp_lg_u32 s{sCNT}, {32*q+15}\ns_cbranch_scc1 L_np{q}")
            stamp(4 + 2 * q, 3)
            A(f"L_np{q}:")
    A(f"s_add_u32 s{sCNT}, s{sCNT}, 1\ns_cmp_lt_u32 s{sCNT}, 64\ns_cbranch_scc1 L_tile")
    def pub(val):
        A(f"v_max_i32 v26, {val}, v26\nds_write_b32 v7, v26 offset:{F_RDY}")
    lds_wait(F_DONE, sFL, 64 - NSLOT + 1, "freew", sleep=0, cached=True, pair=True)
    if wwo <= 24:
        A("s_waitcnt vmcnt(24)"); pub(NV - 24)
    for i in range(16):
        w, h = worder[i // 4], i % 4
        A(f"s_mov_b32 m0, {L_WO + 4096*w + 1024*h}\ns_add_u32 s{sT2}, s{sH+3}, {(128*h + 16*w)*1024}")
        A(f"s_waitcnt vmcnt({wwo-1})")
        A(f"buffer_load_dwordx4 v6, {s4(rA)}, s{sT2} offen {wflags} lds")
        if (i - wwo + 1) % 8 == 0:
            pub(NV + i - wwo + 1)
    for rem in range((wwo - 1) // 4 * 4, -1, -4):
        if rem <= 16 or rem % 8 == 0:
            A(f"v_max_i32 v26, {NLD - rem}, v26\ns_waitcnt vmcnt({rem})\nds_write_b32 v7, v26 offset:{F_RDY}")
            if rem == 16:
                stamp(3)
    A("s_branch L_fin")

    for idx, k in enumerate(order[1:]):
        version(idx + 1, wins[k])
        A("s_branch L_qend")
    A("L_pace:")
    srd(rB, sDBG, 256)
    if skew is not None:
        A(f"s_cmp_lg_u32 s{sJJ}, 0\ns_cbranch_scc1 L_nosk")
        A(f"s_not_b32 s{sT0}, s{sST}\nv_mov_b32 v16, s{sT0}\ns_mov_b64 exec, 1\nbuffer_atomic_umax v16, v7, {s4(rB)}, 0 offen offset:64\ns_mov_b64 exec, -1")
        A("L_nosk:")
    make_tags()
    A(f"s_mov_b32 s{sTW}, 0")
    tail_prep()
    if pace:
        sP, sPP, sS, sD, sPGA, sOWN, sSP = sH, sH + 1, sH + 2, sH + 3, sH + 4, sH + 5, sH + 6
        sPAR = sH + 7
        if ebias is not None:
            A(f"s_getreg_b32 s{sPAR}, hwreg(HW_REG_XCC_ID, 0, 1)\ns_cmp_eq_u32 s{sPAR}, 0\ns_cselect_b32 s{sPAR}, {ebias}, 0")
        if wo_ is not None:
            A(f"s_getreg_b32 s{sPAR}, hwreg(HW_REG_XCC_ID, 0, 1)\ns_xor_b32 s{sPAR}, s{sPAR}, 1")
            lds_flag(F_WIN, val=f"s{sPAR}")
        lds_wait(F_QH, sMODE, 1, "qhp", sleep=8)
        A(f"s_cmp_lg_u32 s{sMODE}, 2\ns_cbranch_scc1 L_pdone")
        A(f"v_lshlrev_b32 v5, 2, v1")
        A(f"s_lshl_b32 s{sPGA}, s{sX8}, {pgs}\ns_add_u32 s{sPGA}, s{sPGA}, {WS_PG}\ns_lshl_b32 s{sOWN}, s{sJJ}, 2\ns_add_u32 s{sOWN}, s{sOWN}, s{sPGA}")
        A(f"s_mov_b32 s{sP}, 0\ns_mov_b32 s{sCNT}, 0\ns_mov_b32 s{sSP}, 0")
        A("L_pl:")
        A(f"s_mov_b32 s{sPP}, s{sP}\nds_read_b32 v16, v7 offset:{F_RDY}\ns_waitcnt lgkmcnt(0)\nv_readfirstlane_b32 s{sP}, v16")
        A(f"s_add_u32 s{sCNT}, s{sCNT}, 1\ns_cmp_gt_u32 s{sCNT}, 0x10000\ns_cbranch_scc1 L_pdone")
        A(f"s_and_b32 s{sT3}, s{sTAG}, 0xfffff800\ns_or_b32 s{sT0}, s{sT3}, s{sP}\nv_mov_b32 v16, s{sT0}")
        A(f"s_mov_b64 exec, 1\nbuffer_store_dword v16, v7, {s4(rWS)}, s{sOWN} offen\ns_mov_b64 exec, -1")
        A(f"s_cmp_ge_u32 s{sP}, {NV - endstop}\ns_cbranch_scc1 L_pdone")
        if pace == 1:
            A("s_mov_b32 exec_hi, 0")
        A(f"buffer_load_dword v17, v5, {s4(rWS)}, s{sPGA} offen sc1")
        A("s_waitcnt vmcnt(0)")
        A(f"v_xor_b32 v19, s{sT3}, v17\nv_cmp_lt_u32 vcc, 0x7ff, v19\ns_nop 0")
        if pace > 1:
            A(f"v_readlane_b32 s{sD}, v19, 32")
        for k in (8, 4, 2, 1):
            A(f"s_nop 1\nv_add_u32 v19, v19, v19 row_ror:{k}")
        A(f"s_cmp_lg_u32 vcc_lo, 0\ns_cbranch_scc1 L_pnext")
        A(f"v_readlane_b32 s{sS}, v19, 0\nv_readlane_b32 s{sT0}, v19, 16")
        A(f"s_cmp_eq_u32 s{sPP}, 0\ns_cbranch_scc1 L_pnext")
        A(f"s_add_u32 s{sS}, s{sS}, s{sT0}")
        A(f"s_add_u32 s{sT0}, s{sP}, s{sPP}\ns_lshl_b32 s{sT0}, s{sT0}, 4\ns_sub_u32 s{sT0}, s{sS}, s{sT0}")
        if ebias is not None:
            A(f"s_add_u32 s{sT0}, s{sT0}, s{sPAR}")
        A(f"s_add_u32 s{sT0}, s{sT0}, {(1 << (gs - 1)) + bias}\ns_ashr_i32 s{sT0}, s{sT0}, {gs}\ns_max_i32 s{sT0}, s{sT0}, 0")
        if istep != 1:
            A(f"s_mul_i32 s{sT0}, s{sT0}, {istep}")
        if pace > 1:
            A(f"s_cmp_lt_u32 s{sD}, 0x800\ns_cselect_b32 s{sD}, s{sD}, {c0}\ns_add_u32 s{sT0}, s{sT0}, s{sD}\ns_sub_u32 s{sT0}, s{sT0}, {c0}")
        if wo_ is not None:
            A(f"s_min_i32 s{sT0}, s{sT0}, {len(wins)-2}\ns_add_u32 s{sT0}, s{sT0}, s{sPAR}")
        else:
            A(f"s_min_i32 s{sT0}, s{sT0}, {len(wins)-1-c0}")
        A(f"v_mov_b32 v16, s{sT0}\nds_write_b32 v7, v16 offset:{F_WIN}")
        if pace > 1:
            A(f"s_and_b32 s{sT2}, s{sCNT}, {(1 << gper) - 1}\ns_lshl_b32 s{sT2}, s{sT2}, 5\ns_add_u32 s{sT2}, s{sT2}, s{sJJ}\ns_cmp_lg_u32 s{sT2}, 31\ns_cbranch_scc1 L_pnext")
            A(f"s_cmp_eq_u32 s{sSP}, 0\ns_cselect_b32 s{sT1}, 0x1000000, 0\ns_sub_u32 s{sT0}, s{sS}, s{sSP}\ns_add_u32 s{sT0}, s{sT0}, s{sT1}\nv_mov_b32 v16, s{sT0}")
            A(f"s_mov_b64 exec, 1\nbuffer_atomic_add v16, v7, {s4(rB)}, 0 offen sc0\ns_waitcnt vmcnt(0)\nv_readfirstlane_b32 s{sT0}, v16")
            A(f"s_add_u32 s{sT1}, s{sS}, s{sSP}\ns_mul_i32 s{sT1}, s{sT1}, 7\ns_lshr_b32 s{sT1}, s{sT1}, 1\ns_add_u32 s{sT1}, s{sT1}, s{sSP}\ns_mov_b32 s{sSP}, s{sS}")
            A(f"s_sub_u32 s{sT0}, s{sT0}, 0x8000000\ns_cbranch_scc1 L_pnext")
            A(f"s_sub_u32 s{sT0}, s{sT0}, s{sT1}\ns_add_u32 s{sT0}, s{sT0}, {(1 << (gs2 + 2)) + 8 * gbias}\ns_ashr_i32 s{sT0}, s{sT0}, {gs2 + 3}")
            A(f"s_max_i32 s{sT0}, s{sT0}, {gmin}\ns_min_i32 s{sT0}, s{sT0}, {gmax}\ns_add_u32 s{sT0}, s{sT0}, {c0}\ns_or_b32 s{sT0}, s{sT0}, s{sT3}\nv_mov_b32 v16, s{sT0}")
            A(f"buffer_store_dword v16, v7, {s4(rWS)}, s{sPGA} offen offset:128")
        A("L_pnext:")
        A(f"s_mov_b64 exec, -1\ns_sleep {psleep}\ns_branch L_pl")

    A("L_pdone:")
    A("s_branch L_endgate")

    A("L_notloader:")
    A(f"s_mov_b32 s{sTW}, s{sW}\ns_cmp_eq_u32 s{sW}, 4\ns_cbranch_scc1 L_pace")
    A(f"s_cmp_eq_u32 s{sW}, 3\ns_cbranch_scc1 L_help")
    A(f"s_sub_u32 s{sC}, s{sW}, 1")
    A(f"s_cmp_eq_u32 s{sW}, 2\ns_cbranch_scc1 L_w2")
    if qtouch:
        A(f"s_lshl_b32 s{sT1}, s{sX8}, 13\ns_lshl_b32 s{sT2}, s{sJJ}, 8\ns_add_u32 s{sT1}, s{sT1}, s{sT2}\ns_add_u32 s{sT1}, s{sT1}, {WS_QX}")
        A(f"v_lshlrev_b32 v5, 2, v1\nbuffer_load_dword v17, v5, {s4(rWS)}, s{sT1} offen sc1")
    make_tags()
    A("s_branch L_qwait")
    def slice_mv(sKS, lds_base, unit0, after_read=None):
        A(f"s_lshl_b32 s{sT2}, s{sKS}, 8\nv_lshl_add_u32 v5, v2, 5, s{sT2}")
        A(f"ds_read_b128 v[20:23], v5 offset:{L_XN}\nds_read_b128 v[24:27], v5 offset:{L_XN+16}")
        A(f"v_add_u32 v6, {lds_base}, v4")
        for half in range(2):
            lds_wait(F_RDY, sFL, 8 * (unit0 + half + 1), "wsl", sleep=1)
            for i in range(8):
                A(f"ds_read_b128 {v4(64+4*i)}, v6 offset:{8192*half + 1024*i}")
            lgkm(0)
            if half == 1:
                stamp(6, 2)
                if after_read:
                    after_read()
            matvec8(64, [f"v{20+4*half+k}" for k in range(4)], 32, 40, first=(half == 0))
        reduce8(32)
        A(f"v_lshrrev_b32 v6, 4, v1\nv_lshlrev_b32 v6, 6, v6\nv_lshrrev_b32 v5, 1, v3\nv_add_u32 v6, v6, v5")
    A("L_w2:")
    A(f"s_lshr_b32 s{sT3}, s2, 6")
    A("s_waitcnt vmcnt(0)")
    stamp(4, 2)
    ln_stats(16, 28, 29, 32)
    ln_apply(16, 28, 29, 32)
    A(f"ds_write_b128 v4, v[16:19] offset:{L_XN}")
    lds_flag(F_XN)
    stamp(5, 2)
    make_tags()
    slice_mv(sT3, L_P, 0)
    sXC = sH + 4
    A(f"s_getreg_b32 s{sXC}, hwreg(HW_REG_XCC_ID, 0, 4)")
    if force:
        A(f"s_and_b32 s{sXC}, s{sJJ}, 1")
    embed(34, 32, TX2); embed(35, 33, TX2 + 1)
    A(f"v_xor_b32 v32, s{sXC}, v34\nv_xor_b32 v33, s{sXC}, v35")
    A(f"s_lshl_b32 s{sH}, s{sX8}, 13\ns_add_u32 s{sH}, s{sH}, {WS_QX}\ns_lshl_b32 s{sT2}, s{sT3}, 11\ns_add_u32 s{sT1}, s{sH}, s{sT2}")
    A(f"s_and_b32 s{sT2}, s{sJJ}, 7\ns_lshl_b32 s{sT2}, s{sT2}, 8\ns_add_u32 s{sT1}, s{sT1}, s{sT2}")
    A("s_mov_b32 exec_lo, 0x00ff00ff\ns_mov_b32 exec_hi, 0x00ff00ff")
    A(f"buffer_store_dwordx2 v[32:33], v6, {s4(rWS)}, s{sT1} offen")
    A("s_mov_b64 exec, -1")
    stamp(1)
    for k in range(4):
        A(f"v_xor_b32 v{36+k}, s{sXC}, v{TX4+k}")
    A(f"s_add_u32 s{sH+1}, s{sH}, 4096\ns_mov_b32 s{sMODE}, 2")
    if qgate:
        lds_wait(F_RDY, sFL, 8 * qgate, "qgate", sleep=2)
    A(f"s_mov_b32 s{sSPIN}, 0")
    A("L_qpoll:")
    for i in range(8):
        A(f"buffer_load_dwordx4 {v4(64+4*i)}, v4, {s4(rWS)}, s{sH+i//4} offen offset:{1024*(i%4)} sc1")
    A("s_waitcnt vmcnt(0)")
    untag([(64 + i, f"v{36+i%4}") for i in range(32)])
    A("s_cbranch_vccz L_qok")
    A(f"s_sleep {qsleep}\ns_add_u32 s{sSPIN}, s{sSPIN}, 1\ns_cmp_lt_u32 s{sSPIN}, {qtry}\ns_cbranch_scc1 L_qpoll")
    A(f"s_cmp_lg_u32 s{sSPIN}, {qtry}\ns_cbranch_scc1 L_qflip")
    A(f"s_xor_b32 s{sT1}, s{sT1}, {WS_QXFAR}")
    A("s_mov_b32 exec_lo, 0x00ff00ff\ns_mov_b32 exec_hi, 0x00ff00ff")
    A(f"buffer_store_dwordx2 v[34:35], v6, {s4(rWS)}, s{sT1} offen sc1")
    A("s_mov_b64 exec, -1")
    A("L_qflip:")
    A(f"s_xor_b32 s{sH}, s{sH}, {WS_QXFAR}\ns_xor_b32 s{sH+1}, s{sH+1}, {WS_QXFAR}\ns_xor_b32 s{sMODE}, s{sMODE}, 3")
    for k in range(4):
        A(f"v_xor_b32 v{36+k}, s{sXC}, v{36+k}")
    A(f"s_cmp_lt_u32 s{sSPIN}, s{sLIM}\ns_cbranch_scc1 L_qpoll")
    A("L_qok:")
    for e in range(8):
        A(f"v_add_f32 v{64+e}, v{64+e}, v{72+e}\nv_add_f32 v{80+e}, v{80+e}, v{88+e}")
    for e in range(8):
        A(f"v_add_f32 v{64+e}, v{64+e}, v{80+e}")
    for e in range(4):
        A(f"v_cvt_pk_bf16_f32 v{64+e}, v{64+2*e}, v{65+2*e}")
    A(f"v_lshrrev_b32 v6, 4, v1\nv_lshlrev_b32 v6, 7, v6\nv_and_b32 v5, 3, v1\nv_lshl_add_u32 v6, v5, 5, v6")
    A(f"v_and_b32 v5, 12, v1\nv_add_u32 v6, v6, v5")
    for e in range(4):
        A(f"ds_write_b32 v6, v{64+e} offset:{L_Q + 16*(e&1) + 512*(e>>1)}")
    lds_flag(F_QH, val=f"s{sMODE}")
    A("L_qwait:")
    vOWN, vOTH = 30, 31
    A(f"s_lshl_b32 s{sT2}, s{sC}, 2\nv_mov_b32 v{vOWN}, s{sT2}\nv_xor_b32 v{vOTH}, 4, v{vOWN}")
    vQV, vKT, vS, vT, vMAX, vAD, vKA, vPA, vDN = 32, 96, 160, 164, 172, 176, 184, 188, 189
    A("v_and_b32 v5, 3, v1\nv_lshlrev_b32 v5, 10, v5\nv_bfe_u32 v6, v1, 2, 2\nv_lshl_add_u32 v5, v6, 8, v5")
    A(f"v_lshrrev_b32 v6, 4, v1\nv_xor_b32 v6, v6, v1\nv_and_b32 v6, 15, v6\nv_lshl_add_u32 v{vKA}, v6, 4, v5")
    for n in range(1, 4):
        A(f"v_xor_b32 v{vKA+n}, {64*n}, v{vKA}")
    A(f"v_and_b32 v5, 3, v1\nv_lshlrev_b32 v5, 6, v5\nv_lshrrev_b32 v6, 4, v1\nv_lshl_add_u32 v5, v6, 4, v5")
    A(f"v_mov_b32 v29, v5")
    A(f"v_and_b32 v6, 8, v1\nv_lshl_add_u32 v5, v6, 5, v5\nv_and_b32 v6, 4, v1\nv_lshl_add_u32 v5, v6, 1, v5")
    A(f"s_lshl_b32 s{sT2}, s{sC}, 9\nv_add_u32 v{vPA}, s{sT2}, v5")
    A(f"v_mov_b32 v{vMAX}, {hex(f2u(-3e38))}")
    A(f"s_add_u32 s{sT2}, s{sC}, 2\nv_mov_b32 v{vDN}, s{sT2}")
    A("v_and_b32 v6, 3, v1\nv_lshlrev_b32 v6, 8, v6\nv_lshrrev_b32 v5, 4, v1\nv_lshl_add_u32 v6, v5, 4, v6")
    A(f"s_mov_b32 s{sFL}, 0")
    lds_wait(F_QH, sMODE, 1, "qh", sleep=1)
    stamp(2)
    for s in range(4):
        A(f"ds_read_b128 {v4(vKT+4*s)}, v6 offset:{L_Q + 64*s}")
    lgkm(0)
    for b in range(4):
        A(f"s_mov_b32 vcc_lo, {hex(0x000f000f << (4*b))}\ns_mov_b32 vcc_hi, {hex(0x000f000f << (4*b))}")
        for i in range(16):
            A(f"v_cndmask_b32 v{vQV+16*b+i}, 0, v{vKT+i}, vcc")
    A(f"s_lshl_b32 s{sLB}, s{sC}, 14\ns_lshl_b32 s{sTHR}, s{sC}, 4\ns_add_u32 s{sTHR}, s{sTHR}, {8*(U0+2)}")
    A(f"s_mov_b32 s{sCNT}, 0")
    A("L_p1:")
    for n in range(4):
        A(f"v_add_u32 v{vAD+n}, s{sLB}, v{vKA+n}")
    lds_wait(F_RDY, sFL, f"s{sTHR}", "krdy", sleep=csleep, cached=True)
    for b in range(4):
        for n in range(4):
            A(f"ds_read_b128 {v4(vKT+16*b+4*n)}, v{vAD+n} offset:{L_RING + 4096*b}")
    for b in range(4):
        lgkm(12 - 4 * b)
        if b == 3:
            A(f"ds_write_b32 v{vOWN}, v{vDN} offset:{F_DONE}")
        for n in range(4):
            c = "0" if b + n == 0 else v4(vS)
            A(f"v_mfma_f32_16x16x32_bf16 {v4(vS)}, {v4(vKT+16*b+4*n)}, {v4(vQV+16*b+4*n)}, {c}")
    A(f"v_add_u32 v{vDN}, 2, v{vDN}\nv_min_u32 v{vDN}, 32, v{vDN}")
    next_slot(2)
    A(f"s_add_u32 s{sTHR}, s{sTHR}, 32\ns_add_u32 s{sCNT}, s{sCNT}, 1\ns_nop 3")
    A(f"v_cvt_pk_bf16_f32 v{vT}, v{vS}, v{vS+1}\nv_cvt_pk_bf16_f32 v{vT+1}, v{vS+2}, v{vS+3}")
    A(f"v_max3_f32 v{vMAX}, v{vMAX}, v{vS}, v{vS+1}\nv_max3_f32 v{vMAX}, v{vMAX}, v{vS+2}, v{vS+3}")
    for j in range(2):
        A(f"v_lshlrev_b32 v{vT+2+2*j}, 16, v{vT+j}\nv_and_b32 v{vT+3+2*j}, s{sHI}, v{vT+j}")
    for i in range(4):
        A(f"v_mul_f32 v{vT+2+i}, s{sSCALE}, v{vT+2+i}")
    A(f"v_cvt_pk_bf16_f32 v{vT}, v{vT+2}, v{vT+3}\nv_cvt_pk_bf16_f32 v{vT+1}, v{vT+4}, v{vT+5}")
    A(f"ds_write_b64 v{vPA}, {v2(vT)} offset:{L_P}\nv_add_u32 v{vPA}, 1024, v{vPA}")
    A(f"s_cmp_lt_u32 s{sCNT}, 16\ns_cbranch_scc1 L_p1")
    stamp(4, 1)
    wave_red(vMAX, vX0, "v_max_f32", (8, 4))
    A(f"v_and_b32 v5, 3, v1\nv_lshlrev_b32 v5, 2, v5\nv_lshl_add_u32 v6, v{vOWN}, 2, v5\nv_xor_b32 v5, 16, v6")
    A(f"ds_write_b32 v6, v{vMAX} offset:{L_MX}")
    lds_flag(F_MX, vaddr=vOWN)
    A(f"v_subrev_u32 v{vPA}, 16384, v{vPA}")
    lds_wait(F_MX, sT0, 1, "mx", sleep=0, vaddr=vOTH)
    A(f"ds_read_b32 v{vX1}, v5 offset:{L_MX}")
    for i in range(16):
        A(f"ds_read_b64 {v2(32+2*i)}, v{vPA} offset:{L_P + 1024*i}")
    lgkm(0)
    vMN, vLSUM = 173, 174
    A(f"v_max_f32 v{vMAX}, v{vMAX}, v{vX1}")
    rnd_bf16(vMAX)
    A(f"v_mul_f32 v{vMAX}, s{sSCALE}, v{vMAX}")
    rnd_bf16(vMAX)
    A(f"v_mul_f32 v{vMN}, s{sLOG2E}, v{vMAX}\nv_mov_b32 v{vLSUM}, 0")
    for i in range(0, 16, 2):
        E = 96
        for j in range(4):
            A(f"v_lshlrev_b32 v{E+2*j}, 16, v{32+2*i+j}\nv_and_b32 v{E+2*j+1}, s{sHI}, v{32+2*i+j}")
        for j in range(8):
            A(f"v_fma_f32 v{E+j}, v{E+j}, s{sLOG2E}, -v{vMN}")
        for j in range(8):
            A(f"v_exp_f32 v{E+j}, v{E+j}")
        A("s_nop 0")
        for j in range(4):
            A(f"v_cvt_pk_bf16_f32 v{32+2*i+j}, v{E+2*j}, v{E+2*j+1}")
        A(f"ds_write_b64 v{vPA}, {v2(32+2*i)} offset:{L_P + 1024*i}\nds_write_b64 v{vPA}, {v2(34+2*i)} offset:{L_P + 1024*(i+1)}")
        for j in range(4):
            A(f"v_add_f32 v{E+j}, v{E+j}, v{E+4+j}")
        A(f"v_add_f32 v{E}, v{E}, v{E+1}\nv_add_f32 v{E+2}, v{E+2}, v{E+3}\nv_add_f32 v{vLSUM}, v{vLSUM}, v{E}\nv_add_f32 v{vLSUM}, v{vLSUM}, v{E+2}")
    wave_red(vLSUM, vX0, "v_add_f32", (8, 4))
    A(f"v_lshlrev_b32 v6, 1, v6\nv_mov_b32 v{vLSUM+1}, v{vMN}\nds_write_b64 v6, {v2(vLSUM)} offset:{L_LS}")
    lds_flag(F_PD, vaddr=vOWN)
    vO, vVF, vPF, vVA = 32, 48, 80, 184
    A("v_and_b32 v5, 12, v1\nv_lshrrev_b32 v6, 4, v1\nv_add_u32 v6, v6, v5\nv_lshlrev_b32 v6, 8, v6")
    A(f"v_lshrrev_b32 v{vX1}, 3, v1\nv_and_b32 v{vX1}, 2, v{vX1}\nv_or_b32 v5, v5, v{vX1}")
    A(f"v_bfe_u32 v{vX1}, v1, 1, 1\nv_xor_b32 v5, v5, v{vX1}\ns_lshl_b32 s{sT2}, s{sC}, 3\nv_xor_b32 v5, s{sT2}, v5")
    A(f"v_lshl_add_u32 v6, v5, 4, v6\nv_and_b32 v5, 1, v1\nv_lshl_add_u32 v{vVA}, v5, 3, v6")
    for n in range(1, 4):
        A(f"v_xor_b32 v{vVA+n}, {32*n}, v{vVA}")
    for i in range(4):
        A(f"v_mov_b32 v{vO+i}, 0")
    for i in range(32):
        A(f"v_mov_b32 v{vPF+i}, 0")
    for T in range(4):
        A(f"s_mov_b32 s{sPM+2*T}, {hex(0x000f000f << (4*T))}\ns_mov_b32 s{sPM+2*T+1}, s{sPM+2*T}")
    A(f"v_mov_b32 v{vDN}, 33\nv_mov_b32 v{vPA}, v29")
    A(f"s_mov_b32 s{sLB}, {(32 % NSLOT) * 16384}\ns_mov_b32 s{sTHR}, {8*(U0+64+1)}\ns_mov_b32 s{sCNT}, 0")
    tail_prep()
    A(f"v_lshrrev_b32 v6, 2, v1\nv_lshlrev_b32 v6, 11, v6\nv_and_b32 v5, 3, v1\nv_lshl_add_u32 v{vO1}, v5, 4, v6")
    A(f"s_lshl_b32 s{sT1}, s{sX8}, 16\ns_lshl_b32 s{sT2}, s{sC}, 15\ns_add_u32 s{sT1}, s{sT1}, s{sT2}")
    A(f"s_lshl_b32 s{sT2}, s{sJJ}, 6\ns_add_u32 s{sT1}, s{sT1}, s{sT2}\ns_add_u32 s{sT1}, s{sT1}, {WS_H1}")
    lds_wait(F_PD, sT0, 1, "pd", sleep=0, vaddr=vOTH)
    stamp(5, 1)
    vSC = 28
    A("L_p2:")
    for n in range(4):
        A(f"v_add_u32 v{vAD+n}, s{sLB}, v{vVA+n}")
    A(f"s_cmp_lg_u32 s{sCNT}, {prept}\ns_cbranch_scc1 L_nosc")
    lds_wait(F_SC, sT0, 1, "sc", sleep=1)
    A(f"v_and_b32 v5, 3, v1\nv_lshlrev_b32 v5, 2, v5\nds_read_b32 v{vSC}, v5 offset:{L_SC}")
    A("L_nosc:")
    for T in range(4):
        A(f"s_mov_b64 exec, {s2(sPM+2*T)}")
        for ks in range(2):
            A(f"ds_read_b128 {v4(vPF+16*ks+4*T)}, v{vPA} offset:{L_P + 256*ks}")
    A("s_mov_b64 exec, -1")
    for ks in range(2):
        lds_wait(F_RDY, sFL, f"s{sTHR}", "vrdy", sleep=csleep, cached=True)
        for T in range(4):
            for ih in range(2):
                A(f"ds_read_b64_tr_b16 {v2(vVF+16*ks+4*T+2*ih)}, v{vAD+T} offset:{L_RING + 8192*ks + 4096*ih}")
        A(f"s_add_u32 s{sTHR}, s{sTHR}, 8")
        if ks == 1:
            next_slot(1)
            A(f"s_add_u32 s{sCNT}, s{sCNT}, 1\nv_add_u32 v{vPA}, 512, v{vPA}")
        for T in range(4):
            lgkm(6 - 2 * T)
            A(f"v_mfma_f32_16x16x32_bf16 {v4(vO)}, {v4(vVF+16*ks+4*T)}, {v4(vPF+16*ks+4*T)}, {v4(vO)}")
    A(f"ds_write_b32 v{vOWN}, v{vDN} offset:{F_DONE}\nv_add_u32 v{vDN}, 1, v{vDN}")
    A(f"s_cmp_lt_u32 s{sCNT}, 32\ns_cbranch_scc1 L_p2")
    stamp(3)
    A(f"s_cmp_eq_u32 s{sMODE}, 2\ns_nop 2")
    for r in range(4):
        A(f"v_mul_f32 v{vO+r}, v{vO+r}, v{vSC}")
    for r in range(4):
        embed(vO + r, vO + r, TX4 + r)
    A(f"s_cbranch_scc0 L_h1far\nbuffer_store_dwordx4 {v4(vO)}, v{vO1}, {s4(rWS)}, s{sT1} offen\ns_branch L_tail")
    A(f"L_h1far:\nbuffer_store_dwordx4 {v4(vO)}, v{vO1}, {s4(rWS)}, s{sT1} offen sc1\ns_branch L_tail")

    A("L_help:")
    srd(rA, sX, 1024)
    vG, vXP = 56, 58
    A(f"s_cmp_ge_i32 s{sF}, 0\ns_cbranch_scc1 L_h3f")
    A(f"s_and_b32 s{sT3}, s{sSUB}, 3")
    make_tags()
    lds_wait(F_XN, sT0, 1, "xn", sleep=2)
    slice_mv(sT3, L_GU, 2, after_read=lambda: lds_flag(F_GUP))
    embed(32, 32, TX2); embed(33, 33, TX2 + 1)
    lds_wait(F_QH, sMODE, 1, "qh3", sleep=4)
    A(f"s_lshl_b32 s{sT0}, s{sCB}, 11\ns_add_u32 s{sT0}, s{sT0}, {WS_G1}\ns_lshl_b32 s{sT1}, s{sSUB}, 8\ns_add_u32 s{sT1}, s{sT1}, s{sT0}")
    if skip & 4: A("s_branch L_hstat")
    A("s_mov_b32 exec_lo, 0x00ff00ff\ns_mov_b32 exec_hi, 0x00ff00ff")
    store2(f"buffer_store_dwordx2 v[32:33], v6, {s4(rWS)}, s{sT1} offen",
           f"s_cmp_lt_u32 s{sJJ}, {24 if nb is None else 32}\ns_cselect_b32 s{sT2}, s{sMODE}, 1\ns_cmp_eq_u32 s{sT2}, 2")
    A("s_mov_b64 exec, -1")
    stamp(1)
    lds_wait(F_RDY, sFL, 8 * g2gate, "g2gate", sleep=16)
    for i in range(8):
        A(f"ds_read_b128 {v4(64+4*i)}, v4 offset:{L_WD + 1024*i}")
    poll([f"buffer_load_dwordx4 {v4(32+4*i)}, v4, {s4(rWS)}, s{sT0} offen offset:{1024*i} sc1" for i in range(2)],
         chk4([32, 36]), "g1poll", sleep=32)
    for e in range(8):
        swap_red(32 + e, vX0, "v_add_f32")
        rnd_bf16(32 + e)
    for e in range(4):
        sigmoid(32 + e, 32 + e)
        rnd_bf16(32 + e)
        A(f"v_mul_f32 v{32+e}, v{32+e}, v{36+e}")
    A("v_cvt_pk_bf16_f32 v32, v32, v33\nv_cvt_pk_bf16_f32 v33, v34, v35")
    A("v_and_b32 v5, 3, v1\nv_lshlrev_b32 v5, 5, v5\nv_and_b32 v6, 12, v1\nv_add_u32 v5, v5, v6\nv_lshlrev_b32 v6, 4, v2")
    A(f"ds_write_b32 v5, v32 offset:{L_HB}\nds_write_b32 v5, v33 offset:{L_HB+16}\nds_read_b128 v[20:23], v6 offset:{L_HB}")
    lgkm(0)
    matvec8(64, [f"v{20+k}" for k in range(4)], 32, 40)
    reduce8(32)
    A(f"v_lshrrev_b32 v6, 4, v1\nv_lshlrev_b32 v6, 3, v6\nv_lshl_add_u32 v6, v3, 1, v6\nv_lshlrev_b32 v5, 2, v1")
    A(f"ds_write_b64 v6, v[32:33] offset:{L_HB}\nds_read_b32 v32, v5 offset:{L_HB}")
    A(f"v_and_b32 v5, 7, v1\nv_lshlrev_b32 v5, 2, v5\nv_lshrrev_b32 v33, v5, s{sTAG}\nv_and_b32 v33, 15, v33")
    A(f"v_lshrrev_b32 v6, 4, v1\nv_lshlrev_b32 v6, 11, v6\nv_and_b32 v5, 15, v1\nv_lshl_add_u32 v6, v5, 2, v6")
    A(f"s_lshl_b32 s{sT1}, s{sSUB}, 13\ns_lshl_b32 s{sT2}, s{sCB}, 6\ns_add_u32 s{sT1}, s{sT1}, s{sT2}\ns_add_u32 s{sT1}, s{sT1}, {WS_GL}")
    lgkm(0)
    embed(32, 32, 33)
    if not skip & 1:
        A(f"buffer_store_dword v32, v6, {s4(rWS)}, s{sT1} offen sc1")
    A("s_branch L_hstat")
    A("L_h3f:")
    make_tags()
    lds_flag(F_GUP)
    if skip & 2: A("s_branch L_hstat")
    lds_wait(F_RDY, sFL, 8 * g3gate, "g3gate", sleep=16)
    A(f"s_mov_b32 s{sT0}, s{sF}")
    A(f"v_and_b32 v6, 3, v1\nv_lshlrev_b32 v6, 3, v6\nv_lshrrev_b32 v5, 5, v1\nv_lshl_add_u32 v6, v5, 2, v6\ns_lshl_b32 s{sT1}, s{sT0}, 5")
    A(f"buffer_load_dword v{vXP}, v6, {s4(rA)}, s{sT1} offen")
    A(f"s_lshl_b32 s{sH}, s{sT0}, 11\ns_add_u32 s{sH}, s{sH}, {WS_GL}")
    A(f"v_min_u32 v6, 47, v1\nv_and_b32 v6, 60, v6\nv_and_b32 v5, 3, v1\nv_or_b32 v6, v6, v5\nv_lshlrev_b32 v6, 4, v6")
    poll([f"buffer_load_dwordx4 v[64:67], v4, {s4(rWS)}, s{sH} offen sc1",
          f"buffer_load_dwordx4 v[68:71], v6, {s4(rWS)}, s{sH} offen offset:1024 sc1"], chk4([64, 68]), "gpoll", sleep=64)
    A("s_mov_b32 exec_hi, 0xffff")
    for e in range(4):
        A(f"v_add_f32 v{64+e}, v{64+e}, v{68+e}")
    A("s_mov_b64 exec, -1")
    red4(64)
    for e in range(2):
        rnd_bf16(64 + e)
        sigmoid(68, 64 + e)
        A(f"v_mul_f32 v{vG+e}, v{64+e}, v68")
        rnd_bf16(vG + e)
    A("L_hstat:")
    stamp(2)
    lds_wait(F_PD, sT0, 1, "pdh", sleep=16, pair=True)
    lds_wait(F_QH, sMODE, 1, "qh4", sleep=4)
    A(f"v_and_b32 v5, 3, v1\nv_lshlrev_b32 v5, 3, v5")
    A(f"ds_read_b64 v[32:33], v5 offset:{L_LS}\nds_read_b32 v34, v5 offset:{L_LS+32}")
    lgkm(0)
    A(f"v_add_f32 v32, v32, v34\nv_log_f32 v32, v32\nv_mov_b32 v35, s{sTAG}\nv_add_f32 v34, v32, v33")
    A(f"s_lshl_b32 s{sT0}, s{sX8}, 10\ns_add_u32 s{sT0}, s{sT0}, {WS_LS}\ns_lshl_b32 s{sT1}, s{sJJ}, 5\ns_add_u32 s{sT1}, s{sT1}, s{sT0}")
    A("s_mov_b64 exec, 15")
    store2(f"buffer_store_dwordx2 v[34:35], v5, {s4(rWS)}, s{sT1} offen", f"s_cmp_eq_u32 s{sMODE}, 2")
    A("s_mov_b64 exec, -1")
    lds_wait(F_RDY, sFL, 8 * lsgate, "lsgate", sleep=16)
    A(f"v_lshlrev_b32 v6, 3, v1")
    poll([f"buffer_load_dwordx2 {v2(36+2*i)}, v6, {s4(rWS)}, s{sT0} offen offset:{512*i} sc1" for i in range(2)],
         [(37, f"s{sTAG}"), (39, f"s{sTAG}")], "lspoll", sleep=16, full=True)
    A("v_max_f32 v40, v36, v38")
    wave_red(40, vX0, "v_max_f32", (8, 4))
    A("v_sub_f32 v36, v36, v40\nv_sub_f32 v38, v38, v40\nv_exp_f32 v36, v36\nv_exp_f32 v38, v38\nv_sub_f32 v33, v33, v40\nv_add_f32 v36, v36, v38")
    wave_red(36, vX0, "v_add_f32", (8, 4))
    A("v_exp_f32 v33, v33\nv_rcp_f32 v36, v36\nv_lshrrev_b32 v5, 1, v5\nv_mul_f32 v33, v33, v36")
    A(f"ds_write_b32 v5, v33 offset:{L_SC}")
    lds_flag(F_SC)
    stamp(3)
    tail_prep()
    if dry:
        A(f"s_mov_b32 s{rWS+2}, 0\ns_mov_b32 s{sLIM}, 0\ns_branch L_tail")
        A("L_dryret:")
        A(f"s_mov_b64 exec, -1\ns_mov_b32 s{rWS+2}, {hex(WS_SIZE)}\ns_mov_b32 s{sLIM}, 0x40000")
    if touch:
        lds_wait(F_RDY, sFL, NV - touch, "touch", sleep=4)
        A(f"s_lshl_b32 s{sT1}, s{sX8}, 16\ns_lshl_b32 s{sT2}, s{sJJ}, 11\ns_add_u32 s{sT1}, s{sT1}, s{sT2}\ns_add_u32 s{sT1}, s{sT1}, {WS_H1}")
        A(f"v_lshlrev_b32 v5, 5, v1\nbuffer_load_dword v40, v5, {s4(rWS)}, s{sT1} offen sc1")
        if wtouch:
            srd(rA, sWO, hex(4096 * 512 * 2))
            A(f"s_lshl_b32 s{sT1}, s{sX8}, 19\nbuffer_load_dword v41, v7, {s4(rA)}, s{sT1} offen")
    A("L_endgate:")

    A("L_tail:")
    stamp(4, 0)
    lds_wait(F_RDY, sFL, f"s{sWT}", "wordy", sleep=0)
    for n in range(16):
        A(f"ds_read_b32 v{vWT+n}, v{vWA} offset:{L_WO + 256*n}")
    def wo_pairs():
        lgkm(0)
        for u in range(8):
            A(f"v_perm_b32 v{vWO+2*u}, v{vWT+1+2*u}, v{vWT+2*u}, s{sSELL}\nv_perm_b32 v{vWO+1+2*u}, v{vWT+1+2*u}, v{vWT+2*u}, s{sSELH}")
    poll([f"buffer_load_dwordx4 {v4(40+4*i)}, v4, {s4(rWS)}, s{sI1} offen offset:{1024*i} sc1" for i in range(2)],
         chk4([40, 44]), "h1poll", sleep=h1sleep, mid=wo_pairs)
    stamp(5, 0)
    padd(40, 40, 44, 4)
    red4(40)
    A(f"v_cvt_pk_bf16_f32 v40, v40, v41\ns_nop 0")
    for u in range(8):
        A(f"v_readlane_b32 s{sH+u}, v40, {32*(u&1) + (u>>1)}")
    for u in range(8):
        for z in range(2):
            c = "0" if u == 0 else f"v{48+z}"
            A(f"v_dot2_f32_bf16 v{48+z}, s{sH+u}, v{vWO+2*u+z}, {c}")
    if dry:
        A(f"s_cmp_eq_u32 s{sLIM}, 0\ns_cbranch_scc1 L_t2b\ns_cmp_lg_u32 s{sTW}, 3")
    else:
        A(f"s_cmp_lg_u32 s{sTW}, 3\ns_nop 1")
    A(f"ds_write_b64 v{vRW}, v[48:49] offset:{L_RED}")
    A("s_waitcnt lgkmcnt(0)\ns_barrier\ns_cbranch_scc1 L_fin")
    A("L_t2b:")
    for p in range(3):
        A(f"ds_read_b64 {v2(42+2*p)}, v{vRR} offset:{L_RED + 512*p}")
    lgkm(0)
    padd(48, 48, 42, 2); padd(44, 44, 46, 2); padd(48, 48, 44, 2)
    embed(48, 48, TX2); embed(49, 49, TX2 + 1)
    A(f"buffer_store_dwordx2 v[48:49], v{vO2}, {s4(rWS)}, s{sO2} offen sc1")
    if dry:
        A(f"s_cmp_eq_u32 s{sLIM}, 0\ns_cbranch_scc1 L_t3b")
    if wb:
        A(f"s_cmp_lg_u32 s{sJJ}, 0\ns_cbranch_scc1 L_nowb\ns_waitcnt vmcnt(0)\nbuffer_wbl2 sc1\nL_nowb:")
    A(f"s_cmp_lt_i32 s{sF}, 0\ns_cbranch_scc1 L_fin")
    A("L_t3b:")
    A(f"s_and_b32 s{sT0}, s{sF}, 31")
    A(f"s_lshr_b32 s{sT1}, s{sT0}, 1\ns_lshl_b32 s{sT1}, s{sT1}, 13\ns_and_b32 s{sT2}, s{sT0}, 1\ns_lshl_b32 s{sT2}, s{sT2}, 6\ns_add_u32 s{sT1}, s{sT1}, s{sT2}")
    A(f"s_add_u32 s{sT1}, s{sT1}, {WS_H2}\ns_add_u32 s{sT2}, s{sT1}, 4096\ns_lshl_b32 s{sT3}, s{sT0}, 5")
    A(f"v_lshrrev_b32 v55, 2, v1\nv_lshlrev_b32 v55, 7, v55\nv_and_b32 v5, 3, v1\nv_lshl_add_u32 v55, v5, 4, v55")
    A(f"v_lshlrev_b32 v5, 1, v5\nv_lshrrev_b32 v6, 5, v1\nv_add_u32 v5, v5, v6\nv_lshlrev_b32 v52, 2, v5")
    A(f"v_lshlrev_b32 v50, 16, v{vXP}\nv_and_b32 v51, s{sHI}, v{vXP}")
    A(f"s_min_u32 s{sH}, s{sLIM}, 1024")
    srd(rA, sOUT, f"s{sH}")
    if ackwait:
        A("s_waitcnt vmcnt(0)")
    if presleep:
        A(f"s_sleep {presleep}")
    poll([f"buffer_load_dwordx4 {v4(64+4*i)}, v55, {s4(rWS)}, s{sT1+i//2} offen offset:{2048*(i%2)} sc1" for i in range(4)],
         chk4([64, 68, 72, 76]), "h2poll", sleep=h2sleep)
    stamp(6, 0)
    padd(64, 64, 72, 8)
    padd(64, 64, 68, 4)
    red4(64)
    A(f"v_cvt_pk_bf16_f32 v64, v64, v65\nv_and_b32 v65, s{sHI}, v64\nv_lshlrev_b32 v64, 16, v64")
    A(f"v_mul_f32 v64, v64, v{vG}\nv_mul_f32 v65, v65, v{vG+1}")
    A(f"v_cvt_pk_bf16_f32 v64, v64, v65\nv_and_b32 v65, s{sHI}, v64\nv_lshlrev_b32 v64, 16, v64")
    A("v_add_f32 v64, v64, v50\nv_add_f32 v65, v65, v51\nv_cvt_pk_bf16_f32 v64, v64, v65")
    A("s_mov_b32 exec_lo, 15\ns_mov_b32 exec_hi, 15")
    A(f"buffer_store_dword v64, v52, {s4(rA)}, s{sT3} offen {outflags}")
    if dry:
        A(f"s_cmp_eq_u32 s{sLIM}, 0\ns_cbranch_scc1 L_dryret")
    A(f"s_cmp_lg_u32 s{sT0}, 0\ns_cbranch_scc1 L_fin")
    A(f"s_mov_b64 exec, 1\nv_mov_b32 v65, s{sTAG}")
    A(f"buffer_store_dword v65, v7, {s4(rWS)}, 0 offen offset:{WS_EPOCH} {epflags}")
    A("L_fin:")
    if stamps:
        A("s_mov_b64 exec, -1")
        A("s_waitcnt vmcnt(0)")
        stamp(7)
        A("s_waitcnt lgkmcnt(0)")
        if skew is not None:
            if span is None:
                A(f"s_cmp_lg_u32 s{sW}, 4\ns_cbranch_scc1 L_skout\ns_cmp_lg_u32 s2, {skew}\ns_cbranch_scc1 L_skout")
            else:
                A(f"s_cmp_lg_u32 s{sW}, {span[0]}\ns_cbranch_scc1 L_skout")
                if len(span) > 2:
                    A(f"s_cmp_lg_u32 s{sX8}, {span[2]}\ns_cbranch_scc1 L_skout")
                if span[0] == 0:
                    A(f"s_load_dwordx2 s[44:45], s[0:1], 80\ns_waitcnt lgkmcnt(0)\ns_sleep 127")
            srd(rB, 44, 256)
            A(f"buffer_load_dword v16, v7, {s4(rB)}, 0 offen offset:64 sc1\ns_waitcnt vmcnt(0)\nv_readfirstlane_b32 s{sT2}, v16\ns_nop 3")
            if span is None:
                A(f"s_not_b32 s{sT0}, s{sT2}\ns_sub_u32 s{sT2}, s{sST}, s{sT0}\ns_mul_i32 s{sT2}, s{sT2}, 20\ns_min_u32 s{sT2}, s{sT2}, 100000")
            else:
                A(f"s_not_b32 s{sT0}, s{sT2}\ns_sub_u32 s{sT2}, s{sST+2*span[1]}, s{sT0}\ns_sub_u32 s{sT2}, s{sT2}, 3000\ns_mul_i32 s{sT2}, s{sT2}, 10\ns_min_u32 s{sT2}, s{sT2}, 100000")
            A(f"s_add_u32 s{sT2}, s{sT2}, s{sT0}\ns_add_u32 s{sT2}, s{sT2}, 10000")
            A("L_skpad:")
            A(f"s_memrealtime {s2(sH)}\ns_waitcnt lgkmcnt(0)\ns_sub_u32 s{sT3}, s{sH}, s{sT2}\ns_cmp_lt_i32 s{sT3}, 0\ns_cbranch_scc1 L_skpad")
            A("L_skout:")
        if diag is not None:
            dw, dwg, di, dj, mult = diag
            A(f"s_cmp_lg_u32 s{sW}, {dw}\ns_cbranch_scc1 L_padout")
            if dwg >= 0:
                A(f"s_cmp_lg_u32 s2, {dwg}\ns_cbranch_scc1 L_padout")
            A(f"s_cmp_eq_u32 s{sST+2*di}, 0\ns_cbranch_scc1 L_padout")
            A(f"s_sub_u32 s{sT2}, s{sST+2*di}, s{sST+2*dj}\ns_mul_i32 s{sT2}, s{sT2}, {mult}\ns_min_u32 s{sT2}, s{sT2}, 100000")
            A(f"s_add_u32 s{sT2}, s{sT2}, s{sST}\ns_add_u32 s{sT2}, s{sT2}, 10000")
            A("L_pad:")
            A(f"s_memrealtime {s2(sH)}\ns_waitcnt lgkmcnt(0)\ns_sub_u32 s{sT3}, s{sH}, s{sT2}\ns_cmp_lt_i32 s{sT3}, 0\ns_cbranch_scc1 L_pad")
            A("L_padout:")
        if pad is not None:
            A(f"s_cmp_eq_u32 s{sST+2*pad}, 0\ns_cbranch_scc1 L_padout")
            A(f"s_add_u32 s{sT2}, s{sST+2*pad}, 10000")
            A("L_pad:")
            A(f"s_memrealtime {s2(sH)}\ns_waitcnt lgkmcnt(0)\ns_sub_u32 s{sT3}, s{sH}, s{sT2}\ns_cmp_lt_i32 s{sT3}, 0\ns_cbranch_scc1 L_pad")
            A("L_padout:")
        for i in range(8):
            A(f"v_mov_b32 v{96+i}, s{sST+2*i}")
        A(f"s_mul_i32 s{sT1}, s2, 5\ns_add_u32 s{sT1}, s{sT1}, s{sW}\ns_lshl_b32 s{sT1}, s{sT1}, 5\ns_add_u32 s{sT1}, s{sT1}, {WS_STAMP}")
        A("s_mov_b64 exec, 1")
        A(f"buffer_store_dwordx4 v[96:99], v7, {s4(rWS)}, s{sT1} offen")
        A(f"buffer_store_dwordx4 v[100:103], v7, {s4(rWS)}, s{sT1} offen offset:16")
    A("L_end:")
    A("s_endpgm")

    out = HEADER
    out += f"; @launch grid=(256,1,1) block=(320,1,1) lds={LDS_BYTES}\n"
    out += '.amdgcn_target "amdgcn-amd-amdhsa--gfx950"\n.text\n'
    out += f".globl {KNAME}_kernel\n.p2align 8\n.type {KNAME}_kernel,@function\n"
    out += "\n".join(A.L) + "\n"
    out += f""".section .rodata,"a"
.p2align 6
.amdhsa_kernel {KNAME}_kernel
  .amdhsa_next_free_vgpr 216
  .amdhsa_next_free_sgpr 102
  .amdhsa_accum_offset 216
  .amdhsa_group_segment_fixed_size 0
  .amdhsa_kernarg_size 96
  .amdhsa_user_sgpr_count 2
  .amdhsa_user_sgpr_kernarg_segment_ptr 1
  .amdhsa_system_sgpr_workgroup_id_x 1
.end_amdhsa_kernel
"""
    return out


if __name__ == "__main__":
    kw = json.loads(sys.argv[2]) if len(sys.argv) > 2 else {}
    open(sys.argv[1], "w").write(gen(**kw))
```

```python
import sys, json, struct

KNAME = "recurrent_scan__gqa_block_cached__glu_gated_glu__decode"
HEADER = open("cdna_kernels/" + KNAME + ".s.ref").read().split("; Override launch")[0]

def f2u(x):
    return struct.unpack("<I", struct.pack("<f", x))[0]

LOG2E = 1.4426950408889634
X_H1 = 0x0
X_QX = 0x10000
X_G1 = 0x12000
X_LS = 0x14000
X_PG = 0x14400
X_LINES = 21
X_QXFAR = 0x8000
WS_EPOCH = 0x1F000
WS_GL = 0x100000
WS_H2 = 0x110000
WS_STAMP = 0x1000000
WS_SIZE = 0x20000000
L_Q = 0
L_FLAG = 1024
F_RDY = L_FLAG
F_GUP = L_FLAG + 4
F_DONE = L_FLAG + 8
F_QH = L_FLAG + 16
F_XN = L_FLAG + 20
F_MX = L_FLAG + 24
F_PD = L_FLAG + 32
F_SC = L_FLAG + 40
F_WIN = L_FLAG + 44
F_TG = L_FLAG + 48
L_MX = 1152
L_LS = 1216
L_SC = 1280
L_HB = 1536
L_RED = 2048
L_XN = L_RED
L_P = 4096
L_WD = 20480
L_RING = 28672
NSLOT = 8
L_WO = L_RING
LDS_BYTES = L_RING + NSLOT * 16384
U0 = 5

sXB = 0
sFL = 3
sMODE, sLIM, sI1, sO2 = 14, 15, 24, 25
sWT = 20
sF = 83
sTW = 82
sPM = 48
sX, sK, sV, sWQ, sWO, sBX, sWG, sWU, sWD, sOUT, sDBG, sWS = 4, 6, 8, 10, 12, 14, 16, 18, 20, 22, 24, 26
rK, rV, rWS, rA, rB, rC, rD = 28, 32, 36, 40, 44, 48, 52
sW, sX8, sJJ, sCB, sSUB = 56, 57, 58, 59, 60
sC, sTHR, sCNT, sTAG = 61, 62, 63, 64
sSELL, sSELH, sSCALE, sLOG2E, sHI = 65, 66, 67, 68, 69
sT0, sT1, sT2, sT3 = 70, 71, 72, 73
sH = 74
sSPIN = 84
sLB = 85
sST = 86
TX4 = 8; TX2 = 12; vX0 = 14; vX1 = 15
vWO, vWT, vRW, vRR, vO2, vO1, vWA = 192, 128, 208, 209, 210, 211, 212


class G:
    def __init__(self):
        self.L = []
        self.n = 0
    def __call__(self, s):
        for line in s.strip("\n").split("\n"):
            self.L.append("    " + line.strip() if not line.strip().endswith(":") else line.strip())
    def label(self, base):
        self.n += 1
        return f"L_{base}_{self.n}"


def v4(r):
    return f"v[{r}:{r+3}]"
def v2(r):
    return f"v[{r}:{r+1}]"
def s4(r):
    return f"s[{r}:{r+3}]"
def s2(r):
    return f"s[{r}:{r+1}]"


def gen(win=20, wins=(20, 21, 22, 24, 27), bias=64, ebias=224, gs=8, endstop=48, psleep=8, wwo=20, worder=(1, 2, 0, 3),
        nb=(2, 4, 4, 4, 3, 4, 3, 4), g2gate=24, g3gate=48, lsgate=100, prept=30, qsleep=4, qtry=96, unq=2,
        etouch=1, stamps=False, smode=0, span=None, skip=0, force=0):
    A = G()
    kvflags = wflags = "nt"
    csleep = h1sleep = h2sleep = 0
    if span is not None:
        stamps = True; smode = 9

    def srd(r, base, size):
        A(f"s_mov_b32 s{r}, s{base}\ns_mov_b32 s{r+1}, s{base+1}\ns_mov_b32 s{r+2}, {size}\ns_mov_b32 s{r+3}, 0x20000")

    def stamp(i, mode=None):
        if stamps and (mode is None or mode == smode):
            A(f"s_memrealtime {s2(sST + 2 * i)}")

    def lgkm(n):
        A(f"s_waitcnt lgkmcnt({n})")

    def swap_red(r, t, op, kinds=("16", "32")):
        for k in kinds:
            A(f"v_mov_b32 v{t}, v{r}\ns_nop 1\nv_permlane{k}_swap_b32 v{r}, v{t}\ns_nop 1\n{op} v{r}, v{r}, v{t}")

    def wave_red(r, t, op, rors):
        for k in rors:
            A(f"s_nop 1\n{op} v{r}, v{r}, v{r} row_ror:{k}")
        swap_red(r, t, op)

    def rnd_bf16(r):
        A(f"v_cvt_pk_bf16_f32 v{r}, v{r}, v{r}\nv_and_b32 v{r}, 0xffff0000, v{r}")

    def ln_stats(X, mean, rstd, F):
        D = F + 8
        for k in range(4):
            A(f"v_lshlrev_b32 v{F+2*k}, 16, v{X+k}\nv_and_b32 v{F+2*k+1}, s{sHI}, v{X+k}")
        A(f"v_add_f32 v{mean}, v{F}, v{F+1}")
        for k in range(2, 8):
            A(f"v_add_f32 v{mean}, v{mean}, v{F+k}")
        wave_red(mean, vX0, "v_add_f32", (8, 4, 2, 1))
        A(f"v_mul_f32 v{mean}, {hex(f2u(1/512))}, v{mean}")
        for k in range(8):
            A(f"v_sub_f32 v{D+k}, v{F+k}, v{mean}")
        A(f"v_mul_f32 v{rstd}, v{D}, v{D}")
        for k in range(1, 8):
            A(f"v_fmac_f32 v{rstd}, v{D+k}, v{D+k}")
        wave_red(rstd, vX0, "v_add_f32", (8, 4, 2, 1))
        A(f"v_mul_f32 v{rstd}, {hex(f2u(1/512))}, v{rstd}")
        rnd_bf16(mean); rnd_bf16(rstd)
        A(f"v_add_f32 v{rstd}, {hex(f2u(1e-5))}, v{rstd}")
        rnd_bf16(rstd)
        A(f"v_sqrt_f32 v{rstd}, v{rstd}\ns_nop 0")
        rnd_bf16(rstd)
        A(f"v_rcp_f32 v{rstd}, v{rstd}")

    def ln_apply(X, mean, rstd, D):
        for k in range(4):
            A(f"v_lshlrev_b32 v{D+2*k}, 16, v{X+k}\nv_and_b32 v{D+2*k+1}, s{sHI}, v{X+k}")
        for k in range(8):
            A(f"v_sub_f32 v{D+k}, v{D+k}, v{mean}")
        for k in range(4):
            A(f"v_cvt_pk_bf16_f32 v{X+k}, v{D+2*k}, v{D+2*k+1}")
        for k in range(4):
            A(f"v_lshlrev_b32 v{D+2*k}, 16, v{X+k}\nv_and_b32 v{D+2*k+1}, s{sHI}, v{X+k}")
        for k in range(8):
            A(f"v_mul_f32 v{D+k}, v{D+k}, v{rstd}")
        for k in range(4):
            A(f"v_cvt_pk_bf16_f32 v{X+k}, v{D+2*k}, v{D+2*k+1}")

    def matvec8(W, xs, acc, tmp, first=True):
        for j in range(4):
            for u in range(4):
                A(f"v_perm_b32 v{tmp+2*u}, v{W+(2*j+1)*4+u}, v{W+(2*j)*4+u}, s{sSELL}")
                A(f"v_perm_b32 v{tmp+2*u+1}, v{W+(2*j+1)*4+u}, v{W+(2*j)*4+u}, s{sSELH}")
            for e in range(8):
                c = "0" if (j == 0 and first) else f"v{acc+e}"
                A(f"v_dot2_f32_bf16 v{acc+e}, {xs[j]}, v{tmp+e}, {c}")
        A("s_nop 2")

    def reduce8(acc):
        A("s_nop 1")
        for e in range(4):
            A(f"v_permlane32_swap_b32 v{acc+e}, v{acc+4+e}")
        A("s_nop 1")
        for e in range(4):
            A(f"v_add_f32 v{acc+e}, v{acc+e}, v{acc+4+e}")
        A("s_nop 1")
        for e in range(2):
            A(f"v_permlane16_swap_b32 v{acc+e}, v{acc+2+e}")
        A("s_nop 1")
        for e in range(2):
            A(f"v_add_f32 v{acc+e}, v{acc+e}, v{acc+2+e}")
        A("s_nop 0")
        for e in range(2):
            A(f"v_add_f32 v{acc+e}, v{acc+e}, v{acc+e} row_ror:8")
        A("s_nop 0")

    def red4(a):
        A("s_nop 1")
        A(f"v_permlane32_swap_b32 v{a}, v{a+2}\nv_permlane32_swap_b32 v{a+1}, v{a+3}")
        A("s_nop 0")
        A(f"v_add_f32 v{a}, v{a}, v{a+2}\nv_add_f32 v{a+1}, v{a+1}, v{a+3}")
        for k in (8, 4):
            A("s_nop 0")
            A(f"v_add_f32 v{a}, v{a}, v{a} row_ror:{k}\nv_add_f32 v{a+1}, v{a+1}, v{a+1} row_ror:{k}")
        A(f"v_mov_b32 v{a+2}, v{a}\nv_mov_b32 v{a+3}, v{a+1}\ns_nop 0")
        A(f"v_permlane16_swap_b32 v{a}, v{a+2}\nv_permlane16_swap_b32 v{a+1}, v{a+3}")
        A("s_nop 0")
        A(f"v_add_f32 v{a}, v{a}, v{a+2}\nv_add_f32 v{a+1}, v{a+1}, v{a+3}")

    def lds_wait(addr, sreg, thr, name, sleep=1, vaddr=7, cached=False, pair=False):
        top = A.label(name); done = A.label(name + "_ok")
        if cached:
            A(f"s_cmp_ge_i32 s{sreg}, {thr}\ns_cbranch_scc1 {done}")
        A(f"s_mov_b32 s{sSPIN}, 0")
        A(f"{top}:")
        if pair:
            A(f"ds_read_b64 {v2(vX0)}, v{vaddr} offset:{addr}\ns_waitcnt lgkmcnt(0)\nv_min_i32 v{vX0}, v{vX0}, v{vX1}\ns_nop 0")
        else:
            A(f"ds_read_b32 v{vX0}, v{vaddr} offset:{addr}\ns_waitcnt lgkmcnt(0)")
        A(f"v_readfirstlane_b32 s{sreg}, v{vX0}")
        A(f"s_add_u32 s{sSPIN}, s{sSPIN}, 1")
        A(f"s_cmp_ge_i32 s{sreg}, {thr}\ns_cbranch_scc1 {done}")
        if sleep:
            A(f"s_sleep {sleep}")
        A(f"s_cmp_lt_u32 s{sSPIN}, 0x100000\ns_cbranch_scc1 {top}")
        A(f"{done}:")

    def lds_flag(addr, val=1, vaddr=7):
        A(f"v_mov_b32 v{vX0}, {val}\nds_write_b32 v{vaddr}, v{vX0} offset:{addr}")

    def make_tags():
        A(f"s_waitcnt lgkmcnt(0)\ns_add_u32 s{sTAG}, s{sTAG}, 0x9E3779B1")
        A(f"v_and_b32 v5, 1, v1\nv_lshlrev_b32 v5, 4, v5\nv_lshrrev_b32 v5, v5, s{sTAG}")
        for k in range(4):
            A(f"v_bfe_u32 v{TX4+k}, v5, {4*k}, 4")
        A(f"v_and_b32 v5, 3, v1\nv_lshlrev_b32 v5, 3, v5\nv_lshrrev_b32 v5, v5, s{sTAG}")
        for k in range(2):
            A(f"v_bfe_u32 v{TX2+k}, v5, {4*k}, 4")

    def embed(dst, src, tag):
        A(f"v_and_or_b32 v{dst}, v{src}, -16, v{tag}")

    def untag(checks):
        for r, t in checks:
            A(f"v_xor_b32 v{r}, {t}, v{r}")
        rs = [r for r, _ in checks]
        A(f"v_or_b32 v{vX0}, v{rs[0]}, v{rs[1]}")
        for i in range(2, len(rs), 2):
            A(f"v_or3_b32 v{vX0}, v{vX0}, v{rs[i]}, v{rs[i+1]}")
        A(f"v_and_b32 v{vX0}, 15, v{vX0}\nv_cmp_ne_u32 vcc, 0, v{vX0}")

    def padd(d, a, b, n):
        for e in range(0, n, 2):
            A(f"v_pk_add_f32 {v2(d+e)}, {v2(a+e)}, {v2(b+e)}")

    def poll(loads, checks, name, sleep=0, full=False, mid=None):
        top = A.label(name); done = A.label(name + "_ok")
        A(f"s_mov_b32 s{sSPIN}, 0")
        if mid:
            chk = A.label(name + "_chk")
            for l in loads:
                A(l)
            mid()
            A(f"s_branch {chk}")
        A(f"{top}:")
        for l in loads:
            A(l)
        if mid:
            A(f"{chk}:")
        A("s_waitcnt vmcnt(0)")
        if full:
            A(f"v_xor_b32 v{vX0}, {checks[0][1]}, v{checks[0][0]}")
            for r, t in checks[1:]:
                A(f"v_bitop3_b32 v{vX0}, v{vX0}, v{r}, {t} bitop3:0xf6")
            A(f"v_cmp_ne_u32 vcc, 0, v{vX0}")
        else:
            untag(checks)
        A(f"s_cbranch_vccz {done}")
        if sleep:
            A(f"s_sleep {sleep}")
        A(f"s_add_u32 s{sSPIN}, s{sSPIN}, 1\ns_cmp_lt_u32 s{sSPIN}, s{sLIM}\ns_cbranch_scc1 {top}")
        A(f"{done}:")

    def store2(line, cond_scc1_near):
        far = A.label("far"); done = A.label("st")
        A(cond_scc1_near)
        A(f"s_cbranch_scc0 {far}\n{line}\ns_branch {done}\n{far}:\n{line} sc1\n{done}:")

    def chk4(regs):
        return [(r + k, f"v{TX4+k}") for r in regs for k in range(4)]

    def next_slot(step):
        A(f"s_add_u32 s{sLB}, s{sLB}, {step*16384}\ns_and_b32 s{sLB}, s{sLB}, {NSLOT*16384-1}")

    def tail_prep():
        A(f"s_lshl_b32 s{sT2}, s{sTW}, 12\nv_lshl_add_u32 v{vWA}, v1, 2, s{sT2}")
        tabw = sum((4 * (worder.index(w) + 1)) << (8 * w) for w in range(4))
        A(f"s_lshl_b32 s{sT2}, s{sTW}, 3\ns_lshr_b32 s{sWT}, {hex(tabw)}, s{sT2}\ns_and_b32 s{sWT}, s{sWT}, 0xff\ns_add_u32 s{sWT}, s{sWT}, {8*U0+1024}")
        A(f"s_and_b32 s{sT2}, s{sJJ}, 28\ns_add_u32 s{sT2}, s{sT2}, s{sTW}\ns_lshl_b32 s{sT2}, s{sT2}, 11\ns_add_u32 s{sI1}, s{sXB}, s{sT2}")
        A(f"v_and_b32 v{vRW}, 0xff, v0\nv_lshlrev_b32 v{vRW}, 3, v{vRW}\nv_lshlrev_b32 v{vRR}, 3, v1")
        A(f"v_and_b32 v5, 15, v1\nv_lshlrev_b32 v5, 3, v5\nv_lshrrev_b32 v6, 4, v1\nv_lshl_add_u32 v{vO2}, v6, 13, v5")
        A(f"s_and_b32 s{sO2}, s{sJJ}, 3\ns_lshl_b32 s{sO2}, s{sO2}, 15\ns_lshl_b32 s{sT2}, s{sX8}, 10\ns_add_u32 s{sO2}, s{sO2}, s{sT2}")
        A(f"s_lshr_b32 s{sT2}, s{sJJ}, 2\ns_lshl_b32 s{sT2}, s{sT2}, 7\ns_add_u32 s{sO2}, s{sO2}, s{sT2}\ns_add_u32 s{sO2}, s{sO2}, {WS_H2}")

    def sigmoid(dst, src):
        A(f"v_mul_f32 v{dst}, s{sLOG2E}, v{src}\nv_exp_f32 v{dst}, -v{dst}\ns_nop 0\nv_add_f32 v{dst}, 1.0, v{dst}\nv_rcp_f32 v{dst}, v{dst}\ns_nop 0")

    A(f"{KNAME}_kernel:")
    A("s_cmpk_ge_u32 s2, 0x100\ns_cbranch_scc1 L_end")
    stamp(0)
    A(f"s_load_dwordx16 s[4:19], s[0:1], 0\ns_load_dwordx8 s[20:27], s[0:1], 64")
    A(f"v_and_b32 v1, 63, v0\nv_readfirstlane_b32 s{sW}, v0")
    A(f"s_and_b32 s{sX8}, s2, 7\ns_lshr_b32 s{sJJ}, s2, 3")
    A("v_lshlrev_b32 v4, 4, v1")
    A("v_lshrrev_b32 v2, 3, v1\nv_and_b32 v3, 0x70, v4")
    A(f"s_mov_b32 s{rA+3}, 0x20000\ns_lshr_b32 s{sW}, s{sW}, 6\ns_cbranch_scc1 L_e1")
    A(f"s_and_b32 s{sT1}, s{sJJ}, 7\ns_lshl3_add_u32 s{sT1}, s{sX8}, s{sT1}\ns_lshl_b32 s{sT1}, s{sT1}, 7")
    A(f"s_lshr_b32 s{sT2}, s2, 6\ns_lshl_b32 s{sT2}, s{sT2}, 20\ns_add_u32 s{sT1}, s{sT1}, s{sT2}")
    A(f"v_lshl_add_u32 v5, v2, 17, v3\ns_bfm_b32 s{rA+2}, 1, 22\ns_movk_i32 m0, {L_P}")
    A(f"s_waitcnt lgkmcnt(0)\ns_mov_b64 {s2(rA)}, {s2(sWQ)}")
    stamp(4, 4)
    A("L_wq:")
    A(f"buffer_load_dwordx4 v5, {s4(rA)}, s{sT1} offen {wflags} lds")
    A(f"s_addk_i32 m0, 0x400\ns_addk_i32 s{sT1}, 0x2000\ns_cmpk_lt_u32 m0, {L_P + 16384}\ns_cbranch_scc1 L_wq")
    A("s_branch L_e2")
    A("L_e1:")
    A(f"s_cmp_lg_u32 s{sW}, 2\ns_cbranch_scc1 L_e1b")
    A(f"s_movk_i32 s{rA+2}, 0x400\ns_waitcnt lgkmcnt(0)\ns_mov_b64 {s2(rA)}, {s2(sX)}")
    A(f"buffer_load_dwordx4 v[16:19], v4, {s4(rA)}, 0 offen")
    A("L_e1b:")
    A(f"s_cmp_lg_u32 s{sW}, 1\ns_cbranch_scc1 L_e2")
    A(f"s_getpc_b64 {s2(sT0)}")
    A("L_pc:")
    A(f"s_lshl_b32 s{sT2}, s{sJJ}, 6\nv_add_u32 v5, s{sT2}, v1\nv_mul_u32_u24 v5, 12, v5\nv_min_u32 v5, L_end-L_pc, v5")
    A(f"global_load_dword v16, v5, {s2(sT0)}")
    def xtouch():
        A(f"v_min_u32 v6, {X_LINES-1}, v1\ns_mul_i32 s{sT2}, s{sJJ}, {X_LINES}\ns_lshl_b32 s{sT3}, s{sX8}, 10\ns_add_u32 s{sT2}, s{sT2}, s{sT3}")
        A(f"v_add_lshl_u32 v6, v6, s{sT2}, 7\ns_waitcnt lgkmcnt(0)\nglobal_load_dword v17, v6, {s2(sWS)} sc1")
    if etouch == 1:
        xtouch()
    A("L_e2:")
    A(f"v_and_b32 v6, 15, v1\nv_cmp_eq_u32 vcc, {(F_DONE + 4 - L_FLAG) // 4}, v6\nv_lshlrev_b32 v6, 2, v6\nv_mov_b32 v7, 0")
    A(f"v_cndmask_b32 v5, 0, 1, vcc\nds_write_b32 v6, v5 offset:{L_FLAG}")
    if True:
        assert sum(nb) == 28
        free = [sum(4 - n for n in nb[:x]) for x in range(8)]
        tab = sum((nb[x] & 7 | (free[x] & 7) << 4) << (8 * x) for x in range(8))
        A(f"s_mov_b32 s{sT0}, {hex(tab & 0xffffffff)}\ns_mov_b32 s{sT1}, {hex(tab >> 32)}\ns_lshl_b32 s{sT2}, s{sX8}, 3\ns_lshr_b64 {s2(sT0)}, {s2(sT0)}, s{sT2}")
        A(f"s_bfe_u32 s{sT1}, s{sT0}, 0x30004\ns_and_b32 s{sT0}, s{sT0}, 7\ns_lshr_b32 s{sT2}, s{sJJ}, 3\ns_and_b32 s{sSUB}, s{sJJ}, 7")
        A(f"s_lshl2_add_u32 s{sCB}, s{sX8}, s{sT2}\ns_sub_u32 s{sCB}, s{sCB}, s{sT1}")
        A(f"s_sub_u32 s{sT1}, s{sT1}, s{sT0}\ns_lshl3_add_u32 s{sF}, s{sT1}, s{sJJ}\ns_cmp_lt_u32 s{sT2}, s{sT0}\ns_cselect_b32 s{sF}, -1, s{sF}")
    A(f"s_mov_b32 s{sSELL}, 0x05040100\ns_mov_b32 s{sSELH}, 0x07060302")
    A(f"s_mov_b32 s{sSCALE}, {hex(f2u(128 ** -0.5))}\ns_mov_b32 s{sLOG2E}, {hex(f2u(LOG2E))}\ns_mov_b32 s{sHI}, 0xffff0000")
    if stamps:
        for i in range(1, 8):
            if not (smode == 4 and i == 4):
                A(f"s_mov_b64 {s2(sST+2*i)}, 0")
    A("s_waitcnt lgkmcnt(0)")
    A("s_barrier")
    stamp(5, 5)
    if stamps:
        srd(rWS, sWS, hex(WS_SIZE))
        srd(rB, sDBG, 256)
    A(f"s_cmp_lg_u32 s{sW}, 0\ns_cbranch_scc1 L_notloader")

    D = win
    first_k = (D - 1) % 8
    vCNT = 24
    cnt = [0]
    def ld(line, static=False):
        i = cnt[0]
        if not static or i >= D:
            A(f"s_waitcnt vmcnt({D-1})")
        if static and i == D - 1: stamp(5, 4)
        if static and i == D: stamp(6, 4)
        A(line)
        if i % 8 == first_k and (not static or i >= D - 1 + 8):
            A(f"ds_write_b32 v7, v{vCNT} offset:{F_RDY}\nv_add_u32 v{vCNT}, 8, v{vCNT}")
        cnt[0] += 1
    A(f"v_mov_b32 v{vCNT}, 8")
    cnt[0] = 16
    assert D >= 16
    A(f"s_cmp_lt_i32 s{sF}, 0\ns_cselect_b32 s{sT3}, {hex(512 * 1792 * 2)}, 0")
    srd(rD, sWD, f"s{sT3}")
    A(f"s_cmp_lt_u32 s{sSUB}, 4\ns_cselect_b32 s{rB}, s{sWG}, s{sWU}\ns_cselect_b32 s{rB+1}, s{sWG+1}, s{sWU+1}")
    A(f"s_mov_b32 s{rB+2}, s{sT3}\ns_mov_b32 s{rB+3}, 0x20000")
    A(f"s_and_b32 s{sT1}, s{sSUB}, 3\ns_mul_i32 s{sT1}, s{sT1}, {128*3584}\ns_lshl_b32 s{sT2}, s{sCB}, 7\ns_add_u32 s{sT1}, s{sT1}, s{sT2}")
    A(f"v_mul_u32_u24 v6, {16*3584}, v2\nv_add_u32 v6, v6, v3")
    L_GU = L_RING + (NSLOT - 1) * 16384
    for i in range(16):
        A(f"s_mov_b32 m0, {L_GU + 1024*i}")
        A(f"s_add_u32 s{sT2}, s{sT1}, {3584*i}")
        ld(f"buffer_load_dwordx4 v6, {s4(rB)}, s{sT2} offen {wflags} lds", True)
    A(f"s_lshl_b32 s{sT1}, s{sCB}, 16\ns_lshl_b32 s{sT2}, s{sSUB}, 7\ns_add_u32 s{sT1}, s{sT1}, s{sT2}")
    A(f"v_lshl_add_u32 v5, v2, 13, v3")
    for i in range(8):
        if i % 4 == 0:
            A(f"s_mov_b32 m0, {L_WD + 1024*i}")
            A(f"s_add_u32 s{sT2}, s{sT1}, {1024*i}")
        ld(f"buffer_load_dwordx4 v5, {s4(rD)}, s{sT2} offen offset:{1024*(i%4)} {wflags} lds", True)
    srd(rA, sWO, hex(4096 * 512 * 2))
    A(f"s_lshl_b32 s{sT1}, s{sX8}, 9\ns_lshr_b32 s{sT2}, s{sJJ}, 4\ns_lshl_b32 s{sT2}, s{sT2}, 6\ns_add_u32 s{sT1}, s{sT1}, s{sT2}")
    A(f"s_and_b32 s{sT2}, s{sJJ}, 12\ns_add_u32 s{sT1}, s{sT1}, s{sT2}\ns_lshl_b32 s{sT1}, s{sT1}, 10")
    A(f"s_and_b32 s{sT2}, s{sJJ}, 3\ns_lshl_b32 s{sT2}, s{sT2}, 8\ns_add_u32 s{sT1}, s{sT1}, s{sT2}")
    A(f"v_lshrrev_b32 v6, 4, v1\nv_lshlrev_b32 v6, 10, v6\nv_and_b32 v25, 15, v1\nv_lshl_add_u32 v6, v25, 4, v6")
    A(f"s_mov_b32 s{sH+3}, s{sT1}")
    assert cnt[0] == 8 * U0 and D + 7 <= 8 * U0
    stamp(1)
    A(f"s_lshl_b32 s{sT0}, s{sX8}, 24\ns_lshl_b32 s{sT1}, s{sJJ}, 19\ns_add_u32 s{sT0}, s{sT0}, s{sT1}")
    A(f"s_add_u32 s{rK}, s{sK}, s{sT0}\ns_addc_u32 s{rK+1}, s{sK+1}, 0\ns_mov_b32 s{rK+2}, 0x80000\ns_mov_b32 s{rK+3}, 0x20000")
    A(f"s_add_u32 s{rV}, s{sV}, s{sT0}\ns_addc_u32 s{rV+1}, s{sV+1}, 0\ns_mov_b32 s{rV+2}, 0x80000\ns_mov_b32 s{rV+3}, 0x20000")
    A("v_and_b32 v27, 0xf0, v4\nv_bfe_u32 v5, v1, 4, 1\nv_lshl_add_u32 v27, v5, 9, v27\nv_lshrrev_b32 v5, 5, v1\nv_lshl_add_u32 v27, v5, 13, v27")
    A("v_lshrrev_b32 v5, 4, v1\nv_lshlrev_b32 v5, 6, v5\nv_xor_b32 v16, v27, v5")
    A("v_and_b32 v5, 16, v1\nv_lshlrev_b32 v5, 1, v5\nv_xor_b32 v20, v27, v5")
    for n in range(1, 4):
        A(f"v_xor_b32 v{16+n}, {16*n}, v16\nv_xor_b32 v{20+n}, {64*n}, v20")
    sI, sLV = sH + 1, sH + 2
    NV = 8 * U0 + 1024
    NLD = NV + 16
    A(f"s_mov_b32 s{sCNT}, 0\ns_mov_b32 s{sLB}, 0\ns_mov_b32 s{sFL}, 0\ns_mov_b32 s{sH}, 0\ns_mov_b32 s{sI}, {8*U0}\nv_mov_b32 v25, 0\nv_subrev_u32 v26, 8, v{vCNT}")
    A("L_tile:")
    A(f"s_cmp_lg_u32 s{sCNT}, 32\ns_cbranch_scc1 L_nosw")
    stamp(4, 1); stamp(5, 3)
    A(f"s_mov_b64 {s2(rK)}, {s2(rV)}\ns_mov_b32 s{sH}, 0")
    for n in range(4):
        A(f"v_mov_b32 v{16+n}, v{20+n}")
    A("L_nosw:")
    A(f"s_sub_u32 s{sTHR}, s{sCNT}, {NSLOT-1}")
    A(f"s_cmp_lg_u32 s{sTHR}, 0\ns_cbranch_scc1 L_nogup")
    lds_wait(F_GUP, sT2, 1, "gup", sleep=0)
    stamp(2)
    A("L_nogup:")
    lds_wait(F_DONE, sFL, f"s{sTHR}", "free", sleep=0, cached=True, pair=True)
    A(f"s_add_u32 m0, s{sLB}, {L_RING}")
    A(f"s_waitcnt lgkmcnt(0)\nv_readfirstlane_b32 s{sLV}, v25\nds_read_b32 v25, v7 offset:{F_WIN}")
    for k in range(1, len(wins)):
        A(f"s_cmp_eq_u32 s{sLV}, {k}\ns_cbranch_scc1 L_ver{k}")
    def version(idx):
        W = wins[idx]
        A(f"L_ver{idx}:")
        A(f"s_sub_u32 s{sT2}, s{sI}, {W-1}\nv_mov_b32 v{vCNT}, s{sT2}")
        A(f"L_vq{idx}:")
        for hq in range(unq):
            for n in range(4):
                A(f"s_waitcnt vmcnt({W-1})")
                A(f"buffer_load_dwordx4 v{16+n}, {s4(rK)}, s{sH} offen offset:{1024*n} {kvflags} lds")
                if n == 0:
                    A(f"v_max_i32 v26, v26, v{vCNT}\nv_add_u32 v{vCNT}, 4, v{vCNT}\nds_write_b32 v7, v26 offset:{F_RDY}")
            A(f"s_addk_i32 m0, 0x1000\ns_addk_i32 s{sH}, {(0x100, 0xf00)[hq % 2]}")
        if unq < 4:
            A(f"s_and_b32 s{sT2}, s{sH}, 0x1fff\ns_cbranch_scc1 L_vq{idx}")
    version(0)
    A("L_qend:")
    A(f"s_add_u32 s{sI}, s{sI}, 16\ns_addk_i32 s{sH}, 0x2000")
    next_slot(1)
    if stamps and smode == 3:
        for q in range(2):
            A(f"s_cmp_lg_u32 s{sCNT}, {32*q+15}\ns_cbranch_scc1 L_np{q}")
            stamp(4 + 2 * q, 3)
            A(f"L_np{q}:")
    A(f"s_add_u32 s{sCNT}, s{sCNT}, 1\ns_cmp_lt_u32 s{sCNT}, 64\ns_cbranch_scc1 L_tile")
    def pub(val):
        A(f"v_max_i32 v26, {val}, v26\nds_write_b32 v7, v26 offset:{F_RDY}")
    lds_wait(F_DONE, sFL, 64 - NSLOT + 1, "freew", sleep=0, cached=True, pair=True)
    for r in (24, 16, 8):
        if wwo <= r:
            A(f"s_waitcnt vmcnt({r})"); pub(NV - r)
    for i in range(16):
        w, h = worder[i // 4], i % 4
        A(f"s_mov_b32 m0, {L_WO + 4096*w + 1024*h}\ns_add_u32 s{sT2}, s{sH+3}, {(128*h + 16*w)*1024}")
        A(f"s_waitcnt vmcnt({wwo-1})")
        d = i - wwo + 1
        if d % 8 == 0 or (d > 0 and d % 4 == 0):
            pub(NV + d)
            if d == 0:
                stamp(3)
        A(f"buffer_load_dwordx4 v6, {s4(rA)}, s{sT2} offen {wflags} lds")
    for rem in range((wwo - 1) // 4 * 4, -1, -4):
        if rem <= 16 or rem % 8 == 0:
            A(f"v_max_i32 v26, {NLD - rem}, v26\ns_waitcnt vmcnt({rem})\nds_write_b32 v7, v26 offset:{F_RDY}")
            if rem == 16:
                stamp(3)
    A("s_branch L_fin")

    for k in range(1, len(wins)):
        version(k)
        A("s_branch L_qend")
    A("L_pace:")
    if span is not None:
        A(f"s_cmp_lg_u32 s{sJJ}, 0\ns_cbranch_scc1 L_nosk")
        A(f"s_not_b32 s{sT0}, s{sST}\nv_mov_b32 v16, s{sT0}\ns_mov_b64 exec, 1\nbuffer_atomic_umax v16, v7, {s4(rB)}, 0 offen offset:64\ns_mov_b64 exec, -1")
        A("L_nosk:")
    make_tags()
    lds_flag(F_TG)
    A(f"s_mov_b32 s{sTW}, 0")
    tail_prep()
    sP, sPP, sS, sPGA, sOWN, sPAR = sH, sH + 1, sH + 2, sH + 3, sH + 4, sH + 5
    A(f"s_getreg_b32 s{sPAR}, hwreg(HW_REG_XCC_ID, 0, 1)\ns_cmp_eq_u32 s{sPAR}, 0")
    A(f"s_cselect_b32 s{sPAR}, {ebias}, 0\ns_add_u32 s{sPAR}, s{sPAR}, {(1 << (gs - 1)) + bias}")
    lds_wait(F_QH, sMODE, 1, "qhp", sleep=8)
    A(f"s_cmp_lg_u32 s{sMODE}, 2\ns_cbranch_scc1 L_late")
    A(f"v_lshlrev_b32 v5, 2, v1\ns_add_u32 s{sPGA}, s{sXB}, {X_PG}\ns_lshl2_add_u32 s{sOWN}, s{sJJ}, s{sPGA}")
    A(f"s_mov_b32 s{sP}, 0\ns_mov_b32 s{sCNT}, 0\ns_and_b32 s{sT3}, s{sTAG}, 0xfffff800")
    A("L_pl:")
    A(f"s_mov_b32 s{sPP}, s{sP}\nds_read_b32 v16, v7 offset:{F_RDY}\ns_waitcnt lgkmcnt(0)\nv_readfirstlane_b32 s{sP}, v16")
    A(f"s_add_u32 s{sCNT}, s{sCNT}, 1\ns_cmp_gt_u32 s{sCNT}, 0x10000\ns_cbranch_scc1 L_tail")
    A(f"v_or_b32 v16, s{sT3}, v16")
    A(f"s_mov_b64 exec, 1\nbuffer_store_dword v16, v7, {s4(rWS)}, s{sOWN} offen\ns_mov_b64 exec, -1")
    A(f"s_cmp_ge_u32 s{sP}, {NV - endstop}\ns_cbranch_scc1 L_tail")
    A(f"s_mov_b32 exec_hi, 0\nbuffer_load_dword v17, v5, {s4(rWS)}, s{sPGA} offen sc1\ns_waitcnt vmcnt(0)")
    A(f"v_xor_b32 v19, s{sT3}, v17\nv_cmp_lt_u32 vcc, 0x7ff, v19")
    for k in (8, 4, 2, 1):
        A(f"s_nop 1\nv_add_u32 v19, v19, v19 row_ror:{k}")
    A(f"s_cbranch_vccnz L_pnext")
    A(f"v_readlane_b32 s{sS}, v19, 0\nv_readlane_b32 s{sT0}, v19, 16")
    A(f"s_cmp_eq_u32 s{sPP}, 0\ns_cbranch_scc1 L_pnext")
    A(f"s_add_u32 s{sS}, s{sS}, s{sT0}\ns_add_u32 s{sT0}, s{sP}, s{sPP}\ns_lshl_b32 s{sT0}, s{sT0}, 4\ns_sub_u32 s{sT0}, s{sS}, s{sT0}")
    A(f"s_add_u32 s{sT0}, s{sT0}, s{sPAR}\ns_ashr_i32 s{sT0}, s{sT0}, {gs}\ns_max_i32 s{sT0}, s{sT0}, 0\ns_min_i32 s{sT0}, s{sT0}, {len(wins)-1}")
    A(f"v_mov_b32 v16, s{sT0}\nds_write_b32 v7, v16 offset:{F_WIN}")
    A("L_pnext:")
    A(f"s_mov_b64 exec, -1\ns_sleep {psleep}\ns_branch L_pl")

    A("L_notloader:")
    A(f"s_load_dword s{sTAG}, {s2(sWS)}, {WS_EPOCH}")
    A(f"s_mov_b32 s{sLIM}, 0x40000\ns_mov_b32 s{sMODE}, 1\ns_lshl_b32 s{sXB}, s{sX8}, 17")
    srd(rWS, sWS, hex(WS_SIZE))
    A(f"s_mov_b32 s{sTW}, s{sW}\ns_cmp_eq_u32 s{sW}, 4\ns_cbranch_scc1 L_pace")
    A(f"s_cmp_eq_u32 s{sW}, 3\ns_cbranch_scc1 L_help")
    A(f"s_sub_u32 s{sC}, s{sW}, 1")
    A(f"s_cmp_eq_u32 s{sW}, 2\ns_cbranch_scc1 L_w2")
    if etouch == 2:
        xtouch()
    make_tags()
    A("s_branch L_qwait")
    def slice_mv(sKS, lds_base, unit0, after_read=None):
        A(f"s_lshl_b32 s{sT2}, s{sKS}, 8\nv_lshl_add_u32 v5, v2, 5, s{sT2}")
        A(f"ds_read_b128 v[20:23], v5 offset:{L_XN}\nds_read_b128 v[24:27], v5 offset:{L_XN+16}")
        A(f"v_add_u32 v6, {lds_base}, v4")
        for half in range(2):
            lds_wait(F_RDY, sFL, 8 * (unit0 + half + 1), "wsl", sleep=1)
            for i in range(8):
                A(f"ds_read_b128 {v4(64+4*i)}, v6 offset:{8192*half + 1024*i}")
            lgkm(0)
            if half == 1:
                stamp(6, 2)
                if after_read:
                    after_read()
            matvec8(64, [f"v{20+4*half+k}" for k in range(4)], 32, 40, first=(half == 0))
        reduce8(32)
        A(f"v_lshrrev_b32 v6, 4, v1\nv_lshlrev_b32 v6, 6, v6\nv_lshrrev_b32 v5, 1, v3\nv_add_u32 v6, v6, v5")
    A("L_w2:")
    A(f"s_lshr_b32 s{sT3}, s2, 6")
    A("s_waitcnt vmcnt(0)")
    stamp(4, 2)
    ln_stats(16, 28, 29, 32)
    ln_apply(16, 28, 29, 32)
    A(f"ds_write_b128 v4, v[16:19] offset:{L_XN}")
    lds_flag(F_XN)
    stamp(5, 2)
    make_tags()
    slice_mv(sT3, L_P, 0)
    sXC = sH + 4
    A(f"s_getreg_b32 s{sXC}, hwreg(HW_REG_XCC_ID, 0, 4)")
    if force:
        A(f"s_and_b32 s{sXC}, s{sJJ}, 1")
    embed(34, 32, TX2); embed(35, 33, TX2 + 1)
    A(f"v_xor_b32 v32, s{sXC}, v34\nv_xor_b32 v33, s{sXC}, v35")
    A(f"s_add_u32 s{sH}, s{sXB}, {X_QX}\ns_lshl_b32 s{sT2}, s{sJJ}, 8\ns_add_u32 s{sT1}, s{sH}, s{sT2}")
    A("s_mov_b32 exec_lo, 0x00ff00ff\ns_mov_b32 exec_hi, 0x00ff00ff")
    A(f"buffer_store_dwordx2 v[32:33], v6, {s4(rWS)}, s{sT1} offen")
    A("s_mov_b64 exec, -1")
    stamp(1)
    for k in range(4):
        A(f"v_xor_b32 v{36+k}, s{sXC}, v{TX4+k}")
    A(f"s_add_u32 s{sH+1}, s{sH}, 4096\ns_mov_b32 s{sMODE}, 2")
    A(f"s_mov_b32 s{sSPIN}, 0")
    A("L_qpoll:")
    for i in range(8):
        A(f"buffer_load_dwordx4 {v4(64+4*i)}, v4, {s4(rWS)}, s{sH+i//4} offen offset:{1024*(i%4)} sc1")
    A("s_waitcnt vmcnt(0)")
    untag([(64 + i, f"v{36+i%4}") for i in range(32)])
    A("s_cbranch_vccz L_qok")
    A(f"s_sleep {qsleep}\ns_add_u32 s{sSPIN}, s{sSPIN}, 1\ns_cmp_lt_u32 s{sSPIN}, {qtry}\ns_cbranch_scc1 L_qpoll")
    A(f"s_cmp_lg_u32 s{sSPIN}, {qtry}\ns_cbranch_scc1 L_qflip")
    A(f"s_xor_b32 s{sT1}, s{sT1}, {X_QXFAR}")
    A("s_mov_b32 exec_lo, 0x00ff00ff\ns_mov_b32 exec_hi, 0x00ff00ff")
    A(f"buffer_store_dwordx2 v[34:35], v6, {s4(rWS)}, s{sT1} offen sc1")
    A("s_mov_b64 exec, -1")
    A("L_qflip:")
    A(f"s_xor_b32 s{sH}, s{sH}, {X_QXFAR}\ns_xor_b32 s{sH+1}, s{sH+1}, {X_QXFAR}\ns_xor_b32 s{sMODE}, s{sMODE}, 3")
    for k in range(4):
        A(f"v_xor_b32 v{36+k}, s{sXC}, v{36+k}")
    A(f"s_cmp_lt_u32 s{sSPIN}, s{sLIM}\ns_cbranch_scc1 L_qpoll")
    A("L_qok:")
    for e in range(8):
        A(f"v_add_f32 v{64+e}, v{64+e}, v{72+e}\nv_add_f32 v{80+e}, v{80+e}, v{88+e}")
    for e in range(8):
        A(f"v_add_f32 v{64+e}, v{64+e}, v{80+e}")
    for e in range(4):
        A(f"v_cvt_pk_bf16_f32 v{64+e}, v{64+2*e}, v{65+2*e}")
    A(f"v_lshrrev_b32 v6, 4, v1\nv_lshlrev_b32 v6, 7, v6\nv_and_b32 v5, 3, v1\nv_lshl_add_u32 v6, v5, 5, v6")
    A(f"v_and_b32 v5, 12, v1\nv_add_u32 v6, v6, v5")
    for e in range(4):
        A(f"ds_write_b32 v6, v{64+e} offset:{L_Q + 16*(e&1) + 512*(e>>1)}")
    lds_flag(F_QH, val=f"s{sMODE}")
    A("L_qwait:")
    vOWN, vOTH = 30, 31
    A(f"s_lshl_b32 s{sT2}, s{sC}, 2\nv_mov_b32 v{vOWN}, s{sT2}\nv_xor_b32 v{vOTH}, 4, v{vOWN}")
    vQV, vKT, vS, vT, vMAX, vAD, vKA, vPA, vDN = 32, 96, 160, 164, 172, 176, 184, 188, 189
    A("v_and_b32 v5, 3, v1\nv_lshlrev_b32 v5, 10, v5\nv_bfe_u32 v6, v1, 2, 2\nv_lshl_add_u32 v5, v6, 8, v5")
    A(f"v_lshrrev_b32 v6, 4, v1\nv_xor_b32 v6, v6, v1\nv_and_b32 v6, 15, v6\nv_lshl_add_u32 v{vKA}, v6, 4, v5")
    for n in range(1, 4):
        A(f"v_xor_b32 v{vKA+n}, {64*n}, v{vKA}")
    A(f"v_and_b32 v5, 3, v1\nv_lshlrev_b32 v5, 6, v5\nv_lshrrev_b32 v6, 4, v1\nv_lshl_add_u32 v5, v6, 4, v5")
    A(f"v_mov_b32 v29, v5")
    A(f"v_and_b32 v6, 8, v1\nv_lshl_add_u32 v5, v6, 5, v5\nv_and_b32 v6, 4, v1\nv_lshl_add_u32 v5, v6, 1, v5")
    A(f"s_lshl_b32 s{sT2}, s{sC}, 9\nv_add_u32 v{vPA}, s{sT2}, v5")
    A(f"v_mov_b32 v{vMAX}, {hex(f2u(-3e38))}")
    A(f"s_add_u32 s{sT2}, s{sC}, 2\nv_mov_b32 v{vDN}, s{sT2}")
    A("v_and_b32 v6, 3, v1\nv_lshlrev_b32 v6, 8, v6\nv_lshrrev_b32 v5, 4, v1\nv_lshl_add_u32 v6, v5, 4, v6")
    A(f"s_mov_b32 s{sFL}, 0")
    lds_wait(F_QH, sMODE, 1, "qh", sleep=1)
    stamp(2)
    for s in range(4):
        A(f"ds_read_b128 {v4(vKT+4*s)}, v6 offset:{L_Q + 64*s}")
    lgkm(0)
    for b in range(4):
        A(f"s_mov_b32 vcc_lo, {hex(0x000f000f << (4*b))}\ns_mov_b32 vcc_hi, {hex(0x000f000f << (4*b))}")
        for i in range(16):
            A(f"v_cndmask_b32 v{vQV+16*b+i}, 0, v{vKT+i}, vcc")
    A(f"s_lshl_b32 s{sLB}, s{sC}, 14\ns_lshl_b32 s{sTHR}, s{sC}, 4\ns_add_u32 s{sTHR}, s{sTHR}, {8*(U0+2)}")
    A(f"s_mov_b32 s{sCNT}, 0")
    A("L_p1:")
    for n in range(4):
        A(f"v_add_u32 v{vAD+n}, s{sLB}, v{vKA+n}")
    lds_wait(F_RDY, sFL, f"s{sTHR}", "krdy", sleep=csleep, cached=True)
    for b in range(4):
        for n in range(4):
            A(f"ds_read_b128 {v4(vKT+16*b+4*n)}, v{vAD+n} offset:{L_RING + 4096*b}")
    for b in range(4):
        lgkm(12 - 4 * b)
        if b == 3:
            A(f"ds_write_b32 v{vOWN}, v{vDN} offset:{F_DONE}")
        for n in range(4):
            c = "0" if b + n == 0 else v4(vS)
            A(f"v_mfma_f32_16x16x32_bf16 {v4(vS)}, {v4(vKT+16*b+4*n)}, {v4(vQV+16*b+4*n)}, {c}")
    A(f"v_add_u32 v{vDN}, 2, v{vDN}\nv_min_u32 v{vDN}, 32, v{vDN}")
    next_slot(2)
    A(f"s_add_u32 s{sTHR}, s{sTHR}, 32\ns_add_u32 s{sCNT}, s{sCNT}, 1\ns_nop 3")
    A(f"v_cvt_pk_bf16_f32 v{vT}, v{vS}, v{vS+1}\nv_cvt_pk_bf16_f32 v{vT+1}, v{vS+2}, v{vS+3}")
    A(f"v_max3_f32 v{vMAX}, v{vMAX}, v{vS}, v{vS+1}\nv_max3_f32 v{vMAX}, v{vMAX}, v{vS+2}, v{vS+3}")
    for j in range(2):
        A(f"v_lshlrev_b32 v{vT+2+2*j}, 16, v{vT+j}\nv_and_b32 v{vT+3+2*j}, s{sHI}, v{vT+j}")
    for i in range(4):
        A(f"v_mul_f32 v{vT+2+i}, s{sSCALE}, v{vT+2+i}")
    A(f"v_cvt_pk_bf16_f32 v{vT}, v{vT+2}, v{vT+3}\nv_cvt_pk_bf16_f32 v{vT+1}, v{vT+4}, v{vT+5}")
    A(f"ds_write_b64 v{vPA}, {v2(vT)} offset:{L_P}\nv_add_u32 v{vPA}, 1024, v{vPA}")
    A(f"s_cmp_lt_u32 s{sCNT}, 16\ns_cbranch_scc1 L_p1")
    stamp(4, 1)
    wave_red(vMAX, vX0, "v_max_f32", (8, 4))
    A(f"v_and_b32 v5, 3, v1\nv_lshlrev_b32 v5, 2, v5\nv_lshl_add_u32 v6, v{vOWN}, 2, v5\nv_xor_b32 v5, 16, v6")
    A(f"ds_write_b32 v6, v{vMAX} offset:{L_MX}")
    lds_flag(F_MX, vaddr=vOWN)
    A(f"v_subrev_u32 v{vPA}, 16384, v{vPA}")
    lds_wait(F_MX, sT0, 1, "mx", sleep=0, vaddr=vOTH)
    A(f"ds_read_b32 v{vX1}, v5 offset:{L_MX}")
    for i in range(16):
        A(f"ds_read_b64 {v2(32+2*i)}, v{vPA} offset:{L_P + 1024*i}")
    lgkm(0)
    vMN, vLSUM = 173, 174
    A(f"v_max_f32 v{vMAX}, v{vMAX}, v{vX1}")
    rnd_bf16(vMAX)
    A(f"v_mul_f32 v{vMAX}, s{sSCALE}, v{vMAX}")
    rnd_bf16(vMAX)
    A(f"v_mul_f32 v{vMN}, s{sLOG2E}, v{vMAX}\nv_mov_b32 v{vLSUM}, 0")
    for i in range(0, 16, 2):
        E = 96
        for j in range(4):
            A(f"v_lshlrev_b32 v{E+2*j}, 16, v{32+2*i+j}\nv_and_b32 v{E+2*j+1}, s{sHI}, v{32+2*i+j}")
        for j in range(8):
            A(f"v_fma_f32 v{E+j}, v{E+j}, s{sLOG2E}, -v{vMN}")
        for j in range(8):
            A(f"v_exp_f32 v{E+j}, v{E+j}")
        A("s_nop 0")
        for j in range(4):
            A(f"v_cvt_pk_bf16_f32 v{32+2*i+j}, v{E+2*j}, v{E+2*j+1}")
        A(f"ds_write_b64 v{vPA}, {v2(32+2*i)} offset:{L_P + 1024*i}\nds_write_b64 v{vPA}, {v2(34+2*i)} offset:{L_P + 1024*(i+1)}")
        for j in range(4):
            A(f"v_add_f32 v{E+j}, v{E+j}, v{E+4+j}")
        A(f"v_add_f32 v{E}, v{E}, v{E+1}\nv_add_f32 v{E+2}, v{E+2}, v{E+3}\nv_add_f32 v{vLSUM}, v{vLSUM}, v{E}\nv_add_f32 v{vLSUM}, v{vLSUM}, v{E+2}")
    wave_red(vLSUM, vX0, "v_add_f32", (8, 4))
    A(f"v_lshlrev_b32 v6, 1, v6\nv_mov_b32 v{vLSUM+1}, v{vMN}\nds_write_b64 v6, {v2(vLSUM)} offset:{L_LS}")
    lds_flag(F_PD, vaddr=vOWN)
    vO, vVF, vPF, vVA = 32, 48, 80, 184
    A("v_and_b32 v5, 12, v1\nv_lshrrev_b32 v6, 4, v1\nv_add_u32 v6, v6, v5\nv_lshlrev_b32 v6, 8, v6")
    A(f"v_lshrrev_b32 v{vX1}, 3, v1\nv_and_b32 v{vX1}, 2, v{vX1}\nv_or_b32 v5, v5, v{vX1}")
    A(f"v_bfe_u32 v{vX1}, v1, 1, 1\nv_xor_b32 v5, v5, v{vX1}\ns_lshl_b32 s{sT2}, s{sC}, 3\nv_xor_b32 v5, s{sT2}, v5")
    A(f"v_lshl_add_u32 v6, v5, 4, v6\nv_and_b32 v5, 1, v1\nv_lshl_add_u32 v{vVA}, v5, 3, v6")
    for n in range(1, 4):
        A(f"v_xor_b32 v{vVA+n}, {32*n}, v{vVA}")
    for i in range(4):
        A(f"v_mov_b32 v{vO+i}, 0")
    for i in range(32):
        A(f"v_mov_b32 v{vPF+i}, 0")
    for T in range(4):
        A(f"s_mov_b32 s{sPM+2*T}, {hex(0x000f000f << (4*T))}\ns_mov_b32 s{sPM+2*T+1}, s{sPM+2*T}")
    A(f"v_mov_b32 v{vDN}, 33\nv_mov_b32 v{vPA}, v29")
    A(f"s_mov_b32 s{sLB}, {(32 % NSLOT) * 16384}\ns_mov_b32 s{sTHR}, {8*(U0+64+1)}\ns_mov_b32 s{sCNT}, 0")
    tail_prep()
    A(f"v_lshrrev_b32 v6, 2, v1\nv_lshlrev_b32 v6, 11, v6\nv_and_b32 v5, 3, v1\nv_lshl_add_u32 v{vO1}, v5, 4, v6")
    A(f"s_lshl_b32 s{sT2}, s{sC}, 15\ns_add_u32 s{sT1}, s{sXB}, s{sT2}\ns_lshl_b32 s{sT2}, s{sJJ}, 6\ns_add_u32 s{sT1}, s{sT1}, s{sT2}")
    lds_wait(F_PD, sT0, 1, "pd", sleep=0, vaddr=vOTH)
    stamp(5, 1)
    vSC = 28
    A("L_p2:")
    for n in range(4):
        A(f"v_add_u32 v{vAD+n}, s{sLB}, v{vVA+n}")
    A(f"s_cmp_lg_u32 s{sCNT}, {prept}\ns_cbranch_scc1 L_nosc")
    lds_wait(F_SC, sT0, 1, "sc", sleep=1)
    A(f"v_and_b32 v5, 3, v1\nv_lshlrev_b32 v5, 2, v5\nds_read_b32 v{vSC}, v5 offset:{L_SC}")
    A("L_nosc:")
    for T in range(4):
        A(f"s_mov_b64 exec, {s2(sPM+2*T)}")
        for ks in range(2):
            A(f"ds_read_b128 {v4(vPF+16*ks+4*T)}, v{vPA} offset:{L_P + 256*ks}")
    A("s_mov_b64 exec, -1")
    for ks in range(2):
        lds_wait(F_RDY, sFL, f"s{sTHR}", "vrdy", sleep=csleep, cached=True)
        for T in range(4):
            for ih in range(2):
                A(f"ds_read_b64_tr_b16 {v2(vVF+16*ks+4*T+2*ih)}, v{vAD+T} offset:{L_RING + 8192*ks + 4096*ih}")
        A(f"s_add_u32 s{sTHR}, s{sTHR}, 8")
        if ks == 1:
            next_slot(1)
            A(f"s_add_u32 s{sCNT}, s{sCNT}, 1\nv_add_u32 v{vPA}, 512, v{vPA}")
        for T in range(4):
            lgkm(6 - 2 * T)
            A(f"v_mfma_f32_16x16x32_bf16 {v4(vO)}, {v4(vVF+16*ks+4*T)}, {v4(vPF+16*ks+4*T)}, {v4(vO)}")
    A(f"ds_write_b32 v{vOWN}, v{vDN} offset:{F_DONE}\nv_add_u32 v{vDN}, 1, v{vDN}")
    A(f"s_cmp_lt_u32 s{sCNT}, 32\ns_cbranch_scc1 L_p2")
    stamp(3)
    A(f"s_cmp_eq_u32 s{sMODE}, 2\ns_nop 2")
    for r in range(4):
        A(f"v_mul_f32 v{vO+r}, v{vO+r}, v{vSC}")
    for r in range(4):
        embed(vO + r, vO + r, TX4 + r)
    A(f"s_cbranch_scc0 L_h1far\nbuffer_store_dwordx4 {v4(vO)}, v{vO1}, {s4(rWS)}, s{sT1} offen\ns_branch L_tail")
    A(f"L_h1far:\nbuffer_store_dwordx4 {v4(vO)}, v{vO1}, {s4(rWS)}, s{sT1} offen sc1\ns_branch L_tail")

    A("L_help:")
    srd(rA, sX, 1024)
    vG, vXP = 56, 58
    A(f"s_cmp_ge_i32 s{sF}, 0\ns_cbranch_scc1 L_h3f")
    A(f"s_and_b32 s{sT3}, s{sSUB}, 3")
    make_tags()
    lds_wait(F_XN, sT0, 1, "xn", sleep=2)
    slice_mv(sT3, L_GU, 2, after_read=lambda: lds_flag(F_GUP))
    embed(32, 32, TX2); embed(33, 33, TX2 + 1)
    lds_wait(F_QH, sMODE, 1, "qh3", sleep=4)
    A(f"s_lshl_b32 s{sT1}, s{sJJ}, 8\ns_add_u32 s{sT1}, s{sT1}, s{sXB}\ns_add_u32 s{sT1}, s{sT1}, {X_G1}\ns_and_b32 s{sT0}, s{sT1}, {hex(0xfffff800)}")
    if skip & 4: A("s_branch L_hstat")
    A("s_mov_b32 exec_lo, 0x00ff00ff\ns_mov_b32 exec_hi, 0x00ff00ff")
    store2(f"buffer_store_dwordx2 v[32:33], v6, {s4(rWS)}, s{sT1} offen", f"s_cmp_eq_u32 s{sMODE}, 2")
    A("s_mov_b64 exec, -1")
    stamp(1)
    lds_wait(F_RDY, sFL, 8 * g2gate, "g2gate", sleep=16)
    for i in range(8):
        A(f"ds_read_b128 {v4(64+4*i)}, v4 offset:{L_WD + 1024*i}")
    poll([f"buffer_load_dwordx4 {v4(32+4*i)}, v4, {s4(rWS)}, s{sT0} offen offset:{1024*i} sc1" for i in range(2)],
         chk4([32, 36]), "g1poll", sleep=32)
    for e in range(8):
        swap_red(32 + e, vX0, "v_add_f32")
        rnd_bf16(32 + e)
    for e in range(4):
        sigmoid(32 + e, 32 + e)
        rnd_bf16(32 + e)
        A(f"v_mul_f32 v{32+e}, v{32+e}, v{36+e}")
    A("v_cvt_pk_bf16_f32 v32, v32, v33\nv_cvt_pk_bf16_f32 v33, v34, v35")
    A("v_and_b32 v5, 3, v1\nv_lshlrev_b32 v5, 5, v5\nv_and_b32 v6, 12, v1\nv_add_u32 v5, v5, v6\nv_lshlrev_b32 v6, 4, v2")
    A(f"ds_write_b32 v5, v32 offset:{L_HB}\nds_write_b32 v5, v33 offset:{L_HB+16}\nds_read_b128 v[20:23], v6 offset:{L_HB}")
    lgkm(0)
    matvec8(64, [f"v{20+k}" for k in range(4)], 32, 40)
    reduce8(32)
    A(f"v_lshrrev_b32 v6, 4, v1\nv_lshlrev_b32 v6, 3, v6\nv_lshl_add_u32 v6, v3, 1, v6\nv_lshlrev_b32 v5, 2, v1")
    A(f"ds_write_b64 v6, v[32:33] offset:{L_HB}\nds_read_b32 v32, v5 offset:{L_HB}")
    A(f"v_and_b32 v5, 7, v1\nv_lshlrev_b32 v5, 2, v5\nv_lshrrev_b32 v33, v5, s{sTAG}\nv_and_b32 v33, 15, v33")
    A(f"v_lshrrev_b32 v6, 4, v1\nv_lshlrev_b32 v6, 11, v6\nv_and_b32 v5, 15, v1\nv_lshl_add_u32 v6, v5, 2, v6")
    A(f"s_lshl_b32 s{sT1}, s{sSUB}, 13\ns_lshl_b32 s{sT2}, s{sCB}, 6\ns_add_u32 s{sT1}, s{sT1}, s{sT2}\ns_add_u32 s{sT1}, s{sT1}, {WS_GL}")
    lgkm(0)
    embed(32, 32, 33)
    if not skip & 1:
        A(f"buffer_store_dword v32, v6, {s4(rWS)}, s{sT1} offen sc1")
    A("s_branch L_hstat")
    A("L_h3f:")
    A(f"v_and_b32 v6, 3, v1\nv_lshlrev_b32 v6, 3, v6\nv_lshrrev_b32 v5, 5, v1\nv_lshl_add_u32 v6, v5, 2, v6\ns_lshl_b32 s{sT1}, s{sF}, 5")
    A(f"buffer_load_dword v{vXP}, v6, {s4(rA)}, s{sT1} offen")
    make_tags()
    lds_flag(F_GUP)
    if skip & 2: A("s_branch L_hstat")
    lds_wait(F_RDY, sFL, 8 * g3gate, "g3gate", sleep=16)
    A(f"s_lshl_b32 s{sH}, s{sF}, 11\ns_add_u32 s{sH}, s{sH}, {WS_GL}")
    A(f"v_min_u32 v6, 47, v1\nv_and_b32 v6, 60, v6\nv_and_b32 v5, 3, v1\nv_or_b32 v6, v6, v5\nv_lshlrev_b32 v6, 4, v6")
    poll([f"buffer_load_dwordx4 v[64:67], v4, {s4(rWS)}, s{sH} offen sc1",
          f"buffer_load_dwordx4 v[68:71], v6, {s4(rWS)}, s{sH} offen offset:1024 sc1"], chk4([64, 68]), "gpoll", sleep=64)
    A("s_mov_b32 exec_hi, 0xffff")
    for e in range(4):
        A(f"v_add_f32 v{64+e}, v{64+e}, v{68+e}")
    A("s_mov_b64 exec, -1")
    red4(64)
    for e in range(2):
        rnd_bf16(64 + e)
        sigmoid(68, 64 + e)
        A(f"v_mul_f32 v{vG+e}, v{64+e}, v68")
        rnd_bf16(vG + e)
    A("L_hstat:")
    stamp(2)
    lds_wait(F_PD, sT0, 1, "pdh", sleep=16, pair=True)
    lds_wait(F_TG, sT0, 1, "tg", sleep=4)
    lds_wait(F_QH, sMODE, 1, "qh4", sleep=4)
    A(f"v_and_b32 v5, 3, v1\nv_lshlrev_b32 v5, 3, v5")
    A(f"ds_read_b64 v[32:33], v5 offset:{L_LS}\nds_read_b32 v34, v5 offset:{L_LS+32}")
    lgkm(0)
    A(f"v_add_f32 v32, v32, v34\nv_log_f32 v32, v32\nv_mov_b32 v35, s{sTAG}\nv_add_f32 v34, v32, v33")
    A(f"s_add_u32 s{sT0}, s{sXB}, {X_LS}\ns_lshl_b32 s{sT1}, s{sJJ}, 5\ns_add_u32 s{sT1}, s{sT1}, s{sT0}")
    A("s_mov_b64 exec, 15")
    store2(f"buffer_store_dwordx2 v[34:35], v5, {s4(rWS)}, s{sT1} offen", f"s_cmp_eq_u32 s{sMODE}, 2")
    A("s_mov_b64 exec, -1")
    lds_wait(F_RDY, sFL, 8 * lsgate, "lsgate", sleep=16)
    A(f"v_lshlrev_b32 v6, 3, v1")
    poll([f"buffer_load_dwordx2 {v2(36+2*i)}, v6, {s4(rWS)}, s{sT0} offen offset:{512*i} sc1" for i in range(2)],
         [(37, f"s{sTAG}"), (39, f"s{sTAG}")], "lspoll", sleep=16, full=True)
    A("v_max_f32 v40, v36, v38")
    wave_red(40, vX0, "v_max_f32", (8, 4))
    A("v_sub_f32 v36, v36, v40\nv_sub_f32 v38, v38, v40\nv_exp_f32 v36, v36\nv_exp_f32 v38, v38\nv_sub_f32 v33, v33, v40\nv_add_f32 v36, v36, v38")
    wave_red(36, vX0, "v_add_f32", (8, 4))
    A("v_exp_f32 v33, v33\nv_rcp_f32 v36, v36\nv_lshrrev_b32 v5, 1, v5\nv_mul_f32 v33, v33, v36")
    A(f"ds_write_b32 v5, v33 offset:{L_SC}")
    lds_flag(F_SC)
    stamp(3)
    tail_prep()
    A("L_late:")
    lds_wait(F_RDY, sFL, NV - 32, "late", sleep=4)

    A("L_tail:")
    stamp(4, 0)
    lds_wait(F_RDY, sFL, f"s{sWT}", "wordy", sleep=0)
    for n in range(16):
        A(f"ds_read_b32 v{vWT+n}, v{vWA} offset:{L_WO + 256*n}")
    def wo_pairs():
        lgkm(0)
        for u in range(8):
            A(f"v_perm_b32 v{vWO+2*u}, v{vWT+1+2*u}, v{vWT+2*u}, s{sSELL}\nv_perm_b32 v{vWO+1+2*u}, v{vWT+1+2*u}, v{vWT+2*u}, s{sSELH}")
    poll([f"buffer_load_dwordx4 {v4(40+4*i)}, v4, {s4(rWS)}, s{sI1} offen offset:{1024*i} sc1" for i in range(2)],
         chk4([40, 44]), "h1poll", sleep=h1sleep, mid=wo_pairs)
    stamp(5, 0)
    padd(40, 40, 44, 4)
    red4(40)
    A(f"v_cvt_pk_bf16_f32 v40, v40, v41\ns_nop 0")
    for u in range(8):
        A(f"v_readlane_b32 s{sH+u}, v40, {32*(u&1) + (u>>1)}")
    for u in range(8):
        for z in range(2):
            c = "0" if u == 0 else f"v{48+z}"
            A(f"v_dot2_f32_bf16 v{48+z}, s{sH+u}, v{vWO+2*u+z}, {c}")
    A(f"s_cmp_lg_u32 s{sTW}, 3\ns_nop 1")
    A(f"ds_write_b64 v{vRW}, v[48:49] offset:{L_RED}")
    A("s_waitcnt lgkmcnt(0)\ns_barrier\ns_cbranch_scc1 L_fin")
    for p in range(3):
        A(f"ds_read_b64 {v2(42+2*p)}, v{vRR} offset:{L_RED + 512*p}")
    lgkm(0)
    padd(48, 48, 42, 2); padd(44, 44, 46, 2); padd(48, 48, 44, 2)
    embed(48, 48, TX2); embed(49, 49, TX2 + 1)
    A(f"buffer_store_dwordx2 v[48:49], v{vO2}, {s4(rWS)}, s{sO2} offen sc1")
    A(f"s_cmp_lt_i32 s{sF}, 0\ns_cbranch_scc1 L_fin")
    A(f"s_mov_b32 s{sT0}, s{sF}")
    A(f"s_lshr_b32 s{sT1}, s{sT0}, 1\ns_lshl_b32 s{sT1}, s{sT1}, 13\ns_and_b32 s{sT2}, s{sT0}, 1\ns_lshl_b32 s{sT2}, s{sT2}, 6\ns_add_u32 s{sT1}, s{sT1}, s{sT2}")
    A(f"s_add_u32 s{sT1}, s{sT1}, {WS_H2}\ns_add_u32 s{sT2}, s{sT1}, 4096\ns_lshl_b32 s{sT3}, s{sT0}, 5")
    A(f"v_lshrrev_b32 v55, 2, v1\nv_lshlrev_b32 v55, 7, v55\nv_and_b32 v5, 3, v1\nv_lshl_add_u32 v55, v5, 4, v55")
    A(f"v_lshlrev_b32 v5, 1, v5\nv_lshrrev_b32 v6, 5, v1\nv_add_u32 v5, v5, v6\nv_lshlrev_b32 v52, 2, v5")
    A(f"v_lshlrev_b32 v50, 16, v{vXP}\nv_and_b32 v51, s{sHI}, v{vXP}")
    srd(rA, sOUT, 1024)
    A("s_waitcnt vmcnt(0)")
    poll([f"buffer_load_dwordx4 {v4(64+4*i)}, v55, {s4(rWS)}, s{sT1+i//2} offen offset:{2048*(i%2)} sc1" for i in range(4)],
         chk4([64, 68, 72, 76]), "h2poll", sleep=h2sleep)
    stamp(6, 0)
    padd(64, 64, 72, 8)
    padd(64, 64, 68, 4)
    red4(64)
    A(f"v_cvt_pk_bf16_f32 v64, v64, v65\nv_and_b32 v65, s{sHI}, v64\nv_lshlrev_b32 v64, 16, v64")
    A(f"v_mul_f32 v64, v64, v{vG}\nv_mul_f32 v65, v65, v{vG+1}")
    A(f"v_cvt_pk_bf16_f32 v64, v64, v65\nv_and_b32 v65, s{sHI}, v64\nv_lshlrev_b32 v64, 16, v64")
    A("v_add_f32 v64, v64, v50\nv_add_f32 v65, v65, v51\nv_cvt_pk_bf16_f32 v64, v64, v65")
    A("s_mov_b32 exec_lo, 15\ns_mov_b32 exec_hi, 15")
    A(f"buffer_store_dword v64, v52, {s4(rA)}, s{sT3} offen")
    A(f"s_cmp_lg_u32 s{sT0}, 0\ns_cbranch_scc1 L_fin")
    A(f"s_mov_b64 exec, 1\nv_mov_b32 v65, s{sTAG}\ns_mov_b32 s{sT1}, {WS_EPOCH}")
    A(f"buffer_store_dword v65, v7, {s4(rWS)}, s{sT1} offen")
    A("L_fin:")
    if stamps:
        A("s_mov_b64 exec, -1")
        A("s_waitcnt vmcnt(0)")
        stamp(7)
        A("s_waitcnt lgkmcnt(0)")
        if span is not None:
            A(f"s_cmp_lg_u32 s{sW}, {span[0]}\ns_cbranch_scc1 L_skout")
            if len(span) > 2:
                A(f"s_cmp_lg_u32 s{sX8}, {span[2]}\ns_cbranch_scc1 L_skout")
            srd(rB, 44, 256)
            A(f"buffer_load_dword v16, v7, {s4(rB)}, 0 offen offset:64 sc1\ns_waitcnt vmcnt(0)\nv_readfirstlane_b32 s{sT2}, v16\ns_nop 3")
            A(f"s_not_b32 s{sT0}, s{sT2}\ns_sub_u32 s{sT2}, s{sST+2*span[1]}, s{sT0}\ns_sub_u32 s{sT2}, s{sT2}, 3000\ns_mul_i32 s{sT2}, s{sT2}, 10\ns_min_u32 s{sT2}, s{sT2}, 100000")
            A(f"s_add_u32 s{sT2}, s{sT2}, s{sT0}\ns_add_u32 s{sT2}, s{sT2}, 10000")
            A("L_skpad:")
            A(f"s_memrealtime {s2(sH)}\ns_waitcnt lgkmcnt(0)\ns_sub_u32 s{sT3}, s{sH}, s{sT2}\ns_cmp_lt_i32 s{sT3}, 0\ns_cbranch_scc1 L_skpad")
            A("L_skout:")
        for i in range(8):
            A(f"v_mov_b32 v{96+i}, s{sST+2*i}")
        A(f"s_mul_i32 s{sT1}, s2, 5\ns_add_u32 s{sT1}, s{sT1}, s{sW}\ns_lshl_b32 s{sT1}, s{sT1}, 5\ns_add_u32 s{sT1}, s{sT1}, {WS_STAMP}")
        A("s_mov_b64 exec, 1")
        A(f"buffer_store_dwordx4 v[96:99], v7, {s4(rWS)}, s{sT1} offen")
        A(f"buffer_store_dwordx4 v[100:103], v7, {s4(rWS)}, s{sT1} offen offset:16")
    A("L_end:")
    A("s_endpgm")

    out = HEADER
    out += f"; @launch grid=(256,1,1) block=(320,1,1) lds={LDS_BYTES}\n"
    out += '.amdgcn_target "amdgcn-amd-amdhsa--gfx950"\n.text\n'
    out += f".globl {KNAME}_kernel\n.p2align 8\n.type {KNAME}_kernel,@function\n"
    out += "\n".join(A.L) + "\n"
    out += f""".section .rodata,"a"
.p2align 6
.amdhsa_kernel {KNAME}_kernel
  .amdhsa_next_free_vgpr 216
  .amdhsa_next_free_sgpr 102
  .amdhsa_accum_offset 216
  .amdhsa_group_segment_fixed_size 0
  .amdhsa_kernarg_size 96
  .amdhsa_user_sgpr_count 2
  .amdhsa_user_sgpr_kernarg_segment_ptr 1
  .amdhsa_system_sgpr_workgroup_id_x 1
.end_amdhsa_kernel
"""
    return out


if __name__ == "__main__":
    kw = json.loads(sys.argv[2]) if len(sys.argv) > 2 else {}
    open(sys.argv[1], "w").write(gen(**kw))
```

```python
import sys, json, struct

KNAME = "recurrent_scan__gqa_block_cached__glu_gated_glu__decode"
HEADER = open("cdna_kernels/" + KNAME + ".s.ref").read().split("; Override launch")[0]

def f2u(x):
    return struct.unpack("<I", struct.pack("<f", x))[0]

LOG2E = 1.4426950408889634
X_H1 = 0x0
X_QX = 0x10000
X_G1 = 0x12000
X_LS = 0x14000
X_PG = 0x14400
X_LINES = 21
X_QXFAR = 0x8000
WS_EPOCH = 0x1F000
WS_GL = 0x100000
WS_H2 = 0x110000
WS_STAMP = 0x1000000
WS_SIZE = 0x20000000
L_Q = 0
L_FLAG = 1024
F_RDY = L_FLAG
F_GUP = L_FLAG + 4
F_DONE = L_FLAG + 8
F_QH = L_FLAG + 16
F_XN = L_FLAG + 20
F_MX = L_FLAG + 24
F_PD = L_FLAG + 32
F_SC = L_FLAG + 40
F_WIN = L_FLAG + 44
F_TG = L_FLAG + 48
L_MX = 1152
L_LS = 1216
L_SC = 1280
L_HB = 1536
L_RED = 2048
L_XN = L_RED
L_P = 4096
L_WD = 20480
L_RING = 28672
NSLOT = 8
L_WO = L_RING
LDS_BYTES = L_RING + NSLOT * 16384
U0 = 5

sXB = 0
sFL = 3
sMODE, sLIM, sI1, sO2 = 14, 15, 24, 25
sWT = 20
sF = 83
sTW = 82
sPM = 48
sX, sK, sV, sWQ, sWO, sBX, sWG, sWU, sWD, sOUT, sDBG, sWS = 4, 6, 8, 10, 12, 14, 16, 18, 20, 22, 24, 26
rK, rV, rWS, rA, rB, rC, rD = 28, 32, 36, 40, 44, 48, 52
sW, sX8, sJJ, sCB, sSUB = 56, 57, 58, 59, 60
sC, sTHR, sCNT, sTAG = 61, 62, 63, 64
sSELL, sSELH, sSCALE, sLOG2E, sHI = 65, 66, 67, 68, 69
sT0, sT1, sT2, sT3 = 70, 71, 72, 73
sH = 74
sSPIN = 84
sLB = 85
sST = 86
TX4 = 8; TX2 = 12; vX0 = 14; vX1 = 15
vWO, vWT, vRW, vRR, vO2, vO1, vWA = 192, 128, 208, 209, 210, 211, 212


DOC = '''; ---------------------------------------------------------------------------------------------------
; ---------------------------------------------------------------------------------------------------
'''


class G:
    def __init__(self):
        self.L = []
        self.n = 0
    def __call__(self, s):
        for line in s.strip("\n").split("\n"):
            self.L.append("    " + line.strip() if not line.strip().endswith(":") else line.strip())
    def label(self, base):
        self.n += 1
        return f"L_{base}_{self.n}"


def v4(r):
    return f"v[{r}:{r+3}]"
def v2(r):
    return f"v[{r}:{r+1}]"
def s4(r):
    return f"s[{r}:{r+3}]"
def s2(r):
    return f"s[{r}:{r+1}]"


def gen(win=20, wins=(20, 21, 22, 24, 27), bias=64, ebias=224, gs=8, endstop=48, psleep=8, wwo=20, worder=(1, 2, 0, 3),
        nb=(2, 4, 4, 4, 3, 4, 3, 4), g2gate=24, g3gate=48, lsgate=100, prept=30, qsleep=4, qtry=96, unq=2,
        etouch=1, stamps=False, smode=0, span=None, skip=0, force=0):
    A = G()
    kvflags = wflags = "nt"
    csleep = h1sleep = h2sleep = 0
    if span is not None:
        stamps = True; smode = 9

    def srd(r, base, size):
        A(f"s_mov_b32 s{r}, s{base}\ns_mov_b32 s{r+1}, s{base+1}\ns_mov_b32 s{r+2}, {size}\ns_mov_b32 s{r+3}, 0x20000")

    def stamp(i, mode=None):
        if stamps and (mode is None or mode == smode):
            A(f"s_memrealtime {s2(sST + 2 * i)}")

    def lgkm(n):
        A(f"s_waitcnt lgkmcnt({n})")

    def swap_red(r, t, op, kinds=("16", "32")):
        for k in kinds:
            A(f"v_mov_b32 v{t}, v{r}\ns_nop 1\nv_permlane{k}_swap_b32 v{r}, v{t}\ns_nop 1\n{op} v{r}, v{r}, v{t}")

    def wave_red(r, t, op, rors):
        for k in rors:
            A(f"s_nop 1\n{op} v{r}, v{r}, v{r} row_ror:{k}")
        swap_red(r, t, op)

    def rnd_bf16(r):
        A(f"v_cvt_pk_bf16_f32 v{r}, v{r}, v{r}\nv_and_b32 v{r}, 0xffff0000, v{r}")

    def ln_stats(X, mean, rstd, F):
        D = F + 8
        for k in range(4):
            A(f"v_lshlrev_b32 v{F+2*k}, 16, v{X+k}\nv_and_b32 v{F+2*k+1}, s{sHI}, v{X+k}")
        A(f"v_add_f32 v{mean}, v{F}, v{F+1}")
        for k in range(2, 8):
            A(f"v_add_f32 v{mean}, v{mean}, v{F+k}")
        wave_red(mean, vX0, "v_add_f32", (8, 4, 2, 1))
        A(f"v_mul_f32 v{mean}, {hex(f2u(1/512))}, v{mean}")
        for k in range(8):
            A(f"v_sub_f32 v{D+k}, v{F+k}, v{mean}")
        A(f"v_mul_f32 v{rstd}, v{D}, v{D}")
        for k in range(1, 8):
            A(f"v_fmac_f32 v{rstd}, v{D+k}, v{D+k}")
        wave_red(rstd, vX0, "v_add_f32", (8, 4, 2, 1))
        A(f"v_mul_f32 v{rstd}, {hex(f2u(1/512))}, v{rstd}")
        rnd_bf16(mean); rnd_bf16(rstd)
        A(f"v_add_f32 v{rstd}, {hex(f2u(1e-5))}, v{rstd}")
        rnd_bf16(rstd)
        A(f"v_sqrt_f32 v{rstd}, v{rstd}\ns_nop 0")
        rnd_bf16(rstd)
        A(f"v_rcp_f32 v{rstd}, v{rstd}")

    def ln_apply(X, mean, rstd, D):
        for k in range(4):
            A(f"v_lshlrev_b32 v{D+2*k}, 16, v{X+k}\nv_and_b32 v{D+2*k+1}, s{sHI}, v{X+k}")
        for k in range(8):
            A(f"v_sub_f32 v{D+k}, v{D+k}, v{mean}")
        for k in range(4):
            A(f"v_cvt_pk_bf16_f32 v{X+k}, v{D+2*k}, v{D+2*k+1}")
        for k in range(4):
            A(f"v_lshlrev_b32 v{D+2*k}, 16, v{X+k}\nv_and_b32 v{D+2*k+1}, s{sHI}, v{X+k}")
        for k in range(8):
            A(f"v_mul_f32 v{D+k}, v{D+k}, v{rstd}")
        for k in range(4):
            A(f"v_cvt_pk_bf16_f32 v{X+k}, v{D+2*k}, v{D+2*k+1}")

    def matvec8(W, xs, acc, tmp, first=True):
        for j in range(4):
            for u in range(4):
                A(f"v_perm_b32 v{tmp+2*u}, v{W+(2*j+1)*4+u}, v{W+(2*j)*4+u}, s{sSELL}")
                A(f"v_perm_b32 v{tmp+2*u+1}, v{W+(2*j+1)*4+u}, v{W+(2*j)*4+u}, s{sSELH}")
            for e in range(8):
                c = "0" if (j == 0 and first) else f"v{acc+e}"
                A(f"v_dot2_f32_bf16 v{acc+e}, {xs[j]}, v{tmp+e}, {c}")
        A("s_nop 2")

    def reduce8(acc):
        A("s_nop 1")
        for e in range(4):
            A(f"v_permlane32_swap_b32 v{acc+e}, v{acc+4+e}")
        A("s_nop 1")
        for e in range(4):
            A(f"v_add_f32 v{acc+e}, v{acc+e}, v{acc+4+e}")
        A("s_nop 1")
        for e in range(2):
            A(f"v_permlane16_swap_b32 v{acc+e}, v{acc+2+e}")
        A("s_nop 1")
        for e in range(2):
            A(f"v_add_f32 v{acc+e}, v{acc+e}, v{acc+2+e}")
        A("s_nop 0")
        for e in range(2):
            A(f"v_add_f32 v{acc+e}, v{acc+e}, v{acc+e} row_ror:8")
        A("s_nop 0")

    def red4(a):
        A("s_nop 1")
        A(f"v_permlane32_swap_b32 v{a}, v{a+2}\nv_permlane32_swap_b32 v{a+1}, v{a+3}")
        A("s_nop 0")
        A(f"v_add_f32 v{a}, v{a}, v{a+2}\nv_add_f32 v{a+1}, v{a+1}, v{a+3}")
        for k in (8, 4):
            A("s_nop 0")
            A(f"v_add_f32 v{a}, v{a}, v{a} row_ror:{k}\nv_add_f32 v{a+1}, v{a+1}, v{a+1} row_ror:{k}")
        A(f"v_mov_b32 v{a+2}, v{a}\nv_mov_b32 v{a+3}, v{a+1}\ns_nop 0")
        A(f"v_permlane16_swap_b32 v{a}, v{a+2}\nv_permlane16_swap_b32 v{a+1}, v{a+3}")
        A("s_nop 0")
        A(f"v_add_f32 v{a}, v{a}, v{a+2}\nv_add_f32 v{a+1}, v{a+1}, v{a+3}")

    def lds_wait(addr, sreg, thr, name, sleep=1, vaddr=7, cached=False, pair=False):
        top = A.label(name); done = A.label(name + "_ok")
        if cached:
            A(f"s_cmp_ge_i32 s{sreg}, {thr}\ns_cbranch_scc1 {done}")
        A(f"s_mov_b32 s{sSPIN}, 0")
        A(f"{top}:")
        if pair:
            A(f"ds_read_b64 {v2(vX0)}, v{vaddr} offset:{addr}\ns_waitcnt lgkmcnt(0)\nv_min_i32 v{vX0}, v{vX0}, v{vX1}\ns_nop 0")
        else:
            A(f"ds_read_b32 v{vX0}, v{vaddr} offset:{addr}\ns_waitcnt lgkmcnt(0)")
        A(f"v_readfirstlane_b32 s{sreg}, v{vX0}")
        A(f"s_add_u32 s{sSPIN}, s{sSPIN}, 1")
        A(f"s_cmp_ge_i32 s{sreg}, {thr}\ns_cbranch_scc1 {done}")
        if sleep:
            A(f"s_sleep {sleep}")
        A(f"s_cmp_lt_u32 s{sSPIN}, 0x100000\ns_cbranch_scc1 {top}")
        A(f"{done}:")

    def lds_flag(addr, val=1, vaddr=7):
        A(f"v_mov_b32 v{vX0}, {val}\nds_write_b32 v{vaddr}, v{vX0} offset:{addr}")

    def make_tags():
        A(f"s_waitcnt lgkmcnt(0)\ns_add_u32 s{sTAG}, s{sTAG}, 0x9E3779B1")
        A(f"v_and_b32 v5, 1, v1\nv_lshlrev_b32 v5, 4, v5\nv_lshrrev_b32 v5, v5, s{sTAG}")
        for k in range(4):
            A(f"v_bfe_u32 v{TX4+k}, v5, {4*k}, 4")
        A(f"v_and_b32 v5, 3, v1\nv_lshlrev_b32 v5, 3, v5\nv_lshrrev_b32 v5, v5, s{sTAG}")
        for k in range(2):
            A(f"v_bfe_u32 v{TX2+k}, v5, {4*k}, 4")

    def embed(dst, src, tag):
        A(f"v_and_or_b32 v{dst}, v{src}, -16, v{tag}")

    def untag(checks):
        for r, t in checks:
            A(f"v_xor_b32 v{r}, {t}, v{r}")
        rs = [r for r, _ in checks]
        A(f"v_or_b32 v{vX0}, v{rs[0]}, v{rs[1]}")
        for i in range(2, len(rs), 2):
            A(f"v_or3_b32 v{vX0}, v{vX0}, v{rs[i]}, v{rs[i+1]}")
        A(f"v_and_b32 v{vX0}, 15, v{vX0}\nv_cmp_ne_u32 vcc, 0, v{vX0}")

    def padd(d, a, b, n):
        for e in range(0, n, 2):
            A(f"v_pk_add_f32 {v2(d+e)}, {v2(a+e)}, {v2(b+e)}")

    def poll(loads, checks, name, sleep=0, full=False, mid=None):
        top = A.label(name); done = A.label(name + "_ok")
        A(f"s_mov_b32 s{sSPIN}, 0")
        if mid:
            chk = A.label(name + "_chk")
            for l in loads:
                A(l)
            mid()
            A(f"s_branch {chk}")
        A(f"{top}:")
        for l in loads:
            A(l)
        if mid:
            A(f"{chk}:")
        A("s_waitcnt vmcnt(0)")
        if full:
            A(f"v_xor_b32 v{vX0}, {checks[0][1]}, v{checks[0][0]}")
            for r, t in checks[1:]:
                A(f"v_bitop3_b32 v{vX0}, v{vX0}, v{r}, {t} bitop3:0xf6")
            A(f"v_cmp_ne_u32 vcc, 0, v{vX0}")
        else:
            untag(checks)
        A(f"s_cbranch_vccz {done}")
        if sleep:
            A(f"s_sleep {sleep}")
        A(f"s_add_u32 s{sSPIN}, s{sSPIN}, 1\ns_cmp_lt_u32 s{sSPIN}, s{sLIM}\ns_cbranch_scc1 {top}")
        A(f"{done}:")

    def store2(line, cond_scc1_near):
        far = A.label("far"); done = A.label("st")
        A(cond_scc1_near)
        A(f"s_cbranch_scc0 {far}\n{line}\ns_branch {done}\n{far}:\n{line} sc1\n{done}:")

    def chk4(regs):
        return [(r + k, f"v{TX4+k}") for r in regs for k in range(4)]

    def next_slot(step):
        A(f"s_add_u32 s{sLB}, s{sLB}, {step*16384}\ns_and_b32 s{sLB}, s{sLB}, {NSLOT*16384-1}")

    def tail_prep():
        A(f"s_lshl_b32 s{sT2}, s{sTW}, 12\nv_lshl_add_u32 v{vWA}, v1, 2, s{sT2}")
        tabw = sum((4 * (worder.index(w) + 1)) << (8 * w) for w in range(4))
        A(f"s_lshl_b32 s{sT2}, s{sTW}, 3\ns_lshr_b32 s{sWT}, {hex(tabw)}, s{sT2}\ns_and_b32 s{sWT}, s{sWT}, 0xff\ns_add_u32 s{sWT}, s{sWT}, {8*U0+1024}")
        A(f"s_and_b32 s{sT2}, s{sJJ}, 28\ns_add_u32 s{sT2}, s{sT2}, s{sTW}\ns_lshl_b32 s{sT2}, s{sT2}, 11\ns_add_u32 s{sI1}, s{sXB}, s{sT2}")
        A(f"v_and_b32 v{vRW}, 0xff, v0\nv_lshlrev_b32 v{vRW}, 3, v{vRW}\nv_lshlrev_b32 v{vRR}, 3, v1")
        A(f"v_and_b32 v5, 15, v1\nv_lshlrev_b32 v5, 3, v5\nv_lshrrev_b32 v6, 4, v1\nv_lshl_add_u32 v{vO2}, v6, 13, v5")
        A(f"s_and_b32 s{sO2}, s{sJJ}, 3\ns_lshl_b32 s{sO2}, s{sO2}, 15\ns_lshl_b32 s{sT2}, s{sX8}, 10\ns_add_u32 s{sO2}, s{sO2}, s{sT2}")
        A(f"s_lshr_b32 s{sT2}, s{sJJ}, 2\ns_lshl_b32 s{sT2}, s{sT2}, 7\ns_add_u32 s{sO2}, s{sO2}, s{sT2}\ns_add_u32 s{sO2}, s{sO2}, {WS_H2}")

    def sigmoid(dst, src):
        A(f"v_mul_f32 v{dst}, s{sLOG2E}, v{src}\nv_exp_f32 v{dst}, -v{dst}\ns_nop 0\nv_add_f32 v{dst}, 1.0, v{dst}\nv_rcp_f32 v{dst}, v{dst}\ns_nop 0")

    A("; ======== entry")
    A(f"{KNAME}_kernel:")
    A("s_cmpk_ge_u32 s2, 0x100\ns_cbranch_scc1 L_end")
    stamp(0)
    A(f"s_load_dwordx16 s[4:19], s[0:1], 0\ns_load_dwordx8 s[20:27], s[0:1], 64")
    A(f"v_and_b32 v1, 63, v0\nv_readfirstlane_b32 s{sW}, v0")
    A(f"s_and_b32 s{sX8}, s2, 7\ns_lshr_b32 s{sJJ}, s2, 3")
    A("v_lshlrev_b32 v4, 4, v1")
    A("v_lshrrev_b32 v2, 3, v1\nv_and_b32 v3, 0x70, v4")
    A(f"s_mov_b32 s{rA+3}, 0x20000\ns_lshr_b32 s{sW}, s{sW}, 6\ns_cbranch_scc1 L_e1")
    A(f"s_and_b32 s{sT1}, s{sJJ}, 7\ns_lshl3_add_u32 s{sT1}, s{sX8}, s{sT1}\ns_lshl_b32 s{sT1}, s{sT1}, 7")
    A(f"s_lshr_b32 s{sT2}, s2, 6\ns_lshl_b32 s{sT2}, s{sT2}, 20\ns_add_u32 s{sT1}, s{sT1}, s{sT2}")
    A(f"v_lshl_add_u32 v5, v2, 17, v3\ns_bfm_b32 s{rA+2}, 1, 22\ns_movk_i32 m0, {L_P}")
    A(f"s_waitcnt lgkmcnt(0)\ns_mov_b64 {s2(rA)}, {s2(sWQ)}")
    stamp(4, 4)
    A("L_wq:")
    A(f"buffer_load_dwordx4 v5, {s4(rA)}, s{sT1} offen {wflags} lds")
    A(f"s_addk_i32 m0, 0x400\ns_addk_i32 s{sT1}, 0x2000\ns_cmpk_lt_u32 m0, {L_P + 16384}\ns_cbranch_scc1 L_wq")
    A("s_branch L_e2")
    A("L_e1:")
    A(f"s_cmp_lg_u32 s{sW}, 2\ns_cbranch_scc1 L_e1b")
    A(f"s_movk_i32 s{rA+2}, 0x400\ns_waitcnt lgkmcnt(0)\ns_mov_b64 {s2(rA)}, {s2(sX)}")
    A(f"buffer_load_dwordx4 v[16:19], v4, {s4(rA)}, 0 offen")
    A("L_e1b:")
    A(f"s_cmp_lg_u32 s{sW}, 1\ns_cbranch_scc1 L_e2")
    A(f"s_getpc_b64 {s2(sT0)}")
    A("L_pc:")
    A(f"s_lshl_b32 s{sT2}, s{sJJ}, 6\nv_add_u32 v5, s{sT2}, v1\nv_mul_u32_u24 v5, 12, v5\nv_min_u32 v5, L_end-L_pc, v5")
    A(f"global_load_dword v16, v5, {s2(sT0)}")
    def xtouch():
        A(f"v_min_u32 v6, {X_LINES-1}, v1\ns_mul_i32 s{sT2}, s{sJJ}, {X_LINES}\ns_lshl_b32 s{sT3}, s{sX8}, 10\ns_add_u32 s{sT2}, s{sT2}, s{sT3}")
        A(f"v_add_lshl_u32 v6, v6, s{sT2}, 7\ns_waitcnt lgkmcnt(0)\nglobal_load_dword v17, v6, {s2(sWS)} sc1")
    if etouch == 1:
        xtouch()
    A("L_e2:")
    A(f"v_and_b32 v6, 15, v1\nv_cmp_eq_u32 vcc, {(F_DONE + 4 - L_FLAG) // 4}, v6\nv_lshlrev_b32 v6, 2, v6\nv_mov_b32 v7, 0")
    A(f"v_cndmask_b32 v5, 0, 1, vcc\nds_write_b32 v6, v5 offset:{L_FLAG}")
    if True:
        A("; die x holds nb[x] whole blocks (8 workgroups each); its other workgroups finish output columns")
        assert sum(nb) == 28
        free = [sum(4 - n for n in nb[:x]) for x in range(8)]
        tab = sum((nb[x] & 7 | (free[x] & 7) << 4) << (8 * x) for x in range(8))
        A(f"s_mov_b32 s{sT0}, {hex(tab & 0xffffffff)}\ns_mov_b32 s{sT1}, {hex(tab >> 32)}\ns_lshl_b32 s{sT2}, s{sX8}, 3\ns_lshr_b64 {s2(sT0)}, {s2(sT0)}, s{sT2}")
        A(f"s_bfe_u32 s{sT1}, s{sT0}, 0x30004\ns_and_b32 s{sT0}, s{sT0}, 7\ns_lshr_b32 s{sT2}, s{sJJ}, 3\ns_and_b32 s{sSUB}, s{sJJ}, 7")
        A(f"s_lshl2_add_u32 s{sCB}, s{sX8}, s{sT2}\ns_sub_u32 s{sCB}, s{sCB}, s{sT1}")
        A(f"s_sub_u32 s{sT1}, s{sT1}, s{sT0}\ns_lshl3_add_u32 s{sF}, s{sT1}, s{sJJ}\ns_cmp_lt_u32 s{sT2}, s{sT0}\ns_cselect_b32 s{sF}, -1, s{sF}")
    A(f"s_mov_b32 s{sSELL}, 0x05040100\ns_mov_b32 s{sSELH}, 0x07060302")
    A(f"s_mov_b32 s{sSCALE}, {hex(f2u(128 ** -0.5))}\ns_mov_b32 s{sLOG2E}, {hex(f2u(LOG2E))}\ns_mov_b32 s{sHI}, 0xffff0000")
    if stamps:
        for i in range(1, 8):
            if not (smode == 4 and i == 4):
                A(f"s_mov_b64 {s2(sST+2*i)}, 0")
    A("s_waitcnt lgkmcnt(0)")
    A("s_barrier")
    stamp(5, 5)
    if stamps:
        srd(rWS, sWS, hex(WS_SIZE))
        srd(rB, sDBG, 256)
    A(f"s_cmp_lg_u32 s{sW}, 0\ns_cbranch_scc1 L_notloader")

    D = win
    first_k = (D - 1) % 8
    vCNT = 24
    cnt = [0]
    def ld(line, static=False):
        i = cnt[0]
        if not static or i >= D:
            A(f"s_waitcnt vmcnt({D-1})")
        if static and i == D - 1: stamp(5, 4)
        if static and i == D: stamp(6, 4)
        A(line)
        if i % 8 == first_k and (not static or i >= D - 1 + 8):
            A(f"ds_write_b32 v7, v{vCNT} offset:{F_RDY}\nv_add_u32 v{vCNT}, 8, v{vCNT}")
        cnt[0] += 1
    A(f"v_mov_b32 v{vCNT}, 8")
    cnt[0] = 16
    assert D >= 16
    A(f"s_cmp_lt_i32 s{sF}, 0\ns_cselect_b32 s{sT3}, {hex(512 * 1792 * 2)}, 0")
    srd(rD, sWD, f"s{sT3}")
    A(f"s_cmp_lt_u32 s{sSUB}, 4\ns_cselect_b32 s{rB}, s{sWG}, s{sWU}\ns_cselect_b32 s{rB+1}, s{sWG+1}, s{sWU+1}")
    A(f"s_mov_b32 s{rB+2}, s{sT3}\ns_mov_b32 s{rB+3}, 0x20000")
    A(f"s_and_b32 s{sT1}, s{sSUB}, 3\ns_mul_i32 s{sT1}, s{sT1}, {128*3584}\ns_lshl_b32 s{sT2}, s{sCB}, 7\ns_add_u32 s{sT1}, s{sT1}, s{sT2}")
    A(f"v_mul_u32_u24 v6, {16*3584}, v2\nv_add_u32 v6, v6, v3")
    L_GU = L_RING + (NSLOT - 1) * 16384
    for i in range(16):
        A(f"s_mov_b32 m0, {L_GU + 1024*i}")
        A(f"s_add_u32 s{sT2}, s{sT1}, {3584*i}")
        ld(f"buffer_load_dwordx4 v6, {s4(rB)}, s{sT2} offen {wflags} lds", True)
    A(f"s_lshl_b32 s{sT1}, s{sCB}, 16\ns_lshl_b32 s{sT2}, s{sSUB}, 7\ns_add_u32 s{sT1}, s{sT1}, s{sT2}")
    A(f"v_lshl_add_u32 v5, v2, 13, v3")
    for i in range(8):
        if i % 4 == 0:
            A(f"s_mov_b32 m0, {L_WD + 1024*i}")
            A(f"s_add_u32 s{sT2}, s{sT1}, {1024*i}")
        ld(f"buffer_load_dwordx4 v5, {s4(rD)}, s{sT2} offen offset:{1024*(i%4)} {wflags} lds", True)
    srd(rA, sWO, hex(4096 * 512 * 2))
    A(f"s_lshl_b32 s{sT1}, s{sX8}, 9\ns_lshr_b32 s{sT2}, s{sJJ}, 4\ns_lshl_b32 s{sT2}, s{sT2}, 6\ns_add_u32 s{sT1}, s{sT1}, s{sT2}")
    A(f"s_and_b32 s{sT2}, s{sJJ}, 12\ns_add_u32 s{sT1}, s{sT1}, s{sT2}\ns_lshl_b32 s{sT1}, s{sT1}, 10")
    A(f"s_and_b32 s{sT2}, s{sJJ}, 3\ns_lshl_b32 s{sT2}, s{sT2}, 8\ns_add_u32 s{sT1}, s{sT1}, s{sT2}")
    A(f"v_lshrrev_b32 v6, 4, v1\nv_lshlrev_b32 v6, 10, v6\nv_and_b32 v25, 15, v1\nv_lshl_add_u32 v6, v25, 4, v6")
    A(f"s_mov_b32 s{sH+3}, s{sT1}")
    assert cnt[0] == 8 * U0 and D + 7 <= 8 * U0
    stamp(1)
    A(f"s_lshl_b32 s{sT0}, s{sX8}, 24\ns_lshl_b32 s{sT1}, s{sJJ}, 19\ns_add_u32 s{sT0}, s{sT0}, s{sT1}")
    A(f"s_add_u32 s{rK}, s{sK}, s{sT0}\ns_addc_u32 s{rK+1}, s{sK+1}, 0\ns_mov_b32 s{rK+2}, 0x80000\ns_mov_b32 s{rK+3}, 0x20000")
    A(f"s_add_u32 s{rV}, s{sV}, s{sT0}\ns_addc_u32 s{rV+1}, s{sV+1}, 0\ns_mov_b32 s{rV+2}, 0x80000\ns_mov_b32 s{rV+3}, 0x20000")
    A("v_and_b32 v27, 0xf0, v4\nv_bfe_u32 v5, v1, 4, 1\nv_lshl_add_u32 v27, v5, 9, v27\nv_lshrrev_b32 v5, 5, v1\nv_lshl_add_u32 v27, v5, 13, v27")
    A("v_lshrrev_b32 v5, 4, v1\nv_lshlrev_b32 v5, 6, v5\nv_xor_b32 v16, v27, v5")
    A("v_and_b32 v5, 16, v1\nv_lshlrev_b32 v5, 1, v5\nv_xor_b32 v20, v27, v5")
    for n in range(1, 4):
        A(f"v_xor_b32 v{16+n}, {16*n}, v16\nv_xor_b32 v{20+n}, {64*n}, v20")
    sI, sLV = sH + 1, sH + 2
    NV = 8 * U0 + 1024
    NLD = NV + 16
    A(f"s_mov_b32 s{sCNT}, 0\ns_mov_b32 s{sLB}, 0\ns_mov_b32 s{sFL}, 0\ns_mov_b32 s{sH}, 0\ns_mov_b32 s{sI}, {8*U0}\nv_mov_b32 v25, 0\nv_subrev_u32 v26, 8, v{vCNT}")
    A("L_tile:")
    A(f"s_cmp_lg_u32 s{sCNT}, 32\ns_cbranch_scc1 L_nosw")
    stamp(4, 1); stamp(5, 3)
    A(f"s_mov_b64 {s2(rK)}, {s2(rV)}\ns_mov_b32 s{sH}, 0")
    for n in range(4):
        A(f"v_mov_b32 v{16+n}, v{20+n}")
    A("L_nosw:")
    A(f"s_sub_u32 s{sTHR}, s{sCNT}, {NSLOT-1}")
    A(f"s_cmp_lg_u32 s{sTHR}, 0\ns_cbranch_scc1 L_nogup")
    lds_wait(F_GUP, sT2, 1, "gup", sleep=0)
    stamp(2)
    A("L_nogup:")
    lds_wait(F_DONE, sFL, f"s{sTHR}", "free", sleep=0, cached=True, pair=True)
    A(f"s_add_u32 m0, s{sLB}, {L_RING}")
    A(f"s_waitcnt lgkmcnt(0)\nv_readfirstlane_b32 s{sLV}, v25\nds_read_b32 v25, v7 offset:{F_WIN}")
    for k in range(1, len(wins)):
        A(f"s_cmp_eq_u32 s{sLV}, {k}\ns_cbranch_scc1 L_ver{k}")
    def version(idx):
        W = wins[idx]
        A(f"L_ver{idx}:")
        A(f"s_sub_u32 s{sT2}, s{sI}, {W-1}\nv_mov_b32 v{vCNT}, s{sT2}")
        A(f"L_vq{idx}:")
        for hq in range(unq):
            for n in range(4):
                A(f"s_waitcnt vmcnt({W-1})")
                A(f"buffer_load_dwordx4 v{16+n}, {s4(rK)}, s{sH} offen offset:{1024*n} {kvflags} lds")
                if n == 0:
                    A(f"v_max_i32 v26, v26, v{vCNT}\nv_add_u32 v{vCNT}, 4, v{vCNT}\nds_write_b32 v7, v26 offset:{F_RDY}")
            A(f"s_addk_i32 m0, 0x1000\ns_addk_i32 s{sH}, {(0x100, 0xf00)[hq % 2]}")
        if unq < 4:
            A(f"s_and_b32 s{sT2}, s{sH}, 0x1fff\ns_cbranch_scc1 L_vq{idx}")
    version(0)
    A("L_qend:")
    A(f"s_add_u32 s{sI}, s{sI}, 16\ns_addk_i32 s{sH}, 0x2000")
    next_slot(1)
    if stamps and smode == 3:
        for q in range(2):
            A(f"s_cmp_lg_u32 s{sCNT}, {32*q+15}\ns_cbranch_scc1 L_np{q}")
            stamp(4 + 2 * q, 3)
            A(f"L_np{q}:")
    A(f"s_add_u32 s{sCNT}, s{sCNT}, 1\ns_cmp_lt_u32 s{sCNT}, 64\ns_cbranch_scc1 L_tile")
    def pub(val):
        A(f"v_max_i32 v26, {val}, v26\nds_write_b32 v7, v26 offset:{F_RDY}")
    lds_wait(F_DONE, sFL, 64 - NSLOT + 1, "freew", sleep=0, cached=True, pair=True)
    for r in (24, 16, 8):
        if wwo <= r:
            A(f"s_waitcnt vmcnt({r})"); pub(NV - r)
    for i in range(16):
        w, h = worder[i // 4], i % 4
        A(f"s_mov_b32 m0, {L_WO + 4096*w + 1024*h}\ns_add_u32 s{sT2}, s{sH+3}, {(128*h + 16*w)*1024}")
        A(f"s_waitcnt vmcnt({wwo-1})")
        d = i - wwo + 1
        if d % 8 == 0 or (d > 0 and d % 4 == 0):
            pub(NV + d)
            if d == 0:
                stamp(3)
        A(f"buffer_load_dwordx4 v6, {s4(rA)}, s{sT2} offen {wflags} lds")
    for rem in range((wwo - 1) // 4 * 4, -1, -4):
        if rem <= 16 or rem % 8 == 0:
            A(f"v_max_i32 v26, {NLD - rem}, v26\ns_waitcnt vmcnt({rem})\nds_write_b32 v7, v26 offset:{F_RDY}")
            if rem == 16:
                stamp(3)
    A("s_branch L_fin")

    for k in range(1, len(wins)):
        version(k)
        A("s_branch L_qend")
    A("L_pace:")
    if span is not None:
        A(f"s_cmp_lg_u32 s{sJJ}, 0\ns_cbranch_scc1 L_nosk")
        A(f"s_not_b32 s{sT0}, s{sST}\nv_mov_b32 v16, s{sT0}\ns_mov_b64 exec, 1\nbuffer_atomic_umax v16, v7, {s4(rB)}, 0 offen offset:64\ns_mov_b64 exec, -1")
        A("L_nosk:")
    A(f"s_mov_b32 s{sTW}, 0")
    tail_prep()
    make_tags()
    lds_flag(F_TG)
    sP, sPP, sS, sPGA, sOWN, sPAR = sH, sH + 1, sH + 2, sH + 3, sH + 4, sH + 5
    A(f"s_getreg_b32 s{sPAR}, hwreg(HW_REG_XCC_ID, 0, 1)\ns_cmp_eq_u32 s{sPAR}, 0")
    A(f"s_cselect_b32 s{sPAR}, {ebias}, 0\ns_add_u32 s{sPAR}, s{sPAR}, {(1 << (gs - 1)) + bias}")
    lds_wait(F_QH, sMODE, 1, "qhp", sleep=8)
    A(f"s_cmp_lg_u32 s{sMODE}, 2\ns_cbranch_scc1 L_late")
    A(f"v_lshlrev_b32 v5, 2, v1\ns_add_u32 s{sPGA}, s{sXB}, {X_PG}\ns_lshl2_add_u32 s{sOWN}, s{sJJ}, s{sPGA}")
    A(f"s_mov_b32 s{sP}, 0\ns_mov_b32 s{sCNT}, 0\ns_and_b32 s{sT3}, s{sTAG}, 0xfffff800")
    A("L_pl:")
    A(f"s_mov_b32 s{sPP}, s{sP}\nds_read_b32 v16, v7 offset:{F_RDY}\ns_waitcnt lgkmcnt(0)\nv_readfirstlane_b32 s{sP}, v16")
    A(f"s_add_u32 s{sCNT}, s{sCNT}, 1\ns_cmp_gt_u32 s{sCNT}, 0x10000\ns_cbranch_scc1 L_tail")
    A(f"v_or_b32 v16, s{sT3}, v16")
    A(f"s_mov_b64 exec, 1\nbuffer_store_dword v16, v7, {s4(rWS)}, s{sOWN} offen\ns_mov_b64 exec, -1")
    A(f"s_cmp_ge_u32 s{sP}, {NV - endstop}\ns_cbranch_scc1 L_tail")
    A(f"s_mov_b32 exec_hi, 0\nbuffer_load_dword v17, v5, {s4(rWS)}, s{sPGA} offen sc1\ns_waitcnt vmcnt(0)")
    A(f"v_xor_b32 v19, s{sT3}, v17\nv_cmp_lt_u32 vcc, 0x7ff, v19")
    for k in (8, 4, 2, 1):
        A(f"s_nop 1\nv_add_u32 v19, v19, v19 row_ror:{k}")
    A(f"s_cbranch_vccnz L_pnext")
    A(f"v_readlane_b32 s{sS}, v19, 0\nv_readlane_b32 s{sT0}, v19, 16")
    A(f"s_cmp_eq_u32 s{sPP}, 0\ns_cbranch_scc1 L_pnext")
    A(f"s_add_u32 s{sS}, s{sS}, s{sT0}\ns_add_u32 s{sT0}, s{sP}, s{sPP}\ns_lshl_b32 s{sT0}, s{sT0}, 4\ns_sub_u32 s{sT0}, s{sS}, s{sT0}")
    A(f"s_add_u32 s{sT0}, s{sT0}, s{sPAR}\ns_ashr_i32 s{sT0}, s{sT0}, {gs}\ns_max_i32 s{sT0}, s{sT0}, 0\ns_min_i32 s{sT0}, s{sT0}, {len(wins)-1}")
    A(f"v_mov_b32 v16, s{sT0}\nds_write_b32 v7, v16 offset:{F_WIN}")
    A("L_pnext:")
    A(f"s_mov_b64 exec, -1\ns_sleep {psleep}\ns_branch L_pl")

    A("L_notloader:")
    A(f"s_load_dword s{sTAG}, {s2(sWS)}, {WS_EPOCH}")
    A(f"s_mov_b32 s{sLIM}, 0x40000\ns_mov_b32 s{sMODE}, 1\ns_lshl_b32 s{sXB}, s{sX8}, 17")
    srd(rWS, sWS, hex(WS_SIZE))
    A(f"s_mov_b32 s{sTW}, s{sW}\ns_cmp_eq_u32 s{sW}, 4\ns_cbranch_scc1 L_pace")
    A(f"s_cmp_eq_u32 s{sW}, 3\ns_cbranch_scc1 L_help")
    A(f"s_sub_u32 s{sC}, s{sW}, 1")
    A(f"s_cmp_eq_u32 s{sW}, 2\ns_cbranch_scc1 L_w2")
    if etouch == 2:
        xtouch()
    make_tags()
    A("s_branch L_qwait")
    def slice_mv(sKS, lds_base, unit0, after_read=None):
        A(f"s_lshl_b32 s{sT2}, s{sKS}, 8\nv_lshl_add_u32 v5, v2, 5, s{sT2}")
        A(f"ds_read_b128 v[20:23], v5 offset:{L_XN}\nds_read_b128 v[24:27], v5 offset:{L_XN+16}")
        A(f"v_add_u32 v6, {lds_base}, v4")
        for half in range(2):
            lds_wait(F_RDY, sFL, 8 * (unit0 + half + 1), "wsl", sleep=1)
            for i in range(8):
                A(f"ds_read_b128 {v4(64+4*i)}, v6 offset:{8192*half + 1024*i}")
            lgkm(0)
            if half == 1:
                stamp(6, 2)
                if after_read:
                    after_read()
            matvec8(64, [f"v{20+4*half+k}" for k in range(4)], 32, 40, first=(half == 0))
        reduce8(32)
        A(f"v_lshrrev_b32 v6, 4, v1\nv_lshlrev_b32 v6, 6, v6\nv_lshrrev_b32 v5, 1, v3\nv_add_u32 v6, v6, v5")
    A("L_w2:")
    A(f"s_lshr_b32 s{sT3}, s2, 6")
    A("s_waitcnt vmcnt(0)")
    stamp(4, 2)
    ln_stats(16, 28, 29, 32)
    ln_apply(16, 28, 29, 32)
    A(f"ds_write_b128 v4, v[16:19] offset:{L_XN}")
    lds_flag(F_XN)
    stamp(5, 2)
    make_tags()
    slice_mv(sT3, L_P, 0)
    sXC = sH + 4
    A(f"s_getreg_b32 s{sXC}, hwreg(HW_REG_XCC_ID, 0, 4)")
    if force:
        A(f"s_and_b32 s{sXC}, s{sJJ}, 1")
    embed(34, 32, TX2); embed(35, 33, TX2 + 1)
    A(f"v_xor_b32 v32, s{sXC}, v34\nv_xor_b32 v33, s{sXC}, v35")
    A(f"s_add_u32 s{sH}, s{sXB}, {X_QX}\ns_lshl_b32 s{sT2}, s{sJJ}, 8\ns_add_u32 s{sT1}, s{sH}, s{sT2}")
    A("s_mov_b32 exec_lo, 0x00ff00ff\ns_mov_b32 exec_hi, 0x00ff00ff")
    A(f"buffer_store_dwordx2 v[32:33], v6, {s4(rWS)}, s{sT1} offen")
    A("s_mov_b64 exec, -1")
    stamp(1)
    for k in range(4):
        A(f"v_xor_b32 v{36+k}, s{sXC}, v{TX4+k}")
    A(f"s_add_u32 s{sH+1}, s{sH}, 4096\ns_mov_b32 s{sMODE}, 2")
    A(f"s_mov_b32 s{sSPIN}, 0")
    A("L_qpoll:")
    for i in range(8):
        A(f"buffer_load_dwordx4 {v4(64+4*i)}, v4, {s4(rWS)}, s{sH+i//4} offen offset:{1024*(i%4)} sc1")
    A("s_waitcnt vmcnt(0)")
    untag([(64 + i, f"v{36+i%4}") for i in range(32)])
    A("s_cbranch_vccz L_qok")
    A(f"s_sleep {qsleep}\ns_add_u32 s{sSPIN}, s{sSPIN}, 1\ns_cmp_lt_u32 s{sSPIN}, {qtry}\ns_cbranch_scc1 L_qpoll")
    A(f"s_cmp_lg_u32 s{sSPIN}, {qtry}\ns_cbranch_scc1 L_qflip")
    A(f"s_xor_b32 s{sT1}, s{sT1}, {X_QXFAR}")
    A("s_mov_b32 exec_lo, 0x00ff00ff\ns_mov_b32 exec_hi, 0x00ff00ff")
    A(f"buffer_store_dwordx2 v[34:35], v6, {s4(rWS)}, s{sT1} offen sc1")
    A("s_mov_b64 exec, -1")
    A("L_qflip:")
    A(f"s_xor_b32 s{sH}, s{sH}, {X_QXFAR}\ns_xor_b32 s{sH+1}, s{sH+1}, {X_QXFAR}\ns_xor_b32 s{sMODE}, s{sMODE}, 3")
    for k in range(4):
        A(f"v_xor_b32 v{36+k}, s{sXC}, v{36+k}")
    A(f"s_cmp_lt_u32 s{sSPIN}, s{sLIM}\ns_cbranch_scc1 L_qpoll")
    A("L_qok:")
    for e in range(8):
        A(f"v_add_f32 v{64+e}, v{64+e}, v{72+e}\nv_add_f32 v{80+e}, v{80+e}, v{88+e}")
    for e in range(8):
        A(f"v_add_f32 v{64+e}, v{64+e}, v{80+e}")
    for e in range(4):
        A(f"v_cvt_pk_bf16_f32 v{64+e}, v{64+2*e}, v{65+2*e}")
    A(f"v_lshrrev_b32 v6, 4, v1\nv_lshlrev_b32 v6, 7, v6\nv_and_b32 v5, 3, v1\nv_lshl_add_u32 v6, v5, 5, v6")
    A(f"v_and_b32 v5, 12, v1\nv_add_u32 v6, v6, v5")
    for e in range(4):
        A(f"ds_write_b32 v6, v{64+e} offset:{L_Q + 16*(e&1) + 512*(e>>1)}")
    lds_flag(F_QH, val=f"s{sMODE}")
    A("L_qwait:")
    vOWN, vOTH = 30, 31
    A(f"s_lshl_b32 s{sT2}, s{sC}, 2\nv_mov_b32 v{vOWN}, s{sT2}\nv_xor_b32 v{vOTH}, 4, v{vOWN}")
    vQV, vKT, vS, vT, vMAX, vAD, vKA, vPA, vDN = 32, 96, 160, 164, 172, 176, 184, 188, 189
    A("v_and_b32 v5, 3, v1\nv_lshlrev_b32 v5, 10, v5\nv_bfe_u32 v6, v1, 2, 2\nv_lshl_add_u32 v5, v6, 8, v5")
    A(f"v_lshrrev_b32 v6, 4, v1\nv_xor_b32 v6, v6, v1\nv_and_b32 v6, 15, v6\nv_lshl_add_u32 v{vKA}, v6, 4, v5")
    for n in range(1, 4):
        A(f"v_xor_b32 v{vKA+n}, {64*n}, v{vKA}")
    A(f"v_and_b32 v5, 3, v1\nv_lshlrev_b32 v5, 6, v5\nv_lshrrev_b32 v6, 4, v1\nv_lshl_add_u32 v5, v6, 4, v5")
    A(f"v_mov_b32 v29, v5")
    A(f"v_and_b32 v6, 8, v1\nv_lshl_add_u32 v5, v6, 5, v5\nv_and_b32 v6, 4, v1\nv_lshl_add_u32 v5, v6, 1, v5")
    A(f"s_lshl_b32 s{sT2}, s{sC}, 9\nv_add_u32 v{vPA}, s{sT2}, v5")
    A(f"v_mov_b32 v{vMAX}, {hex(f2u(-3e38))}")
    A(f"s_add_u32 s{sT2}, s{sC}, 2\nv_mov_b32 v{vDN}, s{sT2}")
    A("v_and_b32 v6, 3, v1\nv_lshlrev_b32 v6, 8, v6\nv_lshrrev_b32 v5, 4, v1\nv_lshl_add_u32 v6, v5, 4, v6")
    A(f"s_mov_b32 s{sFL}, 0")
    lds_wait(F_QH, sMODE, 1, "qh", sleep=1)
    stamp(2)
    for s in range(4):
        A(f"ds_read_b128 {v4(vKT+4*s)}, v6 offset:{L_Q + 64*s}")
    lgkm(0)
    for b in range(4):
        A(f"s_mov_b32 vcc_lo, {hex(0x000f000f << (4*b))}\ns_mov_b32 vcc_hi, {hex(0x000f000f << (4*b))}")
        for i in range(16):
            A(f"v_cndmask_b32 v{vQV+16*b+i}, 0, v{vKT+i}, vcc")
    A(f"s_lshl_b32 s{sLB}, s{sC}, 14\ns_lshl_b32 s{sTHR}, s{sC}, 4\ns_add_u32 s{sTHR}, s{sTHR}, {8*(U0+2)}")
    A(f"s_mov_b32 s{sCNT}, 0")
    A("L_p1:")
    for n in range(4):
        A(f"v_add_u32 v{vAD+n}, s{sLB}, v{vKA+n}")
    lds_wait(F_RDY, sFL, f"s{sTHR}", "krdy", sleep=csleep, cached=True)
    for b in range(4):
        for n in range(4):
            A(f"ds_read_b128 {v4(vKT+16*b+4*n)}, v{vAD+n} offset:{L_RING + 4096*b}")
    for b in range(4):
        lgkm(12 - 4 * b)
        if b == 3:
            A(f"ds_write_b32 v{vOWN}, v{vDN} offset:{F_DONE}")
        for n in range(4):
            c = "0" if b + n == 0 else v4(vS)
            A(f"v_mfma_f32_16x16x32_bf16 {v4(vS)}, {v4(vKT+16*b+4*n)}, {v4(vQV+16*b+4*n)}, {c}")
    A(f"v_add_u32 v{vDN}, 2, v{vDN}\nv_min_u32 v{vDN}, 32, v{vDN}")
    next_slot(2)
    A(f"s_add_u32 s{sTHR}, s{sTHR}, 32\ns_add_u32 s{sCNT}, s{sCNT}, 1\ns_nop 3")
    A(f"v_cvt_pk_bf16_f32 v{vT}, v{vS}, v{vS+1}\nv_cvt_pk_bf16_f32 v{vT+1}, v{vS+2}, v{vS+3}")
    A(f"v_max3_f32 v{vMAX}, v{vMAX}, v{vS}, v{vS+1}\nv_max3_f32 v{vMAX}, v{vMAX}, v{vS+2}, v{vS+3}")
    for j in range(2):
        A(f"v_lshlrev_b32 v{vT+2+2*j}, 16, v{vT+j}\nv_and_b32 v{vT+3+2*j}, s{sHI}, v{vT+j}")
    for i in range(4):
        A(f"v_mul_f32 v{vT+2+i}, s{sSCALE}, v{vT+2+i}")
    A(f"v_cvt_pk_bf16_f32 v{vT}, v{vT+2}, v{vT+3}\nv_cvt_pk_bf16_f32 v{vT+1}, v{vT+4}, v{vT+5}")
    A(f"ds_write_b64 v{vPA}, {v2(vT)} offset:{L_P}\nv_add_u32 v{vPA}, 1024, v{vPA}")
    A(f"s_cmp_lt_u32 s{sCNT}, 16\ns_cbranch_scc1 L_p1")
    stamp(4, 1)
    wave_red(vMAX, vX0, "v_max_f32", (8, 4))
    A(f"v_and_b32 v5, 3, v1\nv_lshlrev_b32 v5, 2, v5\nv_lshl_add_u32 v6, v{vOWN}, 2, v5\nv_xor_b32 v5, 16, v6")
    A(f"ds_write_b32 v6, v{vMAX} offset:{L_MX}")
    lds_flag(F_MX, vaddr=vOWN)
    A(f"v_subrev_u32 v{vPA}, 16384, v{vPA}")
    lds_wait(F_MX, sT0, 1, "mx", sleep=0, vaddr=vOTH)
    A(f"ds_read_b32 v{vX1}, v5 offset:{L_MX}")
    for i in range(16):
        A(f"ds_read_b64 {v2(32+2*i)}, v{vPA} offset:{L_P + 1024*i}")
    lgkm(0)
    vMN, vLSUM = 173, 174
    A(f"v_max_f32 v{vMAX}, v{vMAX}, v{vX1}")
    rnd_bf16(vMAX)
    A(f"v_mul_f32 v{vMAX}, s{sSCALE}, v{vMAX}")
    rnd_bf16(vMAX)
    A(f"v_mul_f32 v{vMN}, s{sLOG2E}, v{vMAX}\nv_mov_b32 v{vLSUM}, 0")
    for i in range(0, 16, 2):
        E = 96
        for j in range(4):
            A(f"v_lshlrev_b32 v{E+2*j}, 16, v{32+2*i+j}\nv_and_b32 v{E+2*j+1}, s{sHI}, v{32+2*i+j}")
        for j in range(8):
            A(f"v_fma_f32 v{E+j}, v{E+j}, s{sLOG2E}, -v{vMN}")
        for j in range(8):
            A(f"v_exp_f32 v{E+j}, v{E+j}")
        A("s_nop 0")
        for j in range(4):
            A(f"v_cvt_pk_bf16_f32 v{32+2*i+j}, v{E+2*j}, v{E+2*j+1}")
        A(f"ds_write_b64 v{vPA}, {v2(32+2*i)} offset:{L_P + 1024*i}\nds_write_b64 v{vPA}, {v2(34+2*i)} offset:{L_P + 1024*(i+1)}")
        for j in range(4):
            A(f"v_add_f32 v{E+j}, v{E+j}, v{E+4+j}")
        A(f"v_add_f32 v{E}, v{E}, v{E+1}\nv_add_f32 v{E+2}, v{E+2}, v{E+3}\nv_add_f32 v{vLSUM}, v{vLSUM}, v{E}\nv_add_f32 v{vLSUM}, v{vLSUM}, v{E+2}")
    wave_red(vLSUM, vX0, "v_add_f32", (8, 4))
    A(f"v_lshlrev_b32 v6, 1, v6\nv_mov_b32 v{vLSUM+1}, v{vMN}\nds_write_b64 v6, {v2(vLSUM)} offset:{L_LS}")
    lds_flag(F_PD, vaddr=vOWN)
    vO, vVF, vPF, vVA = 32, 48, 80, 184
    A("v_and_b32 v5, 12, v1\nv_lshrrev_b32 v6, 4, v1\nv_add_u32 v6, v6, v5\nv_lshlrev_b32 v6, 8, v6")
    A(f"v_lshrrev_b32 v{vX1}, 3, v1\nv_and_b32 v{vX1}, 2, v{vX1}\nv_or_b32 v5, v5, v{vX1}")
    A(f"v_bfe_u32 v{vX1}, v1, 1, 1\nv_xor_b32 v5, v5, v{vX1}\ns_lshl_b32 s{sT2}, s{sC}, 3\nv_xor_b32 v5, s{sT2}, v5")
    A(f"v_lshl_add_u32 v6, v5, 4, v6\nv_and_b32 v5, 1, v1\nv_lshl_add_u32 v{vVA}, v5, 3, v6")
    for n in range(1, 4):
        A(f"v_xor_b32 v{vVA+n}, {32*n}, v{vVA}")
    for i in range(4):
        A(f"v_mov_b32 v{vO+i}, 0")
    for i in range(32):
        A(f"v_mov_b32 v{vPF+i}, 0")
    for T in range(4):
        A(f"s_mov_b32 s{sPM+2*T}, {hex(0x000f000f << (4*T))}\ns_mov_b32 s{sPM+2*T+1}, s{sPM+2*T}")
    A(f"v_mov_b32 v{vDN}, 33\nv_mov_b32 v{vPA}, v29")
    A(f"s_mov_b32 s{sLB}, {(32 % NSLOT) * 16384}\ns_mov_b32 s{sTHR}, {8*(U0+64+1)}\ns_mov_b32 s{sCNT}, 0")
    tail_prep()
    A(f"v_lshrrev_b32 v6, 2, v1\nv_lshlrev_b32 v6, 11, v6\nv_and_b32 v5, 3, v1\nv_lshl_add_u32 v{vO1}, v5, 4, v6")
    A(f"s_lshl_b32 s{sT2}, s{sC}, 15\ns_add_u32 s{sT1}, s{sXB}, s{sT2}\ns_lshl_b32 s{sT2}, s{sJJ}, 6\ns_add_u32 s{sT1}, s{sT1}, s{sT2}")
    lds_wait(F_PD, sT0, 1, "pd", sleep=0, vaddr=vOTH)
    stamp(5, 1)
    A("; ======== pass 2: P V")
    vSC = 28
    A("L_p2:")
    for n in range(4):
        A(f"v_add_u32 v{vAD+n}, s{sLB}, v{vVA+n}")
    A(f"s_cmp_lg_u32 s{sCNT}, {prept}\ns_cbranch_scc1 L_nosc")
    lds_wait(F_SC, sT0, 1, "sc", sleep=1)
    A(f"v_and_b32 v5, 3, v1\nv_lshlrev_b32 v5, 2, v5\nds_read_b32 v{vSC}, v5 offset:{L_SC}")
    A("L_nosc:")
    for T in range(4):
        A(f"s_mov_b64 exec, {s2(sPM+2*T)}")
        for ks in range(2):
            A(f"ds_read_b128 {v4(vPF+16*ks+4*T)}, v{vPA} offset:{L_P + 256*ks}")
    A("s_mov_b64 exec, -1")
    for ks in range(2):
        lds_wait(F_RDY, sFL, f"s{sTHR}", "vrdy", sleep=csleep, cached=True)
        for T in range(4):
            for ih in range(2):
                A(f"ds_read_b64_tr_b16 {v2(vVF+16*ks+4*T+2*ih)}, v{vAD+T} offset:{L_RING + 8192*ks + 4096*ih}")
        A(f"s_add_u32 s{sTHR}, s{sTHR}, 8")
        if ks == 1:
            next_slot(1)
            A(f"s_add_u32 s{sCNT}, s{sCNT}, 1\nv_add_u32 v{vPA}, 512, v{vPA}")
        for T in range(4):
            lgkm(6 - 2 * T)
            A(f"v_mfma_f32_16x16x32_bf16 {v4(vO)}, {v4(vVF+16*ks+4*T)}, {v4(vPF+16*ks+4*T)}, {v4(vO)}")
    A(f"ds_write_b32 v{vOWN}, v{vDN} offset:{F_DONE}\nv_add_u32 v{vDN}, 1, v{vDN}")
    A(f"s_cmp_lt_u32 s{sCNT}, 32\ns_cbranch_scc1 L_p2")
    stamp(3)
    A(f"s_cmp_eq_u32 s{sMODE}, 2\ns_nop 2")
    for r in range(4):
        A(f"v_mul_f32 v{vO+r}, v{vO+r}, v{vSC}")
    for r in range(4):
        embed(vO + r, vO + r, TX4 + r)
    A(f"s_cbranch_scc0 L_h1far\nbuffer_store_dwordx4 {v4(vO)}, v{vO1}, {s4(rWS)}, s{sT1} offen\ns_branch L_tail")
    A(f"L_h1far:\nbuffer_store_dwordx4 {v4(vO)}, v{vO1}, {s4(rWS)}, s{sT1} offen sc1\ns_branch L_tail")

    A("L_help:")
    srd(rA, sX, 1024)
    vG, vXP = 56, 58
    A(f"s_cmp_ge_i32 s{sF}, 0\ns_cbranch_scc1 L_h3f")
    A(f"s_and_b32 s{sT3}, s{sSUB}, 3")
    make_tags()
    lds_wait(F_XN, sT0, 1, "xn", sleep=2)
    slice_mv(sT3, L_GU, 2, after_read=lambda: lds_flag(F_GUP))
    embed(32, 32, TX2); embed(33, 33, TX2 + 1)
    lds_wait(F_QH, sMODE, 1, "qh3", sleep=4)
    A(f"s_lshl_b32 s{sT1}, s{sJJ}, 8\ns_add_u32 s{sT1}, s{sT1}, s{sXB}\ns_add_u32 s{sT1}, s{sT1}, {X_G1}\ns_and_b32 s{sT0}, s{sT1}, {hex(0xfffff800)}")
    if skip & 4: A("s_branch L_hstat")
    A("s_mov_b32 exec_lo, 0x00ff00ff\ns_mov_b32 exec_hi, 0x00ff00ff")
    store2(f"buffer_store_dwordx2 v[32:33], v6, {s4(rWS)}, s{sT1} offen", f"s_cmp_eq_u32 s{sMODE}, 2")
    A("s_mov_b64 exec, -1")
    stamp(1)
    lds_wait(F_RDY, sFL, 8 * g2gate, "g2gate", sleep=16)
    for i in range(8):
        A(f"ds_read_b128 {v4(64+4*i)}, v4 offset:{L_WD + 1024*i}")
    poll([f"buffer_load_dwordx4 {v4(32+4*i)}, v4, {s4(rWS)}, s{sT0} offen offset:{1024*i} sc1" for i in range(2)],
         chk4([32, 36]), "g1poll", sleep=32)
    for e in range(8):
        swap_red(32 + e, vX0, "v_add_f32")
        rnd_bf16(32 + e)
    for e in range(4):
        sigmoid(32 + e, 32 + e)
        rnd_bf16(32 + e)
        A(f"v_mul_f32 v{32+e}, v{32+e}, v{36+e}")
    A("v_cvt_pk_bf16_f32 v32, v32, v33\nv_cvt_pk_bf16_f32 v33, v34, v35")
    A("v_and_b32 v5, 3, v1\nv_lshlrev_b32 v5, 5, v5\nv_and_b32 v6, 12, v1\nv_add_u32 v5, v5, v6\nv_lshlrev_b32 v6, 4, v2")
    A(f"ds_write_b32 v5, v32 offset:{L_HB}\nds_write_b32 v5, v33 offset:{L_HB+16}\nds_read_b128 v[20:23], v6 offset:{L_HB}")
    lgkm(0)
    matvec8(64, [f"v{20+k}" for k in range(4)], 32, 40)
    reduce8(32)
    A(f"v_lshrrev_b32 v6, 4, v1\nv_lshlrev_b32 v6, 3, v6\nv_lshl_add_u32 v6, v3, 1, v6\nv_lshlrev_b32 v5, 2, v1")
    A(f"ds_write_b64 v6, v[32:33] offset:{L_HB}\nds_read_b32 v32, v5 offset:{L_HB}")
    A(f"v_and_b32 v5, 7, v1\nv_lshlrev_b32 v5, 2, v5\nv_lshrrev_b32 v33, v5, s{sTAG}\nv_and_b32 v33, 15, v33")
    A(f"v_lshrrev_b32 v6, 4, v1\nv_lshlrev_b32 v6, 11, v6\nv_and_b32 v5, 15, v1\nv_lshl_add_u32 v6, v5, 2, v6")
    A(f"s_lshl_b32 s{sT1}, s{sSUB}, 13\ns_lshl_b32 s{sT2}, s{sCB}, 6\ns_add_u32 s{sT1}, s{sT1}, s{sT2}\ns_add_u32 s{sT1}, s{sT1}, {WS_GL}")
    lgkm(0)
    embed(32, 32, 33)
    if not skip & 1:
        A(f"buffer_store_dword v32, v6, {s4(rWS)}, s{sT1} offen sc1")
    A("s_branch L_hstat")
    A("L_h3f:")
    A(f"v_and_b32 v6, 3, v1\nv_lshlrev_b32 v6, 3, v6\nv_lshrrev_b32 v5, 5, v1\nv_lshl_add_u32 v6, v5, 2, v6\ns_lshl_b32 s{sT1}, s{sF}, 5")
    A(f"buffer_load_dword v{vXP}, v6, {s4(rA)}, s{sT1} offen")
    make_tags()
    lds_flag(F_GUP)
    if skip & 2: A("s_branch L_hstat")
    lds_wait(F_RDY, sFL, 8 * g3gate, "g3gate", sleep=16)
    A(f"s_lshl_b32 s{sH}, s{sF}, 11\ns_add_u32 s{sH}, s{sH}, {WS_GL}")
    A(f"v_min_u32 v6, 47, v1\nv_and_b32 v6, 60, v6\nv_and_b32 v5, 3, v1\nv_or_b32 v6, v6, v5\nv_lshlrev_b32 v6, 4, v6")
    poll([f"buffer_load_dwordx4 v[64:67], v4, {s4(rWS)}, s{sH} offen sc1",
          f"buffer_load_dwordx4 v[68:71], v6, {s4(rWS)}, s{sH} offen offset:1024 sc1"], chk4([64, 68]), "gpoll", sleep=64)
    A("s_mov_b32 exec_hi, 0xffff")
    for e in range(4):
        A(f"v_add_f32 v{64+e}, v{64+e}, v{68+e}")
    A("s_mov_b64 exec, -1")
    red4(64)
    for e in range(2):
        rnd_bf16(64 + e)
        sigmoid(68, 64 + e)
        A(f"v_mul_f32 v{vG+e}, v{64+e}, v68")
        rnd_bf16(vG + e)
    A("L_hstat:")
    stamp(2)
    lds_wait(F_PD, sT0, 1, "pdh", sleep=16, pair=True)
    lds_wait(F_TG, sT0, 1, "tg", sleep=4)
    lds_wait(F_QH, sMODE, 1, "qh4", sleep=4)
    A(f"v_and_b32 v5, 3, v1\nv_lshlrev_b32 v5, 3, v5")
    A(f"ds_read_b64 v[32:33], v5 offset:{L_LS}\nds_read_b32 v34, v5 offset:{L_LS+32}")
    lgkm(0)
    A(f"v_add_f32 v32, v32, v34\nv_log_f32 v32, v32\nv_mov_b32 v35, s{sTAG}\nv_add_f32 v34, v32, v33")
    A(f"s_add_u32 s{sT0}, s{sXB}, {X_LS}\ns_lshl_b32 s{sT1}, s{sJJ}, 5\ns_add_u32 s{sT1}, s{sT1}, s{sT0}")
    A("s_mov_b64 exec, 15")
    store2(f"buffer_store_dwordx2 v[34:35], v5, {s4(rWS)}, s{sT1} offen", f"s_cmp_eq_u32 s{sMODE}, 2")
    A("s_mov_b64 exec, -1")
    lds_wait(F_RDY, sFL, 8 * lsgate, "lsgate", sleep=16)
    A(f"v_lshlrev_b32 v6, 3, v1")
    poll([f"buffer_load_dwordx2 {v2(36+2*i)}, v6, {s4(rWS)}, s{sT0} offen offset:{512*i} sc1" for i in range(2)],
         [(37, f"s{sTAG}"), (39, f"s{sTAG}")], "lspoll", sleep=16, full=True)
    A("v_max_f32 v40, v36, v38")
    wave_red(40, vX0, "v_max_f32", (8, 4))
    A("v_sub_f32 v36, v36, v40\nv_sub_f32 v38, v38, v40\nv_exp_f32 v36, v36\nv_exp_f32 v38, v38\nv_sub_f32 v33, v33, v40\nv_add_f32 v36, v36, v38")
    wave_red(36, vX0, "v_add_f32", (8, 4))
    A("v_exp_f32 v33, v33\nv_rcp_f32 v36, v36\nv_lshrrev_b32 v5, 1, v5\nv_mul_f32 v33, v33, v36")
    A(f"ds_write_b32 v5, v33 offset:{L_SC}")
    lds_flag(F_SC)
    stamp(3)
    tail_prep()
    A("L_late:")
    lds_wait(F_RDY, sFL, NV - 32, "late", sleep=4)

    A("; ======== tail")
    A("L_tail:")
    stamp(4, 0)
    lds_wait(F_RDY, sFL, f"s{sWT}", "wordy", sleep=0)
    for n in range(16):
        A(f"ds_read_b32 v{vWT+n}, v{vWA} offset:{L_WO + 256*n}")
    def wo_pairs():
        lgkm(0)
        for u in range(8):
            A(f"v_perm_b32 v{vWO+2*u}, v{vWT+1+2*u}, v{vWT+2*u}, s{sSELL}\nv_perm_b32 v{vWO+1+2*u}, v{vWT+1+2*u}, v{vWT+2*u}, s{sSELH}")
    poll([f"buffer_load_dwordx4 {v4(40+4*i)}, v4, {s4(rWS)}, s{sI1} offen offset:{1024*i} sc1" for i in range(2)],
         chk4([40, 44]), "h1poll", sleep=h1sleep, mid=wo_pairs)
    stamp(5, 0)
    padd(40, 40, 44, 4)
    red4(40)
    A(f"v_cvt_pk_bf16_f32 v40, v40, v41\ns_nop 0")
    for u in range(8):
        A(f"v_readlane_b32 s{sH+u}, v40, {32*(u&1) + (u>>1)}")
    for u in range(8):
        for z in range(2):
            c = "0" if u == 0 else f"v{48+z}"
            A(f"v_dot2_f32_bf16 v{48+z}, s{sH+u}, v{vWO+2*u+z}, {c}")
    A(f"s_cmp_lg_u32 s{sTW}, 3\ns_nop 1")
    A(f"ds_write_b64 v{vRW}, v[48:49] offset:{L_RED}")
    A("s_waitcnt lgkmcnt(0)\ns_barrier\ns_cbranch_scc1 L_fin")
    for p in range(3):
        A(f"ds_read_b64 {v2(42+2*p)}, v{vRR} offset:{L_RED + 512*p}")
    lgkm(0)
    padd(48, 48, 42, 2); padd(44, 44, 46, 2); padd(48, 48, 44, 2)
    embed(48, 48, TX2); embed(49, 49, TX2 + 1)
    A(f"buffer_store_dwordx2 v[48:49], v{vO2}, {s4(rWS)}, s{sO2} offen sc1")
    A(f"s_cmp_lt_i32 s{sF}, 0\ns_cbranch_scc1 L_fin")
    A(f"s_mov_b32 s{sT0}, s{sF}")
    A(f"s_lshr_b32 s{sT1}, s{sT0}, 1\ns_lshl_b32 s{sT1}, s{sT1}, 13\ns_and_b32 s{sT2}, s{sT0}, 1\ns_lshl_b32 s{sT2}, s{sT2}, 6\ns_add_u32 s{sT1}, s{sT1}, s{sT2}")
    A(f"s_add_u32 s{sT1}, s{sT1}, {WS_H2}\ns_add_u32 s{sT2}, s{sT1}, 4096\ns_lshl_b32 s{sT3}, s{sT0}, 5")
    A(f"v_lshrrev_b32 v55, 2, v1\nv_lshlrev_b32 v55, 7, v55\nv_and_b32 v5, 3, v1\nv_lshl_add_u32 v55, v5, 4, v55")
    A(f"v_lshlrev_b32 v5, 1, v5\nv_lshrrev_b32 v6, 5, v1\nv_add_u32 v5, v5, v6\nv_lshlrev_b32 v52, 2, v5")
    A(f"v_lshlrev_b32 v50, 16, v{vXP}\nv_and_b32 v51, s{sHI}, v{vXP}")
    srd(rA, sOUT, 1024)
    A("s_waitcnt vmcnt(0)")
    poll([f"buffer_load_dwordx4 {v4(64+4*i)}, v55, {s4(rWS)}, s{sT1+i//2} offen offset:{2048*(i%2)} sc1" for i in range(4)],
         chk4([64, 68, 72, 76]), "h2poll", sleep=h2sleep)
    stamp(6, 0)
    padd(64, 64, 72, 8)
    padd(64, 64, 68, 4)
    red4(64)
    A(f"v_cvt_pk_bf16_f32 v64, v64, v65\nv_and_b32 v65, s{sHI}, v64\nv_lshlrev_b32 v64, 16, v64")
    A(f"v_mul_f32 v64, v64, v{vG}\nv_mul_f32 v65, v65, v{vG+1}")
    A(f"v_cvt_pk_bf16_f32 v64, v64, v65\nv_and_b32 v65, s{sHI}, v64\nv_lshlrev_b32 v64, 16, v64")
    A("v_add_f32 v64, v64, v50\nv_add_f32 v65, v65, v51\nv_cvt_pk_bf16_f32 v64, v64, v65")
    A("s_mov_b32 exec_lo, 15\ns_mov_b32 exec_hi, 15")
    A(f"buffer_store_dword v64, v52, {s4(rA)}, s{sT3} offen")
    A(f"s_cmp_lg_u32 s{sT0}, 0\ns_cbranch_scc1 L_fin")
    A(f"s_mov_b64 exec, 1\nv_mov_b32 v65, s{sTAG}\ns_mov_b32 s{sT1}, {WS_EPOCH}")
    A(f"buffer_store_dword v65, v7, {s4(rWS)}, s{sT1} offen")
    A("L_fin:")
    if stamps:
        A("s_mov_b64 exec, -1")
        A("s_waitcnt vmcnt(0)")
        stamp(7)
        A("s_waitcnt lgkmcnt(0)")
        if span is not None:
            A(f"s_cmp_lg_u32 s{sW}, {span[0]}\ns_cbranch_scc1 L_skout")
            if len(span) > 2:
                A(f"s_cmp_lg_u32 s{sX8}, {span[2]}\ns_cbranch_scc1 L_skout")
            srd(rB, 44, 256)
            A(f"buffer_load_dword v16, v7, {s4(rB)}, 0 offen offset:64 sc1\ns_waitcnt vmcnt(0)\nv_readfirstlane_b32 s{sT2}, v16\ns_nop 3")
            A(f"s_not_b32 s{sT0}, s{sT2}\ns_sub_u32 s{sT2}, s{sST+2*span[1]}, s{sT0}\ns_sub_u32 s{sT2}, s{sT2}, 3000\ns_mul_i32 s{sT2}, s{sT2}, 10\ns_min_u32 s{sT2}, s{sT2}, 100000")
            A(f"s_add_u32 s{sT2}, s{sT2}, s{sT0}\ns_add_u32 s{sT2}, s{sT2}, 10000")
            A("L_skpad:")
            A(f"s_memrealtime {s2(sH)}\ns_waitcnt lgkmcnt(0)\ns_sub_u32 s{sT3}, s{sH}, s{sT2}\ns_cmp_lt_i32 s{sT3}, 0\ns_cbranch_scc1 L_skpad")
            A("L_skout:")
        for i in range(8):
            A(f"v_mov_b32 v{96+i}, s{sST+2*i}")
        A(f"s_mul_i32 s{sT1}, s2, 5\ns_add_u32 s{sT1}, s{sT1}, s{sW}\ns_lshl_b32 s{sT1}, s{sT1}, 5\ns_add_u32 s{sT1}, s{sT1}, {WS_STAMP}")
        A("s_mov_b64 exec, 1")
        A(f"buffer_store_dwordx4 v[96:99], v7, {s4(rWS)}, s{sT1} offen")
        A(f"buffer_store_dwordx4 v[100:103], v7, {s4(rWS)}, s{sT1} offen offset:16")
    A("L_end:")
    A("s_endpgm")

    out = HEADER
    out += f"; @launch grid=(256,1,1) block=(320,1,1) lds={LDS_BYTES}\n"
    out += DOC
    out += '.amdgcn_target "amdgcn-amd-amdhsa--gfx950"\n.text\n'
    out += f".globl {KNAME}_kernel\n.p2align 8\n.type {KNAME}_kernel,@function\n"
    out += "\n".join(A.L) + "\n"
    out += f""".section .rodata,"a"
.p2align 6
.amdhsa_kernel {KNAME}_kernel
  .amdhsa_next_free_vgpr 216
  .amdhsa_next_free_sgpr 102
  .amdhsa_accum_offset 216
  .amdhsa_group_segment_fixed_size 0
  .amdhsa_kernarg_size 96
  .amdhsa_user_sgpr_count 2
  .amdhsa_user_sgpr_kernarg_segment_ptr 1
  .amdhsa_system_sgpr_workgroup_id_x 1
.end_amdhsa_kernel
"""
    return out


if __name__ == "__main__":
    kw = json.loads(sys.argv[2]) if len(sys.argv) > 2 else {}
    open(sys.argv[1], "w").write(gen(**kw))
```

```python
import sys, json, struct

KNAME = "recurrent_scan__gqa_block_cached__glu_gated_glu__decode"
HEADER = open("cdna_kernels/" + KNAME + ".s.ref").read().split("; Override launch")[0]

def f2u(x):
    return struct.unpack("<I", struct.pack("<f", x))[0]

LOG2E = 1.4426950408889634
X_H1 = 0x0
X_QX = 0x10000
X_G1 = 0x12000
X_LS = 0x14000
X_PG = 0x14400
X_LINES = 21
X_H2 = 0x15000
X_QXFAR = 0xC000
WS_EPOCH = 0x1F000
WS_GL = 0x100000
WS_STAMP = 0x1000000
WS_SIZE = 0x20000000
L_Q = 0
L_FLAG = 1024
F_RDY = L_FLAG
F_GUP = L_FLAG + 4
F_DONE = L_FLAG + 8
F_QH = L_FLAG + 16
F_XN = L_FLAG + 20
F_MX = L_FLAG + 24
F_PD = L_FLAG + 32
F_SC = L_FLAG + 40
F_WIN = L_FLAG + 44
F_TG = L_FLAG + 48
L_MX = 1152
L_LS = 1216
L_SC = 1280
L_HB = 1536
L_RED = 2048
L_XN = L_RED
L_P = 4096
L_WD = 20480
L_RING = 28672
NSLOT = 8
L_WO = L_RING
LDS_BYTES = L_RING + NSLOT * 16384
U0 = 5

sXB = 0
sFL = 3
sMODE, sLIM, sI1, sO2 = 14, 15, 24, 25
sWT = 20
sGL = 83
sTW = 82
sPM = 48
sX, sK, sV, sWQ, sWO, sBX, sWG, sWU, sWD, sOUT, sDBG, sWS = 4, 6, 8, 10, 12, 14, 16, 18, 20, 22, 24, 26
rK, rV, rWS, rA, rB, rC, rD = 28, 32, 36, 40, 44, 48, 52
sW, sX8, sJJ, sCB, sSUB = 56, 57, 58, 59, 60
sC, sTHR, sCNT, sTAG = 61, 62, 63, 64
sSELL, sSELH, sSCALE, sLOG2E, sHI = 65, 66, 67, 68, 69
sT0, sT1, sT2, sT3 = 70, 71, 72, 73
sH = 74
sSPIN = 84
sLB = 85
sST = 86
TX4 = 8; TX2 = 12; vX0 = 14; vX1 = 15
vWO, vWT, vRW, vRR, vO2, vO1, vWA = 192, 128, 208, 209, 210, 211, 212
vI2, vOA = 214, 215
sI2 = 28


class G:
    def __init__(self):
        self.L = []
        self.n = 0
    def __call__(self, s):
        for line in s.strip("\n").split("\n"):
            self.L.append("    " + line.strip() if not line.strip().endswith(":") else line.strip())
    def label(self, base):
        self.n += 1
        return f"L_{base}_{self.n}"


def v4(r):
    return f"v[{r}:{r+3}]"
def v2(r):
    return f"v[{r}:{r+1}]"
def s4(r):
    return f"s[{r}:{r+3}]"
def s2(r):
    return f"s[{r}:{r+1}]"


def gen(win=20, wins=(20, 21, 22, 24, 27), bias=64, ebias=224, gs=8, endstop=48, psleep=8, wwo=20, worder=(1, 2, 0, 3),
        nb=(4, 4, 4, 4, 3, 3, 3, 3), xb=None, tdel=0, tpre=0, g2gate=24, g3gate=48, lsgate=100, prept=30, qsleep=4, qtry=96, unq=2,
        etouch=1, pgate=12, wthr=0, stamps=False, smode=0, span=None, skip=0, force=0):
    A = G()
    kvflags = wflags = "nt"
    csleep = h1sleep = h2sleep = 0
    if span is not None:
        stamps = True; smode = 9

    def srd(r, base, size):
        A(f"s_mov_b32 s{r}, s{base}\ns_mov_b32 s{r+1}, s{base+1}\ns_mov_b32 s{r+2}, {size}\ns_mov_b32 s{r+3}, 0x20000")

    def stamp(i, mode=None):
        if stamps and (mode is None or mode == smode):
            A(f"s_memrealtime {s2(sST + 2 * i)}")

    def lgkm(n):
        A(f"s_waitcnt lgkmcnt({n})")

    def swap_red(r, t, op, kinds=("16", "32")):
        for k in kinds:
            A(f"v_mov_b32 v{t}, v{r}\ns_nop 1\nv_permlane{k}_swap_b32 v{r}, v{t}\ns_nop 1\n{op} v{r}, v{r}, v{t}")

    def wave_red(r, t, op, rors):
        for k in rors:
            A(f"s_nop 1\n{op} v{r}, v{r}, v{r} row_ror:{k}")
        swap_red(r, t, op)

    def rnd_bf16(r):
        A(f"v_cvt_pk_bf16_f32 v{r}, v{r}, v{r}\nv_and_b32 v{r}, 0xffff0000, v{r}")

    def ln_stats(X, mean, rstd, F):
        D = F + 8
        for k in range(4):
            A(f"v_lshlrev_b32 v{F+2*k}, 16, v{X+k}\nv_and_b32 v{F+2*k+1}, s{sHI}, v{X+k}")
        A(f"v_add_f32 v{mean}, v{F}, v{F+1}")
        for k in range(2, 8):
            A(f"v_add_f32 v{mean}, v{mean}, v{F+k}")
        wave_red(mean, vX0, "v_add_f32", (8, 4, 2, 1))
        A(f"v_mul_f32 v{mean}, {hex(f2u(1/512))}, v{mean}")
        for k in range(8):
            A(f"v_sub_f32 v{D+k}, v{F+k}, v{mean}")
        A(f"v_mul_f32 v{rstd}, v{D}, v{D}")
        for k in range(1, 8):
            A(f"v_fmac_f32 v{rstd}, v{D+k}, v{D+k}")
        wave_red(rstd, vX0, "v_add_f32", (8, 4, 2, 1))
        A(f"v_mul_f32 v{rstd}, {hex(f2u(1/512))}, v{rstd}")
        rnd_bf16(mean); rnd_bf16(rstd)
        A(f"v_add_f32 v{rstd}, {hex(f2u(1e-5))}, v{rstd}")
        rnd_bf16(rstd)
        A(f"v_sqrt_f32 v{rstd}, v{rstd}\ns_nop 0")
        rnd_bf16(rstd)
        A(f"v_rcp_f32 v{rstd}, v{rstd}")

    def ln_apply(X, mean, rstd, D):
        for k in range(4):
            A(f"v_lshlrev_b32 v{D+2*k}, 16, v{X+k}\nv_and_b32 v{D+2*k+1}, s{sHI}, v{X+k}")
        for k in range(8):
            A(f"v_sub_f32 v{D+k}, v{D+k}, v{mean}")
        for k in range(4):
            A(f"v_cvt_pk_bf16_f32 v{X+k}, v{D+2*k}, v{D+2*k+1}")
        for k in range(4):
            A(f"v_lshlrev_b32 v{D+2*k}, 16, v{X+k}\nv_and_b32 v{D+2*k+1}, s{sHI}, v{X+k}")
        for k in range(8):
            A(f"v_mul_f32 v{D+k}, v{D+k}, v{rstd}")
        for k in range(4):
            A(f"v_cvt_pk_bf16_f32 v{X+k}, v{D+2*k}, v{D+2*k+1}")

    def matvec8(W, xs, acc, tmp, first=True):
        for j in range(4):
            for u in range(4):
                A(f"v_perm_b32 v{tmp+2*u}, v{W+(2*j+1)*4+u}, v{W+(2*j)*4+u}, s{sSELL}")
                A(f"v_perm_b32 v{tmp+2*u+1}, v{W+(2*j+1)*4+u}, v{W+(2*j)*4+u}, s{sSELH}")
            for e in range(8):
                c = "0" if (j == 0 and first) else f"v{acc+e}"
                A(f"v_dot2_f32_bf16 v{acc+e}, {xs[j]}, v{tmp+e}, {c}")
        A("s_nop 2")

    def reduce8(acc):
        A("s_nop 1")
        for e in range(4):
            A(f"v_permlane32_swap_b32 v{acc+e}, v{acc+4+e}")
        A("s_nop 1")
        for e in range(4):
            A(f"v_add_f32 v{acc+e}, v{acc+e}, v{acc+4+e}")
        A("s_nop 1")
        for e in range(2):
            A(f"v_permlane16_swap_b32 v{acc+e}, v{acc+2+e}")
        A("s_nop 1")
        for e in range(2):
            A(f"v_add_f32 v{acc+e}, v{acc+e}, v{acc+2+e}")
        A("s_nop 0")
        for e in range(2):
            A(f"v_add_f32 v{acc+e}, v{acc+e}, v{acc+e} row_ror:8")
        A("s_nop 0")

    def red4(a):
        A("s_nop 1")
        A(f"v_permlane32_swap_b32 v{a}, v{a+2}\nv_permlane32_swap_b32 v{a+1}, v{a+3}")
        A("s_nop 0")
        A(f"v_add_f32 v{a}, v{a}, v{a+2}\nv_add_f32 v{a+1}, v{a+1}, v{a+3}")
        for k in (8, 4):
            A("s_nop 0")
            A(f"v_add_f32 v{a}, v{a}, v{a} row_ror:{k}\nv_add_f32 v{a+1}, v{a+1}, v{a+1} row_ror:{k}")
        A(f"v_mov_b32 v{a+2}, v{a}\nv_mov_b32 v{a+3}, v{a+1}\ns_nop 0")
        A(f"v_permlane16_swap_b32 v{a}, v{a+2}\nv_permlane16_swap_b32 v{a+1}, v{a+3}")
        A("s_nop 0")
        A(f"v_add_f32 v{a}, v{a}, v{a+2}\nv_add_f32 v{a+1}, v{a+1}, v{a+3}")

    def lds_wait(addr, sreg, thr, name, sleep=1, vaddr=7, cached=False, pair=False):
        top = A.label(name); done = A.label(name + "_ok")
        if cached:
            A(f"s_cmp_ge_i32 s{sreg}, {thr}\ns_cbranch_scc1 {done}")
        A(f"s_mov_b32 s{sSPIN}, 0")
        A(f"{top}:")
        if pair:
            A(f"ds_read_b64 {v2(vX0)}, v{vaddr} offset:{addr}\ns_waitcnt lgkmcnt(0)\nv_min_i32 v{vX0}, v{vX0}, v{vX1}\ns_nop 0")
        else:
            A(f"ds_read_b32 v{vX0}, v{vaddr} offset:{addr}\ns_waitcnt lgkmcnt(0)")
        A(f"v_readfirstlane_b32 s{sreg}, v{vX0}")
        A(f"s_add_u32 s{sSPIN}, s{sSPIN}, 1")
        A(f"s_cmp_ge_i32 s{sreg}, {thr}\ns_cbranch_scc1 {done}")
        if sleep:
            A(f"s_sleep {sleep}")
        A(f"s_cmp_lt_u32 s{sSPIN}, 0x100000\ns_cbranch_scc1 {top}")
        A(f"{done}:")

    def lds_flag(addr, val=1, vaddr=7):
        A(f"v_mov_b32 v{vX0}, {val}\nds_write_b32 v{vaddr}, v{vX0} offset:{addr}")

    def make_tags():
        A(f"s_waitcnt lgkmcnt(0)\ns_add_u32 s{sTAG}, s{sTAG}, 0x9E3779B1")
        A(f"v_and_b32 v5, 1, v1\nv_lshlrev_b32 v5, 4, v5\nv_lshrrev_b32 v5, v5, s{sTAG}")
        for k in range(4):
            A(f"v_bfe_u32 v{TX4+k}, v5, {4*k}, 4")
        A(f"v_and_b32 v5, 3, v1\nv_lshlrev_b32 v5, 3, v5\nv_lshrrev_b32 v5, v5, s{sTAG}")
        for k in range(2):
            A(f"v_bfe_u32 v{TX2+k}, v5, {4*k}, 4")

    def embed(dst, src, tag):
        A(f"v_and_or_b32 v{dst}, v{src}, -16, v{tag}")

    def untag(checks):
        for r, t in checks:
            A(f"v_xor_b32 v{r}, {t}, v{r}")
        rs = [r for r, _ in checks]
        A(f"v_or_b32 v{vX0}, v{rs[0]}, v{rs[1]}")
        for i in range(2, len(rs), 2):
            A(f"v_or3_b32 v{vX0}, v{vX0}, v{rs[i]}, v{rs[i+1]}")
        A(f"v_and_b32 v{vX0}, 15, v{vX0}\nv_cmp_ne_u32 vcc, 0, v{vX0}")

    def padd(d, a, b, n):
        for e in range(0, n, 2):
            A(f"v_pk_add_f32 {v2(d+e)}, {v2(a+e)}, {v2(b+e)}")

    def poll(loads, checks, name, sleep=0, full=False, landed=None):
        top = A.label(name); done = A.label(name + "_ok")
        A(f"s_mov_b32 s{sSPIN}, 0")
        A(f"{top}:")
        for l in loads:
            A(l)
        A("s_waitcnt vmcnt(0)")
        if landed:
            A(landed)
        if full:
            A(f"v_xor_b32 v{vX0}, {checks[0][1]}, v{checks[0][0]}")
            for r, t in checks[1:]:
                A(f"v_bitop3_b32 v{vX0}, v{vX0}, v{r}, {t} bitop3:0xf6")
            A(f"v_cmp_ne_u32 vcc, 0, v{vX0}")
        else:
            untag(checks)
        A(f"s_cbranch_vccz {done}")
        if sleep:
            A(f"s_sleep {sleep}")
        A(f"s_add_u32 s{sSPIN}, s{sSPIN}, 1\ns_cmp_lt_u32 s{sSPIN}, s{sLIM}\ns_cbranch_scc1 {top}")
        A(f"{done}:")

    def store2(line, cond_scc1_near):
        far = A.label("far"); done = A.label("st")
        A(cond_scc1_near)
        A(f"s_cbranch_scc0 {far}\n{line}\ns_branch {done}\n{far}:\n{line} sc1\n{done}:")

    def chk4(regs):
        return [(r + k, f"v{TX4+k}") for r in regs for k in range(4)]

    def next_slot(step):
        A(f"s_add_u32 s{sLB}, s{sLB}, {step*16384}\ns_and_b32 s{sLB}, s{sLB}, {NSLOT*16384-1}")

    def tail_prep():
        A(f"v_bfe_u32 v5, v1, 2, 3\nv_lshlrev_b32 v5, 7, v5\nv_lshrrev_b32 v6, 5, v1\nv_lshl_add_u32 v5, v6, 17, v5")
        A(f"v_and_b32 v{vOA}, 3, v1\nv_lshl_add_u32 v{vI2}, v{vOA}, 4, v5\nv_lshl_add_u32 v{vOA}, v{vOA}, 1, v6\nv_lshlrev_b32 v{vOA}, 2, v{vOA}")
        A(f"v_bfe_u32 v5, v1, 2, 2\nv_mul_u32_u24 v5, 0x140, v5\nv_lshrrev_b32 v6, 4, v1\nv_lshlrev_b32 v6, 5, v6\nv_xor_b32 v5, v5, v6")
        A(f"v_and_b32 v6, 3, v1\nv_lshl_add_u32 v5, v6, 3, v5\ns_lshl_b32 s{sT2}, s{sTW}, 12\nv_add_u32 v{vWA}, s{sT2}, v5\nv_xor_b32 v{vWA+1}, 0x80, v{vWA}")
        tabw = sum((4 * (worder.index(w) + 1)) << (8 * w) for w in range(4))
        A(f"s_lshl_b32 s{sT2}, s{sTW}, 3\ns_lshr_b32 s{sWT}, {hex(tabw)}, s{sT2}\ns_and_b32 s{sWT}, s{sWT}, 0xff\ns_add_u32 s{sWT}, s{sWT}, {8*U0+1024}")
        A(f"s_and_b32 s{sT2}, s{sJJ}, 28\ns_add_u32 s{sT2}, s{sT2}, s{sTW}\ns_lshl_b32 s{sT2}, s{sT2}, 11\ns_add_u32 s{sI1}, s{sXB}, s{sT2}")
        A(f"s_lshl_b32 s{sT2}, s{sTW}, 9\ns_add_u32 s{sT2}, s{sT2}, {L_RED}\nv_lshl_add_u32 v{vRW}, v1, 2, s{sT2}\nv_lshlrev_b32 v{vRR}, 3, v1")
        A(f"v_and_b32 v5, 15, v1\nv_lshlrev_b32 v5, 3, v5\nv_lshrrev_b32 v6, 4, v1\nv_lshl_add_u32 v{vO2}, v6, 10, v5")
        A(f"s_and_b32 s{sO2}, s{sJJ}, 3\ns_lshl_b32 s{sO2}, s{sO2}, 12\ns_add_u32 s{sO2}, s{sO2}, s{sXB}")
        A(f"s_lshr_b32 s{sT2}, s{sJJ}, 2\ns_lshl_b32 s{sT2}, s{sT2}, 7\ns_add_u32 s{sO2}, s{sO2}, s{sT2}\ns_add_u32 s{sO2}, s{sO2}, {X_H2}")

    def sigmoid(dst, src):
        A(f"v_mul_f32 v{dst}, s{sLOG2E}, v{src}\nv_exp_f32 v{dst}, -v{dst}\ns_nop 0\nv_add_f32 v{dst}, 1.0, v{dst}\nv_rcp_f32 v{dst}, v{dst}\ns_nop 0")

    A(f"{KNAME}_kernel:")
    A("s_cmpk_ge_u32 s2, 0x100\ns_cbranch_scc1 L_end")
    stamp(0)
    A(f"s_load_dwordx16 s[4:19], s[0:1], 0\ns_load_dwordx8 s[20:27], s[0:1], 64")
    A(f"v_and_b32 v1, 63, v0\nv_readfirstlane_b32 s{sW}, v0")
    A(f"s_and_b32 s{sX8}, s2, 7\ns_lshr_b32 s{sJJ}, s2, 3")
    A("v_lshlrev_b32 v4, 4, v1")
    A("v_lshrrev_b32 v2, 3, v1\nv_and_b32 v3, 0x70, v4")
    A(f"s_mov_b32 s{rA+3}, 0x20000\ns_lshr_b32 s{sW}, s{sW}, 6\ns_cbranch_scc1 L_e1")
    A(f"s_and_b32 s{sT1}, s{sJJ}, 7\ns_lshl3_add_u32 s{sT1}, s{sX8}, s{sT1}\ns_lshl_b32 s{sT1}, s{sT1}, 7")
    A(f"s_lshr_b32 s{sT2}, s2, 6\ns_lshl_b32 s{sT2}, s{sT2}, 20\ns_add_u32 s{sT1}, s{sT1}, s{sT2}")
    A(f"v_lshl_add_u32 v5, v2, 17, v3\ns_bfm_b32 s{rA+2}, 1, 22\ns_movk_i32 m0, {L_P}")
    A(f"s_waitcnt lgkmcnt(0)\ns_mov_b64 {s2(rA)}, {s2(sWQ)}")
    stamp(4, 4)
    A("L_wq:")
    A(f"buffer_load_dwordx4 v5, {s4(rA)}, s{sT1} offen {wflags} lds")
    A(f"s_addk_i32 m0, 0x400\ns_addk_i32 s{sT1}, 0x2000\ns_cmpk_lt_u32 m0, {L_P + 16384}\ns_cbranch_scc1 L_wq")
    A("s_branch L_e2")
    A("L_e1:")
    A(f"s_cmp_lg_u32 s{sW}, 2\ns_cbranch_scc1 L_e1b")
    A(f"s_movk_i32 s{rA+2}, 0x400\ns_waitcnt lgkmcnt(0)\ns_mov_b64 {s2(rA)}, {s2(sX)}")
    A(f"buffer_load_dwordx4 v[16:19], v4, {s4(rA)}, 0 offen")
    A("L_e1b:")
    A(f"s_cmp_lg_u32 s{sW}, 1\ns_cbranch_scc1 L_e2")
    A(f"s_getpc_b64 {s2(sT0)}")
    A("L_pc:")
    A(f"s_lshl_b32 s{sT2}, s{sJJ}, 6\nv_add_u32 v5, s{sT2}, v1\nv_mul_u32_u24 v5, 12, v5\nv_min_u32 v5, L_end-L_pc, v5")
    A(f"global_load_dword v16, v5, {s2(sT0)}")
    def xtouch():
        A(f"v_min_u32 v6, {X_LINES-1}, v1\ns_mul_i32 s{sT2}, s{sJJ}, {X_LINES}\ns_lshl_b32 s{sT3}, s{sX8}, 10\ns_add_u32 s{sT2}, s{sT2}, s{sT3}")
        A(f"v_add_lshl_u32 v6, v6, s{sT2}, 7\ns_waitcnt lgkmcnt(0)\nglobal_load_dword v17, v6, {s2(sWS)} sc1")
    if etouch == 1:
        xtouch()
    A("L_e2:")
    A(f"v_and_b32 v6, 15, v1\nv_cmp_eq_u32 vcc, {(F_DONE + 4 - L_FLAG) // 4}, v6\nv_lshlrev_b32 v6, 2, v6\nv_mov_b32 v7, 0")
    A(f"v_cndmask_b32 v5, 0, 1, vcc\nds_write_b32 v6, v5 offset:{L_FLAG}")
    if True:
        assert sum(nb) == 28
        free = [sum(4 - n for n in nb[:x]) for x in range(8)]
        tab = sum((nb[x] & 7 | (free[x] & 7) << 4) << (8 * x) for x in range(8))
        A(f"s_mov_b32 s{sT0}, {hex(tab & 0xffffffff)}\ns_mov_b32 s{sT1}, {hex(tab >> 32)}\ns_lshl_b32 s{sT2}, s{sX8}, 3\ns_lshr_b64 {s2(sT0)}, {s2(sT0)}, s{sT2}")
        A(f"s_bfe_u32 s{sT1}, s{sT0}, 0x30004\ns_and_b32 s{sT0}, s{sT0}, 7\ns_lshr_b32 s{sT2}, s{sJJ}, 3\ns_and_b32 s{sSUB}, s{sJJ}, 7")
        A(f"s_lshl2_add_u32 s{sCB}, s{sX8}, s{sT2}\ns_sub_u32 s{sCB}, s{sCB}, s{sT1}")
        A(f"s_cmp_lt_u32 s{sT2}, s{sT0}\ns_cselect_b32 s{sGL}, 1, 0")
    A(f"s_mov_b32 s{sSELL}, 0x05040100\ns_mov_b32 s{sSELH}, 0x07060302")
    A(f"s_mov_b32 s{sSCALE}, {hex(f2u(128 ** -0.5))}\ns_mov_b32 s{sLOG2E}, {hex(f2u(LOG2E))}\ns_mov_b32 s{sHI}, 0xffff0000")
    if stamps:
        for i in range(1, 8):
            if not (smode == 4 and i == 4):
                A(f"s_mov_b64 {s2(sST+2*i)}, 0")
    A("s_waitcnt lgkmcnt(0)")
    A("s_barrier")
    stamp(5, 5)
    if stamps:
        srd(rWS, sWS, hex(WS_SIZE))
        srd(rB, sDBG, 256)
    A(f"s_cmp_lg_u32 s{sW}, 0\ns_cbranch_scc1 L_notloader")

    D = win
    first_k = (D - 1) % 8
    vCNT = 24
    cnt = [0]
    def ld(line, static=False):
        i = cnt[0]
        if not static or i >= D:
            A(f"s_waitcnt vmcnt({D-1})")
        if static and i == D - 1: stamp(5, 4)
        if static and i == D: stamp(6, 4)
        A(line)
        if i % 8 == first_k and (not static or i >= D - 1 + 8):
            A(f"ds_write_b32 v7, v{vCNT} offset:{F_RDY}\nv_add_u32 v{vCNT}, 8, v{vCNT}")
        cnt[0] += 1
    A(f"v_mov_b32 v{vCNT}, 8")
    cnt[0] = 16
    assert D >= 16
    A(f"s_mul_i32 s{sT3}, s{sGL}, {hex(512 * 1792 * 2)}")
    srd(rD, sWD, f"s{sT3}")
    A(f"s_cmp_lt_u32 s{sSUB}, 4\ns_cselect_b32 s{rB}, s{sWG}, s{sWU}\ns_cselect_b32 s{rB+1}, s{sWG+1}, s{sWU+1}")
    A(f"s_mov_b32 s{rB+2}, s{sT3}\ns_mov_b32 s{rB+3}, 0x20000")
    A(f"s_and_b32 s{sT1}, s{sSUB}, 3\ns_mul_i32 s{sT1}, s{sT1}, {128*3584}\ns_lshl_b32 s{sT2}, s{sCB}, 7\ns_add_u32 s{sT1}, s{sT1}, s{sT2}")
    A(f"v_mul_u32_u24 v6, {16*3584}, v2\nv_add_u32 v6, v6, v3")
    L_GU = L_RING + (NSLOT - 1) * 16384
    for i in range(16):
        A(f"s_mov_b32 m0, {L_GU + 1024*i}")
        A(f"s_add_u32 s{sT2}, s{sT1}, {3584*i}")
        ld(f"buffer_load_dwordx4 v6, {s4(rB)}, s{sT2} offen {wflags} lds", True)
    A(f"s_lshl_b32 s{sT1}, s{sCB}, 16\ns_lshl_b32 s{sT2}, s{sSUB}, 7\ns_add_u32 s{sT1}, s{sT1}, s{sT2}")
    A(f"v_lshl_add_u32 v5, v2, 13, v3")
    for i in range(8):
        if i % 4 == 0:
            A(f"s_mov_b32 m0, {L_WD + 1024*i}")
            A(f"s_add_u32 s{sT2}, s{sT1}, {1024*i}")
        ld(f"buffer_load_dwordx4 v5, {s4(rD)}, s{sT2} offen offset:{1024*(i%4)} {wflags} lds", True)
    srd(rA, sWO, hex(4096 * 512 * 2))
    A(f"s_lshl_b32 s{sT1}, s{sX8}, 9\ns_lshr_b32 s{sT2}, s{sJJ}, 4\ns_lshl_b32 s{sT2}, s{sT2}, 6\ns_add_u32 s{sT1}, s{sT1}, s{sT2}")
    A(f"s_and_b32 s{sT2}, s{sJJ}, 12\ns_add_u32 s{sT1}, s{sT1}, s{sT2}\ns_lshl_b32 s{sT1}, s{sT1}, 10")
    A(f"s_and_b32 s{sT2}, s{sJJ}, 3\ns_lshl_b32 s{sT2}, s{sT2}, 8\ns_add_u32 s{sT1}, s{sT1}, s{sT2}")
    A(f"v_lshrrev_b32 v6, 4, v1\nv_mul_u32_u24 v6, 0x440, v6\nv_and_b32 v25, 0xf0, v4\nv_xor_b32 v6, v6, v25")
    A(f"s_mov_b32 s{sH+3}, s{sT1}")
    assert cnt[0] == 8 * U0 and D + 7 <= 8 * U0
    stamp(1)
    A(f"s_lshl_b32 s{sT0}, s{sX8}, 24\ns_lshl_b32 s{sT1}, s{sJJ}, 19\ns_add_u32 s{sT0}, s{sT0}, s{sT1}")
    A(f"s_add_u32 s{rK}, s{sK}, s{sT0}\ns_addc_u32 s{rK+1}, s{sK+1}, 0\ns_mov_b32 s{rK+2}, 0x80000\ns_mov_b32 s{rK+3}, 0x20000")
    A(f"s_add_u32 s{rV}, s{sV}, s{sT0}\ns_addc_u32 s{rV+1}, s{sV+1}, 0\ns_mov_b32 s{rV+2}, 0x80000\ns_mov_b32 s{rV+3}, 0x20000")
    A("v_and_b32 v27, 0xf0, v4\nv_bfe_u32 v5, v1, 4, 1\nv_lshl_add_u32 v27, v5, 9, v27\nv_lshrrev_b32 v5, 5, v1\nv_lshl_add_u32 v27, v5, 13, v27")
    A("v_lshrrev_b32 v5, 4, v1\nv_lshlrev_b32 v5, 6, v5\nv_xor_b32 v16, v27, v5")
    A("v_and_b32 v5, 16, v1\nv_lshlrev_b32 v5, 1, v5\nv_xor_b32 v20, v27, v5")
    for n in range(1, 4):
        A(f"v_xor_b32 v{16+n}, {16*n}, v16\nv_xor_b32 v{20+n}, {64*n}, v20")
    sI, sLV = sH + 1, sH + 2
    NV = 8 * U0 + 1024
    NLD = NV + 16
    A(f"s_mov_b32 s{sCNT}, 0\ns_mov_b32 s{sLB}, 0\ns_mov_b32 s{sFL}, 0\ns_mov_b32 s{sH}, 0\ns_mov_b32 s{sI}, {8*U0}\nv_mov_b32 v25, 0\nv_subrev_u32 v26, 8, v{vCNT}")
    A("L_tile:")
    A(f"s_cmp_lg_u32 s{sCNT}, 32\ns_cbranch_scc1 L_nosw")
    stamp(4, 1); stamp(5, 3)
    A(f"s_mov_b64 {s2(rK)}, {s2(rV)}\ns_mov_b32 s{sH}, 0")
    for n in range(4):
        A(f"v_mov_b32 v{16+n}, v{20+n}")
    A("L_nosw:")
    A(f"s_sub_u32 s{sTHR}, s{sCNT}, {NSLOT-1}")
    A(f"s_cmp_lg_u32 s{sTHR}, 0\ns_cbranch_scc1 L_nogup")
    lds_wait(F_GUP, sT2, 1, "gup", sleep=0)
    stamp(2)
    A("L_nogup:")
    lds_wait(F_DONE, sFL, f"s{sTHR}", "free", sleep=0, cached=True, pair=True)
    A(f"s_add_u32 m0, s{sLB}, {L_RING}")
    A(f"s_waitcnt lgkmcnt(0)\nv_readfirstlane_b32 s{sLV}, v25\nds_read_b32 v25, v7 offset:{F_WIN}")
    for k in range(1, len(wins)):
        A(f"s_cmp_eq_u32 s{sLV}, {k}\ns_cbranch_scc1 L_ver{k}")
    def version(idx):
        W = wins[idx]
        A(f"L_ver{idx}:")
        A(f"s_sub_u32 s{sT2}, s{sI}, {W-1}\nv_mov_b32 v{vCNT}, s{sT2}")
        A(f"L_vq{idx}:")
        for hq in range(unq):
            for n in range(4):
                A(f"s_waitcnt vmcnt({W-1})")
                A(f"buffer_load_dwordx4 v{16+n}, {s4(rK)}, s{sH} offen offset:{1024*n} {kvflags} lds")
                if n == 0:
                    A(f"v_max_i32 v26, v26, v{vCNT}\nv_add_u32 v{vCNT}, 4, v{vCNT}\nds_write_b32 v7, v26 offset:{F_RDY}")
            A(f"s_addk_i32 m0, 0x1000\ns_addk_i32 s{sH}, {(0x100, 0xf00)[hq % 2]}")
        if unq < 4:
            A(f"s_and_b32 s{sT2}, s{sH}, 0x1fff\ns_cbranch_scc1 L_vq{idx}")
    version(0)
    A("L_qend:")
    A(f"s_add_u32 s{sI}, s{sI}, 16\ns_addk_i32 s{sH}, 0x2000")
    next_slot(1)
    if stamps and smode == 3:
        for q in range(2):
            A(f"s_cmp_lg_u32 s{sCNT}, {32*q+15}\ns_cbranch_scc1 L_np{q}")
            stamp(4 + 2 * q, 3)
            A(f"L_np{q}:")
    A(f"s_add_u32 s{sCNT}, s{sCNT}, 1\ns_cmp_lt_u32 s{sCNT}, 64\ns_cbranch_scc1 L_tile")
    def pub(val):
        A(f"v_max_i32 v26, {val}, v26\nds_write_b32 v7, v26 offset:{F_RDY}")
    lds_wait(F_DONE, sFL, 64 - NSLOT + 1, "freew", sleep=0, cached=True, pair=True)
    for r in (24, 16, 8):
        if wwo <= r:
            A(f"s_waitcnt vmcnt({r})"); pub(NV - r)
    for i in range(16):
        w, h = worder[i // 4], i % 4
        A(f"s_mov_b32 m0, {L_WO + 4096*w + 1024*h}\ns_add_u32 s{sT2}, s{sH+3}, {(128*h + 16*w)*1024}")
        A(f"s_waitcnt vmcnt({wwo-1})")
        d = i - wwo + 1
        if d % 8 == 0 or (d > 0 and d % 4 == 0):
            pub(NV + d)
            if d == 0:
                stamp(3)
        A(f"buffer_load_dwordx4 v6, {s4(rA)}, s{sT2} offen {wflags} lds")
    for rem in range((wwo - 1) // 4 * 4, -1, -4):
        if rem <= 16 or rem % 8 == 0:
            A(f"v_max_i32 v26, {NLD - rem}, v26\ns_waitcnt vmcnt({rem})\nds_write_b32 v7, v26 offset:{F_RDY}")
            if rem == 16:
                stamp(3)
    A("s_branch L_fin")

    for k in range(1, len(wins)):
        version(k)
        A("s_branch L_qend")
    A("L_pace:")
    if span is not None:
        A(f"s_cmp_lg_u32 s{sJJ}, 0\ns_cbranch_scc1 L_nosk")
        A(f"s_not_b32 s{sT0}, s{sST}\nv_mov_b32 v16, s{sT0}\ns_mov_b64 exec, 1\nbuffer_atomic_umax v16, v7, {s4(rB)}, 0 offen offset:64\ns_mov_b64 exec, -1")
        A("L_nosk:")
    A(f"s_mov_b32 s{sTW}, 0")
    tail_prep()
    A(f"s_cmp_lg_u32 s{sX8}, 0\ns_cbranch_scc1 L_noh2\nbuffer_load_dword v20, v{vO2}, {s4(rWS)}, s{sO2} offen sc1\nL_noh2:")
    make_tags()
    lds_flag(F_TG)
    sP, sPP, sS, sPGA, sOWN, sPAR = sH, sH + 1, sH + 2, sH + 3, sH + 4, sH + 5
    A(f"s_getreg_b32 s{sPAR}, hwreg(HW_REG_XCC_ID, 0, 1)\ns_cmp_eq_u32 s{sPAR}, 0")
    A(f"s_cselect_b32 s{sPAR}, {ebias}, 0\ns_add_u32 s{sPAR}, s{sPAR}, {(1 << (gs - 1)) + bias}")
    if xb:
        tb = sum((b // 32 & 15) << (4 * x) for x, b in enumerate(xb))
        A(f"s_lshl_b32 s{sT0}, s{sX8}, 2\ns_or_b32 s{sT0}, s{sT0}, 0x40000\ns_bfe_i32 s{sT0}, {hex(tb)}, s{sT0}\ns_lshl_b32 s{sT0}, s{sT0}, 5\ns_add_u32 s{sPAR}, s{sPAR}, s{sT0}")
    lds_wait(F_QH, sMODE, 1, "qhp", sleep=8)
    A(f"s_cmp_lg_u32 s{sMODE}, 2\ns_cbranch_scc1 L_late")
    A(f"v_lshlrev_b32 v5, 2, v1\ns_add_u32 s{sPGA}, s{sXB}, {X_PG}\ns_lshl2_add_u32 s{sOWN}, s{sJJ}, s{sPGA}")
    A(f"s_mov_b32 s{sP}, 0\ns_mov_b32 s{sCNT}, 0\ns_and_b32 s{sT3}, s{sTAG}, 0xfffff800")
    A("L_pl:")
    A(f"s_mov_b32 s{sPP}, s{sP}\nds_read_b32 v16, v7 offset:{F_RDY}\ns_waitcnt lgkmcnt(0)\nv_readfirstlane_b32 s{sP}, v16")
    A(f"s_add_u32 s{sCNT}, s{sCNT}, 1\ns_cmp_gt_u32 s{sCNT}, 0x10000\ns_cbranch_scc1 L_late")
    A(f"v_or_b32 v16, s{sT3}, v16")
    A(f"s_mov_b64 exec, 1\nbuffer_store_dword v16, v7, {s4(rWS)}, s{sOWN} offen\ns_mov_b64 exec, -1")
    A(f"s_cmp_ge_u32 s{sP}, {NV - endstop}\ns_cbranch_scc1 L_late")
    A(f"s_mov_b32 exec_hi, 0\nbuffer_load_dword v17, v5, {s4(rWS)}, s{sPGA} offen sc1\ns_waitcnt vmcnt(0)")
    A(f"v_xor_b32 v19, s{sT3}, v17\nv_cmp_lt_u32 vcc, 0x7ff, v19")
    for k in (8, 4, 2, 1):
        A(f"s_nop 1\nv_add_u32 v19, v19, v19 row_ror:{k}")
    A(f"s_cbranch_vccnz L_pnext")
    A(f"v_readlane_b32 s{sS}, v19, 0\nv_readlane_b32 s{sT0}, v19, 16")
    A(f"s_cmp_eq_u32 s{sPP}, 0\ns_cbranch_scc1 L_pnext")
    A(f"s_add_u32 s{sS}, s{sS}, s{sT0}\ns_add_u32 s{sT0}, s{sP}, s{sPP}\ns_lshl_b32 s{sT0}, s{sT0}, 4\ns_sub_u32 s{sT0}, s{sS}, s{sT0}")
    A(f"s_add_u32 s{sT0}, s{sT0}, s{sPAR}\ns_ashr_i32 s{sT0}, s{sT0}, {gs}\ns_max_i32 s{sT0}, s{sT0}, 0\ns_min_i32 s{sT0}, s{sT0}, {len(wins)-1}")
    A(f"v_mov_b32 v16, s{sT0}\nds_write_b32 v7, v16 offset:{F_WIN}")
    A("L_pnext:")
    A(f"s_mov_b64 exec, -1\ns_sleep {psleep}\ns_branch L_pl")

    A("L_notloader:")
    A(f"s_load_dword s{sTAG}, {s2(sWS)}, {WS_EPOCH}")
    A(f"s_mov_b32 s{sLIM}, 0x40000\ns_mov_b32 s{sMODE}, 1\ns_lshl_b32 s{sXB}, s{sX8}, 17")
    srd(rWS, sWS, hex(WS_SIZE))
    A(f"s_mov_b32 s{sTW}, s{sW}\ns_cmp_eq_u32 s{sW}, 4\ns_cbranch_scc1 L_pace")
    A(f"s_cmp_eq_u32 s{sW}, 3\ns_cbranch_scc1 L_help")
    A(f"s_sub_u32 s{sC}, s{sW}, 1")
    A(f"s_cmp_eq_u32 s{sW}, 2\ns_cbranch_scc1 L_w2")
    if etouch == 2:
        xtouch()
    make_tags()
    A("s_branch L_qwait")
    def slice_mv(sKS, lds_base, unit0, after_read=None):
        A(f"s_lshl_b32 s{sT2}, s{sKS}, 8\nv_lshl_add_u32 v5, v2, 5, s{sT2}")
        A(f"ds_read_b128 v[20:23], v5 offset:{L_XN}\nds_read_b128 v[24:27], v5 offset:{L_XN+16}")
        A(f"v_add_u32 v6, {lds_base}, v4")
        for half in range(2):
            lds_wait(F_RDY, sFL, 8 * (unit0 + half + 1), "wsl", sleep=1)
            for i in range(8):
                A(f"ds_read_b128 {v4(64+4*i)}, v6 offset:{8192*half + 1024*i}")
            lgkm(0)
            if half == 1:
                stamp(6, 2)
                if after_read:
                    after_read()
            matvec8(64, [f"v{20+4*half+k}" for k in range(4)], 32, 40, first=(half == 0))
        reduce8(32)
        A(f"v_lshrrev_b32 v6, 4, v1\nv_lshlrev_b32 v6, 6, v6\nv_lshrrev_b32 v5, 1, v3\nv_add_u32 v6, v6, v5")
    A("L_w2:")
    A(f"s_lshr_b32 s{sT3}, s2, 6")
    A("s_waitcnt vmcnt(0)")
    stamp(4, 2)
    ln_stats(16, 28, 29, 32)
    ln_apply(16, 28, 29, 32)
    A(f"ds_write_b128 v4, v[16:19] offset:{L_XN}")
    lds_flag(F_XN)
    stamp(5, 2)
    make_tags()
    slice_mv(sT3, L_P, 0)
    sXC = sH + 4
    A(f"s_getreg_b32 s{sXC}, hwreg(HW_REG_XCC_ID, 0, 4)")
    if force:
        A(f"s_and_b32 s{sXC}, s{sJJ}, 1")
    embed(34, 32, TX2); embed(35, 33, TX2 + 1)
    A(f"v_xor_b32 v32, s{sXC}, v34\nv_xor_b32 v33, s{sXC}, v35")
    A(f"s_add_u32 s{sH}, s{sXB}, {X_QX}\ns_lshl_b32 s{sT2}, s{sJJ}, 8\ns_add_u32 s{sT1}, s{sH}, s{sT2}")
    A("s_mov_b32 exec_lo, 0x00ff00ff\ns_mov_b32 exec_hi, 0x00ff00ff")
    A(f"buffer_store_dwordx2 v[32:33], v6, {s4(rWS)}, s{sT1} offen")
    A("s_mov_b64 exec, -1")
    stamp(1)
    for k in range(4):
        A(f"v_xor_b32 v{36+k}, s{sXC}, v{TX4+k}")
    A(f"s_add_u32 s{sH+1}, s{sH}, 4096\ns_mov_b32 s{sMODE}, 2")
    A(f"s_mov_b32 s{sSPIN}, 0")
    A("L_qpoll:")
    for i in range(8):
        A(f"buffer_load_dwordx4 {v4(64+4*i)}, v4, {s4(rWS)}, s{sH+i//4} offen offset:{1024*(i%4)} sc1")
    A("s_waitcnt vmcnt(0)")
    untag([(64 + i, f"v{36+i%4}") for i in range(32)])
    A("s_cbranch_vccz L_qok")
    A(f"s_sleep {qsleep}\ns_add_u32 s{sSPIN}, s{sSPIN}, 1\ns_cmp_lt_u32 s{sSPIN}, {qtry}\ns_cbranch_scc1 L_qpoll")
    A(f"s_cmp_lg_u32 s{sSPIN}, {qtry}\ns_cbranch_scc1 L_qflip")
    A(f"s_xor_b32 s{sT1}, s{sT1}, {X_QXFAR}")
    A("s_mov_b32 exec_lo, 0x00ff00ff\ns_mov_b32 exec_hi, 0x00ff00ff")
    A(f"buffer_store_dwordx2 v[34:35], v6, {s4(rWS)}, s{sT1} offen sc1")
    A("s_mov_b64 exec, -1")
    A("L_qflip:")
    A(f"s_xor_b32 s{sH}, s{sH}, {X_QXFAR}\ns_xor_b32 s{sH+1}, s{sH+1}, {X_QXFAR}\ns_xor_b32 s{sMODE}, s{sMODE}, 3")
    for k in range(4):
        A(f"v_xor_b32 v{36+k}, s{sXC}, v{36+k}")
    A(f"s_cmp_lt_u32 s{sSPIN}, s{sLIM}\ns_cbranch_scc1 L_qpoll")
    A("L_qok:")
    for e in range(8):
        A(f"v_add_f32 v{64+e}, v{64+e}, v{72+e}\nv_add_f32 v{80+e}, v{80+e}, v{88+e}")
    for e in range(8):
        A(f"v_add_f32 v{64+e}, v{64+e}, v{80+e}")
    for e in range(4):
        A(f"v_cvt_pk_bf16_f32 v{64+e}, v{64+2*e}, v{65+2*e}")
    A(f"v_lshrrev_b32 v6, 4, v1\nv_lshlrev_b32 v6, 7, v6\nv_and_b32 v5, 3, v1\nv_lshl_add_u32 v6, v5, 5, v6")
    A(f"v_and_b32 v5, 12, v1\nv_add_u32 v6, v6, v5")
    for e in range(4):
        A(f"ds_write_b32 v6, v{64+e} offset:{L_Q + 16*(e&1) + 512*(e>>1)}")
    lds_flag(F_QH, val=f"s{sMODE}")
    A("L_qwait:")
    vOWN, vOTH = 30, 31
    A(f"s_lshl_b32 s{sT2}, s{sC}, 2\nv_mov_b32 v{vOWN}, s{sT2}\nv_xor_b32 v{vOTH}, 4, v{vOWN}")
    vQV, vKT, vS, vT, vMAX, vAD, vKA, vPA, vDN = 32, 96, 160, 164, 172, 176, 184, 188, 189
    A("v_and_b32 v5, 3, v1\nv_lshlrev_b32 v5, 10, v5\nv_bfe_u32 v6, v1, 2, 2\nv_lshl_add_u32 v5, v6, 8, v5")
    A(f"v_lshrrev_b32 v6, 4, v1\nv_xor_b32 v6, v6, v1\nv_and_b32 v6, 15, v6\nv_lshl_add_u32 v{vKA}, v6, 4, v5")
    for n in range(1, 4):
        A(f"v_xor_b32 v{vKA+n}, {64*n}, v{vKA}")
    A(f"v_and_b32 v5, 3, v1\nv_lshlrev_b32 v5, 6, v5\nv_lshrrev_b32 v6, 4, v1\nv_lshl_add_u32 v5, v6, 4, v5")
    A(f"v_mov_b32 v29, v5")
    A(f"v_and_b32 v6, 8, v1\nv_lshl_add_u32 v5, v6, 5, v5\nv_and_b32 v6, 4, v1\nv_lshl_add_u32 v5, v6, 1, v5")
    A(f"s_lshl_b32 s{sT2}, s{sC}, 9\nv_add_u32 v{vPA}, s{sT2}, v5")
    A(f"v_mov_b32 v{vMAX}, {hex(f2u(-3e38))}")
    A(f"s_add_u32 s{sT2}, s{sC}, 2\nv_mov_b32 v{vDN}, s{sT2}")
    A("v_and_b32 v6, 3, v1\nv_lshlrev_b32 v6, 8, v6\nv_lshrrev_b32 v5, 4, v1\nv_lshl_add_u32 v6, v5, 4, v6")
    A(f"s_mov_b32 s{sFL}, 0")
    lds_wait(F_QH, sMODE, 1, "qh", sleep=1)
    stamp(2)
    for s in range(4):
        A(f"ds_read_b128 {v4(vKT+4*s)}, v6 offset:{L_Q + 64*s}")
    lgkm(0)
    for b in range(4):
        A(f"s_mov_b32 vcc_lo, {hex(0x000f000f << (4*b))}\ns_mov_b32 vcc_hi, {hex(0x000f000f << (4*b))}")
        for i in range(16):
            A(f"v_cndmask_b32 v{vQV+16*b+i}, 0, v{vKT+i}, vcc")
    A(f"s_lshl_b32 s{sLB}, s{sC}, 14\ns_lshl_b32 s{sTHR}, s{sC}, 4\ns_add_u32 s{sTHR}, s{sTHR}, {8*(U0+2)}")
    A(f"s_mov_b32 s{sCNT}, 0")
    A("L_p1:")
    for n in range(4):
        A(f"v_add_u32 v{vAD+n}, s{sLB}, v{vKA+n}")
    lds_wait(F_RDY, sFL, f"s{sTHR}", "krdy", sleep=csleep, cached=True)
    for b in range(4):
        for n in range(4):
            A(f"ds_read_b128 {v4(vKT+16*b+4*n)}, v{vAD+n} offset:{L_RING + 4096*b}")
    for b in range(4):
        lgkm(12 - 4 * b)
        if b == 3:
            A(f"ds_write_b32 v{vOWN}, v{vDN} offset:{F_DONE}")
        for n in range(4):
            c = "0" if b + n == 0 else v4(vS)
            A(f"v_mfma_f32_16x16x32_bf16 {v4(vS)}, {v4(vKT+16*b+4*n)}, {v4(vQV+16*b+4*n)}, {c}")
    A(f"v_add_u32 v{vDN}, 2, v{vDN}\nv_min_u32 v{vDN}, 32, v{vDN}")
    next_slot(2)
    A(f"s_add_u32 s{sTHR}, s{sTHR}, 32\ns_add_u32 s{sCNT}, s{sCNT}, 1\ns_nop 3")
    A(f"v_cvt_pk_bf16_f32 v{vT}, v{vS}, v{vS+1}\nv_cvt_pk_bf16_f32 v{vT+1}, v{vS+2}, v{vS+3}")
    A(f"v_max3_f32 v{vMAX}, v{vMAX}, v{vS}, v{vS+1}\nv_max3_f32 v{vMAX}, v{vMAX}, v{vS+2}, v{vS+3}")
    for j in range(2):
        A(f"v_lshlrev_b32 v{vT+2+2*j}, 16, v{vT+j}\nv_and_b32 v{vT+3+2*j}, s{sHI}, v{vT+j}")
    for i in range(4):
        A(f"v_mul_f32 v{vT+2+i}, s{sSCALE}, v{vT+2+i}")
    A(f"v_cvt_pk_bf16_f32 v{vT}, v{vT+2}, v{vT+3}\nv_cvt_pk_bf16_f32 v{vT+1}, v{vT+4}, v{vT+5}")
    A(f"ds_write_b64 v{vPA}, {v2(vT)} offset:{L_P}\nv_add_u32 v{vPA}, 1024, v{vPA}")
    A(f"s_cmp_lt_u32 s{sCNT}, 16\ns_cbranch_scc1 L_p1")
    stamp(4, 1)
    wave_red(vMAX, vX0, "v_max_f32", (8, 4))
    A(f"v_and_b32 v5, 3, v1\nv_lshlrev_b32 v5, 2, v5\nv_lshl_add_u32 v6, v{vOWN}, 2, v5\nv_xor_b32 v5, 16, v6")
    A(f"ds_write_b32 v6, v{vMAX} offset:{L_MX}")
    lds_flag(F_MX, vaddr=vOWN)
    A(f"v_subrev_u32 v{vPA}, 16384, v{vPA}")
    lds_wait(F_MX, sT0, 1, "mx", sleep=0, vaddr=vOTH)
    A(f"ds_read_b32 v{vX1}, v5 offset:{L_MX}")
    for i in range(16):
        A(f"ds_read_b64 {v2(32+2*i)}, v{vPA} offset:{L_P + 1024*i}")
    lgkm(0)
    vMN, vLSUM = 173, 174
    A(f"v_max_f32 v{vMAX}, v{vMAX}, v{vX1}")
    rnd_bf16(vMAX)
    A(f"v_mul_f32 v{vMAX}, s{sSCALE}, v{vMAX}")
    rnd_bf16(vMAX)
    A(f"v_mul_f32 v{vMN}, s{sLOG2E}, v{vMAX}\nv_mov_b32 v{vLSUM}, 0")
    for i in range(0, 16, 2):
        E = 96
        for j in range(4):
            A(f"v_lshlrev_b32 v{E+2*j}, 16, v{32+2*i+j}\nv_and_b32 v{E+2*j+1}, s{sHI}, v{32+2*i+j}")
        for j in range(8):
            A(f"v_fma_f32 v{E+j}, v{E+j}, s{sLOG2E}, -v{vMN}")
        for j in range(8):
            A(f"v_exp_f32 v{E+j}, v{E+j}")
        A("s_nop 0")
        for j in range(4):
            A(f"v_cvt_pk_bf16_f32 v{32+2*i+j}, v{E+2*j}, v{E+2*j+1}")
        A(f"ds_write_b64 v{vPA}, {v2(32+2*i)} offset:{L_P + 1024*i}\nds_write_b64 v{vPA}, {v2(34+2*i)} offset:{L_P + 1024*(i+1)}")
        for j in range(4):
            A(f"v_add_f32 v{E+j}, v{E+j}, v{E+4+j}")
        A(f"v_add_f32 v{E}, v{E}, v{E+1}\nv_add_f32 v{E+2}, v{E+2}, v{E+3}\nv_add_f32 v{vLSUM}, v{vLSUM}, v{E}\nv_add_f32 v{vLSUM}, v{vLSUM}, v{E+2}")
    wave_red(vLSUM, vX0, "v_add_f32", (8, 4))
    A(f"v_lshlrev_b32 v6, 1, v6\nv_mov_b32 v{vLSUM+1}, v{vMN}\nds_write_b64 v6, {v2(vLSUM)} offset:{L_LS}")
    lds_flag(F_PD, vaddr=vOWN)
    vO, vVF, vPF, vVA = 32, 48, 80, 184
    A("v_and_b32 v5, 12, v1\nv_lshrrev_b32 v6, 4, v1\nv_add_u32 v6, v6, v5\nv_lshlrev_b32 v6, 8, v6")
    A(f"v_lshrrev_b32 v{vX1}, 3, v1\nv_and_b32 v{vX1}, 2, v{vX1}\nv_or_b32 v5, v5, v{vX1}")
    A(f"v_bfe_u32 v{vX1}, v1, 1, 1\nv_xor_b32 v5, v5, v{vX1}\ns_lshl_b32 s{sT2}, s{sC}, 3\nv_xor_b32 v5, s{sT2}, v5")
    A(f"v_lshl_add_u32 v6, v5, 4, v6\nv_and_b32 v5, 1, v1\nv_lshl_add_u32 v{vVA}, v5, 3, v6")
    for n in range(1, 4):
        A(f"v_xor_b32 v{vVA+n}, {32*n}, v{vVA}")
    for i in range(4):
        A(f"v_mov_b32 v{vO+i}, 0")
    for i in range(32):
        A(f"v_mov_b32 v{vPF+i}, 0")
    for T in range(4):
        A(f"s_mov_b32 s{sPM+2*T}, {hex(0x000f000f << (4*T))}\ns_mov_b32 s{sPM+2*T+1}, s{sPM+2*T}")
    A(f"v_mov_b32 v{vDN}, 33\nv_mov_b32 v{vPA}, v29")
    A(f"s_mov_b32 s{sLB}, {(32 % NSLOT) * 16384}\ns_mov_b32 s{sTHR}, {8*(U0+64+1)}\ns_mov_b32 s{sCNT}, 0")
    tail_prep()
    A(f"v_lshrrev_b32 v6, 2, v1\nv_lshlrev_b32 v6, 11, v6\nv_and_b32 v5, 3, v1\nv_lshl_add_u32 v{vO1}, v5, 4, v6")
    A(f"s_lshl_b32 s{sT2}, s{sC}, 15\ns_add_u32 s{sT1}, s{sXB}, s{sT2}\ns_lshl_b32 s{sT2}, s{sJJ}, 6\ns_add_u32 s{sT1}, s{sT1}, s{sT2}")
    lds_wait(F_PD, sT0, 1, "pd", sleep=0, vaddr=vOTH)
    stamp(5, 1)
    vSC = 28
    A("L_p2:")
    for n in range(4):
        A(f"v_add_u32 v{vAD+n}, s{sLB}, v{vVA+n}")
    A(f"s_cmp_lg_u32 s{sCNT}, {prept}\ns_cbranch_scc1 L_nosc")
    lds_wait(F_SC, sT0, 1, "sc", sleep=1)
    A(f"v_and_b32 v5, 3, v1\nv_lshlrev_b32 v5, 2, v5\nds_read_b32 v{vSC}, v5 offset:{L_SC}")
    A("L_nosc:")
    for T in range(4):
        A(f"s_mov_b64 exec, {s2(sPM+2*T)}")
        for ks in range(2):
            A(f"ds_read_b128 {v4(vPF+16*ks+4*T)}, v{vPA} offset:{L_P + 256*ks}")
    A("s_mov_b64 exec, -1")
    for ks in range(2):
        lds_wait(F_RDY, sFL, f"s{sTHR}", "vrdy", sleep=csleep, cached=True)
        for T in range(4):
            for ih in range(2):
                A(f"ds_read_b64_tr_b16 {v2(vVF+16*ks+4*T+2*ih)}, v{vAD+T} offset:{L_RING + 8192*ks + 4096*ih}")
        A(f"s_add_u32 s{sTHR}, s{sTHR}, 8")
        if ks == 1:
            next_slot(1)
            A(f"s_add_u32 s{sCNT}, s{sCNT}, 1\nv_add_u32 v{vPA}, 512, v{vPA}")
        for T in range(4):
            lgkm(6 - 2 * T)
            A(f"v_mfma_f32_16x16x32_bf16 {v4(vO)}, {v4(vVF+16*ks+4*T)}, {v4(vPF+16*ks+4*T)}, {v4(vO)}")
    A(f"ds_write_b32 v{vOWN}, v{vDN} offset:{F_DONE}\nv_add_u32 v{vDN}, 1, v{vDN}")
    A(f"s_cmp_lt_u32 s{sCNT}, 32\ns_cbranch_scc1 L_p2")
    stamp(3)
    A(f"s_cmp_eq_u32 s{sMODE}, 2\ns_nop 2")
    for r in range(4):
        A(f"v_mul_f32 v{vO+r}, v{vO+r}, v{vSC}")
    for r in range(4):
        embed(vO + r, vO + r, TX4 + r)
    A(f"s_cbranch_scc0 L_h1far\nbuffer_store_dwordx4 {v4(vO)}, v{vO1}, {s4(rWS)}, s{sT1} offen\ns_branch L_late2")
    A(f"L_h1far:\nbuffer_store_dwordx4 {v4(vO)}, v{vO1}, {s4(rWS)}, s{sT1} offen sc1\ns_branch L_late2")

    A("L_help:")
    srd(rA, sX, 1024)
    vG, vXP = 56, 58
    A(f"v_and_b32 v6, 3, v1\nv_lshlrev_b32 v6, 3, v6\nv_lshrrev_b32 v5, 5, v1\nv_lshl_add_u32 v6, v5, 2, v6\ns_lshl_b32 s{sT1}, s{sJJ}, 5")
    A(f"s_cmp_lg_u32 s{sX8}, 0\ns_cbranch_scc1 L_nox\nbuffer_load_dword v{vXP}, v6, {s4(rA)}, s{sT1} offen\nL_nox:")
    make_tags()
    A(f"s_cmp_lg_u32 s{sGL}, 0\ns_cbranch_scc1 L_glu")
    lds_flag(F_GUP)
    A("s_branch L_h3f")
    A("L_glu:")
    A(f"s_and_b32 s{sT3}, s{sSUB}, 3")
    lds_wait(F_XN, sT0, 1, "xn", sleep=2)
    slice_mv(sT3, L_GU, 2, after_read=lambda: lds_flag(F_GUP))
    embed(32, 32, TX2); embed(33, 33, TX2 + 1)
    lds_wait(F_QH, sMODE, 1, "qh3", sleep=4)
    A(f"s_lshl_b32 s{sT1}, s{sJJ}, 8\ns_add_u32 s{sT1}, s{sT1}, s{sXB}\ns_add_u32 s{sT1}, s{sT1}, {X_G1}\ns_and_b32 s{sT0}, s{sT1}, {hex(0xfffff800)}")
    if skip & 4: A("s_branch L_hstat")
    A("s_mov_b32 exec_lo, 0x00ff00ff\ns_mov_b32 exec_hi, 0x00ff00ff")
    store2(f"buffer_store_dwordx2 v[32:33], v6, {s4(rWS)}, s{sT1} offen", f"s_cmp_eq_u32 s{sMODE}, 2")
    A("s_mov_b64 exec, -1")
    stamp(1)
    lds_wait(F_RDY, sFL, 8 * g2gate, "g2gate", sleep=16)
    for i in range(8):
        A(f"ds_read_b128 {v4(64+4*i)}, v4 offset:{L_WD + 1024*i}")
    poll([f"buffer_load_dwordx4 {v4(32+4*i)}, v4, {s4(rWS)}, s{sT0} offen offset:{1024*i} sc1" for i in range(2)],
         chk4([32, 36]), "g1poll", sleep=32)
    for e in range(8):
        swap_red(32 + e, vX0, "v_add_f32")
        rnd_bf16(32 + e)
    for e in range(4):
        sigmoid(32 + e, 32 + e)
        rnd_bf16(32 + e)
        A(f"v_mul_f32 v{32+e}, v{32+e}, v{36+e}")
    A("v_cvt_pk_bf16_f32 v32, v32, v33\nv_cvt_pk_bf16_f32 v33, v34, v35")
    A("v_and_b32 v5, 3, v1\nv_lshlrev_b32 v5, 5, v5\nv_and_b32 v6, 12, v1\nv_add_u32 v5, v5, v6\nv_lshlrev_b32 v6, 4, v2")
    A(f"ds_write_b32 v5, v32 offset:{L_HB}\nds_write_b32 v5, v33 offset:{L_HB+16}\nds_read_b128 v[20:23], v6 offset:{L_HB}")
    lgkm(0)
    matvec8(64, [f"v{20+k}" for k in range(4)], 32, 40)
    reduce8(32)
    A(f"v_lshrrev_b32 v6, 4, v1\nv_lshlrev_b32 v6, 3, v6\nv_lshl_add_u32 v6, v3, 1, v6\nv_lshlrev_b32 v5, 2, v1")
    A(f"ds_write_b64 v6, v[32:33] offset:{L_HB}\nds_read_b32 v32, v5 offset:{L_HB}")
    A(f"v_and_b32 v5, 7, v1\nv_lshlrev_b32 v5, 2, v5\nv_lshrrev_b32 v33, v5, s{sTAG}\nv_and_b32 v33, 15, v33")
    A(f"v_lshrrev_b32 v6, 4, v1\nv_lshlrev_b32 v6, 11, v6\nv_and_b32 v5, 15, v1\nv_lshl_add_u32 v6, v5, 2, v6")
    A(f"s_lshl_b32 s{sT1}, s{sSUB}, 13\ns_lshl_b32 s{sT2}, s{sCB}, 6\ns_add_u32 s{sT1}, s{sT1}, s{sT2}\ns_add_u32 s{sT1}, s{sT1}, {WS_GL}")
    lgkm(0)
    embed(32, 32, 33)
    if not skip & 1:
        A(f"buffer_store_dword v32, v6, {s4(rWS)}, s{sT1} offen sc1")
    A("L_h3f:")
    A(f"s_cmp_lg_u32 s{sX8}, 0\ns_cbranch_scc1 L_hstat")
    if skip & 2: A("s_branch L_hstat")
    lds_wait(F_RDY, sFL, 8 * g3gate, "g3gate", sleep=16)
    A(f"s_lshl_b32 s{sH}, s{sJJ}, 11\ns_add_u32 s{sH}, s{sH}, {WS_GL}")
    A(f"v_min_u32 v6, 47, v1\nv_and_b32 v6, 60, v6\nv_and_b32 v5, 3, v1\nv_or_b32 v6, v6, v5\nv_lshlrev_b32 v6, 4, v6")
    poll([f"buffer_load_dwordx4 v[64:67], v4, {s4(rWS)}, s{sH} offen sc1",
          f"buffer_load_dwordx4 v[68:71], v6, {s4(rWS)}, s{sH} offen offset:1024 sc1"], chk4([64, 68]), "gpoll", sleep=64)
    A("s_mov_b32 exec_hi, 0xffff")
    for e in range(4):
        A(f"v_add_f32 v{64+e}, v{64+e}, v{68+e}")
    A("s_mov_b64 exec, -1")
    red4(64)
    for e in range(2):
        rnd_bf16(64 + e)
        sigmoid(68, 64 + e)
        A(f"v_mul_f32 v{vG+e}, v{64+e}, v68")
        rnd_bf16(vG + e)
    A("L_hstat:")
    stamp(2)
    lds_wait(F_PD, sT0, 1, "pdh", sleep=16, pair=True)
    lds_wait(F_TG, sT0, 1, "tg", sleep=4)
    lds_wait(F_QH, sMODE, 1, "qh4", sleep=4)
    A(f"v_and_b32 v5, 3, v1\nv_lshlrev_b32 v5, 3, v5")
    A(f"ds_read_b64 v[32:33], v5 offset:{L_LS}\nds_read_b32 v34, v5 offset:{L_LS+32}")
    lgkm(0)
    A(f"v_add_f32 v32, v32, v34\nv_log_f32 v32, v32\nv_mov_b32 v35, s{sTAG}\nv_add_f32 v34, v32, v33")
    A(f"s_add_u32 s{sT0}, s{sXB}, {X_LS}\ns_lshl_b32 s{sT1}, s{sJJ}, 5\ns_add_u32 s{sT1}, s{sT1}, s{sT0}")
    A("s_mov_b64 exec, 15")
    store2(f"buffer_store_dwordx2 v[34:35], v5, {s4(rWS)}, s{sT1} offen", f"s_cmp_eq_u32 s{sMODE}, 2")
    A("s_mov_b64 exec, -1")
    lds_wait(F_RDY, sFL, 8 * lsgate, "lsgate", sleep=16)
    A(f"v_lshlrev_b32 v6, 3, v1")
    poll([f"buffer_load_dwordx2 {v2(36+2*i)}, v6, {s4(rWS)}, s{sT0} offen offset:{512*i} sc1" for i in range(2)],
         [(37, f"s{sTAG}"), (39, f"s{sTAG}")], "lspoll", sleep=16, full=True)
    A("v_max_f32 v40, v36, v38")
    wave_red(40, vX0, "v_max_f32", (8, 4))
    A("v_sub_f32 v36, v36, v40\nv_sub_f32 v38, v38, v40\nv_exp_f32 v36, v36\nv_exp_f32 v38, v38\nv_sub_f32 v33, v33, v40\nv_add_f32 v36, v36, v38")
    wave_red(36, vX0, "v_add_f32", (8, 4))
    A("v_exp_f32 v33, v33\nv_rcp_f32 v36, v36\nv_lshrrev_b32 v5, 1, v5\nv_mul_f32 v33, v33, v36")
    A(f"ds_write_b32 v5, v33 offset:{L_SC}")
    lds_flag(F_SC)
    stamp(3)
    tail_prep()
    A(f"s_lshr_b32 s{sI2}, s{sJJ}, 1\ns_lshl_b32 s{sI2}, s{sI2}, 10\ns_and_b32 s{sT2}, s{sJJ}, 1\ns_lshl_b32 s{sT2}, s{sT2}, 6\ns_add_u32 s{sI2}, s{sI2}, s{sT2}")
    A(f"s_add_u32 s{sI2}, s{sI2}, {X_H2}")
    for i in range(1, 4):
        A(f"s_add_u32 s{sI2+i}, s{sI2}, {i << 18}")
    A(f"v_lshlrev_b32 v50, 16, v{vXP}\nv_and_b32 v51, s{sHI}, v{vXP}")
    A("L_late:")
    lds_wait(F_RDY, sFL, NV - 16, "late", sleep=4)
    A("L_late2:")
    stamp(4, 0)
    lds_wait(F_RDY, sFL, NV + pgate, "late2", sleep=0)

    A("L_tail:")
    def ld1(r):
        for i in range(2):
            A(f"buffer_load_dwordx4 {v4(r+4*i)}, v4, {s4(rWS)}, s{sI1} offen offset:{1024*i} sc1")
    ld1(144)
    lds_wait(F_RDY, sFL, f"s{sWT}" if wthr else NLD, "wordy", sleep=0, cached=True)
    ld1(152)
    for h in range(4):
        for z in range(2):
            A(f"ds_read_b64_tr_b16 {v2(vWO+4*h+2*z)}, v{vWA+z} offset:{L_WO + 1024*h}")
    A(f"s_mov_b32 s{sSPIN}, 0\ns_waitcnt vmcnt(2)")
    untag(chk4([144, 148]))
    padd(40, 144, 148, 4)
    A("s_cbranch_vccz L_h1ok")
    A("L_h1poll:")
    A("s_waitcnt vmcnt(0)")
    untag(chk4([152, 156]))
    padd(40, 152, 156, 4)
    A("s_cbranch_vccz L_h1ok")
    ld1(152)
    A(f"s_add_u32 s{sSPIN}, s{sSPIN}, 1\ns_cmp_lt_u32 s{sSPIN}, s{sLIM}\ns_cbranch_scc1 L_h1poll")
    A("L_h1ok:")
    stamp(5, 0)
    red4(40)
    A(f"v_cvt_pk_bf16_f32 v40, v40, v41\ns_nop 0")
    for u in range(8):
        A(f"v_readlane_b32 s{sH+u}, v40, {32*(u&1) + (u>>1)}")
    lgkm(0)
    for u in range(8):
        for z in range(2):
            c = "0" if u == 0 else f"v{48+z}"
            A(f"v_dot2_f32_bf16 v{48+z}, s{sH+u}, v{vWO+4*(u>>1)+2*z+(u&1)}, {c}")
    A(f"s_cmp_lg_u32 s{sTW}, 3\ns_nop 1")
    A(f"ds_write2_b32 v{vRW}, v48, v49 offset1:64")
    A("s_waitcnt lgkmcnt(0)\ns_barrier\ns_cbranch_scc1 L_fin")
    for p in range(4):
        A(f"ds_read_b64 {v2(42+2*p)}, v{vRR} offset:{L_RED + 512*p}")
    A(f"s_lshl2_add_u32 s{sT0}, s{sX8}, s{sMODE}\ns_cmp_eq_u32 s{sT0}, 2")
    lgkm(0)
    padd(48, 48, 42, 2); padd(44, 44, 46, 2); padd(48, 48, 44, 2)
    embed(48, 48, TX2); embed(49, 49, TX2 + 1)
    A(f"s_cbranch_scc1 L_t3\nbuffer_store_dwordx2 v[48:49], v{vO2}, {s4(rWS)}, s{sO2} offen sc1")
    A(f"s_cmp_lg_u32 s{sX8}, 0\ns_cbranch_scc1 L_fin\ns_branch L_t3b")
    A("L_t3:")
    A(f"buffer_store_dwordx2 v[48:49], v{vO2}, {s4(rWS)}, s{sO2} offen")
    A("L_t3b:")
    def ld2(i):
        A(f"buffer_load_dwordx4 {v4(64+4*i)}, v{vI2}, {s4(rWS)}, s{sI2+i} offen sc1")
    for i in range(4):
        ld2(i)
    srd(rA, sOUT, 1024)
    A(f"s_lshl_b32 s{sT3}, s{sJJ}, 5\ns_mov_b32 s{sSPIN}, 0\ns_waitcnt vmcnt(4)")
    if tdel:
        A(f"s_sleep {tdel}")
    ld2(0)
    A("L_h2poll:")
    A("s_waitcnt vmcnt(0)")
    untag(chk4([64, 68, 72, 76]))
    A("s_cbranch_vccz L_h2ok")
    for i in range(4):
        ld2(i)
    A(f"s_add_u32 s{sSPIN}, s{sSPIN}, 1\ns_cmp_lt_u32 s{sSPIN}, s{sLIM}\ns_cbranch_scc1 L_h2poll")
    A("L_h2ok:")
    stamp(6, 0)
    padd(64, 64, 72, 8)
    padd(64, 64, 68, 4)
    red4(64)
    A(f"v_cvt_pk_bf16_f32 v64, v64, v65\nv_and_b32 v65, s{sHI}, v64\nv_lshlrev_b32 v64, 16, v64")
    A(f"v_mul_f32 v64, v64, v{vG}\nv_mul_f32 v65, v65, v{vG+1}")
    A(f"v_cvt_pk_bf16_f32 v64, v64, v65\nv_and_b32 v65, s{sHI}, v64\nv_lshlrev_b32 v64, 16, v64")
    A("v_add_f32 v64, v64, v50\nv_add_f32 v65, v65, v51\nv_cvt_pk_bf16_f32 v64, v64, v65")
    A("s_mov_b32 exec_lo, 15\ns_mov_b32 exec_hi, 15")
    A(f"buffer_store_dword v64, v{vOA}, {s4(rA)}, s{sT3} offen")
    A(f"s_cmp_lg_u32 s{sJJ}, 0\ns_cbranch_scc1 L_fin")
    A(f"s_mov_b64 exec, 1\nv_mov_b32 v65, s{sTAG}\ns_mov_b32 s{sT1}, {WS_EPOCH}")
    A(f"buffer_store_dword v65, v7, {s4(rWS)}, s{sT1} offen")
    A("L_fin:")
    if stamps:
        A("s_mov_b64 exec, -1")
        A("s_waitcnt vmcnt(0)")
        stamp(7)
        A("s_waitcnt lgkmcnt(0)")
        if span is not None:
            A(f"s_cmp_lg_u32 s{sW}, {span[0]}\ns_cbranch_scc1 L_skout")
            if len(span) > 2:
                A(f"s_cmp_lg_u32 s{sX8}, {span[2]}\ns_cbranch_scc1 L_skout")
            srd(rB, 44, 256)
            A(f"buffer_load_dword v16, v7, {s4(rB)}, 0 offen offset:64 sc1\ns_waitcnt vmcnt(0)\nv_readfirstlane_b32 s{sT2}, v16\ns_nop 3")
            A(f"s_not_b32 s{sT0}, s{sT2}\ns_sub_u32 s{sT2}, s{sST+2*span[1]}, s{sT0}\ns_sub_u32 s{sT2}, s{sT2}, 3000\ns_mul_i32 s{sT2}, s{sT2}, 10\ns_min_u32 s{sT2}, s{sT2}, 100000")
            A(f"s_add_u32 s{sT2}, s{sT2}, s{sT0}\ns_add_u32 s{sT2}, s{sT2}, 10000")
            A("L_skpad:")
            A(f"s_memrealtime {s2(sH)}\ns_waitcnt lgkmcnt(0)\ns_sub_u32 s{sT3}, s{sH}, s{sT2}\ns_cmp_lt_i32 s{sT3}, 0\ns_cbranch_scc1 L_skpad")
            A("L_skout:")
        for i in range(8):
            A(f"v_mov_b32 v{96+i}, s{sST+2*i}")
        A(f"s_mul_i32 s{sT1}, s2, 5\ns_add_u32 s{sT1}, s{sT1}, s{sW}\ns_lshl_b32 s{sT1}, s{sT1}, 5\ns_add_u32 s{sT1}, s{sT1}, {WS_STAMP}")
        A("s_mov_b64 exec, 1")
        A(f"buffer_store_dwordx4 v[96:99], v7, {s4(rWS)}, s{sT1} offen")
        A(f"buffer_store_dwordx4 v[100:103], v7, {s4(rWS)}, s{sT1} offen offset:16")
    A("L_end:")
    A("s_endpgm")

    out = HEADER
    out += f"; @launch grid=(256,1,1) block=(320,1,1) lds={LDS_BYTES}\n"
    out += '.amdgcn_target "amdgcn-amd-amdhsa--gfx950"\n.text\n'
    out += f".globl {KNAME}_kernel\n.p2align 8\n.type {KNAME}_kernel,@function\n"
    out += "\n".join(A.L) + "\n"
    out += f""".section .rodata,"a"
.p2align 6
.amdhsa_kernel {KNAME}_kernel
  .amdhsa_next_free_vgpr 216
  .amdhsa_next_free_sgpr 102
  .amdhsa_accum_offset 216
  .amdhsa_group_segment_fixed_size 0
  .amdhsa_kernarg_size 96
  .amdhsa_user_sgpr_count 2
  .amdhsa_user_sgpr_kernarg_segment_ptr 1
  .amdhsa_system_sgpr_workgroup_id_x 1
.end_amdhsa_kernel
"""
    return out


if __name__ == "__main__":
    kw = json.loads(sys.argv[2]) if len(sys.argv) > 2 else {}
    open(sys.argv[1], "w").write(gen(**kw))
```

```python
import sys, json, struct

KNAME = "recurrent_scan__gqa_block_cached__glu_gated_glu__decode"
HEADER = open("cdna_kernels/" + KNAME + ".s.ref").read().split("; Override launch")[0]

def f2u(x):
    return struct.unpack("<I", struct.pack("<f", x))[0]

LOG2E = 1.4426950408889634
X_H1 = 0x0
X_QX = 0x10000
X_G1 = 0x12000
X_LS = 0x14000
X_PG = 0x14400
X_LINES = 21
X_H2 = 0x15000
X_QXFAR = 0xC000
WS_EPOCH = 0x1F000
WS_GL = 0x100000
WS_STAMP = 0x1000000
WS_SIZE = 0x20000000
L_Q = 0
L_FLAG = 1024
F_RDY = L_FLAG
F_GUP = L_FLAG + 4
F_DONE = L_FLAG + 8
F_QH = L_FLAG + 16
F_XN = L_FLAG + 20
F_MX = L_FLAG + 24
F_PD = L_FLAG + 32
F_SC = L_FLAG + 40
F_WIN = L_FLAG + 44
F_TG = L_FLAG + 48
L_MX = 1152
L_LS = 1216
L_SC = 1280
L_HB = 1536
L_RED = 2048
L_XN = L_RED
L_P = 4096
L_WD = 20480
L_RING = 28672
NSLOT = 8
L_WO = L_RING
LDS_BYTES = L_RING + NSLOT * 16384
U0 = 5

sXB = 0
sFL = 3
sMODE, sLIM, sI1, sO2 = 14, 15, 24, 25
sGL = 83
sTW = 82
sPM = 48
sX, sK, sV, sWQ, sWO, sBX, sWG, sWU, sWD, sOUT, sDBG, sWS = 4, 6, 8, 10, 12, 14, 16, 18, 20, 22, 24, 26
rK, rV, rWS, rA, rB, rC, rD = 28, 32, 36, 40, 44, 48, 52
sW, sX8, sJJ, sCB, sSUB = 56, 57, 58, 59, 60
sC, sTHR, sCNT, sTAG = 61, 62, 63, 64
sSELL, sSELH, sSCALE, sLOG2E, sHI = 65, 66, 67, 68, 69
sT0, sT1, sT2, sT3 = 70, 71, 72, 73
sH = 74
sSPIN = 84
sLB = 85
sST = 86
TX4 = 8; TX2 = 12; vX0 = 14; vX1 = 15
vWO, vWT, vRW, vRR, vO2, vO1, vWA = 192, 128, 208, 209, 210, 211, 212
vI2, vOA = 214, 215
sI2 = 28


DOC = '''; ---------------------------------------------------------------------------------------------------
; ---------------------------------------------------------------------------------------------------
'''


class G:
    def __init__(self):
        self.L = []
        self.n = 0
    def __call__(self, s):
        for line in s.strip("\n").split("\n"):
            self.L.append("    " + line.strip() if not line.strip().endswith(":") else line.strip())
    def label(self, base):
        self.n += 1
        return f"L_{base}_{self.n}"


def v4(r):
    return f"v[{r}:{r+3}]"
def v2(r):
    return f"v[{r}:{r+1}]"
def s4(r):
    return f"s[{r}:{r+3}]"
def s2(r):
    return f"s[{r}:{r+1}]"


def gen(win=20, wins=(20, 21, 22, 24, 27), bias=64, ebias=224, gs=8, endstop=48, psleep=8, wwo=20, worder=(1, 2, 0, 3),
        nb=(4, 4, 4, 4, 3, 3, 3, 3), b0=-64, tdel=0, g2gate=24, g3gate=48, lsgate=100, prept=30, qsleep=4, qtry=96, unq=2,
        etouch=1, pgate=12, stamps=False, smode=0, span=None, skip=0, force=0):
    A = G()
    kvflags = wflags = "nt"
    csleep = h1sleep = h2sleep = 0
    if span is not None:
        stamps = True; smode = 9

    def srd(r, base, size):
        A(f"s_mov_b32 s{r}, s{base}\ns_mov_b32 s{r+1}, s{base+1}\ns_mov_b32 s{r+2}, {size}\ns_mov_b32 s{r+3}, 0x20000")

    def stamp(i, mode=None):
        if stamps and (mode is None or mode == smode):
            A(f"s_memrealtime {s2(sST + 2 * i)}")

    def lgkm(n):
        A(f"s_waitcnt lgkmcnt({n})")

    def swap_red(r, t, op, kinds=("16", "32")):
        for k in kinds:
            A(f"v_mov_b32 v{t}, v{r}\ns_nop 1\nv_permlane{k}_swap_b32 v{r}, v{t}\ns_nop 1\n{op} v{r}, v{r}, v{t}")

    def wave_red(r, t, op, rors):
        for k in rors:
            A(f"s_nop 1\n{op} v{r}, v{r}, v{r} row_ror:{k}")
        swap_red(r, t, op)

    def rnd_bf16(r):
        A(f"v_cvt_pk_bf16_f32 v{r}, v{r}, v{r}\nv_and_b32 v{r}, 0xffff0000, v{r}")

    def ln_stats(X, mean, rstd, F):
        D = F + 8
        for k in range(4):
            A(f"v_lshlrev_b32 v{F+2*k}, 16, v{X+k}\nv_and_b32 v{F+2*k+1}, s{sHI}, v{X+k}")
        A(f"v_add_f32 v{mean}, v{F}, v{F+1}")
        for k in range(2, 8):
            A(f"v_add_f32 v{mean}, v{mean}, v{F+k}")
        wave_red(mean, vX0, "v_add_f32", (8, 4, 2, 1))
        A(f"v_mul_f32 v{mean}, {hex(f2u(1/512))}, v{mean}")
        for k in range(8):
            A(f"v_sub_f32 v{D+k}, v{F+k}, v{mean}")
        A(f"v_mul_f32 v{rstd}, v{D}, v{D}")
        for k in range(1, 8):
            A(f"v_fmac_f32 v{rstd}, v{D+k}, v{D+k}")
        wave_red(rstd, vX0, "v_add_f32", (8, 4, 2, 1))
        A(f"v_mul_f32 v{rstd}, {hex(f2u(1/512))}, v{rstd}")
        rnd_bf16(mean); rnd_bf16(rstd)
        A(f"v_add_f32 v{rstd}, {hex(f2u(1e-5))}, v{rstd}")
        rnd_bf16(rstd)
        A(f"v_sqrt_f32 v{rstd}, v{rstd}\ns_nop 0")
        rnd_bf16(rstd)
        A(f"v_rcp_f32 v{rstd}, v{rstd}")

    def ln_apply(X, mean, rstd, D):
        for k in range(4):
            A(f"v_lshlrev_b32 v{D+2*k}, 16, v{X+k}\nv_and_b32 v{D+2*k+1}, s{sHI}, v{X+k}")
        for k in range(8):
            A(f"v_sub_f32 v{D+k}, v{D+k}, v{mean}")
        for k in range(4):
            A(f"v_cvt_pk_bf16_f32 v{X+k}, v{D+2*k}, v{D+2*k+1}")
        for k in range(4):
            A(f"v_lshlrev_b32 v{D+2*k}, 16, v{X+k}\nv_and_b32 v{D+2*k+1}, s{sHI}, v{X+k}")
        for k in range(8):
            A(f"v_mul_f32 v{D+k}, v{D+k}, v{rstd}")
        for k in range(4):
            A(f"v_cvt_pk_bf16_f32 v{X+k}, v{D+2*k}, v{D+2*k+1}")

    def matvec8(W, xs, acc, tmp, first=True):
        for j in range(4):
            for u in range(4):
                A(f"v_perm_b32 v{tmp+2*u}, v{W+(2*j+1)*4+u}, v{W+(2*j)*4+u}, s{sSELL}")
                A(f"v_perm_b32 v{tmp+2*u+1}, v{W+(2*j+1)*4+u}, v{W+(2*j)*4+u}, s{sSELH}")
            for e in range(8):
                c = "0" if (j == 0 and first) else f"v{acc+e}"
                A(f"v_dot2_f32_bf16 v{acc+e}, {xs[j]}, v{tmp+e}, {c}")
        A("s_nop 2")

    def reduce8(acc):
        A("s_nop 1")
        for e in range(4):
            A(f"v_permlane32_swap_b32 v{acc+e}, v{acc+4+e}")
        A("s_nop 1")
        for e in range(4):
            A(f"v_add_f32 v{acc+e}, v{acc+e}, v{acc+4+e}")
        A("s_nop 1")
        for e in range(2):
            A(f"v_permlane16_swap_b32 v{acc+e}, v{acc+2+e}")
        A("s_nop 1")
        for e in range(2):
            A(f"v_add_f32 v{acc+e}, v{acc+e}, v{acc+2+e}")
        A("s_nop 0")
        for e in range(2):
            A(f"v_add_f32 v{acc+e}, v{acc+e}, v{acc+e} row_ror:8")
        A("s_nop 0")

    def red4(a):
        A("s_nop 1")
        A(f"v_permlane32_swap_b32 v{a}, v{a+2}\nv_permlane32_swap_b32 v{a+1}, v{a+3}")
        A("s_nop 0")
        A(f"v_add_f32 v{a}, v{a}, v{a+2}\nv_add_f32 v{a+1}, v{a+1}, v{a+3}")
        for k in (8, 4):
            A("s_nop 0")
            A(f"v_add_f32 v{a}, v{a}, v{a} row_ror:{k}\nv_add_f32 v{a+1}, v{a+1}, v{a+1} row_ror:{k}")
        A(f"v_mov_b32 v{a+2}, v{a}\nv_mov_b32 v{a+3}, v{a+1}\ns_nop 0")
        A(f"v_permlane16_swap_b32 v{a}, v{a+2}\nv_permlane16_swap_b32 v{a+1}, v{a+3}")
        A("s_nop 0")
        A(f"v_add_f32 v{a}, v{a}, v{a+2}\nv_add_f32 v{a+1}, v{a+1}, v{a+3}")

    def lds_wait(addr, sreg, thr, name, sleep=1, vaddr=7, cached=False, pair=False):
        top = A.label(name); done = A.label(name + "_ok")
        if cached:
            A(f"s_cmp_ge_i32 s{sreg}, {thr}\ns_cbranch_scc1 {done}")
        A(f"s_mov_b32 s{sSPIN}, 0")
        A(f"{top}:")
        if pair:
            A(f"ds_read_b64 {v2(vX0)}, v{vaddr} offset:{addr}\ns_waitcnt lgkmcnt(0)\nv_min_i32 v{vX0}, v{vX0}, v{vX1}\ns_nop 0")
        else:
            A(f"ds_read_b32 v{vX0}, v{vaddr} offset:{addr}\ns_waitcnt lgkmcnt(0)")
        A(f"v_readfirstlane_b32 s{sreg}, v{vX0}")
        A(f"s_add_u32 s{sSPIN}, s{sSPIN}, 1")
        A(f"s_cmp_ge_i32 s{sreg}, {thr}\ns_cbranch_scc1 {done}")
        if sleep:
            A(f"s_sleep {sleep}")
        A(f"s_cmp_lt_u32 s{sSPIN}, 0x100000\ns_cbranch_scc1 {top}")
        A(f"{done}:")

    def lds_flag(addr, val=1, vaddr=7):
        A(f"v_mov_b32 v{vX0}, {val}\nds_write_b32 v{vaddr}, v{vX0} offset:{addr}")

    def make_tags():
        A(f"s_waitcnt lgkmcnt(0)\ns_add_u32 s{sTAG}, s{sTAG}, 0x9E3779B1")
        A(f"v_and_b32 v5, 1, v1\nv_lshlrev_b32 v5, 4, v5\nv_lshrrev_b32 v5, v5, s{sTAG}")
        for k in range(4):
            A(f"v_bfe_u32 v{TX4+k}, v5, {4*k}, 4")
        A(f"v_and_b32 v5, 3, v1\nv_lshlrev_b32 v5, 3, v5\nv_lshrrev_b32 v5, v5, s{sTAG}")
        for k in range(2):
            A(f"v_bfe_u32 v{TX2+k}, v5, {4*k}, 4")

    def embed(dst, src, tag):
        A(f"v_and_or_b32 v{dst}, v{src}, -16, v{tag}")

    def untag(checks):
        for r, t in checks:
            A(f"v_xor_b32 v{r}, {t}, v{r}")
        rs = [r for r, _ in checks]
        A(f"v_or_b32 v{vX0}, v{rs[0]}, v{rs[1]}")
        for i in range(2, len(rs), 2):
            A(f"v_or3_b32 v{vX0}, v{vX0}, v{rs[i]}, v{rs[i+1]}")
        A(f"v_and_b32 v{vX0}, 15, v{vX0}\nv_cmp_ne_u32 vcc, 0, v{vX0}")

    def padd(d, a, b, n):
        for e in range(0, n, 2):
            A(f"v_pk_add_f32 {v2(d+e)}, {v2(a+e)}, {v2(b+e)}")

    def poll(loads, checks, name, sleep=0, full=False, landed=None):
        top = A.label(name); done = A.label(name + "_ok")
        A(f"s_mov_b32 s{sSPIN}, 0")
        A(f"{top}:")
        for l in loads:
            A(l)
        A("s_waitcnt vmcnt(0)")
        if landed:
            A(landed)
        if full:
            A(f"v_xor_b32 v{vX0}, {checks[0][1]}, v{checks[0][0]}")
            for r, t in checks[1:]:
                A(f"v_bitop3_b32 v{vX0}, v{vX0}, v{r}, {t} bitop3:0xf6")
            A(f"v_cmp_ne_u32 vcc, 0, v{vX0}")
        else:
            untag(checks)
        A(f"s_cbranch_vccz {done}")
        if sleep:
            A(f"s_sleep {sleep}")
        A(f"s_add_u32 s{sSPIN}, s{sSPIN}, 1\ns_cmp_lt_u32 s{sSPIN}, s{sLIM}\ns_cbranch_scc1 {top}")
        A(f"{done}:")

    def store2(line, cond_scc1_near):
        far = A.label("far"); done = A.label("st")
        A(cond_scc1_near)
        A(f"s_cbranch_scc0 {far}\n{line}\ns_branch {done}\n{far}:\n{line} sc1\n{done}:")

    def chk4(regs):
        return [(r + k, f"v{TX4+k}") for r in regs for k in range(4)]

    def next_slot(step):
        A(f"s_add_u32 s{sLB}, s{sLB}, {step*16384}\ns_and_b32 s{sLB}, s{sLB}, {NSLOT*16384-1}")

    def tail_prep():
        A(f"v_bfe_u32 v5, v1, 2, 3\nv_lshlrev_b32 v5, 7, v5\nv_lshrrev_b32 v6, 5, v1\nv_lshl_add_u32 v5, v6, 17, v5")
        A(f"v_and_b32 v{vOA}, 3, v1\nv_lshl_add_u32 v{vI2}, v{vOA}, 4, v5\nv_lshl_add_u32 v{vOA}, v{vOA}, 1, v6\nv_lshlrev_b32 v{vOA}, 2, v{vOA}")
        A(f"v_bfe_u32 v5, v1, 2, 2\nv_mul_u32_u24 v5, 0x140, v5\nv_lshrrev_b32 v6, 4, v1\nv_lshlrev_b32 v6, 5, v6\nv_xor_b32 v5, v5, v6")
        A(f"v_and_b32 v6, 3, v1\nv_lshl_add_u32 v5, v6, 3, v5\ns_lshl_b32 s{sT2}, s{sTW}, 12\nv_add_u32 v{vWA}, s{sT2}, v5\nv_xor_b32 v{vWA+1}, 0x80, v{vWA}")
        A(f"s_and_b32 s{sT2}, s{sJJ}, 28\ns_add_u32 s{sT2}, s{sT2}, s{sTW}\ns_lshl_b32 s{sT2}, s{sT2}, 11\ns_add_u32 s{sI1}, s{sXB}, s{sT2}")
        A(f"s_lshl_b32 s{sT2}, s{sTW}, 9\ns_add_u32 s{sT2}, s{sT2}, {L_RED}\nv_lshl_add_u32 v{vRW}, v1, 2, s{sT2}\nv_lshlrev_b32 v{vRR}, 3, v1")
        A(f"v_and_b32 v5, 15, v1\nv_lshlrev_b32 v5, 3, v5\nv_lshrrev_b32 v6, 4, v1\nv_lshl_add_u32 v{vO2}, v6, 10, v5")
        A(f"s_and_b32 s{sO2}, s{sJJ}, 3\ns_lshl_b32 s{sO2}, s{sO2}, 12\ns_add_u32 s{sO2}, s{sO2}, s{sXB}")
        A(f"s_lshr_b32 s{sT2}, s{sJJ}, 2\ns_lshl_b32 s{sT2}, s{sT2}, 7\ns_add_u32 s{sO2}, s{sO2}, s{sT2}\ns_add_u32 s{sO2}, s{sO2}, {X_H2}")

    def sigmoid(dst, src):
        A(f"v_mul_f32 v{dst}, s{sLOG2E}, v{src}\nv_exp_f32 v{dst}, -v{dst}\ns_nop 0\nv_add_f32 v{dst}, 1.0, v{dst}\nv_rcp_f32 v{dst}, v{dst}\ns_nop 0")

    A("; ======== entry")
    A(f"{KNAME}_kernel:")
    A("s_cmpk_ge_u32 s2, 0x100\ns_cbranch_scc1 L_end")
    stamp(0)
    A(f"s_load_dwordx16 s[4:19], s[0:1], 0\ns_load_dwordx8 s[20:27], s[0:1], 64")
    A(f"v_and_b32 v1, 63, v0\nv_readfirstlane_b32 s{sW}, v0")
    A(f"s_and_b32 s{sX8}, s2, 7\ns_lshr_b32 s{sJJ}, s2, 3")
    A("v_lshlrev_b32 v4, 4, v1")
    A("v_lshrrev_b32 v2, 3, v1\nv_and_b32 v3, 0x70, v4")
    A(f"s_mov_b32 s{rA+3}, 0x20000\ns_lshr_b32 s{sW}, s{sW}, 6\ns_cbranch_scc1 L_e1")
    A(f"s_and_b32 s{sT1}, s{sJJ}, 7\ns_lshl3_add_u32 s{sT1}, s{sX8}, s{sT1}\ns_lshl_b32 s{sT1}, s{sT1}, 7")
    A(f"s_lshr_b32 s{sT2}, s2, 6\ns_lshl_b32 s{sT2}, s{sT2}, 20\ns_add_u32 s{sT1}, s{sT1}, s{sT2}")
    A(f"v_lshl_add_u32 v5, v2, 17, v3\ns_bfm_b32 s{rA+2}, 1, 22\ns_movk_i32 m0, {L_P}")
    A(f"s_waitcnt lgkmcnt(0)\ns_mov_b64 {s2(rA)}, {s2(sWQ)}")
    stamp(4, 4)
    A("L_wq:")
    A(f"buffer_load_dwordx4 v5, {s4(rA)}, s{sT1} offen {wflags} lds")
    A(f"s_addk_i32 m0, 0x400\ns_addk_i32 s{sT1}, 0x2000\ns_cmpk_lt_u32 m0, {L_P + 16384}\ns_cbranch_scc1 L_wq")
    A("s_branch L_e2")
    A("L_e1:")
    A(f"s_cmp_lg_u32 s{sW}, 2\ns_cbranch_scc1 L_e1b")
    A(f"s_movk_i32 s{rA+2}, 0x400\ns_waitcnt lgkmcnt(0)\ns_mov_b64 {s2(rA)}, {s2(sX)}")
    A(f"buffer_load_dwordx4 v[16:19], v4, {s4(rA)}, 0 offen")
    A("L_e1b:")
    A(f"s_cmp_lg_u32 s{sW}, 1\ns_cbranch_scc1 L_e2")
    A(f"s_getpc_b64 {s2(sT0)}")
    A("L_pc:")
    A(f"s_lshl_b32 s{sT2}, s{sJJ}, 6\nv_add_u32 v5, s{sT2}, v1\nv_mul_u32_u24 v5, 12, v5\nv_min_u32 v5, L_end-L_pc, v5")
    A(f"global_load_dword v16, v5, {s2(sT0)}")
    def xtouch():
        A(f"v_min_u32 v6, {X_LINES-1}, v1\ns_mul_i32 s{sT2}, s{sJJ}, {X_LINES}\ns_lshl_b32 s{sT3}, s{sX8}, 10\ns_add_u32 s{sT2}, s{sT2}, s{sT3}")
        A(f"v_add_lshl_u32 v6, v6, s{sT2}, 7\ns_waitcnt lgkmcnt(0)\nglobal_load_dword v17, v6, {s2(sWS)} sc1")
    if etouch == 1:
        xtouch()
    A("L_e2:")
    A(f"v_and_b32 v6, 15, v1\nv_cmp_eq_u32 vcc, {(F_DONE + 4 - L_FLAG) // 4}, v6\nv_lshlrev_b32 v6, 2, v6\nv_mov_b32 v7, 0")
    A(f"v_cndmask_b32 v5, 0, 1, vcc\nds_write_b32 v6, v5 offset:{L_FLAG}")
    if True:
        A("; GLU roles: the workgroups of head x hold nb[x] blocks of 64 hidden columns, 8 workgroups each")
        assert sum(nb) == 28
        free = [sum(4 - n for n in nb[:x]) for x in range(8)]
        tab = sum((nb[x] & 7 | (free[x] & 7) << 4) << (8 * x) for x in range(8))
        A(f"s_mov_b32 s{sT0}, {hex(tab & 0xffffffff)}\ns_mov_b32 s{sT1}, {hex(tab >> 32)}\ns_lshl_b32 s{sT2}, s{sX8}, 3\ns_lshr_b64 {s2(sT0)}, {s2(sT0)}, s{sT2}")
        A(f"s_bfe_u32 s{sT1}, s{sT0}, 0x30004\ns_and_b32 s{sT0}, s{sT0}, 7\ns_lshr_b32 s{sT2}, s{sJJ}, 3\ns_and_b32 s{sSUB}, s{sJJ}, 7")
        A(f"s_lshl2_add_u32 s{sCB}, s{sX8}, s{sT2}\ns_sub_u32 s{sCB}, s{sCB}, s{sT1}")
        A(f"s_cmp_lt_u32 s{sT2}, s{sT0}\ns_cselect_b32 s{sGL}, 1, 0")
    A(f"s_mov_b32 s{sSELL}, 0x05040100\ns_mov_b32 s{sSELH}, 0x07060302")
    A(f"s_mov_b32 s{sSCALE}, {hex(f2u(128 ** -0.5))}\ns_mov_b32 s{sLOG2E}, {hex(f2u(LOG2E))}\ns_mov_b32 s{sHI}, 0xffff0000")
    if stamps:
        for i in range(1, 8):
            if not (smode == 4 and i == 4):
                A(f"s_mov_b64 {s2(sST+2*i)}, 0")
    A("s_waitcnt lgkmcnt(0)")
    A("s_barrier")
    stamp(5, 5)
    if stamps:
        srd(rWS, sWS, hex(WS_SIZE))
        srd(rB, sDBG, 256)
    A(f"s_cmp_lg_u32 s{sW}, 0\ns_cbranch_scc1 L_notloader")

    D = win
    first_k = (D - 1) % 8
    vCNT = 24
    cnt = [0]
    def ld(line, static=False):
        i = cnt[0]
        if not static or i >= D:
            A(f"s_waitcnt vmcnt({D-1})")
        if static and i == D - 1: stamp(5, 4)
        if static and i == D: stamp(6, 4)
        A(line)
        if i % 8 == first_k and (not static or i >= D - 1 + 8):
            A(f"ds_write_b32 v7, v{vCNT} offset:{F_RDY}\nv_add_u32 v{vCNT}, 8, v{vCNT}")
        cnt[0] += 1
    A(f"v_mov_b32 v{vCNT}, 8")
    cnt[0] = 16
    assert D >= 16
    A(f"s_mul_i32 s{sT3}, s{sGL}, {hex(512 * 1792 * 2)}")
    srd(rD, sWD, f"s{sT3}")
    A(f"s_cmp_lt_u32 s{sSUB}, 4\ns_cselect_b32 s{rB}, s{sWG}, s{sWU}\ns_cselect_b32 s{rB+1}, s{sWG+1}, s{sWU+1}")
    A(f"s_mov_b32 s{rB+2}, s{sT3}\ns_mov_b32 s{rB+3}, 0x20000")
    A(f"s_and_b32 s{sT1}, s{sSUB}, 3\ns_mul_i32 s{sT1}, s{sT1}, {128*3584}\ns_lshl_b32 s{sT2}, s{sCB}, 7\ns_add_u32 s{sT1}, s{sT1}, s{sT2}")
    A(f"v_mul_u32_u24 v6, {16*3584}, v2\nv_add_u32 v6, v6, v3")
    L_GU = L_RING + (NSLOT - 1) * 16384
    for i in range(16):
        A(f"s_mov_b32 m0, {L_GU + 1024*i}")
        A(f"s_add_u32 s{sT2}, s{sT1}, {3584*i}")
        ld(f"buffer_load_dwordx4 v6, {s4(rB)}, s{sT2} offen {wflags} lds", True)
    A(f"s_lshl_b32 s{sT1}, s{sCB}, 16\ns_lshl_b32 s{sT2}, s{sSUB}, 7\ns_add_u32 s{sT1}, s{sT1}, s{sT2}")
    A(f"v_lshl_add_u32 v5, v2, 13, v3")
    for i in range(8):
        if i % 4 == 0:
            A(f"s_mov_b32 m0, {L_WD + 1024*i}")
            A(f"s_add_u32 s{sT2}, s{sT1}, {1024*i}")
        ld(f"buffer_load_dwordx4 v5, {s4(rD)}, s{sT2} offen offset:{1024*(i%4)} {wflags} lds", True)
    srd(rA, sWO, hex(4096 * 512 * 2))
    A(f"s_lshl_b32 s{sT1}, s{sX8}, 9\ns_lshr_b32 s{sT2}, s{sJJ}, 4\ns_lshl_b32 s{sT2}, s{sT2}, 6\ns_add_u32 s{sT1}, s{sT1}, s{sT2}")
    A(f"s_and_b32 s{sT2}, s{sJJ}, 12\ns_add_u32 s{sT1}, s{sT1}, s{sT2}\ns_lshl_b32 s{sT1}, s{sT1}, 10")
    A(f"s_and_b32 s{sT2}, s{sJJ}, 3\ns_lshl_b32 s{sT2}, s{sT2}, 8\ns_add_u32 s{sT1}, s{sT1}, s{sT2}")
    A(f"v_lshrrev_b32 v6, 4, v1\nv_mul_u32_u24 v6, 0x440, v6\nv_and_b32 v25, 0xf0, v4\nv_xor_b32 v6, v6, v25")
    A(f"s_mov_b32 s{sH+3}, s{sT1}")
    assert cnt[0] == 8 * U0 and D + 7 <= 8 * U0
    stamp(1)
    A(f"s_lshl_b32 s{sT0}, s{sX8}, 24\ns_lshl_b32 s{sT1}, s{sJJ}, 19\ns_add_u32 s{sT0}, s{sT0}, s{sT1}")
    A(f"s_add_u32 s{rK}, s{sK}, s{sT0}\ns_addc_u32 s{rK+1}, s{sK+1}, 0\ns_mov_b32 s{rK+2}, 0x80000\ns_mov_b32 s{rK+3}, 0x20000")
    A(f"s_add_u32 s{rV}, s{sV}, s{sT0}\ns_addc_u32 s{rV+1}, s{sV+1}, 0\ns_mov_b32 s{rV+2}, 0x80000\ns_mov_b32 s{rV+3}, 0x20000")
    A("v_and_b32 v27, 0xf0, v4\nv_bfe_u32 v5, v1, 4, 1\nv_lshl_add_u32 v27, v5, 9, v27\nv_lshrrev_b32 v5, 5, v1\nv_lshl_add_u32 v27, v5, 13, v27")
    A("v_lshrrev_b32 v5, 4, v1\nv_lshlrev_b32 v5, 6, v5\nv_xor_b32 v16, v27, v5")
    A("v_and_b32 v5, 16, v1\nv_lshlrev_b32 v5, 1, v5\nv_xor_b32 v20, v27, v5")
    for n in range(1, 4):
        A(f"v_xor_b32 v{16+n}, {16*n}, v16\nv_xor_b32 v{20+n}, {64*n}, v20")
    sI, sLV = sH + 1, sH + 2
    NV = 8 * U0 + 1024
    NLD = NV + 16
    A(f"s_mov_b32 s{sCNT}, 0\ns_mov_b32 s{sLB}, 0\ns_mov_b32 s{sFL}, 0\ns_mov_b32 s{sH}, 0\ns_mov_b32 s{sI}, {8*U0}\nv_mov_b32 v25, 0\nv_subrev_u32 v26, 8, v{vCNT}")
    A("L_tile:")
    A(f"s_cmp_lg_u32 s{sCNT}, 32\ns_cbranch_scc1 L_nosw")
    stamp(4, 1); stamp(5, 3)
    A(f"s_mov_b64 {s2(rK)}, {s2(rV)}\ns_mov_b32 s{sH}, 0")
    for n in range(4):
        A(f"v_mov_b32 v{16+n}, v{20+n}")
    A("L_nosw:")
    A(f"s_sub_u32 s{sTHR}, s{sCNT}, {NSLOT-1}")
    A(f"s_cmp_lg_u32 s{sTHR}, 0\ns_cbranch_scc1 L_nogup")
    lds_wait(F_GUP, sT2, 1, "gup", sleep=0)
    stamp(2)
    A("L_nogup:")
    lds_wait(F_DONE, sFL, f"s{sTHR}", "free", sleep=0, cached=True, pair=True)
    A(f"s_add_u32 m0, s{sLB}, {L_RING}")
    A(f"s_waitcnt lgkmcnt(0)\nv_readfirstlane_b32 s{sLV}, v25\nds_read_b32 v25, v7 offset:{F_WIN}")
    for k in range(1, len(wins)):
        A(f"s_cmp_eq_u32 s{sLV}, {k}\ns_cbranch_scc1 L_ver{k}")
    def version(idx):
        W = wins[idx]
        A(f"L_ver{idx}:")
        A(f"s_sub_u32 s{sT2}, s{sI}, {W-1}\nv_mov_b32 v{vCNT}, s{sT2}")
        A(f"L_vq{idx}:")
        for hq in range(unq):
            for n in range(4):
                A(f"s_waitcnt vmcnt({W-1})")
                A(f"buffer_load_dwordx4 v{16+n}, {s4(rK)}, s{sH} offen offset:{1024*n} {kvflags} lds")
                if n == 0:
                    A(f"v_max_i32 v26, v26, v{vCNT}\nv_add_u32 v{vCNT}, 4, v{vCNT}\nds_write_b32 v7, v26 offset:{F_RDY}")
            A(f"s_addk_i32 m0, 0x1000\ns_addk_i32 s{sH}, {(0x100, 0xf00)[hq % 2]}")
        if unq < 4:
            A(f"s_and_b32 s{sT2}, s{sH}, 0x1fff\ns_cbranch_scc1 L_vq{idx}")
    version(0)
    A("L_qend:")
    A(f"s_add_u32 s{sI}, s{sI}, 16\ns_addk_i32 s{sH}, 0x2000")
    next_slot(1)
    if stamps and smode == 3:
        for q in range(2):
            A(f"s_cmp_lg_u32 s{sCNT}, {32*q+15}\ns_cbranch_scc1 L_np{q}")
            stamp(4 + 2 * q, 3)
            A(f"L_np{q}:")
    A(f"s_add_u32 s{sCNT}, s{sCNT}, 1\ns_cmp_lt_u32 s{sCNT}, 64\ns_cbranch_scc1 L_tile")
    def pub(val):
        A(f"v_max_i32 v26, {val}, v26\nds_write_b32 v7, v26 offset:{F_RDY}")
    lds_wait(F_DONE, sFL, 64 - NSLOT + 1, "freew", sleep=0, cached=True, pair=True)
    for r in (24, 16, 8):
        if wwo <= r:
            A(f"s_waitcnt vmcnt({r})"); pub(NV - r)
    for i in range(16):
        w, h = worder[i // 4], i % 4
        A(f"s_mov_b32 m0, {L_WO + 4096*w + 1024*h}\ns_add_u32 s{sT2}, s{sH+3}, {(128*h + 16*w)*1024}")
        A(f"s_waitcnt vmcnt({wwo-1})")
        d = i - wwo + 1
        if d % 8 == 0 or (d > 0 and d % 4 == 0):
            pub(NV + d)
            if d == 0:
                stamp(3)
        A(f"buffer_load_dwordx4 v6, {s4(rA)}, s{sT2} offen {wflags} lds")
    for rem in range((wwo - 1) // 4 * 4, -1, -4):
        if rem <= 16 or rem % 8 == 0:
            A(f"v_max_i32 v26, {NLD - rem}, v26\ns_waitcnt vmcnt({rem})\nds_write_b32 v7, v26 offset:{F_RDY}")
            if rem == 16:
                stamp(3)
    A("s_branch L_fin")

    for k in range(1, len(wins)):
        version(k)
        A("s_branch L_qend")
    A("L_pace:")
    if span is not None:
        A(f"s_cmp_lg_u32 s{sJJ}, 0\ns_cbranch_scc1 L_nosk")
        A(f"s_not_b32 s{sT0}, s{sST}\nv_mov_b32 v16, s{sT0}\ns_mov_b64 exec, 1\nbuffer_atomic_umax v16, v7, {s4(rB)}, 0 offen offset:64\ns_mov_b64 exec, -1")
        A("L_nosk:")
    A(f"s_mov_b32 s{sTW}, 0")
    tail_prep()
    A(f"s_cmp_lg_u32 s{sX8}, 0\ns_cbranch_scc1 L_noh2\nbuffer_load_dword v20, v{vO2}, {s4(rWS)}, s{sO2} offen sc1\nL_noh2:")
    make_tags()
    lds_flag(F_TG)
    sP, sPP, sS, sPGA, sOWN, sPAR = sH, sH + 1, sH + 2, sH + 3, sH + 4, sH + 5
    A(f"s_getreg_b32 s{sPAR}, hwreg(HW_REG_XCC_ID, 0, 1)\ns_cmp_eq_u32 s{sPAR}, 0")
    A(f"s_cselect_b32 s{sPAR}, {ebias}, 0\ns_add_u32 s{sPAR}, s{sPAR}, {(1 << (gs - 1)) + bias}")
    A(f"s_cmp_eq_u32 s{sX8}, 0\ns_cselect_b32 s{sT0}, {b0}, 0\ns_add_u32 s{sPAR}, s{sPAR}, s{sT0}")
    lds_wait(F_QH, sMODE, 1, "qhp", sleep=8)
    A(f"s_cmp_lg_u32 s{sMODE}, 2\ns_cbranch_scc1 L_late")
    A(f"v_lshlrev_b32 v5, 2, v1\ns_add_u32 s{sPGA}, s{sXB}, {X_PG}\ns_lshl2_add_u32 s{sOWN}, s{sJJ}, s{sPGA}")
    A(f"s_mov_b32 s{sP}, 0\ns_mov_b32 s{sCNT}, 0\ns_and_b32 s{sT3}, s{sTAG}, 0xfffff800")
    A("L_pl:")
    A(f"s_mov_b32 s{sPP}, s{sP}\nds_read_b32 v16, v7 offset:{F_RDY}\ns_waitcnt lgkmcnt(0)\nv_readfirstlane_b32 s{sP}, v16")
    A(f"s_add_u32 s{sCNT}, s{sCNT}, 1\ns_cmp_gt_u32 s{sCNT}, 0x10000\ns_cbranch_scc1 L_late")
    A(f"v_or_b32 v16, s{sT3}, v16")
    A(f"s_mov_b64 exec, 1\nbuffer_store_dword v16, v7, {s4(rWS)}, s{sOWN} offen\ns_mov_b64 exec, -1")
    A(f"s_cmp_ge_u32 s{sP}, {NV - endstop}\ns_cbranch_scc1 L_late")
    A(f"s_mov_b32 exec_hi, 0\nbuffer_load_dword v17, v5, {s4(rWS)}, s{sPGA} offen sc1\ns_waitcnt vmcnt(0)")
    A(f"v_xor_b32 v19, s{sT3}, v17\nv_cmp_lt_u32 vcc, 0x7ff, v19")
    for k in (8, 4, 2, 1):
        A(f"s_nop 1\nv_add_u32 v19, v19, v19 row_ror:{k}")
    A(f"s_cbranch_vccnz L_pnext")
    A(f"v_readlane_b32 s{sS}, v19, 0\nv_readlane_b32 s{sT0}, v19, 16")
    A(f"s_cmp_eq_u32 s{sPP}, 0\ns_cbranch_scc1 L_pnext")
    A(f"s_add_u32 s{sS}, s{sS}, s{sT0}\ns_add_u32 s{sT0}, s{sP}, s{sPP}\ns_lshl_b32 s{sT0}, s{sT0}, 4\ns_sub_u32 s{sT0}, s{sS}, s{sT0}")
    A(f"s_add_u32 s{sT0}, s{sT0}, s{sPAR}\ns_ashr_i32 s{sT0}, s{sT0}, {gs}\ns_max_i32 s{sT0}, s{sT0}, 0\ns_min_i32 s{sT0}, s{sT0}, {len(wins)-1}")
    A(f"v_mov_b32 v16, s{sT0}\nds_write_b32 v7, v16 offset:{F_WIN}")
    A("L_pnext:")
    A(f"s_mov_b64 exec, -1\ns_sleep {psleep}\ns_branch L_pl")

    A("L_notloader:")
    A(f"s_load_dword s{sTAG}, {s2(sWS)}, {WS_EPOCH}")
    A(f"s_mov_b32 s{sLIM}, 0x40000\ns_mov_b32 s{sMODE}, 1\ns_lshl_b32 s{sXB}, s{sX8}, 17")
    srd(rWS, sWS, hex(WS_SIZE))
    A(f"s_mov_b32 s{sTW}, s{sW}\ns_cmp_eq_u32 s{sW}, 4\ns_cbranch_scc1 L_pace")
    A(f"s_cmp_eq_u32 s{sW}, 3\ns_cbranch_scc1 L_help")
    A(f"s_sub_u32 s{sC}, s{sW}, 1")
    A(f"s_cmp_eq_u32 s{sW}, 2\ns_cbranch_scc1 L_w2")
    if etouch == 2:
        xtouch()
    make_tags()
    A("s_branch L_qwait")
    def slice_mv(sKS, lds_base, unit0, after_read=None):
        A(f"s_lshl_b32 s{sT2}, s{sKS}, 8\nv_lshl_add_u32 v5, v2, 5, s{sT2}")
        A(f"ds_read_b128 v[20:23], v5 offset:{L_XN}\nds_read_b128 v[24:27], v5 offset:{L_XN+16}")
        A(f"v_add_u32 v6, {lds_base}, v4")
        for half in range(2):
            lds_wait(F_RDY, sFL, 8 * (unit0 + half + 1), "wsl", sleep=1)
            for i in range(8):
                A(f"ds_read_b128 {v4(64+4*i)}, v6 offset:{8192*half + 1024*i}")
            lgkm(0)
            if half == 1:
                stamp(6, 2)
                if after_read:
                    after_read()
            matvec8(64, [f"v{20+4*half+k}" for k in range(4)], 32, 40, first=(half == 0))
        reduce8(32)
        A(f"v_lshrrev_b32 v6, 4, v1\nv_lshlrev_b32 v6, 6, v6\nv_lshrrev_b32 v5, 1, v3\nv_add_u32 v6, v6, v5")
    A("L_w2:")
    A(f"s_lshr_b32 s{sT3}, s2, 6")
    A("s_waitcnt vmcnt(0)")
    stamp(4, 2)
    ln_stats(16, 28, 29, 32)
    ln_apply(16, 28, 29, 32)
    A(f"ds_write_b128 v4, v[16:19] offset:{L_XN}")
    lds_flag(F_XN)
    stamp(5, 2)
    make_tags()
    slice_mv(sT3, L_P, 0)
    sXC = sH + 4
    A(f"s_getreg_b32 s{sXC}, hwreg(HW_REG_XCC_ID, 0, 4)")
    if force:
        A(f"s_and_b32 s{sXC}, s{sJJ}, 1")
    embed(34, 32, TX2); embed(35, 33, TX2 + 1)
    A(f"v_xor_b32 v32, s{sXC}, v34\nv_xor_b32 v33, s{sXC}, v35")
    A(f"s_add_u32 s{sH}, s{sXB}, {X_QX}\ns_lshl_b32 s{sT2}, s{sJJ}, 8\ns_add_u32 s{sT1}, s{sH}, s{sT2}")
    A("s_mov_b32 exec_lo, 0x00ff00ff\ns_mov_b32 exec_hi, 0x00ff00ff")
    A(f"buffer_store_dwordx2 v[32:33], v6, {s4(rWS)}, s{sT1} offen")
    A("s_mov_b64 exec, -1")
    stamp(1)
    for k in range(4):
        A(f"v_xor_b32 v{36+k}, s{sXC}, v{TX4+k}")
    A(f"s_add_u32 s{sH+1}, s{sH}, 4096\ns_mov_b32 s{sMODE}, 2")
    A(f"s_mov_b32 s{sSPIN}, 0")
    A("L_qpoll:")
    for i in range(8):
        A(f"buffer_load_dwordx4 {v4(64+4*i)}, v4, {s4(rWS)}, s{sH+i//4} offen offset:{1024*(i%4)} sc1")
    A("s_waitcnt vmcnt(0)")
    untag([(64 + i, f"v{36+i%4}") for i in range(32)])
    A("s_cbranch_vccz L_qok")
    A(f"s_sleep {qsleep}\ns_add_u32 s{sSPIN}, s{sSPIN}, 1\ns_cmp_lt_u32 s{sSPIN}, {qtry}\ns_cbranch_scc1 L_qpoll")
    A(f"s_cmp_lg_u32 s{sSPIN}, {qtry}\ns_cbranch_scc1 L_qflip")
    A(f"s_xor_b32 s{sT1}, s{sT1}, {X_QXFAR}")
    A("s_mov_b32 exec_lo, 0x00ff00ff\ns_mov_b32 exec_hi, 0x00ff00ff")
    A(f"buffer_store_dwordx2 v[34:35], v6, {s4(rWS)}, s{sT1} offen sc1")
    A("s_mov_b64 exec, -1")
    A("L_qflip:")
    A(f"s_xor_b32 s{sH}, s{sH}, {X_QXFAR}\ns_xor_b32 s{sH+1}, s{sH+1}, {X_QXFAR}\ns_xor_b32 s{sMODE}, s{sMODE}, 3")
    for k in range(4):
        A(f"v_xor_b32 v{36+k}, s{sXC}, v{36+k}")
    A(f"s_cmp_lt_u32 s{sSPIN}, s{sLIM}\ns_cbranch_scc1 L_qpoll")
    A("L_qok:")
    for e in range(8):
        A(f"v_add_f32 v{64+e}, v{64+e}, v{72+e}\nv_add_f32 v{80+e}, v{80+e}, v{88+e}")
    for e in range(8):
        A(f"v_add_f32 v{64+e}, v{64+e}, v{80+e}")
    for e in range(4):
        A(f"v_cvt_pk_bf16_f32 v{64+e}, v{64+2*e}, v{65+2*e}")
    A(f"v_lshrrev_b32 v6, 4, v1\nv_lshlrev_b32 v6, 7, v6\nv_and_b32 v5, 3, v1\nv_lshl_add_u32 v6, v5, 5, v6")
    A(f"v_and_b32 v5, 12, v1\nv_add_u32 v6, v6, v5")
    for e in range(4):
        A(f"ds_write_b32 v6, v{64+e} offset:{L_Q + 16*(e&1) + 512*(e>>1)}")
    lds_flag(F_QH, val=f"s{sMODE}")
    A("L_qwait:")
    vOWN, vOTH = 30, 31
    A(f"s_lshl_b32 s{sT2}, s{sC}, 2\nv_mov_b32 v{vOWN}, s{sT2}\nv_xor_b32 v{vOTH}, 4, v{vOWN}")
    vQV, vKT, vS, vT, vMAX, vAD, vKA, vPA, vDN = 32, 96, 160, 164, 172, 176, 184, 188, 189
    A("v_and_b32 v5, 3, v1\nv_lshlrev_b32 v5, 10, v5\nv_bfe_u32 v6, v1, 2, 2\nv_lshl_add_u32 v5, v6, 8, v5")
    A(f"v_lshrrev_b32 v6, 4, v1\nv_xor_b32 v6, v6, v1\nv_and_b32 v6, 15, v6\nv_lshl_add_u32 v{vKA}, v6, 4, v5")
    for n in range(1, 4):
        A(f"v_xor_b32 v{vKA+n}, {64*n}, v{vKA}")
    A(f"v_and_b32 v5, 3, v1\nv_lshlrev_b32 v5, 6, v5\nv_lshrrev_b32 v6, 4, v1\nv_lshl_add_u32 v5, v6, 4, v5")
    A(f"v_mov_b32 v29, v5")
    A(f"v_and_b32 v6, 8, v1\nv_lshl_add_u32 v5, v6, 5, v5\nv_and_b32 v6, 4, v1\nv_lshl_add_u32 v5, v6, 1, v5")
    A(f"s_lshl_b32 s{sT2}, s{sC}, 9\nv_add_u32 v{vPA}, s{sT2}, v5")
    A(f"v_mov_b32 v{vMAX}, {hex(f2u(-3e38))}")
    A(f"s_add_u32 s{sT2}, s{sC}, 2\nv_mov_b32 v{vDN}, s{sT2}")
    A("v_and_b32 v6, 3, v1\nv_lshlrev_b32 v6, 8, v6\nv_lshrrev_b32 v5, 4, v1\nv_lshl_add_u32 v6, v5, 4, v6")
    A(f"s_mov_b32 s{sFL}, 0")
    lds_wait(F_QH, sMODE, 1, "qh", sleep=1)
    stamp(2)
    for s in range(4):
        A(f"ds_read_b128 {v4(vKT+4*s)}, v6 offset:{L_Q + 64*s}")
    lgkm(0)
    for b in range(4):
        A(f"s_mov_b32 vcc_lo, {hex(0x000f000f << (4*b))}\ns_mov_b32 vcc_hi, {hex(0x000f000f << (4*b))}")
        for i in range(16):
            A(f"v_cndmask_b32 v{vQV+16*b+i}, 0, v{vKT+i}, vcc")
    A(f"s_lshl_b32 s{sLB}, s{sC}, 14\ns_lshl_b32 s{sTHR}, s{sC}, 4\ns_add_u32 s{sTHR}, s{sTHR}, {8*(U0+2)}")
    A(f"s_mov_b32 s{sCNT}, 0")
    A("L_p1:")
    for n in range(4):
        A(f"v_add_u32 v{vAD+n}, s{sLB}, v{vKA+n}")
    lds_wait(F_RDY, sFL, f"s{sTHR}", "krdy", sleep=csleep, cached=True)
    for b in range(4):
        for n in range(4):
            A(f"ds_read_b128 {v4(vKT+16*b+4*n)}, v{vAD+n} offset:{L_RING + 4096*b}")
    for b in range(4):
        lgkm(12 - 4 * b)
        if b == 3:
            A(f"ds_write_b32 v{vOWN}, v{vDN} offset:{F_DONE}")
        for n in range(4):
            c = "0" if b + n == 0 else v4(vS)
            A(f"v_mfma_f32_16x16x32_bf16 {v4(vS)}, {v4(vKT+16*b+4*n)}, {v4(vQV+16*b+4*n)}, {c}")
    A(f"v_add_u32 v{vDN}, 2, v{vDN}\nv_min_u32 v{vDN}, 32, v{vDN}")
    next_slot(2)
    A(f"s_add_u32 s{sTHR}, s{sTHR}, 32\ns_add_u32 s{sCNT}, s{sCNT}, 1\ns_nop 3")
    A(f"v_cvt_pk_bf16_f32 v{vT}, v{vS}, v{vS+1}\nv_cvt_pk_bf16_f32 v{vT+1}, v{vS+2}, v{vS+3}")
    A(f"v_max3_f32 v{vMAX}, v{vMAX}, v{vS}, v{vS+1}\nv_max3_f32 v{vMAX}, v{vMAX}, v{vS+2}, v{vS+3}")
    for j in range(2):
        A(f"v_lshlrev_b32 v{vT+2+2*j}, 16, v{vT+j}\nv_and_b32 v{vT+3+2*j}, s{sHI}, v{vT+j}")
    for i in range(4):
        A(f"v_mul_f32 v{vT+2+i}, s{sSCALE}, v{vT+2+i}")
    A(f"v_cvt_pk_bf16_f32 v{vT}, v{vT+2}, v{vT+3}\nv_cvt_pk_bf16_f32 v{vT+1}, v{vT+4}, v{vT+5}")
    A(f"ds_write_b64 v{vPA}, {v2(vT)} offset:{L_P}\nv_add_u32 v{vPA}, 1024, v{vPA}")
    A(f"s_cmp_lt_u32 s{sCNT}, 16\ns_cbranch_scc1 L_p1")
    stamp(4, 1)
    wave_red(vMAX, vX0, "v_max_f32", (8, 4))
    A(f"v_and_b32 v5, 3, v1\nv_lshlrev_b32 v5, 2, v5\nv_lshl_add_u32 v6, v{vOWN}, 2, v5\nv_xor_b32 v5, 16, v6")
    A(f"ds_write_b32 v6, v{vMAX} offset:{L_MX}")
    lds_flag(F_MX, vaddr=vOWN)
    A(f"v_subrev_u32 v{vPA}, 16384, v{vPA}")
    lds_wait(F_MX, sT0, 1, "mx", sleep=0, vaddr=vOTH)
    A(f"ds_read_b32 v{vX1}, v5 offset:{L_MX}")
    for i in range(16):
        A(f"ds_read_b64 {v2(32+2*i)}, v{vPA} offset:{L_P + 1024*i}")
    lgkm(0)
    vMN, vLSUM = 173, 174
    A(f"v_max_f32 v{vMAX}, v{vMAX}, v{vX1}")
    rnd_bf16(vMAX)
    A(f"v_mul_f32 v{vMAX}, s{sSCALE}, v{vMAX}")
    rnd_bf16(vMAX)
    A(f"v_mul_f32 v{vMN}, s{sLOG2E}, v{vMAX}\nv_mov_b32 v{vLSUM}, 0")
    for i in range(0, 16, 2):
        E = 96
        for j in range(4):
            A(f"v_lshlrev_b32 v{E+2*j}, 16, v{32+2*i+j}\nv_and_b32 v{E+2*j+1}, s{sHI}, v{32+2*i+j}")
        for j in range(8):
            A(f"v_fma_f32 v{E+j}, v{E+j}, s{sLOG2E}, -v{vMN}")
        for j in range(8):
            A(f"v_exp_f32 v{E+j}, v{E+j}")
        A("s_nop 0")
        for j in range(4):
            A(f"v_cvt_pk_bf16_f32 v{32+2*i+j}, v{E+2*j}, v{E+2*j+1}")
        A(f"ds_write_b64 v{vPA}, {v2(32+2*i)} offset:{L_P + 1024*i}\nds_write_b64 v{vPA}, {v2(34+2*i)} offset:{L_P + 1024*(i+1)}")
        for j in range(4):
            A(f"v_add_f32 v{E+j}, v{E+j}, v{E+4+j}")
        A(f"v_add_f32 v{E}, v{E}, v{E+1}\nv_add_f32 v{E+2}, v{E+2}, v{E+3}\nv_add_f32 v{vLSUM}, v{vLSUM}, v{E}\nv_add_f32 v{vLSUM}, v{vLSUM}, v{E+2}")
    wave_red(vLSUM, vX0, "v_add_f32", (8, 4))
    A(f"v_lshlrev_b32 v6, 1, v6\nv_mov_b32 v{vLSUM+1}, v{vMN}\nds_write_b64 v6, {v2(vLSUM)} offset:{L_LS}")
    lds_flag(F_PD, vaddr=vOWN)
    vO, vVF, vPF, vVA = 32, 48, 80, 184
    A("v_and_b32 v5, 12, v1\nv_lshrrev_b32 v6, 4, v1\nv_add_u32 v6, v6, v5\nv_lshlrev_b32 v6, 8, v6")
    A(f"v_lshrrev_b32 v{vX1}, 3, v1\nv_and_b32 v{vX1}, 2, v{vX1}\nv_or_b32 v5, v5, v{vX1}")
    A(f"v_bfe_u32 v{vX1}, v1, 1, 1\nv_xor_b32 v5, v5, v{vX1}\ns_lshl_b32 s{sT2}, s{sC}, 3\nv_xor_b32 v5, s{sT2}, v5")
    A(f"v_lshl_add_u32 v6, v5, 4, v6\nv_and_b32 v5, 1, v1\nv_lshl_add_u32 v{vVA}, v5, 3, v6")
    for n in range(1, 4):
        A(f"v_xor_b32 v{vVA+n}, {32*n}, v{vVA}")
    for i in range(4):
        A(f"v_mov_b32 v{vO+i}, 0")
    for i in range(32):
        A(f"v_mov_b32 v{vPF+i}, 0")
    for T in range(4):
        A(f"s_mov_b32 s{sPM+2*T}, {hex(0x000f000f << (4*T))}\ns_mov_b32 s{sPM+2*T+1}, s{sPM+2*T}")
    A(f"v_mov_b32 v{vDN}, 33\nv_mov_b32 v{vPA}, v29")
    A(f"s_mov_b32 s{sLB}, {(32 % NSLOT) * 16384}\ns_mov_b32 s{sTHR}, {8*(U0+64+1)}\ns_mov_b32 s{sCNT}, 0")
    tail_prep()
    A(f"v_lshrrev_b32 v6, 2, v1\nv_lshlrev_b32 v6, 11, v6\nv_and_b32 v5, 3, v1\nv_lshl_add_u32 v{vO1}, v5, 4, v6")
    A(f"s_lshl_b32 s{sT2}, s{sC}, 15\ns_add_u32 s{sT1}, s{sXB}, s{sT2}\ns_lshl_b32 s{sT2}, s{sJJ}, 6\ns_add_u32 s{sT1}, s{sT1}, s{sT2}")
    lds_wait(F_PD, sT0, 1, "pd", sleep=0, vaddr=vOTH)
    stamp(5, 1)
    A("; ======== pass 2: P V")
    vSC = 28
    A("L_p2:")
    for n in range(4):
        A(f"v_add_u32 v{vAD+n}, s{sLB}, v{vVA+n}")
    A(f"s_cmp_lg_u32 s{sCNT}, {prept}\ns_cbranch_scc1 L_nosc")
    lds_wait(F_SC, sT0, 1, "sc", sleep=1)
    A(f"v_and_b32 v5, 3, v1\nv_lshlrev_b32 v5, 2, v5\nds_read_b32 v{vSC}, v5 offset:{L_SC}")
    A("L_nosc:")
    for T in range(4):
        A(f"s_mov_b64 exec, {s2(sPM+2*T)}")
        for ks in range(2):
            A(f"ds_read_b128 {v4(vPF+16*ks+4*T)}, v{vPA} offset:{L_P + 256*ks}")
    A("s_mov_b64 exec, -1")
    for ks in range(2):
        lds_wait(F_RDY, sFL, f"s{sTHR}", "vrdy", sleep=csleep, cached=True)
        for T in range(4):
            for ih in range(2):
                A(f"ds_read_b64_tr_b16 {v2(vVF+16*ks+4*T+2*ih)}, v{vAD+T} offset:{L_RING + 8192*ks + 4096*ih}")
        A(f"s_add_u32 s{sTHR}, s{sTHR}, 8")
        if ks == 1:
            next_slot(1)
            A(f"s_add_u32 s{sCNT}, s{sCNT}, 1\nv_add_u32 v{vPA}, 512, v{vPA}")
        for T in range(4):
            lgkm(6 - 2 * T)
            A(f"v_mfma_f32_16x16x32_bf16 {v4(vO)}, {v4(vVF+16*ks+4*T)}, {v4(vPF+16*ks+4*T)}, {v4(vO)}")
    A(f"ds_write_b32 v{vOWN}, v{vDN} offset:{F_DONE}\nv_add_u32 v{vDN}, 1, v{vDN}")
    A(f"s_cmp_lt_u32 s{sCNT}, 32\ns_cbranch_scc1 L_p2")
    stamp(3)
    A(f"s_cmp_eq_u32 s{sMODE}, 2\ns_nop 2")
    for r in range(4):
        A(f"v_mul_f32 v{vO+r}, v{vO+r}, v{vSC}")
    for r in range(4):
        embed(vO + r, vO + r, TX4 + r)
    A(f"s_cbranch_scc0 L_h1far\nbuffer_store_dwordx4 {v4(vO)}, v{vO1}, {s4(rWS)}, s{sT1} offen\ns_branch L_late2")
    A(f"L_h1far:\nbuffer_store_dwordx4 {v4(vO)}, v{vO1}, {s4(rWS)}, s{sT1} offen sc1\ns_branch L_late2")

    A("L_help:")
    srd(rA, sX, 1024)
    vG, vXP = 56, 58
    A(f"v_and_b32 v6, 3, v1\nv_lshlrev_b32 v6, 3, v6\nv_lshrrev_b32 v5, 5, v1\nv_lshl_add_u32 v6, v5, 2, v6\ns_lshl_b32 s{sT1}, s{sJJ}, 5")
    A(f"s_cmp_lg_u32 s{sX8}, 0\ns_cbranch_scc1 L_nox\nbuffer_load_dword v{vXP}, v6, {s4(rA)}, s{sT1} offen\nL_nox:")
    make_tags()
    A(f"s_cmp_lg_u32 s{sGL}, 0\ns_cbranch_scc1 L_glu")
    lds_flag(F_GUP)
    A("s_branch L_h3f")
    A("L_glu:")
    A(f"s_and_b32 s{sT3}, s{sSUB}, 3")
    lds_wait(F_XN, sT0, 1, "xn", sleep=2)
    slice_mv(sT3, L_GU, 2, after_read=lambda: lds_flag(F_GUP))
    embed(32, 32, TX2); embed(33, 33, TX2 + 1)
    lds_wait(F_QH, sMODE, 1, "qh3", sleep=4)
    A(f"s_lshl_b32 s{sT1}, s{sJJ}, 8\ns_add_u32 s{sT1}, s{sT1}, s{sXB}\ns_add_u32 s{sT1}, s{sT1}, {X_G1}\ns_and_b32 s{sT0}, s{sT1}, {hex(0xfffff800)}")
    if skip & 4: A("s_branch L_hstat")
    A("s_mov_b32 exec_lo, 0x00ff00ff\ns_mov_b32 exec_hi, 0x00ff00ff")
    store2(f"buffer_store_dwordx2 v[32:33], v6, {s4(rWS)}, s{sT1} offen", f"s_cmp_eq_u32 s{sMODE}, 2")
    A("s_mov_b64 exec, -1")
    stamp(1)
    lds_wait(F_RDY, sFL, 8 * g2gate, "g2gate", sleep=16)
    for i in range(8):
        A(f"ds_read_b128 {v4(64+4*i)}, v4 offset:{L_WD + 1024*i}")
    poll([f"buffer_load_dwordx4 {v4(32+4*i)}, v4, {s4(rWS)}, s{sT0} offen offset:{1024*i} sc1" for i in range(2)],
         chk4([32, 36]), "g1poll", sleep=32)
    for e in range(8):
        swap_red(32 + e, vX0, "v_add_f32")
        rnd_bf16(32 + e)
    for e in range(4):
        sigmoid(32 + e, 32 + e)
        rnd_bf16(32 + e)
        A(f"v_mul_f32 v{32+e}, v{32+e}, v{36+e}")
    A("v_cvt_pk_bf16_f32 v32, v32, v33\nv_cvt_pk_bf16_f32 v33, v34, v35")
    A("v_and_b32 v5, 3, v1\nv_lshlrev_b32 v5, 5, v5\nv_and_b32 v6, 12, v1\nv_add_u32 v5, v5, v6\nv_lshlrev_b32 v6, 4, v2")
    A(f"ds_write_b32 v5, v32 offset:{L_HB}\nds_write_b32 v5, v33 offset:{L_HB+16}\nds_read_b128 v[20:23], v6 offset:{L_HB}")
    lgkm(0)
    matvec8(64, [f"v{20+k}" for k in range(4)], 32, 40)
    reduce8(32)
    A(f"v_lshrrev_b32 v6, 4, v1\nv_lshlrev_b32 v6, 3, v6\nv_lshl_add_u32 v6, v3, 1, v6\nv_lshlrev_b32 v5, 2, v1")
    A(f"ds_write_b64 v6, v[32:33] offset:{L_HB}\nds_read_b32 v32, v5 offset:{L_HB}")
    A(f"v_and_b32 v5, 7, v1\nv_lshlrev_b32 v5, 2, v5\nv_lshrrev_b32 v33, v5, s{sTAG}\nv_and_b32 v33, 15, v33")
    A(f"v_lshrrev_b32 v6, 4, v1\nv_lshlrev_b32 v6, 11, v6\nv_and_b32 v5, 15, v1\nv_lshl_add_u32 v6, v5, 2, v6")
    A(f"s_lshl_b32 s{sT1}, s{sSUB}, 13\ns_lshl_b32 s{sT2}, s{sCB}, 6\ns_add_u32 s{sT1}, s{sT1}, s{sT2}\ns_add_u32 s{sT1}, s{sT1}, {WS_GL}")
    lgkm(0)
    embed(32, 32, 33)
    if not skip & 1:
        A(f"buffer_store_dword v32, v6, {s4(rWS)}, s{sT1} offen sc1")
    A("L_h3f:")
    A(f"s_cmp_lg_u32 s{sX8}, 0\ns_cbranch_scc1 L_hstat")
    if skip & 2: A("s_branch L_hstat")
    lds_wait(F_RDY, sFL, 8 * g3gate, "g3gate", sleep=16)
    A(f"s_lshl_b32 s{sH}, s{sJJ}, 11\ns_add_u32 s{sH}, s{sH}, {WS_GL}")
    A(f"v_min_u32 v6, 47, v1\nv_and_b32 v6, 60, v6\nv_and_b32 v5, 3, v1\nv_or_b32 v6, v6, v5\nv_lshlrev_b32 v6, 4, v6")
    poll([f"buffer_load_dwordx4 v[64:67], v4, {s4(rWS)}, s{sH} offen sc1",
          f"buffer_load_dwordx4 v[68:71], v6, {s4(rWS)}, s{sH} offen offset:1024 sc1"], chk4([64, 68]), "gpoll", sleep=64)
    A("s_mov_b32 exec_hi, 0xffff")
    for e in range(4):
        A(f"v_add_f32 v{64+e}, v{64+e}, v{68+e}")
    A("s_mov_b64 exec, -1")
    red4(64)
    for e in range(2):
        rnd_bf16(64 + e)
        sigmoid(68, 64 + e)
        A(f"v_mul_f32 v{vG+e}, v{64+e}, v68")
        rnd_bf16(vG + e)
    A("L_hstat:")
    stamp(2)
    lds_wait(F_PD, sT0, 1, "pdh", sleep=16, pair=True)
    lds_wait(F_TG, sT0, 1, "tg", sleep=4)
    lds_wait(F_QH, sMODE, 1, "qh4", sleep=4)
    A(f"v_and_b32 v5, 3, v1\nv_lshlrev_b32 v5, 3, v5")
    A(f"ds_read_b64 v[32:33], v5 offset:{L_LS}\nds_read_b32 v34, v5 offset:{L_LS+32}")
    lgkm(0)
    A(f"v_add_f32 v32, v32, v34\nv_log_f32 v32, v32\nv_mov_b32 v35, s{sTAG}\nv_add_f32 v34, v32, v33")
    A(f"s_add_u32 s{sT0}, s{sXB}, {X_LS}\ns_lshl_b32 s{sT1}, s{sJJ}, 5\ns_add_u32 s{sT1}, s{sT1}, s{sT0}")
    A("s_mov_b64 exec, 15")
    store2(f"buffer_store_dwordx2 v[34:35], v5, {s4(rWS)}, s{sT1} offen", f"s_cmp_eq_u32 s{sMODE}, 2")
    A("s_mov_b64 exec, -1")
    lds_wait(F_RDY, sFL, 8 * lsgate, "lsgate", sleep=16)
    A(f"v_lshlrev_b32 v6, 3, v1")
    poll([f"buffer_load_dwordx2 {v2(36+2*i)}, v6, {s4(rWS)}, s{sT0} offen offset:{512*i} sc1" for i in range(2)],
         [(37, f"s{sTAG}"), (39, f"s{sTAG}")], "lspoll", sleep=16, full=True)
    A("v_max_f32 v40, v36, v38")
    wave_red(40, vX0, "v_max_f32", (8, 4))
    A("v_sub_f32 v36, v36, v40\nv_sub_f32 v38, v38, v40\nv_exp_f32 v36, v36\nv_exp_f32 v38, v38\nv_sub_f32 v33, v33, v40\nv_add_f32 v36, v36, v38")
    wave_red(36, vX0, "v_add_f32", (8, 4))
    A("v_exp_f32 v33, v33\nv_rcp_f32 v36, v36\nv_lshrrev_b32 v5, 1, v5\nv_mul_f32 v33, v33, v36")
    A(f"ds_write_b32 v5, v33 offset:{L_SC}")
    lds_flag(F_SC)
    stamp(3)
    tail_prep()
    A("L_late:")
    lds_wait(F_RDY, sFL, NV - 16, "late", sleep=4)
    A("L_late2:")
    stamp(4, 0)
    lds_wait(F_RDY, sFL, NV + pgate, "late2", sleep=0)

    A("; ======== tail")
    A("L_tail:")
    def ld1(r):
        for i in range(2):
            A(f"buffer_load_dwordx4 {v4(r+4*i)}, v4, {s4(rWS)}, s{sI1} offen offset:{1024*i} sc1")
    ld1(144)
    lds_wait(F_RDY, sFL, NLD, "wordy", sleep=0, cached=True)
    ld1(152)
    for h in range(4):
        for z in range(2):
            A(f"ds_read_b64_tr_b16 {v2(vWO+4*h+2*z)}, v{vWA+z} offset:{L_WO + 1024*h}")
    A(f"s_mov_b32 s{sSPIN}, 0\ns_waitcnt vmcnt(2)")
    untag(chk4([144, 148]))
    padd(40, 144, 148, 4)
    A("s_cbranch_vccz L_h1ok")
    A("L_h1poll:")
    A("s_waitcnt vmcnt(0)")
    untag(chk4([152, 156]))
    padd(40, 152, 156, 4)
    A("s_cbranch_vccz L_h1ok")
    ld1(152)
    A(f"s_add_u32 s{sSPIN}, s{sSPIN}, 1\ns_cmp_lt_u32 s{sSPIN}, s{sLIM}\ns_cbranch_scc1 L_h1poll")
    A("L_h1ok:")
    stamp(5, 0)
    red4(40)
    A(f"v_cvt_pk_bf16_f32 v40, v40, v41\ns_nop 0")
    for u in range(8):
        A(f"v_readlane_b32 s{sH+u}, v40, {32*(u&1) + (u>>1)}")
    lgkm(0)
    for u in range(8):
        for z in range(2):
            c = "0" if u == 0 else f"v{48+z}"
            A(f"v_dot2_f32_bf16 v{48+z}, s{sH+u}, v{vWO+4*(u>>1)+2*z+(u&1)}, {c}")
    A(f"s_cmp_lg_u32 s{sTW}, 3\ns_nop 1")
    A(f"ds_write2_b32 v{vRW}, v48, v49 offset1:64")
    A("s_waitcnt lgkmcnt(0)\ns_barrier\ns_cbranch_scc1 L_fin")
    for p in range(4):
        A(f"ds_read_b64 {v2(42+2*p)}, v{vRR} offset:{L_RED + 512*p}")
    A(f"s_lshl2_add_u32 s{sT0}, s{sX8}, s{sMODE}\ns_cmp_eq_u32 s{sT0}, 2")
    lgkm(0)
    padd(48, 48, 42, 2); padd(44, 44, 46, 2); padd(48, 48, 44, 2)
    embed(48, 48, TX2); embed(49, 49, TX2 + 1)
    A(f"s_cbranch_scc1 L_t3\nbuffer_store_dwordx2 v[48:49], v{vO2}, {s4(rWS)}, s{sO2} offen sc1")
    A(f"s_cmp_lg_u32 s{sX8}, 0\ns_cbranch_scc1 L_fin\ns_branch L_t3b")
    A("L_t3:")
    A(f"buffer_store_dwordx2 v[48:49], v{vO2}, {s4(rWS)}, s{sO2} offen")
    A("L_t3b:")
    def ld2(i):
        A(f"buffer_load_dwordx4 {v4(64+4*i)}, v{vI2}, {s4(rWS)}, s{sI2+i} offen sc1")
    A("s_waitcnt vmcnt(0)")
    A(f"s_lshr_b32 s{sI2}, s{sJJ}, 1\ns_lshl_b32 s{sI2}, s{sI2}, 10\ns_and_b32 s{sT2}, s{sJJ}, 1\ns_lshl_b32 s{sT2}, s{sT2}, 6\ns_add_u32 s{sI2}, s{sI2}, s{sT2}")
    A(f"s_add_u32 s{sI2}, s{sI2}, {X_H2}")
    for i in range(1, 4):
        A(f"s_add_u32 s{sI2+i}, s{sI2}, {i << 18}")
    A(f"v_lshlrev_b32 v50, 16, v{vXP}\nv_and_b32 v51, s{sHI}, v{vXP}")
    srd(rA, sOUT, 1024)
    A(f"s_lshl_b32 s{sT3}, s{sJJ}, 5\ns_mov_b32 s{sSPIN}, 0")
    if tdel:
        A(f"s_sleep {tdel}")
    for i in (1, 2, 3, 0):
        ld2(i)
    A("L_h2poll:")
    A("s_waitcnt vmcnt(0)")
    untag(chk4([64, 68, 72, 76]))
    A("s_cbranch_vccz L_h2ok")
    for i in range(4):
        ld2(i)
    A(f"s_add_u32 s{sSPIN}, s{sSPIN}, 1\ns_cmp_lt_u32 s{sSPIN}, s{sLIM}\ns_cbranch_scc1 L_h2poll")
    A("L_h2ok:")
    stamp(6, 0)
    padd(64, 64, 72, 8)
    padd(64, 64, 68, 4)
    red4(64)
    A(f"v_cvt_pk_bf16_f32 v64, v64, v65\nv_and_b32 v65, s{sHI}, v64\nv_lshlrev_b32 v64, 16, v64")
    A(f"v_mul_f32 v64, v64, v{vG}\nv_mul_f32 v65, v65, v{vG+1}")
    A(f"v_cvt_pk_bf16_f32 v64, v64, v65\nv_and_b32 v65, s{sHI}, v64\nv_lshlrev_b32 v64, 16, v64")
    A("v_add_f32 v64, v64, v50\nv_add_f32 v65, v65, v51\nv_cvt_pk_bf16_f32 v64, v64, v65")
    A("s_mov_b32 exec_lo, 15\ns_mov_b32 exec_hi, 15")
    A(f"buffer_store_dword v64, v{vOA}, {s4(rA)}, s{sT3} offen")
    A(f"s_cmp_lg_u32 s{sJJ}, 0\ns_cbranch_scc1 L_fin")
    A(f"s_mov_b64 exec, 1\nv_mov_b32 v65, s{sTAG}\ns_mov_b32 s{sT1}, {WS_EPOCH}")
    A(f"buffer_store_dword v65, v7, {s4(rWS)}, s{sT1} offen")
    A("L_fin:")
    if stamps:
        A("s_mov_b64 exec, -1")
        A("s_waitcnt vmcnt(0)")
        stamp(7)
        A("s_waitcnt lgkmcnt(0)")
        if span is not None:
            A(f"s_cmp_lg_u32 s{sW}, {span[0]}\ns_cbranch_scc1 L_skout")
            if len(span) > 2:
                A(f"s_cmp_lg_u32 s{sX8}, {span[2]}\ns_cbranch_scc1 L_skout")
            srd(rB, 44, 256)
            A(f"buffer_load_dword v16, v7, {s4(rB)}, 0 offen offset:64 sc1\ns_waitcnt vmcnt(0)\nv_readfirstlane_b32 s{sT2}, v16\ns_nop 3")
            A(f"s_not_b32 s{sT0}, s{sT2}\ns_sub_u32 s{sT2}, s{sST+2*span[1]}, s{sT0}\ns_sub_u32 s{sT2}, s{sT2}, 3000\ns_mul_i32 s{sT2}, s{sT2}, 10\ns_min_u32 s{sT2}, s{sT2}, 100000")
            A(f"s_add_u32 s{sT2}, s{sT2}, s{sT0}\ns_add_u32 s{sT2}, s{sT2}, 10000")
            A("L_skpad:")
            A(f"s_memrealtime {s2(sH)}\ns_waitcnt lgkmcnt(0)\ns_sub_u32 s{sT3}, s{sH}, s{sT2}\ns_cmp_lt_i32 s{sT3}, 0\ns_cbranch_scc1 L_skpad")
            A("L_skout:")
        for i in range(8):
            A(f"v_mov_b32 v{96+i}, s{sST+2*i}")
        A(f"s_mul_i32 s{sT1}, s2, 5\ns_add_u32 s{sT1}, s{sT1}, s{sW}\ns_lshl_b32 s{sT1}, s{sT1}, 5\ns_add_u32 s{sT1}, s{sT1}, {WS_STAMP}")
        A("s_mov_b64 exec, 1")
        A(f"buffer_store_dwordx4 v[96:99], v7, {s4(rWS)}, s{sT1} offen")
        A(f"buffer_store_dwordx4 v[100:103], v7, {s4(rWS)}, s{sT1} offen offset:16")
    A("L_end:")
    A("s_endpgm")

    out = HEADER
    out += f"; @launch grid=(256,1,1) block=(320,1,1) lds={LDS_BYTES}\n"
    out += DOC
    out += '.amdgcn_target "amdgcn-amd-amdhsa--gfx950"\n.text\n'
    out += f".globl {KNAME}_kernel\n.p2align 8\n.type {KNAME}_kernel,@function\n"
    out += "\n".join(A.L) + "\n"
    out += f""".section .rodata,"a"
.p2align 6
.amdhsa_kernel {KNAME}_kernel
  .amdhsa_next_free_vgpr 216
  .amdhsa_next_free_sgpr 102
  .amdhsa_accum_offset 216
  .amdhsa_group_segment_fixed_size 0
  .amdhsa_kernarg_size 96
  .amdhsa_user_sgpr_count 2
  .amdhsa_user_sgpr_kernarg_segment_ptr 1
  .amdhsa_system_sgpr_workgroup_id_x 1
.end_amdhsa_kernel
"""
    return out


if __name__ == "__main__":
    kw = json.loads(sys.argv[2]) if len(sys.argv) > 2 else {}
    open(sys.argv[1], "w").write(gen(**kw))
```

```python
import sys, json, struct

KNAME = "recurrent_scan__gqa_block_cached__glu_gated_glu__decode"
HEADER = open("cdna_kernels/" + KNAME + ".s.ref").read().split("; Override launch")[0]

def f2u(x):
    return struct.unpack("<I", struct.pack("<f", x))[0]

LOG2E = 1.4426950408889634
X_H1 = 0x0
X_QX = 0x10000
X_G1 = 0x12000
X_LS = 0x14000
X_PG = 0x14400
X_LINES = 21
X_H2 = 0x15000
X_QXFAR = 0xC000
WS_EPOCH = 0x1F000
WS_GL = 0x100000
WS_STAMP = 0x1000000
WS_SIZE = 0x20000000
L_Q = 0
L_FLAG = 1024
F_RDY = L_FLAG
F_GUP = L_FLAG + 4
F_DONE = L_FLAG + 8
F_QH = L_FLAG + 16
F_XN = L_FLAG + 20
F_MX = L_FLAG + 24
F_PD = L_FLAG + 32
F_SC = L_FLAG + 40
F_WIN = L_FLAG + 44
F_TG = L_FLAG + 48
L_MX = 1152
L_LS = 1216
L_SC = 1280
L_HB = 1536
L_RED = 2048
L_XN = L_RED
L_P = 4096
L_WD = 20480
L_RING = 28672
NSLOT = 8
L_WO = L_RING
LDS_BYTES = L_RING + NSLOT * 16384
U0 = 5

sXB = 0
sFL = 3
sMODE, sLIM, sI1, sO2 = 14, 15, 24, 25
sGL = 83
sTW = 82
sPM = 48
sX, sK, sV, sWQ, sWO, sBX, sWG, sWU, sWD, sOUT, sDBG, sWS = 4, 6, 8, 10, 12, 14, 16, 18, 20, 22, 24, 26
rK, rV, rWS, rA, rB, rC, rD = 28, 32, 36, 40, 44, 48, 52
sW, sX8, sJJ, sCB, sSUB = 56, 57, 58, 59, 60
sC, sTHR, sCNT, sTAG = 61, 62, 63, 64
sSELL, sSELH, sSCALE, sLOG2E, sHI = 65, 66, 67, 68, 69
sT0, sT1, sT2, sT3 = 70, 71, 72, 73
sH = 74
sSPIN = 84
sLB = 85
sST = 86
TX4 = 8; TX2 = 12; vX0 = 14; vX1 = 15
vWO, vWT, vRW, vRR, vO2, vO1, vWA = 192, 128, 208, 209, 210, 211, 212
vI2, vOA = 214, 215
sI2 = 28


DOC = '''; ---------------------------------------------------------------------------------------------------
; ---------------------------------------------------------------------------------------------------
'''


class G:
    def __init__(self):
        self.L = []
        self.n = 0
    def __call__(self, s):
        for line in s.strip("\n").split("\n"):
            self.L.append("    " + line.strip() if not line.strip().endswith(":") else line.strip())
    def label(self, base):
        self.n += 1
        return f"L_{base}_{self.n}"


def v4(r):
    return f"v[{r}:{r+3}]"
def v2(r):
    return f"v[{r}:{r+1}]"
def s4(r):
    return f"s[{r}:{r+3}]"
def s2(r):
    return f"s[{r}:{r+1}]"


def gen(win=20, wins=(20, 21, 22, 24, 27), bias=64, ebias=224, gs=8, endstop=48, psleep=8, wwo=20, worder=(1, 2, 0, 3),
        nb=(4, 4, 4, 4, 3, 3, 3, 3), b0=-64, tdel=0, g2gate=24, g3gate=48, lsgate=100, prept=30, qsleep=4, qtry=96, unq=2,
        etouch=1, pgate=12, stamps=False, smode=0, span=None, diag=None, skip=0, force=0):
    A = G()
    kvflags = wflags = "nt"
    csleep = h1sleep = h2sleep = 0
    if span is not None:
        stamps = True; smode = 9

    def srd(r, base, size):
        A(f"s_mov_b32 s{r}, s{base}\ns_mov_b32 s{r+1}, s{base+1}\ns_mov_b32 s{r+2}, {size}\ns_mov_b32 s{r+3}, 0x20000")

    def stamp(i, mode=None):
        if stamps and (mode is None or mode == smode):
            A(f"s_memrealtime {s2(sST + 2 * i)}")

    def lgkm(n):
        A(f"s_waitcnt lgkmcnt({n})")

    def swap_red(r, t, op, kinds=("16", "32")):
        for k in kinds:
            A(f"v_mov_b32 v{t}, v{r}\ns_nop 1\nv_permlane{k}_swap_b32 v{r}, v{t}\ns_nop 1\n{op} v{r}, v{r}, v{t}")

    def wave_red(r, t, op, rors):
        for k in rors:
            A(f"s_nop 1\n{op} v{r}, v{r}, v{r} row_ror:{k}")
        swap_red(r, t, op)

    def rnd_bf16(r):
        A(f"v_cvt_pk_bf16_f32 v{r}, v{r}, v{r}\nv_and_b32 v{r}, 0xffff0000, v{r}")

    def ln_stats(X, mean, rstd, F):
        D = F + 8
        for k in range(4):
            A(f"v_lshlrev_b32 v{F+2*k}, 16, v{X+k}\nv_and_b32 v{F+2*k+1}, s{sHI}, v{X+k}")
        A(f"v_add_f32 v{mean}, v{F}, v{F+1}")
        for k in range(2, 8):
            A(f"v_add_f32 v{mean}, v{mean}, v{F+k}")
        wave_red(mean, vX0, "v_add_f32", (8, 4, 2, 1))
        A(f"v_mul_f32 v{mean}, {hex(f2u(1/512))}, v{mean}")
        for k in range(8):
            A(f"v_sub_f32 v{D+k}, v{F+k}, v{mean}")
        A(f"v_mul_f32 v{rstd}, v{D}, v{D}")
        for k in range(1, 8):
            A(f"v_fmac_f32 v{rstd}, v{D+k}, v{D+k}")
        wave_red(rstd, vX0, "v_add_f32", (8, 4, 2, 1))
        A(f"v_mul_f32 v{rstd}, {hex(f2u(1/512))}, v{rstd}")
        rnd_bf16(mean); rnd_bf16(rstd)
        A(f"v_add_f32 v{rstd}, {hex(f2u(1e-5))}, v{rstd}")
        rnd_bf16(rstd)
        A(f"v_sqrt_f32 v{rstd}, v{rstd}\ns_nop 0")
        rnd_bf16(rstd)
        A(f"v_rcp_f32 v{rstd}, v{rstd}")

    def ln_apply(X, mean, rstd, D):
        for k in range(4):
            A(f"v_lshlrev_b32 v{D+2*k}, 16, v{X+k}\nv_and_b32 v{D+2*k+1}, s{sHI}, v{X+k}")
        for k in range(8):
            A(f"v_sub_f32 v{D+k}, v{D+k}, v{mean}")
        for k in range(4):
            A(f"v_cvt_pk_bf16_f32 v{X+k}, v{D+2*k}, v{D+2*k+1}")
        for k in range(4):
            A(f"v_lshlrev_b32 v{D+2*k}, 16, v{X+k}\nv_and_b32 v{D+2*k+1}, s{sHI}, v{X+k}")
        for k in range(8):
            A(f"v_mul_f32 v{D+k}, v{D+k}, v{rstd}")
        for k in range(4):
            A(f"v_cvt_pk_bf16_f32 v{X+k}, v{D+2*k}, v{D+2*k+1}")

    def matvec8(W, xs, acc, tmp, first=True):
        for j in range(4):
            for u in range(4):
                A(f"v_perm_b32 v{tmp+2*u}, v{W+(2*j+1)*4+u}, v{W+(2*j)*4+u}, s{sSELL}")
                A(f"v_perm_b32 v{tmp+2*u+1}, v{W+(2*j+1)*4+u}, v{W+(2*j)*4+u}, s{sSELH}")
            for e in range(8):
                c = "0" if (j == 0 and first) else f"v{acc+e}"
                A(f"v_dot2_f32_bf16 v{acc+e}, {xs[j]}, v{tmp+e}, {c}")
        A("s_nop 2")

    def reduce8(acc):
        A("s_nop 1")
        for e in range(4):
            A(f"v_permlane32_swap_b32 v{acc+e}, v{acc+4+e}")
        A("s_nop 1")
        for e in range(4):
            A(f"v_add_f32 v{acc+e}, v{acc+e}, v{acc+4+e}")
        A("s_nop 1")
        for e in range(2):
            A(f"v_permlane16_swap_b32 v{acc+e}, v{acc+2+e}")
        A("s_nop 1")
        for e in range(2):
            A(f"v_add_f32 v{acc+e}, v{acc+e}, v{acc+2+e}")
        A("s_nop 0")
        for e in range(2):
            A(f"v_add_f32 v{acc+e}, v{acc+e}, v{acc+e} row_ror:8")
        A("s_nop 0")

    def red4(a):
        A("s_nop 1")
        A(f"v_permlane32_swap_b32 v{a}, v{a+2}\nv_permlane32_swap_b32 v{a+1}, v{a+3}")
        A("s_nop 0")
        A(f"v_add_f32 v{a}, v{a}, v{a+2}\nv_add_f32 v{a+1}, v{a+1}, v{a+3}")
        for k in (8, 4):
            A("s_nop 0")
            A(f"v_add_f32 v{a}, v{a}, v{a} row_ror:{k}\nv_add_f32 v{a+1}, v{a+1}, v{a+1} row_ror:{k}")
        A(f"v_mov_b32 v{a+2}, v{a}\nv_mov_b32 v{a+3}, v{a+1}\ns_nop 0")
        A(f"v_permlane16_swap_b32 v{a}, v{a+2}\nv_permlane16_swap_b32 v{a+1}, v{a+3}")
        A("s_nop 0")
        A(f"v_add_f32 v{a}, v{a}, v{a+2}\nv_add_f32 v{a+1}, v{a+1}, v{a+3}")

    def lds_wait(addr, sreg, thr, name, sleep=1, vaddr=7, cached=False, pair=False):
        top = A.label(name); done = A.label(name + "_ok")
        if cached:
            A(f"s_cmp_ge_i32 s{sreg}, {thr}\ns_cbranch_scc1 {done}")
        A(f"s_mov_b32 s{sSPIN}, 0")
        A(f"{top}:")
        if pair:
            A(f"ds_read_b64 {v2(vX0)}, v{vaddr} offset:{addr}\ns_waitcnt lgkmcnt(0)\nv_min_i32 v{vX0}, v{vX0}, v{vX1}\ns_nop 0")
        else:
            A(f"ds_read_b32 v{vX0}, v{vaddr} offset:{addr}\ns_waitcnt lgkmcnt(0)")
        A(f"v_readfirstlane_b32 s{sreg}, v{vX0}")
        A(f"s_add_u32 s{sSPIN}, s{sSPIN}, 1")
        A(f"s_cmp_ge_i32 s{sreg}, {thr}\ns_cbranch_scc1 {done}")
        if sleep:
            A(f"s_sleep {sleep}")
        A(f"s_cmp_lt_u32 s{sSPIN}, 0x100000\ns_cbranch_scc1 {top}")
        A(f"{done}:")

    def lds_flag(addr, val=1, vaddr=7):
        A(f"v_mov_b32 v{vX0}, {val}\nds_write_b32 v{vaddr}, v{vX0} offset:{addr}")

    def make_tags():
        A(f"s_waitcnt lgkmcnt(0)\ns_add_u32 s{sTAG}, s{sTAG}, 0x9E3779B1")
        A(f"v_and_b32 v5, 1, v1\nv_lshlrev_b32 v5, 4, v5\nv_lshrrev_b32 v5, v5, s{sTAG}")
        for k in range(4):
            A(f"v_bfe_u32 v{TX4+k}, v5, {4*k}, 4")
        A(f"v_and_b32 v5, 3, v1\nv_lshlrev_b32 v5, 3, v5\nv_lshrrev_b32 v5, v5, s{sTAG}")
        for k in range(2):
            A(f"v_bfe_u32 v{TX2+k}, v5, {4*k}, 4")

    def embed(dst, src, tag):
        A(f"v_and_or_b32 v{dst}, v{src}, -16, v{tag}")

    def untag(checks):
        for r, t in checks:
            A(f"v_xor_b32 v{r}, {t}, v{r}")
        rs = [r for r, _ in checks]
        A(f"v_or_b32 v{vX0}, v{rs[0]}, v{rs[1]}")
        for i in range(2, len(rs), 2):
            A(f"v_or3_b32 v{vX0}, v{vX0}, v{rs[i]}, v{rs[i+1]}")
        A(f"v_and_b32 v{vX0}, 15, v{vX0}\nv_cmp_ne_u32 vcc, 0, v{vX0}")

    def padd(d, a, b, n):
        for e in range(0, n, 2):
            A(f"v_pk_add_f32 {v2(d+e)}, {v2(a+e)}, {v2(b+e)}")

    def poll(loads, checks, name, sleep=0, full=False, landed=None):
        top = A.label(name); done = A.label(name + "_ok")
        A(f"s_mov_b32 s{sSPIN}, 0")
        A(f"{top}:")
        for l in loads:
            A(l)
        A("s_waitcnt vmcnt(0)")
        if landed:
            A(landed)
        if full:
            A(f"v_xor_b32 v{vX0}, {checks[0][1]}, v{checks[0][0]}")
            for r, t in checks[1:]:
                A(f"v_bitop3_b32 v{vX0}, v{vX0}, v{r}, {t} bitop3:0xf6")
            A(f"v_cmp_ne_u32 vcc, 0, v{vX0}")
        else:
            untag(checks)
        A(f"s_cbranch_vccz {done}")
        if sleep:
            A(f"s_sleep {sleep}")
        A(f"s_add_u32 s{sSPIN}, s{sSPIN}, 1\ns_cmp_lt_u32 s{sSPIN}, s{sLIM}\ns_cbranch_scc1 {top}")
        A(f"{done}:")

    def store2(line, cond_scc1_near):
        far = A.label("far"); done = A.label("st")
        A(cond_scc1_near)
        A(f"s_cbranch_scc0 {far}\n{line}\ns_branch {done}\n{far}:\n{line} sc1\n{done}:")

    def chk4(regs):
        return [(r + k, f"v{TX4+k}") for r in regs for k in range(4)]

    def next_slot(step):
        A(f"s_add_u32 s{sLB}, s{sLB}, {step*16384}\ns_and_b32 s{sLB}, s{sLB}, {NSLOT*16384-1}")

    def tail_prep():
        A(f"v_bfe_u32 v5, v1, 2, 3\nv_lshlrev_b32 v5, 7, v5\nv_lshrrev_b32 v6, 5, v1\nv_lshl_add_u32 v5, v6, 17, v5")
        A(f"v_and_b32 v{vOA}, 3, v1\nv_lshl_add_u32 v{vI2}, v{vOA}, 4, v5\nv_lshl_add_u32 v{vOA}, v{vOA}, 1, v6\nv_lshlrev_b32 v{vOA}, 2, v{vOA}")
        A(f"v_bfe_u32 v5, v1, 2, 2\nv_mul_u32_u24 v5, 0x140, v5\nv_lshrrev_b32 v6, 4, v1\nv_lshlrev_b32 v6, 5, v6\nv_xor_b32 v5, v5, v6")
        A(f"v_and_b32 v6, 3, v1\nv_lshl_add_u32 v5, v6, 3, v5\ns_lshl_b32 s{sT2}, s{sTW}, 12\nv_add_u32 v{vWA}, s{sT2}, v5\nv_xor_b32 v{vWA+1}, 0x80, v{vWA}")
        A(f"s_and_b32 s{sT2}, s{sJJ}, 28\ns_add_u32 s{sT2}, s{sT2}, s{sTW}\ns_lshl_b32 s{sT2}, s{sT2}, 11\ns_add_u32 s{sI1}, s{sXB}, s{sT2}")
        A(f"s_lshl_b32 s{sT2}, s{sTW}, 9\ns_add_u32 s{sT2}, s{sT2}, {L_RED}\nv_lshl_add_u32 v{vRW}, v1, 2, s{sT2}\nv_lshlrev_b32 v{vRR}, 3, v1")
        A(f"v_and_b32 v5, 15, v1\nv_lshlrev_b32 v5, 3, v5\nv_lshrrev_b32 v6, 4, v1\nv_lshl_add_u32 v{vO2}, v6, 10, v5")
        A(f"s_and_b32 s{sO2}, s{sJJ}, 3\ns_lshl_b32 s{sO2}, s{sO2}, 12\ns_add_u32 s{sO2}, s{sO2}, s{sXB}")
        A(f"s_lshr_b32 s{sT2}, s{sJJ}, 2\ns_lshl_b32 s{sT2}, s{sT2}, 7\ns_add_u32 s{sO2}, s{sO2}, s{sT2}\ns_add_u32 s{sO2}, s{sO2}, {X_H2}")

    def sigmoid(dst, src):
        A(f"v_mul_f32 v{dst}, s{sLOG2E}, v{src}\nv_exp_f32 v{dst}, -v{dst}\ns_nop 0\nv_add_f32 v{dst}, 1.0, v{dst}\nv_rcp_f32 v{dst}, v{dst}\ns_nop 0")

    A("; ======== entry")
    A(f"{KNAME}_kernel:")
    A("s_cmpk_ge_u32 s2, 0x100\ns_cbranch_scc1 L_end")
    stamp(0)
    A(f"s_load_dwordx16 s[4:19], s[0:1], 0\ns_load_dwordx8 s[20:27], s[0:1], 64")
    A(f"v_and_b32 v1, 63, v0\nv_readfirstlane_b32 s{sW}, v0")
    A(f"s_and_b32 s{sX8}, s2, 7\ns_lshr_b32 s{sJJ}, s2, 3")
    A("v_lshlrev_b32 v4, 4, v1")
    A("v_lshrrev_b32 v2, 3, v1\nv_and_b32 v3, 0x70, v4")
    A(f"s_mov_b32 s{rA+3}, 0x20000\ns_lshr_b32 s{sW}, s{sW}, 6\ns_cbranch_scc1 L_e1")
    A(f"s_and_b32 s{sT1}, s{sJJ}, 7\ns_lshl3_add_u32 s{sT1}, s{sX8}, s{sT1}\ns_lshl_b32 s{sT1}, s{sT1}, 7")
    A(f"s_lshr_b32 s{sT2}, s2, 6\ns_lshl_b32 s{sT2}, s{sT2}, 20\ns_add_u32 s{sT1}, s{sT1}, s{sT2}")
    A(f"v_lshl_add_u32 v5, v2, 17, v3\ns_bfm_b32 s{rA+2}, 1, 22\ns_movk_i32 m0, {L_P}")
    A(f"s_waitcnt lgkmcnt(0)\ns_mov_b64 {s2(rA)}, {s2(sWQ)}")
    stamp(4, 4)
    A("L_wq:")
    A(f"buffer_load_dwordx4 v5, {s4(rA)}, s{sT1} offen {wflags} lds")
    A(f"s_addk_i32 m0, 0x400\ns_addk_i32 s{sT1}, 0x2000\ns_cmpk_lt_u32 m0, {L_P + 16384}\ns_cbranch_scc1 L_wq")
    A("s_branch L_e2")
    A("L_e1:")
    A(f"s_cmp_lg_u32 s{sW}, 2\ns_cbranch_scc1 L_e1b")
    A(f"s_movk_i32 s{rA+2}, 0x400\ns_waitcnt lgkmcnt(0)\ns_mov_b64 {s2(rA)}, {s2(sX)}")
    A(f"buffer_load_dwordx4 v[16:19], v4, {s4(rA)}, 0 offen")
    A("L_e1b:")
    A(f"s_cmp_lg_u32 s{sW}, 1\ns_cbranch_scc1 L_e2")
    A(f"s_getpc_b64 {s2(sT0)}")
    A("L_pc:")
    A(f"s_lshl_b32 s{sT2}, s{sJJ}, 6\nv_add_u32 v5, s{sT2}, v1\nv_mul_u32_u24 v5, 12, v5\nv_min_u32 v5, L_end-L_pc, v5")
    A(f"global_load_dword v16, v5, {s2(sT0)}")
    def xtouch():
        A(f"v_min_u32 v6, {X_LINES-1}, v1\ns_mul_i32 s{sT2}, s{sJJ}, {X_LINES}\ns_lshl_b32 s{sT3}, s{sX8}, 10\ns_add_u32 s{sT2}, s{sT2}, s{sT3}")
        A(f"v_add_lshl_u32 v6, v6, s{sT2}, 7\ns_waitcnt lgkmcnt(0)\nglobal_load_dword v17, v6, {s2(sWS)} sc1")
    if etouch == 1:
        xtouch()
    A("L_e2:")
    A(f"v_and_b32 v6, 15, v1\nv_cmp_eq_u32 vcc, {(F_DONE + 4 - L_FLAG) // 4}, v6\nv_lshlrev_b32 v6, 2, v6\nv_mov_b32 v7, 0")
    A(f"v_cndmask_b32 v5, 0, 1, vcc\nds_write_b32 v6, v5 offset:{L_FLAG}")
    if True:
        A("; GLU roles: the workgroups of head x hold nb[x] blocks of 64 hidden columns, 8 workgroups each")
        assert sum(nb) == 28
        free = [sum(4 - n for n in nb[:x]) for x in range(8)]
        tab = sum((nb[x] & 7 | (free[x] & 7) << 4) << (8 * x) for x in range(8))
        A(f"s_mov_b32 s{sT0}, {hex(tab & 0xffffffff)}\ns_mov_b32 s{sT1}, {hex(tab >> 32)}\ns_lshl_b32 s{sT2}, s{sX8}, 3\ns_lshr_b64 {s2(sT0)}, {s2(sT0)}, s{sT2}")
        A(f"s_bfe_u32 s{sT1}, s{sT0}, 0x30004\ns_and_b32 s{sT0}, s{sT0}, 7\ns_lshr_b32 s{sT2}, s{sJJ}, 3\ns_and_b32 s{sSUB}, s{sJJ}, 7")
        A(f"s_lshl2_add_u32 s{sCB}, s{sX8}, s{sT2}\ns_sub_u32 s{sCB}, s{sCB}, s{sT1}")
        A(f"s_cmp_lt_u32 s{sT2}, s{sT0}\ns_cselect_b32 s{sGL}, 1, 0")
    A(f"s_mov_b32 s{sSELL}, 0x05040100\ns_mov_b32 s{sSELH}, 0x07060302")
    A(f"s_mov_b32 s{sSCALE}, {hex(f2u(128 ** -0.5))}\ns_mov_b32 s{sLOG2E}, {hex(f2u(LOG2E))}\ns_mov_b32 s{sHI}, 0xffff0000")
    if stamps:
        for i in range(1, 8):
            if not (smode == 4 and i == 4):
                A(f"s_mov_b64 {s2(sST+2*i)}, 0")
    A("s_waitcnt lgkmcnt(0)")
    A("s_barrier")
    stamp(5, 5)
    if stamps:
        srd(rWS, sWS, hex(WS_SIZE))
        srd(rB, sDBG, 256)
    A(f"s_cmp_lg_u32 s{sW}, 0\ns_cbranch_scc1 L_notloader")

    D = win
    first_k = (D - 1) % 8
    vCNT = 24
    cnt = [0]
    def ld(line, static=False):
        i = cnt[0]
        if not static or i >= D:
            A(f"s_waitcnt vmcnt({D-1})")
        if static and i == D - 1: stamp(5, 4)
        if static and i == D: stamp(6, 4)
        A(line)
        if i % 8 == first_k and (not static or i >= D - 1 + 8):
            A(f"ds_write_b32 v7, v{vCNT} offset:{F_RDY}\nv_add_u32 v{vCNT}, 8, v{vCNT}")
        cnt[0] += 1
    A(f"v_mov_b32 v{vCNT}, 8")
    cnt[0] = 16
    assert D >= 16
    A(f"s_mul_i32 s{sT3}, s{sGL}, {hex(512 * 1792 * 2)}")
    srd(rD, sWD, f"s{sT3}")
    A(f"s_cmp_lt_u32 s{sSUB}, 4\ns_cselect_b32 s{rB}, s{sWG}, s{sWU}\ns_cselect_b32 s{rB+1}, s{sWG+1}, s{sWU+1}")
    A(f"s_mov_b32 s{rB+2}, s{sT3}\ns_mov_b32 s{rB+3}, 0x20000")
    A(f"s_and_b32 s{sT1}, s{sSUB}, 3\ns_mul_i32 s{sT1}, s{sT1}, {128*3584}\ns_lshl_b32 s{sT2}, s{sCB}, 7\ns_add_u32 s{sT1}, s{sT1}, s{sT2}")
    A(f"v_mul_u32_u24 v6, {16*3584}, v2\nv_add_u32 v6, v6, v3")
    L_GU = L_RING + (NSLOT - 1) * 16384
    for i in range(16):
        A(f"s_mov_b32 m0, {L_GU + 1024*i}")
        A(f"s_add_u32 s{sT2}, s{sT1}, {3584*i}")
        ld(f"buffer_load_dwordx4 v6, {s4(rB)}, s{sT2} offen {wflags} lds", True)
    A(f"s_lshl_b32 s{sT1}, s{sCB}, 16\ns_lshl_b32 s{sT2}, s{sSUB}, 7\ns_add_u32 s{sT1}, s{sT1}, s{sT2}")
    A(f"v_lshl_add_u32 v5, v2, 13, v3")
    for i in range(8):
        if i % 4 == 0:
            A(f"s_mov_b32 m0, {L_WD + 1024*i}")
            A(f"s_add_u32 s{sT2}, s{sT1}, {1024*i}")
        ld(f"buffer_load_dwordx4 v5, {s4(rD)}, s{sT2} offen offset:{1024*(i%4)} {wflags} lds", True)
    srd(rA, sWO, hex(4096 * 512 * 2))
    A(f"s_lshl_b32 s{sT1}, s{sX8}, 9\ns_lshr_b32 s{sT2}, s{sJJ}, 4\ns_lshl_b32 s{sT2}, s{sT2}, 6\ns_add_u32 s{sT1}, s{sT1}, s{sT2}")
    A(f"s_and_b32 s{sT2}, s{sJJ}, 12\ns_add_u32 s{sT1}, s{sT1}, s{sT2}\ns_lshl_b32 s{sT1}, s{sT1}, 10")
    A(f"s_and_b32 s{sT2}, s{sJJ}, 3\ns_lshl_b32 s{sT2}, s{sT2}, 8\ns_add_u32 s{sT1}, s{sT1}, s{sT2}")
    A(f"v_lshrrev_b32 v6, 4, v1\nv_mul_u32_u24 v6, 0x440, v6\nv_and_b32 v25, 0xf0, v4\nv_xor_b32 v6, v6, v25")
    A(f"s_mov_b32 s{sH+3}, s{sT1}")
    assert cnt[0] == 8 * U0 and D + 7 <= 8 * U0
    stamp(1)
    A(f"s_lshl_b32 s{sT0}, s{sX8}, 24\ns_lshl_b32 s{sT1}, s{sJJ}, 19\ns_add_u32 s{sT0}, s{sT0}, s{sT1}")
    A(f"s_add_u32 s{rK}, s{sK}, s{sT0}\ns_addc_u32 s{rK+1}, s{sK+1}, 0\ns_mov_b32 s{rK+2}, 0x80000\ns_mov_b32 s{rK+3}, 0x20000")
    A(f"s_add_u32 s{rV}, s{sV}, s{sT0}\ns_addc_u32 s{rV+1}, s{sV+1}, 0\ns_mov_b32 s{rV+2}, 0x80000\ns_mov_b32 s{rV+3}, 0x20000")
    A("v_and_b32 v27, 0xf0, v4\nv_bfe_u32 v5, v1, 4, 1\nv_lshl_add_u32 v27, v5, 9, v27\nv_lshrrev_b32 v5, 5, v1\nv_lshl_add_u32 v27, v5, 13, v27")
    A("v_lshrrev_b32 v5, 4, v1\nv_lshlrev_b32 v5, 6, v5\nv_xor_b32 v16, v27, v5")
    A("v_and_b32 v5, 16, v1\nv_lshlrev_b32 v5, 1, v5\nv_xor_b32 v20, v27, v5")
    for n in range(1, 4):
        A(f"v_xor_b32 v{16+n}, {16*n}, v16\nv_xor_b32 v{20+n}, {64*n}, v20")
    sI, sLV = sH + 1, sH + 2
    NV = 8 * U0 + 1024
    NLD = NV + 16
    A(f"s_mov_b32 s{sCNT}, 0\ns_mov_b32 s{sLB}, 0\ns_mov_b32 s{sFL}, 0\ns_mov_b32 s{sH}, 0\ns_mov_b32 s{sI}, {8*U0}\nv_mov_b32 v25, 0\nv_subrev_u32 v26, 8, v{vCNT}")
    A("L_tile:")
    A(f"s_cmp_lg_u32 s{sCNT}, 32\ns_cbranch_scc1 L_nosw")
    stamp(4, 1); stamp(5, 3)
    A(f"s_mov_b64 {s2(rK)}, {s2(rV)}\ns_mov_b32 s{sH}, 0")
    for n in range(4):
        A(f"v_mov_b32 v{16+n}, v{20+n}")
    A("L_nosw:")
    A(f"s_sub_u32 s{sTHR}, s{sCNT}, {NSLOT-1}")
    A(f"s_cmp_lg_u32 s{sTHR}, 0\ns_cbranch_scc1 L_nogup")
    lds_wait(F_GUP, sT2, 1, "gup", sleep=0)
    stamp(2)
    A("L_nogup:")
    lds_wait(F_DONE, sFL, f"s{sTHR}", "free", sleep=0, cached=True, pair=True)
    A(f"s_add_u32 m0, s{sLB}, {L_RING}")
    A(f"s_waitcnt lgkmcnt(0)\nv_readfirstlane_b32 s{sLV}, v25\nds_read_b32 v25, v7 offset:{F_WIN}")
    for k in range(1, len(wins)):
        A(f"s_cmp_eq_u32 s{sLV}, {k}\ns_cbranch_scc1 L_ver{k}")
    def version(idx):
        W = wins[idx]
        A(f"L_ver{idx}:")
        A(f"s_sub_u32 s{sT2}, s{sI}, {W-1}\nv_mov_b32 v{vCNT}, s{sT2}")
        A(f"L_vq{idx}:")
        for hq in range(unq):
            for n in range(4):
                A(f"s_waitcnt vmcnt({W-1})")
                A(f"buffer_load_dwordx4 v{16+n}, {s4(rK)}, s{sH} offen offset:{1024*n} {kvflags} lds")
                if n == 0:
                    A(f"v_max_i32 v26, v26, v{vCNT}\nv_add_u32 v{vCNT}, 4, v{vCNT}\nds_write_b32 v7, v26 offset:{F_RDY}")
            A(f"s_addk_i32 m0, 0x1000\ns_addk_i32 s{sH}, {(0x100, 0xf00)[hq % 2]}")
        if unq < 4:
            A(f"s_and_b32 s{sT2}, s{sH}, 0x1fff\ns_cbranch_scc1 L_vq{idx}")
    version(0)
    A("L_qend:")
    A(f"s_add_u32 s{sI}, s{sI}, 16\ns_addk_i32 s{sH}, 0x2000")
    next_slot(1)
    if stamps and smode == 3:
        for q in range(2):
            A(f"s_cmp_lg_u32 s{sCNT}, {32*q+15}\ns_cbranch_scc1 L_np{q}")
            stamp(4 + 2 * q, 3)
            A(f"L_np{q}:")
    A(f"s_add_u32 s{sCNT}, s{sCNT}, 1\ns_cmp_lt_u32 s{sCNT}, 64\ns_cbranch_scc1 L_tile")
    def pub(val):
        A(f"v_max_i32 v26, {val}, v26\nds_write_b32 v7, v26 offset:{F_RDY}")
    lds_wait(F_DONE, sFL, 64 - NSLOT + 1, "freew", sleep=0, cached=True, pair=True)
    for r in (24, 16, 8):
        if wwo <= r:
            A(f"s_waitcnt vmcnt({r})"); pub(NV - r)
    for i in range(16):
        w, h = worder[i // 4], i % 4
        A(f"s_mov_b32 m0, {L_WO + 4096*w + 1024*h}\ns_add_u32 s{sT2}, s{sH+3}, {(128*h + 16*w)*1024}")
        A(f"s_waitcnt vmcnt({wwo-1})")
        d = i - wwo + 1
        if d % 8 == 0 or (d > 0 and d % 4 == 0):
            pub(NV + d)
            if d == 0:
                stamp(3)
        A(f"buffer_load_dwordx4 v6, {s4(rA)}, s{sT2} offen {wflags} lds")
    for rem in range((wwo - 1) // 4 * 4, -1, -4):
        if rem <= 16 or rem % 8 == 0:
            A(f"v_max_i32 v26, {NLD - rem}, v26\ns_waitcnt vmcnt({rem})\nds_write_b32 v7, v26 offset:{F_RDY}")
            if rem == 16:
                stamp(3)
    A("s_branch L_fin")

    for k in range(1, len(wins)):
        version(k)
        A("s_branch L_qend")
    A("L_pace:")
    if span is not None:
        A(f"s_cmp_lg_u32 s{sJJ}, 0\ns_cbranch_scc1 L_nosk")
        A(f"s_not_b32 s{sT0}, s{sST}\nv_mov_b32 v16, s{sT0}\ns_mov_b64 exec, 1\nbuffer_atomic_umax v16, v7, {s4(rB)}, 0 offen offset:64\ns_mov_b64 exec, -1")
        A("L_nosk:")
    A(f"s_mov_b32 s{sTW}, 0")
    tail_prep()
    A(f"s_cmp_lg_u32 s{sX8}, 0\ns_cbranch_scc1 L_noh2\nbuffer_load_dword v20, v{vO2}, {s4(rWS)}, s{sO2} offen sc1\nL_noh2:")
    make_tags()
    lds_flag(F_TG)
    sP, sPP, sS, sPGA, sOWN, sPAR = sH, sH + 1, sH + 2, sH + 3, sH + 4, sH + 5
    A(f"s_getreg_b32 s{sPAR}, hwreg(HW_REG_XCC_ID, 0, 1)\ns_cmp_eq_u32 s{sPAR}, 0")
    A(f"s_cselect_b32 s{sPAR}, {ebias}, 0\ns_add_u32 s{sPAR}, s{sPAR}, {(1 << (gs - 1)) + bias}")
    A(f"s_cmp_eq_u32 s{sX8}, 0\ns_cselect_b32 s{sT0}, {b0}, 0\ns_add_u32 s{sPAR}, s{sPAR}, s{sT0}")
    lds_wait(F_QH, sMODE, 1, "qhp", sleep=8)
    A(f"s_cmp_lg_u32 s{sMODE}, 2\ns_cbranch_scc1 L_late")
    A(f"v_lshlrev_b32 v5, 2, v1\ns_add_u32 s{sPGA}, s{sXB}, {X_PG}\ns_lshl2_add_u32 s{sOWN}, s{sJJ}, s{sPGA}")
    A(f"s_mov_b32 s{sP}, 0\ns_mov_b32 s{sCNT}, 0\ns_and_b32 s{sT3}, s{sTAG}, 0xfffff800")
    A("L_pl:")
    A(f"s_mov_b32 s{sPP}, s{sP}\nds_read_b32 v16, v7 offset:{F_RDY}\ns_waitcnt lgkmcnt(0)\nv_readfirstlane_b32 s{sP}, v16")
    A(f"s_add_u32 s{sCNT}, s{sCNT}, 1\ns_cmp_gt_u32 s{sCNT}, 0x10000\ns_cbranch_scc1 L_late")
    A(f"v_or_b32 v16, s{sT3}, v16")
    A(f"s_mov_b64 exec, 1\nbuffer_store_dword v16, v7, {s4(rWS)}, s{sOWN} offen\ns_mov_b64 exec, -1")
    A(f"s_cmp_ge_u32 s{sP}, {NV - endstop}\ns_cbranch_scc1 L_late")
    A(f"s_mov_b32 exec_hi, 0\nbuffer_load_dword v17, v5, {s4(rWS)}, s{sPGA} offen sc1\ns_waitcnt vmcnt(0)")
    A(f"v_xor_b32 v19, s{sT3}, v17\nv_cmp_lt_u32 vcc, 0x7ff, v19")
    for k in (8, 4, 2, 1):
        A(f"s_nop 1\nv_add_u32 v19, v19, v19 row_ror:{k}")
    A(f"s_cbranch_vccnz L_pnext")
    A(f"v_readlane_b32 s{sS}, v19, 0\nv_readlane_b32 s{sT0}, v19, 16")
    A(f"s_cmp_eq_u32 s{sPP}, 0\ns_cbranch_scc1 L_pnext")
    A(f"s_add_u32 s{sS}, s{sS}, s{sT0}\ns_add_u32 s{sT0}, s{sP}, s{sPP}\ns_lshl_b32 s{sT0}, s{sT0}, 4\ns_sub_u32 s{sT0}, s{sS}, s{sT0}")
    A(f"s_add_u32 s{sT0}, s{sT0}, s{sPAR}\ns_ashr_i32 s{sT0}, s{sT0}, {gs}\ns_max_i32 s{sT0}, s{sT0}, 0\ns_min_i32 s{sT0}, s{sT0}, {len(wins)-1}")
    A(f"v_mov_b32 v16, s{sT0}\nds_write_b32 v7, v16 offset:{F_WIN}")
    A("L_pnext:")
    A(f"s_mov_b64 exec, -1\ns_sleep {psleep}\ns_branch L_pl")

    A("L_notloader:")
    A(f"s_load_dword s{sTAG}, {s2(sWS)}, {WS_EPOCH}")
    A(f"s_mov_b32 s{sLIM}, 0x40000\ns_mov_b32 s{sMODE}, 1\ns_lshl_b32 s{sXB}, s{sX8}, 17")
    srd(rWS, sWS, hex(WS_SIZE))
    A(f"s_mov_b32 s{sTW}, s{sW}\ns_cmp_eq_u32 s{sW}, 4\ns_cbranch_scc1 L_pace")
    A(f"s_cmp_eq_u32 s{sW}, 3\ns_cbranch_scc1 L_help")
    A(f"s_sub_u32 s{sC}, s{sW}, 1")
    A(f"s_cmp_eq_u32 s{sW}, 2\ns_cbranch_scc1 L_w2")
    if etouch == 2:
        xtouch()
    make_tags()
    A("s_branch L_qwait")
    def slice_mv(sKS, lds_base, unit0, after_read=None):
        A(f"s_lshl_b32 s{sT2}, s{sKS}, 8\nv_lshl_add_u32 v5, v2, 5, s{sT2}")
        A(f"ds_read_b128 v[20:23], v5 offset:{L_XN}\nds_read_b128 v[24:27], v5 offset:{L_XN+16}")
        A(f"v_add_u32 v6, {lds_base}, v4")
        for half in range(2):
            lds_wait(F_RDY, sFL, 8 * (unit0 + half + 1), "wsl", sleep=1)
            for i in range(8):
                A(f"ds_read_b128 {v4(64+4*i)}, v6 offset:{8192*half + 1024*i}")
            lgkm(0)
            if half == 1:
                stamp(6, 2)
                if after_read:
                    after_read()
            matvec8(64, [f"v{20+4*half+k}" for k in range(4)], 32, 40, first=(half == 0))
        reduce8(32)
        A(f"v_lshrrev_b32 v6, 4, v1\nv_lshlrev_b32 v6, 6, v6\nv_lshrrev_b32 v5, 1, v3\nv_add_u32 v6, v6, v5")
    A("L_w2:")
    A(f"s_lshr_b32 s{sT3}, s2, 6")
    A("s_waitcnt vmcnt(0)")
    stamp(4, 2)
    ln_stats(16, 28, 29, 32)
    ln_apply(16, 28, 29, 32)
    A(f"ds_write_b128 v4, v[16:19] offset:{L_XN}")
    lds_flag(F_XN)
    stamp(5, 2)
    make_tags()
    slice_mv(sT3, L_P, 0)
    sXC = sH + 4
    A(f"s_getreg_b32 s{sXC}, hwreg(HW_REG_XCC_ID, 0, 4)")
    if force:
        A(f"s_and_b32 s{sXC}, s{sJJ}, 1")
    embed(34, 32, TX2); embed(35, 33, TX2 + 1)
    A(f"v_xor_b32 v32, s{sXC}, v34\nv_xor_b32 v33, s{sXC}, v35")
    A(f"s_add_u32 s{sH}, s{sXB}, {X_QX}\ns_lshl_b32 s{sT2}, s{sJJ}, 8\ns_add_u32 s{sT1}, s{sH}, s{sT2}")
    A("s_mov_b32 exec_lo, 0x00ff00ff\ns_mov_b32 exec_hi, 0x00ff00ff")
    A(f"buffer_store_dwordx2 v[32:33], v6, {s4(rWS)}, s{sT1} offen")
    A("s_mov_b64 exec, -1")
    stamp(1)
    for k in range(4):
        A(f"v_xor_b32 v{36+k}, s{sXC}, v{TX4+k}")
    A(f"s_add_u32 s{sH+1}, s{sH}, 4096\ns_mov_b32 s{sMODE}, 2")
    A(f"s_mov_b32 s{sSPIN}, 0")
    A("L_qpoll:")
    for i in range(8):
        A(f"buffer_load_dwordx4 {v4(64+4*i)}, v4, {s4(rWS)}, s{sH+i//4} offen offset:{1024*(i%4)} sc1")
    A("s_waitcnt vmcnt(0)")
    untag([(64 + i, f"v{36+i%4}") for i in range(32)])
    A("s_cbranch_vccz L_qok")
    A(f"s_sleep {qsleep}\ns_add_u32 s{sSPIN}, s{sSPIN}, 1\ns_cmp_lt_u32 s{sSPIN}, {qtry}\ns_cbranch_scc1 L_qpoll")
    A(f"s_cmp_lg_u32 s{sSPIN}, {qtry}\ns_cbranch_scc1 L_qflip")
    A(f"s_xor_b32 s{sT1}, s{sT1}, {X_QXFAR}")
    A("s_mov_b32 exec_lo, 0x00ff00ff\ns_mov_b32 exec_hi, 0x00ff00ff")
    A(f"buffer_store_dwordx2 v[34:35], v6, {s4(rWS)}, s{sT1} offen sc1")
    A("s_mov_b64 exec, -1")
    A("L_qflip:")
    A(f"s_xor_b32 s{sH}, s{sH}, {X_QXFAR}\ns_xor_b32 s{sH+1}, s{sH+1}, {X_QXFAR}\ns_xor_b32 s{sMODE}, s{sMODE}, 3")
    for k in range(4):
        A(f"v_xor_b32 v{36+k}, s{sXC}, v{36+k}")
    A(f"s_cmp_lt_u32 s{sSPIN}, s{sLIM}\ns_cbranch_scc1 L_qpoll")
    A("L_qok:")
    for e in range(8):
        A(f"v_add_f32 v{64+e}, v{64+e}, v{72+e}\nv_add_f32 v{80+e}, v{80+e}, v{88+e}")
    for e in range(8):
        A(f"v_add_f32 v{64+e}, v{64+e}, v{80+e}")
    for e in range(4):
        A(f"v_cvt_pk_bf16_f32 v{64+e}, v{64+2*e}, v{65+2*e}")
    A(f"v_lshrrev_b32 v6, 4, v1\nv_lshlrev_b32 v6, 7, v6\nv_and_b32 v5, 3, v1\nv_lshl_add_u32 v6, v5, 5, v6")
    A(f"v_and_b32 v5, 12, v1\nv_add_u32 v6, v6, v5")
    for e in range(4):
        A(f"ds_write_b32 v6, v{64+e} offset:{L_Q + 16*(e&1) + 512*(e>>1)}")
    lds_flag(F_QH, val=f"s{sMODE}")
    A("L_qwait:")
    vOWN, vOTH = 30, 31
    A(f"s_lshl_b32 s{sT2}, s{sC}, 2\nv_mov_b32 v{vOWN}, s{sT2}\nv_xor_b32 v{vOTH}, 4, v{vOWN}")
    vQV, vKT, vS, vT, vMAX, vAD, vKA, vPA, vDN = 32, 96, 160, 164, 172, 176, 184, 188, 189
    A("v_and_b32 v5, 3, v1\nv_lshlrev_b32 v5, 10, v5\nv_bfe_u32 v6, v1, 2, 2\nv_lshl_add_u32 v5, v6, 8, v5")
    A(f"v_lshrrev_b32 v6, 4, v1\nv_xor_b32 v6, v6, v1\nv_and_b32 v6, 15, v6\nv_lshl_add_u32 v{vKA}, v6, 4, v5")
    for n in range(1, 4):
        A(f"v_xor_b32 v{vKA+n}, {64*n}, v{vKA}")
    A(f"v_and_b32 v5, 3, v1\nv_lshlrev_b32 v5, 6, v5\nv_lshrrev_b32 v6, 4, v1\nv_lshl_add_u32 v5, v6, 4, v5")
    A(f"v_mov_b32 v29, v5")
    A(f"v_and_b32 v6, 8, v1\nv_lshl_add_u32 v5, v6, 5, v5\nv_and_b32 v6, 4, v1\nv_lshl_add_u32 v5, v6, 1, v5")
    A(f"s_lshl_b32 s{sT2}, s{sC}, 9\nv_add_u32 v{vPA}, s{sT2}, v5")
    A(f"v_mov_b32 v{vMAX}, {hex(f2u(-3e38))}")
    A(f"s_add_u32 s{sT2}, s{sC}, 2\nv_mov_b32 v{vDN}, s{sT2}")
    A("v_and_b32 v6, 3, v1\nv_lshlrev_b32 v6, 8, v6\nv_lshrrev_b32 v5, 4, v1\nv_lshl_add_u32 v6, v5, 4, v6")
    A(f"s_mov_b32 s{sFL}, 0")
    lds_wait(F_QH, sMODE, 1, "qh", sleep=1)
    stamp(2)
    for s in range(4):
        A(f"ds_read_b128 {v4(vKT+4*s)}, v6 offset:{L_Q + 64*s}")
    lgkm(0)
    for b in range(4):
        A(f"s_mov_b32 vcc_lo, {hex(0x000f000f << (4*b))}\ns_mov_b32 vcc_hi, {hex(0x000f000f << (4*b))}")
        for i in range(16):
            A(f"v_cndmask_b32 v{vQV+16*b+i}, 0, v{vKT+i}, vcc")
    A(f"s_lshl_b32 s{sLB}, s{sC}, 14\ns_lshl_b32 s{sTHR}, s{sC}, 4\ns_add_u32 s{sTHR}, s{sTHR}, {8*(U0+2)}")
    A(f"s_mov_b32 s{sCNT}, 0")
    A("L_p1:")
    for n in range(4):
        A(f"v_add_u32 v{vAD+n}, s{sLB}, v{vKA+n}")
    lds_wait(F_RDY, sFL, f"s{sTHR}", "krdy", sleep=csleep, cached=True)
    for b in range(4):
        for n in range(4):
            A(f"ds_read_b128 {v4(vKT+16*b+4*n)}, v{vAD+n} offset:{L_RING + 4096*b}")
    for b in range(4):
        lgkm(12 - 4 * b)
        if b == 3:
            A(f"ds_write_b32 v{vOWN}, v{vDN} offset:{F_DONE}")
        for n in range(4):
            c = "0" if b + n == 0 else v4(vS)
            A(f"v_mfma_f32_16x16x32_bf16 {v4(vS)}, {v4(vKT+16*b+4*n)}, {v4(vQV+16*b+4*n)}, {c}")
    A(f"v_add_u32 v{vDN}, 2, v{vDN}\nv_min_u32 v{vDN}, 32, v{vDN}")
    next_slot(2)
    A(f"s_add_u32 s{sTHR}, s{sTHR}, 32\ns_add_u32 s{sCNT}, s{sCNT}, 1\ns_nop 3")
    A(f"v_cvt_pk_bf16_f32 v{vT}, v{vS}, v{vS+1}\nv_cvt_pk_bf16_f32 v{vT+1}, v{vS+2}, v{vS+3}")
    A(f"v_max3_f32 v{vMAX}, v{vMAX}, v{vS}, v{vS+1}\nv_max3_f32 v{vMAX}, v{vMAX}, v{vS+2}, v{vS+3}")
    for j in range(2):
        A(f"v_lshlrev_b32 v{vT+2+2*j}, 16, v{vT+j}\nv_and_b32 v{vT+3+2*j}, s{sHI}, v{vT+j}")
    for i in range(4):
        A(f"v_mul_f32 v{vT+2+i}, s{sSCALE}, v{vT+2+i}")
    A(f"v_cvt_pk_bf16_f32 v{vT}, v{vT+2}, v{vT+3}\nv_cvt_pk_bf16_f32 v{vT+1}, v{vT+4}, v{vT+5}")
    A(f"ds_write_b64 v{vPA}, {v2(vT)} offset:{L_P}\nv_add_u32 v{vPA}, 1024, v{vPA}")
    A(f"s_cmp_lt_u32 s{sCNT}, 16\ns_cbranch_scc1 L_p1")
    stamp(4, 1)
    wave_red(vMAX, vX0, "v_max_f32", (8, 4))
    A(f"v_and_b32 v5, 3, v1\nv_lshlrev_b32 v5, 2, v5\nv_lshl_add_u32 v6, v{vOWN}, 2, v5\nv_xor_b32 v5, 16, v6")
    A(f"ds_write_b32 v6, v{vMAX} offset:{L_MX}")
    lds_flag(F_MX, vaddr=vOWN)
    A(f"v_subrev_u32 v{vPA}, 16384, v{vPA}")
    lds_wait(F_MX, sT0, 1, "mx", sleep=0, vaddr=vOTH)
    A(f"ds_read_b32 v{vX1}, v5 offset:{L_MX}")
    for i in range(16):
        A(f"ds_read_b64 {v2(32+2*i)}, v{vPA} offset:{L_P + 1024*i}")
    lgkm(0)
    vMN, vLSUM = 173, 174
    A(f"v_max_f32 v{vMAX}, v{vMAX}, v{vX1}")
    rnd_bf16(vMAX)
    A(f"v_mul_f32 v{vMAX}, s{sSCALE}, v{vMAX}")
    rnd_bf16(vMAX)
    A(f"v_mul_f32 v{vMN}, s{sLOG2E}, v{vMAX}\nv_mov_b32 v{vLSUM}, 0")
    for i in range(0, 16, 2):
        E = 96
        for j in range(4):
            A(f"v_lshlrev_b32 v{E+2*j}, 16, v{32+2*i+j}\nv_and_b32 v{E+2*j+1}, s{sHI}, v{32+2*i+j}")
        for j in range(8):
            A(f"v_fma_f32 v{E+j}, v{E+j}, s{sLOG2E}, -v{vMN}")
        for j in range(8):
            A(f"v_exp_f32 v{E+j}, v{E+j}")
        A("s_nop 0")
        for j in range(4):
            A(f"v_cvt_pk_bf16_f32 v{32+2*i+j}, v{E+2*j}, v{E+2*j+1}")
        A(f"ds_write_b64 v{vPA}, {v2(32+2*i)} offset:{L_P + 1024*i}\nds_write_b64 v{vPA}, {v2(34+2*i)} offset:{L_P + 1024*(i+1)}")
        for j in range(4):
            A(f"v_add_f32 v{E+j}, v{E+j}, v{E+4+j}")
        A(f"v_add_f32 v{E}, v{E}, v{E+1}\nv_add_f32 v{E+2}, v{E+2}, v{E+3}\nv_add_f32 v{vLSUM}, v{vLSUM}, v{E}\nv_add_f32 v{vLSUM}, v{vLSUM}, v{E+2}")
    wave_red(vLSUM, vX0, "v_add_f32", (8, 4))
    A(f"v_lshlrev_b32 v6, 1, v6\nv_mov_b32 v{vLSUM+1}, v{vMN}\nds_write_b64 v6, {v2(vLSUM)} offset:{L_LS}")
    lds_flag(F_PD, vaddr=vOWN)
    vO, vVF, vPF, vVA = 32, 48, 80, 184
    A("v_and_b32 v5, 12, v1\nv_lshrrev_b32 v6, 4, v1\nv_add_u32 v6, v6, v5\nv_lshlrev_b32 v6, 8, v6")
    A(f"v_lshrrev_b32 v{vX1}, 3, v1\nv_and_b32 v{vX1}, 2, v{vX1}\nv_or_b32 v5, v5, v{vX1}")
    A(f"v_bfe_u32 v{vX1}, v1, 1, 1\nv_xor_b32 v5, v5, v{vX1}\ns_lshl_b32 s{sT2}, s{sC}, 3\nv_xor_b32 v5, s{sT2}, v5")
    A(f"v_lshl_add_u32 v6, v5, 4, v6\nv_and_b32 v5, 1, v1\nv_lshl_add_u32 v{vVA}, v5, 3, v6")
    for n in range(1, 4):
        A(f"v_xor_b32 v{vVA+n}, {32*n}, v{vVA}")
    for i in range(4):
        A(f"v_mov_b32 v{vO+i}, 0")
    for i in range(32):
        A(f"v_mov_b32 v{vPF+i}, 0")
    for T in range(4):
        A(f"s_mov_b32 s{sPM+2*T}, {hex(0x000f000f << (4*T))}\ns_mov_b32 s{sPM+2*T+1}, s{sPM+2*T}")
    A(f"v_mov_b32 v{vDN}, 33\nv_mov_b32 v{vPA}, v29")
    A(f"s_mov_b32 s{sLB}, {(32 % NSLOT) * 16384}\ns_mov_b32 s{sTHR}, {8*(U0+64+1)}\ns_mov_b32 s{sCNT}, 0")
    tail_prep()
    A(f"v_lshrrev_b32 v6, 2, v1\nv_lshlrev_b32 v6, 11, v6\nv_and_b32 v5, 3, v1\nv_lshl_add_u32 v{vO1}, v5, 4, v6")
    A(f"s_lshl_b32 s{sT2}, s{sC}, 15\ns_add_u32 s{sT1}, s{sXB}, s{sT2}\ns_lshl_b32 s{sT2}, s{sJJ}, 6\ns_add_u32 s{sT1}, s{sT1}, s{sT2}")
    lds_wait(F_PD, sT0, 1, "pd", sleep=0, vaddr=vOTH)
    stamp(5, 1)
    A("; ======== pass 2: P V")
    vSC = 28
    A("L_p2:")
    for n in range(4):
        A(f"v_add_u32 v{vAD+n}, s{sLB}, v{vVA+n}")
    A(f"s_cmp_lg_u32 s{sCNT}, {prept}\ns_cbranch_scc1 L_nosc")
    lds_wait(F_SC, sT0, 1, "sc", sleep=1)
    A(f"v_and_b32 v5, 3, v1\nv_lshlrev_b32 v5, 2, v5\nds_read_b32 v{vSC}, v5 offset:{L_SC}")
    A("L_nosc:")
    for T in range(4):
        A(f"s_mov_b64 exec, {s2(sPM+2*T)}")
        for ks in range(2):
            A(f"ds_read_b128 {v4(vPF+16*ks+4*T)}, v{vPA} offset:{L_P + 256*ks}")
    A("s_mov_b64 exec, -1")
    for ks in range(2):
        lds_wait(F_RDY, sFL, f"s{sTHR}", "vrdy", sleep=csleep, cached=True)
        for T in range(4):
            for ih in range(2):
                A(f"ds_read_b64_tr_b16 {v2(vVF+16*ks+4*T+2*ih)}, v{vAD+T} offset:{L_RING + 8192*ks + 4096*ih}")
        A(f"s_add_u32 s{sTHR}, s{sTHR}, 8")
        if ks == 1:
            next_slot(1)
            A(f"s_add_u32 s{sCNT}, s{sCNT}, 1\nv_add_u32 v{vPA}, 512, v{vPA}")
        for T in range(4):
            lgkm(6 - 2 * T)
            A(f"v_mfma_f32_16x16x32_bf16 {v4(vO)}, {v4(vVF+16*ks+4*T)}, {v4(vPF+16*ks+4*T)}, {v4(vO)}")
    A(f"ds_write_b32 v{vOWN}, v{vDN} offset:{F_DONE}\nv_add_u32 v{vDN}, 1, v{vDN}")
    A(f"s_cmp_lt_u32 s{sCNT}, 32\ns_cbranch_scc1 L_p2")
    stamp(3)
    A(f"s_cmp_eq_u32 s{sMODE}, 2\ns_nop 2")
    for r in range(4):
        A(f"v_mul_f32 v{vO+r}, v{vO+r}, v{vSC}")
    for r in range(4):
        embed(vO + r, vO + r, TX4 + r)
    A(f"s_cbranch_scc0 L_h1far\nbuffer_store_dwordx4 {v4(vO)}, v{vO1}, {s4(rWS)}, s{sT1} offen\ns_branch L_late2")
    A(f"L_h1far:\nbuffer_store_dwordx4 {v4(vO)}, v{vO1}, {s4(rWS)}, s{sT1} offen sc1\ns_branch L_late2")

    A("L_help:")
    srd(rA, sX, 1024)
    vG, vXP = 56, 58
    A(f"v_and_b32 v6, 3, v1\nv_lshlrev_b32 v6, 3, v6\nv_lshrrev_b32 v5, 5, v1\nv_lshl_add_u32 v6, v5, 2, v6\ns_lshl_b32 s{sT1}, s{sJJ}, 5")
    A(f"s_cmp_lg_u32 s{sX8}, 0\ns_cbranch_scc1 L_nox\nbuffer_load_dword v{vXP}, v6, {s4(rA)}, s{sT1} offen\nL_nox:")
    make_tags()
    A(f"s_cmp_lg_u32 s{sGL}, 0\ns_cbranch_scc1 L_glu")
    lds_flag(F_GUP)
    A("s_branch L_h3f")
    A("L_glu:")
    A(f"s_and_b32 s{sT3}, s{sSUB}, 3")
    lds_wait(F_XN, sT0, 1, "xn", sleep=2)
    slice_mv(sT3, L_GU, 2, after_read=lambda: lds_flag(F_GUP))
    embed(32, 32, TX2); embed(33, 33, TX2 + 1)
    lds_wait(F_QH, sMODE, 1, "qh3", sleep=4)
    A(f"s_lshl_b32 s{sT1}, s{sJJ}, 8\ns_add_u32 s{sT1}, s{sT1}, s{sXB}\ns_add_u32 s{sT1}, s{sT1}, {X_G1}\ns_and_b32 s{sT0}, s{sT1}, {hex(0xfffff800)}")
    if skip & 4: A("s_branch L_hstat")
    A("s_mov_b32 exec_lo, 0x00ff00ff\ns_mov_b32 exec_hi, 0x00ff00ff")
    store2(f"buffer_store_dwordx2 v[32:33], v6, {s4(rWS)}, s{sT1} offen", f"s_cmp_eq_u32 s{sMODE}, 2")
    A("s_mov_b64 exec, -1")
    stamp(1)
    lds_wait(F_RDY, sFL, 8 * g2gate, "g2gate", sleep=16)
    for i in range(8):
        A(f"ds_read_b128 {v4(64+4*i)}, v4 offset:{L_WD + 1024*i}")
    poll([f"buffer_load_dwordx4 {v4(32+4*i)}, v4, {s4(rWS)}, s{sT0} offen offset:{1024*i} sc1" for i in range(2)],
         chk4([32, 36]), "g1poll", sleep=32)
    for e in range(8):
        swap_red(32 + e, vX0, "v_add_f32")
        rnd_bf16(32 + e)
    for e in range(4):
        sigmoid(32 + e, 32 + e)
        rnd_bf16(32 + e)
        A(f"v_mul_f32 v{32+e}, v{32+e}, v{36+e}")
    A("v_cvt_pk_bf16_f32 v32, v32, v33\nv_cvt_pk_bf16_f32 v33, v34, v35")
    A("v_and_b32 v5, 3, v1\nv_lshlrev_b32 v5, 5, v5\nv_and_b32 v6, 12, v1\nv_add_u32 v5, v5, v6\nv_lshlrev_b32 v6, 4, v2")
    A(f"ds_write_b32 v5, v32 offset:{L_HB}\nds_write_b32 v5, v33 offset:{L_HB+16}\nds_read_b128 v[20:23], v6 offset:{L_HB}")
    lgkm(0)
    matvec8(64, [f"v{20+k}" for k in range(4)], 32, 40)
    reduce8(32)
    A(f"v_lshrrev_b32 v6, 4, v1\nv_lshlrev_b32 v6, 3, v6\nv_lshl_add_u32 v6, v3, 1, v6\nv_lshlrev_b32 v5, 2, v1")
    A(f"ds_write_b64 v6, v[32:33] offset:{L_HB}\nds_read_b32 v32, v5 offset:{L_HB}")
    A(f"v_and_b32 v5, 7, v1\nv_lshlrev_b32 v5, 2, v5\nv_lshrrev_b32 v33, v5, s{sTAG}\nv_and_b32 v33, 15, v33")
    A(f"v_lshrrev_b32 v6, 4, v1\nv_lshlrev_b32 v6, 11, v6\nv_and_b32 v5, 15, v1\nv_lshl_add_u32 v6, v5, 2, v6")
    A(f"s_lshl_b32 s{sT1}, s{sSUB}, 13\ns_lshl_b32 s{sT2}, s{sCB}, 6\ns_add_u32 s{sT1}, s{sT1}, s{sT2}\ns_add_u32 s{sT1}, s{sT1}, {WS_GL}")
    lgkm(0)
    embed(32, 32, 33)
    if not skip & 1:
        A(f"buffer_store_dword v32, v6, {s4(rWS)}, s{sT1} offen sc1")
    A("L_h3f:")
    A(f"s_cmp_lg_u32 s{sX8}, 0\ns_cbranch_scc1 L_hstat")
    if skip & 2: A("s_branch L_hstat")
    lds_wait(F_RDY, sFL, 8 * g3gate, "g3gate", sleep=16)
    A(f"s_lshl_b32 s{sH}, s{sJJ}, 11\ns_add_u32 s{sH}, s{sH}, {WS_GL}")
    A(f"v_min_u32 v6, 47, v1\nv_and_b32 v6, 60, v6\nv_and_b32 v5, 3, v1\nv_or_b32 v6, v6, v5\nv_lshlrev_b32 v6, 4, v6")
    poll([f"buffer_load_dwordx4 v[64:67], v4, {s4(rWS)}, s{sH} offen sc1",
          f"buffer_load_dwordx4 v[68:71], v6, {s4(rWS)}, s{sH} offen offset:1024 sc1"], chk4([64, 68]), "gpoll", sleep=64)
    A("s_mov_b32 exec_hi, 0xffff")
    for e in range(4):
        A(f"v_add_f32 v{64+e}, v{64+e}, v{68+e}")
    A("s_mov_b64 exec, -1")
    red4(64)
    for e in range(2):
        rnd_bf16(64 + e)
        sigmoid(68, 64 + e)
        A(f"v_mul_f32 v{vG+e}, v{64+e}, v68")
        rnd_bf16(vG + e)
    A("L_hstat:")
    stamp(2)
    lds_wait(F_PD, sT0, 1, "pdh", sleep=16, pair=True)
    lds_wait(F_TG, sT0, 1, "tg", sleep=4)
    lds_wait(F_QH, sMODE, 1, "qh4", sleep=4)
    A(f"v_and_b32 v5, 3, v1\nv_lshlrev_b32 v5, 3, v5")
    A(f"ds_read_b64 v[32:33], v5 offset:{L_LS}\nds_read_b32 v34, v5 offset:{L_LS+32}")
    lgkm(0)
    A(f"v_add_f32 v32, v32, v34\nv_log_f32 v32, v32\nv_mov_b32 v35, s{sTAG}\nv_add_f32 v34, v32, v33")
    A(f"s_add_u32 s{sT0}, s{sXB}, {X_LS}\ns_lshl_b32 s{sT1}, s{sJJ}, 5\ns_add_u32 s{sT1}, s{sT1}, s{sT0}")
    A("s_mov_b64 exec, 15")
    store2(f"buffer_store_dwordx2 v[34:35], v5, {s4(rWS)}, s{sT1} offen", f"s_cmp_eq_u32 s{sMODE}, 2")
    A("s_mov_b64 exec, -1")
    lds_wait(F_RDY, sFL, 8 * lsgate, "lsgate", sleep=16)
    A(f"v_lshlrev_b32 v6, 3, v1")
    poll([f"buffer_load_dwordx2 {v2(36+2*i)}, v6, {s4(rWS)}, s{sT0} offen offset:{512*i} sc1" for i in range(2)],
         [(37, f"s{sTAG}"), (39, f"s{sTAG}")], "lspoll", sleep=16, full=True)
    A("v_max_f32 v40, v36, v38")
    wave_red(40, vX0, "v_max_f32", (8, 4))
    A("v_sub_f32 v36, v36, v40\nv_sub_f32 v38, v38, v40\nv_exp_f32 v36, v36\nv_exp_f32 v38, v38\nv_sub_f32 v33, v33, v40\nv_add_f32 v36, v36, v38")
    wave_red(36, vX0, "v_add_f32", (8, 4))
    A("v_exp_f32 v33, v33\nv_rcp_f32 v36, v36\nv_lshrrev_b32 v5, 1, v5\nv_mul_f32 v33, v33, v36")
    A(f"ds_write_b32 v5, v33 offset:{L_SC}")
    lds_flag(F_SC)
    stamp(3)
    tail_prep()
    A("L_late:")
    lds_wait(F_RDY, sFL, NV - 16, "late", sleep=4)
    A("L_late2:")
    stamp(4, 0)
    lds_wait(F_RDY, sFL, NV + pgate, "late2", sleep=0)

    A("; ======== tail")
    A("L_tail:")
    def ld1(r):
        for i in range(2):
            A(f"buffer_load_dwordx4 {v4(r+4*i)}, v4, {s4(rWS)}, s{sI1} offen offset:{1024*i} sc1")
    ld1(144)
    lds_wait(F_RDY, sFL, NLD, "wordy", sleep=0, cached=True)
    ld1(152)
    for h in range(4):
        for z in range(2):
            A(f"ds_read_b64_tr_b16 {v2(vWO+4*h+2*z)}, v{vWA+z} offset:{L_WO + 1024*h}")
    A(f"s_mov_b32 s{sSPIN}, 0\ns_waitcnt vmcnt(2)")
    untag(chk4([144, 148]))
    padd(40, 144, 148, 4)
    A("s_cbranch_vccz L_h1ok")
    A("L_h1poll:")
    A("s_waitcnt vmcnt(0)")
    untag(chk4([152, 156]))
    padd(40, 152, 156, 4)
    A("s_cbranch_vccz L_h1ok")
    ld1(152)
    A(f"s_add_u32 s{sSPIN}, s{sSPIN}, 1\ns_cmp_lt_u32 s{sSPIN}, s{sLIM}\ns_cbranch_scc1 L_h1poll")
    A("L_h1ok:")
    stamp(5, 0)
    red4(40)
    A(f"v_cvt_pk_bf16_f32 v40, v40, v41\ns_nop 0")
    for u in range(8):
        A(f"v_readlane_b32 s{sH+u}, v40, {32*(u&1) + (u>>1)}")
    lgkm(0)
    for u in range(8):
        for z in range(2):
            c = "0" if u == 0 else f"v{48+z}"
            A(f"v_dot2_f32_bf16 v{48+z}, s{sH+u}, v{vWO+4*(u>>1)+2*z+(u&1)}, {c}")
    A(f"s_cmp_lg_u32 s{sTW}, 3\ns_nop 1")
    A(f"ds_write2_b32 v{vRW}, v48, v49 offset1:64")
    A("s_waitcnt lgkmcnt(0)\ns_barrier\ns_cbranch_scc1 L_fin")
    for p in range(4):
        A(f"ds_read_b64 {v2(42+2*p)}, v{vRR} offset:{L_RED + 512*p}")
    A(f"s_lshl2_add_u32 s{sT0}, s{sX8}, s{sMODE}\ns_cmp_eq_u32 s{sT0}, 2")
    lgkm(0)
    padd(48, 48, 42, 2); padd(44, 44, 46, 2); padd(48, 48, 44, 2)
    embed(48, 48, TX2); embed(49, 49, TX2 + 1)
    A(f"s_cbranch_scc1 L_t3\nbuffer_store_dwordx2 v[48:49], v{vO2}, {s4(rWS)}, s{sO2} offen sc1")
    A(f"s_cmp_lg_u32 s{sX8}, 0\ns_cbranch_scc1 L_fin\ns_branch L_t3b")
    A("L_t3:")
    A(f"buffer_store_dwordx2 v[48:49], v{vO2}, {s4(rWS)}, s{sO2} offen")
    A("L_t3b:")
    def ld2(i):
        A(f"buffer_load_dwordx4 {v4(64+4*i)}, v{vI2}, {s4(rWS)}, s{sI2+i} offen sc1")
    A("s_waitcnt vmcnt(0)")
    A(f"s_lshr_b32 s{sI2}, s{sJJ}, 1\ns_lshl_b32 s{sI2}, s{sI2}, 10\ns_and_b32 s{sT2}, s{sJJ}, 1\ns_lshl_b32 s{sT2}, s{sT2}, 6\ns_add_u32 s{sI2}, s{sI2}, s{sT2}")
    A(f"s_add_u32 s{sI2}, s{sI2}, {X_H2}")
    for i in range(1, 4):
        A(f"s_add_u32 s{sI2+i}, s{sI2}, {i << 18}")
    A(f"v_lshlrev_b32 v50, 16, v{vXP}\nv_and_b32 v51, s{sHI}, v{vXP}")
    srd(rA, sOUT, 1024)
    A(f"s_lshl_b32 s{sT3}, s{sJJ}, 5\ns_mov_b32 s{sSPIN}, 0")
    if tdel:
        A(f"s_sleep {tdel}")
    for i in (1, 2, 3, 0):
        ld2(i)
    A("L_h2poll:")
    A("s_waitcnt vmcnt(0)")
    untag(chk4([64, 68, 72, 76]))
    A("s_cbranch_vccz L_h2ok")
    for i in range(4):
        ld2(i)
    A(f"s_add_u32 s{sSPIN}, s{sSPIN}, 1\ns_cmp_lt_u32 s{sSPIN}, s{sLIM}\ns_cbranch_scc1 L_h2poll")
    A("L_h2ok:")
    stamp(6, 0)
    padd(64, 64, 72, 8)
    padd(64, 64, 68, 4)
    red4(64)
    A(f"v_cvt_pk_bf16_f32 v64, v64, v65\nv_and_b32 v65, s{sHI}, v64\nv_lshlrev_b32 v64, 16, v64")
    A(f"v_mul_f32 v64, v64, v{vG}\nv_mul_f32 v65, v65, v{vG+1}")
    A(f"v_cvt_pk_bf16_f32 v64, v64, v65\nv_and_b32 v65, s{sHI}, v64\nv_lshlrev_b32 v64, 16, v64")
    A("v_add_f32 v64, v64, v50\nv_add_f32 v65, v65, v51\nv_cvt_pk_bf16_f32 v64, v64, v65")
    A("s_mov_b32 exec_lo, 15\ns_mov_b32 exec_hi, 15")
    A(f"buffer_store_dword v64, v{vOA}, {s4(rA)}, s{sT3} offen")
    A(f"s_cmp_lg_u32 s{sJJ}, 0\ns_cbranch_scc1 L_fin")
    A(f"s_mov_b64 exec, 1\nv_mov_b32 v65, s{sTAG}\ns_mov_b32 s{sT1}, {WS_EPOCH}")
    A(f"buffer_store_dword v65, v7, {s4(rWS)}, s{sT1} offen")
    A("L_fin:")
    if stamps:
        A("s_mov_b64 exec, -1")
        A("s_waitcnt vmcnt(0)")
        stamp(7)
        A("s_waitcnt lgkmcnt(0)")
        if diag is not None:
            dw, dwg, di, dj, mult = diag
            A(f"s_cmp_lg_u32 s{sW}, {dw}\ns_cbranch_scc1 L_padout\ns_cmp_lg_u32 s2, {dwg}\ns_cbranch_scc1 L_padout")
            A(f"s_sub_u32 s{sT2}, s{sST+2*di}, s{sST+2*dj}\ns_mul_i32 s{sT2}, s{sT2}, {mult}\ns_min_u32 s{sT2}, s{sT2}, 100000")
            A(f"s_add_u32 s{sT2}, s{sT2}, s{sST}\ns_add_u32 s{sT2}, s{sT2}, 10000")
            A("L_pad:")
            A(f"s_memrealtime {s2(sH)}\ns_waitcnt lgkmcnt(0)\ns_sub_u32 s{sT3}, s{sH}, s{sT2}\ns_cmp_lt_i32 s{sT3}, 0\ns_cbranch_scc1 L_pad")
            A("L_padout:")
        if span is not None:
            A(f"s_cmp_lg_u32 s{sW}, {span[0]}\ns_cbranch_scc1 L_skout")
            if len(span) > 2:
                A(f"s_cmp_lg_u32 s{sX8}, {span[2]}\ns_cbranch_scc1 L_skout")
            srd(rB, 44, 256)
            A(f"buffer_load_dword v16, v7, {s4(rB)}, 0 offen offset:64 sc1\ns_waitcnt vmcnt(0)\nv_readfirstlane_b32 s{sT2}, v16\ns_nop 3")
            A(f"s_not_b32 s{sT0}, s{sT2}\ns_sub_u32 s{sT2}, s{sST+2*span[1]}, s{sT0}\ns_sub_u32 s{sT2}, s{sT2}, 3000\ns_mul_i32 s{sT2}, s{sT2}, 10\ns_min_u32 s{sT2}, s{sT2}, 100000")
            A(f"s_add_u32 s{sT2}, s{sT2}, s{sT0}\ns_add_u32 s{sT2}, s{sT2}, 10000")
            A("L_skpad:")
            A(f"s_memrealtime {s2(sH)}\ns_waitcnt lgkmcnt(0)\ns_sub_u32 s{sT3}, s{sH}, s{sT2}\ns_cmp_lt_i32 s{sT3}, 0\ns_cbranch_scc1 L_skpad")
            A("L_skout:")
        for i in range(8):
            A(f"v_mov_b32 v{96+i}, s{sST+2*i}")
        A(f"s_mul_i32 s{sT1}, s2, 5\ns_add_u32 s{sT1}, s{sT1}, s{sW}\ns_lshl_b32 s{sT1}, s{sT1}, 5\ns_add_u32 s{sT1}, s{sT1}, {WS_STAMP}")
        A("s_mov_b64 exec, 1")
        A(f"buffer_store_dwordx4 v[96:99], v7, {s4(rWS)}, s{sT1} offen")
        A(f"buffer_store_dwordx4 v[100:103], v7, {s4(rWS)}, s{sT1} offen offset:16")
    A("L_end:")
    A("s_endpgm")

    out = HEADER
    out += f"; @launch grid=(256,1,1) block=(320,1,1) lds={LDS_BYTES}\n"
    out += DOC
    out += '.amdgcn_target "amdgcn-amd-amdhsa--gfx950"\n.text\n'
    out += f".globl {KNAME}_kernel\n.p2align 8\n.type {KNAME}_kernel,@function\n"
    out += "\n".join(A.L) + "\n"
    out += f""".section .rodata,"a"
.p2align 6
.amdhsa_kernel {KNAME}_kernel
  .amdhsa_next_free_vgpr 216
  .amdhsa_next_free_sgpr 102
  .amdhsa_accum_offset 216
  .amdhsa_group_segment_fixed_size 0
  .amdhsa_kernarg_size 96
  .amdhsa_user_sgpr_count 2
  .amdhsa_user_sgpr_kernarg_segment_ptr 1
  .amdhsa_system_sgpr_workgroup_id_x 1
.end_amdhsa_kernel
"""
    return out


if __name__ == "__main__":
    kw = json.loads(sys.argv[2]) if len(sys.argv) > 2 else {}
    open(sys.argv[1], "w").write(gen(**kw))
```

```python
import sys, json, struct

KNAME = "recurrent_scan__gqa_block_cached__glu_gated_glu__decode"
HEADER = open("cdna_kernels/" + KNAME + ".s.ref").read().split("; Override launch")[0]

def f2u(x):
    return struct.unpack("<I", struct.pack("<f", x))[0]

LOG2E = 1.4426950408889634
X_H1 = 0x0
X_QX = 0x10000
X_G1 = 0x12000
X_LS = 0x14000
X_PG = 0x14400
X_LINES = 21
X_H2 = 0x15000
X_QXFAR = 0xC000
WS_EPOCH = 0x1F000
WS_GL = 0x100000
WS_STAMP = 0x1000000
WS_SIZE = 0x20000000
L_Q = 0
L_FLAG = 1024
F_RDY = L_FLAG
F_GUP = L_FLAG + 4
F_DONE = L_FLAG + 8
F_QH = L_FLAG + 16
F_XN = L_FLAG + 20
F_MX = L_FLAG + 24
F_PD = L_FLAG + 32
F_SC = L_FLAG + 40
F_WIN = L_FLAG + 44
F_TG = L_FLAG + 48
L_MX = 1152
L_LS = 1216
L_SC = 1280
L_HB = 1536
L_RED = 2048
L_XN = L_RED
L_P = 4096
L_WD = 20480
L_RING = 28672
NSLOT = 8
L_WO = L_RING
LDS_BYTES = L_RING + NSLOT * 16384
U0 = 5

sXB = 0
sFL = 3
sMODE, sLIM, sI1, sO2 = 14, 15, 24, 25
sGL = 83
sTW = 82
sPM = 48
sX, sK, sV, sWQ, sWO, sBX, sWG, sWU, sWD, sOUT, sDBG, sWS = 4, 6, 8, 10, 12, 14, 16, 18, 20, 22, 24, 26
rK, rV, rWS, rA, rB, rC, rD = 28, 32, 36, 40, 44, 48, 52
sW, sX8, sJJ, sCB, sSUB = 56, 57, 58, 59, 60
sC, sTHR, sCNT, sTAG = 61, 62, 63, 64
sSELL, sSELH, sSCALE, sLOG2E, sHI = 65, 66, 67, 68, 69
sT0, sT1, sT2, sT3 = 70, 71, 72, 73
sH = 74
sSPIN = 84
sLB = 85
sST = 86
TX4 = 8; TX2 = 12; vX0 = 14; vX1 = 15
vWO, vWT, vRW, vRR, vO2, vO1, vWA = 192, 128, 208, 209, 210, 211, 212
vI2, vOA = 214, 215
sI2 = 28


DOC = '''; ---------------------------------------------------------------------------------------------------
; ---------------------------------------------------------------------------------------------------
'''


class G:
    def __init__(self):
        self.L = []
        self.n = 0
    def __call__(self, s):
        for line in s.strip("\n").split("\n"):
            self.L.append("    " + line.strip() if not line.strip().endswith(":") else line.strip())
    def label(self, base):
        self.n += 1
        return f"L_{base}_{self.n}"


def v4(r):
    return f"v[{r}:{r+3}]"
def v2(r):
    return f"v[{r}:{r+1}]"
def s4(r):
    return f"s[{r}:{r+3}]"
def s2(r):
    return f"s[{r}:{r+1}]"


def gen(win=20, wins=(20, 21, 22, 24, 27), bias=64, ebias=224, gs=8, endstop=48, psleep=8, wwo=20, worder=(1, 2, 0, 3),
        nb=(4, 4, 4, 4, 3, 3, 3, 3), b0=-64, tdel=0, g2gate=24, g3gate=48, lsgate=100, prept=30, qsleep=4, qtry=16, unq=2,
        etouch=1, pgate=12, stamps=False, smode=0, pt=0, span=None, diag=None, skip=0, force=0):
    A = G()
    kvflags = wflags = "nt"
    csleep = h1sleep = h2sleep = 0
    if span is not None:
        stamps = True; smode = 9

    def srd(r, base, size):
        A(f"s_mov_b32 s{r}, s{base}\ns_mov_b32 s{r+1}, s{base+1}\ns_mov_b32 s{r+2}, {size}\ns_mov_b32 s{r+3}, 0x20000")

    def stamp(i, mode=None):
        if stamps and (mode is None or mode == smode):
            A(f"s_memrealtime {s2(sST + 2 * i)}")

    def lgkm(n):
        A(f"s_waitcnt lgkmcnt({n})")

    def swap_red(r, t, op, kinds=("16", "32")):
        for k in kinds:
            A(f"v_mov_b32 v{t}, v{r}\ns_nop 1\nv_permlane{k}_swap_b32 v{r}, v{t}\ns_nop 1\n{op} v{r}, v{r}, v{t}")

    def wave_red(r, t, op, rors):
        for k in rors:
            A(f"s_nop 1\n{op} v{r}, v{r}, v{r} row_ror:{k}")
        swap_red(r, t, op)

    def rnd_bf16(r):
        A(f"v_cvt_pk_bf16_f32 v{r}, v{r}, v{r}\nv_and_b32 v{r}, 0xffff0000, v{r}")

    def ln_stats(X, mean, rstd, F):
        D = F + 8
        for k in range(4):
            A(f"v_lshlrev_b32 v{F+2*k}, 16, v{X+k}\nv_and_b32 v{F+2*k+1}, s{sHI}, v{X+k}")
        A(f"v_add_f32 v{mean}, v{F}, v{F+1}")
        for k in range(2, 8):
            A(f"v_add_f32 v{mean}, v{mean}, v{F+k}")
        wave_red(mean, vX0, "v_add_f32", (8, 4, 2, 1))
        A(f"v_mul_f32 v{mean}, {hex(f2u(1/512))}, v{mean}")
        for k in range(8):
            A(f"v_sub_f32 v{D+k}, v{F+k}, v{mean}")
        A(f"v_mul_f32 v{rstd}, v{D}, v{D}")
        for k in range(1, 8):
            A(f"v_fmac_f32 v{rstd}, v{D+k}, v{D+k}")
        wave_red(rstd, vX0, "v_add_f32", (8, 4, 2, 1))
        A(f"v_mul_f32 v{rstd}, {hex(f2u(1/512))}, v{rstd}")
        rnd_bf16(mean); rnd_bf16(rstd)
        A(f"v_add_f32 v{rstd}, {hex(f2u(1e-5))}, v{rstd}")
        rnd_bf16(rstd)
        A(f"v_sqrt_f32 v{rstd}, v{rstd}\ns_nop 0")
        rnd_bf16(rstd)
        A(f"v_rcp_f32 v{rstd}, v{rstd}")

    def ln_apply(X, mean, rstd, D):
        for k in range(4):
            A(f"v_lshlrev_b32 v{D+2*k}, 16, v{X+k}\nv_and_b32 v{D+2*k+1}, s{sHI}, v{X+k}")
        for k in range(8):
            A(f"v_sub_f32 v{D+k}, v{D+k}, v{mean}")
        for k in range(4):
            A(f"v_cvt_pk_bf16_f32 v{X+k}, v{D+2*k}, v{D+2*k+1}")
        for k in range(4):
            A(f"v_lshlrev_b32 v{D+2*k}, 16, v{X+k}\nv_and_b32 v{D+2*k+1}, s{sHI}, v{X+k}")
        for k in range(8):
            A(f"v_mul_f32 v{D+k}, v{D+k}, v{rstd}")
        for k in range(4):
            A(f"v_cvt_pk_bf16_f32 v{X+k}, v{D+2*k}, v{D+2*k+1}")

    def matvec8(W, xs, acc, tmp, first=True):
        for j in range(4):
            for u in range(4):
                A(f"v_perm_b32 v{tmp+2*u}, v{W+(2*j+1)*4+u}, v{W+(2*j)*4+u}, s{sSELL}")
                A(f"v_perm_b32 v{tmp+2*u+1}, v{W+(2*j+1)*4+u}, v{W+(2*j)*4+u}, s{sSELH}")
            for e in range(8):
                c = "0" if (j == 0 and first) else f"v{acc+e}"
                A(f"v_dot2_f32_bf16 v{acc+e}, {xs[j]}, v{tmp+e}, {c}")
        A("s_nop 2")

    def reduce8(acc):
        A("s_nop 1")
        for e in range(4):
            A(f"v_permlane32_swap_b32 v{acc+e}, v{acc+4+e}")
        A("s_nop 1")
        for e in range(4):
            A(f"v_add_f32 v{acc+e}, v{acc+e}, v{acc+4+e}")
        A("s_nop 1")
        for e in range(2):
            A(f"v_permlane16_swap_b32 v{acc+e}, v{acc+2+e}")
        A("s_nop 1")
        for e in range(2):
            A(f"v_add_f32 v{acc+e}, v{acc+e}, v{acc+2+e}")
        A("s_nop 0")
        for e in range(2):
            A(f"v_add_f32 v{acc+e}, v{acc+e}, v{acc+e} row_ror:8")
        A("s_nop 0")

    def red4(a):
        A("s_nop 1")
        A(f"v_permlane32_swap_b32 v{a}, v{a+2}\nv_permlane32_swap_b32 v{a+1}, v{a+3}")
        A("s_nop 0")
        A(f"v_add_f32 v{a}, v{a}, v{a+2}\nv_add_f32 v{a+1}, v{a+1}, v{a+3}")
        for k in (8, 4):
            A("s_nop 0")
            A(f"v_add_f32 v{a}, v{a}, v{a} row_ror:{k}\nv_add_f32 v{a+1}, v{a+1}, v{a+1} row_ror:{k}")
        A(f"v_mov_b32 v{a+2}, v{a}\nv_mov_b32 v{a+3}, v{a+1}\ns_nop 0")
        A(f"v_permlane16_swap_b32 v{a}, v{a+2}\nv_permlane16_swap_b32 v{a+1}, v{a+3}")
        A("s_nop 0")
        A(f"v_add_f32 v{a}, v{a}, v{a+2}\nv_add_f32 v{a+1}, v{a+1}, v{a+3}")

    def lds_wait(addr, sreg, thr, name, sleep=1, vaddr=7, cached=False, pair=False):
        top = A.label(name); done = A.label(name + "_ok")
        if cached:
            A(f"s_cmp_ge_i32 s{sreg}, {thr}\ns_cbranch_scc1 {done}")
        A(f"s_mov_b32 s{sSPIN}, 0")
        A(f"{top}:")
        if pair:
            A(f"ds_read_b64 {v2(vX0)}, v{vaddr} offset:{addr}\ns_waitcnt lgkmcnt(0)\nv_min_i32 v{vX0}, v{vX0}, v{vX1}\ns_nop 0")
        else:
            A(f"ds_read_b32 v{vX0}, v{vaddr} offset:{addr}\ns_waitcnt lgkmcnt(0)")
        A(f"v_readfirstlane_b32 s{sreg}, v{vX0}")
        A(f"s_add_u32 s{sSPIN}, s{sSPIN}, 1")
        A(f"s_cmp_ge_i32 s{sreg}, {thr}\ns_cbranch_scc1 {done}")
        if sleep:
            A(f"s_sleep {sleep}")
        A(f"s_cmp_lt_u32 s{sSPIN}, 0x100000\ns_cbranch_scc1 {top}")
        A(f"{done}:")

    def lds_flag(addr, val=1, vaddr=7):
        A(f"v_mov_b32 v{vX0}, {val}\nds_write_b32 v{vaddr}, v{vX0} offset:{addr}")

    def make_tags():
        A(f"s_waitcnt lgkmcnt(0)\ns_add_u32 s{sTAG}, s{sTAG}, 0x9E3779B1")
        A(f"v_and_b32 v5, 1, v1\nv_lshlrev_b32 v5, 4, v5\nv_lshrrev_b32 v5, v5, s{sTAG}")
        for k in range(4):
            A(f"v_bfe_u32 v{TX4+k}, v5, {4*k}, 4")
        A(f"v_and_b32 v5, 3, v1\nv_lshlrev_b32 v5, 3, v5\nv_lshrrev_b32 v5, v5, s{sTAG}")
        for k in range(2):
            A(f"v_bfe_u32 v{TX2+k}, v5, {4*k}, 4")

    def embed(dst, src, tag):
        A(f"v_and_or_b32 v{dst}, v{src}, -16, v{tag}")

    def untag(checks):
        for r, t in checks:
            A(f"v_xor_b32 v{r}, {t}, v{r}")
        rs = [r for r, _ in checks]
        A(f"v_or_b32 v{vX0}, v{rs[0]}, v{rs[1]}")
        for i in range(2, len(rs), 2):
            A(f"v_or3_b32 v{vX0}, v{vX0}, v{rs[i]}, v{rs[i+1]}")
        A(f"v_and_b32 v{vX0}, 15, v{vX0}\nv_cmp_ne_u32 vcc, 0, v{vX0}")

    def padd(d, a, b, n):
        for e in range(0, n, 2):
            A(f"v_pk_add_f32 {v2(d+e)}, {v2(a+e)}, {v2(b+e)}")

    def poll(loads, checks, name, sleep=0, full=False, landed=None):
        top = A.label(name); done = A.label(name + "_ok")
        A(f"s_mov_b32 s{sSPIN}, 0")
        A(f"{top}:")
        for l in loads:
            A(l)
        A("s_waitcnt vmcnt(0)")
        if landed:
            A(landed)
        if full:
            A(f"v_xor_b32 v{vX0}, {checks[0][1]}, v{checks[0][0]}")
            for r, t in checks[1:]:
                A(f"v_bitop3_b32 v{vX0}, v{vX0}, v{r}, {t} bitop3:0xf6")
            A(f"v_cmp_ne_u32 vcc, 0, v{vX0}")
        else:
            untag(checks)
        A(f"s_cbranch_vccz {done}")
        if sleep:
            A(f"s_sleep {sleep}")
        A(f"s_add_u32 s{sSPIN}, s{sSPIN}, 1\ns_cmp_lt_u32 s{sSPIN}, s{sLIM}\ns_cbranch_scc1 {top}")
        A(f"{done}:")

    def store2(line, cond_scc1_near):
        far = A.label("far"); done = A.label("st")
        A(cond_scc1_near)
        A(f"s_cbranch_scc0 {far}\n{line}\ns_branch {done}\n{far}:\n{line} sc1\n{done}:")

    def chk4(regs):
        return [(r + k, f"v{TX4+k}") for r in regs for k in range(4)]

    def next_slot(step):
        A(f"s_add_u32 s{sLB}, s{sLB}, {step*16384}\ns_and_b32 s{sLB}, s{sLB}, {NSLOT*16384-1}")

    def tail_prep():
        A(f"v_bfe_u32 v5, v1, 2, 3\nv_lshlrev_b32 v5, 7, v5\nv_lshrrev_b32 v6, 5, v1\nv_lshl_add_u32 v5, v6, 17, v5")
        A(f"v_and_b32 v{vOA}, 3, v1\nv_lshl_add_u32 v{vI2}, v{vOA}, 4, v5\nv_lshl_add_u32 v{vOA}, v{vOA}, 1, v6\nv_lshlrev_b32 v{vOA}, 2, v{vOA}")
        A(f"v_bfe_u32 v5, v1, 2, 2\nv_mul_u32_u24 v5, 0x140, v5\nv_lshrrev_b32 v6, 4, v1\nv_lshlrev_b32 v6, 5, v6\nv_xor_b32 v5, v5, v6")
        A(f"v_and_b32 v6, 3, v1\nv_lshl_add_u32 v5, v6, 3, v5\ns_lshl_b32 s{sT2}, s{sTW}, 12\nv_add_u32 v{vWA}, s{sT2}, v5\nv_xor_b32 v{vWA+1}, 0x80, v{vWA}")
        A(f"s_and_b32 s{sT2}, s{sJJ}, 28\ns_add_u32 s{sT2}, s{sT2}, s{sTW}\ns_lshl_b32 s{sT2}, s{sT2}, 11\ns_add_u32 s{sI1}, s{sXB}, s{sT2}")
        A(f"s_lshl_b32 s{sT2}, s{sTW}, 9\ns_add_u32 s{sT2}, s{sT2}, {L_RED}\nv_lshl_add_u32 v{vRW}, v1, 2, s{sT2}\nv_lshlrev_b32 v{vRR}, 3, v1")
        A(f"v_and_b32 v5, 15, v1\nv_lshlrev_b32 v5, 3, v5\nv_lshrrev_b32 v6, 4, v1\nv_lshl_add_u32 v{vO2}, v6, 10, v5")
        A(f"s_and_b32 s{sO2}, s{sJJ}, 3\ns_lshl_b32 s{sO2}, s{sO2}, 12\ns_add_u32 s{sO2}, s{sO2}, s{sXB}")
        A(f"s_lshr_b32 s{sT2}, s{sJJ}, 2\ns_lshl_b32 s{sT2}, s{sT2}, 7\ns_add_u32 s{sO2}, s{sO2}, s{sT2}\ns_add_u32 s{sO2}, s{sO2}, {X_H2}")

    def sigmoid(dst, src):
        A(f"v_mul_f32 v{dst}, s{sLOG2E}, v{src}\nv_exp_f32 v{dst}, -v{dst}\ns_nop 0\nv_add_f32 v{dst}, 1.0, v{dst}\nv_rcp_f32 v{dst}, v{dst}\ns_nop 0")

    A("; ======== entry")
    A(f"{KNAME}_kernel:")
    A("s_cmpk_ge_u32 s2, 0x100\ns_cbranch_scc1 L_end")
    stamp(0)
    A(f"s_load_dwordx16 s[4:19], s[0:1], 0\ns_load_dwordx8 s[20:27], s[0:1], 64")
    A(f"v_and_b32 v1, 63, v0\nv_readfirstlane_b32 s{sW}, v0")
    A(f"s_and_b32 s{sX8}, s2, 7\ns_lshr_b32 s{sJJ}, s2, 3")
    A("v_lshlrev_b32 v4, 4, v1")
    A("v_lshrrev_b32 v2, 3, v1\nv_and_b32 v3, 0x70, v4")
    A(f"s_mov_b32 s{rA+3}, 0x20000\ns_lshr_b32 s{sW}, s{sW}, 6\ns_cbranch_scc1 L_e1")
    A(f"s_and_b32 s{sT1}, s{sJJ}, 7\ns_lshl3_add_u32 s{sT1}, s{sX8}, s{sT1}\ns_lshl_b32 s{sT1}, s{sT1}, 7")
    A(f"s_lshr_b32 s{sT2}, s2, 6\ns_lshl_b32 s{sT2}, s{sT2}, 20\ns_add_u32 s{sT1}, s{sT1}, s{sT2}")
    A(f"v_lshl_add_u32 v5, v2, 17, v3\ns_bfm_b32 s{rA+2}, 1, 22\ns_movk_i32 m0, {L_P}")
    A(f"s_waitcnt lgkmcnt(0)\ns_mov_b64 {s2(rA)}, {s2(sWQ)}")
    stamp(4, 4)
    A("L_wq:")
    A(f"buffer_load_dwordx4 v5, {s4(rA)}, s{sT1} offen {wflags} lds")
    A(f"s_addk_i32 m0, 0x400\ns_addk_i32 s{sT1}, 0x2000\ns_cmpk_lt_u32 m0, {L_P + 16384}\ns_cbranch_scc1 L_wq")
    A("s_branch L_e2")
    A("L_e1:")
    A(f"s_cmp_lg_u32 s{sW}, 2\ns_cbranch_scc1 L_e1b")
    A(f"s_movk_i32 s{rA+2}, 0x400\ns_waitcnt lgkmcnt(0)\ns_mov_b64 {s2(rA)}, {s2(sX)}")
    A(f"buffer_load_dwordx4 v[16:19], v4, {s4(rA)}, 0 offen")
    A("L_e1b:")
    A(f"s_cmp_lg_u32 s{sW}, 1\ns_cbranch_scc1 L_e2")
    A(f"s_getpc_b64 {s2(sT0)}")
    A("L_pc:")
    A(f"s_lshl_b32 s{sT2}, s{sJJ}, 6\nv_add_u32 v5, s{sT2}, v1\nv_mul_u32_u24 v5, 12, v5\nv_min_u32 v5, L_end-L_pc, v5")
    A(f"global_load_dword v16, v5, {s2(sT0)}")
    def xtouch():
        A(f"v_min_u32 v6, {X_LINES-1}, v1\ns_mul_i32 s{sT2}, s{sJJ}, {X_LINES}\ns_lshl_b32 s{sT3}, s{sX8}, 10\ns_add_u32 s{sT2}, s{sT2}, s{sT3}")
        A(f"v_add_lshl_u32 v6, v6, s{sT2}, 7\ns_waitcnt lgkmcnt(0)\nglobal_load_dword v17, v6, {s2(sWS)} sc1")
    if etouch == 1:
        xtouch()
    A("L_e2:")
    A(f"v_and_b32 v6, 15, v1\nv_cmp_eq_u32 vcc, {(F_DONE + 4 - L_FLAG) // 4}, v6\nv_lshlrev_b32 v6, 2, v6\nv_mov_b32 v7, 0")
    A(f"v_cndmask_b32 v5, 0, 1, vcc\nds_write_b32 v6, v5 offset:{L_FLAG}")
    if True:
        A("; GLU roles: the workgroups of head x hold nb[x] blocks of 64 hidden columns, 8 workgroups each")
        assert sum(nb) == 28
        free = [sum(4 - n for n in nb[:x]) for x in range(8)]
        tab = sum((nb[x] & 7 | (free[x] & 7) << 4) << (8 * x) for x in range(8))
        A(f"s_mov_b32 s{sT0}, {hex(tab & 0xffffffff)}\ns_mov_b32 s{sT1}, {hex(tab >> 32)}\ns_lshl_b32 s{sT2}, s{sX8}, 3\ns_lshr_b64 {s2(sT0)}, {s2(sT0)}, s{sT2}")
        A(f"s_bfe_u32 s{sT1}, s{sT0}, 0x30004\ns_and_b32 s{sT0}, s{sT0}, 7\ns_lshr_b32 s{sT2}, s{sJJ}, 3\ns_and_b32 s{sSUB}, s{sJJ}, 7")
        A(f"s_lshl2_add_u32 s{sCB}, s{sX8}, s{sT2}\ns_sub_u32 s{sCB}, s{sCB}, s{sT1}")
        A(f"s_cmp_lt_u32 s{sT2}, s{sT0}\ns_cselect_b32 s{sGL}, 1, 0")
    A(f"s_mov_b32 s{sSELL}, 0x05040100\ns_mov_b32 s{sSELH}, 0x07060302")
    A(f"s_mov_b32 s{sSCALE}, {hex(f2u(128 ** -0.5))}\ns_mov_b32 s{sLOG2E}, {hex(f2u(LOG2E))}\ns_mov_b32 s{sHI}, 0xffff0000")
    if stamps:
        for i in range(1, 8):
            if not (smode == 4 and i == 4):
                A(f"s_mov_b64 {s2(sST+2*i)}, 0")
    A("s_waitcnt lgkmcnt(0)")
    A("s_barrier")
    stamp(5, 5)
    if stamps:
        srd(rWS, sWS, hex(WS_SIZE))
        srd(rB, sDBG, 256)
    A(f"s_cmp_lg_u32 s{sW}, 0\ns_cbranch_scc1 L_notloader")

    D = win
    first_k = (D - 1) % 8
    vCNT = 24
    cnt = [0]
    def ld(line, static=False):
        i = cnt[0]
        if not static or i >= D:
            A(f"s_waitcnt vmcnt({D-1})")
        if static and i == D - 1: stamp(5, 4)
        if static and i == D: stamp(6, 4)
        A(line)
        if i % 8 == first_k and (not static or i >= D - 1 + 8):
            A(f"ds_write_b32 v7, v{vCNT} offset:{F_RDY}\nv_add_u32 v{vCNT}, 8, v{vCNT}")
        cnt[0] += 1
    A(f"v_mov_b32 v{vCNT}, 8")
    cnt[0] = 16
    assert D >= 16
    A(f"s_mul_i32 s{sT3}, s{sGL}, {hex(512 * 1792 * 2)}")
    srd(rD, sWD, f"s{sT3}")
    A(f"s_cmp_lt_u32 s{sSUB}, 4\ns_cselect_b32 s{rB}, s{sWG}, s{sWU}\ns_cselect_b32 s{rB+1}, s{sWG+1}, s{sWU+1}")
    A(f"s_mov_b32 s{rB+2}, s{sT3}\ns_mov_b32 s{rB+3}, 0x20000")
    A(f"s_and_b32 s{sT1}, s{sSUB}, 3\ns_mul_i32 s{sT1}, s{sT1}, {128*3584}\ns_lshl_b32 s{sT2}, s{sCB}, 7\ns_add_u32 s{sT1}, s{sT1}, s{sT2}")
    A(f"v_mul_u32_u24 v6, {16*3584}, v2\nv_add_u32 v6, v6, v3")
    L_GU = L_RING + (NSLOT - 1) * 16384
    for i in range(16):
        A(f"s_mov_b32 m0, {L_GU + 1024*i}")
        A(f"s_add_u32 s{sT2}, s{sT1}, {3584*i}")
        ld(f"buffer_load_dwordx4 v6, {s4(rB)}, s{sT2} offen {wflags} lds", True)
    A(f"s_lshl_b32 s{sT1}, s{sCB}, 16\ns_lshl_b32 s{sT2}, s{sSUB}, 7\ns_add_u32 s{sT1}, s{sT1}, s{sT2}")
    A(f"v_lshl_add_u32 v5, v2, 13, v3")
    for i in range(8):
        if i % 4 == 0:
            A(f"s_mov_b32 m0, {L_WD + 1024*i}")
            A(f"s_add_u32 s{sT2}, s{sT1}, {1024*i}")
        ld(f"buffer_load_dwordx4 v5, {s4(rD)}, s{sT2} offen offset:{1024*(i%4)} {wflags} lds", True)
    srd(rA, sWO, hex(4096 * 512 * 2))
    A(f"s_lshl_b32 s{sT1}, s{sX8}, 9\ns_lshr_b32 s{sT2}, s{sJJ}, 4\ns_lshl_b32 s{sT2}, s{sT2}, 6\ns_add_u32 s{sT1}, s{sT1}, s{sT2}")
    A(f"s_and_b32 s{sT2}, s{sJJ}, 12\ns_add_u32 s{sT1}, s{sT1}, s{sT2}\ns_lshl_b32 s{sT1}, s{sT1}, 10")
    A(f"s_and_b32 s{sT2}, s{sJJ}, 3\ns_lshl_b32 s{sT2}, s{sT2}, 8\ns_add_u32 s{sT1}, s{sT1}, s{sT2}")
    A(f"v_lshrrev_b32 v6, 4, v1\nv_mul_u32_u24 v6, 0x440, v6\nv_and_b32 v25, 0xf0, v4\nv_xor_b32 v6, v6, v25")
    A(f"s_mov_b32 s{sH+3}, s{sT1}")
    assert cnt[0] == 8 * U0 and D + 7 <= 8 * U0
    stamp(1)
    A(f"s_lshl_b32 s{sT0}, s{sX8}, 24\ns_lshl_b32 s{sT1}, s{sJJ}, 19\ns_add_u32 s{sT0}, s{sT0}, s{sT1}")
    A(f"s_add_u32 s{rK}, s{sK}, s{sT0}\ns_addc_u32 s{rK+1}, s{sK+1}, 0\ns_mov_b32 s{rK+2}, 0x80000\ns_mov_b32 s{rK+3}, 0x20000")
    A(f"s_add_u32 s{rV}, s{sV}, s{sT0}\ns_addc_u32 s{rV+1}, s{sV+1}, 0\ns_mov_b32 s{rV+2}, 0x80000\ns_mov_b32 s{rV+3}, 0x20000")
    A("v_and_b32 v27, 0xf0, v4\nv_bfe_u32 v5, v1, 4, 1\nv_lshl_add_u32 v27, v5, 9, v27\nv_lshrrev_b32 v5, 5, v1\nv_lshl_add_u32 v27, v5, 13, v27")
    A("v_lshrrev_b32 v5, 4, v1\nv_lshlrev_b32 v5, 6, v5\nv_xor_b32 v16, v27, v5")
    A("v_and_b32 v5, 16, v1\nv_lshlrev_b32 v5, 1, v5\nv_xor_b32 v20, v27, v5")
    for n in range(1, 4):
        A(f"v_xor_b32 v{16+n}, {16*n}, v16\nv_xor_b32 v{20+n}, {64*n}, v20")
    sI, sLV = sH + 1, sH + 2
    NV = 8 * U0 + 1024
    NLD = NV + 16
    A(f"s_mov_b32 s{sCNT}, 0\ns_mov_b32 s{sLB}, 0\ns_mov_b32 s{sFL}, 0\ns_mov_b32 s{sH}, 0\ns_mov_b32 s{sI}, {8*U0}\nv_mov_b32 v25, 0\nv_subrev_u32 v26, 8, v{vCNT}")
    A("L_tile:")
    A(f"s_cmp_lg_u32 s{sCNT}, 32\ns_cbranch_scc1 L_nosw")
    stamp(4, 1); stamp(5, 3)
    A(f"s_mov_b64 {s2(rK)}, {s2(rV)}\ns_mov_b32 s{sH}, 0")
    for n in range(4):
        A(f"v_mov_b32 v{16+n}, v{20+n}")
    A("L_nosw:")
    A(f"s_sub_u32 s{sTHR}, s{sCNT}, {NSLOT-1}")
    A(f"s_cmp_lg_u32 s{sTHR}, 0\ns_cbranch_scc1 L_nogup")
    lds_wait(F_GUP, sT2, 1, "gup", sleep=0)
    stamp(2)
    A("L_nogup:")
    lds_wait(F_DONE, sFL, f"s{sTHR}", "free", sleep=0, cached=True, pair=True)
    A(f"s_add_u32 m0, s{sLB}, {L_RING}")
    A(f"s_waitcnt lgkmcnt(0)\nv_readfirstlane_b32 s{sLV}, v25\nds_read_b32 v25, v7 offset:{F_WIN}")
    for k in range(1, len(wins)):
        A(f"s_cmp_eq_u32 s{sLV}, {k}\ns_cbranch_scc1 L_ver{k}")
    def version(idx):
        W = wins[idx]
        A(f"L_ver{idx}:")
        A(f"s_sub_u32 s{sT2}, s{sI}, {W-1}\nv_mov_b32 v{vCNT}, s{sT2}")
        A(f"L_vq{idx}:")
        for hq in range(unq):
            for n in range(4):
                A(f"s_waitcnt vmcnt({W-1})")
                A(f"buffer_load_dwordx4 v{16+n}, {s4(rK)}, s{sH} offen offset:{1024*n} {kvflags} lds")
                if n == 0:
                    A(f"v_max_i32 v26, v26, v{vCNT}\nv_add_u32 v{vCNT}, 4, v{vCNT}\nds_write_b32 v7, v26 offset:{F_RDY}")
            A(f"s_addk_i32 m0, 0x1000\ns_addk_i32 s{sH}, {(0x100, 0xf00)[hq % 2]}")
        if unq < 4:
            A(f"s_and_b32 s{sT2}, s{sH}, 0x1fff\ns_cbranch_scc1 L_vq{idx}")
    version(0)
    A("L_qend:")
    A(f"s_add_u32 s{sI}, s{sI}, 16\ns_addk_i32 s{sH}, 0x2000")
    next_slot(1)
    if stamps and smode == 3:
        for q in range(2):
            A(f"s_cmp_lg_u32 s{sCNT}, {32*q+15}\ns_cbranch_scc1 L_np{q}")
            stamp(4 + 2 * q, 3)
            A(f"L_np{q}:")
    A(f"s_add_u32 s{sCNT}, s{sCNT}, 1\ns_cmp_lt_u32 s{sCNT}, 64\ns_cbranch_scc1 L_tile")
    def pub(val):
        A(f"v_max_i32 v26, {val}, v26\nds_write_b32 v7, v26 offset:{F_RDY}")
    lds_wait(F_DONE, sFL, 64 - NSLOT + 1, "freew", sleep=0, cached=True, pair=True)
    for r in (24, 16, 8):
        if wwo <= r:
            A(f"s_waitcnt vmcnt({r})"); pub(NV - r)
    for i in range(16):
        w, h = worder[i // 4], i % 4
        A(f"s_mov_b32 m0, {L_WO + 4096*w + 1024*h}\ns_add_u32 s{sT2}, s{sH+3}, {(128*h + 16*w)*1024}")
        A(f"s_waitcnt vmcnt({wwo-1})")
        d = i - wwo + 1
        if d % 8 == 0 or (d > 0 and d % 4 == 0):
            pub(NV + d)
            if d == 0:
                stamp(3)
        A(f"buffer_load_dwordx4 v6, {s4(rA)}, s{sT2} offen {wflags} lds")
    for rem in range((wwo - 1) // 4 * 4, -1, -4):
        if rem <= 16 or rem % 8 == 0:
            A(f"v_max_i32 v26, {NLD - rem}, v26\ns_waitcnt vmcnt({rem})\nds_write_b32 v7, v26 offset:{F_RDY}")
            if rem == 16:
                stamp(3)
    A("s_branch L_fin")

    for k in range(1, len(wins)):
        version(k)
        A("s_branch L_qend")
    A("L_pace:")
    if span is not None:
        A(f"s_cmp_lg_u32 s{sJJ}, 0\ns_cbranch_scc1 L_nosk")
        A(f"s_not_b32 s{sT0}, s{sST}\nv_mov_b32 v16, s{sT0}\ns_mov_b64 exec, 1\nbuffer_atomic_umax v16, v7, {s4(rB)}, 0 offen offset:64\ns_mov_b64 exec, -1")
        A("L_nosk:")
    if pt:
        A("; address translations that are needed later, while the memory system is still starting up")
        A(f"s_lshl_b32 s{sT0}, s{sX8}, 24\ns_lshl_b32 s{sT1}, s{sJJ}, 19\ns_add_u32 s{sT0}, s{sT0}, s{sT1}\nv_mov_b32 v21, s{sT0}")
        A(f"s_lshr_b32 s{sT0}, s{sT0}, 5\nv_mov_b32 v22, s{sT0}\ns_mov_b64 exec, 1")
        if pt & 1: A(f"global_load_dword v23, v21, {s2(sK)} nt")
        if pt & 2: A(f"global_load_dword v24, v21, {s2(sV)} nt")
        if pt & 4: A(f"global_load_dword v25, v22, {s2(sWO)} nt")
        if pt & 8: A(f"s_cmp_lg_u32 s{sX8}, 0\ns_cbranch_scc1 L_noout\nglobal_load_dword v26, v7, {s2(sOUT)} nt\nL_noout:")
        A("s_mov_b64 exec, -1")
    A(f"s_mov_b32 s{sTW}, 0")
    tail_prep()
    A(f"s_cmp_lg_u32 s{sX8}, 0\ns_cbranch_scc1 L_noh2\nbuffer_load_dword v20, v{vO2}, {s4(rWS)}, s{sO2} offen sc1\nL_noh2:")
    make_tags()
    lds_flag(F_TG)
    sP, sPP, sS, sPGA, sOWN, sPAR = sH, sH + 1, sH + 2, sH + 3, sH + 4, sH + 5
    A(f"s_getreg_b32 s{sPAR}, hwreg(HW_REG_XCC_ID, 0, 1)\ns_cmp_eq_u32 s{sPAR}, 0")
    A(f"s_cselect_b32 s{sPAR}, {ebias}, 0\ns_add_u32 s{sPAR}, s{sPAR}, {(1 << (gs - 1)) + bias}")
    A(f"s_cmp_eq_u32 s{sX8}, 0\ns_cselect_b32 s{sT0}, {b0}, 0\ns_add_u32 s{sPAR}, s{sPAR}, s{sT0}")
    lds_wait(F_QH, sMODE, 1, "qhp", sleep=8)
    A(f"s_cmp_lg_u32 s{sMODE}, 2\ns_cbranch_scc1 L_late")
    A(f"v_lshlrev_b32 v5, 2, v1\ns_add_u32 s{sPGA}, s{sXB}, {X_PG}\ns_lshl2_add_u32 s{sOWN}, s{sJJ}, s{sPGA}")
    A(f"s_mov_b32 s{sP}, 0\ns_mov_b32 s{sCNT}, 0\ns_and_b32 s{sT3}, s{sTAG}, 0xfffff800")
    A("L_pl:")
    A(f"s_mov_b32 s{sPP}, s{sP}\nds_read_b32 v16, v7 offset:{F_RDY}\ns_waitcnt lgkmcnt(0)\nv_readfirstlane_b32 s{sP}, v16")
    A(f"s_add_u32 s{sCNT}, s{sCNT}, 1\ns_cmp_gt_u32 s{sCNT}, 0x10000\ns_cbranch_scc1 L_late")
    A(f"v_or_b32 v16, s{sT3}, v16")
    A(f"s_mov_b64 exec, 1\nbuffer_store_dword v16, v7, {s4(rWS)}, s{sOWN} offen\ns_mov_b64 exec, -1")
    A(f"s_cmp_ge_u32 s{sP}, {NV - endstop}\ns_cbranch_scc1 L_late")
    A(f"s_mov_b32 exec_hi, 0\nbuffer_load_dword v17, v5, {s4(rWS)}, s{sPGA} offen sc1\ns_waitcnt vmcnt(0)")
    A(f"v_xor_b32 v19, s{sT3}, v17\nv_cmp_lt_u32 vcc, 0x7ff, v19")
    for k in (8, 4, 2, 1):
        A(f"s_nop 1\nv_add_u32 v19, v19, v19 row_ror:{k}")
    A(f"s_cbranch_vccnz L_pnext")
    A(f"v_readlane_b32 s{sS}, v19, 0\nv_readlane_b32 s{sT0}, v19, 16")
    A(f"s_cmp_eq_u32 s{sPP}, 0\ns_cbranch_scc1 L_pnext")
    A(f"s_add_u32 s{sS}, s{sS}, s{sT0}\ns_add_u32 s{sT0}, s{sP}, s{sPP}\ns_lshl_b32 s{sT0}, s{sT0}, 4\ns_sub_u32 s{sT0}, s{sS}, s{sT0}")
    A(f"s_add_u32 s{sT0}, s{sT0}, s{sPAR}\ns_ashr_i32 s{sT0}, s{sT0}, {gs}\ns_max_i32 s{sT0}, s{sT0}, 0\ns_min_i32 s{sT0}, s{sT0}, {len(wins)-1}")
    A(f"v_mov_b32 v16, s{sT0}\nds_write_b32 v7, v16 offset:{F_WIN}")
    A("L_pnext:")
    A(f"s_mov_b64 exec, -1\ns_sleep {psleep}\ns_branch L_pl")

    A("L_notloader:")
    A(f"s_load_dword s{sTAG}, {s2(sWS)}, {WS_EPOCH}")
    A(f"s_mov_b32 s{sLIM}, 0x40000\ns_mov_b32 s{sMODE}, 1\ns_lshl_b32 s{sXB}, s{sX8}, 17")
    srd(rWS, sWS, hex(WS_SIZE))
    A(f"s_mov_b32 s{sTW}, s{sW}\ns_cmp_eq_u32 s{sW}, 4\ns_cbranch_scc1 L_pace")
    A(f"s_cmp_eq_u32 s{sW}, 3\ns_cbranch_scc1 L_help")
    A(f"s_sub_u32 s{sC}, s{sW}, 1")
    A(f"s_cmp_eq_u32 s{sW}, 2\ns_cbranch_scc1 L_w2")
    if etouch == 2:
        xtouch()
    make_tags()
    A("s_branch L_qwait")
    def slice_mv(sKS, lds_base, unit0, after_read=None):
        A(f"s_lshl_b32 s{sT2}, s{sKS}, 8\nv_lshl_add_u32 v5, v2, 5, s{sT2}")
        A(f"ds_read_b128 v[20:23], v5 offset:{L_XN}\nds_read_b128 v[24:27], v5 offset:{L_XN+16}")
        A(f"v_add_u32 v6, {lds_base}, v4")
        for half in range(2):
            lds_wait(F_RDY, sFL, 8 * (unit0 + half + 1), "wsl", sleep=1)
            for i in range(8):
                A(f"ds_read_b128 {v4(64+4*i)}, v6 offset:{8192*half + 1024*i}")
            lgkm(0)
            if half == 1:
                stamp(6, 2)
                if after_read:
                    after_read()
            matvec8(64, [f"v{20+4*half+k}" for k in range(4)], 32, 40, first=(half == 0))
        reduce8(32)
        A(f"v_lshrrev_b32 v6, 4, v1\nv_lshlrev_b32 v6, 6, v6\nv_lshrrev_b32 v5, 1, v3\nv_add_u32 v6, v6, v5")
    A("L_w2:")
    A(f"s_lshr_b32 s{sT3}, s2, 6")
    A("s_waitcnt vmcnt(0)")
    stamp(4, 2)
    ln_stats(16, 28, 29, 32)
    ln_apply(16, 28, 29, 32)
    A(f"ds_write_b128 v4, v[16:19] offset:{L_XN}")
    lds_flag(F_XN)
    stamp(5, 2)
    make_tags()
    slice_mv(sT3, L_P, 0)
    sXC = sH + 4
    A(f"s_getreg_b32 s{sXC}, hwreg(HW_REG_XCC_ID, 0, 4)")
    if force:
        A(f"s_and_b32 s{sXC}, s{sJJ}, 1")
    embed(34, 32, TX2); embed(35, 33, TX2 + 1)
    A(f"v_xor_b32 v32, s{sXC}, v34\nv_xor_b32 v33, s{sXC}, v35")
    A(f"s_add_u32 s{sH}, s{sXB}, {X_QX}\ns_lshl_b32 s{sT2}, s{sJJ}, 8\ns_add_u32 s{sT1}, s{sH}, s{sT2}")
    A("s_mov_b32 exec_lo, 0x00ff00ff\ns_mov_b32 exec_hi, 0x00ff00ff")
    A(f"buffer_store_dwordx2 v[32:33], v6, {s4(rWS)}, s{sT1} offen")
    A("s_mov_b64 exec, -1")
    stamp(1)
    for k in range(4):
        A(f"v_xor_b32 v{36+k}, s{sXC}, v{TX4+k}")
    A(f"s_add_u32 s{sH+1}, s{sH}, 4096\ns_mov_b32 s{sMODE}, 2")
    A(f"s_mov_b32 s{sSPIN}, 0")
    A("L_qpoll:")
    for i in range(8):
        A(f"buffer_load_dwordx4 {v4(64+4*i)}, v4, {s4(rWS)}, s{sH+i//4} offen offset:{1024*(i%4)} sc1")
    A("s_waitcnt vmcnt(0)")
    untag([(64 + i, f"v{36+i%4}") for i in range(32)])
    A("s_cbranch_vccz L_qok")
    A(f"s_sleep {qsleep}\ns_add_u32 s{sSPIN}, s{sSPIN}, 1\ns_cmp_lt_u32 s{sSPIN}, {qtry}\ns_cbranch_scc1 L_qpoll")
    A(f"s_cmp_lg_u32 s{sSPIN}, {qtry}\ns_cbranch_scc1 L_qflip")
    A(f"s_xor_b32 s{sT1}, s{sT1}, {X_QXFAR}")
    A("s_mov_b32 exec_lo, 0x00ff00ff\ns_mov_b32 exec_hi, 0x00ff00ff")
    A(f"buffer_store_dwordx2 v[34:35], v6, {s4(rWS)}, s{sT1} offen sc1")
    A("s_mov_b64 exec, -1")
    A("L_qflip:")
    A(f"s_xor_b32 s{sH}, s{sH}, {X_QXFAR}\ns_xor_b32 s{sH+1}, s{sH+1}, {X_QXFAR}\ns_xor_b32 s{sMODE}, s{sMODE}, 3")
    for k in range(4):
        A(f"v_xor_b32 v{36+k}, s{sXC}, v{36+k}")
    A(f"s_cmp_lt_u32 s{sSPIN}, s{sLIM}\ns_cbranch_scc1 L_qpoll")
    A("L_qok:")
    for e in range(8):
        A(f"v_add_f32 v{64+e}, v{64+e}, v{72+e}\nv_add_f32 v{80+e}, v{80+e}, v{88+e}")
    for e in range(8):
        A(f"v_add_f32 v{64+e}, v{64+e}, v{80+e}")
    for e in range(4):
        A(f"v_cvt_pk_bf16_f32 v{64+e}, v{64+2*e}, v{65+2*e}")
    A(f"v_lshrrev_b32 v6, 4, v1\nv_lshlrev_b32 v6, 7, v6\nv_and_b32 v5, 3, v1\nv_lshl_add_u32 v6, v5, 5, v6")
    A(f"v_and_b32 v5, 12, v1\nv_add_u32 v6, v6, v5")
    for e in range(4):
        A(f"ds_write_b32 v6, v{64+e} offset:{L_Q + 16*(e&1) + 512*(e>>1)}")
    lds_flag(F_QH, val=f"s{sMODE}")
    A("L_qwait:")
    vOWN, vOTH = 30, 31
    A(f"s_lshl_b32 s{sT2}, s{sC}, 2\nv_mov_b32 v{vOWN}, s{sT2}\nv_xor_b32 v{vOTH}, 4, v{vOWN}")
    vQV, vKT, vS, vT, vMAX, vAD, vKA, vPA, vDN = 32, 96, 160, 164, 172, 176, 184, 188, 189
    A("v_and_b32 v5, 3, v1\nv_lshlrev_b32 v5, 10, v5\nv_bfe_u32 v6, v1, 2, 2\nv_lshl_add_u32 v5, v6, 8, v5")
    A(f"v_lshrrev_b32 v6, 4, v1\nv_xor_b32 v6, v6, v1\nv_and_b32 v6, 15, v6\nv_lshl_add_u32 v{vKA}, v6, 4, v5")
    for n in range(1, 4):
        A(f"v_xor_b32 v{vKA+n}, {64*n}, v{vKA}")
    A(f"v_and_b32 v5, 3, v1\nv_lshlrev_b32 v5, 6, v5\nv_lshrrev_b32 v6, 4, v1\nv_lshl_add_u32 v5, v6, 4, v5")
    A(f"v_mov_b32 v29, v5")
    A(f"v_and_b32 v6, 8, v1\nv_lshl_add_u32 v5, v6, 5, v5\nv_and_b32 v6, 4, v1\nv_lshl_add_u32 v5, v6, 1, v5")
    A(f"s_lshl_b32 s{sT2}, s{sC}, 9\nv_add_u32 v{vPA}, s{sT2}, v5")
    A(f"v_mov_b32 v{vMAX}, {hex(f2u(-3e38))}")
    A(f"s_add_u32 s{sT2}, s{sC}, 2\nv_mov_b32 v{vDN}, s{sT2}")
    A("v_and_b32 v6, 3, v1\nv_lshlrev_b32 v6, 8, v6\nv_lshrrev_b32 v5, 4, v1\nv_lshl_add_u32 v6, v5, 4, v6")
    A(f"s_mov_b32 s{sFL}, 0")
    lds_wait(F_QH, sMODE, 1, "qh", sleep=1)
    stamp(2)
    for s in range(4):
        A(f"ds_read_b128 {v4(vKT+4*s)}, v6 offset:{L_Q + 64*s}")
    lgkm(0)
    for b in range(4):
        A(f"s_mov_b32 vcc_lo, {hex(0x000f000f << (4*b))}\ns_mov_b32 vcc_hi, {hex(0x000f000f << (4*b))}")
        for i in range(16):
            A(f"v_cndmask_b32 v{vQV+16*b+i}, 0, v{vKT+i}, vcc")
    A(f"s_lshl_b32 s{sLB}, s{sC}, 14\ns_lshl_b32 s{sTHR}, s{sC}, 4\ns_add_u32 s{sTHR}, s{sTHR}, {8*(U0+2)}")
    A(f"s_mov_b32 s{sCNT}, 0")
    A("L_p1:")
    for n in range(4):
        A(f"v_add_u32 v{vAD+n}, s{sLB}, v{vKA+n}")
    lds_wait(F_RDY, sFL, f"s{sTHR}", "krdy", sleep=csleep, cached=True)
    for b in range(4):
        for n in range(4):
            A(f"ds_read_b128 {v4(vKT+16*b+4*n)}, v{vAD+n} offset:{L_RING + 4096*b}")
    for b in range(4):
        lgkm(12 - 4 * b)
        if b == 3:
            A(f"ds_write_b32 v{vOWN}, v{vDN} offset:{F_DONE}")
        for n in range(4):
            c = "0" if b + n == 0 else v4(vS)
            A(f"v_mfma_f32_16x16x32_bf16 {v4(vS)}, {v4(vKT+16*b+4*n)}, {v4(vQV+16*b+4*n)}, {c}")
    A(f"v_add_u32 v{vDN}, 2, v{vDN}\nv_min_u32 v{vDN}, 32, v{vDN}")
    next_slot(2)
    A(f"s_add_u32 s{sTHR}, s{sTHR}, 32\ns_add_u32 s{sCNT}, s{sCNT}, 1\ns_nop 3")
    A(f"v_cvt_pk_bf16_f32 v{vT}, v{vS}, v{vS+1}\nv_cvt_pk_bf16_f32 v{vT+1}, v{vS+2}, v{vS+3}")
    A(f"v_max3_f32 v{vMAX}, v{vMAX}, v{vS}, v{vS+1}\nv_max3_f32 v{vMAX}, v{vMAX}, v{vS+2}, v{vS+3}")
    for j in range(2):
        A(f"v_lshlrev_b32 v{vT+2+2*j}, 16, v{vT+j}\nv_and_b32 v{vT+3+2*j}, s{sHI}, v{vT+j}")
    for i in range(4):
        A(f"v_mul_f32 v{vT+2+i}, s{sSCALE}, v{vT+2+i}")
    A(f"v_cvt_pk_bf16_f32 v{vT}, v{vT+2}, v{vT+3}\nv_cvt_pk_bf16_f32 v{vT+1}, v{vT+4}, v{vT+5}")
    A(f"ds_write_b64 v{vPA}, {v2(vT)} offset:{L_P}\nv_add_u32 v{vPA}, 1024, v{vPA}")
    A(f"s_cmp_lt_u32 s{sCNT}, 16\ns_cbranch_scc1 L_p1")
    stamp(4, 1)
    wave_red(vMAX, vX0, "v_max_f32", (8, 4))
    A(f"v_and_b32 v5, 3, v1\nv_lshlrev_b32 v5, 2, v5\nv_lshl_add_u32 v6, v{vOWN}, 2, v5\nv_xor_b32 v5, 16, v6")
    A(f"ds_write_b32 v6, v{vMAX} offset:{L_MX}")
    lds_flag(F_MX, vaddr=vOWN)
    A(f"v_subrev_u32 v{vPA}, 16384, v{vPA}")
    lds_wait(F_MX, sT0, 1, "mx", sleep=0, vaddr=vOTH)
    A(f"ds_read_b32 v{vX1}, v5 offset:{L_MX}")
    for i in range(16):
        A(f"ds_read_b64 {v2(32+2*i)}, v{vPA} offset:{L_P + 1024*i}")
    lgkm(0)
    vMN, vLSUM = 173, 174
    A(f"v_max_f32 v{vMAX}, v{vMAX}, v{vX1}")
    rnd_bf16(vMAX)
    A(f"v_mul_f32 v{vMAX}, s{sSCALE}, v{vMAX}")
    rnd_bf16(vMAX)
    A(f"v_mul_f32 v{vMN}, s{sLOG2E}, v{vMAX}\nv_mov_b32 v{vLSUM}, 0")
    for i in range(0, 16, 2):
        E = 96
        for j in range(4):
            A(f"v_lshlrev_b32 v{E+2*j}, 16, v{32+2*i+j}\nv_and_b32 v{E+2*j+1}, s{sHI}, v{32+2*i+j}")
        for j in range(8):
            A(f"v_fma_f32 v{E+j}, v{E+j}, s{sLOG2E}, -v{vMN}")
        for j in range(8):
            A(f"v_exp_f32 v{E+j}, v{E+j}")
        A("s_nop 0")
        for j in range(4):
            A(f"v_cvt_pk_bf16_f32 v{32+2*i+j}, v{E+2*j}, v{E+2*j+1}")
        A(f"ds_write_b64 v{vPA}, {v2(32+2*i)} offset:{L_P + 1024*i}\nds_write_b64 v{vPA}, {v2(34+2*i)} offset:{L_P + 1024*(i+1)}")
        for j in range(4):
            A(f"v_add_f32 v{E+j}, v{E+j}, v{E+4+j}")
        A(f"v_add_f32 v{E}, v{E}, v{E+1}\nv_add_f32 v{E+2}, v{E+2}, v{E+3}\nv_add_f32 v{vLSUM}, v{vLSUM}, v{E}\nv_add_f32 v{vLSUM}, v{vLSUM}, v{E+2}")
    wave_red(vLSUM, vX0, "v_add_f32", (8, 4))
    A(f"v_lshlrev_b32 v6, 1, v6\nv_mov_b32 v{vLSUM+1}, v{vMN}\nds_write_b64 v6, {v2(vLSUM)} offset:{L_LS}")
    lds_flag(F_PD, vaddr=vOWN)
    vO, vVF, vPF, vVA = 32, 48, 80, 184
    A("v_and_b32 v5, 12, v1\nv_lshrrev_b32 v6, 4, v1\nv_add_u32 v6, v6, v5\nv_lshlrev_b32 v6, 8, v6")
    A(f"v_lshrrev_b32 v{vX1}, 3, v1\nv_and_b32 v{vX1}, 2, v{vX1}\nv_or_b32 v5, v5, v{vX1}")
    A(f"v_bfe_u32 v{vX1}, v1, 1, 1\nv_xor_b32 v5, v5, v{vX1}\ns_lshl_b32 s{sT2}, s{sC}, 3\nv_xor_b32 v5, s{sT2}, v5")
    A(f"v_lshl_add_u32 v6, v5, 4, v6\nv_and_b32 v5, 1, v1\nv_lshl_add_u32 v{vVA}, v5, 3, v6")
    for n in range(1, 4):
        A(f"v_xor_b32 v{vVA+n}, {32*n}, v{vVA}")
    for i in range(4):
        A(f"v_mov_b32 v{vO+i}, 0")
    for i in range(32):
        A(f"v_mov_b32 v{vPF+i}, 0")
    for T in range(4):
        A(f"s_mov_b32 s{sPM+2*T}, {hex(0x000f000f << (4*T))}\ns_mov_b32 s{sPM+2*T+1}, s{sPM+2*T}")
    A(f"v_mov_b32 v{vDN}, 33\nv_mov_b32 v{vPA}, v29")
    A(f"s_mov_b32 s{sLB}, {(32 % NSLOT) * 16384}\ns_mov_b32 s{sTHR}, {8*(U0+64+1)}\ns_mov_b32 s{sCNT}, 0")
    tail_prep()
    A(f"v_lshrrev_b32 v6, 2, v1\nv_lshlrev_b32 v6, 11, v6\nv_and_b32 v5, 3, v1\nv_lshl_add_u32 v{vO1}, v5, 4, v6")
    A(f"s_lshl_b32 s{sT2}, s{sC}, 15\ns_add_u32 s{sT1}, s{sXB}, s{sT2}\ns_lshl_b32 s{sT2}, s{sJJ}, 6\ns_add_u32 s{sT1}, s{sT1}, s{sT2}")
    lds_wait(F_PD, sT0, 1, "pd", sleep=0, vaddr=vOTH)
    stamp(5, 1)
    A("; ======== pass 2: P V")
    vSC = 28
    A("L_p2:")
    for n in range(4):
        A(f"v_add_u32 v{vAD+n}, s{sLB}, v{vVA+n}")
    A(f"s_cmp_lg_u32 s{sCNT}, {prept}\ns_cbranch_scc1 L_nosc")
    lds_wait(F_SC, sT0, 1, "sc", sleep=1)
    A(f"v_and_b32 v5, 3, v1\nv_lshlrev_b32 v5, 2, v5\nds_read_b32 v{vSC}, v5 offset:{L_SC}")
    A("L_nosc:")
    for T in range(4):
        A(f"s_mov_b64 exec, {s2(sPM+2*T)}")
        for ks in range(2):
            A(f"ds_read_b128 {v4(vPF+16*ks+4*T)}, v{vPA} offset:{L_P + 256*ks}")
    A("s_mov_b64 exec, -1")
    for ks in range(2):
        lds_wait(F_RDY, sFL, f"s{sTHR}", "vrdy", sleep=csleep, cached=True)
        for T in range(4):
            for ih in range(2):
                A(f"ds_read_b64_tr_b16 {v2(vVF+16*ks+4*T+2*ih)}, v{vAD+T} offset:{L_RING + 8192*ks + 4096*ih}")
        A(f"s_add_u32 s{sTHR}, s{sTHR}, 8")
        if ks == 1:
            next_slot(1)
            A(f"s_add_u32 s{sCNT}, s{sCNT}, 1\nv_add_u32 v{vPA}, 512, v{vPA}")
        for T in range(4):
            lgkm(6 - 2 * T)
            A(f"v_mfma_f32_16x16x32_bf16 {v4(vO)}, {v4(vVF+16*ks+4*T)}, {v4(vPF+16*ks+4*T)}, {v4(vO)}")
    A(f"ds_write_b32 v{vOWN}, v{vDN} offset:{F_DONE}\nv_add_u32 v{vDN}, 1, v{vDN}")
    A(f"s_cmp_lt_u32 s{sCNT}, 32\ns_cbranch_scc1 L_p2")
    stamp(3)
    A(f"s_cmp_eq_u32 s{sMODE}, 2\ns_nop 2")
    for r in range(4):
        A(f"v_mul_f32 v{vO+r}, v{vO+r}, v{vSC}")
    for r in range(4):
        embed(vO + r, vO + r, TX4 + r)
    A(f"s_cbranch_scc0 L_h1far\nbuffer_store_dwordx4 {v4(vO)}, v{vO1}, {s4(rWS)}, s{sT1} offen\ns_branch L_late2")
    A(f"L_h1far:\nbuffer_store_dwordx4 {v4(vO)}, v{vO1}, {s4(rWS)}, s{sT1} offen sc1\ns_branch L_late2")

    A("L_help:")
    srd(rA, sX, 1024)
    vG, vXP = 56, 58
    A(f"v_and_b32 v6, 3, v1\nv_lshlrev_b32 v6, 3, v6\nv_lshrrev_b32 v5, 5, v1\nv_lshl_add_u32 v6, v5, 2, v6\ns_lshl_b32 s{sT1}, s{sJJ}, 5")
    A(f"s_cmp_lg_u32 s{sX8}, 0\ns_cbranch_scc1 L_nox\nbuffer_load_dword v{vXP}, v6, {s4(rA)}, s{sT1} offen\nL_nox:")
    make_tags()
    A(f"s_cmp_lg_u32 s{sGL}, 0\ns_cbranch_scc1 L_glu")
    lds_flag(F_GUP)
    A("s_branch L_h3f")
    A("L_glu:")
    A(f"s_and_b32 s{sT3}, s{sSUB}, 3")
    lds_wait(F_XN, sT0, 1, "xn", sleep=2)
    slice_mv(sT3, L_GU, 2, after_read=lambda: lds_flag(F_GUP))
    embed(32, 32, TX2); embed(33, 33, TX2 + 1)
    lds_wait(F_QH, sMODE, 1, "qh3", sleep=4)
    A(f"s_lshl_b32 s{sT1}, s{sJJ}, 8\ns_add_u32 s{sT1}, s{sT1}, s{sXB}\ns_add_u32 s{sT1}, s{sT1}, {X_G1}\ns_and_b32 s{sT0}, s{sT1}, {hex(0xfffff800)}")
    if skip & 4: A("s_branch L_hstat")
    A("s_mov_b32 exec_lo, 0x00ff00ff\ns_mov_b32 exec_hi, 0x00ff00ff")
    store2(f"buffer_store_dwordx2 v[32:33], v6, {s4(rWS)}, s{sT1} offen", f"s_cmp_eq_u32 s{sMODE}, 2")
    A("s_mov_b64 exec, -1")
    stamp(1)
    lds_wait(F_RDY, sFL, 8 * g2gate, "g2gate", sleep=16)
    for i in range(8):
        A(f"ds_read_b128 {v4(64+4*i)}, v4 offset:{L_WD + 1024*i}")
    poll([f"buffer_load_dwordx4 {v4(32+4*i)}, v4, {s4(rWS)}, s{sT0} offen offset:{1024*i} sc1" for i in range(2)],
         chk4([32, 36]), "g1poll", sleep=32)
    for e in range(8):
        swap_red(32 + e, vX0, "v_add_f32")
        rnd_bf16(32 + e)
    for e in range(4):
        sigmoid(32 + e, 32 + e)
        rnd_bf16(32 + e)
        A(f"v_mul_f32 v{32+e}, v{32+e}, v{36+e}")
    A("v_cvt_pk_bf16_f32 v32, v32, v33\nv_cvt_pk_bf16_f32 v33, v34, v35")
    A("v_and_b32 v5, 3, v1\nv_lshlrev_b32 v5, 5, v5\nv_and_b32 v6, 12, v1\nv_add_u32 v5, v5, v6\nv_lshlrev_b32 v6, 4, v2")
    A(f"ds_write_b32 v5, v32 offset:{L_HB}\nds_write_b32 v5, v33 offset:{L_HB+16}\nds_read_b128 v[20:23], v6 offset:{L_HB}")
    lgkm(0)
    matvec8(64, [f"v{20+k}" for k in range(4)], 32, 40)
    reduce8(32)
    A(f"v_lshrrev_b32 v6, 4, v1\nv_lshlrev_b32 v6, 3, v6\nv_lshl_add_u32 v6, v3, 1, v6\nv_lshlrev_b32 v5, 2, v1")
    A(f"ds_write_b64 v6, v[32:33] offset:{L_HB}\nds_read_b32 v32, v5 offset:{L_HB}")
    A(f"v_and_b32 v5, 7, v1\nv_lshlrev_b32 v5, 2, v5\nv_lshrrev_b32 v33, v5, s{sTAG}\nv_and_b32 v33, 15, v33")
    A(f"v_lshrrev_b32 v6, 4, v1\nv_lshlrev_b32 v6, 11, v6\nv_and_b32 v5, 15, v1\nv_lshl_add_u32 v6, v5, 2, v6")
    A(f"s_lshl_b32 s{sT1}, s{sSUB}, 13\ns_lshl_b32 s{sT2}, s{sCB}, 6\ns_add_u32 s{sT1}, s{sT1}, s{sT2}\ns_add_u32 s{sT1}, s{sT1}, {WS_GL}")
    lgkm(0)
    embed(32, 32, 33)
    if not skip & 1:
        A(f"buffer_store_dword v32, v6, {s4(rWS)}, s{sT1} offen sc1")
    A("L_h3f:")
    A(f"s_cmp_lg_u32 s{sX8}, 0\ns_cbranch_scc1 L_hstat")
    if skip & 2: A("s_branch L_hstat")
    lds_wait(F_RDY, sFL, 8 * g3gate, "g3gate", sleep=16)
    A(f"s_lshl_b32 s{sH}, s{sJJ}, 11\ns_add_u32 s{sH}, s{sH}, {WS_GL}")
    A(f"v_min_u32 v6, 47, v1\nv_and_b32 v6, 60, v6\nv_and_b32 v5, 3, v1\nv_or_b32 v6, v6, v5\nv_lshlrev_b32 v6, 4, v6")
    poll([f"buffer_load_dwordx4 v[64:67], v4, {s4(rWS)}, s{sH} offen sc1",
          f"buffer_load_dwordx4 v[68:71], v6, {s4(rWS)}, s{sH} offen offset:1024 sc1"], chk4([64, 68]), "gpoll", sleep=64)
    A("s_mov_b32 exec_hi, 0xffff")
    for e in range(4):
        A(f"v_add_f32 v{64+e}, v{64+e}, v{68+e}")
    A("s_mov_b64 exec, -1")
    red4(64)
    for e in range(2):
        rnd_bf16(64 + e)
        sigmoid(68, 64 + e)
        A(f"v_mul_f32 v{vG+e}, v{64+e}, v68")
        rnd_bf16(vG + e)
    A("L_hstat:")
    stamp(2)
    lds_wait(F_PD, sT0, 1, "pdh", sleep=16, pair=True)
    lds_wait(F_TG, sT0, 1, "tg", sleep=4)
    lds_wait(F_QH, sMODE, 1, "qh4", sleep=4)
    A(f"v_and_b32 v5, 3, v1\nv_lshlrev_b32 v5, 3, v5")
    A(f"ds_read_b64 v[32:33], v5 offset:{L_LS}\nds_read_b32 v34, v5 offset:{L_LS+32}")
    lgkm(0)
    A(f"v_add_f32 v32, v32, v34\nv_log_f32 v32, v32\nv_mov_b32 v35, s{sTAG}\nv_add_f32 v34, v32, v33")
    A(f"s_add_u32 s{sT0}, s{sXB}, {X_LS}\ns_lshl_b32 s{sT1}, s{sJJ}, 5\ns_add_u32 s{sT1}, s{sT1}, s{sT0}")
    A("s_mov_b64 exec, 15")
    store2(f"buffer_store_dwordx2 v[34:35], v5, {s4(rWS)}, s{sT1} offen", f"s_cmp_eq_u32 s{sMODE}, 2")
    A("s_mov_b64 exec, -1")
    lds_wait(F_RDY, sFL, 8 * lsgate, "lsgate", sleep=16)
    A(f"v_lshlrev_b32 v6, 3, v1")
    poll([f"buffer_load_dwordx2 {v2(36+2*i)}, v6, {s4(rWS)}, s{sT0} offen offset:{512*i} sc1" for i in range(2)],
         [(37, f"s{sTAG}"), (39, f"s{sTAG}")], "lspoll", sleep=16, full=True)
    A("v_max_f32 v40, v36, v38")
    wave_red(40, vX0, "v_max_f32", (8, 4))
    A("v_sub_f32 v36, v36, v40\nv_sub_f32 v38, v38, v40\nv_exp_f32 v36, v36\nv_exp_f32 v38, v38\nv_sub_f32 v33, v33, v40\nv_add_f32 v36, v36, v38")
    wave_red(36, vX0, "v_add_f32", (8, 4))
    A("v_exp_f32 v33, v33\nv_rcp_f32 v36, v36\nv_lshrrev_b32 v5, 1, v5\nv_mul_f32 v33, v33, v36")
    A(f"ds_write_b32 v5, v33 offset:{L_SC}")
    lds_flag(F_SC)
    stamp(3)
    tail_prep()
    A("L_late:")
    lds_wait(F_RDY, sFL, NV - 16, "late", sleep=4)
    A("L_late2:")
    stamp(4, 0)
    lds_wait(F_RDY, sFL, NV + pgate, "late2", sleep=0)

    A("; ======== tail")
    A("L_tail:")
    def ld1(r):
        for i in range(2):
            A(f"buffer_load_dwordx4 {v4(r+4*i)}, v4, {s4(rWS)}, s{sI1} offen offset:{1024*i} sc1")
    ld1(144)
    lds_wait(F_RDY, sFL, NLD, "wordy", sleep=0, cached=True)
    ld1(152)
    for h in range(4):
        for z in range(2):
            A(f"ds_read_b64_tr_b16 {v2(vWO+4*h+2*z)}, v{vWA+z} offset:{L_WO + 1024*h}")
    A(f"s_mov_b32 s{sSPIN}, 0\ns_waitcnt vmcnt(2)")
    untag(chk4([144, 148]))
    padd(40, 144, 148, 4)
    A("s_cbranch_vccz L_h1ok")
    A("L_h1poll:")
    A("s_waitcnt vmcnt(0)")
    untag(chk4([152, 156]))
    padd(40, 152, 156, 4)
    A("s_cbranch_vccz L_h1ok")
    ld1(152)
    A(f"s_add_u32 s{sSPIN}, s{sSPIN}, 1\ns_cmp_lt_u32 s{sSPIN}, s{sLIM}\ns_cbranch_scc1 L_h1poll")
    A("L_h1ok:")
    stamp(5, 0)
    red4(40)
    A(f"v_cvt_pk_bf16_f32 v40, v40, v41\ns_nop 0")
    for u in range(8):
        A(f"v_readlane_b32 s{sH+u}, v40, {32*(u&1) + (u>>1)}")
    lgkm(0)
    for u in range(8):
        for z in range(2):
            c = "0" if u == 0 else f"v{48+z}"
            A(f"v_dot2_f32_bf16 v{48+z}, s{sH+u}, v{vWO+4*(u>>1)+2*z+(u&1)}, {c}")
    A(f"s_cmp_lg_u32 s{sTW}, 3\ns_nop 1")
    A(f"ds_write2_b32 v{vRW}, v48, v49 offset1:64")
    A("s_waitcnt lgkmcnt(0)\ns_barrier\ns_cbranch_scc1 L_fin")
    for p in range(4):
        A(f"ds_read_b64 {v2(42+2*p)}, v{vRR} offset:{L_RED + 512*p}")
    A(f"s_lshl2_add_u32 s{sT0}, s{sX8}, s{sMODE}\ns_cmp_eq_u32 s{sT0}, 2")
    lgkm(0)
    padd(48, 48, 42, 2); padd(44, 44, 46, 2); padd(48, 48, 44, 2)
    embed(48, 48, TX2); embed(49, 49, TX2 + 1)
    A(f"s_cbranch_scc1 L_t3\nbuffer_store_dwordx2 v[48:49], v{vO2}, {s4(rWS)}, s{sO2} offen sc1")
    A(f"s_cmp_lg_u32 s{sX8}, 0\ns_cbranch_scc1 L_fin\ns_branch L_t3b")
    A("L_t3:")
    A(f"buffer_store_dwordx2 v[48:49], v{vO2}, {s4(rWS)}, s{sO2} offen")
    A("L_t3b:")
    def ld2(i):
        A(f"buffer_load_dwordx4 {v4(64+4*i)}, v{vI2}, {s4(rWS)}, s{sI2+i} offen sc1")
    A("s_waitcnt vmcnt(0)")
    A(f"s_lshr_b32 s{sI2}, s{sJJ}, 1\ns_lshl_b32 s{sI2}, s{sI2}, 10\ns_and_b32 s{sT2}, s{sJJ}, 1\ns_lshl_b32 s{sT2}, s{sT2}, 6\ns_add_u32 s{sI2}, s{sI2}, s{sT2}")
    A(f"s_add_u32 s{sI2}, s{sI2}, {X_H2}")
    for i in range(1, 4):
        A(f"s_add_u32 s{sI2+i}, s{sI2}, {i << 18}")
    A(f"v_lshlrev_b32 v50, 16, v{vXP}\nv_and_b32 v51, s{sHI}, v{vXP}")
    srd(rA, sOUT, 1024)
    A(f"s_lshl_b32 s{sT3}, s{sJJ}, 5\ns_mov_b32 s{sSPIN}, 0")
    if tdel:
        A(f"s_sleep {tdel}")
    for i in (1, 2, 3, 0):
        ld2(i)
    A("L_h2poll:")
    A("s_waitcnt vmcnt(0)")
    untag(chk4([64, 68, 72, 76]))
    A("s_cbranch_vccz L_h2ok")
    for i in range(4):
        ld2(i)
    A(f"s_add_u32 s{sSPIN}, s{sSPIN}, 1\ns_cmp_lt_u32 s{sSPIN}, s{sLIM}\ns_cbranch_scc1 L_h2poll")
    A("L_h2ok:")
    stamp(6, 0)
    padd(64, 64, 72, 8)
    padd(64, 64, 68, 4)
    red4(64)
    A(f"v_cvt_pk_bf16_f32 v64, v64, v65\nv_and_b32 v65, s{sHI}, v64\nv_lshlrev_b32 v64, 16, v64")
    A(f"v_mul_f32 v64, v64, v{vG}\nv_mul_f32 v65, v65, v{vG+1}")
    A(f"v_cvt_pk_bf16_f32 v64, v64, v65\nv_and_b32 v65, s{sHI}, v64\nv_lshlrev_b32 v64, 16, v64")
    A("v_add_f32 v64, v64, v50\nv_add_f32 v65, v65, v51\nv_cvt_pk_bf16_f32 v64, v64, v65")
    A("s_mov_b32 exec_lo, 15\ns_mov_b32 exec_hi, 15")
    A(f"buffer_store_dword v64, v{vOA}, {s4(rA)}, s{sT3} offen")
    A(f"s_cmp_lg_u32 s{sJJ}, 0\ns_cbranch_scc1 L_fin")
    A(f"s_mov_b64 exec, 1\nv_mov_b32 v65, s{sTAG}\ns_mov_b32 s{sT1}, {WS_EPOCH}")
    A(f"buffer_store_dword v65, v7, {s4(rWS)}, s{sT1} offen")
    A("L_fin:")
    if stamps:
        A("s_mov_b64 exec, -1")
        A("s_waitcnt vmcnt(0)")
        stamp(7)
        A("s_waitcnt lgkmcnt(0)")
        if diag is not None:
            dw, dwg, di, dj, mult = diag
            A(f"s_cmp_lg_u32 s{sW}, {dw}\ns_cbranch_scc1 L_padout\ns_cmp_lg_u32 s2, {dwg}\ns_cbranch_scc1 L_padout")
            A(f"s_sub_u32 s{sT2}, s{sST+2*di}, s{sST+2*dj}\ns_mul_i32 s{sT2}, s{sT2}, {mult}\ns_min_u32 s{sT2}, s{sT2}, 100000")
            A(f"s_add_u32 s{sT2}, s{sT2}, s{sST}\ns_add_u32 s{sT2}, s{sT2}, 10000")
            A("L_pad:")
            A(f"s_memrealtime {s2(sH)}\ns_waitcnt lgkmcnt(0)\ns_sub_u32 s{sT3}, s{sH}, s{sT2}\ns_cmp_lt_i32 s{sT3}, 0\ns_cbranch_scc1 L_pad")
            A("L_padout:")
        if span is not None:
            A(f"s_cmp_lg_u32 s{sW}, {span[0]}\ns_cbranch_scc1 L_skout")
            if len(span) > 2:
                A(f"s_cmp_lg_u32 s{sX8}, {span[2]}\ns_cbranch_scc1 L_skout")
            srd(rB, 44, 256)
            A(f"buffer_load_dword v16, v7, {s4(rB)}, 0 offen offset:64 sc1\ns_waitcnt vmcnt(0)\nv_readfirstlane_b32 s{sT2}, v16\ns_nop 3")
            A(f"s_not_b32 s{sT0}, s{sT2}\ns_sub_u32 s{sT2}, s{sST+2*span[1]}, s{sT0}\ns_sub_u32 s{sT2}, s{sT2}, 3000\ns_mul_i32 s{sT2}, s{sT2}, 10\ns_min_u32 s{sT2}, s{sT2}, 100000")
            A(f"s_add_u32 s{sT2}, s{sT2}, s{sT0}\ns_add_u32 s{sT2}, s{sT2}, 10000")
            A("L_skpad:")
            A(f"s_memrealtime {s2(sH)}\ns_waitcnt lgkmcnt(0)\ns_sub_u32 s{sT3}, s{sH}, s{sT2}\ns_cmp_lt_i32 s{sT3}, 0\ns_cbranch_scc1 L_skpad")
            A("L_skout:")
        for i in range(8):
            A(f"v_mov_b32 v{96+i}, s{sST+2*i}")
        A(f"s_mul_i32 s{sT1}, s2, 5\ns_add_u32 s{sT1}, s{sT1}, s{sW}\ns_lshl_b32 s{sT1}, s{sT1}, 5\ns_add_u32 s{sT1}, s{sT1}, {WS_STAMP}")
        A("s_mov_b64 exec, 1")
        A(f"buffer_store_dwordx4 v[96:99], v7, {s4(rWS)}, s{sT1} offen")
        A(f"buffer_store_dwordx4 v[100:103], v7, {s4(rWS)}, s{sT1} offen offset:16")
    A("L_end:")
    A("s_endpgm")

    out = HEADER
    out += f"; @launch grid=(256,1,1) block=(320,1,1) lds={LDS_BYTES}\n"
    out += DOC
    out += '.amdgcn_target "amdgcn-amd-amdhsa--gfx950"\n.text\n'
    out += f".globl {KNAME}_kernel\n.p2align 8\n.type {KNAME}_kernel,@function\n"
    out += "\n".join(A.L) + "\n"
    out += f""".section .rodata,"a"
.p2align 6
.amdhsa_kernel {KNAME}_kernel
  .amdhsa_next_free_vgpr 216
  .amdhsa_next_free_sgpr 102
  .amdhsa_accum_offset 216
  .amdhsa_group_segment_fixed_size 0
  .amdhsa_kernarg_size 96
  .amdhsa_user_sgpr_count 2
  .amdhsa_user_sgpr_kernarg_segment_ptr 1
  .amdhsa_system_sgpr_workgroup_id_x 1
.end_amdhsa_kernel
"""
    return out


if __name__ == "__main__":
    kw = json.loads(sys.argv[2]) if len(sys.argv) > 2 else {}
    open(sys.argv[1], "w").write(gen(**kw))
```

```python
import sys, json, struct

KNAME = "recurrent_scan__gqa_block_cached__glu_gated_glu__decode"
HEADER = open("cdna_kernels/" + KNAME + ".s.ref").read().split("; Override launch")[0]

def f2u(x):
    return struct.unpack("<I", struct.pack("<f", x))[0]

LOG2E = 1.4426950408889634
X_H1 = 0x0
X_QX = 0x10000
X_G1 = 0x12000
X_LS = 0x14000
X_PG = 0x14400
X_LINES = 21
X_H2 = 0x15000
X_QXFAR = 0xC000
WS_EPOCH = 0x1F000
WS_GL = 0x100000
WS_STAMP = 0x1000000
WS_SIZE = 0x20000000
L_Q = 0
L_FLAG = 1024
F_RDY = L_FLAG
F_GUP = L_FLAG + 4
F_DONE = L_FLAG + 8
F_QH = L_FLAG + 16
F_XN = L_FLAG + 20
F_MX = L_FLAG + 24
F_PD = L_FLAG + 32
F_SC = L_FLAG + 40
F_WIN = L_FLAG + 44
F_TG = L_FLAG + 48
L_MX = 1152
L_LS = 1216
L_SC = 1280
L_HB = 1536
L_RED = 2048
L_XN = L_RED
L_P = 4096
L_WD = 20480
L_RING = 28672
NSLOT = 8
L_WO = L_RING
LDS_BYTES = L_RING + NSLOT * 16384
U0 = 5

sXB = 0
sFL = 3
sMODE, sLIM, sI1, sO2 = 14, 15, 24, 25
sGL = 83
sTW = 82
sPM = 48
sX, sK, sV, sWQ, sWO, sBX, sWG, sWU, sWD, sOUT, sDBG, sWS = 4, 6, 8, 10, 12, 14, 16, 18, 20, 22, 24, 26
rK, rV, rWS, rA, rB, rC, rD = 28, 32, 36, 40, 44, 48, 52
sW, sX8, sJJ, sCB, sSUB = 56, 57, 58, 59, 60
sC, sTHR, sCNT, sTAG = 61, 62, 63, 64
sSELL, sSELH, sSCALE, sLOG2E, sHI = 65, 66, 67, 68, 69
sT0, sT1, sT2, sT3 = 70, 71, 72, 73
sH = 74
sSPIN = 84
sLB = 85
sST = 86
TX4 = 8; TX2 = 12; vX0 = 14; vX1 = 15
vWO, vWT, vRW, vRR, vO2, vO1, vWA = 192, 128, 208, 209, 210, 211, 212
vI2, vOA = 214, 215
sI2 = 28


DOC = '''; ---------------------------------------------------------------------------------------------------
; ---------------------------------------------------------------------------------------------------
'''


class G:
    def __init__(self):
        self.L = []
        self.n = 0
    def __call__(self, s):
        for line in s.strip("\n").split("\n"):
            self.L.append("    " + line.strip() if not line.strip().endswith(":") else line.strip())
    def label(self, base):
        self.n += 1
        return f"L_{base}_{self.n}"


def v4(r):
    return f"v[{r}:{r+3}]"
def v2(r):
    return f"v[{r}:{r+1}]"
def s4(r):
    return f"s[{r}:{r+3}]"
def s2(r):
    return f"s[{r}:{r+1}]"


def gen(win=20, wins=(20, 21, 22, 24, 27), bias=64, ebias=224, gs=8, endstop=48, psleep=8, wwo=20, worder=(1, 2, 0, 3),
        nb=(4, 4, 4, 4, 3, 3, 3, 3), b0=-64, tdel=0, g2gate=24, g3gate=48, lsgate=100, prept=30, qsleep=4, qtry=16, unq=2,
        etouch=1, pgate=12, stamps=False, smode=0, lv0=None, qgate=64, pt=0, span=None, diag=None, skip=0, force=0):
    A = G()
    kvflags = wflags = "nt"
    csleep = h1sleep = h2sleep = 0
    if span is not None:
        stamps = True; smode = 9

    def srd(r, base, size):
        A(f"s_mov_b32 s{r}, s{base}\ns_mov_b32 s{r+1}, s{base+1}\ns_mov_b32 s{r+2}, {size}\ns_mov_b32 s{r+3}, 0x20000")

    def stamp(i, mode=None):
        if stamps and (mode is None or mode == smode):
            A(f"s_memrealtime {s2(sST + 2 * i)}")

    def lgkm(n):
        A(f"s_waitcnt lgkmcnt({n})")

    def swap_red(r, t, op, kinds=("16", "32")):
        for k in kinds:
            A(f"v_mov_b32 v{t}, v{r}\ns_nop 1\nv_permlane{k}_swap_b32 v{r}, v{t}\ns_nop 1\n{op} v{r}, v{r}, v{t}")

    def wave_red(r, t, op, rors):
        for k in rors:
            A(f"s_nop 1\n{op} v{r}, v{r}, v{r} row_ror:{k}")
        swap_red(r, t, op)

    def rnd_bf16(r):
        A(f"v_cvt_pk_bf16_f32 v{r}, v{r}, v{r}\nv_and_b32 v{r}, 0xffff0000, v{r}")

    def ln_stats(X, mean, rstd, F):
        D = F + 8
        for k in range(4):
            A(f"v_lshlrev_b32 v{F+2*k}, 16, v{X+k}\nv_and_b32 v{F+2*k+1}, s{sHI}, v{X+k}")
        A(f"v_add_f32 v{mean}, v{F}, v{F+1}")
        for k in range(2, 8):
            A(f"v_add_f32 v{mean}, v{mean}, v{F+k}")
        wave_red(mean, vX0, "v_add_f32", (8, 4, 2, 1))
        A(f"v_mul_f32 v{mean}, {hex(f2u(1/512))}, v{mean}")
        for k in range(8):
            A(f"v_sub_f32 v{D+k}, v{F+k}, v{mean}")
        A(f"v_mul_f32 v{rstd}, v{D}, v{D}")
        for k in range(1, 8):
            A(f"v_fmac_f32 v{rstd}, v{D+k}, v{D+k}")
        wave_red(rstd, vX0, "v_add_f32", (8, 4, 2, 1))
        A(f"v_mul_f32 v{rstd}, {hex(f2u(1/512))}, v{rstd}")
        rnd_bf16(mean); rnd_bf16(rstd)
        A(f"v_add_f32 v{rstd}, {hex(f2u(1e-5))}, v{rstd}")
        rnd_bf16(rstd)
        A(f"v_sqrt_f32 v{rstd}, v{rstd}\ns_nop 0")
        rnd_bf16(rstd)
        A(f"v_rcp_f32 v{rstd}, v{rstd}")

    def ln_apply(X, mean, rstd, D):
        for k in range(4):
            A(f"v_lshlrev_b32 v{D+2*k}, 16, v{X+k}\nv_and_b32 v{D+2*k+1}, s{sHI}, v{X+k}")
        for k in range(8):
            A(f"v_sub_f32 v{D+k}, v{D+k}, v{mean}")
        for k in range(4):
            A(f"v_cvt_pk_bf16_f32 v{X+k}, v{D+2*k}, v{D+2*k+1}")
        for k in range(4):
            A(f"v_lshlrev_b32 v{D+2*k}, 16, v{X+k}\nv_and_b32 v{D+2*k+1}, s{sHI}, v{X+k}")
        for k in range(8):
            A(f"v_mul_f32 v{D+k}, v{D+k}, v{rstd}")
        for k in range(4):
            A(f"v_cvt_pk_bf16_f32 v{X+k}, v{D+2*k}, v{D+2*k+1}")

    def matvec8(W, xs, acc, tmp, first=True):
        for j in range(4):
            for u in range(4):
                A(f"v_perm_b32 v{tmp+2*u}, v{W+(2*j+1)*4+u}, v{W+(2*j)*4+u}, s{sSELL}")
                A(f"v_perm_b32 v{tmp+2*u+1}, v{W+(2*j+1)*4+u}, v{W+(2*j)*4+u}, s{sSELH}")
            for e in range(8):
                c = "0" if (j == 0 and first) else f"v{acc+e}"
                A(f"v_dot2_f32_bf16 v{acc+e}, {xs[j]}, v{tmp+e}, {c}")
        A("s_nop 2")

    def reduce8(acc):
        A("s_nop 1")
        for e in range(4):
            A(f"v_permlane32_swap_b32 v{acc+e}, v{acc+4+e}")
        A("s_nop 1")
        for e in range(4):
            A(f"v_add_f32 v{acc+e}, v{acc+e}, v{acc+4+e}")
        A("s_nop 1")
        for e in range(2):
            A(f"v_permlane16_swap_b32 v{acc+e}, v{acc+2+e}")
        A("s_nop 1")
        for e in range(2):
            A(f"v_add_f32 v{acc+e}, v{acc+e}, v{acc+2+e}")
        A("s_nop 0")
        for e in range(2):
            A(f"v_add_f32 v{acc+e}, v{acc+e}, v{acc+e} row_ror:8")
        A("s_nop 0")

    def red4(a):
        A("s_nop 1")
        A(f"v_permlane32_swap_b32 v{a}, v{a+2}\nv_permlane32_swap_b32 v{a+1}, v{a+3}")
        A("s_nop 0")
        A(f"v_add_f32 v{a}, v{a}, v{a+2}\nv_add_f32 v{a+1}, v{a+1}, v{a+3}")
        for k in (8, 4):
            A("s_nop 0")
            A(f"v_add_f32 v{a}, v{a}, v{a} row_ror:{k}\nv_add_f32 v{a+1}, v{a+1}, v{a+1} row_ror:{k}")
        A(f"v_mov_b32 v{a+2}, v{a}\nv_mov_b32 v{a+3}, v{a+1}\ns_nop 0")
        A(f"v_permlane16_swap_b32 v{a}, v{a+2}\nv_permlane16_swap_b32 v{a+1}, v{a+3}")
        A("s_nop 0")
        A(f"v_add_f32 v{a}, v{a}, v{a+2}\nv_add_f32 v{a+1}, v{a+1}, v{a+3}")

    def lds_wait(addr, sreg, thr, name, sleep=1, vaddr=7, cached=False, pair=False):
        top = A.label(name); done = A.label(name + "_ok")
        if cached:
            A(f"s_cmp_ge_i32 s{sreg}, {thr}\ns_cbranch_scc1 {done}")
        A(f"s_mov_b32 s{sSPIN}, 0")
        A(f"{top}:")
        if pair:
            A(f"ds_read_b64 {v2(vX0)}, v{vaddr} offset:{addr}\ns_waitcnt lgkmcnt(0)\nv_min_i32 v{vX0}, v{vX0}, v{vX1}\ns_nop 0")
        else:
            A(f"ds_read_b32 v{vX0}, v{vaddr} offset:{addr}\ns_waitcnt lgkmcnt(0)")
        A(f"v_readfirstlane_b32 s{sreg}, v{vX0}")
        A(f"s_add_u32 s{sSPIN}, s{sSPIN}, 1")
        A(f"s_cmp_ge_i32 s{sreg}, {thr}\ns_cbranch_scc1 {done}")
        if sleep:
            A(f"s_sleep {sleep}")
        A(f"s_cmp_lt_u32 s{sSPIN}, 0x100000\ns_cbranch_scc1 {top}")
        A(f"{done}:")

    def lds_flag(addr, val=1, vaddr=7):
        A(f"v_mov_b32 v{vX0}, {val}\nds_write_b32 v{vaddr}, v{vX0} offset:{addr}")

    def make_tags():
        A(f"s_waitcnt lgkmcnt(0)\ns_add_u32 s{sTAG}, s{sTAG}, 0x9E3779B1")
        A(f"v_and_b32 v5, 1, v1\nv_lshlrev_b32 v5, 4, v5\nv_lshrrev_b32 v5, v5, s{sTAG}")
        for k in range(4):
            A(f"v_bfe_u32 v{TX4+k}, v5, {4*k}, 4")
        A(f"v_and_b32 v5, 3, v1\nv_lshlrev_b32 v5, 3, v5\nv_lshrrev_b32 v5, v5, s{sTAG}")
        for k in range(2):
            A(f"v_bfe_u32 v{TX2+k}, v5, {4*k}, 4")

    def embed(dst, src, tag):
        A(f"v_and_or_b32 v{dst}, v{src}, -16, v{tag}")

    def untag(checks):
        for r, t in checks:
            A(f"v_xor_b32 v{r}, {t}, v{r}")
        rs = [r for r, _ in checks]
        A(f"v_or_b32 v{vX0}, v{rs[0]}, v{rs[1]}")
        for i in range(2, len(rs), 2):
            A(f"v_or3_b32 v{vX0}, v{vX0}, v{rs[i]}, v{rs[i+1]}")
        A(f"v_and_b32 v{vX0}, 15, v{vX0}\nv_cmp_ne_u32 vcc, 0, v{vX0}")

    def padd(d, a, b, n):
        for e in range(0, n, 2):
            A(f"v_pk_add_f32 {v2(d+e)}, {v2(a+e)}, {v2(b+e)}")

    def poll(loads, checks, name, sleep=0, full=False, landed=None):
        top = A.label(name); done = A.label(name + "_ok")
        A(f"s_mov_b32 s{sSPIN}, 0")
        A(f"{top}:")
        for l in loads:
            A(l)
        A("s_waitcnt vmcnt(0)")
        if landed:
            A(landed)
        if full:
            A(f"v_xor_b32 v{vX0}, {checks[0][1]}, v{checks[0][0]}")
            for r, t in checks[1:]:
                A(f"v_bitop3_b32 v{vX0}, v{vX0}, v{r}, {t} bitop3:0xf6")
            A(f"v_cmp_ne_u32 vcc, 0, v{vX0}")
        else:
            untag(checks)
        A(f"s_cbranch_vccz {done}")
        if sleep:
            A(f"s_sleep {sleep}")
        A(f"s_add_u32 s{sSPIN}, s{sSPIN}, 1\ns_cmp_lt_u32 s{sSPIN}, s{sLIM}\ns_cbranch_scc1 {top}")
        A(f"{done}:")

    def store2(line, cond_scc1_near):
        far = A.label("far"); done = A.label("st")
        A(cond_scc1_near)
        A(f"s_cbranch_scc0 {far}\n{line}\ns_branch {done}\n{far}:\n{line} sc1\n{done}:")

    def chk4(regs):
        return [(r + k, f"v{TX4+k}") for r in regs for k in range(4)]

    def next_slot(step):
        A(f"s_add_u32 s{sLB}, s{sLB}, {step*16384}\ns_and_b32 s{sLB}, s{sLB}, {NSLOT*16384-1}")

    def tail_prep():
        A(f"v_bfe_u32 v5, v1, 2, 3\nv_lshlrev_b32 v5, 7, v5\nv_lshrrev_b32 v6, 5, v1\nv_lshl_add_u32 v5, v6, 17, v5")
        A(f"v_and_b32 v{vOA}, 3, v1\nv_lshl_add_u32 v{vI2}, v{vOA}, 4, v5\nv_lshl_add_u32 v{vOA}, v{vOA}, 1, v6\nv_lshlrev_b32 v{vOA}, 2, v{vOA}")
        A(f"v_bfe_u32 v5, v1, 2, 2\nv_mul_u32_u24 v5, 0x140, v5\nv_lshrrev_b32 v6, 4, v1\nv_lshlrev_b32 v6, 5, v6\nv_xor_b32 v5, v5, v6")
        A(f"v_and_b32 v6, 3, v1\nv_lshl_add_u32 v5, v6, 3, v5\ns_lshl_b32 s{sT2}, s{sTW}, 12\nv_add_u32 v{vWA}, s{sT2}, v5\nv_xor_b32 v{vWA+1}, 0x80, v{vWA}")
        A(f"s_and_b32 s{sT2}, s{sJJ}, 28\ns_add_u32 s{sT2}, s{sT2}, s{sTW}\ns_lshl_b32 s{sT2}, s{sT2}, 11\ns_add_u32 s{sI1}, s{sXB}, s{sT2}")
        A(f"s_lshl_b32 s{sT2}, s{sTW}, 9\ns_add_u32 s{sT2}, s{sT2}, {L_RED}\nv_lshl_add_u32 v{vRW}, v1, 2, s{sT2}\nv_lshlrev_b32 v{vRR}, 3, v1")
        A(f"v_and_b32 v5, 15, v1\nv_lshlrev_b32 v5, 3, v5\nv_lshrrev_b32 v6, 4, v1\nv_lshl_add_u32 v{vO2}, v6, 10, v5")
        A(f"s_and_b32 s{sO2}, s{sJJ}, 3\ns_lshl_b32 s{sO2}, s{sO2}, 12\ns_add_u32 s{sO2}, s{sO2}, s{sXB}")
        A(f"s_lshr_b32 s{sT2}, s{sJJ}, 2\ns_lshl_b32 s{sT2}, s{sT2}, 7\ns_add_u32 s{sO2}, s{sO2}, s{sT2}\ns_add_u32 s{sO2}, s{sO2}, {X_H2}")

    def sigmoid(dst, src):
        A(f"v_mul_f32 v{dst}, s{sLOG2E}, v{src}\nv_exp_f32 v{dst}, -v{dst}\ns_nop 0\nv_add_f32 v{dst}, 1.0, v{dst}\nv_rcp_f32 v{dst}, v{dst}\ns_nop 0")

    A("; ======== entry")
    A(f"{KNAME}_kernel:")
    A("s_cmpk_ge_u32 s2, 0x100\ns_cbranch_scc1 L_end")
    stamp(0)
    A(f"s_load_dwordx16 s[4:19], s[0:1], 0\ns_load_dwordx8 s[20:27], s[0:1], 64")
    A(f"v_and_b32 v1, 63, v0\nv_readfirstlane_b32 s{sW}, v0")
    A(f"s_and_b32 s{sX8}, s2, 7\ns_lshr_b32 s{sJJ}, s2, 3")
    A("v_lshlrev_b32 v4, 4, v1")
    A("v_lshrrev_b32 v2, 3, v1\nv_and_b32 v3, 0x70, v4")
    A(f"s_mov_b32 s{rA+3}, 0x20000\ns_lshr_b32 s{sW}, s{sW}, 6\ns_cbranch_scc1 L_e1")
    A(f"s_and_b32 s{sT1}, s{sJJ}, 7\ns_lshl3_add_u32 s{sT1}, s{sX8}, s{sT1}\ns_lshl_b32 s{sT1}, s{sT1}, 7")
    A(f"s_lshr_b32 s{sT2}, s2, 6\ns_lshl_b32 s{sT2}, s{sT2}, 20\ns_add_u32 s{sT1}, s{sT1}, s{sT2}")
    A(f"v_lshl_add_u32 v5, v2, 17, v3\ns_bfm_b32 s{rA+2}, 1, 22\ns_movk_i32 m0, {L_P}")
    A(f"s_waitcnt lgkmcnt(0)\ns_mov_b64 {s2(rA)}, {s2(sWQ)}")
    stamp(4, 4)
    A("L_wq:")
    A(f"buffer_load_dwordx4 v5, {s4(rA)}, s{sT1} offen {wflags} lds")
    A(f"s_addk_i32 m0, 0x400\ns_addk_i32 s{sT1}, 0x2000\ns_cmpk_lt_u32 m0, {L_P + 16384}\ns_cbranch_scc1 L_wq")
    A("s_branch L_e2")
    A("L_e1:")
    A(f"s_cmp_lg_u32 s{sW}, 2\ns_cbranch_scc1 L_e1b")
    A(f"s_movk_i32 s{rA+2}, 0x400\ns_waitcnt lgkmcnt(0)\ns_mov_b64 {s2(rA)}, {s2(sX)}")
    A(f"buffer_load_dwordx4 v[16:19], v4, {s4(rA)}, 0 offen")
    A("L_e1b:")
    A(f"s_cmp_lg_u32 s{sW}, 1\ns_cbranch_scc1 L_e2")
    A(f"s_getpc_b64 {s2(sT0)}")
    A("L_pc:")
    A(f"s_lshl_b32 s{sT2}, s{sJJ}, 6\nv_add_u32 v5, s{sT2}, v1\nv_mul_u32_u24 v5, 12, v5\nv_min_u32 v5, L_end-L_pc, v5")
    A(f"global_load_dword v16, v5, {s2(sT0)}")
    def xtouch():
        A(f"v_min_u32 v6, {X_LINES-1}, v1\ns_mul_i32 s{sT2}, s{sJJ}, {X_LINES}\ns_lshl_b32 s{sT3}, s{sX8}, 10\ns_add_u32 s{sT2}, s{sT2}, s{sT3}")
        A(f"v_add_lshl_u32 v6, v6, s{sT2}, 7\ns_waitcnt lgkmcnt(0)\nglobal_load_dword v17, v6, {s2(sWS)} sc1")
    if etouch == 1:
        xtouch()
    A("L_e2:")
    A(f"v_and_b32 v6, 15, v1\nv_cmp_eq_u32 vcc, {(F_DONE + 4 - L_FLAG) // 4}, v6\nv_lshlrev_b32 v6, 2, v6\nv_mov_b32 v7, 0")
    A(f"v_cndmask_b32 v5, 0, 1, vcc\nds_write_b32 v6, v5 offset:{L_FLAG}")
    if True:
        A("; GLU roles: the workgroups of head x hold nb[x] blocks of 64 hidden columns, 8 workgroups each")
        assert sum(nb) == 28
        free = [sum(4 - n for n in nb[:x]) for x in range(8)]
        tab = sum((nb[x] & 7 | (free[x] & 7) << 4) << (8 * x) for x in range(8))
        A(f"s_mov_b32 s{sT0}, {hex(tab & 0xffffffff)}\ns_mov_b32 s{sT1}, {hex(tab >> 32)}\ns_lshl_b32 s{sT2}, s{sX8}, 3\ns_lshr_b64 {s2(sT0)}, {s2(sT0)}, s{sT2}")
        A(f"s_bfe_u32 s{sT1}, s{sT0}, 0x30004\ns_and_b32 s{sT0}, s{sT0}, 7\ns_lshr_b32 s{sT2}, s{sJJ}, 3\ns_and_b32 s{sSUB}, s{sJJ}, 7")
        A(f"s_lshl2_add_u32 s{sCB}, s{sX8}, s{sT2}\ns_sub_u32 s{sCB}, s{sCB}, s{sT1}")
        A(f"s_cmp_lt_u32 s{sT2}, s{sT0}\ns_cselect_b32 s{sGL}, 1, 0")
    A(f"s_mov_b32 s{sSELL}, 0x05040100\ns_mov_b32 s{sSELH}, 0x07060302")
    A(f"s_mov_b32 s{sSCALE}, {hex(f2u(128 ** -0.5))}\ns_mov_b32 s{sLOG2E}, {hex(f2u(LOG2E))}\ns_mov_b32 s{sHI}, 0xffff0000")
    if stamps:
        for i in range(1, 8):
            if not (smode == 4 and i == 4):
                A(f"s_mov_b64 {s2(sST+2*i)}, 0")
    A("s_waitcnt lgkmcnt(0)")
    A("s_barrier")
    stamp(5, 5)
    if stamps:
        srd(rWS, sWS, hex(WS_SIZE))
        srd(rB, sDBG, 256)
    A(f"s_cmp_lg_u32 s{sW}, 0\ns_cbranch_scc1 L_notloader")

    D = win
    first_k = (D - 1) % 8
    vCNT = 24
    cnt = [0]
    def ld(line, static=False):
        i = cnt[0]
        if not static or i >= D:
            A(f"s_waitcnt vmcnt({D-1})")
        if static and i == D - 1: stamp(5, 4)
        if static and i == D: stamp(6, 4)
        A(line)
        if i % 8 == first_k and (not static or i >= D - 1 + 8):
            A(f"ds_write_b32 v7, v{vCNT} offset:{F_RDY}\nv_add_u32 v{vCNT}, 8, v{vCNT}")
        cnt[0] += 1
    A(f"v_mov_b32 v{vCNT}, 8")
    cnt[0] = 16
    assert D >= 16
    A(f"s_mul_i32 s{sT3}, s{sGL}, {hex(512 * 1792 * 2)}")
    srd(rD, sWD, f"s{sT3}")
    A(f"s_cmp_lt_u32 s{sSUB}, 4\ns_cselect_b32 s{rB}, s{sWG}, s{sWU}\ns_cselect_b32 s{rB+1}, s{sWG+1}, s{sWU+1}")
    A(f"s_mov_b32 s{rB+2}, s{sT3}\ns_mov_b32 s{rB+3}, 0x20000")
    A(f"s_and_b32 s{sT1}, s{sSUB}, 3\ns_mul_i32 s{sT1}, s{sT1}, {128*3584}\ns_lshl_b32 s{sT2}, s{sCB}, 7\ns_add_u32 s{sT1}, s{sT1}, s{sT2}")
    A(f"v_mul_u32_u24 v6, {16*3584}, v2\nv_add_u32 v6, v6, v3")
    L_GU = L_RING + (NSLOT - 1) * 16384
    for i in range(16):
        A(f"s_mov_b32 m0, {L_GU + 1024*i}")
        A(f"s_add_u32 s{sT2}, s{sT1}, {3584*i}")
        ld(f"buffer_load_dwordx4 v6, {s4(rB)}, s{sT2} offen {wflags} lds", True)
    A(f"s_lshl_b32 s{sT1}, s{sCB}, 16\ns_lshl_b32 s{sT2}, s{sSUB}, 7\ns_add_u32 s{sT1}, s{sT1}, s{sT2}")
    A(f"v_lshl_add_u32 v5, v2, 13, v3")
    for i in range(8):
        if i % 4 == 0:
            A(f"s_mov_b32 m0, {L_WD + 1024*i}")
            A(f"s_add_u32 s{sT2}, s{sT1}, {1024*i}")
        ld(f"buffer_load_dwordx4 v5, {s4(rD)}, s{sT2} offen offset:{1024*(i%4)} {wflags} lds", True)
    srd(rA, sWO, hex(4096 * 512 * 2))
    A(f"s_lshl_b32 s{sT1}, s{sX8}, 9\ns_lshr_b32 s{sT2}, s{sJJ}, 4\ns_lshl_b32 s{sT2}, s{sT2}, 6\ns_add_u32 s{sT1}, s{sT1}, s{sT2}")
    A(f"s_and_b32 s{sT2}, s{sJJ}, 12\ns_add_u32 s{sT1}, s{sT1}, s{sT2}\ns_lshl_b32 s{sT1}, s{sT1}, 10")
    A(f"s_and_b32 s{sT2}, s{sJJ}, 3\ns_lshl_b32 s{sT2}, s{sT2}, 8\ns_add_u32 s{sT1}, s{sT1}, s{sT2}")
    A(f"v_lshrrev_b32 v6, 4, v1\nv_mul_u32_u24 v6, 0x440, v6\nv_and_b32 v25, 0xf0, v4\nv_xor_b32 v6, v6, v25")
    A(f"s_mov_b32 s{sH+3}, s{sT1}")
    assert cnt[0] == 8 * U0 and D + 7 <= 8 * U0
    stamp(1)
    A(f"s_lshl_b32 s{sT0}, s{sX8}, 24\ns_lshl_b32 s{sT1}, s{sJJ}, 19\ns_add_u32 s{sT0}, s{sT0}, s{sT1}")
    A(f"s_add_u32 s{rK}, s{sK}, s{sT0}\ns_addc_u32 s{rK+1}, s{sK+1}, 0\ns_mov_b32 s{rK+2}, 0x80000\ns_mov_b32 s{rK+3}, 0x20000")
    A(f"s_add_u32 s{rV}, s{sV}, s{sT0}\ns_addc_u32 s{rV+1}, s{sV+1}, 0\ns_mov_b32 s{rV+2}, 0x80000\ns_mov_b32 s{rV+3}, 0x20000")
    A("v_and_b32 v27, 0xf0, v4\nv_bfe_u32 v5, v1, 4, 1\nv_lshl_add_u32 v27, v5, 9, v27\nv_lshrrev_b32 v5, 5, v1\nv_lshl_add_u32 v27, v5, 13, v27")
    A("v_lshrrev_b32 v5, 4, v1\nv_lshlrev_b32 v5, 6, v5\nv_xor_b32 v16, v27, v5")
    A("v_and_b32 v5, 16, v1\nv_lshlrev_b32 v5, 1, v5\nv_xor_b32 v20, v27, v5")
    for n in range(1, 4):
        A(f"v_xor_b32 v{16+n}, {16*n}, v16\nv_xor_b32 v{20+n}, {64*n}, v20")
    sI, sLV = sH + 1, sH + 2
    NV = 8 * U0 + 1024
    NLD = NV + 16
    A(f"s_mov_b32 s{sCNT}, 0\ns_mov_b32 s{sLB}, 0\ns_mov_b32 s{sFL}, 0\ns_mov_b32 s{sH}, 0\ns_mov_b32 s{sI}, {8*U0}\nv_mov_b32 v25, 0\nv_subrev_u32 v26, 8, v{vCNT}")
    A("L_tile:")
    A(f"s_cmp_lg_u32 s{sCNT}, 32\ns_cbranch_scc1 L_nosw")
    stamp(4, 1); stamp(5, 3)
    A(f"s_mov_b64 {s2(rK)}, {s2(rV)}\ns_mov_b32 s{sH}, 0")
    for n in range(4):
        A(f"v_mov_b32 v{16+n}, v{20+n}")
    A("L_nosw:")
    A(f"s_sub_u32 s{sTHR}, s{sCNT}, {NSLOT-1}")
    A(f"s_cmp_lg_u32 s{sTHR}, 0\ns_cbranch_scc1 L_nogup")
    lds_wait(F_GUP, sT2, 1, "gup", sleep=0)
    stamp(2)
    A("L_nogup:")
    lds_wait(F_DONE, sFL, f"s{sTHR}", "free", sleep=0, cached=True, pair=True)
    A(f"s_add_u32 m0, s{sLB}, {L_RING}")
    A(f"s_waitcnt lgkmcnt(0)\nv_readfirstlane_b32 s{sLV}, v25\nds_read_b32 v25, v7 offset:{F_WIN}")
    for k in range(1, len(wins)):
        A(f"s_cmp_eq_u32 s{sLV}, {k}\ns_cbranch_scc1 L_ver{k}")
    def version(idx):
        W = wins[idx]
        A(f"L_ver{idx}:")
        A(f"s_sub_u32 s{sT2}, s{sI}, {W-1}\nv_mov_b32 v{vCNT}, s{sT2}")
        A(f"L_vq{idx}:")
        for hq in range(unq):
            for n in range(4):
                A(f"s_waitcnt vmcnt({W-1})")
                A(f"buffer_load_dwordx4 v{16+n}, {s4(rK)}, s{sH} offen offset:{1024*n} {kvflags} lds")
                if n == 0:
                    A(f"v_max_i32 v26, v26, v{vCNT}\nv_add_u32 v{vCNT}, 4, v{vCNT}\nds_write_b32 v7, v26 offset:{F_RDY}")
            A(f"s_addk_i32 m0, 0x1000\ns_addk_i32 s{sH}, {(0x100, 0xf00)[hq % 2]}")
        if unq < 4:
            A(f"s_and_b32 s{sT2}, s{sH}, 0x1fff\ns_cbranch_scc1 L_vq{idx}")
    version(0)
    A("L_qend:")
    A(f"s_add_u32 s{sI}, s{sI}, 16\ns_addk_i32 s{sH}, 0x2000")
    next_slot(1)
    if stamps and smode == 3:
        for q in range(2):
            A(f"s_cmp_lg_u32 s{sCNT}, {32*q+15}\ns_cbranch_scc1 L_np{q}")
            stamp(4 + 2 * q, 3)
            A(f"L_np{q}:")
    A(f"s_add_u32 s{sCNT}, s{sCNT}, 1\ns_cmp_lt_u32 s{sCNT}, 64\ns_cbranch_scc1 L_tile")
    def pub(val):
        A(f"v_max_i32 v26, {val}, v26\nds_write_b32 v7, v26 offset:{F_RDY}")
    lds_wait(F_DONE, sFL, 64 - NSLOT + 1, "freew", sleep=0, cached=True, pair=True)
    for r in (24, 16, 8):
        if wwo <= r:
            A(f"s_waitcnt vmcnt({r})"); pub(NV - r)
    for i in range(16):
        w, h = worder[i // 4], i % 4
        A(f"s_mov_b32 m0, {L_WO + 4096*w + 1024*h}\ns_add_u32 s{sT2}, s{sH+3}, {(128*h + 16*w)*1024}")
        A(f"s_waitcnt vmcnt({wwo-1})")
        d = i - wwo + 1
        if d % 8 == 0 or (d > 0 and d % 4 == 0):
            pub(NV + d)
            if d == 0:
                stamp(3)
        A(f"buffer_load_dwordx4 v6, {s4(rA)}, s{sT2} offen {wflags} lds")
    for rem in range((wwo - 1) // 4 * 4, -1, -4):
        if rem <= 16 or rem % 8 == 0:
            A(f"v_max_i32 v26, {NLD - rem}, v26\ns_waitcnt vmcnt({rem})\nds_write_b32 v7, v26 offset:{F_RDY}")
            if rem == 16:
                stamp(3)
    A("s_branch L_fin")

    for k in range(1, len(wins)):
        version(k)
        A("s_branch L_qend")
    A("L_pace:")
    if span is not None:
        A(f"s_cmp_lg_u32 s{sJJ}, 0\ns_cbranch_scc1 L_nosk")
        A(f"s_not_b32 s{sT0}, s{sST}\nv_mov_b32 v16, s{sT0}\ns_mov_b64 exec, 1\nbuffer_atomic_umax v16, v7, {s4(rB)}, 0 offen offset:64\ns_mov_b64 exec, -1")
        A("L_nosk:")
    if pt:
        A("; address translations that are needed later, while the memory system is still starting up")
        A(f"s_lshl_b32 s{sT0}, s{sX8}, 24\ns_lshl_b32 s{sT1}, s{sJJ}, 19\ns_add_u32 s{sT0}, s{sT0}, s{sT1}\nv_mov_b32 v21, s{sT0}")
        A(f"s_lshr_b32 s{sT0}, s{sT0}, 5\nv_mov_b32 v22, s{sT0}\ns_mov_b64 exec, 1")
        if pt & 1: A(f"global_load_dword v23, v21, {s2(sK)} nt")
        if pt & 2: A(f"global_load_dword v24, v21, {s2(sV)} nt")
        if pt & 4: A(f"global_load_dword v25, v22, {s2(sWO)} nt")
        if pt & 8: A(f"s_cmp_lg_u32 s{sX8}, 0\ns_cbranch_scc1 L_noout\nglobal_load_dword v26, v7, {s2(sOUT)} nt\nL_noout:")
        A("s_mov_b64 exec, -1")
    A(f"s_mov_b32 s{sTW}, 0")
    tail_prep()
    A(f"s_cmp_lg_u32 s{sX8}, 0\ns_cbranch_scc1 L_noh2\nbuffer_load_dword v20, v{vO2}, {s4(rWS)}, s{sO2} offen sc1\nL_noh2:")
    make_tags()
    lds_flag(F_TG)
    sP, sPP, sS, sPGA, sOWN, sPAR = sH, sH + 1, sH + 2, sH + 3, sH + 4, sH + 5
    A(f"s_getreg_b32 s{sPAR}, hwreg(HW_REG_XCC_ID, 0, 1)\ns_cmp_eq_u32 s{sPAR}, 0")
    A(f"s_cselect_b32 s{sPAR}, {ebias}, 0\ns_add_u32 s{sPAR}, s{sPAR}, {(1 << (gs - 1)) + bias}")
    A(f"s_cmp_eq_u32 s{sX8}, 0\ns_cselect_b32 s{sT0}, {b0}, 0\ns_add_u32 s{sPAR}, s{sPAR}, s{sT0}")
    if lv0 is not None:
        A(f"s_lshr_b32 s{sT0}, s{sPAR}, {gs}\ns_add_u32 s{sT0}, s{sT0}, {lv0}")
        lds_flag(F_WIN, val=f"s{sT0}")
    lds_wait(F_QH, sMODE, 1, "qhp", sleep=8)
    A(f"s_cmp_lg_u32 s{sMODE}, 2\ns_cbranch_scc1 L_late")
    A(f"v_lshlrev_b32 v5, 2, v1\ns_add_u32 s{sPGA}, s{sXB}, {X_PG}\ns_lshl2_add_u32 s{sOWN}, s{sJJ}, s{sPGA}")
    A(f"s_mov_b32 s{sP}, 0\ns_mov_b32 s{sCNT}, 0\ns_and_b32 s{sT3}, s{sTAG}, 0xfffff800")
    A("L_pl:")
    A(f"s_mov_b32 s{sPP}, s{sP}\nds_read_b32 v16, v7 offset:{F_RDY}\ns_waitcnt lgkmcnt(0)\nv_readfirstlane_b32 s{sP}, v16")
    A(f"s_add_u32 s{sCNT}, s{sCNT}, 1\ns_cmp_gt_u32 s{sCNT}, 0x10000\ns_cbranch_scc1 L_late")
    A(f"v_or_b32 v16, s{sT3}, v16")
    A(f"s_mov_b64 exec, 1\nbuffer_store_dword v16, v7, {s4(rWS)}, s{sOWN} offen\ns_mov_b64 exec, -1")
    A(f"s_cmp_ge_u32 s{sP}, {NV - endstop}\ns_cbranch_scc1 L_late")
    A(f"s_mov_b32 exec_hi, 0\nbuffer_load_dword v17, v5, {s4(rWS)}, s{sPGA} offen sc1\ns_waitcnt vmcnt(0)")
    A(f"v_xor_b32 v19, s{sT3}, v17\nv_cmp_lt_u32 vcc, 0x7ff, v19")
    for k in (8, 4, 2, 1):
        A(f"s_nop 1\nv_add_u32 v19, v19, v19 row_ror:{k}")
    A(f"s_cbranch_vccnz L_pnext")
    A(f"v_readlane_b32 s{sS}, v19, 0\nv_readlane_b32 s{sT0}, v19, 16")
    A(f"s_cmp_eq_u32 s{sPP}, 0\ns_cbranch_scc1 L_pnext")
    A(f"s_add_u32 s{sS}, s{sS}, s{sT0}\ns_add_u32 s{sT0}, s{sP}, s{sPP}\ns_lshl_b32 s{sT0}, s{sT0}, 4\ns_sub_u32 s{sT0}, s{sS}, s{sT0}")
    A(f"s_add_u32 s{sT0}, s{sT0}, s{sPAR}\ns_ashr_i32 s{sT0}, s{sT0}, {gs}\ns_max_i32 s{sT0}, s{sT0}, 0\ns_min_i32 s{sT0}, s{sT0}, {len(wins)-1}")
    A(f"v_mov_b32 v16, s{sT0}\nds_write_b32 v7, v16 offset:{F_WIN}")
    A("L_pnext:")
    A(f"s_mov_b64 exec, -1\ns_sleep {psleep}\ns_branch L_pl")

    A("L_notloader:")
    A(f"s_load_dword s{sTAG}, {s2(sWS)}, {WS_EPOCH}")
    A(f"s_mov_b32 s{sLIM}, 0x40000\ns_mov_b32 s{sMODE}, 1\ns_lshl_b32 s{sXB}, s{sX8}, 17")
    srd(rWS, sWS, hex(WS_SIZE))
    A(f"s_mov_b32 s{sTW}, s{sW}\ns_cmp_eq_u32 s{sW}, 4\ns_cbranch_scc1 L_pace")
    A(f"s_cmp_eq_u32 s{sW}, 3\ns_cbranch_scc1 L_help")
    A(f"s_sub_u32 s{sC}, s{sW}, 1")
    A(f"s_cmp_eq_u32 s{sW}, 2\ns_cbranch_scc1 L_w2")
    if etouch == 2:
        xtouch()
    make_tags()
    A("s_branch L_qwait")
    def slice_mv(sKS, lds_base, unit0, after_read=None):
        A(f"s_lshl_b32 s{sT2}, s{sKS}, 8\nv_lshl_add_u32 v5, v2, 5, s{sT2}")
        A(f"ds_read_b128 v[20:23], v5 offset:{L_XN}\nds_read_b128 v[24:27], v5 offset:{L_XN+16}")
        A(f"v_add_u32 v6, {lds_base}, v4")
        for half in range(2):
            lds_wait(F_RDY, sFL, 8 * (unit0 + half + 1), "wsl", sleep=1)
            for i in range(8):
                A(f"ds_read_b128 {v4(64+4*i)}, v6 offset:{8192*half + 1024*i}")
            lgkm(0)
            if half == 1:
                stamp(6, 2)
                if after_read:
                    after_read()
            matvec8(64, [f"v{20+4*half+k}" for k in range(4)], 32, 40, first=(half == 0))
        reduce8(32)
        A(f"v_lshrrev_b32 v6, 4, v1\nv_lshlrev_b32 v6, 6, v6\nv_lshrrev_b32 v5, 1, v3\nv_add_u32 v6, v6, v5")
    A("L_w2:")
    A(f"s_lshr_b32 s{sT3}, s2, 6")
    A("s_waitcnt vmcnt(0)")
    stamp(4, 2)
    ln_stats(16, 28, 29, 32)
    ln_apply(16, 28, 29, 32)
    A(f"ds_write_b128 v4, v[16:19] offset:{L_XN}")
    lds_flag(F_XN)
    stamp(5, 2)
    make_tags()
    slice_mv(sT3, L_P, 0)
    sXC = sH + 4
    A(f"s_getreg_b32 s{sXC}, hwreg(HW_REG_XCC_ID, 0, 4)")
    if force:
        A(f"s_and_b32 s{sXC}, s{sJJ}, 1")
    embed(34, 32, TX2); embed(35, 33, TX2 + 1)
    A(f"v_xor_b32 v32, s{sXC}, v34\nv_xor_b32 v33, s{sXC}, v35")
    A(f"s_add_u32 s{sH}, s{sXB}, {X_QX}\ns_lshl_b32 s{sT2}, s{sJJ}, 8\ns_add_u32 s{sT1}, s{sH}, s{sT2}")
    A("s_mov_b32 exec_lo, 0x00ff00ff\ns_mov_b32 exec_hi, 0x00ff00ff")
    A(f"buffer_store_dwordx2 v[32:33], v6, {s4(rWS)}, s{sT1} offen")
    A("s_mov_b64 exec, -1")
    stamp(1)
    for k in range(4):
        A(f"v_xor_b32 v{36+k}, s{sXC}, v{TX4+k}")
    A(f"s_add_u32 s{sH+1}, s{sH}, 4096\ns_mov_b32 s{sMODE}, 2")
    if qgate:
        lds_wait(F_RDY, sFL, qgate, "qgate", sleep=2)
    A(f"s_mov_b32 s{sSPIN}, 0")
    A("L_qpoll:")
    for i in range(8):
        A(f"buffer_load_dwordx4 {v4(64+4*i)}, v4, {s4(rWS)}, s{sH+i//4} offen offset:{1024*(i%4)} sc1")
    A("s_waitcnt vmcnt(0)")
    untag([(64 + i, f"v{36+i%4}") for i in range(32)])
    A("s_cbranch_vccz L_qok")
    A(f"s_sleep {qsleep}\ns_add_u32 s{sSPIN}, s{sSPIN}, 1\ns_cmp_lt_u32 s{sSPIN}, {qtry}\ns_cbranch_scc1 L_qpoll")
    A(f"s_cmp_lg_u32 s{sSPIN}, {qtry}\ns_cbranch_scc1 L_qflip")
    A(f"s_xor_b32 s{sT1}, s{sT1}, {X_QXFAR}")
    A("s_mov_b32 exec_lo, 0x00ff00ff\ns_mov_b32 exec_hi, 0x00ff00ff")
    A(f"buffer_store_dwordx2 v[34:35], v6, {s4(rWS)}, s{sT1} offen sc1")
    A("s_mov_b64 exec, -1")
    A("L_qflip:")
    A(f"s_xor_b32 s{sH}, s{sH}, {X_QXFAR}\ns_xor_b32 s{sH+1}, s{sH+1}, {X_QXFAR}\ns_xor_b32 s{sMODE}, s{sMODE}, 3")
    for k in range(4):
        A(f"v_xor_b32 v{36+k}, s{sXC}, v{36+k}")
    A(f"s_cmp_lt_u32 s{sSPIN}, s{sLIM}\ns_cbranch_scc1 L_qpoll")
    A("L_qok:")
    for e in range(8):
        A(f"v_add_f32 v{64+e}, v{64+e}, v{72+e}\nv_add_f32 v{80+e}, v{80+e}, v{88+e}")
    for e in range(8):
        A(f"v_add_f32 v{64+e}, v{64+e}, v{80+e}")
    for e in range(4):
        A(f"v_cvt_pk_bf16_f32 v{64+e}, v{64+2*e}, v{65+2*e}")
    A(f"v_lshrrev_b32 v6, 4, v1\nv_lshlrev_b32 v6, 7, v6\nv_and_b32 v5, 3, v1\nv_lshl_add_u32 v6, v5, 5, v6")
    A(f"v_and_b32 v5, 12, v1\nv_add_u32 v6, v6, v5")
    for e in range(4):
        A(f"ds_write_b32 v6, v{64+e} offset:{L_Q + 16*(e&1) + 512*(e>>1)}")
    lds_flag(F_QH, val=f"s{sMODE}")
    A("L_qwait:")
    vOWN, vOTH = 30, 31
    A(f"s_lshl_b32 s{sT2}, s{sC}, 2\nv_mov_b32 v{vOWN}, s{sT2}\nv_xor_b32 v{vOTH}, 4, v{vOWN}")
    vQV, vKT, vS, vT, vMAX, vAD, vKA, vPA, vDN = 32, 96, 160, 164, 172, 176, 184, 188, 189
    A("v_and_b32 v5, 3, v1\nv_lshlrev_b32 v5, 10, v5\nv_bfe_u32 v6, v1, 2, 2\nv_lshl_add_u32 v5, v6, 8, v5")
    A(f"v_lshrrev_b32 v6, 4, v1\nv_xor_b32 v6, v6, v1\nv_and_b32 v6, 15, v6\nv_lshl_add_u32 v{vKA}, v6, 4, v5")
    for n in range(1, 4):
        A(f"v_xor_b32 v{vKA+n}, {64*n}, v{vKA}")
    A(f"v_and_b32 v5, 3, v1\nv_lshlrev_b32 v5, 6, v5\nv_lshrrev_b32 v6, 4, v1\nv_lshl_add_u32 v5, v6, 4, v5")
    A(f"v_mov_b32 v29, v5")
    A(f"v_and_b32 v6, 8, v1\nv_lshl_add_u32 v5, v6, 5, v5\nv_and_b32 v6, 4, v1\nv_lshl_add_u32 v5, v6, 1, v5")
    A(f"s_lshl_b32 s{sT2}, s{sC}, 9\nv_add_u32 v{vPA}, s{sT2}, v5")
    A(f"v_mov_b32 v{vMAX}, {hex(f2u(-3e38))}")
    A(f"s_add_u32 s{sT2}, s{sC}, 2\nv_mov_b32 v{vDN}, s{sT2}")
    A("v_and_b32 v6, 3, v1\nv_lshlrev_b32 v6, 8, v6\nv_lshrrev_b32 v5, 4, v1\nv_lshl_add_u32 v6, v5, 4, v6")
    A(f"s_mov_b32 s{sFL}, 0")
    lds_wait(F_QH, sMODE, 1, "qh", sleep=1)
    stamp(2)
    for s in range(4):
        A(f"ds_read_b128 {v4(vKT+4*s)}, v6 offset:{L_Q + 64*s}")
    lgkm(0)
    for b in range(4):
        A(f"s_mov_b32 vcc_lo, {hex(0x000f000f << (4*b))}\ns_mov_b32 vcc_hi, {hex(0x000f000f << (4*b))}")
        for i in range(16):
            A(f"v_cndmask_b32 v{vQV+16*b+i}, 0, v{vKT+i}, vcc")
    A(f"s_lshl_b32 s{sLB}, s{sC}, 14\ns_lshl_b32 s{sTHR}, s{sC}, 4\ns_add_u32 s{sTHR}, s{sTHR}, {8*(U0+2)}")
    A(f"s_mov_b32 s{sCNT}, 0")
    A("L_p1:")
    for n in range(4):
        A(f"v_add_u32 v{vAD+n}, s{sLB}, v{vKA+n}")
    lds_wait(F_RDY, sFL, f"s{sTHR}", "krdy", sleep=csleep, cached=True)
    for b in range(4):
        for n in range(4):
            A(f"ds_read_b128 {v4(vKT+16*b+4*n)}, v{vAD+n} offset:{L_RING + 4096*b}")
    for b in range(4):
        lgkm(12 - 4 * b)
        if b == 3:
            A(f"ds_write_b32 v{vOWN}, v{vDN} offset:{F_DONE}")
        for n in range(4):
            c = "0" if b + n == 0 else v4(vS)
            A(f"v_mfma_f32_16x16x32_bf16 {v4(vS)}, {v4(vKT+16*b+4*n)}, {v4(vQV+16*b+4*n)}, {c}")
    A(f"v_add_u32 v{vDN}, 2, v{vDN}\nv_min_u32 v{vDN}, 32, v{vDN}")
    next_slot(2)
    A(f"s_add_u32 s{sTHR}, s{sTHR}, 32\ns_add_u32 s{sCNT}, s{sCNT}, 1\ns_nop 3")
    A(f"v_cvt_pk_bf16_f32 v{vT}, v{vS}, v{vS+1}\nv_cvt_pk_bf16_f32 v{vT+1}, v{vS+2}, v{vS+3}")
    A(f"v_max3_f32 v{vMAX}, v{vMAX}, v{vS}, v{vS+1}\nv_max3_f32 v{vMAX}, v{vMAX}, v{vS+2}, v{vS+3}")
    for j in range(2):
        A(f"v_lshlrev_b32 v{vT+2+2*j}, 16, v{vT+j}\nv_and_b32 v{vT+3+2*j}, s{sHI}, v{vT+j}")
    for i in range(4):
        A(f"v_mul_f32 v{vT+2+i}, s{sSCALE}, v{vT+2+i}")
    A(f"v_cvt_pk_bf16_f32 v{vT}, v{vT+2}, v{vT+3}\nv_cvt_pk_bf16_f32 v{vT+1}, v{vT+4}, v{vT+5}")
    A(f"ds_write_b64 v{vPA}, {v2(vT)} offset:{L_P}\nv_add_u32 v{vPA}, 1024, v{vPA}")
    A(f"s_cmp_lt_u32 s{sCNT}, 16\ns_cbranch_scc1 L_p1")
    stamp(4, 1)
    wave_red(vMAX, vX0, "v_max_f32", (8, 4))
    A(f"v_and_b32 v5, 3, v1\nv_lshlrev_b32 v5, 2, v5\nv_lshl_add_u32 v6, v{vOWN}, 2, v5\nv_xor_b32 v5, 16, v6")
    A(f"ds_write_b32 v6, v{vMAX} offset:{L_MX}")
    lds_flag(F_MX, vaddr=vOWN)
    A(f"v_subrev_u32 v{vPA}, 16384, v{vPA}")
    lds_wait(F_MX, sT0, 1, "mx", sleep=0, vaddr=vOTH)
    A(f"ds_read_b32 v{vX1}, v5 offset:{L_MX}")
    for i in range(16):
        A(f"ds_read_b64 {v2(32+2*i)}, v{vPA} offset:{L_P + 1024*i}")
    lgkm(0)
    vMN, vLSUM = 173, 174
    A(f"v_max_f32 v{vMAX}, v{vMAX}, v{vX1}")
    rnd_bf16(vMAX)
    A(f"v_mul_f32 v{vMAX}, s{sSCALE}, v{vMAX}")
    rnd_bf16(vMAX)
    A(f"v_mul_f32 v{vMN}, s{sLOG2E}, v{vMAX}\nv_mov_b32 v{vLSUM}, 0")
    for i in range(0, 16, 2):
        E = 96
        for j in range(4):
            A(f"v_lshlrev_b32 v{E+2*j}, 16, v{32+2*i+j}\nv_and_b32 v{E+2*j+1}, s{sHI}, v{32+2*i+j}")
        for j in range(8):
            A(f"v_fma_f32 v{E+j}, v{E+j}, s{sLOG2E}, -v{vMN}")
        for j in range(8):
            A(f"v_exp_f32 v{E+j}, v{E+j}")
        A("s_nop 0")
        for j in range(4):
            A(f"v_cvt_pk_bf16_f32 v{32+2*i+j}, v{E+2*j}, v{E+2*j+1}")
        A(f"ds_write_b64 v{vPA}, {v2(32+2*i)} offset:{L_P + 1024*i}\nds_write_b64 v{vPA}, {v2(34+2*i)} offset:{L_P + 1024*(i+1)}")
        for j in range(4):
            A(f"v_add_f32 v{E+j}, v{E+j}, v{E+4+j}")
        A(f"v_add_f32 v{E}, v{E}, v{E+1}\nv_add_f32 v{E+2}, v{E+2}, v{E+3}\nv_add_f32 v{vLSUM}, v{vLSUM}, v{E}\nv_add_f32 v{vLSUM}, v{vLSUM}, v{E+2}")
    wave_red(vLSUM, vX0, "v_add_f32", (8, 4))
    A(f"v_lshlrev_b32 v6, 1, v6\nv_mov_b32 v{vLSUM+1}, v{vMN}\nds_write_b64 v6, {v2(vLSUM)} offset:{L_LS}")
    lds_flag(F_PD, vaddr=vOWN)
    vO, vVF, vPF, vVA = 32, 48, 80, 184
    A("v_and_b32 v5, 12, v1\nv_lshrrev_b32 v6, 4, v1\nv_add_u32 v6, v6, v5\nv_lshlrev_b32 v6, 8, v6")
    A(f"v_lshrrev_b32 v{vX1}, 3, v1\nv_and_b32 v{vX1}, 2, v{vX1}\nv_or_b32 v5, v5, v{vX1}")
    A(f"v_bfe_u32 v{vX1}, v1, 1, 1\nv_xor_b32 v5, v5, v{vX1}\ns_lshl_b32 s{sT2}, s{sC}, 3\nv_xor_b32 v5, s{sT2}, v5")
    A(f"v_lshl_add_u32 v6, v5, 4, v6\nv_and_b32 v5, 1, v1\nv_lshl_add_u32 v{vVA}, v5, 3, v6")
    for n in range(1, 4):
        A(f"v_xor_b32 v{vVA+n}, {32*n}, v{vVA}")
    for i in range(4):
        A(f"v_mov_b32 v{vO+i}, 0")
    for i in range(32):
        A(f"v_mov_b32 v{vPF+i}, 0")
    for T in range(4):
        A(f"s_mov_b32 s{sPM+2*T}, {hex(0x000f000f << (4*T))}\ns_mov_b32 s{sPM+2*T+1}, s{sPM+2*T}")
    A(f"v_mov_b32 v{vDN}, 33\nv_mov_b32 v{vPA}, v29")
    A(f"s_mov_b32 s{sLB}, {(32 % NSLOT) * 16384}\ns_mov_b32 s{sTHR}, {8*(U0+64+1)}\ns_mov_b32 s{sCNT}, 0")
    tail_prep()
    A(f"v_lshrrev_b32 v6, 2, v1\nv_lshlrev_b32 v6, 11, v6\nv_and_b32 v5, 3, v1\nv_lshl_add_u32 v{vO1}, v5, 4, v6")
    A(f"s_lshl_b32 s{sT2}, s{sC}, 15\ns_add_u32 s{sT1}, s{sXB}, s{sT2}\ns_lshl_b32 s{sT2}, s{sJJ}, 6\ns_add_u32 s{sT1}, s{sT1}, s{sT2}")
    lds_wait(F_PD, sT0, 1, "pd", sleep=0, vaddr=vOTH)
    stamp(5, 1)
    A("; ======== pass 2: P V")
    vSC = 28
    A("L_p2:")
    for n in range(4):
        A(f"v_add_u32 v{vAD+n}, s{sLB}, v{vVA+n}")
    A(f"s_cmp_lg_u32 s{sCNT}, {prept}\ns_cbranch_scc1 L_nosc")
    lds_wait(F_SC, sT0, 1, "sc", sleep=1)
    A(f"v_and_b32 v5, 3, v1\nv_lshlrev_b32 v5, 2, v5\nds_read_b32 v{vSC}, v5 offset:{L_SC}")
    A("L_nosc:")
    for T in range(4):
        A(f"s_mov_b64 exec, {s2(sPM+2*T)}")
        for ks in range(2):
            A(f"ds_read_b128 {v4(vPF+16*ks+4*T)}, v{vPA} offset:{L_P + 256*ks}")
    A("s_mov_b64 exec, -1")
    for ks in range(2):
        lds_wait(F_RDY, sFL, f"s{sTHR}", "vrdy", sleep=csleep, cached=True)
        for T in range(4):
            for ih in range(2):
                A(f"ds_read_b64_tr_b16 {v2(vVF+16*ks+4*T+2*ih)}, v{vAD+T} offset:{L_RING + 8192*ks + 4096*ih}")
        A(f"s_add_u32 s{sTHR}, s{sTHR}, 8")
        if ks == 1:
            next_slot(1)
            A(f"s_add_u32 s{sCNT}, s{sCNT}, 1\nv_add_u32 v{vPA}, 512, v{vPA}")
        for T in range(4):
            lgkm(6 - 2 * T)
            A(f"v_mfma_f32_16x16x32_bf16 {v4(vO)}, {v4(vVF+16*ks+4*T)}, {v4(vPF+16*ks+4*T)}, {v4(vO)}")
    A(f"ds_write_b32 v{vOWN}, v{vDN} offset:{F_DONE}\nv_add_u32 v{vDN}, 1, v{vDN}")
    A(f"s_cmp_lt_u32 s{sCNT}, 32\ns_cbranch_scc1 L_p2")
    stamp(3)
    A(f"s_cmp_eq_u32 s{sMODE}, 2\ns_nop 2")
    for r in range(4):
        A(f"v_mul_f32 v{vO+r}, v{vO+r}, v{vSC}")
    for r in range(4):
        embed(vO + r, vO + r, TX4 + r)
    A(f"s_cbranch_scc0 L_h1far\nbuffer_store_dwordx4 {v4(vO)}, v{vO1}, {s4(rWS)}, s{sT1} offen\ns_branch L_late2")
    A(f"L_h1far:\nbuffer_store_dwordx4 {v4(vO)}, v{vO1}, {s4(rWS)}, s{sT1} offen sc1\ns_branch L_late2")

    A("L_help:")
    srd(rA, sX, 1024)
    vG, vXP = 56, 58
    A(f"v_and_b32 v6, 3, v1\nv_lshlrev_b32 v6, 3, v6\nv_lshrrev_b32 v5, 5, v1\nv_lshl_add_u32 v6, v5, 2, v6\ns_lshl_b32 s{sT1}, s{sJJ}, 5")
    A(f"s_cmp_lg_u32 s{sX8}, 0\ns_cbranch_scc1 L_nox\nbuffer_load_dword v{vXP}, v6, {s4(rA)}, s{sT1} offen\nL_nox:")
    make_tags()
    A(f"s_cmp_lg_u32 s{sGL}, 0\ns_cbranch_scc1 L_glu")
    lds_flag(F_GUP)
    A("s_branch L_h3f")
    A("L_glu:")
    A(f"s_and_b32 s{sT3}, s{sSUB}, 3")
    lds_wait(F_XN, sT0, 1, "xn", sleep=2)
    slice_mv(sT3, L_GU, 2, after_read=lambda: lds_flag(F_GUP))
    embed(32, 32, TX2); embed(33, 33, TX2 + 1)
    lds_wait(F_QH, sMODE, 1, "qh3", sleep=4)
    A(f"s_lshl_b32 s{sT1}, s{sJJ}, 8\ns_add_u32 s{sT1}, s{sT1}, s{sXB}\ns_add_u32 s{sT1}, s{sT1}, {X_G1}\ns_and_b32 s{sT0}, s{sT1}, {hex(0xfffff800)}")
    if skip & 4: A("s_branch L_hstat")
    A("s_mov_b32 exec_lo, 0x00ff00ff\ns_mov_b32 exec_hi, 0x00ff00ff")
    store2(f"buffer_store_dwordx2 v[32:33], v6, {s4(rWS)}, s{sT1} offen", f"s_cmp_eq_u32 s{sMODE}, 2")
    A("s_mov_b64 exec, -1")
    stamp(1)
    lds_wait(F_RDY, sFL, 8 * g2gate, "g2gate", sleep=16)
    for i in range(8):
        A(f"ds_read_b128 {v4(64+4*i)}, v4 offset:{L_WD + 1024*i}")
    poll([f"buffer_load_dwordx4 {v4(32+4*i)}, v4, {s4(rWS)}, s{sT0} offen offset:{1024*i} sc1" for i in range(2)],
         chk4([32, 36]), "g1poll", sleep=32)
    for e in range(8):
        swap_red(32 + e, vX0, "v_add_f32")
        rnd_bf16(32 + e)
    for e in range(4):
        sigmoid(32 + e, 32 + e)
        rnd_bf16(32 + e)
        A(f"v_mul_f32 v{32+e}, v{32+e}, v{36+e}")
    A("v_cvt_pk_bf16_f32 v32, v32, v33\nv_cvt_pk_bf16_f32 v33, v34, v35")
    A("v_and_b32 v5, 3, v1\nv_lshlrev_b32 v5, 5, v5\nv_and_b32 v6, 12, v1\nv_add_u32 v5, v5, v6\nv_lshlrev_b32 v6, 4, v2")
    A(f"ds_write_b32 v5, v32 offset:{L_HB}\nds_write_b32 v5, v33 offset:{L_HB+16}\nds_read_b128 v[20:23], v6 offset:{L_HB}")
    lgkm(0)
    matvec8(64, [f"v{20+k}" for k in range(4)], 32, 40)
    reduce8(32)
    A(f"v_lshrrev_b32 v6, 4, v1\nv_lshlrev_b32 v6, 3, v6\nv_lshl_add_u32 v6, v3, 1, v6\nv_lshlrev_b32 v5, 2, v1")
    A(f"ds_write_b64 v6, v[32:33] offset:{L_HB}\nds_read_b32 v32, v5 offset:{L_HB}")
    A(f"v_and_b32 v5, 7, v1\nv_lshlrev_b32 v5, 2, v5\nv_lshrrev_b32 v33, v5, s{sTAG}\nv_and_b32 v33, 15, v33")
    A(f"v_lshrrev_b32 v6, 4, v1\nv_lshlrev_b32 v6, 11, v6\nv_and_b32 v5, 15, v1\nv_lshl_add_u32 v6, v5, 2, v6")
    A(f"s_lshl_b32 s{sT1}, s{sSUB}, 13\ns_lshl_b32 s{sT2}, s{sCB}, 6\ns_add_u32 s{sT1}, s{sT1}, s{sT2}\ns_add_u32 s{sT1}, s{sT1}, {WS_GL}")
    lgkm(0)
    embed(32, 32, 33)
    if not skip & 1:
        A(f"buffer_store_dword v32, v6, {s4(rWS)}, s{sT1} offen sc1")
    A("L_h3f:")
    A(f"s_cmp_lg_u32 s{sX8}, 0\ns_cbranch_scc1 L_hstat")
    if skip & 2: A("s_branch L_hstat")
    lds_wait(F_RDY, sFL, 8 * g3gate, "g3gate", sleep=16)
    A(f"s_lshl_b32 s{sH}, s{sJJ}, 11\ns_add_u32 s{sH}, s{sH}, {WS_GL}")
    A(f"v_min_u32 v6, 47, v1\nv_and_b32 v6, 60, v6\nv_and_b32 v5, 3, v1\nv_or_b32 v6, v6, v5\nv_lshlrev_b32 v6, 4, v6")
    poll([f"buffer_load_dwordx4 v[64:67], v4, {s4(rWS)}, s{sH} offen sc1",
          f"buffer_load_dwordx4 v[68:71], v6, {s4(rWS)}, s{sH} offen offset:1024 sc1"], chk4([64, 68]), "gpoll", sleep=64)
    A("s_mov_b32 exec_hi, 0xffff")
    for e in range(4):
        A(f"v_add_f32 v{64+e}, v{64+e}, v{68+e}")
    A("s_mov_b64 exec, -1")
    red4(64)
    for e in range(2):
        rnd_bf16(64 + e)
        sigmoid(68, 64 + e)
        A(f"v_mul_f32 v{vG+e}, v{64+e}, v68")
        rnd_bf16(vG + e)
    A("L_hstat:")
    stamp(2)
    lds_wait(F_PD, sT0, 1, "pdh", sleep=16, pair=True)
    lds_wait(F_TG, sT0, 1, "tg", sleep=4)
    lds_wait(F_QH, sMODE, 1, "qh4", sleep=4)
    A(f"v_and_b32 v5, 3, v1\nv_lshlrev_b32 v5, 3, v5")
    A(f"ds_read_b64 v[32:33], v5 offset:{L_LS}\nds_read_b32 v34, v5 offset:{L_LS+32}")
    lgkm(0)
    A(f"v_add_f32 v32, v32, v34\nv_log_f32 v32, v32\nv_mov_b32 v35, s{sTAG}\nv_add_f32 v34, v32, v33")
    A(f"s_add_u32 s{sT0}, s{sXB}, {X_LS}\ns_lshl_b32 s{sT1}, s{sJJ}, 5\ns_add_u32 s{sT1}, s{sT1}, s{sT0}")
    A("s_mov_b64 exec, 15")
    store2(f"buffer_store_dwordx2 v[34:35], v5, {s4(rWS)}, s{sT1} offen", f"s_cmp_eq_u32 s{sMODE}, 2")
    A("s_mov_b64 exec, -1")
    lds_wait(F_RDY, sFL, 8 * lsgate, "lsgate", sleep=16)
    A(f"v_lshlrev_b32 v6, 3, v1")
    poll([f"buffer_load_dwordx2 {v2(36+2*i)}, v6, {s4(rWS)}, s{sT0} offen offset:{512*i} sc1" for i in range(2)],
         [(37, f"s{sTAG}"), (39, f"s{sTAG}")], "lspoll", sleep=16, full=True)
    A("v_max_f32 v40, v36, v38")
    wave_red(40, vX0, "v_max_f32", (8, 4))
    A("v_sub_f32 v36, v36, v40\nv_sub_f32 v38, v38, v40\nv_exp_f32 v36, v36\nv_exp_f32 v38, v38\nv_sub_f32 v33, v33, v40\nv_add_f32 v36, v36, v38")
    wave_red(36, vX0, "v_add_f32", (8, 4))
    A("v_exp_f32 v33, v33\nv_rcp_f32 v36, v36\nv_lshrrev_b32 v5, 1, v5\nv_mul_f32 v33, v33, v36")
    A(f"ds_write_b32 v5, v33 offset:{L_SC}")
    lds_flag(F_SC)
    stamp(3)
    tail_prep()
    A("L_late:")
    lds_wait(F_RDY, sFL, NV - 16, "late", sleep=4)
    A("L_late2:")
    stamp(4, 0)
    lds_wait(F_RDY, sFL, NV + pgate, "late2", sleep=0)

    A("; ======== tail")
    A("L_tail:")
    def ld1(r):
        for i in range(2):
            A(f"buffer_load_dwordx4 {v4(r+4*i)}, v4, {s4(rWS)}, s{sI1} offen offset:{1024*i} sc1")
    ld1(144)
    lds_wait(F_RDY, sFL, NLD, "wordy", sleep=0, cached=True)
    ld1(152)
    for h in range(4):
        for z in range(2):
            A(f"ds_read_b64_tr_b16 {v2(vWO+4*h+2*z)}, v{vWA+z} offset:{L_WO + 1024*h}")
    A(f"s_mov_b32 s{sSPIN}, 0\ns_waitcnt vmcnt(2)")
    untag(chk4([144, 148]))
    padd(40, 144, 148, 4)
    A("s_cbranch_vccz L_h1ok")
    A("L_h1poll:")
    A("s_waitcnt vmcnt(0)")
    untag(chk4([152, 156]))
    padd(40, 152, 156, 4)
    A("s_cbranch_vccz L_h1ok")
    ld1(152)
    A(f"s_add_u32 s{sSPIN}, s{sSPIN}, 1\ns_cmp_lt_u32 s{sSPIN}, s{sLIM}\ns_cbranch_scc1 L_h1poll")
    A("L_h1ok:")
    stamp(5, 0)
    red4(40)
    A(f"v_cvt_pk_bf16_f32 v40, v40, v41\ns_nop 0")
    for u in range(8):
        A(f"v_readlane_b32 s{sH+u}, v40, {32*(u&1) + (u>>1)}")
    lgkm(0)
    for u in range(8):
        for z in range(2):
            c = "0" if u == 0 else f"v{48+z}"
            A(f"v_dot2_f32_bf16 v{48+z}, s{sH+u}, v{vWO+4*(u>>1)+2*z+(u&1)}, {c}")
    A(f"s_cmp_lg_u32 s{sTW}, 3\ns_nop 1")
    A(f"ds_write2_b32 v{vRW}, v48, v49 offset1:64")
    A("s_waitcnt lgkmcnt(0)\ns_barrier\ns_cbranch_scc1 L_fin")
    for p in range(4):
        A(f"ds_read_b64 {v2(42+2*p)}, v{vRR} offset:{L_RED + 512*p}")
    A(f"s_lshl2_add_u32 s{sT0}, s{sX8}, s{sMODE}\ns_cmp_eq_u32 s{sT0}, 2")
    lgkm(0)
    padd(48, 48, 42, 2); padd(44, 44, 46, 2); padd(48, 48, 44, 2)
    embed(48, 48, TX2); embed(49, 49, TX2 + 1)
    A(f"s_cbranch_scc1 L_t3\nbuffer_store_dwordx2 v[48:49], v{vO2}, {s4(rWS)}, s{sO2} offen sc1")
    A(f"s_cmp_lg_u32 s{sX8}, 0\ns_cbranch_scc1 L_fin\ns_branch L_t3b")
    A("L_t3:")
    A(f"buffer_store_dwordx2 v[48:49], v{vO2}, {s4(rWS)}, s{sO2} offen")
    A("L_t3b:")
    def ld2(i):
        A(f"buffer_load_dwordx4 {v4(64+4*i)}, v{vI2}, {s4(rWS)}, s{sI2+i} offen sc1")
    A("s_waitcnt vmcnt(0)")
    A(f"s_lshr_b32 s{sI2}, s{sJJ}, 1\ns_lshl_b32 s{sI2}, s{sI2}, 10\ns_and_b32 s{sT2}, s{sJJ}, 1\ns_lshl_b32 s{sT2}, s{sT2}, 6\ns_add_u32 s{sI2}, s{sI2}, s{sT2}")
    A(f"s_add_u32 s{sI2}, s{sI2}, {X_H2}")
    for i in range(1, 4):
        A(f"s_add_u32 s{sI2+i}, s{sI2}, {i << 18}")
    A(f"v_lshlrev_b32 v50, 16, v{vXP}\nv_and_b32 v51, s{sHI}, v{vXP}")
    srd(rA, sOUT, 1024)
    A(f"s_lshl_b32 s{sT3}, s{sJJ}, 5\ns_mov_b32 s{sSPIN}, 0")
    if tdel:
        A(f"s_sleep {tdel}")
    for i in (1, 2, 3, 0):
        ld2(i)
    A("L_h2poll:")
    A("s_waitcnt vmcnt(0)")
    untag(chk4([64, 68, 72, 76]))
    A("s_cbranch_vccz L_h2ok")
    for i in range(4):
        ld2(i)
    A(f"s_add_u32 s{sSPIN}, s{sSPIN}, 1\ns_cmp_lt_u32 s{sSPIN}, s{sLIM}\ns_cbranch_scc1 L_h2poll")
    A("L_h2ok:")
    stamp(6, 0)
    padd(64, 64, 72, 8)
    padd(64, 64, 68, 4)
    red4(64)
    A(f"v_cvt_pk_bf16_f32 v64, v64, v65\nv_and_b32 v65, s{sHI}, v64\nv_lshlrev_b32 v64, 16, v64")
    A(f"v_mul_f32 v64, v64, v{vG}\nv_mul_f32 v65, v65, v{vG+1}")
    A(f"v_cvt_pk_bf16_f32 v64, v64, v65\nv_and_b32 v65, s{sHI}, v64\nv_lshlrev_b32 v64, 16, v64")
    A("v_add_f32 v64, v64, v50\nv_add_f32 v65, v65, v51\nv_cvt_pk_bf16_f32 v64, v64, v65")
    A("s_mov_b32 exec_lo, 15\ns_mov_b32 exec_hi, 15")
    A(f"buffer_store_dword v64, v{vOA}, {s4(rA)}, s{sT3} offen")
    A(f"s_cmp_lg_u32 s{sJJ}, 0\ns_cbranch_scc1 L_fin")
    A(f"s_mov_b64 exec, 1\nv_mov_b32 v65, s{sTAG}\ns_mov_b32 s{sT1}, {WS_EPOCH}")
    A(f"buffer_store_dword v65, v7, {s4(rWS)}, s{sT1} offen")
    A("L_fin:")
    if stamps:
        A("s_mov_b64 exec, -1")
        A("s_waitcnt vmcnt(0)")
        stamp(7)
        A("s_waitcnt lgkmcnt(0)")
        if diag is not None:
            dw, dwg, di, dj, mult = diag
            A(f"s_cmp_lg_u32 s{sW}, {dw}\ns_cbranch_scc1 L_padout\ns_cmp_lg_u32 s2, {dwg}\ns_cbranch_scc1 L_padout")
            A(f"s_sub_u32 s{sT2}, s{sST+2*di}, s{sST+2*dj}\ns_mul_i32 s{sT2}, s{sT2}, {mult}\ns_min_u32 s{sT2}, s{sT2}, 100000")
            A(f"s_add_u32 s{sT2}, s{sT2}, s{sST}\ns_add_u32 s{sT2}, s{sT2}, 10000")
            A("L_pad:")
            A(f"s_memrealtime {s2(sH)}\ns_waitcnt lgkmcnt(0)\ns_sub_u32 s{sT3}, s{sH}, s{sT2}\ns_cmp_lt_i32 s{sT3}, 0\ns_cbranch_scc1 L_pad")
            A("L_padout:")
        if span is not None:
            A(f"s_cmp_lg_u32 s{sW}, {span[0]}\ns_cbranch_scc1 L_skout")
            if len(span) > 2:
                A(f"s_cmp_lg_u32 s{sX8}, {span[2]}\ns_cbranch_scc1 L_skout")
            srd(rB, 44, 256)
            A(f"buffer_load_dword v16, v7, {s4(rB)}, 0 offen offset:64 sc1\ns_waitcnt vmcnt(0)\nv_readfirstlane_b32 s{sT2}, v16\ns_nop 3")
            A(f"s_not_b32 s{sT0}, s{sT2}\ns_sub_u32 s{sT2}, s{sST+2*span[1]}, s{sT0}\ns_sub_u32 s{sT2}, s{sT2}, 3000\ns_mul_i32 s{sT2}, s{sT2}, 10\ns_min_u32 s{sT2}, s{sT2}, 100000")
            A(f"s_add_u32 s{sT2}, s{sT2}, s{sT0}\ns_add_u32 s{sT2}, s{sT2}, 10000")
            A("L_skpad:")
            A(f"s_memrealtime {s2(sH)}\ns_waitcnt lgkmcnt(0)\ns_sub_u32 s{sT3}, s{sH}, s{sT2}\ns_cmp_lt_i32 s{sT3}, 0\ns_cbranch_scc1 L_skpad")
            A("L_skout:")
        for i in range(8):
            A(f"v_mov_b32 v{96+i}, s{sST+2*i}")
        A(f"s_mul_i32 s{sT1}, s2, 5\ns_add_u32 s{sT1}, s{sT1}, s{sW}\ns_lshl_b32 s{sT1}, s{sT1}, 5\ns_add_u32 s{sT1}, s{sT1}, {WS_STAMP}")
        A("s_mov_b64 exec, 1")
        A(f"buffer_store_dwordx4 v[96:99], v7, {s4(rWS)}, s{sT1} offen")
        A(f"buffer_store_dwordx4 v[100:103], v7, {s4(rWS)}, s{sT1} offen offset:16")
    A("L_end:")
    A("s_endpgm")

    out = HEADER
    out += f"; @launch grid=(256,1,1) block=(320,1,1) lds={LDS_BYTES}\n"
    out += DOC
    out += '.amdgcn_target "amdgcn-amd-amdhsa--gfx950"\n.text\n'
    out += f".globl {KNAME}_kernel\n.p2align 8\n.type {KNAME}_kernel,@function\n"
    out += "\n".join(A.L) + "\n"
    out += f""".section .rodata,"a"
.p2align 6
.amdhsa_kernel {KNAME}_kernel
  .amdhsa_next_free_vgpr 216
  .amdhsa_next_free_sgpr 102
  .amdhsa_accum_offset 216
  .amdhsa_group_segment_fixed_size 0
  .amdhsa_kernarg_size 96
  .amdhsa_user_sgpr_count 2
  .amdhsa_user_sgpr_kernarg_segment_ptr 1
  .amdhsa_system_sgpr_workgroup_id_x 1
.end_amdhsa_kernel
"""
    return out


if __name__ == "__main__":
    kw = json.loads(sys.argv[2]) if len(sys.argv) > 2 else {}
    open(sys.argv[1], "w").write(gen(**kw))
```
